```python
import torch

def _softmax(x, axis=-1):
    return torch.softmax(x, dim=axis)
def _gelu(x):
    return torch.nn.functional.gelu(x, approximate="tanh")
def _silu(x):
    return torch.nn.functional.silu(x)
def _sigmoid(x):
    return torch.sigmoid(x)
def _layernorm(x, axis=-1, eps=1e-5):
    m = x.mean(dim=axis, keepdim=True)
    v = x.var(dim=axis, keepdim=True, unbiased=False)
    return (x - m) / torch.sqrt(v + eps)
def _scatter_add(tgt, idx, src, axis=0):
    return tgt.clone().index_add_(axis, idx, src)
def _segment_sum(src, seg, n):
    out = torch.zeros((n,) + src.shape[1:], dtype=src.dtype)
    return out.index_add_(0, seg, src)
def _pad(x, pw):
    flat = tuple(v for pair in reversed(pw) for v in pair)
    return torch.nn.functional.pad(x, flat)

kernel_name = 'concat_heads__mha_block_cached__gqa_block_cached__near_ridge'

def setup_inputs():

    _w = (lambda a: (lambda t: t.to(torch.bfloat16) if t.is_floating_point() else t)(torch.as_tensor(a)))
    def _A_setup():
        B, Sq, D = 16, 192, 512
        H, Sk, Dh = 32, 512, 128
        return {
            "x": _w((lambda *s: torch.randn(*s, dtype=torch.bfloat16) * 0.8)(B, Sq, D)),
            "k_cache": _w((lambda *s: torch.randn(*s, dtype=torch.bfloat16) * 0.8)(B, H, Sk, Dh)),
            "v_cache": _w((lambda *s: torch.randn(*s, dtype=torch.bfloat16) * 0.05)(B, H, Sk, Dh)),
            "wq": _w((lambda *s: torch.randn(*s, dtype=torch.bfloat16) * 0.8)(D, H * Dh) * (D ** -0.5)),
            "wo": _w((lambda *s: torch.randn(*s, dtype=torch.bfloat16) * 0.05)(H * Dh, D) * ((H * Dh) ** -0.5)),
        }
    _A_in = _A_setup()

    def _B_setup():
        B, Sq, D = 16, 192, 512
        Hq, Hkv, Sk, Dh = 32, 32, 512, 128
        assert Hq % Hkv == 0, (Hq, Hkv)
        return {
            "x": _w((lambda *s: torch.randn(*s, dtype=torch.bfloat16) * 0.8)(B, Sq, D)),
            "k_cache": _w((lambda *s: torch.randn(*s, dtype=torch.bfloat16) * 0.8)(B, Hkv, Sk, Dh)),
            "v_cache": _w((lambda *s: torch.randn(*s, dtype=torch.bfloat16) * 0.05)(B, Hkv, Sk, Dh)),
            "wq": _w((lambda *s: torch.randn(*s, dtype=torch.bfloat16) * 0.8)(D, Hq * Dh) * (D ** -0.5)),
            "wo": _w((lambda *s: torch.randn(*s, dtype=torch.bfloat16) * 0.05)(Hq * Dh, D) * ((Hq * Dh) ** -0.5)),
        }
    _B_in = _B_setup()

    return {
        "A_x": _A_in["x"],
        "A_k_cache": _A_in["k_cache"],
        "A_v_cache": _A_in["v_cache"],
        "A_wq": _A_in["wq"],
        "A_wo": _A_in["wo"],
        "B_x": _B_in["x"],
        "B_k_cache": _B_in["k_cache"],
        "B_v_cache": _B_in["v_cache"],
        "B_wq": _B_in["wq"],
        "B_wo": _B_in["wo"],
    }

def reference(A_x, A_k_cache, A_v_cache, A_wq, A_wo, B_x, B_k_cache, B_v_cache, B_wq, B_wo):
    def _A_ref(x, k_cache, v_cache, wq, wo):
        B, Sq, D = x.shape
        H, Dh = 32, 128
        q = (lambda x, *d: x.permute(*d))((x @ wq).reshape(B, Sq, H, Dh), 0, 2, 1, 3)
        scores = torch.einsum("bhqd,bhkd->bhqk", q, k_cache) * (Dh ** -0.5)
        p = _softmax(scores, axis=-1)
        o = torch.einsum("bhqk,bhkd->bhqd", p, v_cache)
        return (lambda x, *d: x.permute(*d))(o, 0, 2, 1, 3).reshape(B, Sq, H * Dh) @ wo

    def _B_ref(x, k_cache, v_cache, wq, wo):
        B, Sq, D = x.shape
        Hq, Dh = 32, 128
        Hkv = k_cache.shape[1]
        rep = Hq // Hkv
        q = (lambda x, *d: x.permute(*d))((x @ wq).reshape(B, Sq, Hq, Dh), 0, 2, 1, 3)
        k = (lambda x, n, axis: torch.repeat_interleave(x, n, dim=axis))(k_cache, rep, axis=1)
        v = (lambda x, n, axis: torch.repeat_interleave(x, n, dim=axis))(v_cache, rep, axis=1)
        scores = torch.einsum("bhqd,bhkd->bhqk", q, k) * (Dh ** -0.5)
        p = _softmax(scores, axis=-1)
        o = torch.einsum("bhqk,bhkd->bhqd", p, v)
        return (lambda x, *d: x.permute(*d))(o, 0, 2, 1, 3).reshape(B, Sq, Hq * Dh) @ wo

    a = _A_ref(A_x, A_k_cache, A_v_cache, A_wq, A_wo)
    b = _B_ref(B_x, B_k_cache, B_v_cache, B_wq, B_wo)
    return torch.concatenate([a, b], axis=-1)
```

```python
import re

def R(kind, lo, n=1):
    return [f"{kind}{lo+i}" for i in range(n)]
def rng(kind, lo, n):
    return f"{kind}{lo}" if n == 1 else f"{kind}[{lo}:{lo+n-1}]"

class I:
    __slots__ = ("txt", "kind", "rd", "wr", "meta")
    def __init__(self, txt, kind, rd=(), wr=(), **meta):
        self.txt = txt; self.kind = kind; self.rd = set(rd); self.wr = set(wr); self.meta = meta
    def __repr__(self): return self.txt

TRANS = ("v_exp_f32", "v_rcp_f32", "v_log_f32", "v_rsq_f32", "v_sqrt_f32")

_reg_re = re.compile(r"\b([vas])\[(\d+):(\d+)\]|\b([vas])(\d+)\b|\b(m0|vcc|exec|scc)\b")
def parse_regs(op):
    out = []
    for m in _reg_re.finditer(op):
        if m.group(1):
            out += [f"{m.group(1)}{k}" for k in range(int(m.group(2)), int(m.group(3)) + 1)]
        elif m.group(4):
            out.append(f"{m.group(4)}{m.group(5)}")
        else:
            out.append(m.group(6))
    return out

def split_ops(s):
    ops = []; depth = 0; cur = ""
    for ch in s:
        if ch == "[": depth += 1
        if ch == "]": depth -= 1
        if ch == "," and depth == 0:
            ops.append(cur.strip()); cur = ""
        else:
            cur += ch
    if cur.strip(): ops.append(cur.strip())
    return ops

def ins(txt, **meta):
    t = txt.strip()
    name = t.split()[0]
    rest = t[len(name):].strip()
    ops = split_ops(rest)
    rd = []; wr = []
    if name.startswith("v_mfma"):
        wr = parse_regs(ops[0]);
        a = parse_regs(ops[1]); b = parse_regs(ops[2]); c = parse_regs(ops[3])
        return I(t, "mfma", rd=a + b + c, wr=wr, A=a, B=b, C=c, passes=(8 if "32x32" in name else 4), **meta)
    if name.startswith("ds_read"):
        wr = parse_regs(ops[0]); rd = parse_regs(ops[1].split()[0])
        return I(t, "ds_read", rd, wr, **meta)
    if name.startswith("ds_write"):
        rd = parse_regs(ops[0]) + parse_regs(ops[1].split()[0])
        return I(t, "ds_write", rd, [], **meta)
    if name.startswith("buffer_load") or name.startswith("global_load"):
        if " lds" in t:
            rd = []
            for o in ops: rd += parse_regs(o.split()[0])
            rd.append("m0")
            return I(t, "dma", rd, [], **meta)
        wr = parse_regs(ops[0])
        for o in ops[1:]: rd += parse_regs(o.split()[0])
        return I(t, "vload", rd, wr, **meta)
    if name.startswith("buffer_store") or name.startswith("global_store"):
        for o in ops: rd += parse_regs(o.split()[0])
        data = parse_regs(ops[0]) if name.startswith("buffer_store") else parse_regs(ops[1])
        return I(t, "vstore", rd, [], data=data, wide=("x4" in name or "x3" in name), **meta)
    if name.startswith("buffer_atomic") or name.startswith("global_atomic"):
        for o in ops: rd += parse_regs(o.split()[0])
        wr = parse_regs(ops[0]) if " sc0" in t else []
        return I(t, "vload" if wr else "vstore", rd, wr, data=[], wide=False, **meta)
    if name == "s_waitcnt": return I(t, "wait", **meta)
    if name == "s_barrier": return I(t, "barrier", **meta)
    if name == "s_nop": return I(t, "nop", n=int(ops[0]) + 1, **meta)
    if name.startswith("s_load") or name.startswith("s_memtime") or name.startswith("s_memrealtime"):
        wr = parse_regs(ops[0])
        for o in ops[1:]: rd += parse_regs(o)
        return I(t, "smem", rd, wr, **meta)
    if name.startswith("s_cbranch") or name in ("s_branch", "s_endpgm", "s_setprio", "s_sleep", "s_setpc_b64"):
        return I(t, "branch", parse_regs(rest), [], **meta)
    if name.startswith("s_cmp"):
        return I(t, "salu", parse_regs(rest), ["scc"], **meta)
    if name.startswith("s_"):
        wr = parse_regs(ops[0])
        for o in ops[1:]: rd += parse_regs(o)
        if name.startswith("s_and_saveexec") : wr += ["exec"]; rd += ["exec"]
        if "cselect" in name or "addc" in name: rd.append("scc")
        return I(t, "salu", rd, wr + ["scc"], **meta)
    if name.startswith("v_permlane"):
        r = parse_regs(ops[0]) + parse_regs(ops[1])
        return I(t, "permlane", r, r, **meta)
    if name.startswith("v_cmp"):
        wr = parse_regs(ops[0])
        for o in ops[1:]: rd += parse_regs(o)
        return I(t, "valu", rd, wr, **meta)
    if name.startswith("v_readfirstlane") or name.startswith("v_readlane"):
        wr = parse_regs(ops[0])
        for o in ops[1:]: rd += parse_regs(o)
        return I(t, "valu", rd, wr, readlane=True, **meta)
    if name.startswith("v_"):
        wr = parse_regs(ops[0])
        for o in ops[1:]: rd += parse_regs(o)
        if name.startswith("v_fmac") or name.startswith("v_dot2c"): rd += wr
        if name.startswith("v_cndmask") and len(ops) == 3: rd.append("vcc")
        base = name.replace("_e32", "").replace("_e64", "")
        return I(t, "trans" if base in TRANS else "valu", rd, wr, **meta)
    raise ValueError("unknown instr: " + t)

class Prog:
    def __init__(self):
        self.L = []
    def __call__(self, txt, **meta):
        i = ins(txt, **meta); self.L.append(i); return i
    def add(self, i): self.L.append(i)
    def raw(self, txt): self.L.append(I(txt, "label"))
    def comment(self, txt): self.L.append(I("; " + txt, "label"))
    def wait_tag(self, tag):
        self.L.append(I("", "wait_tag", tag=tag))
    def extend(self, l): self.L.extend(l)

VALUISH = ("valu", "trans", "permlane")

def finalize(L, check_only=False):
    out = []
    lg = []
    vm = []
    smem_out = set()
    stats = dict(nops=0, lgk=0, vmw=0)
    def emit(i): out.append(i)
    def states_since(pred, maxlook):
        n = 0
        for k in range(len(out) - 1, -1, -1):
            p = out[k]
            if p.kind in ("label",): continue
            if pred(p): return n
            n += p.meta["n"] if p.kind == "nop" else 1
            if n >= maxlook: return None
        return None
    def need(pred, ws, states):
        s = states_since(pred, ws)
        if s is not None and s < ws: states.append(ws - s)
    for i in L:
        if i.kind == "label":
            emit(i); continue
        if i.kind == "wait_tag":
            tag = i.meta["tag"]
            idx = [k for k, o in enumerate(vm) if o["tag"] == tag]
            if idx:
                n = len(vm) - 1 - idx[-1]
                n = min(n, 63)
                emit(I(f"s_waitcnt vmcnt({n})", "wait")); stats["vmw"] += 1
                vm = vm[len(vm) - n:] if n > 0 else []
            continue
        touched = i.rd | i.wr
        if i.kind == "wait":
            m = re.search(r"lgkmcnt\((\d+)\)", i.txt)
            if m:
                n = int(m.group(1)); lg = lg[len(lg) - n:] if n > 0 and n < len(lg) else (lg if n > 0 else [])
                if n == 0: smem_out = set()
            m = re.search(r"vmcnt\((\d+)\)", i.txt)
            if m:
                n = int(m.group(1)); vm = vm[len(vm) - n:] if 0 < n < len(vm) else (vm if n > 0 else [])
            emit(i); continue
        if smem_out & touched:
            emit(I("s_waitcnt lgkmcnt(0)", "wait")); lg = []; smem_out = set()
        idx = [k for k, o in enumerate(lg) if o & touched]
        if idx:
            n = min(len(lg) - 1 - idx[-1], 15)
            emit(I(f"s_waitcnt lgkmcnt({n})", "wait")); stats["lgk"] += 1
            lg = lg[len(lg) - n:] if n > 0 else []
        idx = [k for k, o in enumerate(vm) if o["wr"] & touched]
        if idx:
            n = min(len(vm) - 1 - idx[-1], 63)
            emit(I(f"s_waitcnt vmcnt({n})", "wait")); stats["vmw"] += 1
            vm = vm[len(vm) - n:] if n > 0 else []
        st = []
        vregs_rd = {r for r in i.rd if r[0] in "va" and r not in ("vcc",)}
        vregs_wr = {r for r in i.wr if r[0] in "va" and r not in ("vcc",)}
        sregs_rd = {r for r in i.rd if (r[0] == "s" and r != "scc") or r in ("vcc", "exec")}
        if i.kind == "mfma":
            need(lambda p: p.kind in VALUISH and (p.wr & i.rd), 2, st)
            ab = set(i.meta["A"]) | set(i.meta["B"]); c = set(i.meta["C"])
            for passes, w_ab, w_c in ((4, 8, 6), (8, 12, 10)):
                need(lambda p: p.kind == "mfma" and p.meta["passes"] == passes and (p.wr & ab), w_ab, st)
                need(lambda p: p.kind == "mfma" and p.meta["passes"] == passes and (p.wr & c) and not (p.wr == c and p.meta["passes"] == i.meta["passes"]), w_c, st)
                need(lambda p: p.kind == "mfma" and p.meta["passes"] == passes and (p.wr & i.wr) and not (p.wr == c), w_c, st)
            need(lambda p: p.kind in VALUISH and "exec" in p.wr, 4, st)
        else:
            if i.kind in VALUISH + ("vstore", "vload", "dma", "ds_read", "ds_write"):
                for passes, w in ((4, 8), (8, 12)):
                    need(lambda p: p.kind == "mfma" and p.meta["passes"] == passes and (p.wr & (vregs_rd | vregs_wr)), w, st)
            if i.kind in VALUISH:
                for passes, w in ((4, 3), (8, 7)):
                    need(lambda p: p.kind == "mfma" and p.meta["passes"] == passes and (set(p.meta["C"]) & vregs_wr), w, st)
                if i.kind != "trans":
                    need(lambda p: p.kind == "trans" and (p.wr & vregs_rd), 1, st)
                need(lambda p: p.kind == "vstore" and p.meta.get("wide") and (set(p.meta["data"]) & vregs_wr), 2, st)
                need(lambda p: p.kind in VALUISH and (p.wr & sregs_rd), 2, st)
                if i.kind == "permlane":
                    need(lambda p: p.kind in VALUISH and (p.wr & vregs_rd), 2, st)
                if i.meta.get("readlane"):
                    need(lambda p: p.kind in VALUISH and (p.wr & vregs_rd), 1, st)
            if i.kind in ("vstore", "vload", "dma"):
                need(lambda p: p.kind in VALUISH and (p.wr & sregs_rd), 5, st)
            if i.kind == "dma":
                need(lambda p: p.kind == "salu" and "m0" in p.wr, 1, st)
            if i.kind == "salu":
                need(lambda p: p.kind in VALUISH and (p.wr & sregs_rd), 4, st)
        if st:
            n = max(st); stats["nops"] += n
            while n > 0:
                k = min(n, 16); emit(I(f"s_nop {k-1}", "nop", n=k)); n -= k
        emit(i)
        if i.kind == "ds_read": lg.append(set(i.wr))
        elif i.kind == "ds_write": lg.append(set())
        elif i.kind == "smem": smem_out |= set(i.wr) or {"_"}
        elif i.kind in ("dma", "vstore"): vm.append(dict(wr=set(), tag=i.meta.get("tag")))
        elif i.kind == "vload": vm.append(dict(wr=set(i.wr), tag=i.meta.get("tag")))
    return out, stats

def text(L):
    return "\n".join(("    " + i.txt) if i.kind != "label" else i.txt for i in L if i.txt) + "\n"
```

```python
from dsl import *
import struct

def f32(x): return "0x%08x" % struct.unpack("<I", struct.pack("<f", x))[0]

NB, SQ, DM, H, SK, DH = 16, 192, 512, 32, 512, 128
X_BYTES = NB*SQ*DM*2
KV_BYTES = NB*H*SK*DH*2
W_BYTES = DM*H*DH*2
O_BYTES = 2*NB*2*128*6*1024
WOT_OFF = O_BYTES
WOT_BYTES = 2*4*128*8*1024
OUT_BYTES = NB*SQ*1024*2

def KB(s): return s*8192
def VB(s): return s*8192
WSLOT = [16384, 49152, 81920]
XA, XB = 114688, 139264
def XSLOT(tt): return XB if tt % 2 == 0 else XA

ACC = 64
def acc(T, qt): return ACC + (T*6 + qt)*4
SB = 8
def S(buf, kt): return SB + buf*8 + kt*4
PB = 24
def P(buf): return PB + buf*4
LS = 32
KA = 38
VA = 42
DV = 50
WA = 54
XAD = 58
WD = 60
XD = 62
VST = 4
def Q(qt, ks): return (qt*4 + ks)*4
def KF(buf, kt, ks): return 96 + buf*32 + (kt*4 + ks)*4
def VF(buf, dt): return 160 + buf*32 + dt*4
def WF(T): return 96 + T*4
def XF(buf, qt): return 128 + buf*24 + qt*4
SX, SW, SKV, SO, SWO, SWT = 4, 8, 12, 16, 20, 24
sW, sHP, sRH, sP, sB, sHG = 28, 29, 30, 31, 32, 33
sKVo, sKVl, sWo, sWl, sXo, sXl, sOo = 34, 35, 36, 37, 38, 39, 40
sT0, sT1, sC = 41, 42, 43
sWOo, sWTo = 44, 45

MF = "v_mfma_f32_16x16x32_bf16"
def mfma(d, dk, a, ak, b, bk, c=None):
    cs = "0" if c is None else rng(dk, c, 4)
    return ins(f"{MF} {rng(dk,d,4)}, {rng(ak,a,4)}, {rng(bk,b,4)}, {cs}")

class K2:
    def __init__(self, opts=None):
        self.o = dict(nt="nt", store_mod="", timing=False)
        if opts: self.o.update(opts)
        self.p = Prog()

    def dma_kv(self, item, j):
        L = []
        s = j % 4
        goff = item*2*131072 + j*8192
        for half in range(2):
            L.append([ins(f"s_add_u32 s{sT0}, s{sKVo}, {goff + half*4096}"),
                      ins(f"s_add_u32 m0, s{sKVl}, {s*8192 + half*4096}")])
            for k in range(4):
                L[-1].append(ins(f"buffer_load_dwordx4 v{DV+k}, s[{SKV}:{SKV+3}], s{sT0} offen offset:{1024*k} {self.o['nt']} lds", tag=("kv", item, j)))
        G = []
        for half in range(2):
            h = L[half]
            G.append(h[0:3]); G += [[x] for x in h[3:]]
        return G
    def dma_w(self, item, t):
        G = []
        slot = WSLOT[t % 3]
        for n in range(4):
            goff = item*512 + (32*t + 2*n)*8192
            G.append([ins(f"s_add_u32 s{sT0}, s{sWo}, {goff}"),
                      ins(f"s_add_u32 m0, s{sWl}, {slot + 2*n*512}"),
                      ins(f"buffer_load_dwordx4 v{WD + (n & 1)}, s[{SW}:{SW+3}], s{sT0} offen lds", tag=("w", item, t))])
        return G
    def dma_x(self, item, tt):
        G = []
        slot = XSLOT(tt)
        for n in range(6):
            G.append([ins(f"s_add_u32 s{sT0}, s{sXo}, {8*n*1024 + tt*128}"),
                      ins(f"s_add_u32 m0, s{sXl}, {slot + 8*n*128}"),
                      ins(f"buffer_load_dwordx4 v{XD + (n & 1)}, s[{SX}:{SX+3}], s{sT0} offen lds", tag=("x", item, tt))])
        return G
    def dma_wo(self, half):
        G = []
        for n in range(4):
            G.append([ins(f"s_add_u32 s{sT0}, s{sWOo}, {(16*half + n)*1024}"),
                      ins(f"s_add_u32 m0, s{sWl}, {WSLOT[half] + n*1024}"),
                      ins(f"buffer_load_dwordx4 v{VST}, s[{SWO}:{SWO+3}], s{sT0} offen lds", tag=("wo", half))])
        return G
    def rd_k(self, j, kt, ks):
        return ins(f"ds_read_b128 {rng('a', KF(j % 2, kt, ks), 4)}, v{KA+ks} offset:{KB(j % 4) + kt*4096}")
    def rd_v(self, j, dt, kt):
        return ins(f"ds_read_b64_tr_b16 {rng('a', VF(j % 2, dt) + 2*kt, 2)}, v{VA+dt} offset:{VB(j % 4) + kt*4096}")
    def rd_w(self, T, h2):
        ks, u = T >> 1, T & 1
        return ins(f"ds_read_b64_tr_b16 {rng('a', WF(T) + 2*h2, 2)}, v{WA+ks} offset:{h2*2048 + 8*u}")
    def rd_x(self, t, qt):
        tt, kc = t >> 1, t & 1
        return ins(f"ds_read_b128 {rng('a', XF(t % 2, qt), 4)}, v{XAD+kc} offset:{XSLOT(tt) - XA + qt*2048}")
    def w_addr_update(self, t):
        d = WSLOT[t % 3] - WSLOT[(t-1) % 3]
        return [ins(f"v_add_u32 v{WA+k}, {d & 0xffffffff}, v{WA+k}") for k in range(4)]

    def prologue(self):
        p = self.p
        p("s_cmp_ge_u32 s2, 256")
        p("s_cbranch_scc1 K2_END")
        p("s_load_dwordx16 s[48:63], s[0:1], 0")
        p("s_load_dwordx8 s[64:71], s[0:1], 64")
        p("s_load_dwordx2 s[72:73], s[0:1], 96")
        p(f"v_lshrrev_b32 v1, 6, v0")
        p(f"v_and_b32 v0, 63, v0")
        p(f"v_readfirstlane_b32 s{sW}, v1")
        p("s_and_b32 s74, s2, 7")
        p("s_lshr_b32 s75, s2, 3")
        p(f"s_lshr_b32 s{sP}, s74, 2")
        p("s_and_b32 s76, s74, 1")
        p("s_lshl_b32 s76, s76, 3")
        p("s_and_b32 s77, s75, 7")
        p(f"s_add_u32 s{sB}, s76, s77")
        p("s_lshr_b32 s76, s74, 1")
        p("s_and_b32 s76, s76, 1")
        p("s_lshl_b32 s76, s76, 2")
        p("s_lshr_b32 s77, s75, 3")
        p(f"s_add_u32 s{sHG}, s76, s77")
        p(f"s_and_b32 s{sHP}, s{sW}, 1")
        p(f"s_lshr_b32 s{sRH}, s{sW}, 1")
        p("s_waitcnt lgkmcnt(0)")
        p(f"s_cmp_eq_u32 s{sP}, 0")
        p(f"s_cselect_b32 s{SX}, s48, s58"); p(f"s_cselect_b32 s{SX+1}, s49, s59")
        p(f"s_cselect_b32 s{SW}, s54, s64"); p(f"s_cselect_b32 s{SW+1}, s55, s65")
        p(f"s_cselect_b32 s{SWO}, s56, s66"); p(f"s_cselect_b32 s{SWO+1}, s57, s67")
        p(f"s_cselect_b32 s78, s50, s60"); p(f"s_cselect_b32 s79, s51, s61")
        p(f"s_cselect_b32 s80, s52, s62"); p(f"s_cselect_b32 s81, s53, s63")
        p(f"s_cmp_eq_u32 s{sRH}, 0")
        p(f"s_cselect_b32 s{SKV}, s78, s80"); p(f"s_cselect_b32 s{SKV+1}, s79, s81")
        p(f"s_cselect_b32 s82, 64, 128"); p(f"s_cselect_b32 s83, 128, 0"); p("s_mov_b32 s84, 128"); p(f"s_cselect_b32 s84, 192, s84")
        p(f"s_cselect_b32 s85, 0, 1")
        p(f"s_cselect_b32 s{sKVl}, 0, 65536")
        for r, n in ((SX, X_BYTES), (SW, W_BYTES), (SWO, W_BYTES), (SKV, KV_BYTES)):
            p(f"s_mov_b32 s{r+2}, {n}"); p(f"s_mov_b32 s{r+3}, 0x00020000")
        p(f"s_mov_b32 s{SO}, s72"); p(f"s_mov_b32 s{SO+1}, s73"); p(f"s_mov_b32 s{SO+2}, {O_BYTES}"); p(f"s_mov_b32 s{SO+3}, 0x00020000")
        p(f"s_add_u32 s{SWT}, s72, {WOT_OFF}"); p(f"s_addc_u32 s{SWT+1}, s73, 0"); p(f"s_mov_b32 s{SWT+2}, {WOT_BYTES}"); p(f"s_mov_b32 s{SWT+3}, 0x00020000")
        p(f"s_lshl_b32 s76, s{sB}, 5"); p(f"s_lshl_b32 s77, s{sHG}, 2"); p("s_add_u32 s76, s76, s77"); p(f"s_add_u32 s76, s76, s{sHP}")
        p(f"s_lshl_b32 s{sKVo}, s76, 17")
        p(f"s_lshl_b32 s77, s{sHP}, 15"); p(f"s_add_u32 s{sKVl}, s{sKVl}, s77")
        p(f"s_lshl_b32 s76, s{sW}, 16"); p(f"s_lshl_b32 s77, s{sHG}, 10"); p(f"s_add_u32 s{sWo}, s76, s77")
        p(f"s_lshl_b32 s{sWl}, s{sW}, 12")
        p(f"s_mul_i32 s76, s{sB}, 196608"); p(f"s_mul_i32 s77, s{sW}, 49152"); p(f"s_add_u32 s{sXo}, s76, s77")
        p(f"s_mul_i32 s{sXl}, s{sW}, 6144")
        p(f"s_lshl_b32 s76, s{sP}, 4"); p(f"s_add_u32 s76, s76, s{sB}"); p("s_lshl_b32 s76, s76, 1"); p(f"s_add_u32 s76, s76, s{sRH}")
        p("s_lshl_b32 s76, s76, 7"); p(f"s_lshl_b32 s77, s{sHG}, 4"); p("s_add_u32 s76, s76, s77"); p(f"s_lshl_b32 s77, s{sHP}, 2"); p("s_add_u32 s76, s76, s77")
        p(f"s_mul_i32 s{sOo}, s76, 6144")
        p("s_and_b32 s76, s74, 3"); p("s_lshl_b32 s76, s76, 5"); p("s_add_u32 s76, s76, s75")
        p(f"s_lshl_b32 s77, s76, 15"); p(f"s_lshl_b32 s86, s{sW}, 12"); p(f"s_add_u32 s{sWOo}, s77, s86")
        p(f"s_lshl_b32 s77, s{sP}, 2"); p(f"s_add_u32 s77, s77, s{sW}"); p("s_lshl_b32 s77, s77, 7"); p("s_add_u32 s77, s77, s76"); p(f"s_lshl_b32 s{sWTo}, s77, 13")
        p(f"s_mov_b32 s{sC}, {f32(1.4426950408889634*128**-0.5)}")
        p("v_and_b32 v1, 15, v0"); p("v_lshrrev_b32 v2, 4, v0"); p("v_lshrrev_b32 v3, 2, v1"); p("v_and_b32 v5, 3, v1")
        p(f"v_lshlrev_b32 v{VST}, 4, v0")
        p(f"s_lshl_b32 s76, s{sHP}, 15")
        p("v_xor_b32 v6, v2, v1"); p("v_lshlrev_b32 v6, 4, v6"); p("v_lshl_add_u32 v6, v1, 8, v6"); p(f"v_add_u32 v{KA}, s76, v6")
        for ks in range(1, 4): p(f"v_xor_b32 v{KA+ks}, {64*ks}, v{KA}")
        p("v_and_b32 v6, 1, v2"); p("v_lshlrev_b32 v6, 2, v6"); p("v_add_u32 v6, v6, v3"); p("v_lshlrev_b32 v6, 1, v6")
        p("v_lshrrev_b32 v7, 1, v5"); p("v_xor_b32 v6, v6, v7"); p("v_lshlrev_b32 v6, 4, v6")
        p("v_and_b32 v7, 1, v5"); p("v_lshl_add_u32 v6, v7, 3, v6")
        p("v_lshl_add_u32 v7, v2, 2, v3"); p("v_lshl_add_u32 v6, v7, 8, v6")
        p("s_add_u32 s77, s76, 65536"); p(f"v_add_u32 v{VA}, s77, v6")
        for dt in range(1, 8): p(f"v_xor_b32 v{VA+dt}, {32*dt}, v{VA}")
        p("v_lshlrev_b32 v6, s85, v2"); p("v_xor_b32 v6, v6, v1"); p("v_lshlrev_b32 v6, 4, v6"); p(f"v_lshl_add_u32 v{DV}, v2, 8, v6")
        for k in range(1, 4): p(f"v_xor_b32 v{DV+k}, s{81+k}, v{DV}")
        p(f"s_lshl_b32 s76, s{sHP}, 4")
        p("v_add_u32 v6, s76, v5"); p("v_lshlrev_b32 v7, 2, v3"); p("v_xor_b32 v6, v6, v7"); p("v_lshlrev_b32 v6, 4, v6")
        p("v_lshl_add_u32 v7, v2, 3, v3"); p("v_lshl_add_u32 v6, v7, 9, v6"); p(f"v_add_u32 v{WA}, {WSLOT[0]}, v6")
        for ks in range(1, 4): p(f"v_xor_b32 v{WA+ks}, {64*ks}, v{WA}")
        p("v_lshrrev_b32 v6, 5, v0"); p("v_and_b32 v7, 31, v0"); p("v_lshlrev_b32 v8, 2, v6"); p("v_xor_b32 v7, v7, v8"); p("v_lshlrev_b32 v7, 4, v7")
        p(f"v_lshl_add_u32 v{WD}, v6, 13, v7"); p(f"v_xor_b32 v{WD+1}, 128, v{WD}")
        p(f"s_mul_i32 s76, s{sRH}, {96*128}"); p(f"s_add_u32 s76, s76, {XA}")
        p("v_lshrrev_b32 v6, 1, v1"); p("v_xor_b32 v6, v6, v2"); p("v_lshlrev_b32 v6, 4, v6"); p("v_lshl_add_u32 v6, v1, 7, v6"); p(f"v_add_u32 v{XAD}, s76, v6")
        p(f"v_xor_b32 v{XAD+1}, 64, v{XAD}")
        p("v_lshrrev_b32 v6, 3, v0"); p("v_and_b32 v7, 7, v0"); p("v_xor_b32 v7, v7, v2"); p("v_lshlrev_b32 v7, 4, v7")
        p(f"v_lshl_add_u32 v{XD}, v6, 10, v7"); p(f"v_xor_b32 v{XD+1}, 64, v{XD}")

    def stamp(self, k):
        if not self.o["timing"]: return
        p = self.p
        p(f"s_memrealtime s[88:89]")
        p("s_waitcnt lgkmcnt(0)")
        p(f"s_mov_b32 s{90+k}, s88")

    def emit_groups(self, groups):
        for g in groups:
            for x in g: self.p.add(x)

    def sched(self, mf, fill):
        p = self.p
        for x in fill.get(-1, []): p.add(x)
        for n, m in enumerate(mf):
            p.add(m)
            for x in fill.get(n, []): p.add(x)

    def qproj(self, item, last):
        p = self.p
        p.wait_tag(("w", item, 0)); p.wait_tag(("x", item, 0))
        p("s_waitcnt lgkmcnt(0)")
        p("s_barrier")
        for T in range(8):
            p.add(self.rd_w(T, 0)); p.add(self.rd_w(T, 1))
        for qt in range(6): p.add(self.rd_x(0, qt))
        for t in range(16):
            p.comment(f"--- qproj step {t}")
            mf = []
            for T in range(8):
                for qt in range(6):
                    mf.append(mfma(acc(T, qt), "v", WF(T), "a", XF(t % 2, qt), "a", None if t == 0 else acc(T, qt)))
            fill = {}
            def add(gap, *xs): fill.setdefault(gap, []).extend(xs)
            if t < 15:
                bar = []
                bar.append(I("", "wait_tag", tag=("w", item, t+1)))
                bar.append(I("", "wait_tag", tag=("x", item, (t+1) >> 1)))
                bar.append(ins("s_waitcnt lgkmcnt(0)"))
                bar.append(ins("s_barrier"))
                bar += self.w_addr_update(t+1)
                add(11, *bar)
                add(12, self.rd_w(0, 0)); add(13, self.rd_w(0, 1)); add(14, self.rd_w(1, 0)); add(15, self.rd_w(1, 1))
                for T in range(2, 8):
                    g0 = 6*(T+1) - 1
                    if T < 7:
                        add(g0 + 1, self.rd_w(T, 0)); add(g0 + 3, self.rd_w(T, 1))
                    else:
                        add(47, self.rd_w(T, 0), self.rd_w(T, 1))
                for qt in range(6): add(20 + 4*qt + 1, self.rd_x(t+1, qt))
                G = []
                if t + 3 <= 15: G += self.dma_w(item, t+3)
                if t % 2 == 1 and (t >> 1) + 2 <= 7: G += self.dma_x(item, (t >> 1) + 2)
                pos = [16, 19, 22, 26, 29, 32, 35, 38, 41, 44]
                for k, g in enumerate(G): add(pos[k], *g)
            else:
                bar = [ins("s_waitcnt lgkmcnt(0)"), ins("s_barrier")]
                add(11, *bar)
                G = self.dma_kv(item, 2) + self.dma_kv(item, 3)
                for k, g in enumerate(G): add(12 + 2*k, *g)
            self.sched(mf, fill)
        for kt in range(2):
            for ks in range(4): p.add(self.rd_k(0, kt, ks))
        tmp = S(0, 0)
        for qt in range(6):
            for ks in range(4):
                a0, a1 = acc(2*ks, qt), acc(2*ks+1, qt)
                for r in range(4):
                    p(f"v_mul_f32 v{a0+r}, s{sC}, v{a0+r}")
                for r in range(4):
                    p(f"v_mul_f32 v{a1+r}, s{sC}, v{a1+r}")
                t0 = tmp + ((qt*4+ks) % 4)*4
                p(f"v_cvt_pk_bf16_f32 v{t0}, v{a0}, v{a0+1}")
                p(f"v_cvt_pk_bf16_f32 v{t0+1}, v{a0+2}, v{a0+3}")
                p(f"v_cvt_pk_bf16_f32 v{t0+2}, v{a1}, v{a1+1}")
                p(f"v_cvt_pk_bf16_f32 v{t0+3}, v{a1+2}, v{a1+3}")
                for r in range(4): p(f"v_accvgpr_write_b32 a{Q(qt,ks)+r}, v{t0+r}")
            if qt < 4:
                for dt in (2*qt, 2*qt+1):
                    p.add(self.rd_v(0, dt, 0)); p.add(self.rd_v(0, dt, 1))
        for qt in range(6): p(f"v_mov_b32 v{LS+qt}, 0")

    def attention(self, item, last):
        p = self.p
        NP = 16*6 + 2
        for n in range(NP):
            j, pp = divmod(n, 6)
            qk = []; pv = []
            if n < 96:
                sb = n % 2
                for kt in range(2):
                    for ks in range(4):
                        qk.append(mfma(S(sb, kt), "v", KF(j % 2, kt, ks), "a", Q(pp, ks), "a", None if ks == 0 else S(sb, kt)))
            if n >= 2:
                jj, qt = divmod(n-2, 6)
                pb = (n-2) % 2
                for dt in range(8):
                    pv.append(mfma(acc(dt, qt), "v", VF(jj % 2, dt), "a", P(pb), "v", None if jj == 0 else acc(dt, qt)))
            mf = []
            for k in range(8):
                if qk: mf.append(qk[k])
                if pv: mf.append(pv[k])
            nm = len(mf)
            fill = {}
            def add(gap, *xs): fill.setdefault(min(gap, nm-1), []).extend(xs)
            sc = nm/16.0
            def G(x): return int(x*sc)
            if 1 <= n <= 96:
                jj, qt = divmod(n-1, 6)
                sb = (n-1) % 2; pb = (n-1) % 2
                e = [S(sb, 0)+r for r in range(4)] + [S(sb, 1)+r for r in range(4)]
                for k in range(8):
                    add(G(2*k), ins(f"v_exp_f32 v{e[k]}, v{e[k]}"))
                    add(G(2*k+1), ins(f"v_add_f32 v{LS+qt}, v{LS+qt}, v{e[k]}"))
                    if k % 2 == 1:
                        add(G(2*k+1), ins(f"v_cvt_pk_bf16_f32 v{P(pb)+k//2}, v{e[k-1]}, v{e[k]}"))
            if n < 96:
                rds = []
                if pp in (2, 3) and j+1 <= 15:
                    kt = pp - 2
                    rds = [self.rd_k(j+1, kt, ks) for ks in range(4)]
                elif pp in (4, 5) and j+1 <= 15:
                    for dt in range((pp-4)*2, (pp-4)*2+2): rds += [self.rd_v(j+1, dt, 0), self.rd_v(j+1, dt, 1)]
                elif pp in (0, 1) and j >= 1:
                    for dt in range(4 + pp*2, 4 + pp*2 + 2): rds += [self.rd_v(j, dt, 0), self.rd_v(j, dt, 1)]
                gaps = [1, 5, 9, 13] if pp != 1 else [1, 3, 5, 9]
                gaps = [0, 4, 8, 12]
                for k, x in enumerate(rds): add(G(gaps[k] + 1) if pp != 1 else G([1, 3, 5, 7][k]), x)
                if pp == 2:
                    bar = []
                    if j+1 <= 15: bar.append(I("", "wait_tag", tag=("kv", item, j+1)))
                    bar += [ins("s_waitcnt lgkmcnt(0)"), ins("s_barrier")]
                    fill.setdefault(-1, []).extend(bar)
                Gd = []
                if j + 4 <= 15 and j >= 0: Gd = self.dma_kv(item, j+4)
                elif not last and j + 4 <= 17: Gd = self.dma_kv(item+1, j+4-16)
                if j == 14 and not last: Gd = self.dma_x(item+1, 0)
                if j == 15:
                    if not last: Gd = self.dma_w(item+1, 0) + self.dma_w(item+1, 1)
                    else: Gd = self.dma_wo(0) + self.dma_wo(1)
                if pp >= 2 and Gd:
                    per = (len(Gd) + 3)//4
                    for k, g in enumerate(Gd[(pp-2)*per:(pp-1)*per]): add(G(3 + 6*k), *g)
            self.sched(mf, fill)

    def o_epilogue(self, item, last):
        p = self.p
        p("s_waitcnt lgkmcnt(0)")
        p("s_barrier")
        if not last:
            self.emit_groups(self.dma_w(item+1, 2)); self.emit_groups(self.dma_x(item+1, 1))
        t = S(0, 0)
        for qt in range(6):
            l = LS + qt
            p(f"v_mov_b32 v{t}, v{l}"); p(f"v_permlane32_swap_b32 v{t}, v{l}"); p(f"v_add_f32 v{l}, v{l}, v{t}")
            p(f"v_mov_b32 v{t}, v{l}"); p(f"v_permlane16_swap_b32 v{t}, v{l}"); p(f"v_add_f32 v{l}, v{l}, v{t}")
            p(f"v_rcp_f32 v{l}, v{l}")
        for ks in range(4):
            for qt in range(6):
                a0, a1 = acc(2*ks, qt), acc(2*ks+1, qt)
                l = LS + qt
                for r in range(4): p(f"v_mul_f32 v{a0+r}, v{l}, v{a0+r}")
                for r in range(4): p(f"v_mul_f32 v{a1+r}, v{l}, v{a1+r}")
                t0 = SB + ((ks*6+qt) % 4)*4
                p(f"v_cvt_pk_bf16_f32 v{t0}, v{a0}, v{a0+1}")
                p(f"v_cvt_pk_bf16_f32 v{t0+1}, v{a0+2}, v{a0+3}")
                p(f"v_cvt_pk_bf16_f32 v{t0+2}, v{a1}, v{a1+1}")
                p(f"v_cvt_pk_bf16_f32 v{t0+3}, v{a1+2}, v{a1+3}")
                off = item*2*4*6144 + (ks*6 + qt)*1024
                p(f"s_add_u32 s{sT1}, s{sOo}, {off}")
                p(f"buffer_store_dwordx4 v[{t0}:{t0+3}], v{VST}, s[{SO}:{SO+3}], s{sT1} offen {self.o['store_mod']}", tag=("o", item))

    def wo_prep(self):
        p = self.p
        p.wait_tag(("wo", 1))
        p("s_barrier")
        p("v_and_b32 v1, 15, v0"); p("v_lshrrev_b32 v2, 4, v0"); p("v_lshrrev_b32 v3, 2, v1"); p("v_and_b32 v5, 3, v1")
        p("v_lshl_add_u32 v6, v2, 2, v3"); p("v_lshlrev_b32 v6, 10, v6"); p("v_lshl_add_u32 v6, v5, 4, v6")
        p(f"s_lshl_b32 s76, s{sW}, 8"); p(f"s_add_u32 s76, s76, {WSLOT[0]}"); p("v_add_u32 v6, s76, v6")
        for nt in range(8):
            u, par = nt >> 1, nt & 1
            d = ACC + nt*4
            p(f"ds_read_b64_tr_b16 v[{d}:{d+1}], v6 offset:{64*u + 8*par}")
            p(f"ds_read_b64_tr_b16 v[{d+2}:{d+3}], v6 offset:{WSLOT[1]-WSLOT[0] + 64*u + 8*par}")
        for nt in range(8):
            d = ACC + nt*4
            p(f"s_add_u32 s{sT1}, s{sWTo}, {nt*1024}")
            p(f"buffer_store_dwordx4 v[{d}:{d+3}], v{VST}, s[{SWT}:{SWT+3}], s{sT1} offen {self.o['store_mod']}")

    def build(self):
        p = self.p
        self.prologue()
        self.emit_groups(self.dma_w(0, 0)); self.emit_groups(self.dma_x(0, 0))
        self.emit_groups(self.dma_w(0, 1)); self.emit_groups(self.dma_w(0, 2)); self.emit_groups(self.dma_x(0, 1))
        self.emit_groups(self.dma_kv(0, 0)); self.emit_groups(self.dma_kv(0, 1))
        for item in range(2):
            last = item == 1
            self.qproj(item, last)
            self.attention(item, last)
            self.o_epilogue(item, last)
        self.wo_prep()
        p("s_waitcnt vmcnt(0)")
        p.raw("K2_END:")
        p("s_endpgm")
        L, st = finalize(p.L)
        return L, st

if __name__ == "__main__":
    k = K2(); L, st = k.build()
    print(st, len(L))
```

```python
from dsl import *
from k2 import O_BYTES, WOT_OFF, WOT_BYTES, OUT_BYTES, MF, mfma

ACC = 64
def acc(nu, qt): return ACC + (nu*6 + qt)*4
NBUF = 4
def AF(buf, nu): return buf*56 + nu*4
def BF(buf, qt): return buf*56 + 32 + qt*4
SO, SWT, SOUT = 4, 8, 12
sW, sP, sB, sRH, sNB = 16, 17, 18, 19, 20
sA = 24
sBo = 28
sT0, sT1 = 30, 31
sOut = 32

class K3:
    def __init__(self, opts=None):
        self.o = dict(ld_mod="", st_mod="")
        if opts: self.o.update(opts)
        self.p = Prog()
    def loads(self, t):
        b = t % NBUF
        G = []
        m = self.o["ld_mod"]
        for pr in range(4):
            g = [ins(f"s_add_u32 s{sT0 + (pr & 1)}, s{sA+pr}, {t*8192}"),
                 ins(f"buffer_load_dwordx4 {rng('a', AF(b, 2*pr), 4)}, v4, s[{SWT}:{SWT+3}], s{sT0 + (pr & 1)} offen {m}")]
            G.append(g)
            G.append([ins(f"buffer_load_dwordx4 {rng('a', AF(b, 2*pr+1), 4)}, v4, s[{SWT}:{SWT+3}], s{sT0 + (pr & 1)} offen offset:1024 {m}")])
        G.append([ins(f"s_add_u32 s{sT0}, s{sBo}, {t*6144}"),
                  ins(f"buffer_load_dwordx4 {rng('a', BF(b, 0), 4)}, v4, s[{SO}:{SO+3}], s{sT0} offen {m}")])
        for qt in range(1, 4):
            G.append([ins(f"buffer_load_dwordx4 {rng('a', BF(b, qt), 4)}, v4, s[{SO}:{SO+3}], s{sT0} offen offset:{1024*qt} {m}")])
        G.append([ins(f"s_add_u32 s{sT1}, s{sBo}, {t*6144 + 4096}"),
                  ins(f"buffer_load_dwordx4 {rng('a', BF(b, 4), 4)}, v4, s[{SO}:{SO+3}], s{sT1} offen {m}")])
        G.append([ins(f"buffer_load_dwordx4 {rng('a', BF(b, 5), 4)}, v4, s[{SO}:{SO+3}], s{sT1} offen offset:1024 {m}")])
        order = [8, 9, 10, 11, 12, 13, 0, 1, 2, 3, 4, 5, 6, 7]
        return [G[k] for k in order]
    def build(self):
        p = self.p
        p("s_cmp_ge_u32 s2, 256")
        p("s_cbranch_scc1 K3_END")
        p("s_load_dwordx2 s[34:35], s[0:1], 80")
        p("s_load_dwordx2 s[36:37], s[0:1], 96")
        p("v_lshrrev_b32 v1, 6, v0"); p("v_and_b32 v0, 63, v0"); p(f"v_readfirstlane_b32 s{sW}, v1")
        p("s_and_b32 s40, s2, 7"); p("s_lshr_b32 s41, s2, 3")
        p(f"s_lshr_b32 s{sP}, s40, 2")
        p("s_and_b32 s42, s40, 3"); p("s_lshl_b32 s42, s42, 3"); p("s_and_b32 s43, s41, 7"); p("s_add_u32 s42, s42, s43")
        p(f"s_lshr_b32 s{sB}, s42, 1"); p(f"s_and_b32 s{sRH}, s42, 1"); p(f"s_lshr_b32 s{sNB}, s41, 3")
        p("s_waitcnt lgkmcnt(0)")
        p(f"s_mov_b32 s{SO}, s36"); p(f"s_mov_b32 s{SO+1}, s37"); p(f"s_mov_b32 s{SO+2}, {O_BYTES}"); p(f"s_mov_b32 s{SO+3}, 0x00020000")
        p(f"s_add_u32 s{SWT}, s36, {WOT_OFF}"); p(f"s_addc_u32 s{SWT+1}, s37, 0"); p(f"s_mov_b32 s{SWT+2}, {WOT_BYTES}"); p(f"s_mov_b32 s{SWT+3}, 0x00020000")
        p(f"s_mov_b32 s{SOUT}, s34"); p(f"s_mov_b32 s{SOUT+1}, s35"); p(f"s_mov_b32 s{SOUT+2}, {OUT_BYTES}"); p(f"s_mov_b32 s{SOUT+3}, 0x00020000")
        p(f"s_lshl_b32 s42, s{sP}, 2"); p(f"s_add_u32 s42, s42, s{sNB}"); p("s_lshl_b32 s42, s42, 7"); p(f"s_lshl_b32 s43, s{sW}, 5"); p("s_add_u32 s42, s42, s43"); p("s_lshl_b32 s42, s42, 13")
        for pr in range(4):
            p(f"s_add_u32 s43, s{sW}, {pr}"); p("s_and_b32 s43, s43, 3"); p("s_lshl_b32 s43, s43, 11"); p(f"s_add_u32 s{sA+pr}, s42, s43")
        p(f"s_lshl_b32 s42, s{sP}, 4"); p(f"s_add_u32 s42, s42, s{sB}"); p("s_lshl_b32 s42, s42, 1"); p(f"s_add_u32 s42, s42, s{sRH}"); p("s_lshl_b32 s42, s42, 7")
        p(f"s_lshl_b32 s43, s{sW}, 5"); p("s_add_u32 s42, s42, s43"); p(f"s_mul_i32 s{sBo}, s42, 6144")
        p(f"s_mul_i32 s42, s{sB}, 192"); p(f"s_mul_i32 s43, s{sRH}, 96"); p("s_add_u32 s42, s42, s43"); p("s_lshl_b32 s42, s42, 11")
        p(f"s_lshl_b32 s43, s{sP}, 10"); p("s_add_u32 s42, s42, s43"); p(f"s_lshl_b32 s43, s{sNB}, 8"); p("s_add_u32 s42, s42, s43")
        p(f"s_lshl_b32 s43, s{sW}, 6"); p(f"s_add_u32 s{sOut}, s42, s43")
        p("v_lshlrev_b32 v4, 4, v0")
        for t in range(NBUF-1):
            for g in self.loads(t):
                for x in g: p.add(x)
        for t in range(32):
            p.comment(f"--- k3 step {t}")
            b = t % NBUF
            G = self.loads(t + NBUF - 1) if t + NBUF - 1 < 32 else []
            n = 0
            for nu in range(8):
                for qt in range(6):
                    p.add(mfma(acc(nu, qt), "v", AF(b, nu), "a", BF(b, qt), "a", None if t == 0 else acc(nu, qt)))
                    if n % 3 == 1 and n//3 < len(G):
                        for x in G[n//3]: p.add(x)
                    n += 1
        for pr in range(1, 4):
            p(f"s_add_u32 s42, s{sW}, {pr}"); p("s_and_b32 s42, s42, 3"); p("s_mul_i32 s42, s42, 36864"); p(f"s_add_u32 s42, s42, {(pr-1)*12288}")
            p(f"v_add_u32 v{4+pr}, s42, v4")
        p(f"s_mul_i32 s42, s{sW}, 36864"); p("v_add_u32 v8, s42, v4")
        for pr in range(1, 4):
            for par in range(2):
                for qt in range(6):
                    a = acc(2*pr + par, qt)
                    p(f"ds_write_b128 v{4+pr}, v[{a}:{a+3}] offset:{(par*6 + qt)*1024}")
        p("s_waitcnt lgkmcnt(0)")
        p("s_barrier")
        for sl in range(3):
            for par in range(2):
                for qt in range(6):
                    a = acc(2*(sl+1) + par, qt)
                    p(f"ds_read_b128 v[{a}:{a+3}], v8 offset:{sl*12288 + (par*6 + qt)*1024}")
        p("v_and_b32 v1, 15, v0"); p("v_lshrrev_b32 v2, 4, v0"); p("v_lshlrev_b32 v1, 11, v1"); p("v_lshl_add_u32 v9, v2, 4, v1")
        for qt in range(6):
            for par in range(2):
                a = acc(par, qt)
                for sl in range(3):
                    s = acc(2*(sl+1) + par, qt)
                    for r in range(4): p(f"v_add_f32 v{a+r}, v{a+r}, v{s+r}")
            a0, a1 = acc(0, qt), acc(1, qt)
            t0 = 12 + (qt % 4)*4
            p(f"v_cvt_pk_bf16_f32 v{t0}, v{a0}, v{a0+1}"); p(f"v_cvt_pk_bf16_f32 v{t0+1}, v{a0+2}, v{a0+3}")
            p(f"v_cvt_pk_bf16_f32 v{t0+2}, v{a1}, v{a1+1}"); p(f"v_cvt_pk_bf16_f32 v{t0+3}, v{a1+2}, v{a1+3}")
            p(f"s_add_u32 s{sT0}, s{sOut}, {qt*16*2048}")
            p(f"buffer_store_dwordx4 v[{t0}:{t0+3}], v9, s[{SOUT}:{SOUT+3}], s{sT0} offen {self.o['st_mod']}")
        p("s_waitcnt vmcnt(0)")
        p.raw("K3_END:")
        p("s_endpgm")
        return finalize(p.L)

if __name__ == "__main__":
    L, st = K3().build(); print(st, len(L))
```

```python
import sys, json
from dsl import text
from k2 import K2
from k3 import K3
NAME = "concat_heads__mha_block_cached__gqa_block_cached__near_ridge"
HDR = open("cdna_kernels/%s.s.ref" % NAME).read().split("; Override launch geometry")[0]
def kd(name, vg=512, acc=256):
    return f""".amdhsa_kernel {name}
  .amdhsa_next_free_vgpr {vg}
  .amdhsa_next_free_sgpr 102
  .amdhsa_accum_offset {acc}
  .amdhsa_group_segment_fixed_size 0
  .amdhsa_kernarg_size 104
  .amdhsa_user_sgpr_count 2
  .amdhsa_user_sgpr_kernarg_segment_ptr 1
  .amdhsa_system_sgpr_workgroup_id_x 1
  .amdhsa_float_denorm_mode_32 3
.end_amdhsa_kernel
"""
def build(o2=None, o3=None):
    L2, s2 = K2(o2).build(); L3, s3 = K3(o3).build()
    print("K2", s2, len(L2), "K3", s3, len(L3), file=sys.stderr)
    out = HDR
    out += "; @launch kernel=attn_kernel grid=(256,1,1) block=(256,1,1) lds=163840\n"
    out += "; @launch kernel=oproj_kernel grid=(256,1,1) block=(256,1,1) lds=147456\n"
    out += '.amdgcn_target "amdgcn-amd-amdhsa--gfx950"\n.text\n'
    for name, L in (("attn_kernel", L2), ("oproj_kernel", L3)):
        out += f".globl {name}\n.p2align 8\n.type {name},@function\n{name}:\n" + text(L)
    out += '.section .rodata,"a"\n'
    for name in ("attn_kernel", "oproj_kernel"):
        out += ".p2align 6\n" + kd(name)
    return out
if __name__ == "__main__":
    o2 = json.loads(sys.argv[2]) if len(sys.argv) > 2 else None
    o3 = json.loads(sys.argv[3]) if len(sys.argv) > 3 else None
    dst = sys.argv[1] if len(sys.argv) > 1 else "cdna_kernels/%s.s" % NAME
    open(dst, "w").write(build(o2, o3))
```

```python
import re

def R(kind, lo, n=1):
    return [f"{kind}{lo+i}" for i in range(n)]
def rng(kind, lo, n):
    return f"{kind}{lo}" if n == 1 else f"{kind}[{lo}:{lo+n-1}]"

class I:
    __slots__ = ("txt", "kind", "rd", "wr", "meta")
    def __init__(self, txt, kind, rd=(), wr=(), **meta):
        self.txt = txt; self.kind = kind; self.rd = set(rd); self.wr = set(wr); self.meta = meta
    def __repr__(self): return self.txt

TRANS = ("v_exp_f32", "v_rcp_f32", "v_log_f32", "v_rsq_f32", "v_sqrt_f32")

_reg_re = re.compile(r"\b([vas])\[(\d+):(\d+)\]|\b([vas])(\d+)\b|\b(m0|vcc|exec|scc)\b")
def parse_regs(op):
    out = []
    for m in _reg_re.finditer(op):
        if m.group(1):
            out += [f"{m.group(1)}{k}" for k in range(int(m.group(2)), int(m.group(3)) + 1)]
        elif m.group(4):
            out.append(f"{m.group(4)}{m.group(5)}")
        else:
            out.append(m.group(6))
    return out

def split_ops(s):
    ops = []; depth = 0; cur = ""
    for ch in s:
        if ch == "[": depth += 1
        if ch == "]": depth -= 1
        if ch == "," and depth == 0:
            ops.append(cur.strip()); cur = ""
        else:
            cur += ch
    if cur.strip(): ops.append(cur.strip())
    return ops

def ins(txt, **meta):
    t = txt.strip()
    name = t.split()[0]
    rest = t[len(name):].strip()
    ops = split_ops(rest)
    rd = []; wr = []
    if name.startswith("v_mfma"):
        wr = parse_regs(ops[0]);
        a = parse_regs(ops[1]); b = parse_regs(ops[2]); c = parse_regs(ops[3])
        return I(t, "mfma", rd=a + b + c, wr=wr, A=a, B=b, C=c, passes=(8 if "32x32" in name else 4), **meta)
    if name.startswith("ds_read"):
        wr = parse_regs(ops[0]); rd = parse_regs(ops[1].split()[0])
        return I(t, "ds_read", rd, wr, **meta)
    if name.startswith("ds_write"):
        rd = parse_regs(ops[0]) + parse_regs(ops[1].split()[0])
        return I(t, "ds_write", rd, [], **meta)
    if name.startswith("buffer_load") or name.startswith("global_load"):
        if " lds" in t:
            rd = []
            for o in ops: rd += parse_regs(o.split()[0])
            rd.append("m0")
            return I(t, "dma", rd, [], **meta)
        wr = parse_regs(ops[0])
        for o in ops[1:]: rd += parse_regs(o.split()[0])
        return I(t, "vload", rd, wr, **meta)
    if name.startswith("buffer_store") or name.startswith("global_store"):
        for o in ops: rd += parse_regs(o.split()[0])
        data = parse_regs(ops[0]) if name.startswith("buffer_store") else parse_regs(ops[1])
        return I(t, "vstore", rd, [], data=data, wide=("x4" in name or "x3" in name), **meta)
    if name.startswith("buffer_atomic") or name.startswith("global_atomic"):
        for o in ops: rd += parse_regs(o.split()[0])
        wr = parse_regs(ops[0]) if " sc0" in t else []
        return I(t, "vload" if wr else "vstore", rd, wr, data=[], wide=False, **meta)
    if name == "s_waitcnt": return I(t, "wait", **meta)
    if name == "s_barrier": return I(t, "barrier", **meta)
    if name == "s_nop": return I(t, "nop", n=int(ops[0]) + 1, **meta)
    if name.startswith("s_load") or name.startswith("s_memtime") or name.startswith("s_memrealtime"):
        wr = parse_regs(ops[0])
        for o in ops[1:]: rd += parse_regs(o)
        return I(t, "smem", rd, wr, **meta)
    if name.startswith("s_cbranch") or name in ("s_branch", "s_endpgm", "s_setprio", "s_sleep", "s_setpc_b64"):
        return I(t, "branch", parse_regs(rest), [], **meta)
    if name.startswith("s_cmp"):
        return I(t, "salu", parse_regs(rest), ["scc"], **meta)
    if name.startswith("s_"):
        wr = parse_regs(ops[0])
        for o in ops[1:]: rd += parse_regs(o)
        if name.startswith("s_and_saveexec") : wr += ["exec"]; rd += ["exec"]
        if "cselect" in name or "addc" in name or "subb" in name: rd.append("scc")
        return I(t, "salu", rd, wr + ["scc"], **meta)
    if name.startswith("v_permlane"):
        r = parse_regs(ops[0]) + parse_regs(ops[1])
        return I(t, "permlane", r, r, **meta)
    if name.startswith("v_cmp"):
        wr = parse_regs(ops[0])
        for o in ops[1:]: rd += parse_regs(o)
        return I(t, "valu", rd, wr, **meta)
    if name.startswith("v_writelane"):
        wr = parse_regs(ops[0])
        for o in ops: rd += parse_regs(o)
        return I(t, "valu", rd, wr, **meta)
    if name.startswith("v_readfirstlane") or name.startswith("v_readlane"):
        wr = parse_regs(ops[0])
        for o in ops[1:]: rd += parse_regs(o)
        return I(t, "valu", rd, wr, readlane=True, **meta)
    if name.startswith("v_"):
        wr = parse_regs(ops[0])
        for o in ops[1:]: rd += parse_regs(o)
        if name.startswith("v_fmac") or name.startswith("v_dot2c"): rd += wr
        if name.startswith("v_cndmask") and len(ops) == 3: rd.append("vcc")
        base = name.replace("_e32", "").replace("_e64", "")
        return I(t, "trans" if base in TRANS else "valu", rd, wr, **meta)
    raise ValueError("unknown instr: " + t)

class Prog:
    def __init__(self):
        self.L = []
    def __call__(self, txt, **meta):
        i = ins(txt, **meta); self.L.append(i); return i
    def add(self, i): self.L.append(i)
    def raw(self, txt): self.L.append(I(txt, "label"))
    def comment(self, txt): self.L.append(I("; " + txt, "label"))
    def wait_tag(self, tag):
        self.L.append(I("", "wait_tag", tag=tag))
    def extend(self, l): self.L.extend(l)

def wait_regs(regs): return I("", "wait_regs", rd=regs)
def wait_tag(tag): return I("", "wait_tag", tag=tag)

COST = dict(salu=4, valu=4, trans=8, ds_read=8, ds_write=8, dma=8, vstore=8, vload=8, wait=4, wait_tag=4, wait_regs=4, barrier=4, permlane=4, nop=4)
def gapfill(mf, chains, budget=8, pre=()):
    n = len(mf)
    out = list(pre)
    pos = [0]*len(chains)
    carry = 0
    for g in range(n):
        out.append(mf[g])
        used = carry; carry = 0
        while True:
            cand = []
            for c, ch in enumerate(chains):
                if pos[c] < len(ch):
                    grp, lo, hi = ch[pos[c]]
                    if lo <= g: cand.append((hi, c))
            if not cand: break
            cand.sort()
            hi, c = cand[0]
            grp = chains[c][pos[c]][0]
            cost = sum(COST[x.kind] for x in grp)
            last = (g == n-1)
            if hi <= g or last or used + cost <= budget or (used == 0):
                out += grp; pos[c] += 1; used += cost
            else:
                placed = False
                for hi2, c2 in cand[1:]:
                    g2 = chains[c2][pos[c2]][0]; cost2 = sum(COST[x.kind] for x in g2)
                    if used + cost2 <= budget:
                        out += g2; pos[c2] += 1; used += cost2; placed = True; break
                if not placed: break
        if used > budget: carry = min(used - budget, budget)
    for c, ch in enumerate(chains): assert pos[c] == len(ch), "unplaced items"
    return out

VALUISH = ("valu", "trans", "permlane")

def finalize(L, check_only=False):
    out = []
    lg = []
    vm = []
    smem_out = set()
    stats = dict(nops=0, lgk=0, vmw=0)
    def emit(i): out.append(i)
    def states_since(pred, maxlook):
        n = 0
        for k in range(len(out) - 1, -1, -1):
            p = out[k]
            if p.kind in ("label",): continue
            if pred(p): return n
            n += p.meta["n"] if p.kind == "nop" else 1
            if n >= maxlook: return None
        return None
    def need(pred, ws, states):
        s = states_since(pred, ws)
        if s is not None and s < ws: states.append(ws - s)
    for i in L:
        if i.kind == "label":
            emit(i); continue
        if i.meta.get("alt"):
            emit(I(i.txt, "label", verbatim=True)); continue
        if i.kind == "wait_tag":
            tag = i.meta["tag"]
            idx = [k for k, o in enumerate(vm) if o["tag"] == tag]
            n = (len(vm) - 1 - idx[-1]) if idx else len(vm)
            n = min(n, 63)
            emit(I(f"s_waitcnt vmcnt({n})", "wait")); stats["vmw"] += 1
            vm = vm[len(vm) - n:] if n > 0 else []
            continue
        touched = i.rd | i.wr
        if i.kind == "wait_regs":
            idx = [k for k, o in enumerate(lg) if o & touched]
            n = (len(lg) - 1 - idx[-1]) if idx else len(lg)
            n = min(n, 15)
            emit(I(f"s_waitcnt lgkmcnt({n})", "wait")); stats["lgk"] += 1
            lg = lg[len(lg) - n:] if n > 0 else []
            continue
        if i.kind == "wait":
            m = re.search(r"lgkmcnt\((\d+)\)", i.txt)
            if m:
                n = int(m.group(1)); lg = lg[len(lg) - n:] if n > 0 and n < len(lg) else (lg if n > 0 else [])
                if n == 0: smem_out = set()
            m = re.search(r"vmcnt\((\d+)\)", i.txt)
            if m:
                n = int(m.group(1)); vm = vm[len(vm) - n:] if 0 < n < len(vm) else (vm if n > 0 else [])
            emit(i); continue
        if smem_out & touched:
            emit(I("s_waitcnt lgkmcnt(0)", "wait")); lg = []; smem_out = set()
        idx = [k for k, o in enumerate(lg) if o & touched]
        if idx:
            n = min(len(lg) - 1 - idx[-1], 15)
            emit(I(f"s_waitcnt lgkmcnt({n})", "wait")); stats["lgk"] += 1
            lg = lg[len(lg) - n:] if n > 0 else []
        idx = [k for k, o in enumerate(vm) if o["wr"] & touched]
        if idx:
            n = min(len(vm) - 1 - idx[-1], 63)
            emit(I(f"s_waitcnt vmcnt({n})", "wait")); stats["vmw"] += 1
            vm = vm[len(vm) - n:] if n > 0 else []
        st = []
        vregs_rd = {r for r in i.rd if r[0] in "va" and r not in ("vcc",)}
        vregs_wr = {r for r in i.wr if r[0] in "va" and r not in ("vcc",)}
        sregs_rd = {r for r in i.rd if (r[0] == "s" and r != "scc") or r in ("vcc", "exec")}
        if i.kind == "mfma":
            need(lambda p: p.kind in VALUISH and (p.wr & i.rd), 2, st)
            ab = set(i.meta["A"]) | set(i.meta["B"]); c = set(i.meta["C"])
            for passes, w_ab, w_c in ((4, 8, 6), (8, 12, 10)):
                need(lambda p: p.kind == "mfma" and p.meta["passes"] == passes and (p.wr & ab), w_ab, st)
                need(lambda p: p.kind == "mfma" and p.meta["passes"] == passes and (p.wr & c) and not (p.wr == c and p.meta["passes"] == i.meta["passes"]), w_c, st)
                need(lambda p: p.kind == "mfma" and p.meta["passes"] == passes and (p.wr & i.wr) and not (p.wr == c), w_c, st)
            need(lambda p: p.kind in VALUISH and "exec" in p.wr, 4, st)
        else:
            if i.kind in VALUISH + ("vstore", "vload", "dma", "ds_read", "ds_write"):
                for passes, w in ((4, 8), (8, 12)):
                    need(lambda p: p.kind == "mfma" and p.meta["passes"] == passes and (p.wr & (vregs_rd | vregs_wr)), w, st)
            if i.kind in VALUISH:
                for passes, w in ((4, 3), (8, 7)):
                    need(lambda p: p.kind == "mfma" and p.meta["passes"] == passes and (set(p.meta["C"]) & vregs_wr), w, st)
                if i.kind != "trans":
                    need(lambda p: p.kind == "trans" and (p.wr & vregs_rd), 1, st)
                need(lambda p: p.kind == "vstore" and p.meta.get("wide") and (set(p.meta["data"]) & vregs_wr), 2, st)
                need(lambda p: p.kind in VALUISH and (p.wr & sregs_rd), 2, st)
                if i.kind == "permlane":
                    need(lambda p: p.kind in VALUISH and (p.wr & vregs_rd), 2, st)
                if i.meta.get("readlane"):
                    need(lambda p: p.kind in VALUISH and (p.wr & vregs_rd), 1, st)
            if i.kind in ("vstore", "vload", "dma"):
                need(lambda p: p.kind in VALUISH and (p.wr & sregs_rd), 5, st)
            if i.kind == "dma":
                need(lambda p: p.kind == "salu" and "m0" in p.wr, 1, st)
            if i.kind == "salu":
                need(lambda p: p.kind in VALUISH and (p.wr & sregs_rd), 4, st)
        if st:
            n = max(st); stats["nops"] += n
            while n > 0:
                k = min(n, 16); emit(I(f"s_nop {k-1}", "nop", n=k)); n -= k
        emit(i)
        if i.kind == "ds_read": lg.append(set(i.wr))
        elif i.kind == "ds_write": lg.append(set())
        elif i.kind == "smem": smem_out |= set(i.wr) or {"_"}
        elif i.kind in ("dma", "vstore"): vm.append(dict(wr=set(), tag=i.meta.get("tag")))
        elif i.kind == "vload": vm.append(dict(wr=set(i.wr), tag=i.meta.get("tag")))
    return out, stats

def fold(L):
    import itertools
    def wait_min(a, b):
        fa = dict(re.findall(r"(vmcnt|lgkmcnt)\((\d+)\)", a)); fb = dict(re.findall(r"(vmcnt|lgkmcnt)\((\d+)\)", b))
        if set(fa) != set(fb): return None
        return "s_waitcnt " + " ".join(f"{k}({min(int(fa[k]), int(fb[k]))})" for k in fa)
    while True:
        lb = None
        for n, i in enumerate(L):
            if i.kind == "label" and i.txt.startswith("@@LB") and i.txt.split()[2] == "0":
                nm = i.txt.split()[1]
                pos = n; ok = True
                while pos < len(L) and L[pos].kind == "label" and L[pos].txt.startswith("@@LB " + nm + " "):
                    e = next(m for m in range(pos+1, len(L)) if L[m].kind == "label" and L[m].txt.startswith("@@L"))
                    if not L[e].txt.startswith("@@LE " + nm + " "): ok = False; break
                    pos = e + 1
                if ok:
                    lb = n; name = nm; break
        if lb is None:
            assert not any(i.kind == "label" and i.txt.startswith("@@L") for i in L)
            return L
        segs = []; pos = lb
        while pos < len(L) and L[pos].kind == "label" and L[pos].txt.startswith("@@LB " + name + " "):
            e = next(n for n in range(pos, len(L)) if L[n].kind == "label" and L[n].txt.startswith("@@LE " + name + " "))
            segs.append(L[pos+1:e]); pos = e + 1
        body = [x for x in segs[0]]
        strip = lambda s: [x for x in s if not (x.kind == "label" and x.txt.startswith(";"))]
        base = strip(segs[0])
        for k, s in enumerate(segs[1:], 1):
            s = strip(s)
            if len(s) != len(base):
                import difflib
                diff = list(difflib.unified_diff([x.txt for x in base], [x.txt for x in s], lineterm="", n=2))[:60]
                raise AssertionError(f"loop {name}: instance {k} length {len(s)} != {len(base)}\n" + "\n".join(diff))
            for n, (a, b) in enumerate(zip(base, s)):
                if a.txt != b.txt:
                    m = wait_min(a.txt, b.txt) if a.kind == "wait" and b.kind == "wait" else None
                    if m is None:
                        raise AssertionError(f"loop {name}: instance {k} differs at {n}: '{a.txt}' vs '{b.txt}'")
                    base[n] = I(m, "wait")
        uid = f"L_{name}"
        L = L[:lb] + [I(uid + ":", "label")] + base + L[pos:]

def text(L):
    return "\n".join(i.txt for i in L if i.txt and not i.txt.startswith(";")) + "\n"
```

```python
from dsl import *
import struct

def f32(x): return "0x%08x" % struct.unpack("<I", struct.pack("<f", x))[0]

NB, SQ, DM, H, SK, DH = 16, 192, 512, 32, 512, 128
X_BYTES = NB*SQ*DM*2
KV_BYTES = NB*H*SK*DH*2
W_BYTES = DM*H*DH*2
O_BYTES = 2*NB*2*128*6*1024
WOT_OFF = O_BYTES
WOT_BYTES = 2*4*128*8*1024
OUT_BYTES = NB*SQ*1024*2

PHI = 65536
WSLOT = [65536, 81920, 98304]
XA, XB = 114688, 139264
DROP = 0x30000

ACC = 64
def acc(T, qt): return ACC + (T*6 + qt)*4
SB = 8
def S(buf, kt): return SB + buf*8 + kt*4
PB = 24
def P(buf): return PB + buf*4
LS = 32
KA = 38
VA = 42
DV = 50
WA = 54
XAD = 58
WD = [60, 61, 2, 3]
XD = [62, 63, 6, 7]
VST = 4
def Q(qt, ks): return (qt*4 + ks)*4
def OS(n): return n*4
def KF(buf, kt, ks): return 96 + buf*32 + (kt*4 + ks)*4
def VF(buf, dt): return 160 + buf*32 + dt*4
def WF(T): return 96 + T*4
def XF(buf, qt): return 128 + buf*24 + qt*4
ONES = 224
def LA(qt): return 228 + qt*4
SX, SW, SKV, SO, SWO, SWT = 4, 8, 12, 16, 20, 24
sW, sHP, sRH, sP, sB, sHG = 28, 29, 30, 31, 32, 33
sKVo, sKVl, sWo, sWl, sXo, sXl, sOo = 34, 35, 36, 37, 38, 39, 40
sT0, sT1, sC = 41, 42, 43
sWOo, sWTo = 44, 45
sItem, sCnt = 46, 47
sTile, sM, sTh1, sTh2, sWarmW, sWarmX, sWoM, sDrop = 74, 75, 76, 77, 78, 79, 80, 81

MF = "v_mfma_f32_16x16x32_bf16"
def mfma(d, dk, a, ak, b, bk, c=None):
    cs = "0" if c is None else rng(dk, c, 4)
    return ins(f"{MF} {rng(dk,d,4)}, {rng(ak,a,4)}, {rng(bk,b,4)}, {cs}")

class K2:
    def __init__(self, opts=None):
        self.o = dict(nt="nt", w_mod="nt", x_mod="nt", store_mod="", last_store_mod="sc1", timing=False, msum=True, warm=True, drop=[])
        if opts: self.o.update(opts)
        self.p = Prog()
        self.phase = ""

    def dma_kv(self, tag, m0a, m0b, pre=()):
        nt = self.o['nt']
        G = []
        g = list(pre) + [ins(m0a)]
        for k in range(4):
            g.append(ins(f"buffer_load_dwordx4 v{DV+k}, s[{SKV}:{SKV+3}], s{sTile} offen offset:{1024*k} {nt} lds", tag=tag))
            G.append(g); g = []
        g = [ins(f"s_add_u32 s{sT0}, s{sTile}, 4096"), ins(m0b)]
        for k in range(4):
            g.append(ins(f"buffer_load_dwordx4 v{DV+k}, s[{SKV}:{SKV+3}], s{sT0} offen offset:{1024*k} {nt} lds", tag=tag))
            G.append(g); g = []
        G[-1].append(ins(f"s_add_u32 s{sTile}, s{sTile}, 8192"))
        return G
    def dma_kv_abs(self, tag, slot):
        o = (slot >> 1)*PHI + (slot & 1)*8192
        return self.dma_kv(tag, f"s_add_u32 m0, s{sKVl}, {o}", f"s_add_u32 m0, s{sKVl}, {o + 4096}")
    def dma_w(self, tag, base_reg, goff, m0txt):
        G = []
        g = [ins(f"s_add_u32 s{sT1}, s{base_reg}, {goff}"), ins(m0txt)]
        for n in range(4):
            g.append(ins(f"buffer_load_dwordx4 v{WD[n]}, s[{SW}:{SW+3}], s{sT1} offen offset:{1024*n} {self.o['w_mod']} lds", tag=tag))
            G.append(g); g = []
        return G
    def dma_x(self, tag, base_reg, goff, m0a, m0b):
        G = []
        m = self.o['x_mod']
        g = [ins(f"s_add_u32 s{sT1}, s{base_reg}, {goff}"), ins(m0a)]
        for n in range(4):
            g.append(ins(f"buffer_load_dwordx4 v{XD[n]}, s[{SX}:{SX+3}], s{sT1} offen offset:{1024*n} {m} lds", tag=tag))
            G.append(g); g = []
        g = [ins(f"s_add_u32 s{sT1}, s{sT1}, {4*8192}"), ins(m0b)]
        for n in range(2):
            g.append(ins(f"buffer_load_dwordx4 v{XD[n]}, s[{SX}:{SX+3}], s{sT1} offen offset:{1024*n} {m} lds", tag=tag))
            G.append(g); g = []
        return G
    def w_tile(self, t, nxt=0):
        return self.dma_w(("w", t), sWo, nxt*256 + t*262144, f"s_add_u32 m0, s{sWl}, {WSLOT[t % 3]}")
    def x_tile(self, tt):
        sl = XB if tt % 2 == 0 else XA
        return self.dma_x(("x", tt), sXo, tt*128, f"s_add_u32 m0, s{sXl}, {sl}", f"s_add_u32 m0, s{sXl}, {sl + 4096}")
    def warmup(self, nxt):
        if not self.o["warm"]: return []
        G = []
        d = f"s_mov_b32 m0, s{sDrop}"
        for k in range(2): G += self.dma_w(("warm",), sWarmW, nxt*256 + k*262144, d)
        for k in range(2): G += self.dma_x(("warm",), sWarmX, k*128, d, d)
        return G
    def next_item_prefetch(self, nxt=1):
        return self.w_tile(0, nxt) + self.x_tile(0) + self.w_tile(1, nxt) + self.w_tile(2, nxt) + self.x_tile(1)
    def dma_wo(self):
        G = []
        for half in range(2):
            g = [ins(f"s_add_u32 s{sT1}, s{sWOo}, {half*4096}"), ins(f"s_add_u32 m0, s{sWoM}, {half*4096}")]
            for n in range(4):
                g.append(ins(f"buffer_load_dwordx4 v{VST}, s[{SWO}:{SWO+3}], s{sT1} offen offset:{1024*n} nt lds", tag=("wo",)))
                G.append(g); g = []
        return G
    def o_store(self, n, mod, prev):
        g = []
        if n % 4 == 0: g.append(ins(f"s_add_u32 s{sT0}, s{sOo}, {(n*1024 - (4*6144 if prev else 0)) & 0xffffffff}"))
        g.append(ins(f"buffer_store_dwordx4 {rng('a', OS(n), 4)}, v{VST}, s[{SO}:{SO+3}], s{sT0} offen offset:{(n % 4)*1024} {mod}", tag=("o",)))
        return g
    def rd_k(self, par, kt, ks):
        return ins(f"ds_read_b128 {rng('a', KF(par, kt, ks), 4)}, v{KA+ks} offset:{par*8192 + kt*4096}")
    def rd_v(self, par, dt, kt):
        return ins(f"ds_read_b64_tr_b16 {rng('a', VF(par, dt) + 2*kt, 2)}, v{VA+dt} offset:{par*8192 + kt*4096}")
    def rd_w(self, t, T, h2):
        ks, u = T >> 1, T & 1
        return ins(f"ds_read_b64_tr_b16 {rng('a', WF(T) + 2*h2, 2)}, v{WA+ks} offset:{(t % 3)*16384 + h2*2048 + 8*u}")
    def rd_x(self, t, qt):
        tt = t >> 1
        return ins(f"ds_read_b128 {rng('a', XF(t % 2, qt), 4)}, v{XAD + (t & 1)} offset:{(24576 if tt % 2 == 0 else 0) + qt*2048}")

    def prologue(self):
        p = self.p
        p("s_cmp_ge_u32 s2, 256")
        p("s_cbranch_scc1 K2_END")
        p("s_load_dwordx16 s[48:63], s[0:1], 0")
        p("s_load_dwordx8 s[64:71], s[0:1], 64")
        p("s_load_dwordx2 s[72:73], s[0:1], 96")
        p(f"v_lshrrev_b32 v1, 6, v0")
        p(f"v_and_b32 v0, 63, v0")
        p(f"v_readfirstlane_b32 s{sW}, v1")
        p("s_and_b32 s86, s2, 7")
        p("s_lshr_b32 s87, s2, 3")
        p(f"s_lshr_b32 s{sP}, s86, 2")
        p("s_and_b32 s88, s86, 1"); p("s_lshl_b32 s88, s88, 3"); p("s_and_b32 s82, s87, 7")
        p(f"s_add_u32 s{sB}, s88, s82")
        p("s_lshr_b32 s88, s86, 1"); p("s_and_b32 s88, s88, 1"); p("s_lshl_b32 s88, s88, 2"); p("s_lshr_b32 s83, s87, 3")
        p(f"s_add_u32 s{sHG}, s88, s83")
        p(f"s_and_b32 s{sHP}, s{sW}, 1")
        p(f"s_lshr_b32 s{sRH}, s{sW}, 1")
        p("s_waitcnt lgkmcnt(0)")
        p(f"s_cmp_eq_u32 s{sP}, 0")
        p(f"s_cselect_b32 s{SX}, s48, s58"); p(f"s_cselect_b32 s{SX+1}, s49, s59")
        p(f"s_cselect_b32 s{SW}, s54, s64"); p(f"s_cselect_b32 s{SW+1}, s55, s65")
        p(f"s_cselect_b32 s{SWO}, s56, s66"); p(f"s_cselect_b32 s{SWO+1}, s57, s67")
        p(f"s_cselect_b32 s90, s50, s60"); p(f"s_cselect_b32 s91, s51, s61")
        p(f"s_cselect_b32 s92, s52, s62"); p(f"s_cselect_b32 s93, s53, s63")
        p(f"s_cmp_eq_u32 s{sRH}, 0")
        p(f"s_cselect_b32 s{SKV}, s90, s92"); p(f"s_cselect_b32 s{SKV+1}, s91, s93")
        p(f"s_cselect_b32 s94, 64, 128"); p(f"s_cselect_b32 s95, 128, 0"); p("s_mov_b32 s96, 128"); p(f"s_cselect_b32 s96, 192, s96")
        p(f"s_cselect_b32 s97, 0, 1")
        p(f"s_cselect_b32 s{sKVl}, 0, 32768")
        for r, n in ((SX, X_BYTES), (SW, W_BYTES), (SWO, W_BYTES), (SKV, KV_BYTES)):
            p(f"s_mov_b32 s{r+2}, {n}"); p(f"s_mov_b32 s{r+3}, 0x00020000")
        p(f"s_mov_b32 s{SO}, s72"); p(f"s_mov_b32 s{SO+1}, s73"); p(f"s_mov_b32 s{SO+2}, 0"); p(f"s_mov_b32 s{SO+3}, 0x00020000")
        p(f"s_add_u32 s{SWT}, s72, {WOT_OFF}"); p(f"s_addc_u32 s{SWT+1}, s73, 0"); p(f"s_mov_b32 s{SWT+2}, {WOT_BYTES}"); p(f"s_mov_b32 s{SWT+3}, 0x00020000")
        p(f"s_lshl_b32 s88, s{sB}, 5"); p(f"s_lshl_b32 s89, s{sHG}, 2"); p("s_add_u32 s88, s88, s89"); p(f"s_lshl_b32 s89, s{sHP}, 1"); p("s_add_u32 s88, s88, s89")
        p(f"s_lshl_b32 s{sKVo}, s88, 17")
        p(f"s_lshl_b32 s89, s{sHP}, 14"); p(f"s_add_u32 s{sKVl}, s{sKVl}, s89")
        p(f"s_lshl_b32 s88, s{sW}, 16"); p(f"s_lshl_b32 s89, s{sHG}, 10"); p(f"s_add_u32 s{sWo}, s88, s89")
        p(f"s_lshl_b32 s{sWl}, s{sW}, 12")
        p(f"s_lshl_b32 s88, s82, 19"); p(f"s_add_u32 s{sWarmW}, s{sWo}, s88")
        p(f"s_mul_i32 s88, s{sB}, 196608"); p(f"s_mul_i32 s89, s{sW}, 49152"); p(f"s_add_u32 s{sXo}, s88, s89")
        p(f"s_mul_i32 s{sXl}, s{sW}, 6144")
        p(f"s_lshl_b32 s88, s83, 8"); p(f"s_add_u32 s{sWarmX}, s{sXo}, s88")
        p(f"s_mov_b32 s{sDrop}, {DROP}")
        p(f"s_lshl_b32 s88, s{sP}, 4"); p(f"s_add_u32 s88, s88, s{sB}"); p("s_lshl_b32 s88, s88, 1"); p(f"s_add_u32 s88, s88, s{sRH}")
        p("s_lshl_b32 s88, s88, 7"); p(f"s_lshl_b32 s89, s{sHG}, 4"); p("s_add_u32 s88, s88, s89"); p(f"s_lshl_b32 s89, s{sHP}, 3"); p("s_add_u32 s88, s88, s89")
        p(f"s_mul_i32 s{sOo}, s88, 6144")
        p("s_and_b32 s88, s86, 3"); p("s_lshl_b32 s88, s88, 5"); p("s_add_u32 s88, s88, s87")
        p(f"s_lshl_b32 s89, s88, 15"); p(f"s_lshl_b32 s98, s{sW}, 13"); p(f"s_add_u32 s{sWOo}, s89, s98")
        p(f"s_lshl_b32 s89, s{sP}, 2"); p(f"s_add_u32 s89, s89, s{sW}"); p("s_lshl_b32 s89, s89, 7"); p("s_add_u32 s89, s89, s88"); p(f"s_lshl_b32 s{sWTo}, s89, 13")
        p(f"s_mov_b32 s{sC}, {f32(1.4426950408889634*128**-0.5)}")
        p(f"s_mov_b32 s{sItem}, 0")
        i_, g_, r_, c_ = "v14", "v8", "v9", "v10"
        p(f"v_and_b32 {i_}, 15, v0"); p(f"v_lshrrev_b32 {g_}, 4, v0"); p(f"v_lshrrev_b32 {r_}, 2, {i_}"); p(f"v_and_b32 {c_}, 3, {i_}")
        p(f"v_lshlrev_b32 v{VST}, 4, v0")
        p("v_lshrrev_b32 v11, 5, v0"); p("v_and_b32 v12, 15, v0"); p("v_lshlrev_b32 v13, 2, v11"); p("v_xor_b32 v12, v12, v13"); p("v_lshlrev_b32 v12, 4, v12")
        p("v_lshl_add_u32 v12, v11, 13, v12"); p("v_bfe_u32 v13, v0, 4, 1"); p(f"v_lshl_add_u32 v{WD[0]}, v13, 9, v12")
        p(f"v_xor_b32 v{WD[1]}, 128, v{WD[0]}"); p(f"v_add_u32 v{WD[2]}, {2*15360}, v{WD[0]}"); p(f"v_add_u32 v{WD[3]}, {3*15360}, v{WD[1]}"); p(f"v_add_u32 v{WD[1]}, 15360, v{WD[1]}")
        p("v_lshrrev_b32 v11, 3, v0"); p("v_and_b32 v12, 7, v0"); p(f"v_xor_b32 v12, v12, {g_}"); p("v_lshlrev_b32 v12, 4, v12")
        p(f"v_lshl_add_u32 v{XD[0]}, v11, 10, v12"); p(f"v_xor_b32 v{XD[1]}, 64, v{XD[0]}")
        p(f"v_add_u32 v{XD[2]}, {2*7168}, v{XD[0]}"); p(f"v_add_u32 v{XD[3]}, {3*7168}, v{XD[1]}"); p(f"v_add_u32 v{XD[1]}, 7168, v{XD[1]}")
        p(f"v_lshlrev_b32 v11, s97, {g_}"); p(f"v_xor_b32 v11, v11, {i_}"); p("v_lshlrev_b32 v11, 4, v11"); p(f"v_lshl_add_u32 v{DV}, {g_}, 8, v11")
        for k in range(1, 4): p(f"v_xor_b32 v{DV+k}, s{93+k}, v{DV}")
        self.lane = (i_, g_, r_, c_)
    def prologue2(self):
        p = self.p
        i_, g_, r_, c_ = self.lane
        p(f"s_lshl_b32 s88, s{sHP}, 14")
        p(f"v_xor_b32 v11, {g_}, {i_}"); p("v_lshlrev_b32 v11, 4, v11"); p(f"v_lshl_add_u32 v11, {i_}, 8, v11"); p(f"v_add_u32 v{KA}, s88, v11")
        for ks in range(1, 4): p(f"v_xor_b32 v{KA+ks}, {64*ks}, v{KA}")
        p(f"v_and_b32 v11, 1, {g_}"); p("v_lshlrev_b32 v11, 2, v11"); p(f"v_add_u32 v11, v11, {r_}"); p("v_lshlrev_b32 v11, 1, v11")
        p(f"v_lshrrev_b32 v12, 1, {c_}"); p("v_xor_b32 v11, v11, v12"); p("v_lshlrev_b32 v11, 4, v11")
        p(f"v_and_b32 v12, 1, {c_}"); p("v_lshl_add_u32 v11, v12, 3, v11")
        p(f"v_lshl_add_u32 v12, {g_}, 2, {r_}"); p("v_lshl_add_u32 v11, v12, 8, v11")
        p("s_add_u32 s89, s88, 32768"); p(f"v_add_u32 v{VA}, s89, v11")
        for dt in range(1, 8): p(f"v_xor_b32 v{VA+dt}, {32*dt}, v{VA}")
        p(f"s_lshl_b32 s88, s{sHP}, 4")
        p(f"v_add_u32 v11, s88, {c_}"); p(f"v_lshlrev_b32 v12, 2, {r_}"); p("v_xor_b32 v11, v11, v12"); p("v_lshlrev_b32 v11, 4, v11")
        p(f"v_lshl_add_u32 v12, {g_}, 3, {r_}"); p("v_lshl_add_u32 v11, v12, 9, v11"); p(f"v_add_u32 v{WA}, {WSLOT[0]}, v11")
        for ks in range(1, 4): p(f"v_xor_b32 v{WA+ks}, {64*ks}, v{WA}")
        p(f"s_mul_i32 s88, s{sRH}, {96*128}"); p(f"s_add_u32 s88, s88, {XA}")
        p(f"v_lshrrev_b32 v11, 1, {i_}"); p(f"v_xor_b32 v11, v11, {g_}"); p("v_lshlrev_b32 v11, 4, v11"); p(f"v_lshl_add_u32 v11, {i_}, 7, v11"); p(f"v_add_u32 v{XAD}, s88, v11")
        p(f"v_xor_b32 v{XAD+1}, 64, v{XAD}")
        if self.o["msum"]:
            p("v_mov_b32 v11, 0x3f803f80")
            for r in range(4): p(f"v_accvgpr_write_b32 a{ONES+r}, v11")

    def stamp(self, fine=False):
        if not self.o["timing"]: return
        if fine and not self.o.get("fine"): return
        p = self.p
        p(f"s_memrealtime s[88:89]")
        p(f"s_memtime s[90:91]")
        p("s_waitcnt lgkmcnt(0)")
        p("s_mov_b32 m0, s99"); p("s_nop 1")
        p(f"v_writelane_b32 v5, s88, m0")
        p(f"v_writelane_b32 v1, s90, m0")
        p("s_add_u32 s99, s99, 1")
    def stamp_flush(self):
        if not self.o["timing"]: return
        p = self.p
        p(f"s_add_u32 s88, s72, {64<<20}"); p("s_addc_u32 s89, s73, 0"); p(f"s_mov_b32 s90, {1<<20}"); p("s_mov_b32 s91, 0x00020000")
        p(f"s_lshl_b32 s92, s2, 2"); p(f"s_add_u32 s92, s92, s{sW}"); p("s_lshl_b32 s92, s92, 9")
        p("v_lshlrev_b32 v6, 2, v0")
        p("buffer_store_dword v5, v6, s[88:91], s92 offen")
        p("buffer_store_dword v1, v6, s[88:91], s92 offen offset:256")

    def emit_groups(self, groups):
        for g in groups:
            for x in g: self.p.add(x)
    def keep(self, x):
        drop = self.o["drop"]; ph = self.phase
        if x.kind == "dma" and ph + "_dma" in drop: return False
        if x.kind == "ds_read" and ph + "_lds" in drop: return False
        if x.kind == "barrier" and ph + "_bar" in drop: return False
        if x.kind == "trans" and ph + "_exp" in drop: return False
        if x.kind == "valu" and x.txt.startswith("v_add_f32") and ph + "_add" in drop: return False
        if x.kind == "valu" and x.txt.startswith("v_cvt") and ph + "_cvt" in drop: return False
        if x.kind == "vstore" and ph + "_st" in drop: return False
        return True
    def run(self, mf, chains, pre=()):
        ch = [[([x for x in g if self.keep(x)], lo, hi) for g, lo, hi in c] for c in chains]
        ch = [[it for it in c if it[0]] for c in ch]
        self.p.extend(gapfill(mf, ch, pre=[x for x in pre if self.keep(x)]))

    def qstep(self, t):
        p = self.p
        self.phase = "qp"
        mf = []
        for T in range(8):
            for qt in range(6):
                mf.append(mfma(acc(T, qt), "v", WF(T), "a", XF(t % 2, qt), "a", None if t == 0 else acc(T, qt)))
        need = []
        for qt in range(6): need += R("a", XF(t % 2, qt), 4)
        for T in range(6): need += R("a", WF(T), 4)
        pre = [wait_regs(need)]
        chains = []
        BG = 11
        if t < 15:
            bar = [wait_tag(("w", t+1))]
            if t % 2 == 1: bar.append(wait_tag(("x", (t+1) >> 1)))
            chains.append([(bar, BG-1, BG-1), ([ins("s_waitcnt lgkmcnt(0)"), ins("s_barrier")], BG, BG)])
            cw = []
            for T in range(8):
                lo = max(BG+1, 6*T + 5)
                cw += [([self.rd_w(t+1, T, 0)], lo, min(47, lo + 8)), ([self.rd_w(t+1, T, 1)], lo, min(47, lo + 9))]
            chains.append(cw)
            chains.append([([self.rd_x(t+1, qt)], BG+1, 40) for qt in range(6)])
            G = []
            if t + 3 <= 15: G += self.w_tile(t+3)
            if t % 2 == 1 and (t >> 1) + 2 <= 7: G += self.x_tile((t >> 1) + 2)
            chains.append([(g, BG+1, 46) for g in G])
        else:
            chains.append([([ins("s_waitcnt lgkmcnt(0)"), ins("s_barrier")], BG, BG)])
            G = self.dma_kv_abs(("kv", 2), 2) + self.dma_kv_abs(("kv", 3), 3)
            G[0].insert(0, ins(f"s_add_u32 s{sTile}, s{sKVo}, {2*8192}"))
            G[0].insert(0, ins(f"s_mov_b32 s{SKV+2}, {KV_BYTES}"))
            chains.append([(g, BG+1, 47) for g in G])
        if 1 <= t <= 12:
            chains.append([(self.o_store(n, self.o["store_mod"], True), 0, 47) for n in (2*(t-1), 2*(t-1)+1)])
        self.run(mf, chains, pre)

    def qproj(self):
        p = self.p
        p(f"s_mov_b32 s{SW+2}, {W_BYTES}"); p(f"s_mov_b32 s{SX+2}, {X_BYTES}")
        p.wait_tag(("w", 0)); p.wait_tag(("x", 0))
        p("s_barrier")
        self.stamp()
        for T in range(8):
            p.add(self.rd_w(0, T, 0)); p.add(self.rd_w(0, T, 1))
        for qt in range(6): p.add(self.rd_x(0, qt))
        for t in range(16):
            self.qstep(t)
            if t in (3, 7, 11): self.stamp(True)
        self.stamp()
        for kt in range(2):
            for ks in range(4): p.add(self.rd_k(0, kt, ks))
        tmp = S(0, 0)
        for qt in range(6):
            for ks in range(4):
                a0, a1 = acc(2*ks, qt), acc(2*ks+1, qt)
                for r in range(4): p(f"v_mul_f32 v{a0+r}, s{sC}, v{a0+r}")
                for r in range(4): p(f"v_mul_f32 v{a1+r}, s{sC}, v{a1+r}")
                t0 = tmp + ((qt*4+ks) % 4)*4
                p(f"v_cvt_pk_bf16_f32 v{t0}, v{a0}, v{a0+1}")
                p(f"v_cvt_pk_bf16_f32 v{t0+1}, v{a0+2}, v{a0+3}")
                p(f"v_cvt_pk_bf16_f32 v{t0+2}, v{a1}, v{a1+1}")
                p(f"v_cvt_pk_bf16_f32 v{t0+3}, v{a1+2}, v{a1+3}")
                for r in range(4): p(f"v_accvgpr_write_b32 a{Q(qt,ks)+r}, v{t0+r}")
            if qt < 4:
                for dt in (2*qt, 2*qt+1):
                    p.add(self.rd_v(0, dt, 0)); p.add(self.rd_v(0, dt, 1))
        if not self.o["msum"]:
            for qt in range(6): p(f"v_mov_b32 v{LS+qt}, 0")

    def period(self, n, dma=(), pre=(), early=()):
        p = self.p
        self.phase = "at"
        msum = self.o["msum"]
        j, pp = divmod(n, 6)
        qk = []; pv = []
        if n < 96:
            sb = n % 2
            for kt in range(2):
                for ks in range(4):
                    qk.append(mfma(S(sb, kt), "v", KF(j % 2, kt, ks), "a", Q(pp, ks), "a", None if ks == 0 else S(sb, kt)))
        if n >= 2:
            jj, qt = divmod(n-2, 6)
            pb = (n-2) % 2
            for dt in range(8):
                pv.append(mfma(acc(dt, qt), "v", VF(jj % 2, dt), "a", P(pb), "v", None if jj == 0 else acc(dt, qt)))
        mf = []
        for k in range(8):
            if qk: mf.append(qk[k])
            if pv: mf.append(pv[k])
        if n >= 2 and msum:
            mf.append(mfma(LA(qt), "a", ONES, "a", P(pb), "v", None if jj == 0 else LA(qt)))
        nm = len(mf)
        sc = nm/17.0 if msum else nm/16.0
        def G(x): return min(nm-1, int(x*sc))
        chains = []
        if 1 <= n <= 96:
            jj2, qt2 = divmod(n-1, 6)
            sb = (n-1) % 2; pb2 = (n-1) % 2
            e = [S(sb, 0)+r for r in range(4)] + [S(sb, 1)+r for r in range(4)]
            chains.append([([ins(f"v_exp_f32 v{e[k]}, v{e[k]}")], G(2*k), G(2*k)) for k in range(8)])
            cv = []
            for k in range(8):
                if not msum: cv.append(([ins(f"v_add_f32 v{LS+qt2}, v{LS+qt2}, v{e[k]}")], G(2*k+1), G(2*k+1)))
                if k % 2 == 1:
                    cv.append(([ins(f"v_cvt_pk_bf16_f32 v{P(pb2)+k//2}, v{e[k-1]}, v{e[k]}")], G(2*k+1), G(2*k+1)))
            chains.append(cv)
        if n >= 2:
            jb, q = divmod(n-2, 6)
            if jb + 1 <= 15:
                par = (jb+1) % 2
                rds = []
                if q in (0, 1): rds = [self.rd_k(par, q, ks) for ks in range(4)]
                else:
                    for dt in range((q-2)*2, (q-2)*2+2): rds += [self.rd_v(par, dt, 0), self.rd_v(par, dt, 1)]
                gp = [1, 5, 9, 13] if q != 5 else [1, 5, 9, 10]
                chains.append([([x], G(gp[k]), G(gp[k])) for k, x in enumerate(rds)])
        if dma:
            nd = sum(1 for x in dma if x.kind == "dma")
            slots = {0: [], 1: [16], 2: [11, 16]}.get(nd) or [int(3 + (16-3)*k/(nd-1)) for k in range(nd)]
            ch = []; seen = 0
            for x in dma:
                if x.kind == "dma":
                    g = G(slots[seen]); ch.append(([x], g, g)); seen += 1
                else:
                    ch.append(([x], 0, nm-1))
            for k in range(len(ch)-2, -1, -1):
                if ch[k][0][0].kind != "dma": ch[k] = (ch[k][0], 0, max(0, ch[k+1][2] - (1 if ch[k+1][0][0].kind == "dma" else 0)))
            chains.append(ch)
        if early: chains.append([([x], 0, nm-1) for x in early])
        self.run(mf, chains, pre)

    def body(self, j, dmaG, tog=(), nper=6):
        bar = []
        if j + 1 <= 15: bar.append(wait_tag(("kv", j+1)))
        else: bar.append(ins("s_waitcnt vmcnt(0)"))
        bar += [ins("s_waitcnt lgkmcnt(0)"), ins("s_barrier")]
        tk = [x for x in tog if any(f"v{KA+z}," in x.txt for z in range(4))]
        tv = [x for x in tog if x not in tk]
        flat = [x for g in dmaG for x in g]
        nd = sum(1 for x in flat if x.kind == "dma")
        if nd == 8: cnt = [1, 1, 2, 1, 1, 2]
        else: cnt = [nd//6 + (1 if q < nd % 6 else 0) for q in range(6)]
        per = [[] for _ in range(6)]
        q = 0; seen = 0
        for x in flat:
            while q < 5 and seen >= cnt[q]: q += 1; seen = 0
            per[q].append(x)
            if x.kind == "dma": seen += 1
        for q in range(6):
            e = tv[:4] if q == 0 else (tv[4:] if q == 1 else [])
            self.period(6*j + 2 + q, dma=per[q], pre=(bar + tk) if q == 0 else (), early=e)

    def attention(self):
        p = self.p
        self.period(0); self.period(1)
        self.body(0, self.dma_kv_abs(("kv", 4), 0))
        p(f"s_mov_b32 s{sM}, s{sKVl}")
        p(f"s_cmp_eq_u32 s{sItem}, 0"); p(f"s_cselect_b32 s{sTh1}, 1, 2"); p(f"s_cselect_b32 s{sTh2}, 2, 3")
        p(f"s_mov_b32 s{sCnt}, 7")
        tog = lambda: [ins(f"v_xor_b32 v{KA+x}, {PHI}, v{KA+x}") for x in range(4)] + [ins(f"v_xor_b32 v{VA+x}, {PHI}, v{VA+x}") for x in range(8)]
        for k in range(7):
            j = 1 + 2*k
            p.raw(f"@@LB at {k}")
            self.stamp(True)
            pre1 = [ins(f"s_cmp_ge_u32 s{sCnt}, s{sTh1}"), ins(f"s_cselect_b32 s{SKV+2}, {KV_BYTES}, 0")]
            g1 = self.dma_kv(("kv", j+4), f"s_add_u32 m0, s{sM}, 8192", f"s_add_u32 m0, s{sM}, 12288")
            self.body(j, [pre1] + g1, tog=tog())
            pre2 = [ins(f"s_cmp_ge_u32 s{sCnt}, s{sTh2}"), ins(f"s_cselect_b32 s{SKV+2}, {KV_BYTES}, 0")]
            g2 = self.dma_kv(("kv", j+5), f"s_add_u32 m0, s{sM}, 0", f"s_add_u32 m0, s{sM}, 4096")
            self.body(j+1, [pre2, [ins(f"s_xor_b32 s{sM}, s{sM}, {PHI}")]] + g2)
            p(f"s_sub_u32 s{sCnt}, s{sCnt}, 1"); p(f"s_cmp_lg_u32 s{sCnt}, 0"); p("s_cbranch_scc1 L_at")
            p.raw(f"@@LE at {k}")
        sel = [[ins(f"s_cmp_eq_u32 s{sItem}, 0"), ins(f"s_cselect_b32 s{SW+2}, {W_BYTES}, 0"), ins(f"s_cselect_b32 s{SX+2}, {X_BYTES}, 0")],
               [ins(f"s_cmp_eq_u32 s{sItem}, 0"), ins(f"s_cselect_b32 s{SWO+2}, 0, {W_BYTES}")],
               [ins(f"s_lshl_b32 s{sWoM}, s{sW}, 13"), ins(f"s_cmp_eq_u32 s{sItem}, 0"), ins(f"s_cselect_b32 s{sWoM}, s{sDrop}, s{sWoM}")]]
        G = sel + self.next_item_prefetch() + self.warmup(1) + self.dma_wo()
        self.body(15, G, tog=tog())

    def o_epilogue(self):
        p = self.p
        t = S(0, 0)
        if self.o["msum"]:
            for qt in range(6): p(f"v_accvgpr_read_b32 v{LS+qt}, a{LA(qt)}")
            for qt in range(6): p(f"v_rcp_f32 v{LS+qt}, v{LS+qt}")
        else:
            for qt in range(6):
                l = LS + qt
                p(f"v_mov_b32 v{t}, v{l}"); p(f"v_permlane32_swap_b32 v{t}, v{l}"); p(f"v_add_f32 v{l}, v{l}, v{t}")
                p(f"v_mov_b32 v{t}, v{l}"); p(f"v_permlane16_swap_b32 v{t}, v{l}"); p(f"v_add_f32 v{l}, v{l}, v{t}")
                p(f"v_rcp_f32 v{l}, v{l}")
        for qt in range(6):
            for ks in range(4):
                a0, a1 = acc(2*ks, qt), acc(2*ks+1, qt)
                l = LS + qt
                for r in range(4): p(f"v_mul_f32 v{a0+r}, v{l}, v{a0+r}")
                for r in range(4): p(f"v_mul_f32 v{a1+r}, v{l}, v{a1+r}")
                t0 = SB + ((ks*6+qt) % 4)*4
                p(f"v_cvt_pk_bf16_f32 v{t0}, v{a0}, v{a0+1}")
                p(f"v_cvt_pk_bf16_f32 v{t0+1}, v{a0+2}, v{a0+3}")
                p(f"v_cvt_pk_bf16_f32 v{t0+2}, v{a1}, v{a1+1}")
                p(f"v_cvt_pk_bf16_f32 v{t0+3}, v{a1+2}, v{a1+3}")
                n = ks*6 + qt
                for r in range(4): p(f"v_accvgpr_write_b32 a{OS(n)+r}, v{t0+r}")

    def final(self):
        p = self.p
        for n in range(24):
            for x in self.o_store(n, self.o["last_store_mod"], True): p.add(x)
        p.wait_tag(("wo",))
        p("s_barrier")
        p("v_and_b32 v8, 15, v0"); p("v_lshrrev_b32 v2, 4, v0"); p("v_lshrrev_b32 v3, 2, v8"); p("v_and_b32 v7, 3, v8")
        p("v_lshl_add_u32 v6, v2, 2, v3"); p("v_lshlrev_b32 v6, 10, v6"); p("v_lshl_add_u32 v6, v7, 4, v6")
        p(f"s_lshl_b32 s88, s{sW}, 8"); p("v_add_u32 v6, s88, v6")
        for nt in range(8):
            u, par = nt >> 1, nt & 1
            d = ACC + nt*4
            p(f"ds_read_b64_tr_b16 v[{d}:{d+1}], v6 offset:{64*u + 8*par}")
            p(f"ds_read_b64_tr_b16 v[{d+2}:{d+3}], v6 offset:{16384 + 64*u + 8*par}")
        for nt in range(8):
            d = ACC + nt*4
            if nt % 4 == 0: p(f"s_add_u32 s{sT1}, s{sWTo}, {nt*1024}")
            p(f"buffer_store_dwordx4 v[{d}:{d+3}], v{VST}, s[{SWT}:{SWT+3}], s{sT1} offen offset:{(nt % 4)*1024} {self.o['last_store_mod']}")

    def build(self):
        p = self.p
        self.prologue()
        if self.o["timing"]: p("s_mov_b32 s99, 0")
        self.stamp()
        p(f"s_mov_b32 s{sTile}, s{sKVo}")
        self.emit_groups(self.next_item_prefetch(0))
        self.emit_groups(self.dma_kv_abs(("kv", 0), 0)); self.emit_groups(self.dma_kv_abs(("kv", 1), 1))
        self.emit_groups(self.warmup(0))
        self.prologue2()
        for item in range(2):
            p.raw(f"@@LB item {item}")
            self.qproj()
            self.stamp()
            self.attention()
            self.stamp()
            self.o_epilogue()
            self.stamp()
            p(f"s_add_u32 s{sKVo}, s{sKVo}, 131072"); p(f"s_add_u32 s{sWo}, s{sWo}, 256"); p(f"s_add_u32 s{sOo}, s{sOo}, {4*6144}")
            p(f"s_mov_b32 s{SO+2}, {O_BYTES}")
            p(f"s_add_u32 s{sItem}, s{sItem}, 1")
            p(f"s_cmp_lt_u32 s{sItem}, 2"); p("s_cbranch_scc1 L_item")
            p.raw(f"@@LE item {item}")
        self.final()
        self.stamp()
        p("s_waitcnt vmcnt(0)")
        self.stamp()
        self.stamp_flush()
        p("s_waitcnt vmcnt(0)")
        p.raw("K2_END:")
        p("s_endpgm")
        L, st = finalize(p.L)
        L = fold(L)
        return L, st

if __name__ == "__main__":
    k = K2(); L, st = k.build()
    print(st, len(L))
```

```python
from dsl import *
from k2 import O_BYTES, WOT_OFF, WOT_BYTES, OUT_BYTES, MF, mfma

ACC = 64
def acc(nu, qt): return ACC + (nu*6 + qt)*4
NBUF = 4
def AF(buf, nu): return buf*56 + nu*4
def BF(buf, qt): return buf*56 + 32 + qt*4
SO, SWT, SOUT = 4, 8, 12
sW, sP, sB, sRH, sNB = 16, 17, 18, 19, 20
sA = 24
sBo = 28
sT0, sT1 = 30, 31
sOut = 32

class K3:
    def __init__(self, opts=None):
        self.o = dict(ld_mod="", st_mod="")
        if opts: self.o.update(opts)
        self.p = Prog(); self.nstamp = 0
    def stamp(self):
        if not self.o.get("timing"): return
        p = self.p
        k = self.nstamp; self.nstamp += 1
        p(f"s_memrealtime s[88:89]"); p(f"s_memtime s[90:91]"); p("s_waitcnt lgkmcnt(0)")
        p(f"v_writelane_b32 v10, s88, {2*k}"); p(f"v_writelane_b32 v10, s90, {2*k+1}")
    def stamp_flush(self):
        if not self.o.get("timing"): return
        p = self.p
        p(f"s_add_u32 s96, s36, {65<<20}"); p("s_addc_u32 s97, s37, 0"); p(f"s_mov_b32 s98, {1<<20}"); p("s_mov_b32 s99, 0x00020000")
        p(f"s_lshl_b32 s92, s2, 2"); p(f"s_add_u32 s92, s92, s{sW}"); p("s_lshl_b32 s92, s92, 8")
        p("v_lshlrev_b32 v11, 2, v0")
        p("buffer_store_dword v10, v11, s[96:99], s92 offen")
    def loads(self, b):
        m = self.o["ld_mod"]
        G = []
        G.append([ins(f"buffer_load_dwordx4 {rng('a', BF(b, 0), 4)}, v4, s[{SO}:{SO+3}], s{sBo} offen {m}")])
        for qt in range(1, 4):
            G.append([ins(f"buffer_load_dwordx4 {rng('a', BF(b, qt), 4)}, v4, s[{SO}:{SO+3}], s{sBo} offen offset:{1024*qt} {m}")])
        G.append([ins(f"buffer_load_dwordx4 {rng('a', BF(b, 4), 4)}, v5, s[{SO}:{SO+3}], s{sBo} offen {m}")])
        G.append([ins(f"buffer_load_dwordx4 {rng('a', BF(b, 5), 4)}, v5, s[{SO}:{SO+3}], s{sBo} offen offset:1024 {m}"),
                  ins(f"s_add_u32 s{sBo}, s{sBo}, 6144")])
        for pr in range(4):
            G.append([ins(f"buffer_load_dwordx4 {rng('a', AF(b, 2*pr), 4)}, v4, s[{SWT}:{SWT+3}], s{sA+pr} offen {m}")])
            G.append([ins(f"buffer_load_dwordx4 {rng('a', AF(b, 2*pr+1), 4)}, v4, s[{SWT}:{SWT+3}], s{sA+pr} offen offset:1024 {m}"),
                      ins(f"s_add_u32 s{sA+pr}, s{sA+pr}, 8192")])
        return G
    def step(self, t, load):
        p = self.p
        b = t % NBUF
        G = self.loads((t + NBUF - 1) % NBUF) if load else []
        n = 0
        for nu in range(8):
            for qt in range(6):
                p.add(mfma(acc(nu, qt), "v", AF(b, nu), "a", BF(b, qt), "a", acc(nu, qt)))
                if n % 3 == 1 and n//3 < len(G):
                    for x in G[n//3]: p.add(x)
                n += 1
    def build(self):
        p = self.p
        p("s_cmp_ge_u32 s2, 256")
        p("s_cbranch_scc1 K3_END")
        p("s_load_dwordx2 s[34:35], s[0:1], 80")
        p("s_load_dwordx2 s[36:37], s[0:1], 96")
        p("v_lshrrev_b32 v1, 6, v0"); p("v_and_b32 v0, 63, v0"); p(f"v_readfirstlane_b32 s{sW}, v1")
        p("s_and_b32 s40, s2, 7"); p("s_lshr_b32 s41, s2, 3")
        p(f"s_lshr_b32 s{sP}, s40, 2")
        p("s_and_b32 s42, s40, 3"); p("s_lshl_b32 s42, s42, 3"); p("s_and_b32 s43, s41, 7"); p("s_add_u32 s42, s42, s43")
        p(f"s_lshr_b32 s{sB}, s42, 1"); p(f"s_and_b32 s{sRH}, s42, 1"); p(f"s_lshr_b32 s{sNB}, s41, 3")
        p("s_waitcnt lgkmcnt(0)")
        p(f"s_mov_b32 s{SO}, s36"); p(f"s_mov_b32 s{SO+1}, s37"); p(f"s_mov_b32 s{SO+2}, {O_BYTES}"); p(f"s_mov_b32 s{SO+3}, 0x00020000")
        p(f"s_add_u32 s{SWT}, s36, {WOT_OFF}"); p(f"s_addc_u32 s{SWT+1}, s37, 0"); p(f"s_mov_b32 s{SWT+2}, {WOT_BYTES}"); p(f"s_mov_b32 s{SWT+3}, 0x00020000")
        p(f"s_mov_b32 s{SOUT}, s34"); p(f"s_mov_b32 s{SOUT+1}, s35"); p(f"s_mov_b32 s{SOUT+2}, {OUT_BYTES}"); p(f"s_mov_b32 s{SOUT+3}, 0x00020000")
        p(f"s_lshl_b32 s42, s{sP}, 2"); p(f"s_add_u32 s42, s42, s{sNB}"); p("s_lshl_b32 s42, s42, 7"); p(f"s_lshl_b32 s43, s{sW}, 5"); p("s_add_u32 s42, s42, s43"); p("s_lshl_b32 s42, s42, 13")
        for pr in range(4):
            p(f"s_add_u32 s43, s{sW}, {pr}"); p("s_and_b32 s43, s43, 3"); p("s_lshl_b32 s43, s43, 11"); p(f"s_add_u32 s{sA+pr}, s42, s43")
        p(f"s_lshl_b32 s42, s{sP}, 4"); p(f"s_add_u32 s42, s42, s{sB}"); p("s_lshl_b32 s42, s42, 1"); p(f"s_add_u32 s42, s42, s{sRH}"); p("s_lshl_b32 s42, s42, 7")
        p(f"s_lshl_b32 s43, s{sW}, 5"); p("s_add_u32 s42, s42, s43"); p(f"s_mul_i32 s{sBo}, s42, 6144")
        p(f"s_mul_i32 s42, s{sB}, 192"); p(f"s_mul_i32 s43, s{sRH}, 96"); p("s_add_u32 s42, s42, s43"); p("s_lshl_b32 s42, s42, 11")
        p(f"s_lshl_b32 s43, s{sP}, 10"); p("s_add_u32 s42, s42, s43"); p(f"s_lshl_b32 s43, s{sNB}, 8"); p("s_add_u32 s42, s42, s43")
        p(f"s_lshl_b32 s43, s{sW}, 6"); p(f"s_add_u32 s{sOut}, s42, s43")
        p("v_lshlrev_b32 v4, 4, v0")
        p("v_add_u32 v5, 4096, v4")
        self.stamp()
        for t in range(NBUF-1):
            for g in self.loads(t):
                for x in g: p.add(x)
        for r in range(192): p(f"v_mov_b32 v{ACC+r}, 0")
        p("s_mov_b32 s44, 7")
        for k in range(7):
            p.raw(f"@@LB k3 {k}")
            for t in range(4*k, 4*k+4): self.step(t, True)
            p("s_sub_u32 s44, s44, 1"); p("s_cmp_lg_u32 s44, 0"); p("s_cbranch_scc1 L_k3")
            p.raw(f"@@LE k3 {k}")
        self.stamp()
        for t in range(28, 32): self.step(t, t + NBUF - 1 < 32)
        self.stamp()
        for pr in range(1, 4):
            p(f"s_add_u32 s42, s{sW}, {pr}"); p("s_and_b32 s42, s42, 3"); p("s_mul_i32 s42, s42, 36864"); p(f"s_add_u32 s42, s42, {(pr-1)*12288}")
            p(f"v_add_u32 v{5+pr}, s42, v4")
        p(f"s_mul_i32 s42, s{sW}, 36864"); p("v_add_u32 v9, s42, v4")
        for pr in range(1, 4):
            for par in range(2):
                for qt in range(6):
                    a = acc(2*pr + par, qt)
                    p(f"ds_write_b128 v{5+pr}, v[{a}:{a+3}] offset:{(par*6 + qt)*1024}")
        p("s_waitcnt lgkmcnt(0)")
        p("s_barrier")
        for sl in range(3):
            for par in range(2):
                for qt in range(6):
                    a = acc(2*(sl+1) + par, qt)
                    p(f"ds_read_b128 v[{a}:{a+3}], v9 offset:{sl*12288 + (par*6 + qt)*1024}")
        p("v_and_b32 v1, 15, v0"); p("v_lshrrev_b32 v2, 4, v0"); p("v_lshlrev_b32 v1, 11, v1"); p("v_lshl_add_u32 v3, v2, 4, v1")
        for qt in range(6):
            for par in range(2):
                a = acc(par, qt)
                for sl in range(3):
                    s = acc(2*(sl+1) + par, qt)
                    for r in range(4): p(f"v_add_f32 v{a+r}, v{a+r}, v{s+r}")
            a0, a1 = acc(0, qt), acc(1, qt)
            t0 = 12 + (qt % 4)*4
            p(f"v_cvt_pk_bf16_f32 v{t0}, v{a0}, v{a0+1}"); p(f"v_cvt_pk_bf16_f32 v{t0+1}, v{a0+2}, v{a0+3}")
            p(f"v_cvt_pk_bf16_f32 v{t0+2}, v{a1}, v{a1+1}"); p(f"v_cvt_pk_bf16_f32 v{t0+3}, v{a1+2}, v{a1+3}")
            p(f"s_add_u32 s{sT0}, s{sOut}, {qt*16*2048}")
            p(f"buffer_store_dwordx4 v[{t0}:{t0+3}], v3, s[{SOUT}:{SOUT+3}], s{sT0} offen {self.o['st_mod']}")
        self.stamp()
        p("s_waitcnt vmcnt(0)")
        self.stamp()
        self.stamp_flush()
        p("s_waitcnt vmcnt(0)")
        p.raw("K3_END:")
        p("s_endpgm")
        L, st = finalize(p.L)
        return fold(L), st

if __name__ == "__main__":
    L, st = K3().build(); print(st, len(L))
```

```python
from dsl import *
import struct

def f32(x): return "0x%08x" % struct.unpack("<I", struct.pack("<f", x))[0]

NB, SQ, DM, H, SK, DH = 16, 192, 512, 32, 512, 128
X_BYTES = NB*SQ*DM*2
KV_BYTES = NB*H*SK*DH*2
W_BYTES = DM*H*DH*2
O_BYTES = 2*NB*2*128*6*1024
WOT_OFF = O_BYTES
WOT_BYTES = 2*4*128*8*1024
OUT_BYTES = NB*SQ*1024*2

PHI = 65536
WSLOT = [65536, 81920, 98304]
XA, XB = 114688, 139264
DROP = 0x30000

ACC = 64
def acc(T, qt): return ACC + (T*6 + qt)*4
SB = 8
def S(buf, kt): return SB + buf*8 + kt*4
PB = 24
def P(buf): return PB + buf*4
LS = 32
KA = 38
VA = 42
DV = 50
WA = 54
XAD = 58
WD = [60, 61, 2, 3]
XD = [62, 63, 6, 7]
VST = 4
def Q(qt, ks): return (qt*4 + ks)*4
def OS(n): return n*4
def KF(buf, kt, ks): return 96 + buf*32 + (kt*4 + ks)*4
def VF(buf, dt): return 160 + buf*32 + dt*4
def WF(T): return 96 + T*4
def XF(buf, qt): return 128 + buf*24 + qt*4
ONES = 224
def LA(qt): return 228 + qt*4
SX, SW, SKV, SO, SWO, SWT = 4, 8, 12, 16, 20, 24
sW, sHP, sRH, sP, sB, sHG = 28, 29, 30, 31, 32, 33
sKVo, sKVl, sWo, sWl, sXo, sXl, sOo = 34, 35, 36, 37, 38, 39, 40
sT0, sT1, sC = 41, 42, 43
sWOo, sWTo = 44, 45
sItem, sCnt = 46, 47
sTile, sM, sTh1, sTh2, sWarmW, sWarmX, sWoM, sDrop = 74, 75, 76, 77, 78, 79, 80, 81

MF = "v_mfma_f32_16x16x32_bf16"
def mfma(d, dk, a, ak, b, bk, c=None):
    cs = "0" if c is None else rng(dk, c, 4)
    return ins(f"{MF} {rng(dk,d,4)}, {rng(ak,a,4)}, {rng(bk,b,4)}, {cs}")

class K2:
    def __init__(self, opts=None):
        self.o = dict(nt="nt", w_mod="nt", x_mod="nt", store_mod="", last_store_mod="sc1", timing=False, msum=True, warm=True, drop=[])
        if opts: self.o.update(opts)
        self.p = Prog()
        self.phase = ""

    def dma_kv(self, tag, m0a, m0b, pre=()):
        nt = self.o['nt']
        G = []
        g = list(pre) + [ins(m0a)]
        for k in range(4):
            g.append(ins(f"buffer_load_dwordx4 v{DV+k}, s[{SKV}:{SKV+3}], s{sTile} offen offset:{1024*k} {nt} lds", tag=tag))
            G.append(g); g = []
        g = [ins(f"s_add_u32 s{sT0}, s{sTile}, 4096"), ins(m0b)]
        for k in range(4):
            g.append(ins(f"buffer_load_dwordx4 v{DV+k}, s[{SKV}:{SKV+3}], s{sT0} offen offset:{1024*k} {nt} lds", tag=tag))
            G.append(g); g = []
        G[-1].append(ins(f"s_add_u32 s{sTile}, s{sTile}, 8192"))
        return G
    def dma_kv_abs(self, tag, slot):
        o = (slot >> 1)*PHI + (slot & 1)*8192
        return self.dma_kv(tag, f"s_add_u32 m0, s{sKVl}, {o}", f"s_add_u32 m0, s{sKVl}, {o + 4096}")
    def dma_w(self, tag, base_reg, goff, m0txt):
        G = []
        g = [ins(f"s_add_u32 s{sT1}, s{base_reg}, {goff}"), ins(m0txt)]
        for n in range(4):
            g.append(ins(f"buffer_load_dwordx4 v{WD[n]}, s[{SW}:{SW+3}], s{sT1} offen offset:{1024*n} {self.o['w_mod']} lds", tag=tag))
            G.append(g); g = []
        return G
    def dma_x(self, tag, base_reg, goff, m0a, m0b):
        G = []
        m = self.o['x_mod']
        g = [ins(f"s_add_u32 s{sT1}, s{base_reg}, {goff}"), ins(m0a)]
        for n in range(4):
            g.append(ins(f"buffer_load_dwordx4 v{XD[n]}, s[{SX}:{SX+3}], s{sT1} offen offset:{1024*n} {m} lds", tag=tag))
            G.append(g); g = []
        g = [ins(f"s_add_u32 s{sT1}, s{sT1}, {4*8192}"), ins(m0b)]
        for n in range(2):
            g.append(ins(f"buffer_load_dwordx4 v{XD[n]}, s[{SX}:{SX+3}], s{sT1} offen offset:{1024*n} {m} lds", tag=tag))
            G.append(g); g = []
        return G
    def w_tile(self, t, nxt=0):
        return self.dma_w(("w", t), sWo, nxt*256 + t*262144, f"s_add_u32 m0, s{sWl}, {WSLOT[t % 3]}")
    def x_tile(self, tt):
        sl = XB if tt % 2 == 0 else XA
        return self.dma_x(("x", tt), sXo, tt*128, f"s_add_u32 m0, s{sXl}, {sl}", f"s_add_u32 m0, s{sXl}, {sl + 4096}")
    def warmup(self, nxt):
        if not self.o["warm"]: return []
        G = []
        d = f"s_mov_b32 m0, s{sDrop}"
        for k in range(2): G += self.dma_w(("warm",), sWarmW, nxt*256 + k*262144, d)
        for k in range(2): G += self.dma_x(("warm",), sWarmX, k*128, d, d)
        return G
    def next_item_prefetch(self, nxt=1):
        return self.w_tile(0, nxt) + self.x_tile(0) + self.w_tile(1, nxt) + self.w_tile(2, nxt) + self.x_tile(1)
    def dma_wo(self):
        G = []
        for half in range(2):
            g = [ins(f"s_add_u32 s{sT1}, s{sWOo}, {half*4096}"), ins(f"s_add_u32 m0, s{sWoM}, {half*4096}")]
            for n in range(4):
                g.append(ins(f"buffer_load_dwordx4 v{VST}, s[{SWO}:{SWO+3}], s{sT1} offen offset:{1024*n} nt lds", tag=("wo",)))
                G.append(g); g = []
        return G
    def o_store(self, n, mod, prev):
        g = []
        if n % 4 == 0: g.append(ins(f"s_add_u32 s{sT0}, s{sOo}, {(n*1024 - (4*6144 if prev else 0)) & 0xffffffff}"))
        g.append(ins(f"buffer_store_dwordx4 {rng('a', OS(n), 4)}, v{VST}, s[{SO}:{SO+3}], s{sT0} offen offset:{(n % 4)*1024} {mod}", tag=("o",)))
        return g
    def rd_k(self, par, kt, ks):
        return ins(f"ds_read_b128 {rng('a', KF(par, kt, ks), 4)}, v{KA+ks} offset:{par*8192 + kt*4096}")
    def rd_v(self, par, dt, kt):
        return ins(f"ds_read_b64_tr_b16 {rng('a', VF(par, dt) + 2*kt, 2)}, v{VA+dt} offset:{par*8192 + kt*4096}")
    def rd_w(self, t, T, h2):
        ks, u = T >> 1, T & 1
        return ins(f"ds_read_b64_tr_b16 {rng('a', WF(T) + 2*h2, 2)}, v{WA+ks} offset:{(t % 3)*16384 + h2*2048 + 8*u}")
    def rd_x(self, t, qt):
        tt = t >> 1
        return ins(f"ds_read_b128 {rng('a', XF(t % 2, qt), 4)}, v{XAD + (t & 1)} offset:{(24576 if tt % 2 == 0 else 0) + qt*2048}")

    def prologue(self):
        p = self.p
        p("s_cmp_ge_u32 s2, 256")
        p("s_cbranch_scc1 K2_END")
        p("s_load_dwordx16 s[48:63], s[0:1], 0")
        p("s_load_dwordx8 s[64:71], s[0:1], 64")
        p("s_load_dwordx2 s[72:73], s[0:1], 96")
        p(f"v_lshrrev_b32 v1, 6, v0")
        p(f"v_and_b32 v0, 63, v0")
        p(f"v_readfirstlane_b32 s{sW}, v1")
        p("s_and_b32 s86, s2, 7")
        p("s_lshr_b32 s87, s2, 3")
        p(f"s_lshr_b32 s{sP}, s86, 2")
        p("s_and_b32 s88, s86, 1"); p("s_lshl_b32 s88, s88, 3"); p("s_and_b32 s82, s87, 7")
        p(f"s_add_u32 s{sB}, s88, s82")
        p("s_lshr_b32 s88, s86, 1"); p("s_and_b32 s88, s88, 1"); p("s_lshl_b32 s88, s88, 2"); p("s_lshr_b32 s83, s87, 3")
        p(f"s_add_u32 s{sHG}, s88, s83")
        p(f"s_and_b32 s{sHP}, s{sW}, 1")
        p(f"s_lshr_b32 s{sRH}, s{sW}, 1")
        p("s_waitcnt lgkmcnt(0)")
        p(f"s_cmp_eq_u32 s{sP}, 0")
        p(f"s_cselect_b32 s{SX}, s48, s58"); p(f"s_cselect_b32 s{SX+1}, s49, s59")
        p(f"s_cselect_b32 s{SW}, s54, s64"); p(f"s_cselect_b32 s{SW+1}, s55, s65")
        p(f"s_cselect_b32 s{SWO}, s56, s66"); p(f"s_cselect_b32 s{SWO+1}, s57, s67")
        p(f"s_cselect_b32 s90, s50, s60"); p(f"s_cselect_b32 s91, s51, s61")
        p(f"s_cselect_b32 s92, s52, s62"); p(f"s_cselect_b32 s93, s53, s63")
        p(f"s_cmp_eq_u32 s{sRH}, 0")
        p(f"s_cselect_b32 s{SKV}, s90, s92"); p(f"s_cselect_b32 s{SKV+1}, s91, s93")
        p(f"s_cselect_b32 s94, 64, 128"); p(f"s_cselect_b32 s95, 128, 0"); p("s_mov_b32 s96, 128"); p(f"s_cselect_b32 s96, 192, s96")
        p(f"s_cselect_b32 s97, 0, 1")
        p(f"s_cselect_b32 s{sKVl}, 0, 32768")
        for r, n in ((SX, X_BYTES), (SW, W_BYTES), (SWO, W_BYTES), (SKV, KV_BYTES)):
            p(f"s_mov_b32 s{r+2}, {n}"); p(f"s_mov_b32 s{r+3}, 0x00020000")
        p(f"s_mov_b32 s{SO}, s72"); p(f"s_mov_b32 s{SO+1}, s73"); p(f"s_mov_b32 s{SO+2}, 0"); p(f"s_mov_b32 s{SO+3}, 0x00020000")
        p(f"s_add_u32 s{SWT}, s72, {WOT_OFF}"); p(f"s_addc_u32 s{SWT+1}, s73, 0"); p(f"s_mov_b32 s{SWT+2}, {WOT_BYTES}"); p(f"s_mov_b32 s{SWT+3}, 0x00020000")
        p(f"s_lshl_b32 s88, s{sB}, 5"); p(f"s_lshl_b32 s89, s{sHG}, 2"); p("s_add_u32 s88, s88, s89"); p(f"s_lshl_b32 s89, s{sHP}, 1"); p("s_add_u32 s88, s88, s89")
        p(f"s_lshl_b32 s{sKVo}, s88, 17")
        p(f"s_lshl_b32 s89, s{sHP}, 14"); p(f"s_add_u32 s{sKVl}, s{sKVl}, s89")
        p(f"s_lshl_b32 s88, s{sW}, 16"); p(f"s_lshl_b32 s89, s{sHG}, 10"); p(f"s_add_u32 s{sWo}, s88, s89")
        p(f"s_lshl_b32 s{sWl}, s{sW}, 12")
        p(f"s_lshl_b32 s88, s82, 19"); p(f"s_add_u32 s{sWarmW}, s{sWo}, s88")
        p(f"s_mul_i32 s88, s{sB}, 196608"); p(f"s_mul_i32 s89, s{sW}, 49152"); p(f"s_add_u32 s{sXo}, s88, s89")
        p(f"s_mul_i32 s{sXl}, s{sW}, 6144")
        p(f"s_lshl_b32 s88, s83, 8"); p(f"s_add_u32 s{sWarmX}, s{sXo}, s88")
        p(f"s_mov_b32 s{sDrop}, {DROP}")
        p(f"s_lshl_b32 s88, s{sP}, 4"); p(f"s_add_u32 s88, s88, s{sB}"); p("s_lshl_b32 s88, s88, 1"); p(f"s_add_u32 s88, s88, s{sRH}")
        p("s_lshl_b32 s88, s88, 7"); p(f"s_lshl_b32 s89, s{sHG}, 4"); p("s_add_u32 s88, s88, s89"); p(f"s_lshl_b32 s89, s{sHP}, 3"); p("s_add_u32 s88, s88, s89")
        p(f"s_mul_i32 s{sOo}, s88, 6144")
        p("s_and_b32 s88, s86, 3"); p("s_lshl_b32 s88, s88, 5"); p("s_add_u32 s88, s88, s87")
        p(f"s_lshl_b32 s89, s88, 15"); p(f"s_lshl_b32 s98, s{sW}, 13"); p(f"s_add_u32 s{sWOo}, s89, s98")
        p(f"s_lshl_b32 s89, s{sP}, 2"); p(f"s_add_u32 s89, s89, s{sW}"); p("s_lshl_b32 s89, s89, 7"); p("s_add_u32 s89, s89, s88"); p(f"s_lshl_b32 s{sWTo}, s89, 13")
        p(f"s_mov_b32 s{sC}, {f32(1.4426950408889634*128**-0.5)}")
        p(f"s_mov_b32 s{sItem}, 0")
        i_, g_, r_, c_ = "v14", "v8", "v9", "v10"
        p(f"v_and_b32 {i_}, 15, v0"); p(f"v_lshrrev_b32 {g_}, 4, v0"); p(f"v_lshrrev_b32 {r_}, 2, {i_}"); p(f"v_and_b32 {c_}, 3, {i_}")
        p(f"v_lshlrev_b32 v{VST}, 4, v0")
        p("v_lshrrev_b32 v11, 5, v0"); p("v_and_b32 v12, 15, v0"); p("v_lshlrev_b32 v13, 2, v11"); p("v_xor_b32 v12, v12, v13"); p("v_lshlrev_b32 v12, 4, v12")
        p("v_lshl_add_u32 v12, v11, 13, v12"); p("v_bfe_u32 v13, v0, 4, 1"); p(f"v_lshl_add_u32 v{WD[0]}, v13, 9, v12")
        p(f"v_xor_b32 v{WD[1]}, 128, v{WD[0]}"); p(f"v_add_u32 v{WD[2]}, {2*15360}, v{WD[0]}"); p(f"v_add_u32 v{WD[3]}, {3*15360}, v{WD[1]}"); p(f"v_add_u32 v{WD[1]}, 15360, v{WD[1]}")
        p("v_lshrrev_b32 v11, 3, v0"); p("v_and_b32 v12, 7, v0"); p(f"v_xor_b32 v12, v12, {g_}"); p("v_lshlrev_b32 v12, 4, v12")
        p(f"v_lshl_add_u32 v{XD[0]}, v11, 10, v12"); p(f"v_xor_b32 v{XD[1]}, 64, v{XD[0]}")
        p(f"v_add_u32 v{XD[2]}, {2*7168}, v{XD[0]}"); p(f"v_add_u32 v{XD[3]}, {3*7168}, v{XD[1]}"); p(f"v_add_u32 v{XD[1]}, 7168, v{XD[1]}")
        p(f"v_lshlrev_b32 v11, s97, {g_}"); p(f"v_xor_b32 v11, v11, {i_}"); p("v_lshlrev_b32 v11, 4, v11"); p(f"v_lshl_add_u32 v{DV}, {g_}, 8, v11")
        for k in range(1, 4): p(f"v_xor_b32 v{DV+k}, s{93+k}, v{DV}")
        self.lane = (i_, g_, r_, c_)
    def prologue2(self):
        p = self.p
        i_, g_, r_, c_ = self.lane
        p(f"s_lshl_b32 s88, s{sHP}, 14")
        p(f"v_xor_b32 v11, {g_}, {i_}"); p("v_lshlrev_b32 v11, 4, v11"); p(f"v_lshl_add_u32 v11, {i_}, 8, v11"); p(f"v_add_u32 v{KA}, s88, v11")
        for ks in range(1, 4): p(f"v_xor_b32 v{KA+ks}, {64*ks}, v{KA}")
        p(f"v_and_b32 v11, 1, {g_}"); p("v_lshlrev_b32 v11, 2, v11"); p(f"v_add_u32 v11, v11, {r_}"); p("v_lshlrev_b32 v11, 1, v11")
        p(f"v_lshrrev_b32 v12, 1, {c_}"); p("v_xor_b32 v11, v11, v12"); p("v_lshlrev_b32 v11, 4, v11")
        p(f"v_and_b32 v12, 1, {c_}"); p("v_lshl_add_u32 v11, v12, 3, v11")
        p(f"v_lshl_add_u32 v12, {g_}, 2, {r_}"); p("v_lshl_add_u32 v11, v12, 8, v11")
        p("s_add_u32 s89, s88, 32768"); p(f"v_add_u32 v{VA}, s89, v11")
        for dt in range(1, 8): p(f"v_xor_b32 v{VA+dt}, {32*dt}, v{VA}")
        p(f"s_lshl_b32 s88, s{sHP}, 4")
        p(f"v_add_u32 v11, s88, {c_}"); p(f"v_lshlrev_b32 v12, 2, {r_}"); p("v_xor_b32 v11, v11, v12"); p("v_lshlrev_b32 v11, 4, v11")
        p(f"v_lshl_add_u32 v12, {g_}, 3, {r_}"); p("v_lshl_add_u32 v11, v12, 9, v11"); p(f"v_add_u32 v{WA}, {WSLOT[0]}, v11")
        for ks in range(1, 4): p(f"v_xor_b32 v{WA+ks}, {64*ks}, v{WA}")
        p(f"s_mul_i32 s88, s{sRH}, {96*128}"); p(f"s_add_u32 s88, s88, {XA}")
        p(f"v_lshrrev_b32 v11, 1, {i_}"); p(f"v_xor_b32 v11, v11, {g_}"); p("v_lshlrev_b32 v11, 4, v11"); p(f"v_lshl_add_u32 v11, {i_}, 7, v11"); p(f"v_add_u32 v{XAD}, s88, v11")
        p(f"v_xor_b32 v{XAD+1}, 64, v{XAD}")
        if self.o["msum"]:
            p("v_mov_b32 v11, 0x3f803f80")
            for r in range(4): p(f"v_accvgpr_write_b32 a{ONES+r}, v11")

    def stamp(self, fine=False):
        if not self.o["timing"]: return
        if fine and not self.o.get("fine"): return
        p = self.p
        p(f"s_memrealtime s[88:89]")
        p(f"s_memtime s[90:91]")
        p("s_waitcnt lgkmcnt(0)")
        p("s_mov_b32 m0, s99"); p("s_nop 1")
        p(f"v_writelane_b32 v5, s88, m0")
        p(f"v_writelane_b32 v1, s90, m0")
        p("s_add_u32 s99, s99, 1")
    def stamp_flush(self):
        if not self.o["timing"]: return
        p = self.p
        if self.o.get("dbg") is not None:
            p(f"s_cmp_eq_u32 s2, {self.o['dbg']}"); p("s_cselect_b32 s90, 64, 0"); p(f"s_cmp_eq_u32 s{sW}, 0"); p("s_cselect_b32 s90, s90, 0")
            p("s_mov_b32 s88, s70"); p("s_mov_b32 s89, s71"); p("s_mov_b32 s91, 0x00020000")
            src = "v1" if self.o.get("dbgcyc") else "v5"
            p("v_lshlrev_b32 v6, 2, v0")
            p(f"buffer_store_dword {src}, v6, s[88:91], 0 offen")
            p("s_add_u32 s88, s88, 512"); p("s_addc_u32 s89, s89, 0"); p("s_cmp_lg_u32 s90, 0"); p("s_cselect_b32 s90, 52, 0")
            p(f"buffer_store_dword {src}, v6, s[88:91], 0 offen")
            return
        p(f"s_add_u32 s88, s72, {64<<20}"); p("s_addc_u32 s89, s73, 0"); p(f"s_mov_b32 s90, {1<<20}"); p("s_mov_b32 s91, 0x00020000")
        p(f"s_lshl_b32 s92, s2, 2"); p(f"s_add_u32 s92, s92, s{sW}"); p("s_lshl_b32 s92, s92, 9")
        p("v_lshlrev_b32 v6, 2, v0")
        p("buffer_store_dword v5, v6, s[88:91], s92 offen")
        p("buffer_store_dword v1, v6, s[88:91], s92 offen offset:256")

    def emit_groups(self, groups):
        for g in groups:
            for x in g: self.p.add(x)
    def keep(self, x):
        drop = self.o["drop"]; ph = self.phase
        if x.kind == "dma" and ph + "_dma" in drop: return False
        if x.kind == "ds_read" and ph + "_lds" in drop: return False
        if x.kind == "barrier" and ph + "_bar" in drop: return False
        if x.kind == "trans" and ph + "_exp" in drop: return False
        if x.kind == "valu" and x.txt.startswith("v_add_f32") and ph + "_add" in drop: return False
        if x.kind == "valu" and x.txt.startswith("v_cvt") and ph + "_cvt" in drop: return False
        if x.kind == "vstore" and ph + "_st" in drop: return False
        return True
    def run(self, mf, chains, pre=()):
        ch = [[([x for x in g if self.keep(x)], lo, hi) for g, lo, hi in c] for c in chains]
        ch = [[it for it in c if it[0]] for c in ch]
        self.p.extend(gapfill(mf, ch, pre=[x for x in pre if self.keep(x)]))

    def qstep(self, t):
        p = self.p
        self.phase = "qp"
        mf = []
        for T in range(8):
            for qt in range(6):
                mf.append(mfma(acc(T, qt), "v", WF(T), "a", XF(t % 2, qt), "a", None if t == 0 else acc(T, qt)))
        need = []
        for qt in range(6): need += R("a", XF(t % 2, qt), 4)
        for T in range(6): need += R("a", WF(T), 4)
        pre = [wait_regs(need)]
        chains = []
        BG = 11
        if t < 15:
            bar = [wait_tag(("w", t+1))]
            if t % 2 == 1: bar.append(wait_tag(("x", (t+1) >> 1)))
            chains.append([(bar, BG-1, BG-1), ([ins("s_waitcnt lgkmcnt(0)"), ins("s_barrier")], BG, BG)])
            cw = []
            for T in range(8):
                lo = max(BG+1, 6*T + 5)
                cw += [([self.rd_w(t+1, T, 0)], lo, min(47, lo + 8)), ([self.rd_w(t+1, T, 1)], lo, min(47, lo + 9))]
            chains.append(cw)
            chains.append([([self.rd_x(t+1, qt)], BG+1, 40) for qt in range(6)])
            G = []
            if t + 3 <= 15: G += self.w_tile(t+3)
            if t % 2 == 1 and (t >> 1) + 2 <= 7: G += self.x_tile((t >> 1) + 2)
            chains.append([(g, BG+1, 46) for g in G])
        else:
            chains.append([([ins("s_waitcnt lgkmcnt(0)"), ins("s_barrier")], BG, BG)])
            G = self.dma_kv_abs(("kv", 2), 2) + self.dma_kv_abs(("kv", 3), 3)
            G[0].insert(0, ins(f"s_add_u32 s{sTile}, s{sKVo}, {2*8192}"))
            G[0].insert(0, ins(f"s_mov_b32 s{SKV+2}, {KV_BYTES}"))
            chains.append([(g, BG+1, 47) for g in G])
        if 1 <= t <= 12:
            chains.append([(self.o_store(n, self.o["store_mod"], True), 0, 47) for n in (2*(t-1), 2*(t-1)+1)])
        self.run(mf, chains, pre)

    def qproj(self):
        p = self.p
        p(f"s_mov_b32 s{SW+2}, {W_BYTES}"); p(f"s_mov_b32 s{SX+2}, {X_BYTES}")
        p.wait_tag(("w", 0)); p.wait_tag(("x", 0))
        p("s_barrier")
        self.stamp()
        for T in range(8):
            p.add(self.rd_w(0, T, 0)); p.add(self.rd_w(0, T, 1))
        for qt in range(6): p.add(self.rd_x(0, qt))
        for t in range(16):
            self.qstep(t)
            if t in (3, 7, 11): self.stamp(True)
        self.stamp()
        for kt in range(2):
            for ks in range(4): p.add(self.rd_k(0, kt, ks))
        tmp = S(0, 0)
        for qt in range(6):
            for ks in range(4):
                a0, a1 = acc(2*ks, qt), acc(2*ks+1, qt)
                for r in range(4): p(f"v_mul_f32 v{a0+r}, s{sC}, v{a0+r}")
                for r in range(4): p(f"v_mul_f32 v{a1+r}, s{sC}, v{a1+r}")
                t0 = tmp + ((qt*4+ks) % 4)*4
                p(f"v_cvt_pk_bf16_f32 v{t0}, v{a0}, v{a0+1}")
                p(f"v_cvt_pk_bf16_f32 v{t0+1}, v{a0+2}, v{a0+3}")
                p(f"v_cvt_pk_bf16_f32 v{t0+2}, v{a1}, v{a1+1}")
                p(f"v_cvt_pk_bf16_f32 v{t0+3}, v{a1+2}, v{a1+3}")
                for r in range(4): p(f"v_accvgpr_write_b32 a{Q(qt,ks)+r}, v{t0+r}")
            if qt < 4:
                for dt in (2*qt, 2*qt+1):
                    p.add(self.rd_v(0, dt, 0)); p.add(self.rd_v(0, dt, 1))
        if not self.o["msum"]:
            for qt in range(6): p(f"v_mov_b32 v{LS+qt}, 0")

    def period(self, n, dma=(), pre=(), early=()):
        p = self.p
        self.phase = "at"
        msum = self.o["msum"]
        j, pp = divmod(n, 6)
        qk = []; pv = []
        if n < 96:
            sb = n % 2
            for kt in range(2):
                for ks in range(4):
                    qk.append(mfma(S(sb, kt), "v", KF(j % 2, kt, ks), "a", Q(pp, ks), "a", None if ks == 0 else S(sb, kt)))
        if n >= 2:
            jj, qt = divmod(n-2, 6)
            pb = (n-2) % 2
            for dt in range(8):
                pv.append(mfma(acc(dt, qt), "v", VF(jj % 2, dt), "a", P(pb), "v", None if jj == 0 else acc(dt, qt)))
        mf = []
        for k in range(8):
            if qk: mf.append(qk[k])
            if pv: mf.append(pv[k])
        if n >= 2 and msum:
            mf.append(mfma(LA(qt), "a", ONES, "a", P(pb), "v", None if jj == 0 else LA(qt)))
        nm = len(mf)
        sc = nm/17.0 if msum else nm/16.0
        def G(x): return min(nm-1, int(x*sc))
        chains = []
        if 1 <= n <= 96:
            jj2, qt2 = divmod(n-1, 6)
            sb = (n-1) % 2; pb2 = (n-1) % 2
            e = [S(sb, 0)+r for r in range(4)] + [S(sb, 1)+r for r in range(4)]
            chains.append([([ins(f"v_exp_f32 v{e[k]}, v{e[k]}")], G(2*k), G(2*k)) for k in range(8)])
            cv = []
            for k in range(8):
                if not msum: cv.append(([ins(f"v_add_f32 v{LS+qt2}, v{LS+qt2}, v{e[k]}")], G(2*k+1), G(2*k+1)))
                if k % 2 == 1:
                    cv.append(([ins(f"v_cvt_pk_bf16_f32 v{P(pb2)+k//2}, v{e[k-1]}, v{e[k]}")], G(2*k+1), G(2*k+1)))
            chains.append(cv)
        if n >= 2:
            jb, q = divmod(n-2, 6)
            if jb + 1 <= 15:
                par = (jb+1) % 2
                rds = []
                if q in (0, 1): rds = [self.rd_k(par, q, ks) for ks in range(4)]
                else:
                    for dt in range((q-2)*2, (q-2)*2+2): rds += [self.rd_v(par, dt, 0), self.rd_v(par, dt, 1)]
                gp = [1, 5, 9, 13] if q != 5 else [1, 5, 9, 10]
                chains.append([([x], G(gp[k]), G(gp[k])) for k, x in enumerate(rds)])
        if dma:
            nd = sum(1 for x in dma if x.kind == "dma")
            slots = {0: [], 1: [16], 2: [11, 16]}.get(nd) or [int(3 + (16-3)*k/(nd-1)) for k in range(nd)]
            ch = []; seen = 0
            for x in dma:
                if x.kind == "dma":
                    g = G(slots[seen]); ch.append(([x], g, g)); seen += 1
                else:
                    ch.append(([x], 0, nm-1))
            for k in range(len(ch)-2, -1, -1):
                if ch[k][0][0].kind != "dma": ch[k] = (ch[k][0], 0, max(0, ch[k+1][2] - (1 if ch[k+1][0][0].kind == "dma" else 0)))
            chains.append(ch)
        if early: chains.append([([x], 0, nm-1) for x in early])
        self.run(mf, chains, pre)

    def body(self, j, dmaG, tog=(), nper=6):
        bar = []
        if j + 1 <= 15: bar.append(wait_tag(("kv", j+1)))
        else: bar.append(ins("s_waitcnt vmcnt(0)"))
        bar += [ins("s_waitcnt lgkmcnt(0)"), ins("s_barrier")]
        tk = [x for x in tog if any(f"v{KA+z}," in x.txt for z in range(4))]
        tv = [x for x in tog if x not in tk]
        flat = [x for g in dmaG for x in g]
        nd = sum(1 for x in flat if x.kind == "dma")
        if nd == 8: cnt = [1, 1, 2, 1, 1, 2]
        else: cnt = [nd//6 + (1 if q < nd % 6 else 0) for q in range(6)]
        per = [[] for _ in range(6)]
        q = 0; seen = 0
        for x in flat:
            while q < 5 and seen >= cnt[q]: q += 1; seen = 0
            per[q].append(x)
            if x.kind == "dma": seen += 1
        for q in range(6):
            e = tv[:4] if q == 0 else (tv[4:] if q == 1 else [])
            self.period(6*j + 2 + q, dma=per[q], pre=(bar + tk) if q == 0 else (), early=e)

    def attention(self):
        p = self.p
        self.period(0); self.period(1)
        self.body(0, self.dma_kv_abs(("kv", 4), 0))
        p(f"s_mov_b32 s{sM}, s{sKVl}")
        p(f"s_cmp_eq_u32 s{sItem}, 0"); p(f"s_cselect_b32 s{sTh1}, 1, 2"); p(f"s_cselect_b32 s{sTh2}, 2, 3")
        p(f"s_mov_b32 s{sCnt}, 7")
        tog = lambda: [ins(f"v_xor_b32 v{KA+x}, {PHI}, v{KA+x}") for x in range(4)] + [ins(f"v_xor_b32 v{VA+x}, {PHI}, v{VA+x}") for x in range(8)]
        for k in range(7):
            j = 1 + 2*k
            p.raw(f"@@LB at {k}")
            self.stamp(True)
            pre1 = [ins(f"s_cmp_ge_u32 s{sCnt}, s{sTh1}"), ins(f"s_cselect_b32 s{SKV+2}, {KV_BYTES}, 0")]
            g1 = self.dma_kv(("kv", j+4), f"s_add_u32 m0, s{sM}, 8192", f"s_add_u32 m0, s{sM}, 12288")
            self.body(j, [pre1] + g1, tog=tog())
            pre2 = [ins(f"s_cmp_ge_u32 s{sCnt}, s{sTh2}"), ins(f"s_cselect_b32 s{SKV+2}, {KV_BYTES}, 0")]
            g2 = self.dma_kv(("kv", j+5), f"s_add_u32 m0, s{sM}, 0", f"s_add_u32 m0, s{sM}, 4096")
            self.body(j+1, [pre2, [ins(f"s_xor_b32 s{sM}, s{sM}, {PHI}")]] + g2)
            p(f"s_sub_u32 s{sCnt}, s{sCnt}, 1"); p(f"s_cmp_lg_u32 s{sCnt}, 0"); p("s_cbranch_scc1 L_at")
            p.raw(f"@@LE at {k}")
        sel = [[ins(f"s_cmp_eq_u32 s{sItem}, 0"), ins(f"s_cselect_b32 s{SW+2}, {W_BYTES}, 0"), ins(f"s_cselect_b32 s{SX+2}, {X_BYTES}, 0")],
               [ins(f"s_cmp_eq_u32 s{sItem}, 0"), ins(f"s_cselect_b32 s{SWO+2}, 0, {W_BYTES}")],
               [ins(f"s_lshl_b32 s{sWoM}, s{sW}, 13"), ins(f"s_cmp_eq_u32 s{sItem}, 0"), ins(f"s_cselect_b32 s{sWoM}, s{sDrop}, s{sWoM}")]]
        G = sel + self.next_item_prefetch() + self.warmup(1) + self.dma_wo()
        self.body(15, G, tog=tog())

    def o_epilogue(self):
        p = self.p
        t = S(0, 0)
        if self.o["msum"]:
            for qt in range(6): p(f"v_accvgpr_read_b32 v{LS+qt}, a{LA(qt)}")
            for qt in range(6): p(f"v_rcp_f32 v{LS+qt}, v{LS+qt}")
        else:
            for qt in range(6):
                l = LS + qt
                p(f"v_mov_b32 v{t}, v{l}"); p(f"v_permlane32_swap_b32 v{t}, v{l}"); p(f"v_add_f32 v{l}, v{l}, v{t}")
                p(f"v_mov_b32 v{t}, v{l}"); p(f"v_permlane16_swap_b32 v{t}, v{l}"); p(f"v_add_f32 v{l}, v{l}, v{t}")
                p(f"v_rcp_f32 v{l}, v{l}")
        for qt in range(6):
            for ks in range(4):
                a0, a1 = acc(2*ks, qt), acc(2*ks+1, qt)
                l = LS + qt
                for r in range(4): p(f"v_mul_f32 v{a0+r}, v{l}, v{a0+r}")
                for r in range(4): p(f"v_mul_f32 v{a1+r}, v{l}, v{a1+r}")
                t0 = SB + ((ks*6+qt) % 4)*4
                p(f"v_cvt_pk_bf16_f32 v{t0}, v{a0}, v{a0+1}")
                p(f"v_cvt_pk_bf16_f32 v{t0+1}, v{a0+2}, v{a0+3}")
                p(f"v_cvt_pk_bf16_f32 v{t0+2}, v{a1}, v{a1+1}")
                p(f"v_cvt_pk_bf16_f32 v{t0+3}, v{a1+2}, v{a1+3}")
                n = ks*6 + qt
                for r in range(4): p(f"v_accvgpr_write_b32 a{OS(n)+r}, v{t0+r}")

    def final(self):
        p = self.p
        for n in range(24):
            for x in self.o_store(n, self.o["last_store_mod"], True): p.add(x)
        p.wait_tag(("wo",))
        p("s_barrier")
        p("v_and_b32 v8, 15, v0"); p("v_lshrrev_b32 v2, 4, v0"); p("v_lshrrev_b32 v3, 2, v8"); p("v_and_b32 v7, 3, v8")
        p("v_lshl_add_u32 v6, v2, 2, v3"); p("v_lshlrev_b32 v6, 10, v6"); p("v_lshl_add_u32 v6, v7, 4, v6")
        p(f"s_lshl_b32 s88, s{sW}, 8"); p("v_add_u32 v6, s88, v6")
        for nt in range(8):
            u, par = nt >> 1, nt & 1
            d = ACC + nt*4
            p(f"ds_read_b64_tr_b16 v[{d}:{d+1}], v6 offset:{64*u + 8*par}")
            p(f"ds_read_b64_tr_b16 v[{d+2}:{d+3}], v6 offset:{16384 + 64*u + 8*par}")
        for nt in range(8):
            d = ACC + nt*4
            if nt % 4 == 0: p(f"s_add_u32 s{sT1}, s{sWTo}, {nt*1024}")
            p(f"buffer_store_dwordx4 v[{d}:{d+3}], v{VST}, s[{SWT}:{SWT+3}], s{sT1} offen offset:{(nt % 4)*1024} {self.o['last_store_mod']}")

    def build(self):
        p = self.p
        self.prologue()
        if self.o["timing"]: p("s_mov_b32 s99, 0")
        self.stamp()
        p(f"s_mov_b32 s{sTile}, s{sKVo}")
        self.emit_groups(self.next_item_prefetch(0))
        self.emit_groups(self.dma_kv_abs(("kv", 0), 0)); self.emit_groups(self.dma_kv_abs(("kv", 1), 1))
        self.emit_groups(self.warmup(0))
        self.prologue2()
        for item in range(2):
            p.raw(f"@@LB item {item}")
            self.qproj()
            self.stamp()
            self.attention()
            self.stamp()
            self.o_epilogue()
            self.stamp()
            p(f"s_add_u32 s{sKVo}, s{sKVo}, 131072"); p(f"s_add_u32 s{sWo}, s{sWo}, 256"); p(f"s_add_u32 s{sOo}, s{sOo}, {4*6144}")
            p(f"s_mov_b32 s{SO+2}, {O_BYTES}")
            p(f"s_add_u32 s{sItem}, s{sItem}, 1")
            p(f"s_cmp_lt_u32 s{sItem}, 2"); p("s_cbranch_scc1 L_item")
            p.raw(f"@@LE item {item}")
        self.final()
        self.stamp()
        p("s_waitcnt vmcnt(0)")
        self.stamp()
        self.stamp_flush()
        p("s_waitcnt vmcnt(0)")
        p.raw("K2_END:")
        p("s_endpgm")
        L, st = finalize(p.L)
        L = fold(L)
        return L, st

if __name__ == "__main__":
    k = K2(); L, st = k.build()
    print(st, len(L))
```

```python
from dsl import *
from k2 import O_BYTES, WOT_OFF, WOT_BYTES, OUT_BYTES, MF, mfma

ACC = 64
def acc(nu, qt): return ACC + (nu*6 + qt)*4
NBUF = 4
def AF(buf, nu): return buf*56 + nu*4
def BF(buf, qt): return buf*56 + 32 + qt*4
SO, SWT, SOUT = 4, 8, 12
sW, sP, sB, sRH, sNB = 16, 17, 18, 19, 20
sA = 24
sBo = 28
sT0, sT1 = 30, 31
sOut = 32

class K3:
    def __init__(self, opts=None):
        self.o = dict(ld_mod="", st_mod="")
        if opts: self.o.update(opts)
        self.p = Prog(); self.nstamp = 0
    def stamp(self):
        if not self.o.get("timing"): return
        p = self.p
        k = self.nstamp; self.nstamp += 1
        p(f"s_memrealtime s[88:89]"); p(f"s_memtime s[90:91]"); p("s_waitcnt lgkmcnt(0)")
        p(f"v_writelane_b32 v10, s88, {2*k}"); p(f"v_writelane_b32 v10, s90, {2*k+1}")
    def stamp_flush(self):
        if not self.o.get("timing"): return
        p = self.p
        if self.o.get("dbg") is not None:
            p("s_load_dwordx2 s[92:93], s[0:1], 88"); p("s_waitcnt lgkmcnt(0)")
            p("s_mov_b32 s96, s92"); p("s_mov_b32 s97, s93"); p("s_mov_b32 s99, 0x00020000")
            p(f"s_cmp_eq_u32 s2, {self.o['dbg']}"); p("s_cselect_b32 s98, 64, 0"); p(f"s_cmp_eq_u32 s{sW}, 0"); p("s_cselect_b32 s98, s98, 0")
            p("v_readlane_b32 s40, v10, 0"); p("v_readlane_b32 s41, v10, 4"); p("v_readlane_b32 s42, v10, 8")
            p("s_nop 4")
            p("v_mov_b32 v12, s40"); p("v_mov_b32 v13, s41"); p("v_mov_b32 v14, s42"); p("v_mov_b32 v11, 52")
            p("v_cmp_eq_u32 vcc, 0, v0"); p("s_and_saveexec_b64 s[44:45], vcc")
            p("buffer_store_dwordx3 v[12:14], v11, s[96:99], 0 offen")
            p("s_mov_b64 exec, s[44:45]")
            return
        p(f"s_add_u32 s96, s36, {65<<20}"); p("s_addc_u32 s97, s37, 0"); p(f"s_mov_b32 s98, {1<<20}"); p("s_mov_b32 s99, 0x00020000")
        p(f"s_lshl_b32 s92, s2, 2"); p(f"s_add_u32 s92, s92, s{sW}"); p("s_lshl_b32 s92, s92, 8")
        p("v_lshlrev_b32 v11, 2, v0")
        p("buffer_store_dword v10, v11, s[96:99], s92 offen")
    def loads(self, b):
        m = self.o["ld_mod"]
        G = []
        G.append([ins(f"buffer_load_dwordx4 {rng('a', BF(b, 0), 4)}, v4, s[{SO}:{SO+3}], s{sBo} offen {m}")])
        for qt in range(1, 4):
            G.append([ins(f"buffer_load_dwordx4 {rng('a', BF(b, qt), 4)}, v4, s[{SO}:{SO+3}], s{sBo} offen offset:{1024*qt} {m}")])
        G.append([ins(f"buffer_load_dwordx4 {rng('a', BF(b, 4), 4)}, v5, s[{SO}:{SO+3}], s{sBo} offen {m}")])
        G.append([ins(f"buffer_load_dwordx4 {rng('a', BF(b, 5), 4)}, v5, s[{SO}:{SO+3}], s{sBo} offen offset:1024 {m}"),
                  ins(f"s_add_u32 s{sBo}, s{sBo}, 6144")])
        for pr in range(4):
            G.append([ins(f"buffer_load_dwordx4 {rng('a', AF(b, 2*pr), 4)}, v4, s[{SWT}:{SWT+3}], s{sA+pr} offen {m}")])
            G.append([ins(f"buffer_load_dwordx4 {rng('a', AF(b, 2*pr+1), 4)}, v4, s[{SWT}:{SWT+3}], s{sA+pr} offen offset:1024 {m}"),
                      ins(f"s_add_u32 s{sA+pr}, s{sA+pr}, 8192")])
        return G
    def step(self, t, load):
        p = self.p
        b = t % NBUF
        G = self.loads((t + NBUF - 1) % NBUF) if load else []
        n = 0
        for nu in range(8):
            for qt in range(6):
                p.add(mfma(acc(nu, qt), "v", AF(b, nu), "a", BF(b, qt), "a", acc(nu, qt)))
                if n % 3 == 1 and n//3 < len(G):
                    for x in G[n//3]: p.add(x)
                n += 1
    def build(self):
        p = self.p
        p("s_cmp_ge_u32 s2, 256")
        p("s_cbranch_scc1 K3_END")
        p("s_load_dwordx2 s[34:35], s[0:1], 80")
        p("s_load_dwordx2 s[36:37], s[0:1], 96")
        p("v_lshrrev_b32 v1, 6, v0"); p("v_and_b32 v0, 63, v0"); p(f"v_readfirstlane_b32 s{sW}, v1")
        p("s_and_b32 s40, s2, 7"); p("s_lshr_b32 s41, s2, 3")
        p(f"s_lshr_b32 s{sP}, s40, 2")
        p("s_and_b32 s42, s40, 3"); p("s_lshl_b32 s42, s42, 3"); p("s_and_b32 s43, s41, 7"); p("s_add_u32 s42, s42, s43")
        p(f"s_lshr_b32 s{sB}, s42, 1"); p(f"s_and_b32 s{sRH}, s42, 1"); p(f"s_lshr_b32 s{sNB}, s41, 3")
        p("s_waitcnt lgkmcnt(0)")
        p(f"s_mov_b32 s{SO}, s36"); p(f"s_mov_b32 s{SO+1}, s37"); p(f"s_mov_b32 s{SO+2}, {O_BYTES}"); p(f"s_mov_b32 s{SO+3}, 0x00020000")
        p(f"s_add_u32 s{SWT}, s36, {WOT_OFF}"); p(f"s_addc_u32 s{SWT+1}, s37, 0"); p(f"s_mov_b32 s{SWT+2}, {WOT_BYTES}"); p(f"s_mov_b32 s{SWT+3}, 0x00020000")
        p(f"s_mov_b32 s{SOUT}, s34"); p(f"s_mov_b32 s{SOUT+1}, s35"); p(f"s_mov_b32 s{SOUT+2}, {OUT_BYTES}"); p(f"s_mov_b32 s{SOUT+3}, 0x00020000")
        p(f"s_lshl_b32 s42, s{sP}, 2"); p(f"s_add_u32 s42, s42, s{sNB}"); p("s_lshl_b32 s42, s42, 7"); p(f"s_lshl_b32 s43, s{sW}, 5"); p("s_add_u32 s42, s42, s43"); p("s_lshl_b32 s42, s42, 13")
        for pr in range(4):
            p(f"s_add_u32 s43, s{sW}, {pr}"); p("s_and_b32 s43, s43, 3"); p("s_lshl_b32 s43, s43, 11"); p(f"s_add_u32 s{sA+pr}, s42, s43")
        p(f"s_lshl_b32 s42, s{sP}, 4"); p(f"s_add_u32 s42, s42, s{sB}"); p("s_lshl_b32 s42, s42, 1"); p(f"s_add_u32 s42, s42, s{sRH}"); p("s_lshl_b32 s42, s42, 7")
        p(f"s_lshl_b32 s43, s{sW}, 5"); p("s_add_u32 s42, s42, s43"); p(f"s_mul_i32 s{sBo}, s42, 6144")
        p(f"s_mul_i32 s42, s{sB}, 192"); p(f"s_mul_i32 s43, s{sRH}, 96"); p("s_add_u32 s42, s42, s43"); p("s_lshl_b32 s42, s42, 11")
        p(f"s_lshl_b32 s43, s{sP}, 10"); p("s_add_u32 s42, s42, s43"); p(f"s_lshl_b32 s43, s{sNB}, 8"); p("s_add_u32 s42, s42, s43")
        p(f"s_lshl_b32 s43, s{sW}, 6"); p(f"s_add_u32 s{sOut}, s42, s43")
        p("v_lshlrev_b32 v4, 4, v0")
        p("v_add_u32 v5, 4096, v4")
        self.stamp()
        for t in range(NBUF-1):
            for g in self.loads(t):
                for x in g: p.add(x)
        for r in range(192): p(f"v_mov_b32 v{ACC+r}, 0")
        p("s_mov_b32 s44, 7")
        for k in range(7):
            p.raw(f"@@LB k3 {k}")
            for t in range(4*k, 4*k+4): self.step(t, True)
            p("s_sub_u32 s44, s44, 1"); p("s_cmp_lg_u32 s44, 0"); p("s_cbranch_scc1 L_k3")
            p.raw(f"@@LE k3 {k}")
        self.stamp()
        for t in range(28, 32): self.step(t, t + NBUF - 1 < 32)
        self.stamp()
        for pr in range(1, 4):
            p(f"s_add_u32 s42, s{sW}, {pr}"); p("s_and_b32 s42, s42, 3"); p("s_mul_i32 s42, s42, 36864"); p(f"s_add_u32 s42, s42, {(pr-1)*12288}")
            p(f"v_add_u32 v{5+pr}, s42, v4")
        p(f"s_mul_i32 s42, s{sW}, 36864"); p("v_add_u32 v9, s42, v4")
        for pr in range(1, 4):
            for par in range(2):
                for qt in range(6):
                    a = acc(2*pr + par, qt)
                    p(f"ds_write_b128 v{5+pr}, v[{a}:{a+3}] offset:{(par*6 + qt)*1024}")
        p("s_waitcnt lgkmcnt(0)")
        p("s_barrier")
        for sl in range(3):
            for par in range(2):
                for qt in range(6):
                    a = acc(2*(sl+1) + par, qt)
                    p(f"ds_read_b128 v[{a}:{a+3}], v9 offset:{sl*12288 + (par*6 + qt)*1024}")
        p("v_and_b32 v1, 15, v0"); p("v_lshrrev_b32 v2, 4, v0"); p("v_lshlrev_b32 v1, 11, v1"); p("v_lshl_add_u32 v3, v2, 4, v1")
        for qt in range(6):
            for par in range(2):
                a = acc(par, qt)
                for sl in range(3):
                    s = acc(2*(sl+1) + par, qt)
                    for r in range(4): p(f"v_add_f32 v{a+r}, v{a+r}, v{s+r}")
            a0, a1 = acc(0, qt), acc(1, qt)
            t0 = 12 + (qt % 4)*4
            p(f"v_cvt_pk_bf16_f32 v{t0}, v{a0}, v{a0+1}"); p(f"v_cvt_pk_bf16_f32 v{t0+1}, v{a0+2}, v{a0+3}")
            p(f"v_cvt_pk_bf16_f32 v{t0+2}, v{a1}, v{a1+1}"); p(f"v_cvt_pk_bf16_f32 v{t0+3}, v{a1+2}, v{a1+3}")
            p(f"s_add_u32 s{sT0}, s{sOut}, {qt*16*2048}")
            p(f"buffer_store_dwordx4 v[{t0}:{t0+3}], v3, s[{SOUT}:{SOUT+3}], s{sT0} offen {self.o['st_mod']}")
        self.stamp()
        p("s_waitcnt vmcnt(0)")
        self.stamp()
        self.stamp_flush()
        p("s_waitcnt vmcnt(0)")
        p.raw("K3_END:")
        p("s_endpgm")
        L, st = finalize(p.L)
        return fold(L), st

if __name__ == "__main__":
    L, st = K3().build(); print(st, len(L))
```

```python
import re

def R(kind, lo, n=1):
    return [f"{kind}{lo+i}" for i in range(n)]
def rng(kind, lo, n):
    return f"{kind}{lo}" if n == 1 else f"{kind}[{lo}:{lo+n-1}]"

class I:
    __slots__ = ("txt", "kind", "rd", "wr", "meta")
    def __init__(self, txt, kind, rd=(), wr=(), **meta):
        self.txt = txt; self.kind = kind; self.rd = set(rd); self.wr = set(wr); self.meta = meta
    def __repr__(self): return self.txt

TRANS = ("v_exp_f32", "v_rcp_f32", "v_log_f32", "v_rsq_f32", "v_sqrt_f32")

_reg_re = re.compile(r"\b([vas])\[(\d+):(\d+)\]|\b([vas])(\d+)\b|\b(m0|vcc|exec|scc)\b")
def parse_regs(op):
    out = []
    for m in _reg_re.finditer(op):
        if m.group(1):
            out += [f"{m.group(1)}{k}" for k in range(int(m.group(2)), int(m.group(3)) + 1)]
        elif m.group(4):
            out.append(f"{m.group(4)}{m.group(5)}")
        else:
            out.append(m.group(6))
    return out

def split_ops(s):
    ops = []; depth = 0; cur = ""
    for ch in s:
        if ch == "[": depth += 1
        if ch == "]": depth -= 1
        if ch == "," and depth == 0:
            ops.append(cur.strip()); cur = ""
        else:
            cur += ch
    if cur.strip(): ops.append(cur.strip())
    return ops

def ins(txt, **meta):
    t = txt.strip()
    name = t.split()[0]
    rest = t[len(name):].strip()
    ops = split_ops(rest)
    rd = []; wr = []
    if name.startswith("v_mfma"):
        wr = parse_regs(ops[0]);
        a = parse_regs(ops[1]); b = parse_regs(ops[2]); c = parse_regs(ops[3])
        return I(t, "mfma", rd=a + b + c, wr=wr, A=a, B=b, C=c, passes=(8 if "32x32" in name else 4), **meta)
    if name.startswith("ds_read"):
        wr = parse_regs(ops[0]); rd = parse_regs(ops[1].split()[0])
        return I(t, "ds_read", rd, wr, **meta)
    if name.startswith("ds_write"):
        rd = parse_regs(ops[0]) + parse_regs(ops[1].split()[0])
        return I(t, "ds_write", rd, [], **meta)
    if name.startswith("buffer_load") or name.startswith("global_load"):
        if " lds" in t:
            rd = []
            for o in ops: rd += parse_regs(o.split()[0])
            rd.append("m0")
            return I(t, "dma", rd, [], **meta)
        wr = parse_regs(ops[0])
        for o in ops[1:]: rd += parse_regs(o.split()[0])
        return I(t, "vload", rd, wr, **meta)
    if name.startswith("buffer_store") or name.startswith("global_store"):
        for o in ops: rd += parse_regs(o.split()[0])
        data = parse_regs(ops[0]) if name.startswith("buffer_store") else parse_regs(ops[1])
        return I(t, "vstore", rd, [], data=data, wide=("x4" in name or "x3" in name), **meta)
    if name.startswith("buffer_atomic") or name.startswith("global_atomic"):
        for o in ops: rd += parse_regs(o.split()[0])
        wr = parse_regs(ops[0]) if " sc0" in t else []
        return I(t, "vload" if wr else "vstore", rd, wr, data=[], wide=False, **meta)
    if name == "s_waitcnt": return I(t, "wait", **meta)
    if name == "s_barrier": return I(t, "barrier", **meta)
    if name == "s_nop": return I(t, "nop", n=int(ops[0]) + 1, **meta)
    if name.startswith("s_load") or name.startswith("s_memtime") or name.startswith("s_memrealtime"):
        wr = parse_regs(ops[0])
        for o in ops[1:]: rd += parse_regs(o)
        return I(t, "smem", rd, wr, **meta)
    if name.startswith("s_cbranch") or name in ("s_branch", "s_endpgm", "s_setprio", "s_sleep", "s_setpc_b64"):
        return I(t, "branch", parse_regs(rest), [], **meta)
    if name.startswith("s_cmp"):
        return I(t, "salu", parse_regs(rest), ["scc"], **meta)
    if name.startswith("s_"):
        wr = parse_regs(ops[0])
        for o in ops[1:]: rd += parse_regs(o)
        if name.startswith("s_and_saveexec") : wr += ["exec"]; rd += ["exec"]
        if "cselect" in name or "addc" in name or "subb" in name: rd.append("scc")
        return I(t, "salu", rd, wr + ["scc"], **meta)
    if name.startswith("v_permlane"):
        r = parse_regs(ops[0]) + parse_regs(ops[1])
        return I(t, "permlane", r, r, **meta)
    if name.startswith("v_cmp"):
        wr = parse_regs(ops[0])
        for o in ops[1:]: rd += parse_regs(o)
        return I(t, "valu", rd, wr, **meta)
    if name.startswith("v_writelane"):
        wr = parse_regs(ops[0])
        for o in ops: rd += parse_regs(o)
        return I(t, "valu", rd, wr, **meta)
    if name.startswith("v_readfirstlane") or name.startswith("v_readlane"):
        wr = parse_regs(ops[0])
        for o in ops[1:]: rd += parse_regs(o)
        return I(t, "valu", rd, wr, readlane=True, **meta)
    if name.startswith("v_"):
        wr = parse_regs(ops[0])
        for o in ops[1:]: rd += parse_regs(o.split(" op_sel")[0])
        if name.startswith("v_fmac") or name.startswith("v_dot2c"): rd += wr
        if name.startswith("v_cndmask") and len(ops) == 3: rd.append("vcc")
        base = name.replace("_e32", "").replace("_e64", "")
        return I(t, "trans" if base in TRANS else "valu", rd, wr, **meta)
    raise ValueError("unknown instr: " + t)

class Prog:
    def __init__(self):
        self.L = []
    def __call__(self, txt, **meta):
        i = ins(txt, **meta); self.L.append(i); return i
    def add(self, i): self.L.append(i)
    def raw(self, txt): self.L.append(I(txt, "label"))
    def comment(self, txt): self.L.append(I("; " + txt, "label"))
    def wait_tag(self, tag):
        self.L.append(I("", "wait_tag", tag=tag))
    def extend(self, l): self.L.extend(l)

def wait_regs(regs): return I("", "wait_regs", rd=regs)
def wait_tag(tag): return I("", "wait_tag", tag=tag)

COST = dict(salu=4, valu=4, trans=8, ds_read=8, ds_write=8, dma=8, vstore=8, vload=8, wait=4, wait_tag=4, wait_regs=4, barrier=4, permlane=4, nop=4, label=0, branch=4)
def gapfill(mf, chains, budget=8, pre=()):
    n = len(mf)
    out = list(pre)
    pos = [0]*len(chains)
    carry = 0
    for g in range(n):
        out.append(mf[g])
        used = carry; carry = 0
        while True:
            cand = []
            for c, ch in enumerate(chains):
                if pos[c] < len(ch):
                    grp, lo, hi = ch[pos[c]]
                    if lo <= g: cand.append((hi, c))
            if not cand: break
            cand.sort()
            hi, c = cand[0]
            grp = chains[c][pos[c]][0]
            cost = sum(COST[x.kind] for x in grp)
            last = (g == n-1)
            if hi <= g or last or used + cost <= budget or (used == 0):
                out += grp; pos[c] += 1; used += cost
            else:
                placed = False
                for hi2, c2 in cand[1:]:
                    g2 = chains[c2][pos[c2]][0]; cost2 = sum(COST[x.kind] for x in g2)
                    if used + cost2 <= budget:
                        out += g2; pos[c2] += 1; used += cost2; placed = True; break
                if not placed: break
        if used > budget: carry = min(used - budget, budget)
    for c, ch in enumerate(chains): assert pos[c] == len(ch), "unplaced items"
    return out

VALUISH = ("valu", "trans", "permlane")

def finalize(L, check_only=False):
    out = []
    lg = []
    vm = []
    smem_out = set()
    stats = dict(nops=0, lgk=0, vmw=0)
    def emit(i): out.append(i)
    def states_since(pred, maxlook):
        n = 0
        for k in range(len(out) - 1, -1, -1):
            p = out[k]
            if p.kind in ("label",): continue
            if pred(p): return n
            n += p.meta["n"] if p.kind == "nop" else 1
            if n >= maxlook: return None
        return None
    def need(pred, ws, states):
        s = states_since(pred, ws)
        if s is not None and s < ws: states.append(ws - s)
    for i in L:
        if i.kind == "label":
            emit(i); continue
        if i.meta.get("alt"):
            emit(I(i.txt, "label", verbatim=True)); continue
        if i.kind == "wait_tag":
            tag = i.meta["tag"]
            idx = [k for k, o in enumerate(vm) if o["tag"] == tag]
            n = (len(vm) - 1 - idx[-1]) if idx else len(vm)
            n = min(n, 63)
            emit(I(f"s_waitcnt vmcnt({n})", "wait")); stats["vmw"] += 1
            vm = vm[len(vm) - n:] if n > 0 else []
            continue
        touched = i.rd | i.wr
        if i.kind == "wait_regs":
            idx = [k for k, o in enumerate(lg) if o & touched]
            n = (len(lg) - 1 - idx[-1]) if idx else len(lg)
            n = min(n, 15)
            emit(I(f"s_waitcnt lgkmcnt({n})", "wait")); stats["lgk"] += 1
            lg = lg[len(lg) - n:] if n > 0 else []
            continue
        if i.kind == "wait":
            m = re.search(r"lgkmcnt\((\d+)\)", i.txt)
            if m:
                n = int(m.group(1)); lg = lg[len(lg) - n:] if n > 0 and n < len(lg) else (lg if n > 0 else [])
                if n == 0: smem_out = set()
            m = re.search(r"vmcnt\((\d+)\)", i.txt)
            if m:
                n = int(m.group(1)); vm = vm[len(vm) - n:] if 0 < n < len(vm) else (vm if n > 0 else [])
            emit(i); continue
        if smem_out & touched:
            emit(I("s_waitcnt lgkmcnt(0)", "wait")); lg = []; smem_out = set()
        idx = [k for k, o in enumerate(lg) if o & touched]
        if idx:
            n = min(len(lg) - 1 - idx[-1], 15)
            emit(I(f"s_waitcnt lgkmcnt({n})", "wait")); stats["lgk"] += 1
            lg = lg[len(lg) - n:] if n > 0 else []
        idx = [k for k, o in enumerate(vm) if o["wr"] & touched]
        if idx:
            n = min(len(vm) - 1 - idx[-1], 63)
            emit(I(f"s_waitcnt vmcnt({n})", "wait")); stats["vmw"] += 1
            vm = vm[len(vm) - n:] if n > 0 else []
        st = []
        vregs_rd = {r for r in i.rd if r[0] in "va" and r not in ("vcc",)}
        vregs_wr = {r for r in i.wr if r[0] in "va" and r not in ("vcc",)}
        sregs_rd = {r for r in i.rd if (r[0] == "s" and r != "scc") or r in ("vcc", "exec")}
        if i.kind == "mfma":
            need(lambda p: p.kind in VALUISH and (p.wr & i.rd), 2, st)
            ab = set(i.meta["A"]) | set(i.meta["B"]); c = set(i.meta["C"])
            for passes, w_ab, w_c in ((4, 8, 6), (8, 12, 10)):
                need(lambda p: p.kind == "mfma" and p.meta["passes"] == passes and (p.wr & ab), w_ab, st)
                need(lambda p: p.kind == "mfma" and p.meta["passes"] == passes and (p.wr & c) and not (p.wr == c and p.meta["passes"] == i.meta["passes"]), w_c, st)
                need(lambda p: p.kind == "mfma" and p.meta["passes"] == passes and (p.wr & i.wr) and not (p.wr == c), w_c, st)
            need(lambda p: p.kind in VALUISH and "exec" in p.wr, 4, st)
        else:
            if i.kind in VALUISH + ("vstore", "vload", "dma", "ds_read", "ds_write"):
                for passes, w in ((4, 8), (8, 12)):
                    need(lambda p: p.kind == "mfma" and p.meta["passes"] == passes and (p.wr & (vregs_rd | vregs_wr)), w, st)
            if i.kind in VALUISH:
                for passes, w in ((4, 3), (8, 7)):
                    need(lambda p: p.kind == "mfma" and p.meta["passes"] == passes and (set(p.meta["C"]) & vregs_wr), w, st)
                if i.kind != "trans":
                    need(lambda p: p.kind == "trans" and (p.wr & vregs_rd), 1, st)
                need(lambda p: p.kind == "vstore" and p.meta.get("wide") and (set(p.meta["data"]) & vregs_wr), 2, st)
                need(lambda p: p.kind in VALUISH and (p.wr & sregs_rd), 2, st)
                if i.kind == "permlane":
                    need(lambda p: p.kind in VALUISH and (p.wr & vregs_rd), 2, st)
                if i.meta.get("readlane"):
                    need(lambda p: p.kind in VALUISH and (p.wr & vregs_rd), 1, st)
            if i.kind in ("vstore", "vload", "dma"):
                need(lambda p: p.kind in VALUISH and (p.wr & sregs_rd), 5, st)
            if i.kind == "dma":
                need(lambda p: p.kind == "salu" and "m0" in p.wr, 1, st)
            if i.kind == "salu":
                need(lambda p: p.kind in VALUISH and (p.wr & sregs_rd), 4, st)
        if st:
            n = max(st); stats["nops"] += n
            while n > 0:
                k = min(n, 16); emit(I(f"s_nop {k-1}", "nop", n=k)); n -= k
        emit(i)
        if i.kind == "ds_read": lg.append(set(i.wr))
        elif i.kind == "ds_write": lg.append(set())
        elif i.kind == "smem": smem_out |= set(i.wr) or {"_"}
        elif i.kind in ("dma", "vstore"): vm.append(dict(wr=set(), tag=i.meta.get("tag")))
        elif i.kind == "vload": vm.append(dict(wr=set(i.wr), tag=i.meta.get("tag")))
    return out, stats

def fold(L):
    import itertools
    def wait_min(a, b):
        fa = dict(re.findall(r"(vmcnt|lgkmcnt)\((\d+)\)", a)); fb = dict(re.findall(r"(vmcnt|lgkmcnt)\((\d+)\)", b))
        if set(fa) != set(fb): return None
        return "s_waitcnt " + " ".join(f"{k}({min(int(fa[k]), int(fb[k]))})" for k in fa)
    while True:
        lb = None
        for n, i in enumerate(L):
            if i.kind == "label" and i.txt.startswith("@@LB") and i.txt.split()[2] == "0":
                nm = i.txt.split()[1]
                pos = n; ok = True
                while pos < len(L) and L[pos].kind == "label" and L[pos].txt.startswith("@@LB " + nm + " "):
                    e = next(m for m in range(pos+1, len(L)) if L[m].kind == "label" and L[m].txt.startswith("@@L"))
                    if not L[e].txt.startswith("@@LE " + nm + " "): ok = False; break
                    pos = e + 1
                if ok:
                    lb = n; name = nm; break
        if lb is None:
            assert not any(i.kind == "label" and i.txt.startswith("@@L") for i in L)
            return L
        segs = []; pos = lb
        while pos < len(L) and L[pos].kind == "label" and L[pos].txt.startswith("@@LB " + name + " "):
            e = next(n for n in range(pos, len(L)) if L[n].kind == "label" and L[n].txt.startswith("@@LE " + name + " "))
            segs.append(L[pos+1:e]); pos = e + 1
        body = [x for x in segs[0]]
        strip = lambda s: [x for x in s if not (x.kind == "label" and x.txt.startswith(";"))]
        base = strip(segs[0])
        for k, s in enumerate(segs[1:], 1):
            s = strip(s)
            if len(s) != len(base):
                import difflib
                diff = list(difflib.unified_diff([x.txt for x in base], [x.txt for x in s], lineterm="", n=2))[:60]
                raise AssertionError(f"loop {name}: instance {k} length {len(s)} != {len(base)}\n" + "\n".join(diff))
            for n, (a, b) in enumerate(zip(base, s)):
                if a.txt != b.txt:
                    m = wait_min(a.txt, b.txt) if a.kind == "wait" and b.kind == "wait" else None
                    if m is None:
                        raise AssertionError(f"loop {name}: instance {k} differs at {n}: '{a.txt}' vs '{b.txt}'")
                    base[n] = I(m, "wait")
        uid = f"L_{name}"
        L = L[:lb] + [I(uid + ":", "label")] + base + L[pos:]

def wait_min_txt(a, b):
    fa = dict(re.findall(r"(vmcnt|lgkmcnt)\((\d+)\)", a)); fb = dict(re.findall(r"(vmcnt|lgkmcnt)\((\d+)\)", b))
    if set(fa) != set(fb): return None
    return "s_waitcnt " + " ".join(f"{k}({min(int(fa[k]), int(fb[k]))})" for k in fa)

def segments(L):
    segs = {}; top = []; cur = None
    strip = lambda s: [x for x in s if not (x.kind == "label" and x.txt.startswith(";"))]
    for i in L:
        if i.kind == "label" and i.txt.startswith("@@SB"):
            cur = (i.txt.split()[1], []); continue
        if i.kind == "label" and i.txt.startswith("@@SE"):
            name, body = cur; body = strip(body); cur = None
            if name not in segs:
                segs[name] = body; top.append(("seg", name))
            else:
                base = segs[name]
                if len(base) != len(body):
                    import difflib
                    diff = list(difflib.unified_diff([x.txt for x in base], [x.txt for x in body], lineterm="", n=2))[:60]
                    raise AssertionError(f"segment {name}: lengths {len(base)} vs {len(body)}\n" + "\n".join(diff))
                for n, (a, b) in enumerate(zip(base, body)):
                    if a.txt != b.txt:
                        m = wait_min_txt(a.txt, b.txt) if a.kind == "wait" and b.kind == "wait" else None
                        if m is None: raise AssertionError(f"segment {name} differs at {n}: '{a.txt}' vs '{b.txt}'")
                        base[n] = I(m, "wait")
            continue
        if cur is not None: cur[1].append(i)
        else: top.append(("ins", i))
    return segs, top

def text(L):
    return "\n".join(i.txt for i in L if i.txt and not i.txt.startswith(";")) + "\n"
```

```python
from dsl import *
import struct

def f32(x): return "0x%08x" % struct.unpack("<I", struct.pack("<f", x))[0]

NB, SQ, DM, H, SK, DH = 16, 192, 512, 32, 512, 128
X_BYTES = NB*SQ*DM*2
KV_BYTES = NB*H*SK*DH*2
W_BYTES = DM*H*DH*2
O_BYTES = 2*NB*2*128*6*1024
WOT_OFF = O_BYTES
WOT_BYTES = 2*4*128*8*1024
OUT_BYTES = NB*SQ*1024*2

PHI = 65536
WSLOT = [65536, 81920, 98304]
XA, XB = 114688, 139264
DROP = 0x30000

ACC = 64
def acc(T, qt): return ACC + (T*6 + qt)*4
SB = 8
def S(buf, kt): return SB + buf*8 + kt*4
PB = 24
def P(buf): return PB + buf*4
LS = 32
KA = 38
VA = 42
DV = 50
WA = 54
XAD = 58
WD = [60, 61, 2, 3]
XD = [62, 63, 6, 7]
VST = 4
def Q(qt, ks): return (qt*4 + ks)*4
def OS(n): return n*4
def KF(buf, kt, ks): return 96 + buf*32 + (kt*4 + ks)*4
def VF(buf, dt): return 160 + buf*32 + dt*4
def WF(T): return 96 + T*4
def XF(buf, qt): return 128 + buf*24 + qt*4
ONES = 224
def LA(qt): return 228 + qt*4
SX, SW, SKV, SO, SWO, SWT = 4, 8, 12, 16, 20, 24
sW, sHP, sRH, sP, sB, sHG = 28, 29, 30, 31, 32, 33
sKVo, sKVl, sWo, sWl, sXo, sXl, sOo = 34, 35, 36, 37, 38, 39, 40
sT0, sT1, sC = 41, 42, 43
sWOo, sWTo = 44, 45
sItem, sCnt = 46, 47
sTile, sM, sTh1, sTh2, sWarmW, sWarmX, sWoM, sDrop, sTc, sRot = 74, 75, 76, 77, 78, 79, 80, 81, 84, 85

MF = "v_mfma_f32_16x16x32_bf16"
def mfma(d, dk, a, ak, b, bk, c=None):
    cs = "0" if c is None else rng(dk, c, 4)
    return ins(f"{MF} {rng(dk,d,4)}, {rng(ak,a,4)}, {rng(bk,b,4)}, {cs}")

class K2:
    def __init__(self, opts=None):
        self.o = dict(nt="nt", w_mod="nt", x_mod="nt", store_mod="", last_store_mod="sc1", timing=False, msum=True, warm=True, drop=[])
        if opts: self.o.update(opts)
        self.p = Prog()
        self.phase = ""

    def tile_addr(self):
        if not self.o.get("rot"):
            return [ins(f"s_add_u32 s{sTile}, s{sKVo}, s{sTc}"), ins(f"s_add_u32 s{sTc}, s{sTc}, 8192")]
        return [ins(f"s_add_u32 s{sTile}, s{sTc}, s{sRot}"), ins(f"s_and_b32 s{sTile}, s{sTile}, 0x1ffff"),
                ins(f"s_and_b32 s{sT0}, s{sTc}, 0x20000"), ins(f"s_add_u32 s{sTile}, s{sTile}, s{sT0}"),
                ins(f"s_add_u32 s{sTile}, s{sTile}, s{sKVo}"), ins(f"s_add_u32 s{sTc}, s{sTc}, 8192")]
    def dma_kv(self, tag, m0a, m0b, pre=()):
        nt = self.o['nt']
        G = []
        g = list(pre) + self.tile_addr() + [ins(m0a)]
        for k in range(4):
            g.append(ins(f"buffer_load_dwordx4 v{DV+k}, s[{SKV}:{SKV+3}], s{sTile} offen offset:{1024*k} {nt} lds", tag=tag))
            G.append(g); g = []
        g = [ins(f"s_add_u32 s{sT0}, s{sTile}, 4096"), ins(m0b)]
        for k in range(4):
            g.append(ins(f"buffer_load_dwordx4 v{DV+k}, s[{SKV}:{SKV+3}], s{sT0} offen offset:{1024*k} {nt} lds", tag=tag))
            G.append(g); g = []
        return G
    def dma_kv_abs(self, tag, slot):
        o = (slot >> 1)*PHI + (slot & 1)*8192
        return self.dma_kv(tag, f"s_add_u32 m0, s{sKVl}, {o}", f"s_add_u32 m0, s{sKVl}, {o + 4096}")
    def dma_w(self, tag, base_reg, goff, m0txt):
        G = []
        g = [ins(f"s_add_u32 s{sT1}, s{base_reg}, {goff}"), ins(m0txt)]
        for n in range(4):
            g.append(ins(f"buffer_load_dwordx4 v{WD[n]}, s[{SW}:{SW+3}], s{sT1} offen offset:{1024*n} {self.o['w_mod']} lds", tag=tag))
            G.append(g); g = []
        return G
    def dma_x(self, tag, base_reg, goff, m0a, m0b):
        G = []
        m = self.o['x_mod']
        g = [ins(f"s_add_u32 s{sT1}, s{base_reg}, {goff}"), ins(m0a)]
        for n in range(4):
            g.append(ins(f"buffer_load_dwordx4 v{XD[n]}, s[{SX}:{SX+3}], s{sT1} offen offset:{1024*n} {m} lds", tag=tag))
            G.append(g); g = []
        g = [ins(f"s_add_u32 s{sT1}, s{sT1}, {4*8192}"), ins(m0b)]
        for n in range(2):
            g.append(ins(f"buffer_load_dwordx4 v{XD[n]}, s[{SX}:{SX+3}], s{sT1} offen offset:{1024*n} {m} lds", tag=tag))
            G.append(g); g = []
        return G
    def w_tile(self, t, nxt=0):
        if self.o.get("fakew"): return self.dma_w(("w", t), sWo, 0, f"s_add_u32 m0, s{sWl}, {WSLOT[t % 3]}")
        return self.dma_w(("w", t), sWo, nxt*256 + t*262144, f"s_add_u32 m0, s{sWl}, {WSLOT[t % 3]}")
    def x_tile(self, tt):
        sl = XB if tt % 2 == 0 else XA
        return self.dma_x(("x", tt), sXo, 0 if self.o.get("fakex") else tt*128, f"s_add_u32 m0, s{sXl}, {sl}", f"s_add_u32 m0, s{sXl}, {sl + 4096}")
    def warmup(self, nxt):
        if not self.o["warm"]: return []
        G = []
        def ld(v, srd, soff, off, mod):
            i = ins(f"buffer_load_dwordx4 a[252:255], v{v}, s[{srd}:{srd+3}], s{soff} offen offset:{off} {mod}", tag=("warm",))
            i.kind = "dma"; i.wr = set(); i.rd.discard("m0")
            return i
        for k in range(2):
            g = [ins(f"s_add_u32 s{sT1}, s{sWarmW}, {nxt*256 + k*262144}")]
            for n in range(4):
                g.append(ld(WD[n], SW, sT1, 1024*n, self.o['w_mod'])); G.append(g); g = []
        if nxt == 0 or self.o.get("warmx1", True):
            for k in range(2):
                g = [ins(f"s_add_u32 s{sT1}, s{sWarmX}, {k*128}")]
                for n in range(4):
                    g.append(ld(XD[n], SX, sT1, 1024*n, self.o['x_mod'])); G.append(g); g = []
                g = [ins(f"s_add_u32 s{sT1}, s{sT1}, {4*8192}")]
                for n in range(2):
                    g.append(ld(XD[n], SX, sT1, 1024*n, self.o['x_mod'])); G.append(g); g = []
        return G
    def next_item_prefetch(self, nxt=1):
        return self.w_tile(0, nxt) + self.x_tile(0) + self.w_tile(1, nxt) + self.w_tile(2, nxt) + self.x_tile(1)
    def dma_wo(self):
        G = []
        for half in range(2):
            g = [ins(f"s_add_u32 s{sT1}, s{sWOo}, {half*4096}"), ins(f"s_add_u32 m0, s{sWoM}, {half*4096}")]
            for n in range(4):
                g.append(ins(f"buffer_load_dwordx4 v{VST}, s[{SWO}:{SWO+3}], s{sT1} offen offset:{1024*n} nt lds", tag=("wo",)))
                G.append(g); g = []
        return G
    def o_store(self, n, mod, prev):
        g = []
        if n % 4 == 0: g.append(ins(f"s_add_u32 s{sT0}, s{sOo}, {(n*1024 - (4*6144 if prev else 0)) & 0xffffffff}"))
        g.append(ins(f"buffer_store_dwordx4 {rng('a', OS(n), 4)}, v{VST}, s[{SO}:{SO+3}], s{sT0} offen offset:{(n % 4)*1024} {mod}", tag=("o",)))
        return g
    def rd_k(self, par, kt, ks):
        return ins(f"ds_read_b128 {rng('a', KF(par, kt, ks), 4)}, v{KA+ks} offset:{par*8192 + kt*4096}")
    def rd_v(self, par, dt, kt):
        return ins(f"ds_read_b64_tr_b16 {rng('a', VF(par, dt) + 2*kt, 2)}, v{VA+dt} offset:{par*8192 + kt*4096}")
    def rd_w(self, t, T, h2):
        ks, u = T >> 1, T & 1
        return ins(f"ds_read_b64_tr_b16 {rng('a', WF(T) + 2*h2, 2)}, v{WA+ks} offset:{(t % 3)*16384 + h2*2048 + 8*u}")
    def rd_x(self, t, qt):
        tt = t >> 1
        return ins(f"ds_read_b128 {rng('a', XF(t % 2, qt), 4)}, v{XAD + (t & 1)} offset:{(24576 if tt % 2 == 0 else 0) + qt*2048}")

    def prologue(self):
        p = self.p
        p("s_cmp_ge_u32 s2, 256")
        p("s_cbranch_scc1 K2_END")
        p("s_load_dwordx16 s[48:63], s[0:1], 0")
        p("s_load_dwordx8 s[64:71], s[0:1], 64")
        p("s_load_dwordx2 s[72:73], s[0:1], 96")
        p(f"v_lshrrev_b32 v1, 6, v0")
        p(f"v_and_b32 v0, 63, v0")
        p(f"v_readfirstlane_b32 s{sW}, v1")
        p("s_and_b32 s86, s2, 7")
        p("s_lshr_b32 s87, s2, 3")
        p(f"s_lshr_b32 s{sP}, s86, 2")
        p("s_and_b32 s88, s86, 1"); p("s_lshl_b32 s88, s88, 3"); p("s_and_b32 s82, s87, 7")
        p(f"s_add_u32 s{sB}, s88, s82")
        p("s_lshr_b32 s88, s86, 1"); p("s_and_b32 s88, s88, 1"); p("s_lshl_b32 s88, s88, 2"); p("s_lshr_b32 s83, s87, 3")
        p(f"s_add_u32 s{sHG}, s88, s83")
        p(f"s_and_b32 s{sHP}, s{sW}, 1")
        p(f"s_lshr_b32 s{sRH}, s{sW}, 1")
        p("s_waitcnt lgkmcnt(0)")
        p(f"s_cmp_eq_u32 s{sP}, 0")
        p(f"s_cselect_b32 s{SX}, s48, s58"); p(f"s_cselect_b32 s{SX+1}, s49, s59")
        p(f"s_cselect_b32 s{SW}, s54, s64"); p(f"s_cselect_b32 s{SW+1}, s55, s65")
        p(f"s_cselect_b32 s{SWO}, s56, s66"); p(f"s_cselect_b32 s{SWO+1}, s57, s67")
        p(f"s_cselect_b32 s90, s50, s60"); p(f"s_cselect_b32 s91, s51, s61")
        p(f"s_cselect_b32 s92, s52, s62"); p(f"s_cselect_b32 s93, s53, s63")
        p(f"s_cmp_eq_u32 s{sRH}, 0")
        p(f"s_cselect_b32 s{SKV}, s90, s92"); p(f"s_cselect_b32 s{SKV+1}, s91, s93")
        p(f"s_cselect_b32 s94, 64, 128"); p(f"s_cselect_b32 s95, 128, 0"); p("s_mov_b32 s96, 128"); p(f"s_cselect_b32 s96, 192, s96")
        p(f"s_cselect_b32 s97, 0, 1")
        p(f"s_cselect_b32 s{sKVl}, 0, 32768")
        for r, n in ((SX, X_BYTES), (SW, W_BYTES), (SWO, W_BYTES), (SKV, KV_BYTES)):
            p(f"s_mov_b32 s{r+2}, {n}"); p(f"s_mov_b32 s{r+3}, 0x00020000")
        p(f"s_mov_b32 s{SO}, s72"); p(f"s_mov_b32 s{SO+1}, s73"); p(f"s_mov_b32 s{SO+2}, 0"); p(f"s_mov_b32 s{SO+3}, 0x00020000")
        p(f"s_add_u32 s{SWT}, s72, {WOT_OFF}"); p(f"s_addc_u32 s{SWT+1}, s73, 0"); p(f"s_mov_b32 s{SWT+2}, {WOT_BYTES}"); p(f"s_mov_b32 s{SWT+3}, 0x00020000")
        p(f"s_lshl_b32 s88, s{sB}, 5"); p(f"s_lshl_b32 s89, s{sHG}, 2"); p("s_add_u32 s88, s88, s89"); p(f"s_lshl_b32 s89, s{sHP}, 1"); p("s_add_u32 s88, s88, s89")
        p(f"s_lshl_b32 s{sKVo}, s88, 17")
        p(f"s_lshl_b32 s89, s{sHP}, 14"); p(f"s_add_u32 s{sKVl}, s{sKVl}, s89")
        p(f"s_lshl_b32 s88, s{sW}, 16"); p(f"s_lshl_b32 s89, s{sHG}, 10"); p(f"s_add_u32 s{sWo}, s88, s89")
        p(f"s_lshl_b32 s{sWl}, s{sW}, 12")
        p(f"s_lshl_b32 s88, s82, 19"); p(f"s_add_u32 s{sWarmW}, s{sWo}, s88")
        p(f"s_mul_i32 s88, s{sB}, 196608"); p(f"s_mul_i32 s89, s{sW}, 49152"); p(f"s_add_u32 s{sXo}, s88, s89")
        p(f"s_mul_i32 s{sXl}, s{sW}, 6144")
        p(f"s_lshl_b32 s88, s83, 8"); p(f"s_add_u32 s{sWarmX}, s{sXo}, s88")
        p(f"s_mov_b32 s{sDrop}, {DROP}")
        p("s_mul_i32 s88, s2, 5"); p("s_lshr_b32 s89, s2, 4"); p("s_add_u32 s88, s88, s89"); p("s_and_b32 s88, s88, 15"); p(f"s_lshl_b32 s{sRot}, s88, 13")
        p(f"s_lshl_b32 s88, s{sP}, 4"); p(f"s_add_u32 s88, s88, s{sB}"); p("s_lshl_b32 s88, s88, 1"); p(f"s_add_u32 s88, s88, s{sRH}")
        p("s_lshl_b32 s88, s88, 7"); p(f"s_lshl_b32 s89, s{sHG}, 4"); p("s_add_u32 s88, s88, s89"); p(f"s_lshl_b32 s89, s{sHP}, 3"); p("s_add_u32 s88, s88, s89")
        p(f"s_mul_i32 s{sOo}, s88, 6144")
        p("s_and_b32 s88, s86, 3"); p("s_lshl_b32 s88, s88, 5"); p("s_add_u32 s88, s88, s87")
        p(f"s_lshl_b32 s89, s88, 15"); p(f"s_lshl_b32 s98, s{sW}, 13"); p(f"s_add_u32 s{sWOo}, s89, s98")
        p(f"s_lshl_b32 s89, s{sP}, 2"); p(f"s_add_u32 s89, s89, s{sW}"); p("s_lshl_b32 s89, s89, 7"); p("s_add_u32 s89, s89, s88"); p(f"s_lshl_b32 s{sWTo}, s89, 13")
        p(f"s_mov_b32 s{sC}, {f32(1.4426950408889634*128**-0.5)}")
        p(f"s_mov_b32 s{sItem}, 0")
        i_, g_, r_, c_ = "v14", "v8", "v9", "v10"
        p(f"v_and_b32 {i_}, 15, v0"); p(f"v_lshrrev_b32 {g_}, 4, v0"); p(f"v_lshrrev_b32 {r_}, 2, {i_}"); p(f"v_and_b32 {c_}, 3, {i_}")
        p(f"v_lshlrev_b32 v{VST}, 4, v0")
        p("v_lshrrev_b32 v11, 5, v0"); p("v_and_b32 v12, 15, v0"); p("v_lshlrev_b32 v13, 2, v11"); p("v_xor_b32 v12, v12, v13"); p("v_lshlrev_b32 v12, 4, v12")
        p("v_lshl_add_u32 v12, v11, 13, v12"); p("v_bfe_u32 v13, v0, 4, 1"); p(f"v_lshl_add_u32 v{WD[0]}, v13, 9, v12")
        p(f"v_xor_b32 v{WD[1]}, 128, v{WD[0]}"); p(f"v_add_u32 v{WD[2]}, {2*15360}, v{WD[0]}"); p(f"v_add_u32 v{WD[3]}, {3*15360}, v{WD[1]}"); p(f"v_add_u32 v{WD[1]}, 15360, v{WD[1]}")
        p("v_lshrrev_b32 v11, 3, v0"); p("v_and_b32 v12, 7, v0"); p(f"v_xor_b32 v12, v12, {g_}"); p("v_lshlrev_b32 v12, 4, v12")
        p(f"v_lshl_add_u32 v{XD[0]}, v11, 10, v12"); p(f"v_xor_b32 v{XD[1]}, 64, v{XD[0]}")
        p(f"v_add_u32 v{XD[2]}, {2*7168}, v{XD[0]}"); p(f"v_add_u32 v{XD[3]}, {3*7168}, v{XD[1]}"); p(f"v_add_u32 v{XD[1]}, 7168, v{XD[1]}")
        p(f"v_lshlrev_b32 v11, s97, {g_}"); p(f"v_xor_b32 v11, v11, {i_}"); p("v_lshlrev_b32 v11, 4, v11"); p(f"v_lshl_add_u32 v{DV}, {g_}, 8, v11")
        for k in range(1, 4): p(f"v_xor_b32 v{DV+k}, s{93+k}, v{DV}")
        self.lane = (i_, g_, r_, c_)
    def prologue2(self):
        p = self.p
        i_, g_, r_, c_ = self.lane
        p(f"s_lshl_b32 s88, s{sHP}, 14")
        p(f"v_xor_b32 v11, {g_}, {i_}"); p("v_lshlrev_b32 v11, 4, v11"); p(f"v_lshl_add_u32 v11, {i_}, 8, v11"); p(f"v_add_u32 v{KA}, s88, v11")
        for ks in range(1, 4): p(f"v_xor_b32 v{KA+ks}, {64*ks}, v{KA}")
        p(f"v_and_b32 v11, 1, {g_}"); p("v_lshlrev_b32 v11, 2, v11"); p(f"v_add_u32 v11, v11, {r_}"); p("v_lshlrev_b32 v11, 1, v11")
        p(f"v_lshrrev_b32 v12, 1, {c_}"); p("v_xor_b32 v11, v11, v12"); p("v_lshlrev_b32 v11, 4, v11")
        p(f"v_and_b32 v12, 1, {c_}"); p("v_lshl_add_u32 v11, v12, 3, v11")
        p(f"v_lshl_add_u32 v12, {g_}, 2, {r_}"); p("v_lshl_add_u32 v11, v12, 8, v11")
        p("s_add_u32 s89, s88, 32768"); p(f"v_add_u32 v{VA}, s89, v11")
        for dt in range(1, 8): p(f"v_xor_b32 v{VA+dt}, {32*dt}, v{VA}")
        p(f"s_lshl_b32 s88, s{sHP}, 4")
        p(f"v_add_u32 v11, s88, {c_}"); p(f"v_lshlrev_b32 v12, 2, {r_}"); p("v_xor_b32 v11, v11, v12"); p("v_lshlrev_b32 v11, 4, v11")
        p(f"v_lshl_add_u32 v12, {g_}, 3, {r_}"); p("v_lshl_add_u32 v11, v12, 9, v11"); p(f"v_add_u32 v{WA}, {WSLOT[0]}, v11")
        for ks in range(1, 4): p(f"v_xor_b32 v{WA+ks}, {64*ks}, v{WA}")
        p(f"s_mul_i32 s88, s{sRH}, {96*128}"); p(f"s_add_u32 s88, s88, {XA}")
        p(f"v_lshrrev_b32 v11, 1, {i_}"); p(f"v_xor_b32 v11, v11, {g_}"); p("v_lshlrev_b32 v11, 4, v11"); p(f"v_lshl_add_u32 v11, {i_}, 7, v11"); p(f"v_add_u32 v{XAD}, s88, v11")
        p(f"v_xor_b32 v{XAD+1}, 64, v{XAD}")
        if self.o["msum"]:
            p("v_mov_b32 v11, 0x3f803f80")
            for r in range(4): p(f"v_accvgpr_write_b32 a{ONES+r}, v11")

    def stamp(self, fine=False):
        if not self.o["timing"]: return
        if fine and not self.o.get("fine"): return
        p = self.p
        p(f"s_memrealtime s[88:89]")
        p(f"s_memtime s[90:91]")
        p("s_waitcnt lgkmcnt(0)")
        p("s_mov_b32 m0, s99"); p("s_nop 1")
        p(f"v_writelane_b32 v5, s88, m0")
        p(f"v_writelane_b32 v1, s90, m0")
        p("s_add_u32 s99, s99, 1")
    def stamp_flush(self):
        if not self.o["timing"]: return
        p = self.p
        if self.o.get("dbg") is not None:
            p(f"s_cmp_eq_u32 s2, {self.o['dbg']}"); p("s_cselect_b32 s90, 64, 0"); p(f"s_cmp_eq_u32 s{sW}, 0"); p("s_cselect_b32 s90, s90, 0")
            p("s_mov_b32 s88, s70"); p("s_mov_b32 s89, s71"); p("s_mov_b32 s91, 0x00020000")
            src = "v1" if self.o.get("dbgcyc") else "v5"
            p("v_lshlrev_b32 v6, 2, v0")
            p(f"buffer_store_dword {src}, v6, s[88:91], 0 offen")
            p("s_add_u32 s88, s88, 512"); p("s_addc_u32 s89, s89, 0"); p("s_cmp_lg_u32 s90, 0"); p("s_cselect_b32 s90, 52, 0")
            p(f"buffer_store_dword {src}, v6, s[88:91], 0 offen")
            return
        p(f"s_add_u32 s88, s72, {64<<20}"); p("s_addc_u32 s89, s73, 0"); p(f"s_mov_b32 s90, {1<<20}"); p("s_mov_b32 s91, 0x00020000")
        p(f"s_lshl_b32 s92, s2, 2"); p(f"s_add_u32 s92, s92, s{sW}"); p("s_lshl_b32 s92, s92, 9")
        p("v_lshlrev_b32 v6, 2, v0")
        p("buffer_store_dword v5, v6, s[88:91], s92 offen")
        p("buffer_store_dword v1, v6, s[88:91], s92 offen offset:256")

    def emit_groups(self, groups):
        for g in groups:
            for x in g: self.p.add(x)
    def keep(self, x):
        drop = self.o["drop"]; ph = self.phase
        if x.kind == "dma" and ph + "_dma" in drop: return False
        if x.kind == "ds_read" and ph + "_lds" in drop: return False
        if x.kind == "barrier" and ph + "_bar" in drop: return False
        if x.kind == "trans" and ph + "_exp" in drop: return False
        if x.kind == "valu" and x.txt.startswith("v_add_f32") and ph + "_add" in drop: return False
        if x.kind == "valu" and x.txt.startswith("v_cvt") and ph + "_cvt" in drop: return False
        if x.kind == "vstore" and ph + "_st" in drop: return False
        return True
    def run(self, mf, chains, pre=()):
        ch = [[([x for x in g if self.keep(x)], lo, hi) for g, lo, hi in c] for c in chains]
        ch = [[it for it in c if it[0]] for c in ch]
        if self.phase + "_mfma" in self.o["drop"]: mf = [ins("s_nop 0") for _ in mf]
        self.p.extend(gapfill(mf, ch, pre=[x for x in pre if self.keep(x)]))

    def spaced(self, G, lo, hi):
        n = len(G)
        out = []
        for k, g in enumerate(G):
            pos = lo + (k*(hi - lo + 1))//n
            out.append((g, pos, pos + 1))
        return out
    def qstep(self, t, stores=False):
        p = self.p
        self.phase = "qp"
        mf = []
        for T in range(8):
            for qt in range(6):
                mf.append(mfma(acc(T, qt), "v", WF(T), "a", XF(t % 2, qt), "a", None if t == 0 else acc(T, qt)))
        need = []
        for qt in range(6): need += R("a", XF(t % 2, qt), 4)
        for T in range(6): need += R("a", WF(T), 4)
        pre = [wait_regs(need)]
        chains = []
        BG = 11
        if t < 15:
            bar = [wait_tag(("w", t+1))]
            if t % 2 == 1: bar.append(wait_tag(("x", (t+1) >> 1)))
            chains.append([(bar, BG-1, BG-1), ([ins("s_waitcnt lgkmcnt(0)"), ins("s_barrier")], BG, BG)])
            cw = []
            for T in range(8):
                lo = max(BG+1, 6*T + 5)
                cw += [([self.rd_w(t+1, T, 0)], lo, min(47, lo + 8)), ([self.rd_w(t+1, T, 1)], lo, min(47, lo + 9))]
            chains.append(cw)
            chains.append([([self.rd_x(t+1, qt)], BG+1, 40) for qt in range(6)])
            GW = self.w_tile(t+3) if t + 3 <= 15 else []
            early = []; GX = []
            if t % 2 == 1 and (t >> 1) + 2 <= 7: GX = self.x_tile((t >> 1) + 2)[:3]
            if t % 2 == 0 and t >= 2 and ((t-1) >> 1) + 2 <= 7: early = self.x_tile(((t-1) >> 1) + 2)[3:]
            if early:
                tt = ((t-1) >> 1) + 2; sl = XB if tt % 2 == 0 else XA
                early[0] = [ins(f"s_add_u32 s{sT1}, s{sXo}, {tt*128}"), ins(f"s_add_u32 m0, s{sXl}, {sl}")] + early[0]
            late = GW + GX
            n = len(early) + len(late)
            if n:
                step = 48.0/n if early else (47 - BG)/max(1, len(late))
                c = []
                if early:
                    for k, g in enumerate(early): c.append((g, int(1 + k*(BG-2)/len(early)), int(1 + k*(BG-2)/len(early)) + 1))
                c += self.spaced(late, BG+2, 47)
                chains.append(c)
        else:
            chains.append([([ins("s_waitcnt lgkmcnt(0)"), ins("s_barrier")], BG, BG)])
            G = self.dma_kv_abs(("kv", 2), 2) + self.dma_kv_abs(("kv", 3), 3)
            G[0].insert(0, ins(f"s_lshl_b32 s{sTc}, s{sItem}, 17"))
            G[0].insert(1, ins(f"s_add_u32 s{sTc}, s{sTc}, {2*8192}"))
            if self.o.get("late3", True): G = G[:8] + G[8:12]; self.pending3 = True
            chains.append(self.spaced(G, BG+1, 47))
        if stores:
            ns = range(0, 12) if t == 13 else range(12, 24)
            chains.append(self.spaced([self.o_store(n, self.o["store_mod"], True) for n in ns], 0, 47))
        self.run(mf, chains, pre)

    def qproj_a(self):
        p = self.p
        p.wait_tag(("w", 0)); p.wait_tag(("x", 0))
        p("s_barrier")
        self.stamp()
        for T in range(8):
            p.add(self.rd_w(0, T, 0)); p.add(self.rd_w(0, T, 1))
        for qt in range(6): p.add(self.rd_x(0, qt))
        for t in range(13):
            self.qstep(t)
            if t in (3, 7, 11): self.stamp(True)
    def qproj_c(self):
        p = self.p
        self.qstep(15)
        self.stamp()
        for kt in range(2):
            for ks in range(4): p.add(self.rd_k(0, kt, ks))
        tmp = S(0, 0)
        rest = self.dma_kv_abs(("kv", 3), 3)[4:] if self.o.get("late3", True) else []
        for qt in range(6):
            for ks in range(4):
                a0, a1 = acc(2*ks, qt), acc(2*ks+1, qt)
                for r in range(4): p(f"v_mul_f32 v{a0+r}, s{sC}, v{a0+r}")
                for r in range(4): p(f"v_mul_f32 v{a1+r}, s{sC}, v{a1+r}")
                t0 = tmp + ((qt*4+ks) % 4)*4
                p(f"v_cvt_pk_bf16_f32 v{t0}, v{a0}, v{a0+1}")
                p(f"v_cvt_pk_bf16_f32 v{t0+1}, v{a0+2}, v{a0+3}")
                p(f"v_cvt_pk_bf16_f32 v{t0+2}, v{a1}, v{a1+1}")
                p(f"v_cvt_pk_bf16_f32 v{t0+3}, v{a1+2}, v{a1+3}")
                for r in range(4): p(f"v_accvgpr_write_b32 a{Q(qt,ks)+r}, v{t0+r}")
                if rest and (qt*4+ks) % 3 == 2:
                    for x in rest.pop(0): p.add(x)
            if qt < 4:
                for dt in (2*qt, 2*qt+1):
                    p.add(self.rd_v(0, dt, 0)); p.add(self.rd_v(0, dt, 1))
        assert not rest

    def period(self, n, dma=(), pre=(), early=()):
        p = self.p
        self.phase = "at"
        msum = self.o["msum"]
        j, pp = divmod(n, 6)
        qk = []; pv = []
        if n < 96:
            sb = n % 2
            for kt in range(2):
                for ks in range(4):
                    qk.append(mfma(S(sb, kt), "v", KF(j % 2, kt, ks), "a", Q(pp, ks), "a", None if ks == 0 else S(sb, kt)))
        if n >= 2:
            jj, qt = divmod(n-2, 6)
            pb = (n-2) % 2
            for dt in range(8):
                pv.append(mfma(acc(dt, qt), "v", VF(jj % 2, dt), "a", P(pb), "v", None if jj == 0 else acc(dt, qt)))
        mf = []
        for k in range(8):
            if qk: mf.append(qk[k])
            if pv: mf.append(pv[k])
        if n >= 2 and msum:
            mf.append(mfma(LA(qt), "a", ONES, "a", P(pb), "v", None if jj == 0 else LA(qt)))
        nm = len(mf)
        sc = nm/17.0 if msum else nm/16.0
        def G(x): return min(nm-1, int(x*sc))
        chains = []
        if 1 <= n <= 96:
            jj2, qt2 = divmod(n-1, 6)
            sb = (n-1) % 2; pb2 = (n-1) % 2
            e = [S(sb, 0)+r for r in range(4)] + [S(sb, 1)+r for r in range(4)]
            chains.append([([ins(f"v_exp_f32 v{e[k]}, v{e[k]}")], G(2*k), G(2*k)) for k in range(8)])
            cv = []
            for k in range(8):
                if not msum: cv.append(([ins(f"v_add_f32 v{LS+qt2}, v{LS+qt2}, v{e[k]}")], G(2*k+1), G(2*k+1)))
                if k % 2 == 1:
                    cv.append(([ins(f"v_cvt_pk_bf16_f32 v{P(pb2)+k//2}, v{e[k-1]}, v{e[k]}")], G(2*k+1), G(2*k+1)))
            chains.append(cv)
        if n >= 2:
            jb, q = divmod(n-2, 6)
            if jb + 1 <= 15:
                par = (jb+1) % 2
                rds = []
                if q in (0, 1): rds = [self.rd_k(par, q, ks) for ks in range(4)]
                else:
                    for dt in range((q-2)*2, (q-2)*2+2): rds += [self.rd_v(par, dt, 0), self.rd_v(par, dt, 1)]
                gp = [1, 5, 9, 13] if q != 5 else [1, 5, 9, 10]
                chains.append([([x], G(gp[k]), G(gp[k])) for k, x in enumerate(rds)])
        if dma:
            nd = sum(1 for x in dma if x.kind == "dma")
            slots = {0: [], 1: [16], 2: [11, 16], 4: [3, 7, 11, 16], 8: [2, 4, 6, 8, 10, 12, 14, 16]}.get(nd) or [int(3 + (16-3)*k/(nd-1)) for k in range(nd)]
            ch = []; seen = 0
            for x in dma:
                if x.kind == "dma":
                    g = G(slots[seen]); ch.append(([x], g, g)); seen += 1
                else:
                    ch.append(([x], 0, nm-1))
            for k in range(len(ch)-2, -1, -1):
                if ch[k][0][0].kind != "dma": ch[k] = (ch[k][0], 0, max(0, ch[k+1][2] - (1 if ch[k+1][0][0].kind == "dma" else 0)))
            chains.append(ch)
        if early: chains.append([([x], 0, nm-1) for x in early])
        self.run(mf, chains, pre)

    def body(self, j, dmaG, tog=(), nper=6):
        bar = []
        if j + 1 <= 15: bar.append(wait_tag(("kv", j+1)))
        bar += [ins("s_waitcnt lgkmcnt(0)"), ins("s_barrier")]
        if self.o.get("baracct"):
            b0 = [ins("s_memtime s[92:93]"), ins("s_waitcnt lgkmcnt(0)")]
            b1 = [ins("s_memtime s[94:95]"), ins("s_waitcnt lgkmcnt(0)")]
            b2 = [ins("s_memtime s[96:97]"), ins("s_waitcnt lgkmcnt(0)"), ins("s_sub_u32 s98, s94, s92"), ins("s_add_u32 s100, s100, s98"),
                  ins("s_sub_u32 s98, s96, s94"), ins("s_add_u32 s101, s101, s98")]
            bar = b0 + bar[:1] + b1 + bar[1:] + b2
        tk = [x for x in tog if any(f"v{KA+z}," in x.txt for z in range(4))]
        tv = [x for x in tog if x not in tk]
        flat = [x for g in dmaG for x in g]
        nd = sum(1 for x in flat if x.kind == "dma")
        if nd == 8: cnt = self.o.get("dmacnt", [1, 1, 2, 1, 1, 2])
        else: cnt = [nd//6 + (1 if q < nd % 6 else 0) for q in range(6)]
        per = [[] for _ in range(6)]
        q = 0; seen = 0
        for x in flat:
            while q < 5 and seen >= cnt[q]: q += 1; seen = 0
            per[q].append(x)
            if x.kind == "dma": seen += 1
        for q in range(6):
            e = tv[:4] if q == 0 else (tv[4:] if q == 1 else [])
            self.period(6*j + 2 + q, dma=per[q], pre=(bar + tk) if q == 0 else (), early=e)

    def tog(self):
        return [ins(f"v_xor_b32 v{KA+x}, {PHI}, v{KA+x}") for x in range(4)] + [ins(f"v_xor_b32 v{VA+x}, {PHI}, v{VA+x}") for x in range(8)]
    def attention_shared(self):
        p = self.p
        self.period(0); self.period(1)
        self.body(0, self.dma_kv_abs(("kv", 4), 0))
        p(f"s_mov_b32 s{sM}, s{sKVl}")
        p(f"s_mov_b32 s{sCnt}, 5")
        for k in range(5):
            j = 1 + 2*k
            p.raw(f"@@LB at {k}")
            self.stamp(True)
            g1 = self.dma_kv(("kv", j+4), f"s_add_u32 m0, s{sM}, 8192", f"s_add_u32 m0, s{sM}, 12288")
            self.body(j, g1, tog=self.tog())
            g2 = self.dma_kv(("kv", j+5), f"s_add_u32 m0, s{sM}, 0", f"s_add_u32 m0, s{sM}, 4096")
            self.body(j+1, [[ins(f"s_xor_b32 s{sM}, s{sM}, {PHI}")]] + g2)
            p(f"s_sub_u32 s{sCnt}, s{sCnt}, 1"); p(f"s_cmp_lg_u32 s{sCnt}, 0"); p("s_cbranch_scc1 L_at")
            p.raw(f"@@LE at {k}")
        self.body(11, self.dma_kv_abs(("kv", 15), 3), tog=self.tog())
    def attention_tail(self, last):
        if not last:
            self.body(12, self.dma_kv_abs(("kv", 16), 0))
            self.body(13, self.dma_kv_abs(("kv", 17), 1), tog=self.tog())
            self.body(14, self.warmup(1))
            self.body(15, self.next_item_prefetch(), tog=self.tog())
        else:
            self.body(12, [])
            self.body(13, self.dma_wo_last(), tog=self.tog())
            self.body(14, [])
            self.body(15, [])
    def dma_wo_last(self):
        G = []
        for half in range(2):
            g = [ins(f"s_add_u32 s{sT1}, s{sWOo}, {half*4096}"), ins(f"s_lshl_b32 s{sWoM}, s{sW}, 13"), ins(f"s_add_u32 m0, s{sWoM}, {half*4096}")]
            for n in range(4):
                g.append(ins(f"buffer_load_dwordx4 v{VST}, s[{SWO}:{SWO+3}], s{sT1} offen offset:{1024*n} nt lds", tag=("wo",)))
                G.append(g); g = []
        return G

    def o_epilogue(self, last):
        p = self.p
        for qt in range(6): p(f"v_accvgpr_read_b32 v{LS+qt}, a{LA(qt)}")
        for qt in range(6): p(f"v_rcp_f32 v{LS+qt}, v{LS+qt}")
        for qt in range(6):
            for ks in range(4):
                a0, a1 = acc(2*ks, qt), acc(2*ks+1, qt)
                l = LS + qt
                for r in range(4): p(f"v_mul_f32 v{a0+r}, v{l}, v{a0+r}")
                for r in range(4): p(f"v_mul_f32 v{a1+r}, v{l}, v{a1+r}")
                t0 = SB + ((ks + 4*qt) % 6)*4
                p(f"v_cvt_pk_bf16_f32 v{t0}, v{a0}, v{a0+1}")
                p(f"v_cvt_pk_bf16_f32 v{t0+1}, v{a0+2}, v{a0+3}")
                p(f"v_cvt_pk_bf16_f32 v{t0+2}, v{a1}, v{a1+1}")
                p(f"v_cvt_pk_bf16_f32 v{t0+3}, v{a1+2}, v{a1+3}")
                n = ks*6 + qt
                if last:
                    p(f"s_add_u32 s{sT0}, s{sOo}, {n*1024}")
                    p(f"buffer_store_dwordx4 v[{t0}:{t0+3}], v{VST}, s[{SO}:{SO+3}], s{sT0} offen {self.o['last_store_mod']}", tag=("o",))
                else:
                    for r in range(4): p(f"v_accvgpr_write_b32 a{OS(n)+r}, v{t0+r}")

    def final(self):
        p = self.p
        p.wait_tag(("wo",))
        p("s_barrier")
        p("v_and_b32 v8, 15, v0"); p("v_lshrrev_b32 v2, 4, v0"); p("v_lshrrev_b32 v3, 2, v8"); p("v_and_b32 v7, 3, v8")
        p("v_lshl_add_u32 v6, v2, 2, v3"); p("v_lshlrev_b32 v6, 10, v6"); p("v_lshl_add_u32 v6, v7, 4, v6")
        p(f"s_lshl_b32 s88, s{sW}, 8"); p("v_add_u32 v6, s88, v6")
        for nt in range(8):
            u, par = nt >> 1, nt & 1
            d = 32 + nt*4
            p(f"ds_read_b64_tr_b16 v[{d}:{d+1}], v6 offset:{64*u + 8*par}")
            p(f"ds_read_b64_tr_b16 v[{d+2}:{d+3}], v6 offset:{16384 + 64*u + 8*par}")
        for nt in range(8):
            d = 32 + nt*4
            if nt % 4 == 0: p(f"s_add_u32 s{sT1}, s{sWTo}, {nt*1024}")
            p(f"buffer_store_dwordx4 v[{d}:{d+3}], v{VST}, s[{SWT}:{SWT+3}], s{sT1} offen offset:{(nt % 4)*1024} {self.o['last_store_mod']}")

    def build(self):
        p = self.p
        assert self.o["msum"]
        self.prologue()
        if self.o["timing"]: p("s_mov_b32 s99, 0")
        if self.o.get("baracct"): p("s_mov_b32 s100, 0"); p("s_mov_b32 s101, 0")
        if self.o.get("delay"):
            p("s_memrealtime s[88:89]"); p("s_waitcnt lgkmcnt(0)"); p(f"s_add_u32 s90, s88, {self.o['delay']}")
            p.raw("L_spin:"); p("s_memrealtime s[88:89]"); p("s_waitcnt lgkmcnt(0)"); p("s_cmp_lt_u32 s88, s90"); p("s_cbranch_scc1 L_spin")
        self.stamp()
        p(f"s_mov_b32 s{sTc}, 0")
        p(f"s_mov_b32 s{SO+2}, {O_BYTES}")
        self.emit_groups(self.next_item_prefetch(0))
        self.emit_groups(self.warmup(0))
        self.emit_groups(self.dma_kv_abs(("kv", 0), 0)); self.emit_groups(self.dma_kv_abs(("kv", 1), 1))
        self.prologue2()
        for item in range(2):
            last = item == 1
            p.raw("@@SB A"); self.qproj_a(); p.raw("@@SE A")
            p.raw(f"@@SB B{item}"); self.qstep(13, stores=last); self.qstep(14, stores=last); p.raw(f"@@SE B{item}")
            p.raw("@@SB C"); self.qproj_c(); self.stamp(); self.attention_shared(); p.raw("@@SE C")
            p.raw(f"@@SB D{item}")
            self.attention_tail(last)
            self.stamp()
            if last and self.o.get("prep_early", True): self.final()
            self.o_epilogue(last)
            self.stamp()
            if not last:
                p(f"s_add_u32 s{sWo}, s{sWo}, 256"); p(f"s_add_u32 s{sOo}, s{sOo}, {4*6144}")
                p(f"s_mov_b32 s{sItem}, 1")
            else:
                if not self.o.get("prep_early", True): self.final()
                self.stamp()
                p("s_waitcnt vmcnt(0)")
                self.stamp()
                self.stamp_flush()
                p("s_waitcnt vmcnt(0)")
            p.raw(f"@@SE D{item}")
        L, st = finalize(p.L)
        L = fold(L)
        segs, top = segments(L)
        out = [i for k, i in top if k == "ins"]
        lab = lambda t: I(t, "label")
        br = lambda tgt: [ins(f"s_cmp_eq_u32 s{sItem}, 1"), ins(f"s_cbranch_scc1 {tgt}")]
        out += [lab("L_A:")] + segs["A"] + br("L_B1") + segs["B0"] + [lab("L_C:")] + segs["C"] + br("L_D1") + segs["D0"] + [ins("s_branch L_A")]
        out += [lab("L_B1:")] + segs["B1"] + [ins("s_branch L_C")]
        out += [lab("L_D1:")] + segs["D1"] + [lab("K2_END:"), ins("s_endpgm")]
        return out, st

if __name__ == "__main__":
    k = K2(); L, st = k.build()
    print(st, len(L))
```

```python
from dsl import *
import struct

def f32(x): return "0x%08x" % struct.unpack("<I", struct.pack("<f", x))[0]

NB, SQ, DM, H, SK, DH = 16, 192, 512, 32, 512, 128
X_BYTES = NB*SQ*DM*2
KV_BYTES = NB*H*SK*DH*2
W_BYTES = DM*H*DH*2
O_BYTES = 2*NB*2*128*6*1024
WOT_OFF = O_BYTES
WOT_BYTES = 2*4*128*8*1024
OUT_BYTES = NB*SQ*1024*2

PHI = 65536
WSLOT = [65536, 81920, 98304]
XA, XB = 114688, 139264
DROP = 0x30000

ACC = 64
def acc(T, qt): return ACC + (T*6 + qt)*4
SB = 8
def S(buf, kt): return SB + buf*8 + kt*4
PB = 24
def P(buf): return PB + buf*4
LS = 32
KA = 38
VA = 42
DV = 50
WA = 54
XAD = 58
WD = [60, 61, 2, 3]
XD = [62, 63, 6, 7]
VST = 4
def Q(qt, ks): return (qt*4 + ks)*4
def OS(n): return n*4
def KF(buf, kt, ks): return 96 + buf*32 + (kt*4 + ks)*4
def VF(buf, dt): return 160 + buf*32 + dt*4
def WF(T): return 96 + T*4
def XF(buf, qt): return 128 + buf*24 + qt*4
ONES = 224
def LA(qt): return 228 + qt*4
SX, SW, SKV, SO, SWO, SWT = 4, 8, 12, 16, 20, 24
sW, sHP, sRH, sP, sB, sHG = 28, 29, 30, 31, 32, 33
sKVo, sKVl, sWo, sWl, sXo, sXl, sOo = 34, 35, 36, 37, 38, 39, 40
sT0, sT1, sC = 41, 42, 43
sWOo, sWTo = 44, 45
sItem, sCnt = 46, 47
sTile, sM, sTh1, sTh2, sWarmW, sWarmX, sWoM, sDrop, sTc, sRot = 74, 75, 76, 77, 78, 79, 80, 81, 84, 85
sT2 = 83
sWR, sXR = 78, 79

MF = "v_mfma_f32_16x16x32_bf16"
def mfma(d, dk, a, ak, b, bk, c=None):
    cs = "0" if c is None else rng(dk, c, 4)
    return ins(f"{MF} {rng(dk,d,4)}, {rng(ak,a,4)}, {rng(bk,b,4)}, {cs}")

class K2:
    def __init__(self, opts=None):
        self.o = dict(nt="nt", w_mod="", x_mod="", store_mod="", last_store_mod="sc1", timing=False, msum=True, warm=False, qrot=True, drop=[])
        if opts: self.o.update(opts)
        self.p = Prog()
        self.phase = ""

    def tile_addr(self):
        if not self.o.get("rot"):
            return [ins(f"s_add_u32 s{sTile}, s{sKVo}, s{sTc}"), ins(f"s_add_u32 s{sTc}, s{sTc}, 8192")]
        return [ins(f"s_add_u32 s{sTile}, s{sTc}, s{sRot}"), ins(f"s_and_b32 s{sTile}, s{sTile}, 0x1ffff"),
                ins(f"s_and_b32 s{sT0}, s{sTc}, 0x20000"), ins(f"s_add_u32 s{sTile}, s{sTile}, s{sT0}"),
                ins(f"s_add_u32 s{sTile}, s{sTile}, s{sKVo}"), ins(f"s_add_u32 s{sTc}, s{sTc}, 8192")]
    def dma_kv(self, tag, m0a, m0b, pre=()):
        nt = self.o['nt']
        G = []
        g = list(pre) + self.tile_addr() + [ins(m0a)]
        for k in range(4):
            g.append(ins(f"buffer_load_dwordx4 v{DV+k}, s[{SKV}:{SKV+3}], s{sTile} offen offset:{1024*k} {nt} lds", tag=tag))
            G.append(g); g = []
        g = [ins(f"s_add_u32 s{sT0}, s{sTile}, 4096"), ins(m0b)]
        for k in range(4):
            g.append(ins(f"buffer_load_dwordx4 v{DV+k}, s[{SKV}:{SKV+3}], s{sT0} offen offset:{1024*k} {nt} lds", tag=tag))
            G.append(g); g = []
        return G
    def dma_kv_abs(self, tag, slot):
        o = (slot >> 1)*PHI + (slot & 1)*8192
        return self.dma_kv(tag, f"s_add_u32 m0, s{sKVl}, {o}", f"s_add_u32 m0, s{sKVl}, {o + 4096}")
    def kv_pieces(self, tile, a, b):
        G = self.dma_kv_abs(("kv", tile), tile % 4)
        out = G[a:b]
        if a not in (0, 4):
            slot = tile % 4
            o = (slot >> 1)*PHI + (slot & 1)*8192 + (4096 if a >= 4 else 0)
            out[0] = [ins(f"s_add_u32 m0, s{sKVl}, {o}")] + out[0]
        return out
    def dma_w(self, tag, base_reg, goff, m0txt, rot=None):
        G = []
        if rot is None: g = [ins(f"s_add_u32 s{sT1}, s{base_reg}, {goff}")]
        else:
            g = [ins(f"s_add_u32 s{sT1}, s{sWR}, {rot*262144}"), ins(f"s_and_b32 s{sT1}, s{sT1}, 0x3fffff"), ins(f"s_add_u32 s{sT1}, s{sT1}, s{base_reg}")]
            if goff: g.append(ins(f"s_add_u32 s{sT1}, s{sT1}, {goff}"))
        g.append(ins(m0txt))
        for n in range(4):
            g.append(ins(f"buffer_load_dwordx4 v{WD[n]}, s[{SW}:{SW+3}], s{sT1} offen offset:{1024*n} {self.o['w_mod']} lds", tag=tag))
            G.append(g); g = []
        return G
    def x_soff(self, base_reg, tt):
        if not self.o.get("qrot"): return [ins(f"s_add_u32 s{sT1}, s{base_reg}, {tt*128}")]
        return [ins(f"s_add_u32 s{sT1}, s{sXR}, {tt*128}"), ins(f"s_and_b32 s{sT1}, s{sT1}, 1023"), ins(f"s_add_u32 s{sT1}, s{sT1}, s{base_reg}")]
    def dma_x(self, tag, base_reg, tt, m0a, m0b):
        G = []
        m = self.o['x_mod']
        g = self.x_soff(base_reg, tt) + [ins(m0a)]
        for n in range(4):
            g.append(ins(f"buffer_load_dwordx4 v{XD[n]}, s[{SX}:{SX+3}], s{sT1} offen offset:{1024*n} {m} lds", tag=tag))
            G.append(g); g = []
        g = [ins(f"s_add_u32 s{sT1}, s{sT1}, {4*8192}"), ins(m0b)]
        for n in range(2):
            g.append(ins(f"buffer_load_dwordx4 v{XD[n]}, s[{SX}:{SX+3}], s{sT1} offen offset:{1024*n} {m} lds", tag=tag))
            G.append(g); g = []
        return G
    def w_tile(self, t, nxt=0):
        m0 = f"s_add_u32 m0, s{sWl}, {WSLOT[t % 3]}"
        if self.o.get("qrot"): return self.dma_w(("w", t), sWo, nxt*256, m0, rot=t)
        return self.dma_w(("w", t), sWo, nxt*256 + t*262144, m0)
    def x_tile(self, tt):
        sl = XB if tt % 2 == 0 else XA
        return self.dma_x(("x", tt), sXo, tt, f"s_add_u32 m0, s{sXl}, {sl}", f"s_add_u32 m0, s{sXl}, {sl + 4096}")
    def warmup(self, nxt):
        if not self.o["warm"]: return []
        G = []
        def ld(v, srd, soff, off, mod):
            i = ins(f"buffer_load_dwordx4 a[252:255], v{v}, s[{srd}:{srd+3}], s{soff} offen offset:{off} {mod}", tag=("warm",))
            i.kind = "dma"; i.wr = set(); i.rd.discard("m0")
            return i
        for k in range(2):
            g = [ins(f"s_add_u32 s{sT1}, s{sWarmW}, {nxt*256 + k*262144}")]
            for n in range(4):
                g.append(ld(WD[n], SW, sT1, 1024*n, self.o['w_mod'])); G.append(g); g = []
        if nxt == 0 or self.o.get("warmx1", True):
            for k in range(2):
                g = [ins(f"s_add_u32 s{sT1}, s{sWarmX}, {k*128}")]
                for n in range(4):
                    g.append(ld(XD[n], SX, sT1, 1024*n, self.o['x_mod'])); G.append(g); g = []
                g = [ins(f"s_add_u32 s{sT1}, s{sT1}, {4*8192}")]
                for n in range(2):
                    g.append(ld(XD[n], SX, sT1, 1024*n, self.o['x_mod'])); G.append(g); g = []
        return G
    def next_item_prefetch(self, nxt=1):
        return self.w_tile(0, nxt) + self.x_tile(0) + self.w_tile(1, nxt) + self.w_tile(2, nxt) + self.x_tile(1)
    def dma_wo(self):
        G = []
        for half in range(2):
            g = [ins(f"s_add_u32 s{sT1}, s{sWOo}, {half*4096}"), ins(f"s_add_u32 m0, s{sWoM}, {half*4096}")]
            for n in range(4):
                g.append(ins(f"buffer_load_dwordx4 v{VST}, s[{SWO}:{SWO+3}], s{sT1} offen offset:{1024*n} nt lds", tag=("wo",)))
                G.append(g); g = []
        return G
    def o_store(self, n, mod, prev, force=False):
        g = []
        if n % 4 == 0 or force: g.append(ins(f"s_add_u32 s{sT2}, s{sOo}, {((n & ~3)*1024 - (4*6144 if prev else 0)) & 0xffffffff}"))
        g.append(ins(f"buffer_store_dwordx4 {rng('a', OS(n), 4)}, v{VST}, s[{SO}:{SO+3}], s{sT2} offen offset:{(n % 4)*1024} {mod}", tag=("o",)))
        return g
    def rd_k(self, par, kt, ks):
        return ins(f"ds_read_b128 {rng('a', KF(par, kt, ks), 4)}, v{KA+ks} offset:{par*8192 + kt*4096}")
    def rd_v(self, par, dt, kt):
        return ins(f"ds_read_b64_tr_b16 {rng('a', VF(par, dt) + 2*kt, 2)}, v{VA+dt} offset:{par*8192 + kt*4096}")
    def rd_w(self, t, T, h2):
        ks, u = T >> 1, T & 1
        return ins(f"ds_read_b64_tr_b16 {rng('a', WF(T) + 2*h2, 2)}, v{WA+ks} offset:{(t % 3)*16384 + h2*2048 + 8*u}")
    def rd_x(self, t, qt):
        tt = t >> 1
        return ins(f"ds_read_b128 {rng('a', XF(t % 2, qt), 4)}, v{XAD + (t & 1)} offset:{(24576 if tt % 2 == 0 else 0) + qt*2048}")

    def prologue(self):
        p = self.p
        p("s_cmp_ge_u32 s2, 256")
        p("s_cbranch_scc1 K2_END")
        p("s_load_dwordx16 s[48:63], s[0:1], 0")
        p("s_load_dwordx8 s[64:71], s[0:1], 64")
        p("s_load_dwordx2 s[72:73], s[0:1], 96")
        p(f"v_lshrrev_b32 v1, 6, v0")
        p(f"v_and_b32 v0, 63, v0")
        p(f"v_readfirstlane_b32 s{sW}, v1")
        p("s_and_b32 s86, s2, 7")
        p("s_lshr_b32 s87, s2, 3")
        p(f"s_lshr_b32 s{sP}, s86, 2")
        p("s_and_b32 s88, s86, 1"); p("s_lshl_b32 s88, s88, 3"); p("s_and_b32 s82, s87, 7")
        p(f"s_add_u32 s{sB}, s88, s82")
        p("s_lshr_b32 s88, s86, 1"); p("s_and_b32 s88, s88, 1"); p("s_lshl_b32 s88, s88, 2"); p("s_lshr_b32 s83, s87, 3")
        p(f"s_add_u32 s{sHG}, s88, s83")
        p(f"s_and_b32 s{sHP}, s{sW}, 1")
        p(f"s_lshr_b32 s{sRH}, s{sW}, 1")
        p("s_waitcnt lgkmcnt(0)")
        p(f"s_cmp_eq_u32 s{sP}, 0")
        p(f"s_cselect_b32 s{SX}, s48, s58"); p(f"s_cselect_b32 s{SX+1}, s49, s59")
        p(f"s_cselect_b32 s{SW}, s54, s64"); p(f"s_cselect_b32 s{SW+1}, s55, s65")
        p(f"s_cselect_b32 s{SWO}, s56, s66"); p(f"s_cselect_b32 s{SWO+1}, s57, s67")
        p(f"s_cselect_b32 s90, s50, s60"); p(f"s_cselect_b32 s91, s51, s61")
        p(f"s_cselect_b32 s92, s52, s62"); p(f"s_cselect_b32 s93, s53, s63")
        p(f"s_cmp_eq_u32 s{sRH}, 0")
        p(f"s_cselect_b32 s{SKV}, s90, s92"); p(f"s_cselect_b32 s{SKV+1}, s91, s93")
        p(f"s_cselect_b32 s94, 64, 128"); p(f"s_cselect_b32 s95, 128, 0"); p("s_mov_b32 s96, 128"); p(f"s_cselect_b32 s96, 192, s96")
        p(f"s_cselect_b32 s97, 0, 1")
        p(f"s_cselect_b32 s{sKVl}, 0, 32768")
        for r, n in ((SX, X_BYTES), (SW, W_BYTES), (SWO, W_BYTES), (SKV, KV_BYTES)):
            p(f"s_mov_b32 s{r+2}, {n}"); p(f"s_mov_b32 s{r+3}, 0x00020000")
        p(f"s_mov_b32 s{SO}, s72"); p(f"s_mov_b32 s{SO+1}, s73"); p(f"s_mov_b32 s{SO+2}, 0"); p(f"s_mov_b32 s{SO+3}, 0x00020000")
        p(f"s_add_u32 s{SWT}, s72, {WOT_OFF}"); p(f"s_addc_u32 s{SWT+1}, s73, 0"); p(f"s_mov_b32 s{SWT+2}, {WOT_BYTES}"); p(f"s_mov_b32 s{SWT+3}, 0x00020000")
        p(f"s_lshl_b32 s88, s{sB}, 5"); p(f"s_lshl_b32 s89, s{sHG}, 2"); p("s_add_u32 s88, s88, s89"); p(f"s_lshl_b32 s89, s{sHP}, 1"); p("s_add_u32 s88, s88, s89")
        p(f"s_lshl_b32 s{sKVo}, s88, 17")
        p(f"s_lshl_b32 s89, s{sHP}, 14"); p(f"s_add_u32 s{sKVl}, s{sKVl}, s89")
        p(f"s_lshl_b32 s88, s{sW}, 16"); p(f"s_lshl_b32 s89, s{sHG}, 10"); p(f"s_add_u32 s{sWo}, s88, s89")
        p(f"s_lshl_b32 s{sWl}, s{sW}, 12")
        p(f"s_lshl_b32 s88, s82, 19"); p(f"s_add_u32 s{sWarmW}, s{sWo}, s88")
        p(f"s_mul_i32 s88, s{sB}, 196608"); p(f"s_mul_i32 s89, s{sW}, 49152"); p(f"s_add_u32 s{sXo}, s88, s89")
        p(f"s_mul_i32 s{sXl}, s{sW}, 6144")
        p(f"s_lshl_b32 s88, s83, 8"); p(f"s_add_u32 s{sWarmX}, s{sXo}, s88")
        if self.o.get("qrot"):
            assert not self.o["warm"]
            p("s_lshl_b32 s88, s83, 1"); p("s_add_u32 s88, s88, s82"); p("s_and_b32 s88, s88, 7")
            p(f"s_lshl_b32 s{sWR}, s88, 19"); p(f"s_lshl_b32 s{sXR}, s88, 7")
        p(f"s_mov_b32 s{sDrop}, {DROP}")
        p("s_mul_i32 s88, s2, 5"); p("s_lshr_b32 s89, s2, 4"); p("s_add_u32 s88, s88, s89"); p("s_and_b32 s88, s88, 15"); p(f"s_lshl_b32 s{sRot}, s88, 13")
        p(f"s_lshl_b32 s88, s{sP}, 4"); p(f"s_add_u32 s88, s88, s{sB}"); p("s_lshl_b32 s88, s88, 1"); p(f"s_add_u32 s88, s88, s{sRH}")
        p("s_lshl_b32 s88, s88, 7"); p(f"s_lshl_b32 s89, s{sHG}, 4"); p("s_add_u32 s88, s88, s89"); p(f"s_lshl_b32 s89, s{sHP}, 3"); p("s_add_u32 s88, s88, s89")
        p(f"s_mul_i32 s{sOo}, s88, 6144")
        p("s_and_b32 s88, s86, 3"); p("s_lshl_b32 s88, s88, 5"); p("s_add_u32 s88, s88, s87")
        p(f"s_lshl_b32 s89, s88, 15"); p(f"s_lshl_b32 s98, s{sW}, 13"); p(f"s_add_u32 s{sWOo}, s89, s98")
        p(f"s_lshl_b32 s89, s{sP}, 2"); p(f"s_add_u32 s89, s89, s{sW}"); p("s_lshl_b32 s89, s89, 7"); p("s_add_u32 s89, s89, s88"); p(f"s_lshl_b32 s{sWTo}, s89, 13")
        p(f"s_mov_b32 s{sC}, {f32(1.4426950408889634*128**-0.5)}")
        p(f"s_mov_b32 s{sItem}, 0")
        i_, g_, r_, c_ = "v14", "v8", "v9", "v10"
        p(f"v_and_b32 {i_}, 15, v0"); p(f"v_lshrrev_b32 {g_}, 4, v0"); p(f"v_lshrrev_b32 {r_}, 2, {i_}"); p(f"v_and_b32 {c_}, 3, {i_}")
        p(f"v_lshlrev_b32 v{VST}, 4, v0")
        p("v_lshrrev_b32 v11, 5, v0"); p("v_and_b32 v12, 15, v0"); p("v_lshlrev_b32 v13, 2, v11"); p("v_xor_b32 v12, v12, v13"); p("v_lshlrev_b32 v12, 4, v12")
        p("v_lshl_add_u32 v12, v11, 13, v12"); p("v_bfe_u32 v13, v0, 4, 1"); p(f"v_lshl_add_u32 v{WD[0]}, v13, 9, v12")
        p(f"v_xor_b32 v{WD[1]}, 128, v{WD[0]}"); p(f"v_add_u32 v{WD[2]}, {2*15360}, v{WD[0]}"); p(f"v_add_u32 v{WD[3]}, {3*15360}, v{WD[1]}"); p(f"v_add_u32 v{WD[1]}, 15360, v{WD[1]}")
        p("v_lshrrev_b32 v11, 3, v0"); p("v_and_b32 v12, 7, v0"); p(f"v_xor_b32 v12, v12, {g_}"); p("v_lshlrev_b32 v12, 4, v12")
        p(f"v_lshl_add_u32 v{XD[0]}, v11, 10, v12"); p(f"v_xor_b32 v{XD[1]}, 64, v{XD[0]}")
        p(f"v_add_u32 v{XD[2]}, {2*7168}, v{XD[0]}"); p(f"v_add_u32 v{XD[3]}, {3*7168}, v{XD[1]}"); p(f"v_add_u32 v{XD[1]}, 7168, v{XD[1]}")
        p(f"v_lshlrev_b32 v11, s97, {g_}"); p(f"v_xor_b32 v11, v11, {i_}"); p("v_lshlrev_b32 v11, 4, v11"); p(f"v_lshl_add_u32 v{DV}, {g_}, 8, v11")
        for k in range(1, 4): p(f"v_xor_b32 v{DV+k}, s{93+k}, v{DV}")
        self.lane = (i_, g_, r_, c_)
    def prologue2(self):
        p = self.p
        i_, g_, r_, c_ = self.lane
        p(f"s_lshl_b32 s88, s{sHP}, 14")
        p(f"v_xor_b32 v11, {g_}, {i_}"); p("v_lshlrev_b32 v11, 4, v11"); p(f"v_lshl_add_u32 v11, {i_}, 8, v11"); p(f"v_add_u32 v{KA}, s88, v11")
        for ks in range(1, 4): p(f"v_xor_b32 v{KA+ks}, {64*ks}, v{KA}")
        p(f"v_and_b32 v11, 1, {g_}"); p("v_lshlrev_b32 v11, 2, v11"); p(f"v_add_u32 v11, v11, {r_}"); p("v_lshlrev_b32 v11, 1, v11")
        p(f"v_lshrrev_b32 v12, 1, {c_}"); p("v_xor_b32 v11, v11, v12"); p("v_lshlrev_b32 v11, 4, v11")
        p(f"v_and_b32 v12, 1, {c_}"); p("v_lshl_add_u32 v11, v12, 3, v11")
        p(f"v_lshl_add_u32 v12, {g_}, 2, {r_}"); p("v_lshl_add_u32 v11, v12, 8, v11")
        p("s_add_u32 s89, s88, 32768"); p(f"v_add_u32 v{VA}, s89, v11")
        for dt in range(1, 8): p(f"v_xor_b32 v{VA+dt}, {32*dt}, v{VA}")
        p(f"s_lshl_b32 s88, s{sHP}, 4")
        p(f"v_add_u32 v11, s88, {c_}"); p(f"v_lshlrev_b32 v12, 2, {r_}"); p("v_xor_b32 v11, v11, v12"); p("v_lshlrev_b32 v11, 4, v11")
        p(f"v_lshl_add_u32 v12, {g_}, 3, {r_}"); p("v_lshl_add_u32 v11, v12, 9, v11"); p(f"v_add_u32 v{WA}, {WSLOT[0]}, v11")
        for ks in range(1, 4): p(f"v_xor_b32 v{WA+ks}, {64*ks}, v{WA}")
        p(f"s_mul_i32 s88, s{sRH}, {96*128}"); p(f"s_add_u32 s88, s88, {XA}")
        p(f"v_lshrrev_b32 v11, 1, {i_}"); p(f"v_xor_b32 v11, v11, {g_}"); p("v_lshlrev_b32 v11, 4, v11"); p(f"v_lshl_add_u32 v11, {i_}, 7, v11"); p(f"v_add_u32 v{XAD}, s88, v11")
        p(f"v_xor_b32 v{XAD+1}, 64, v{XAD}")
        if self.o["msum"]:
            p("v_mov_b32 v11, 0x3f803f80")
            for r in range(4): p(f"v_accvgpr_write_b32 a{ONES+r}, v11")

    def stamp(self, fine=False):
        if not self.o["timing"]: return
        if fine and not self.o.get("fine"): return
        p = self.p
        p(f"s_memrealtime s[88:89]")
        p(f"s_memtime s[90:91]")
        p("s_waitcnt lgkmcnt(0)")
        p("s_mov_b32 m0, s99"); p("s_nop 1")
        p(f"v_writelane_b32 v5, s88, m0")
        p(f"v_writelane_b32 v1, s90, m0")
        p("s_add_u32 s99, s99, 1")
    def stamp_flush(self):
        if not self.o["timing"]: return
        p = self.p
        if self.o.get("dbg") is not None:
            p(f"s_cmp_eq_u32 s2, {self.o['dbg']}"); p("s_cselect_b32 s90, 64, 0"); p(f"s_cmp_eq_u32 s{sW}, 0"); p("s_cselect_b32 s90, s90, 0")
            p("s_mov_b32 s88, s70"); p("s_mov_b32 s89, s71"); p("s_mov_b32 s91, 0x00020000")
            src = "v1" if self.o.get("dbgcyc") else "v5"
            p("v_lshlrev_b32 v6, 2, v0")
            p(f"buffer_store_dword {src}, v6, s[88:91], 0 offen")
            p("s_add_u32 s88, s88, 512"); p("s_addc_u32 s89, s89, 0"); p("s_cmp_lg_u32 s90, 0"); p("s_cselect_b32 s90, 52, 0")
            p(f"buffer_store_dword {src}, v6, s[88:91], 0 offen")
            return
        p(f"s_add_u32 s88, s72, {64<<20}"); p("s_addc_u32 s89, s73, 0"); p(f"s_mov_b32 s90, {1<<20}"); p("s_mov_b32 s91, 0x00020000")
        p(f"s_lshl_b32 s92, s2, 2"); p(f"s_add_u32 s92, s92, s{sW}"); p("s_lshl_b32 s92, s92, 9")
        p("v_lshlrev_b32 v6, 2, v0")
        p("buffer_store_dword v5, v6, s[88:91], s92 offen")
        p("buffer_store_dword v1, v6, s[88:91], s92 offen offset:256")

    def emit_groups(self, groups):
        for g in groups:
            for x in g: self.p.add(x)
    def keep(self, x):
        drop = self.o["drop"]; ph = self.phase
        if x.kind == "dma" and ph + "_dma" in drop: return False
        if x.kind == "ds_read" and ph + "_lds" in drop: return False
        if x.kind == "barrier" and ph + "_bar" in drop: return False
        if x.kind == "trans" and ph + "_exp" in drop: return False
        if x.kind == "valu" and x.txt.startswith("v_add_f32") and ph + "_add" in drop: return False
        if x.kind == "valu" and x.txt.startswith("v_cvt") and ph + "_cvt" in drop: return False
        if x.kind == "vstore" and ph + "_st" in drop: return False
        return True
    def run(self, mf, chains, pre=()):
        ch = [[([x for x in g if self.keep(x)], lo, hi) for g, lo, hi in c] for c in chains]
        ch = [[it for it in c if it[0]] for c in ch]
        if self.phase + "_mfma" in self.o["drop"]: mf = [ins("s_nop 0") for _ in mf]
        self.p.extend(gapfill(mf, ch, pre=[x for x in pre if self.keep(x)]))

    def spaced(self, G, lo, hi):
        n = len(G)
        out = []
        for k, g in enumerate(G):
            pos = lo + (k*(hi - lo + 1))//n
            out.append((g, pos, pos + 1))
        return out
    def qstep(self, t, stores=()):
        p = self.p
        self.phase = "qp"
        mf = []
        for T in range(8):
            for qt in range(6):
                mf.append(mfma(acc(T, qt), "v", WF(T), "a", XF(t % 2, qt), "a", None if t == 0 else acc(T, qt)))
        need = []
        for qt in range(6): need += R("a", XF(t % 2, qt), 4)
        for T in range(6): need += R("a", WF(T), 4)
        pre = [wait_regs(need)]
        chains = []
        BG = 11
        slow = []
        if t < 15:
            bar = [wait_tag(("w", t+1))]
            if t % 2 == 1: bar.append(wait_tag(("x", (t+1) >> 1)))
            chains.append([(bar, BG-1, BG-1), ([ins("s_waitcnt lgkmcnt(0)"), ins("s_barrier")], BG, BG)])
            cw = []
            for T in range(8):
                lo = max(BG+1, 6*T + 5)
                cw += [([self.rd_w(t+1, T, 0)], lo, min(47, lo + 8)), ([self.rd_w(t+1, T, 1)], lo, min(47, lo + 9))]
            chains.append(cw)
            chains.append([([self.rd_x(t+1, qt)], BG+1, 40) for qt in range(6)])
            GW = self.w_tile(t+3) if t + 3 <= 15 else []
            early = []; GX = []
            if t % 2 == 1 and (t >> 1) + 2 <= 7: GX = self.x_tile((t >> 1) + 2)[:3]
            if t % 2 == 0 and t >= 2 and ((t-1) >> 1) + 2 <= 7:
                tt = ((t-1) >> 1) + 2; sl = XB if tt % 2 == 0 else XA
                early = self.x_tile(tt)[3:]
                early[0] = self.x_soff(sXo, tt) + [ins(f"s_add_u32 m0, s{sXl}, {sl}")] + early[0]
            if t == 0: early = self.w_tile(2) + self.x_tile(1)
            late = GW + GX
            plan = self.o.get("kvplan", {10: (0, 0, 4), 11: (0, 4, 8), 12: (1, 0, 4), 13: (1, 4, 8)})
            if t in plan or str(t) in plan:
                slow = self.kv_pieces(*(plan.get(t) or plan.get(str(t))))
            c = []
            if t == 0:
                c = self.spaced(early + late, 0, 47); early = []; late = []
            if early:
                span = BG - 1
                for k, g in enumerate(early): c.append((g, int(k*span/len(early)), int(k*span/len(early)) + 1))
            hi = 47 if not (slow or stores) else (39 if len(slow) <= 2 else 32)
            if late: c += self.spaced(late, BG+2, hi)
            if slow: c += self.spaced(slow, (41 if len(slow) <= 2 else 34) if late else BG+2, 47)
            if c: chains.append(c)
        else:
            chains.append([([ins("s_waitcnt lgkmcnt(0)"), ins("s_barrier")], BG, BG)])
            G = self.kv_pieces(2, 0, 8) if self.o.get("kvplan") is None else self.dma_kv_abs(("kv", 2), 2) + self.dma_kv_abs(("kv", 3), 3)[:4]
            chains.append(self.spaced(G, BG+1, 47))
        if stores:
            lo = 26 if t == 12 else 0
            chains.append(self.spaced([self.o_store(n, self.o["store_mod"], True) for n in stores], lo, 47))
        self.run(mf, chains, pre)

    def qproj_a(self):
        p = self.p
        p(f"s_lshl_b32 s{sTc}, s{sItem}, 17")
        p.wait_tag(("w", 0)); p.wait_tag(("x", 0))
        p("s_barrier")
        self.stamp()
        for T in range(8):
            p.add(self.rd_w(0, T, 0)); p.add(self.rd_w(0, T, 1))
        for qt in range(6): p.add(self.rd_x(0, qt))
        for t in range(12):
            self.qstep(t)
            if t in (3, 7, 11): self.stamp(True)
    def qproj_b(self, last):
        p = self.p
        st = (lambda a, b: list(range(a, b))) if last else (lambda a, b: [])
        self.qstep(12, st(0, 3)); self.qstep(13, st(3, 9)); self.qstep(14, st(9, 15)); self.qstep(15, st(15, 18))
        self.stamp()
        for kt in range(2):
            for ks in range(4): p.add(self.rd_k(0, kt, ks))
        tmp = S(0, 0)
        rest = self.dma_kv_abs(("kv", 3), 3)[4:] if self.o.get("kvplan") is not None else []
        late = st(18, 24)
        for qt in range(6):
            for ks in range(4):
                n = qt*4 + ks
                a0, a1 = acc(2*ks, qt), acc(2*ks+1, qt)
                for r in range(4): p(f"v_mul_f32 v{a0+r}, s{sC}, v{a0+r}")
                for r in range(4): p(f"v_mul_f32 v{a1+r}, s{sC}, v{a1+r}")
                t0 = tmp + (n % 4)*4
                p(f"v_cvt_pk_bf16_f32 v{t0}, v{a0}, v{a0+1}")
                p(f"v_cvt_pk_bf16_f32 v{t0+1}, v{a0+2}, v{a0+3}")
                p(f"v_cvt_pk_bf16_f32 v{t0+2}, v{a1}, v{a1+1}")
                p(f"v_cvt_pk_bf16_f32 v{t0+3}, v{a1+2}, v{a1+3}")
                if late and n % 2 == 0 and n < 18:
                    m = late.pop(0)
                    for x in self.o_store(m, self.o["store_mod"], True, force=True): p.add(x)
                for r in range(4): p(f"v_accvgpr_write_b32 a{Q(qt,ks)+r}, v{t0+r}")
                if rest and n % 4 == 3 and n >= 7:
                    for x in rest.pop(0): p.add(x)
            if qt < 4:
                for dt in (2*qt, 2*qt+1):
                    p.add(self.rd_v(0, dt, 0)); p.add(self.rd_v(0, dt, 1))
        assert not rest and not late

    def period(self, n, dma=(), pre=(), early=(), extra=()):
        p = self.p
        self.phase = "at"
        msum = self.o["msum"]
        j, pp = divmod(n, 6)
        qk = []; pv = []
        if n < 96:
            sb = n % 2
            for kt in range(2):
                for ks in range(4):
                    qk.append(mfma(S(sb, kt), "v", KF(j % 2, kt, ks), "a", Q(pp, ks), "a", None if ks == 0 else S(sb, kt)))
        if n >= 2:
            jj, qt = divmod(n-2, 6)
            pb = (n-2) % 2
            for dt in range(8):
                pv.append(mfma(acc(dt, qt), "v", VF(jj % 2, dt), "a", P(pb), "v", None if jj == 0 else acc(dt, qt)))
        mf = []
        for k in range(8):
            if qk: mf.append(qk[k])
            if pv: mf.append(pv[k])
        if n >= 2 and msum:
            mf.append(mfma(LA(qt), "a", ONES, "a", P(pb), "v", None if jj == 0 else LA(qt)))
        nm = len(mf)
        sc = nm/17.0 if msum else nm/16.0
        def G(x): return min(nm-1, int(x*sc))
        chains = []
        if 1 <= n <= 96:
            jj2, qt2 = divmod(n-1, 6)
            sb = (n-1) % 2; pb2 = (n-1) % 2
            e = [S(sb, 0)+r for r in range(4)] + [S(sb, 1)+r for r in range(4)]
            chains.append([([ins(f"v_exp_f32 v{e[k]}, v{e[k]}")], G(2*k), G(2*k)) for k in range(8)])
            cv = []
            for k in range(8):
                if not msum: cv.append(([ins(f"v_add_f32 v{LS+qt2}, v{LS+qt2}, v{e[k]}")], G(2*k+1), G(2*k+1)))
                if k % 2 == 1:
                    cv.append(([ins(f"v_cvt_pk_bf16_f32 v{P(pb2)+k//2}, v{e[k-1]}, v{e[k]}")], G(2*k+1), G(2*k+1)))
            chains.append(cv)
        if n >= 2:
            jb, q = divmod(n-2, 6)
            if jb + 1 <= 15:
                par = (jb+1) % 2
                rds = []
                if q in (0, 1): rds = [self.rd_k(par, q, ks) for ks in range(4)]
                else:
                    for dt in range((q-2)*2, (q-2)*2+2): rds += [self.rd_v(par, dt, 0), self.rd_v(par, dt, 1)]
                gp = [1, 5, 9, 13] if q != 5 else [1, 5, 9, 10]
                chains.append([([x], G(gp[k]), G(gp[k])) for k, x in enumerate(rds)])
        if dma:
            nd = sum(1 for x in dma if x.kind == "dma")
            slots = {0: [], 1: [16], 2: [11, 16], 4: [3, 7, 11, 16], 8: [2, 4, 6, 8, 10, 12, 14, 16]}.get(nd) or [int(3 + (16-3)*k/(nd-1)) for k in range(nd)]
            ch = []; seen = 0
            for x in dma:
                if x.kind == "dma":
                    g = G(slots[seen]); seen += 1
                    grp = [x] if x.meta.get("credit") is None else [ins(f"s_waitcnt vmcnt({x.meta['credit']})"), x]
                    ch.append((grp, g, g))
                else:
                    ch.append(([x], 0, nm-1))
            for k in range(len(ch)-2, -1, -1):
                if ch[k][0][-1].kind != "dma": ch[k] = (ch[k][0], 0, max(0, ch[k+1][2] - (1 if ch[k+1][0][-1].kind == "dma" else 0)))
            chains.append(ch)
        if early: chains.append([([x], 0, nm-1) for x in early])
        if extra: chains.append([(g, (k*nm)//len(extra), nm-1) for k, g in enumerate(extra)])
        self.run(mf, chains, pre)

    def body(self, j, dmaG, tog=(), nper=6, extra=()):
        bar = []
        if j + 1 <= 15: bar.append(wait_tag(("kv", j+1)))
        if extra: bar.append(wait_tag(("wo",)))
        bar += [ins("s_waitcnt lgkmcnt(0)"), ins("s_barrier")]
        if self.o.get("baracct"):
            b0 = [ins("s_memtime s[92:93]"), ins("s_waitcnt lgkmcnt(0)")]
            b1 = [ins("s_memtime s[94:95]"), ins("s_waitcnt lgkmcnt(0)")]
            b2 = [ins("s_memtime s[96:97]"), ins("s_waitcnt lgkmcnt(0)"), ins("s_sub_u32 s98, s94, s92"), ins("s_add_u32 s100, s100, s98"),
                  ins("s_sub_u32 s98, s96, s94"), ins("s_add_u32 s101, s101, s98")]
            bar = b0 + bar[:1] + b1 + bar[1:] + b2
        tk = [x for x in tog if any(f"v{KA+z}," in x.txt for z in range(4))]
        tv = [x for x in tog if x not in tk]
        flat = [x for g in dmaG for x in g]
        cr = self.o.get("credit")
        if cr is not None:
            for x in flat:
                if x.kind == "dma": x.meta["credit"] = cr
        nd = sum(1 for x in flat if x.kind == "dma")
        if nd == 8: cnt = self.o.get("dmacnt", [1, 1, 2, 1, 1, 2])
        else: cnt = [nd//6 + (1 if q < nd % 6 else 0) for q in range(6)]
        per = [[] for _ in range(6)]
        q = 0; seen = 0
        for x in flat:
            while q < 5 and seen >= cnt[q]: q += 1; seen = 0
            per[q].append(x)
            if x.kind == "dma": seen += 1
        for q in range(6):
            e = tv[:4] if q == 0 else (tv[4:] if q == 1 else [])
            ex = []
            if extra:
                n = len(extra); ex = extra[q*n//6:(q+1)*n//6]
            self.period(6*j + 2 + q, dma=per[q], pre=(bar + tk) if q == 0 else (), early=e, extra=ex)

    def tog(self):
        return [ins(f"v_xor_b32 v{KA+x}, {PHI}, v{KA+x}") for x in range(4)] + [ins(f"v_xor_b32 v{VA+x}, {PHI}, v{VA+x}") for x in range(8)]
    def attention_shared(self):
        p = self.p
        if self.o.get("kvplan") is None:
            t3 = self.kv_pieces(3, 0, 8)
            self.period(0, dma=[x for g in t3[:4] for x in g]); self.period(1, dma=[x for g in t3[4:] for x in g])
        else:
            self.period(0); self.period(1)
        self.body(0, self.dma_kv_abs(("kv", 4), 0))
        p(f"s_mov_b32 s{sM}, s{sKVl}")
        p(f"s_mov_b32 s{sCnt}, 5")
        for k in range(5):
            j = 1 + 2*k
            p.raw(f"@@LB at {k}")
            self.stamp(True)
            g1 = self.dma_kv(("kv", j+4), f"s_add_u32 m0, s{sM}, 8192", f"s_add_u32 m0, s{sM}, 12288")
            self.body(j, g1, tog=self.tog())
            g2 = self.dma_kv(("kv", j+5), f"s_add_u32 m0, s{sM}, 0", f"s_add_u32 m0, s{sM}, 4096")
            self.body(j+1, [[ins(f"s_xor_b32 s{sM}, s{sM}, {PHI}")]] + g2)
            p(f"s_sub_u32 s{sCnt}, s{sCnt}, 1"); p(f"s_cmp_lg_u32 s{sCnt}, 0"); p("s_cbranch_scc1 L_at")
            p.raw(f"@@LE at {k}")
        self.body(11, self.dma_kv_abs(("kv", 15), 3), tog=self.tog())
        self.body(12, [])
    def attention_tail(self, last):
        if not last:
            self.body(13, [], tog=self.tog())
            self.body(14, [])
            self.body(15, self.w_tile(0, 1) + self.x_tile(0) + self.w_tile(1, 1), tog=self.tog())
        else:
            self.body(13, self.dma_wo_last(), tog=self.tog())
            self.body(14, [])
            self.body(15, [], extra=self.wo_prep_groups())
    def wo_prep_groups(self):
        setup = [ins("v_and_b32 v7, 15, v0"), ins("v_lshrrev_b32 v2, 4, v0"), ins("v_lshrrev_b32 v3, 2, v7"), ins("v_and_b32 v7, 3, v7"),
                 ins("v_lshl_add_u32 v6, v2, 2, v3"), ins("v_lshlrev_b32 v6, 10, v6"), ins("v_lshl_add_u32 v6, v7, 4, v6"),
                 ins(f"s_lshl_b32 s88, s{sW}, 8"), ins("v_add_u32 v6, s88, v6")]
        G = [[x] for x in setup]
        for nt in range(8):
            u, par = nt >> 1, nt & 1
            d = KF(0, 0, 0) + nt*4
            G.append([ins(f"ds_read_b64_tr_b16 a[{d}:{d+1}], v6 offset:{64*u + 8*par}")])
            G.append([ins(f"ds_read_b64_tr_b16 a[{d+2}:{d+3}], v6 offset:{16384 + 64*u + 8*par}")])
        for nt in range(8):
            d = KF(0, 0, 0) + nt*4
            g = []
            if nt % 4 == 0: g.append(ins(f"s_add_u32 s{sT1}, s{sWTo}, {nt*1024}"))
            g.append(ins(f"buffer_store_dwordx4 a[{d}:{d+3}], v{VST}, s[{SWT}:{SWT+3}], s{sT1} offen offset:{(nt % 4)*1024} {self.o['last_store_mod']}"))
            G.append(g)
        return G
    def dma_wo_last(self):
        G = []
        for half in range(2):
            g = [ins(f"s_add_u32 s{sT1}, s{sWOo}, {half*4096}"), ins(f"s_lshl_b32 s{sWoM}, s{sW}, 13"), ins(f"s_add_u32 m0, s{sWoM}, {half*4096}")]
            for n in range(4):
                g.append(ins(f"buffer_load_dwordx4 v{VST}, s[{SWO}:{SWO+3}], s{sT1} offen offset:{1024*n} nt lds", tag=("wo",)))
                G.append(g); g = []
        return G

    def o_epilogue(self, last):
        p = self.p
        for qt in range(6): p(f"v_accvgpr_read_b32 v{LS+qt}, a{LA(qt)}")
        for qt in range(6): p(f"v_rcp_f32 v{LS+qt}, v{LS+qt}")
        for qt in range(6):
            for ks in range(4):
                a0, a1 = acc(2*ks, qt), acc(2*ks+1, qt)
                l = LS + qt
                for r in range(4): p(f"v_mul_f32 v{a0+r}, v{l}, v{a0+r}")
                for r in range(4): p(f"v_mul_f32 v{a1+r}, v{l}, v{a1+r}")
                t0 = SB + ((ks + 4*qt) % 6)*4
                p(f"v_cvt_pk_bf16_f32 v{t0}, v{a0}, v{a0+1}")
                p(f"v_cvt_pk_bf16_f32 v{t0+1}, v{a0+2}, v{a0+3}")
                p(f"v_cvt_pk_bf16_f32 v{t0+2}, v{a1}, v{a1+1}")
                p(f"v_cvt_pk_bf16_f32 v{t0+3}, v{a1+2}, v{a1+3}")
                n = ks*6 + qt
                if last:
                    p(f"s_add_u32 s{sT0}, s{sOo}, {n*1024}")
                    p(f"buffer_store_dwordx4 v[{t0}:{t0+3}], v{VST}, s[{SO}:{SO+3}], s{sT0} offen {self.o['last_store_mod']}", tag=("o",))
                else:
                    for r in range(4): p(f"v_accvgpr_write_b32 a{OS(n)+r}, v{t0+r}")

    def final(self):
        p = self.p
        p.wait_tag(("wo",))
        p("s_barrier")
        p("v_and_b32 v8, 15, v0"); p("v_lshrrev_b32 v2, 4, v0"); p("v_lshrrev_b32 v3, 2, v8"); p("v_and_b32 v7, 3, v8")
        p("v_lshl_add_u32 v6, v2, 2, v3"); p("v_lshlrev_b32 v6, 10, v6"); p("v_lshl_add_u32 v6, v7, 4, v6")
        p(f"s_lshl_b32 s88, s{sW}, 8"); p("v_add_u32 v6, s88, v6")
        for nt in range(8):
            u, par = nt >> 1, nt & 1
            d = 32 + nt*4
            p(f"ds_read_b64_tr_b16 v[{d}:{d+1}], v6 offset:{64*u + 8*par}")
            p(f"ds_read_b64_tr_b16 v[{d+2}:{d+3}], v6 offset:{16384 + 64*u + 8*par}")
        for nt in range(8):
            d = 32 + nt*4
            if nt % 4 == 0: p(f"s_add_u32 s{sT1}, s{sWTo}, {nt*1024}")
            p(f"buffer_store_dwordx4 v[{d}:{d+3}], v{VST}, s[{SWT}:{SWT+3}], s{sT1} offen offset:{(nt % 4)*1024} {self.o['last_store_mod']}")

    def build(self):
        p = self.p
        assert self.o["msum"]
        self.prologue()
        if self.o["timing"]: p("s_mov_b32 s99, 0")
        self.stamp()
        p(f"s_mov_b32 s{SO+2}, {O_BYTES}")
        self.emit_groups(self.w_tile(0, 0) + self.x_tile(0) + self.w_tile(1, 0))
        self.prologue2()
        for item in range(2):
            last = item == 1
            p.raw("@@SB A"); self.qproj_a(); p.raw("@@SE A")
            p.raw(f"@@SB B{item}"); self.qproj_b(last); self.stamp(); p.raw(f"@@SE B{item}")
            p.raw("@@SB C"); self.attention_shared(); p.raw("@@SE C")
            p.raw(f"@@SB D{item}")
            self.attention_tail(last)
            self.stamp()
            self.o_epilogue(last)
            self.stamp()
            if not last:
                p(f"s_add_u32 s{sWo}, s{sWo}, 256"); p(f"s_add_u32 s{sOo}, s{sOo}, {4*6144}")
                p(f"s_mov_b32 s{sItem}, 1")
            else:
                self.stamp()
                p("s_waitcnt vmcnt(0)")
                self.stamp()
                self.stamp_flush()
                p("s_waitcnt vmcnt(0)")
            p.raw(f"@@SE D{item}")
        L, st = finalize(p.L)
        L = fold(L)
        segs, top = segments(L)
        out = [i for k, i in top if k == "ins"]
        lab = lambda t: I(t, "label")
        br = lambda tgt: [ins(f"s_cmp_eq_u32 s{sItem}, 1"), ins(f"s_cbranch_scc1 {tgt}")]
        out += [lab("L_A:")] + segs["A"] + br("L_B1") + segs["B0"] + [lab("L_C:")] + segs["C"] + br("L_D1") + segs["D0"] + [ins("s_branch L_A")]
        out += [lab("L_B1:")] + segs["B1"] + [ins("s_branch L_C")]
        out += [lab("L_D1:")] + segs["D1"] + [lab("K2_END:"), ins("s_endpgm")]
        return out, st

if __name__ == "__main__":
    k = K2(); L, st = k.build()
    print(st, len(L))
```

```python
from dsl import *
from k2 import O_BYTES, WOT_OFF, WOT_BYTES, OUT_BYTES, MF, mfma

ACC = 64
def acc(nu, qt): return ACC + (nu*6 + qt)*4
NBUF = 4
def AF(buf, nu): return buf*56 + nu*4
def BF(buf, qt): return buf*56 + 32 + qt*4
SO, SWT, SOUT = 4, 8, 12
sW, sP, sB, sRH, sNB = 16, 17, 18, 19, 20
sA = 24
sBo = 28
sT0, sT1 = 30, 31
sOut = 32
sRA, sRB = 22, 23

class K3:
    def __init__(self, opts=None):
        self.o = dict(ld_mod="", st_mod="")
        if opts: self.o.update(opts)
        self.p = Prog(); self.nstamp = 0
    def stamp(self):
        if not self.o.get("timing"): return
        p = self.p
        k = self.nstamp; self.nstamp += 1
        p(f"s_memrealtime s[88:89]"); p(f"s_memtime s[90:91]"); p("s_waitcnt lgkmcnt(0)")
        p(f"v_writelane_b32 v10, s88, {2*k}"); p(f"v_writelane_b32 v10, s90, {2*k+1}")
    def stamp_flush(self):
        if not self.o.get("timing"): return
        p = self.p
        if self.o.get("dbg") is not None:
            p("s_load_dwordx2 s[92:93], s[0:1], 88"); p("s_waitcnt lgkmcnt(0)")
            p("s_mov_b32 s96, s92"); p("s_mov_b32 s97, s93"); p("s_mov_b32 s99, 0x00020000")
            p(f"s_cmp_eq_u32 s2, {self.o['dbg']}"); p("s_cselect_b32 s98, 64, 0"); p(f"s_cmp_eq_u32 s{sW}, 0"); p("s_cselect_b32 s98, s98, 0")
            p("v_readlane_b32 s40, v10, 0"); p("v_readlane_b32 s41, v10, 4"); p("v_readlane_b32 s42, v10, 8")
            p("s_nop 4")
            p("v_mov_b32 v12, s40"); p("v_mov_b32 v13, s41"); p("v_mov_b32 v14, s42"); p("v_mov_b32 v11, 52")
            p("v_cmp_eq_u32 vcc, 0, v0"); p("s_and_saveexec_b64 s[44:45], vcc")
            p("buffer_store_dwordx3 v[12:14], v11, s[96:99], 0 offen")
            p("s_mov_b64 exec, s[44:45]")
            return
        p(f"s_add_u32 s96, s36, {65<<20}"); p("s_addc_u32 s97, s37, 0"); p(f"s_mov_b32 s98, {1<<20}"); p("s_mov_b32 s99, 0x00020000")
        p(f"s_lshl_b32 s92, s2, 2"); p(f"s_add_u32 s92, s92, s{sW}"); p("s_lshl_b32 s92, s92, 8")
        p("v_lshlrev_b32 v11, 2, v0")
        p("buffer_store_dword v10, v11, s[96:99], s92 offen")
    def loads(self, b):
        m = self.o["ld_mod"]
        G = []
        G.append([ins(f"s_add_u32 s{sT0}, s{sBo}, s{sRB}"),
                  ins(f"buffer_load_dwordx4 {rng('a', BF(b, 0), 4)}, v4, s[{SO}:{SO+3}], s{sT0} offen {m}")])
        for qt in range(1, 4):
            G.append([ins(f"buffer_load_dwordx4 {rng('a', BF(b, qt), 4)}, v4, s[{SO}:{SO+3}], s{sT0} offen offset:{1024*qt} {m}")])
        G.append([ins(f"buffer_load_dwordx4 {rng('a', BF(b, 4), 4)}, v5, s[{SO}:{SO+3}], s{sT0} offen {m}")])
        G.append([ins(f"buffer_load_dwordx4 {rng('a', BF(b, 5), 4)}, v5, s[{SO}:{SO+3}], s{sT0} offen offset:1024 {m}")])
        for pr in range(4):
            t = sT1 if pr % 2 == 0 else sT0
            G.append([ins(f"s_add_u32 s{t}, s{sA+pr}, s{sRA}"),
                      ins(f"buffer_load_dwordx4 {rng('a', AF(b, 2*pr), 4)}, v4, s[{SWT}:{SWT+3}], s{t} offen {m}")])
            G.append([ins(f"buffer_load_dwordx4 {rng('a', AF(b, 2*pr+1), 4)}, v4, s[{SWT}:{SWT+3}], s{t} offen offset:1024 {m}")])
        G[-1] += [ins(f"s_add_u32 s{sRA}, s{sRA}, 8192"), ins(f"s_and_b32 s{sRA}, s{sRA}, 0x3ffff"), ins(f"s_add_u32 s{sRB}, s{sRB}, 6144"),
                  ins(f"s_cmp_eq_u32 s{sRA}, 0"), ins(f"s_cselect_b32 s{sRB}, 0, s{sRB}")]
        return G
    def step(self, t, load):
        p = self.p
        b = t % NBUF
        G = self.loads((t + NBUF - 1) % NBUF) if load else []
        n = 0
        for nu in range(8):
            for qt in range(6):
                p.add(mfma(acc(nu, qt), "v", AF(b, nu), "a", BF(b, qt), "a", acc(nu, qt)))
                if n % 3 == 1 and n//3 < len(G):
                    for x in G[n//3]: p.add(x)
                n += 1
    def build(self):
        p = self.p
        p("s_cmp_ge_u32 s2, 256")
        p("s_cbranch_scc1 K3_END")
        p("s_load_dwordx2 s[34:35], s[0:1], 80")
        p("s_load_dwordx2 s[36:37], s[0:1], 96")
        p("v_lshrrev_b32 v1, 6, v0"); p("v_and_b32 v0, 63, v0"); p(f"v_readfirstlane_b32 s{sW}, v1")
        p("s_and_b32 s40, s2, 7"); p("s_lshr_b32 s41, s2, 3")
        p(f"s_lshr_b32 s{sP}, s40, 2")
        p("s_and_b32 s42, s40, 3"); p("s_lshl_b32 s42, s42, 3"); p("s_and_b32 s43, s41, 7"); p("s_add_u32 s42, s42, s43")
        p(f"s_lshr_b32 s{sB}, s42, 1"); p(f"s_and_b32 s{sRH}, s42, 1"); p(f"s_lshr_b32 s{sNB}, s41, 3")
        p("s_waitcnt lgkmcnt(0)")
        p(f"s_mov_b32 s{SO}, s36"); p(f"s_mov_b32 s{SO+1}, s37"); p(f"s_mov_b32 s{SO+2}, {O_BYTES}"); p(f"s_mov_b32 s{SO+3}, 0x00020000")
        p(f"s_add_u32 s{SWT}, s36, {WOT_OFF}"); p(f"s_addc_u32 s{SWT+1}, s37, 0"); p(f"s_mov_b32 s{SWT+2}, {WOT_BYTES}"); p(f"s_mov_b32 s{SWT+3}, 0x00020000")
        p(f"s_mov_b32 s{SOUT}, s34"); p(f"s_mov_b32 s{SOUT+1}, s35"); p(f"s_mov_b32 s{SOUT+2}, {OUT_BYTES}"); p(f"s_mov_b32 s{SOUT+3}, 0x00020000")
        p(f"s_lshl_b32 s42, s{sP}, 2"); p(f"s_add_u32 s42, s42, s{sNB}"); p("s_lshl_b32 s42, s42, 7"); p(f"s_lshl_b32 s43, s{sW}, 5"); p("s_add_u32 s42, s42, s43"); p("s_lshl_b32 s42, s42, 13")
        for pr in range(4):
            p(f"s_add_u32 s43, s{sW}, {pr}"); p("s_and_b32 s43, s43, 3"); p("s_lshl_b32 s43, s43, 11"); p(f"s_add_u32 s{sA+pr}, s42, s43")
        p(f"s_lshl_b32 s42, s{sP}, 4"); p(f"s_add_u32 s42, s42, s{sB}"); p("s_lshl_b32 s42, s42, 1"); p(f"s_add_u32 s42, s42, s{sRH}"); p("s_lshl_b32 s42, s42, 7")
        p(f"s_lshl_b32 s43, s{sW}, 5"); p("s_add_u32 s42, s42, s43"); p(f"s_mul_i32 s{sBo}, s42, 6144")
        p(f"s_mul_i32 s42, s{sB}, 192"); p(f"s_mul_i32 s43, s{sRH}, 96"); p("s_add_u32 s42, s42, s43"); p("s_lshl_b32 s42, s42, 11")
        p(f"s_lshl_b32 s43, s{sP}, 10"); p("s_add_u32 s42, s42, s43"); p(f"s_lshl_b32 s43, s{sNB}, 8"); p("s_add_u32 s42, s42, s43")
        p(f"s_lshl_b32 s43, s{sW}, 6"); p(f"s_add_u32 s{sOut}, s42, s43")
        kr = self.o.get("krot", 0)
        p("s_and_b32 s43, s41, 7"); p(f"s_add_u32 s43, s43, s{sNB}"); p(f"s_mul_i32 s43, s43, {kr}"); p("s_and_b32 s43, s43, 31")
        p(f"s_lshl_b32 s{sRA}, s43, 13"); p(f"s_mul_i32 s{sRB}, s43, 6144")
        p("v_lshlrev_b32 v4, 4, v0")
        p("v_add_u32 v5, 4096, v4")
        self.stamp()
        for t in range(NBUF-1):
            for g in self.loads(t):
                for x in g: p.add(x)
        for r in range(192): p(f"v_mov_b32 v{ACC+r}, 0")
        p("s_mov_b32 s44, 7")
        for k in range(7):
            p.raw(f"@@LB k3 {k}")
            for t in range(4*k, 4*k+4): self.step(t, True)
            p("s_sub_u32 s44, s44, 1"); p("s_cmp_lg_u32 s44, 0"); p("s_cbranch_scc1 L_k3")
            p.raw(f"@@LE k3 {k}")
        self.stamp()
        for t in range(28, 32): self.step(t, t + NBUF - 1 < 32)
        self.stamp()
        for pr in range(1, 4):
            p(f"s_add_u32 s42, s{sW}, {pr}"); p("s_and_b32 s42, s42, 3"); p("s_mul_i32 s42, s42, 36864"); p(f"s_add_u32 s42, s42, {(pr-1)*12288}")
            p(f"v_add_u32 v{5+pr}, s42, v4")
        p(f"s_mul_i32 s42, s{sW}, 36864"); p("v_add_u32 v9, s42, v4")
        for pr in range(1, 4):
            for par in range(2):
                for qt in range(6):
                    a = acc(2*pr + par, qt)
                    p(f"ds_write_b128 v{5+pr}, v[{a}:{a+3}] offset:{(par*6 + qt)*1024}")
        p("s_waitcnt lgkmcnt(0)")
        p("s_barrier")
        for sl in range(3):
            for par in range(2):
                for qt in range(6):
                    a = acc(2*(sl+1) + par, qt)
                    p(f"ds_read_b128 v[{a}:{a+3}], v9 offset:{sl*12288 + (par*6 + qt)*1024}")
        p("v_and_b32 v1, 15, v0"); p("v_lshrrev_b32 v2, 4, v0"); p("v_lshlrev_b32 v1, 11, v1"); p("v_lshl_add_u32 v3, v2, 4, v1")
        for qt in range(6):
            for par in range(2):
                a = acc(par, qt)
                for sl in range(3):
                    s = acc(2*(sl+1) + par, qt)
                    for r in range(4): p(f"v_add_f32 v{a+r}, v{a+r}, v{s+r}")
            a0, a1 = acc(0, qt), acc(1, qt)
            t0 = 12 + (qt % 4)*4
            p(f"v_cvt_pk_bf16_f32 v{t0}, v{a0}, v{a0+1}"); p(f"v_cvt_pk_bf16_f32 v{t0+1}, v{a0+2}, v{a0+3}")
            p(f"v_cvt_pk_bf16_f32 v{t0+2}, v{a1}, v{a1+1}"); p(f"v_cvt_pk_bf16_f32 v{t0+3}, v{a1+2}, v{a1+3}")
            p(f"s_add_u32 s{sT0}, s{sOut}, {qt*16*2048}")
            p(f"buffer_store_dwordx4 v[{t0}:{t0+3}], v3, s[{SOUT}:{SOUT+3}], s{sT0} offen {self.o['st_mod']}")
        self.stamp()
        p("s_waitcnt vmcnt(0)")
        self.stamp()
        self.stamp_flush()
        p("s_waitcnt vmcnt(0)")
        p.raw("K3_END:")
        p("s_endpgm")
        L, st = finalize(p.L)
        return fold(L), st

if __name__ == "__main__":
    L, st = K3().build(); print(st, len(L))
```

```python
from dsl import *
import struct

def f32(x): return "0x%08x" % struct.unpack("<I", struct.pack("<f", x))[0]

NB, SQ, DM, H, SK, DH = 16, 192, 512, 32, 512, 128
X_BYTES = NB*SQ*DM*2
KV_BYTES = NB*H*SK*DH*2
W_BYTES = DM*H*DH*2
O_BYTES = 2*NB*2*128*6*1024
WOT_OFF = O_BYTES
WOT_BYTES = 2*4*128*8*1024
OUT_BYTES = NB*SQ*1024*2

PHI = 65536
WSLOT = [65536, 81920, 98304]
XA, XB = 114688, 139264
DROP = 0x30000

ACC = 64
def acc(T, qt): return ACC + (T*6 + qt)*4
SB = 8
def S(buf, kt): return SB + buf*8 + kt*4
PB = 24
def P(buf): return PB + buf*4
LS = 32
KA = 38
VA = 42
DV = 50
WA = 54
XAD = 58
WD = [60, 61, 2, 3]
XD = [62, 63, 6, 7]
VST = 4
def Q(qt, ks): return (qt*4 + ks)*4
def OS(n): return n*4
def KF(buf, kt, ks): return 96 + buf*32 + (kt*4 + ks)*4
def VF(buf, dt): return 160 + buf*32 + dt*4
def WF(T): return 96 + T*4
def XF(buf, qt): return 128 + buf*24 + qt*4
ONES = 224
def LA(qt): return 228 + qt*4
SX, SW, SKV, SO, SWO, SWT = 4, 8, 12, 16, 20, 24
sW, sHP, sRH, sP, sB, sHG = 28, 29, 30, 31, 32, 33
sKVo, sKVl, sWo, sWl, sXo, sXl, sOo = 34, 35, 36, 37, 38, 39, 40
sT0, sT1, sC = 41, 42, 43
sWOo, sWTo = 44, 45
sItem, sCnt = 46, 47
sTile, sM, sTh1, sTh2, sWarmW, sWarmX, sWoM, sDrop, sTc, sRot = 74, 75, 76, 77, 78, 79, 80, 81, 84, 85
sT2 = 83
sWR, sXR = 78, 79

MF = "v_mfma_f32_16x16x32_bf16"
def mfma(d, dk, a, ak, b, bk, c=None):
    cs = "0" if c is None else rng(dk, c, 4)
    return ins(f"{MF} {rng(dk,d,4)}, {rng(ak,a,4)}, {rng(bk,b,4)}, {cs}")

class K2:
    def __init__(self, opts=None):
        self.o = dict(nt="nt", w_mod="", x_mod="", store_mod="sc1", last_store_mod="sc1", timing=False, msum=True, warm=False, qrot=True, drop=[])
        if opts: self.o.update(opts)
        self.p = Prog()
        self.phase = ""

    def tile_addr(self):
        if not self.o.get("rot"):
            return [ins(f"s_add_u32 s{sTile}, s{sKVo}, s{sTc}"), ins(f"s_add_u32 s{sTc}, s{sTc}, 8192")]
        return [ins(f"s_add_u32 s{sTile}, s{sTc}, s{sRot}"), ins(f"s_and_b32 s{sTile}, s{sTile}, 0x1ffff"),
                ins(f"s_and_b32 s{sT0}, s{sTc}, 0x20000"), ins(f"s_add_u32 s{sTile}, s{sTile}, s{sT0}"),
                ins(f"s_add_u32 s{sTile}, s{sTile}, s{sKVo}"), ins(f"s_add_u32 s{sTc}, s{sTc}, 8192")]
    def dma_kv(self, tag, m0a, m0b, pre=()):
        nt = self.o['nt']
        G = []
        g = list(pre) + self.tile_addr() + [ins(m0a)]
        for k in range(4):
            g.append(ins(f"buffer_load_dwordx4 v{DV+k}, s[{SKV}:{SKV+3}], s{sTile} offen offset:{1024*k} {nt} lds", tag=tag))
            G.append(g); g = []
        g = [ins(f"s_add_u32 s{sT0}, s{sTile}, 4096"), ins(m0b)]
        for k in range(4):
            g.append(ins(f"buffer_load_dwordx4 v{DV+k}, s[{SKV}:{SKV+3}], s{sT0} offen offset:{1024*k} {nt} lds", tag=tag))
            G.append(g); g = []
        return G
    def dma_kv_abs(self, tag, slot):
        o = (slot >> 1)*PHI + (slot & 1)*8192
        return self.dma_kv(tag, f"s_add_u32 m0, s{sKVl}, {o}", f"s_add_u32 m0, s{sKVl}, {o + 4096}")
    def kv_pieces(self, tile, a, b):
        G = self.dma_kv_abs(("kv", tile), tile % 4)
        out = G[a:b]
        if a not in (0, 4):
            slot = tile % 4
            o = (slot >> 1)*PHI + (slot & 1)*8192 + (4096 if a >= 4 else 0)
            out[0] = [ins(f"s_add_u32 m0, s{sKVl}, {o}")] + out[0]
        return out
    def dma_w(self, tag, base_reg, goff, m0txt, rot=None):
        G = []
        if rot is None: g = [ins(f"s_add_u32 s{sT1}, s{base_reg}, {goff}")]
        else:
            g = [ins(f"s_add_u32 s{sT1}, s{sWR}, {rot*262144}"), ins(f"s_and_b32 s{sT1}, s{sT1}, 0x3fffff"), ins(f"s_add_u32 s{sT1}, s{sT1}, s{base_reg}")]
            if goff: g.append(ins(f"s_add_u32 s{sT1}, s{sT1}, {goff}"))
        g.append(ins(m0txt))
        for n in range(4):
            g.append(ins(f"buffer_load_dwordx4 v{WD[n]}, s[{SW}:{SW+3}], s{sT1} offen offset:{1024*n} {self.o['w_mod']} lds", tag=tag))
            G.append(g); g = []
        return G
    def x_soff(self, base_reg, tt):
        if not self.o.get("qrot"): return [ins(f"s_add_u32 s{sT1}, s{base_reg}, {tt*128}")]
        return [ins(f"s_add_u32 s{sT1}, s{sXR}, {tt*128}"), ins(f"s_and_b32 s{sT1}, s{sT1}, 1023"), ins(f"s_add_u32 s{sT1}, s{sT1}, s{base_reg}")]
    def dma_x(self, tag, base_reg, tt, m0a, m0b):
        G = []
        m = self.o['x_mod']
        g = self.x_soff(base_reg, tt) + [ins(m0a)]
        for n in range(4):
            g.append(ins(f"buffer_load_dwordx4 v{XD[n]}, s[{SX}:{SX+3}], s{sT1} offen offset:{1024*n} {m} lds", tag=tag))
            G.append(g); g = []
        g = [ins(f"s_add_u32 s{sT1}, s{sT1}, {4*8192}"), ins(m0b)]
        for n in range(2):
            g.append(ins(f"buffer_load_dwordx4 v{XD[n]}, s[{SX}:{SX+3}], s{sT1} offen offset:{1024*n} {m} lds", tag=tag))
            G.append(g); g = []
        return G
    def w_tile(self, t, nxt=0):
        m0 = f"s_add_u32 m0, s{sWl}, {WSLOT[t % 3]}"
        if self.o.get("qrot"): return self.dma_w(("w", t), sWo, nxt*256, m0, rot=t)
        return self.dma_w(("w", t), sWo, nxt*256 + t*262144, m0)
    def x_tile(self, tt):
        sl = XB if tt % 2 == 0 else XA
        return self.dma_x(("x", tt), sXo, tt, f"s_add_u32 m0, s{sXl}, {sl}", f"s_add_u32 m0, s{sXl}, {sl + 4096}")
    def warmup(self, nxt):
        if not self.o["warm"]: return []
        G = []
        def ld(v, srd, soff, off, mod):
            i = ins(f"buffer_load_dwordx4 a[252:255], v{v}, s[{srd}:{srd+3}], s{soff} offen offset:{off} {mod}", tag=("warm",))
            i.kind = "dma"; i.wr = set(); i.rd.discard("m0")
            return i
        for k in range(2):
            g = [ins(f"s_add_u32 s{sT1}, s{sWarmW}, {nxt*256 + k*262144}")]
            for n in range(4):
                g.append(ld(WD[n], SW, sT1, 1024*n, self.o['w_mod'])); G.append(g); g = []
        if nxt == 0 or self.o.get("warmx1", True):
            for k in range(2):
                g = [ins(f"s_add_u32 s{sT1}, s{sWarmX}, {k*128}")]
                for n in range(4):
                    g.append(ld(XD[n], SX, sT1, 1024*n, self.o['x_mod'])); G.append(g); g = []
                g = [ins(f"s_add_u32 s{sT1}, s{sT1}, {4*8192}")]
                for n in range(2):
                    g.append(ld(XD[n], SX, sT1, 1024*n, self.o['x_mod'])); G.append(g); g = []
        return G
    def next_item_prefetch(self, nxt=1):
        return self.w_tile(0, nxt) + self.x_tile(0) + self.w_tile(1, nxt) + self.w_tile(2, nxt) + self.x_tile(1)
    def dma_wo(self):
        G = []
        for half in range(2):
            g = [ins(f"s_add_u32 s{sT1}, s{sWOo}, {half*4096}"), ins(f"s_add_u32 m0, s{sWoM}, {half*4096}")]
            for n in range(4):
                g.append(ins(f"buffer_load_dwordx4 v{VST}, s[{SWO}:{SWO+3}], s{sT1} offen offset:{1024*n} nt lds", tag=("wo",)))
                G.append(g); g = []
        return G
    def o_store(self, n, mod, prev, force=False):
        g = []
        if n % 4 == 0 or force: g.append(ins(f"s_add_u32 s{sT2}, s{sOo}, {((n & ~3)*1024 - (4*6144 if prev else 0)) & 0xffffffff}"))
        g.append(ins(f"buffer_store_dwordx4 {rng('a', OS(n), 4)}, v{VST}, s[{SO}:{SO+3}], s{sT2} offen offset:{(n % 4)*1024} {mod}", tag=("o",)))
        return g
    def rd_k(self, par, kt, ks):
        return ins(f"ds_read_b128 {rng('a', KF(par, kt, ks), 4)}, v{KA+ks} offset:{par*8192 + kt*4096}")
    def rd_v(self, par, dt, kt):
        return ins(f"ds_read_b64_tr_b16 {rng('a', VF(par, dt) + 2*kt, 2)}, v{VA+dt} offset:{par*8192 + kt*4096}")
    def rd_w(self, t, T, h2):
        ks, u = T >> 1, T & 1
        return ins(f"ds_read_b64_tr_b16 {rng('a', WF(T) + 2*h2, 2)}, v{WA+ks} offset:{(t % 3)*16384 + h2*2048 + 8*u}")
    def rd_x(self, t, qt):
        tt = t >> 1
        return ins(f"ds_read_b128 {rng('a', XF(t % 2, qt), 4)}, v{XAD + (t & 1)} offset:{(24576 if tt % 2 == 0 else 0) + qt*2048}")

    def prologue(self):
        p = self.p
        p("s_cmp_ge_u32 s2, 256")
        p("s_cbranch_scc1 K2_END")
        p("s_load_dwordx16 s[48:63], s[0:1], 0")
        p("s_load_dwordx8 s[64:71], s[0:1], 64")
        p("s_load_dwordx2 s[72:73], s[0:1], 96")
        p(f"v_lshrrev_b32 v1, 6, v0")
        p(f"v_and_b32 v0, 63, v0")
        p(f"v_readfirstlane_b32 s{sW}, v1")
        p("s_and_b32 s86, s2, 7")
        p("s_lshr_b32 s87, s2, 3")
        p(f"s_lshr_b32 s{sP}, s86, 2")
        p("s_and_b32 s88, s86, 1"); p("s_lshl_b32 s88, s88, 3"); p("s_and_b32 s82, s87, 7")
        p(f"s_add_u32 s{sB}, s88, s82")
        p("s_lshr_b32 s88, s86, 1"); p("s_and_b32 s88, s88, 1"); p("s_lshl_b32 s88, s88, 2"); p("s_lshr_b32 s83, s87, 3")
        p(f"s_add_u32 s{sHG}, s88, s83")
        p(f"s_and_b32 s{sHP}, s{sW}, 1")
        p(f"s_lshr_b32 s{sRH}, s{sW}, 1")
        p("s_waitcnt lgkmcnt(0)")
        p(f"s_cmp_eq_u32 s{sP}, 0")
        p(f"s_cselect_b32 s{SX}, s48, s58"); p(f"s_cselect_b32 s{SX+1}, s49, s59")
        p(f"s_cselect_b32 s{SW}, s54, s64"); p(f"s_cselect_b32 s{SW+1}, s55, s65")
        p(f"s_cselect_b32 s{SWO}, s56, s66"); p(f"s_cselect_b32 s{SWO+1}, s57, s67")
        p(f"s_cselect_b32 s90, s50, s60"); p(f"s_cselect_b32 s91, s51, s61")
        p(f"s_cselect_b32 s92, s52, s62"); p(f"s_cselect_b32 s93, s53, s63")
        p(f"s_cmp_eq_u32 s{sRH}, 0")
        p(f"s_cselect_b32 s{SKV}, s90, s92"); p(f"s_cselect_b32 s{SKV+1}, s91, s93")
        p(f"s_cselect_b32 s94, 64, 128"); p(f"s_cselect_b32 s95, 128, 0"); p("s_mov_b32 s96, 128"); p(f"s_cselect_b32 s96, 192, s96")
        p(f"s_cselect_b32 s97, 0, 1")
        p(f"s_cselect_b32 s{sKVl}, 0, 32768")
        for r, n in ((SX, X_BYTES), (SW, W_BYTES), (SWO, W_BYTES), (SKV, KV_BYTES)):
            p(f"s_mov_b32 s{r+2}, {n}"); p(f"s_mov_b32 s{r+3}, 0x00020000")
        p(f"s_mov_b32 s{SO}, s72"); p(f"s_mov_b32 s{SO+1}, s73"); p(f"s_mov_b32 s{SO+2}, 0"); p(f"s_mov_b32 s{SO+3}, 0x00020000")
        p(f"s_add_u32 s{SWT}, s72, {WOT_OFF}"); p(f"s_addc_u32 s{SWT+1}, s73, 0"); p(f"s_mov_b32 s{SWT+2}, {WOT_BYTES}"); p(f"s_mov_b32 s{SWT+3}, 0x00020000")
        p(f"s_lshl_b32 s88, s{sB}, 5"); p(f"s_lshl_b32 s89, s{sHG}, 2"); p("s_add_u32 s88, s88, s89"); p(f"s_lshl_b32 s89, s{sHP}, 1"); p("s_add_u32 s88, s88, s89")
        p(f"s_lshl_b32 s{sKVo}, s88, 17")
        p(f"s_lshl_b32 s89, s{sHP}, 14"); p(f"s_add_u32 s{sKVl}, s{sKVl}, s89")
        p(f"s_lshl_b32 s88, s{sW}, 16"); p(f"s_lshl_b32 s89, s{sHG}, 10"); p(f"s_add_u32 s{sWo}, s88, s89")
        p(f"s_lshl_b32 s{sWl}, s{sW}, 12")
        p(f"s_lshl_b32 s88, s82, 19"); p(f"s_add_u32 s{sWarmW}, s{sWo}, s88")
        p(f"s_mul_i32 s88, s{sB}, 196608"); p(f"s_mul_i32 s89, s{sW}, 49152"); p(f"s_add_u32 s{sXo}, s88, s89")
        p(f"s_mul_i32 s{sXl}, s{sW}, 6144")
        p(f"s_lshl_b32 s88, s83, 8"); p(f"s_add_u32 s{sWarmX}, s{sXo}, s88")
        if self.o.get("qrot"):
            assert not self.o["warm"]
            p("s_lshl_b32 s88, s83, 1"); p("s_add_u32 s88, s88, s82"); p("s_and_b32 s88, s88, 7")
            p(f"s_lshl_b32 s{sWR}, s88, 19"); p(f"s_lshl_b32 s{sXR}, s88, 7")
        p(f"s_mov_b32 s{sDrop}, {DROP}")
        p("s_mul_i32 s88, s2, 5"); p("s_lshr_b32 s89, s2, 4"); p("s_add_u32 s88, s88, s89"); p("s_and_b32 s88, s88, 15"); p(f"s_lshl_b32 s{sRot}, s88, 13")
        p(f"s_lshl_b32 s88, s{sP}, 4"); p(f"s_add_u32 s88, s88, s{sB}"); p("s_lshl_b32 s88, s88, 1"); p(f"s_add_u32 s88, s88, s{sRH}")
        p("s_lshl_b32 s88, s88, 7"); p(f"s_lshl_b32 s89, s{sHG}, 4"); p("s_add_u32 s88, s88, s89"); p(f"s_lshl_b32 s89, s{sHP}, 3"); p("s_add_u32 s88, s88, s89")
        p(f"s_mul_i32 s{sOo}, s88, 6144")
        p("s_and_b32 s88, s86, 3"); p("s_lshl_b32 s88, s88, 5"); p("s_add_u32 s88, s88, s87")
        p(f"s_lshl_b32 s89, s88, 15"); p(f"s_lshl_b32 s98, s{sW}, 13"); p(f"s_add_u32 s{sWOo}, s89, s98")
        p(f"s_lshl_b32 s89, s{sP}, 2"); p(f"s_add_u32 s89, s89, s{sW}"); p("s_lshl_b32 s89, s89, 7"); p("s_add_u32 s89, s89, s88"); p(f"s_lshl_b32 s{sWTo}, s89, 13")
        p(f"s_mov_b32 s{sC}, {f32(1.4426950408889634*128**-0.5)}")
        p(f"s_mov_b32 s{sItem}, 0")
        i_, g_, r_, c_ = "v14", "v8", "v9", "v10"
        p(f"v_and_b32 {i_}, 15, v0"); p(f"v_lshrrev_b32 {g_}, 4, v0"); p(f"v_lshrrev_b32 {r_}, 2, {i_}"); p(f"v_and_b32 {c_}, 3, {i_}")
        p(f"v_lshlrev_b32 v{VST}, 4, v0")
        p("v_lshrrev_b32 v11, 5, v0"); p("v_and_b32 v12, 15, v0"); p("v_lshlrev_b32 v13, 2, v11"); p("v_xor_b32 v12, v12, v13"); p("v_lshlrev_b32 v12, 4, v12")
        p("v_lshl_add_u32 v12, v11, 13, v12"); p("v_bfe_u32 v13, v0, 4, 1"); p(f"v_lshl_add_u32 v{WD[0]}, v13, 9, v12")
        p(f"v_xor_b32 v{WD[1]}, 128, v{WD[0]}"); p(f"v_add_u32 v{WD[2]}, {2*15360}, v{WD[0]}"); p(f"v_add_u32 v{WD[3]}, {3*15360}, v{WD[1]}"); p(f"v_add_u32 v{WD[1]}, 15360, v{WD[1]}")
        p("v_lshrrev_b32 v11, 3, v0"); p("v_and_b32 v12, 7, v0"); p(f"v_xor_b32 v12, v12, {g_}"); p("v_lshlrev_b32 v12, 4, v12")
        p(f"v_lshl_add_u32 v{XD[0]}, v11, 10, v12"); p(f"v_xor_b32 v{XD[1]}, 64, v{XD[0]}")
        p(f"v_add_u32 v{XD[2]}, {2*7168}, v{XD[0]}"); p(f"v_add_u32 v{XD[3]}, {3*7168}, v{XD[1]}"); p(f"v_add_u32 v{XD[1]}, 7168, v{XD[1]}")
        p(f"v_lshlrev_b32 v11, s97, {g_}"); p(f"v_xor_b32 v11, v11, {i_}"); p("v_lshlrev_b32 v11, 4, v11"); p(f"v_lshl_add_u32 v{DV}, {g_}, 8, v11")
        for k in range(1, 4): p(f"v_xor_b32 v{DV+k}, s{93+k}, v{DV}")
        self.lane = (i_, g_, r_, c_)
    def prologue2(self):
        p = self.p
        i_, g_, r_, c_ = self.lane
        p(f"s_lshl_b32 s88, s{sHP}, 14")
        p(f"v_xor_b32 v11, {g_}, {i_}"); p("v_lshlrev_b32 v11, 4, v11"); p(f"v_lshl_add_u32 v11, {i_}, 8, v11"); p(f"v_add_u32 v{KA}, s88, v11")
        for ks in range(1, 4): p(f"v_xor_b32 v{KA+ks}, {64*ks}, v{KA}")
        p(f"v_and_b32 v11, 1, {g_}"); p("v_lshlrev_b32 v11, 2, v11"); p(f"v_add_u32 v11, v11, {r_}"); p("v_lshlrev_b32 v11, 1, v11")
        p(f"v_lshrrev_b32 v12, 1, {c_}"); p("v_xor_b32 v11, v11, v12"); p("v_lshlrev_b32 v11, 4, v11")
        p(f"v_and_b32 v12, 1, {c_}"); p("v_lshl_add_u32 v11, v12, 3, v11")
        p(f"v_lshl_add_u32 v12, {g_}, 2, {r_}"); p("v_lshl_add_u32 v11, v12, 8, v11")
        p("s_add_u32 s89, s88, 32768"); p(f"v_add_u32 v{VA}, s89, v11")
        for dt in range(1, 8): p(f"v_xor_b32 v{VA+dt}, {32*dt}, v{VA}")
        p(f"s_lshl_b32 s88, s{sHP}, 4")
        p(f"v_add_u32 v11, s88, {c_}"); p(f"v_lshlrev_b32 v12, 2, {r_}"); p("v_xor_b32 v11, v11, v12"); p("v_lshlrev_b32 v11, 4, v11")
        p(f"v_lshl_add_u32 v12, {g_}, 3, {r_}"); p("v_lshl_add_u32 v11, v12, 9, v11"); p(f"v_add_u32 v{WA}, {WSLOT[0]}, v11")
        for ks in range(1, 4): p(f"v_xor_b32 v{WA+ks}, {64*ks}, v{WA}")
        p(f"s_mul_i32 s88, s{sRH}, {96*128}"); p(f"s_add_u32 s88, s88, {XA}")
        p(f"v_lshrrev_b32 v11, 1, {i_}"); p(f"v_xor_b32 v11, v11, {g_}"); p("v_lshlrev_b32 v11, 4, v11"); p(f"v_lshl_add_u32 v11, {i_}, 7, v11"); p(f"v_add_u32 v{XAD}, s88, v11")
        p(f"v_xor_b32 v{XAD+1}, 64, v{XAD}")
        if self.o["msum"]:
            p("v_mov_b32 v11, 0x3f803f80")
            for r in range(4): p(f"v_accvgpr_write_b32 a{ONES+r}, v11")

    def stamp(self, fine=False):
        if not self.o["timing"]: return
        if fine and not self.o.get("fine"): return
        p = self.p
        p(f"s_memrealtime s[88:89]")
        p(f"s_memtime s[90:91]")
        p("s_waitcnt lgkmcnt(0)")
        p("s_mov_b32 m0, s99"); p("s_nop 1")
        p(f"v_writelane_b32 v5, s88, m0")
        p(f"v_writelane_b32 v1, s90, m0")
        p("s_add_u32 s99, s99, 1")
    def stamp_flush(self):
        if not self.o["timing"]: return
        p = self.p
        if self.o.get("dbg") is not None:
            p(f"s_cmp_eq_u32 s2, {self.o['dbg']}"); p("s_cselect_b32 s90, 64, 0"); p(f"s_cmp_eq_u32 s{sW}, 0"); p("s_cselect_b32 s90, s90, 0")
            p("s_mov_b32 s88, s70"); p("s_mov_b32 s89, s71"); p("s_mov_b32 s91, 0x00020000")
            src = "v1" if self.o.get("dbgcyc") else "v5"
            p("v_lshlrev_b32 v6, 2, v0")
            p(f"buffer_store_dword {src}, v6, s[88:91], 0 offen")
            p("s_add_u32 s88, s88, 512"); p("s_addc_u32 s89, s89, 0"); p("s_cmp_lg_u32 s90, 0"); p("s_cselect_b32 s90, 52, 0")
            p(f"buffer_store_dword {src}, v6, s[88:91], 0 offen")
            return
        p(f"s_add_u32 s88, s72, {64<<20}"); p("s_addc_u32 s89, s73, 0"); p(f"s_mov_b32 s90, {1<<20}"); p("s_mov_b32 s91, 0x00020000")
        p(f"s_lshl_b32 s92, s2, 2"); p(f"s_add_u32 s92, s92, s{sW}"); p("s_lshl_b32 s92, s92, 9")
        p("v_lshlrev_b32 v6, 2, v0")
        p("buffer_store_dword v5, v6, s[88:91], s92 offen")
        p("buffer_store_dword v1, v6, s[88:91], s92 offen offset:256")

    def emit_groups(self, groups):
        for g in groups:
            for x in g: self.p.add(x)
    def keep(self, x):
        drop = self.o["drop"]; ph = self.phase
        if x.kind == "dma" and ph + "_dma" in drop: return False
        if x.kind == "ds_read" and ph + "_lds" in drop: return False
        if x.kind == "barrier" and ph + "_bar" in drop: return False
        if x.kind == "trans" and ph + "_exp" in drop: return False
        if x.kind == "valu" and x.txt.startswith("v_add_f32") and ph + "_add" in drop: return False
        if x.kind == "valu" and x.txt.startswith("v_cvt") and ph + "_cvt" in drop: return False
        if x.kind == "vstore" and ph + "_st" in drop: return False
        return True
    def run(self, mf, chains, pre=()):
        ch = [[([x for x in g if self.keep(x)], lo, hi) for g, lo, hi in c] for c in chains]
        ch = [[it for it in c if it[0]] for c in ch]
        if self.phase + "_mfma" in self.o["drop"]: mf = [ins("s_nop 0") for _ in mf]
        self.p.extend(gapfill(mf, ch, pre=[x for x in pre if self.keep(x)]))

    def spaced(self, G, lo, hi):
        n = len(G)
        out = []
        for k, g in enumerate(G):
            pos = lo + (k*(hi - lo + 1))//n
            out.append((g, pos, pos + 1))
        return out
    def qstep(self, t, stores=()):
        p = self.p
        self.phase = "qp"
        mf = []
        for T in range(8):
            for qt in range(6):
                mf.append(mfma(acc(T, qt), "v", WF(T), "a", XF(t % 2, qt), "a", None if t == 0 else acc(T, qt)))
        need = []
        for qt in range(6): need += R("a", XF(t % 2, qt), 4)
        for T in range(6): need += R("a", WF(T), 4)
        pre = [wait_regs(need)]
        chains = []
        BG = 11
        slow = []
        if t < 15:
            bar = [wait_tag(("w", t+1))]
            if t % 2 == 1: bar.append(wait_tag(("x", (t+1) >> 1)))
            chains.append([(bar, BG-1, BG-1), ([ins("s_waitcnt lgkmcnt(0)"), ins("s_barrier")], BG, BG)])
            cw = []
            for T in range(8):
                lo = max(BG+1, 6*T + 5)
                cw += [([self.rd_w(t+1, T, 0)], lo, min(47, lo + 8)), ([self.rd_w(t+1, T, 1)], lo, min(47, lo + 9))]
            chains.append(cw)
            chains.append([([self.rd_x(t+1, qt)], BG+1, 40) for qt in range(6)])
            GW = self.w_tile(t+3) if t + 3 <= 15 else []
            early = []; GX = []
            if t % 2 == 1 and (t >> 1) + 2 <= 7: GX = self.x_tile((t >> 1) + 2)[:3]
            if t % 2 == 0 and t >= 2 and ((t-1) >> 1) + 2 <= 7:
                tt = ((t-1) >> 1) + 2; sl = XB if tt % 2 == 0 else XA
                early = self.x_tile(tt)[3:]
                early[0] = self.x_soff(sXo, tt) + [ins(f"s_add_u32 m0, s{sXl}, {sl}")] + early[0]
            if t == 0: early = self.w_tile(2) + self.x_tile(1)
            late = GW + GX
            plan = self.o.get("kvplan", {10: (0, 0, 4), 11: (0, 4, 8), 12: (1, 0, 4), 13: (1, 4, 8)})
            if t in plan or str(t) in plan:
                slow = self.kv_pieces(*(plan.get(t) or plan.get(str(t))))
            c = []
            if t == 0:
                c = self.spaced(early + late, 0, 47); early = []; late = []
            if early:
                span = BG - 1
                for k, g in enumerate(early): c.append((g, int(k*span/len(early)), int(k*span/len(early)) + 1))
            hi = 47 if not (slow or stores) else (39 if len(slow) <= 2 else 32)
            if late: c += self.spaced(late, BG+2, hi)
            if slow: c += self.spaced(slow, (41 if len(slow) <= 2 else 34) if late else BG+2, 47)
            if c: chains.append(c)
        else:
            chains.append([([ins("s_waitcnt lgkmcnt(0)"), ins("s_barrier")], BG, BG)])
            G = self.kv_pieces(2, 0, 4 if self.o.get("look", 3) == 3 else 8)
            chains.append(self.spaced(G, BG+1, 47))
        if stores:
            lo = 26 if t == 12 else 0
            if self.o.get("stA"): lo = 41
            chains.append(self.spaced([self.o_store(n, self.o["store_mod"], True, force=bool(self.o.get("stA")) and n % 2 == 0) for n in stores], lo, 47))
        self.run(mf, chains, pre)

    def qproj_a(self):
        p = self.p
        p(f"s_lshl_b32 s{sTc}, s{sItem}, 17")
        p.wait_tag(("w", 0)); p.wait_tag(("x", 0))
        p("s_barrier")
        self.stamp()
        for T in range(8):
            p.add(self.rd_w(0, T, 0)); p.add(self.rd_w(0, T, 1))
        for qt in range(6): p.add(self.rd_x(0, qt))
        for t in range(12):
            self.qstep(t, [2*t, 2*t+1] if self.o.get("stA") else ())
            if t in (3, 7, 11): self.stamp(True)
    def qproj_b(self, last):
        p = self.p
        st = (lambda a, b: list(range(a, b))) if (last and not self.o.get("stA")) else (lambda a, b: [])
        self.qstep(12, st(0, 3)); self.qstep(13, st(3, 9)); self.qstep(14, st(9, 15)); self.qstep(15, st(15, 18))
        self.stamp()
        for kt in range(2):
            for ks in range(4): p.add(self.rd_k(0, kt, ks))
        tmp = S(0, 0)
        rest = self.kv_pieces(2, 4, 8) if self.o.get("look", 3) == 3 else []
        late = st(18, 24)
        for qt in range(6):
            for ks in range(4):
                n = qt*4 + ks
                a0, a1 = acc(2*ks, qt), acc(2*ks+1, qt)
                for r in range(4): p(f"v_mul_f32 v{a0+r}, s{sC}, v{a0+r}")
                for r in range(4): p(f"v_mul_f32 v{a1+r}, s{sC}, v{a1+r}")
                t0 = tmp + (n % 4)*4
                p(f"v_cvt_pk_bf16_f32 v{t0}, v{a0}, v{a0+1}")
                p(f"v_cvt_pk_bf16_f32 v{t0+1}, v{a0+2}, v{a0+3}")
                p(f"v_cvt_pk_bf16_f32 v{t0+2}, v{a1}, v{a1+1}")
                p(f"v_cvt_pk_bf16_f32 v{t0+3}, v{a1+2}, v{a1+3}")
                if late and n % 2 == 0 and n < 18:
                    m = late.pop(0)
                    for x in self.o_store(m, self.o["store_mod"], True, force=True): p.add(x)
                for r in range(4): p(f"v_accvgpr_write_b32 a{Q(qt,ks)+r}, v{t0+r}")
                if rest and n % 4 == 3 and n >= 7:
                    for x in rest.pop(0): p.add(x)
            if qt < 4:
                for dt in (2*qt, 2*qt+1):
                    p.add(self.rd_v(0, dt, 0)); p.add(self.rd_v(0, dt, 1))
        assert not rest and not late

    def period(self, n, dma=(), pre=(), early=(), extra=()):
        p = self.p
        self.phase = "at"
        msum = self.o["msum"]
        j, pp = divmod(n, 6)
        qk = []; pv = []
        if n < 96:
            sb = n % 2
            for kt in range(2):
                for ks in range(4):
                    qk.append(mfma(S(sb, kt), "v", KF(j % 2, kt, ks), "a", Q(pp, ks), "a", None if ks == 0 else S(sb, kt)))
        if n >= 2:
            jj, qt = divmod(n-2, 6)
            pb = (n-2) % 2
            for dt in range(8):
                pv.append(mfma(acc(dt, qt), "v", VF(jj % 2, dt), "a", P(pb), "v", None if jj == 0 else acc(dt, qt)))
        mf = []
        for k in range(8):
            if qk: mf.append(qk[k])
            if pv: mf.append(pv[k])
        if n >= 2 and msum:
            mf.append(mfma(LA(qt), "a", ONES, "a", P(pb), "v", None if jj == 0 else LA(qt)))
        nm = len(mf)
        sc = nm/17.0 if msum else nm/16.0
        def G(x): return min(nm-1, int(x*sc))
        chains = []
        if 1 <= n <= 96:
            jj2, qt2 = divmod(n-1, 6)
            sb = (n-1) % 2; pb2 = (n-1) % 2
            e = [S(sb, 0)+r for r in range(4)] + [S(sb, 1)+r for r in range(4)]
            chains.append([([ins(f"v_exp_f32 v{e[k]}, v{e[k]}")], G(2*k), G(2*k)) for k in range(8)])
            cv = []
            for k in range(8):
                if not msum: cv.append(([ins(f"v_add_f32 v{LS+qt2}, v{LS+qt2}, v{e[k]}")], G(2*k+1), G(2*k+1)))
                if k % 2 == 1:
                    cv.append(([ins(f"v_cvt_pk_bf16_f32 v{P(pb2)+k//2}, v{e[k-1]}, v{e[k]}")], G(2*k+1), G(2*k+1)))
            chains.append(cv)
        if n >= 2:
            jb, q = divmod(n-2, 6)
            if jb + 1 <= 15:
                par = (jb+1) % 2
                rds = []
                if q in (0, 1): rds = [self.rd_k(par, q, ks) for ks in range(4)]
                else:
                    for dt in range((q-2)*2, (q-2)*2+2): rds += [self.rd_v(par, dt, 0), self.rd_v(par, dt, 1)]
                gp = [1, 5, 9, 13] if q != 5 else [1, 5, 9, 10]
                chains.append([([x], G(gp[k]), G(gp[k])) for k, x in enumerate(rds)])
        if dma:
            nd = sum(1 for x in dma if x.kind == "dma")
            slots = {0: [], 1: [16], 2: [11, 16], 4: [3, 7, 11, 16], 8: [2, 4, 6, 8, 10, 12, 14, 16]}.get(nd) or [int(3 + (16-3)*k/(nd-1)) for k in range(nd)]
            ch = []; seen = 0
            for x in dma:
                if x.kind == "dma":
                    g = G(slots[seen]); seen += 1
                    grp = [x] if x.meta.get("credit") is None else [ins(f"s_waitcnt vmcnt({x.meta['credit']})"), x]
                    ch.append((grp, g, g))
                else:
                    ch.append(([x], 0, nm-1))
            for k in range(len(ch)-2, -1, -1):
                if ch[k][0][-1].kind != "dma": ch[k] = (ch[k][0], 0, max(0, ch[k+1][2] - (1 if ch[k+1][0][-1].kind == "dma" else 0)))
            chains.append(ch)
        if early: chains.append([([x], 0, nm-1) for x in early])
        if extra: chains.append([(g, (k*nm)//len(extra), nm-1) for k, g in enumerate(extra)])
        self.run(mf, chains, pre)

    def body(self, j, dmaG, tog=(), nper=6, extra=()):
        bar = []
        if j + 1 <= 15: bar.append(wait_tag(("kv", j+1)))
        if extra: bar.append(wait_tag(("wo",)))
        bar += [ins("s_waitcnt lgkmcnt(0)"), ins("s_barrier")]
        if self.o.get("baracct"):
            b0 = [ins("s_memtime s[92:93]"), ins("s_waitcnt lgkmcnt(0)")]
            b1 = [ins("s_memtime s[94:95]"), ins("s_waitcnt lgkmcnt(0)")]
            b2 = [ins("s_memtime s[96:97]"), ins("s_waitcnt lgkmcnt(0)"), ins("s_sub_u32 s98, s94, s92"), ins("s_add_u32 s100, s100, s98"),
                  ins("s_sub_u32 s98, s96, s94"), ins("s_add_u32 s101, s101, s98")]
            bar = b0 + bar[:1] + b1 + bar[1:] + b2
        tk = [x for x in tog if any(f"v{KA+z}," in x.txt for z in range(4))]
        tv = [x for x in tog if x not in tk]
        flat = [x for g in dmaG for x in g]
        cr = self.o.get("credit")
        if cr is not None:
            for x in flat:
                if x.kind == "dma": x.meta["credit"] = cr
        nd = sum(1 for x in flat if x.kind == "dma")
        if nd == 8: cnt = self.o.get("dmacnt", [1, 1, 2, 1, 1, 2])
        else: cnt = [nd//6 + (1 if q < nd % 6 else 0) for q in range(6)]
        per = [[] for _ in range(6)]
        q = 0; seen = 0
        for x in flat:
            while q < 5 and seen >= cnt[q]: q += 1; seen = 0
            per[q].append(x)
            if x.kind == "dma": seen += 1
        for q in range(6):
            e = tv[:4] if q == 0 else (tv[4:] if q == 1 else [])
            ex = []
            if extra:
                n = len(extra); ex = extra[q*n//6:(q+1)*n//6]
            self.period(6*j + 2 + q, dma=per[q], pre=(bar + tk) if q == 0 else (), early=e, extra=ex)

    def tog(self):
        return [ins(f"v_xor_b32 v{KA+x}, {PHI}, v{KA+x}") for x in range(4)] + [ins(f"v_xor_b32 v{VA+x}, {PHI}, v{VA+x}") for x in range(8)]
    def attention_shared(self):
        p = self.p
        look = self.o.get("look", 3)
        if look == 4:
            t3 = self.kv_pieces(3, 0, 8)
            self.period(0, dma=[x for g in t3[:4] for x in g]); self.period(1, dma=[x for g in t3[4:] for x in g])
            self.body(0, self.dma_kv_abs(("kv", 4), 0))
        else:
            self.period(0); self.period(1)
            self.body(0, self.dma_kv_abs(("kv", 3), 3))
        p(f"s_mov_b32 s{sM}, s{sKVl}")
        p(f"s_mov_b32 s{sCnt}, 5")
        for k in range(5):
            j = 1 + 2*k
            p.raw(f"@@LB at {k}")
            self.stamp(True)
            if look == 4:
                g1 = self.dma_kv(("kv", j+4), f"s_add_u32 m0, s{sM}, 8192", f"s_add_u32 m0, s{sM}, 12288")
                self.body(j, g1, tog=self.tog())
                g2 = self.dma_kv(("kv", j+5), f"s_add_u32 m0, s{sM}, 0", f"s_add_u32 m0, s{sM}, 4096")
                self.body(j+1, [[ins(f"s_xor_b32 s{sM}, s{sM}, {PHI}")]] + g2)
            else:
                g1 = self.dma_kv(("kv", j+3), f"s_add_u32 m0, s{sM}, 0", f"s_add_u32 m0, s{sM}, 4096")
                self.body(j, g1, tog=self.tog())
                g2 = self.dma_kv(("kv", j+4), f"s_add_u32 m0, s{sM}, 8192", f"s_add_u32 m0, s{sM}, 12288")
                g2[-1] = g2[-1] + [ins(f"s_xor_b32 s{sM}, s{sM}, {PHI}")]
                self.body(j+1, g2)
            p(f"s_sub_u32 s{sCnt}, s{sCnt}, 1"); p(f"s_cmp_lg_u32 s{sCnt}, 0"); p("s_cbranch_scc1 L_at")
            p.raw(f"@@LE at {k}")
        if look == 4:
            self.body(11, self.dma_kv_abs(("kv", 15), 3), tog=self.tog())
            self.body(12, [])
        else:
            self.body(11, self.dma_kv_abs(("kv", 14), 2), tog=self.tog())
            self.body(12, self.dma_kv_abs(("kv", 15), 3))
    def attention_tail(self, last):
        if not last:
            self.body(13, [], tog=self.tog())
            self.body(14, [])
            self.body(15, self.w_tile(0, 1) + self.x_tile(0) + self.w_tile(1, 1), tog=self.tog())
        else:
            self.body(13, self.dma_wo_last(), tog=self.tog())
            self.body(14, [])
            self.body(15, [], tog=self.tog(), extra=self.wo_prep_groups())
    def wo_prep_groups(self):
        setup = [ins("v_and_b32 v7, 15, v0"), ins("v_lshrrev_b32 v2, 4, v0"), ins("v_lshrrev_b32 v3, 2, v7"), ins("v_and_b32 v7, 3, v7"),
                 ins("v_lshl_add_u32 v6, v2, 2, v3"), ins("v_lshlrev_b32 v6, 10, v6"), ins("v_lshl_add_u32 v6, v7, 4, v6"),
                 ins(f"s_lshl_b32 s88, s{sW}, 8"), ins("v_add_u32 v6, s88, v6")]
        G = [[x] for x in setup]
        for nt in range(8):
            u, par = nt >> 1, nt & 1
            d = KF(0, 0, 0) + nt*4
            G.append([ins(f"ds_read_b64_tr_b16 a[{d}:{d+1}], v6 offset:{64*u + 8*par}")])
            G.append([ins(f"ds_read_b64_tr_b16 a[{d+2}:{d+3}], v6 offset:{16384 + 64*u + 8*par}")])
        for nt in range(8):
            d = KF(0, 0, 0) + nt*4
            g = []
            if nt % 4 == 0: g.append(ins(f"s_add_u32 s{sT1}, s{sWTo}, {nt*1024}"))
            g.append(ins(f"buffer_store_dwordx4 a[{d}:{d+3}], v{VST}, s[{SWT}:{SWT+3}], s{sT1} offen offset:{(nt % 4)*1024} {self.o['last_store_mod']}"))
            G.append(g)
        return G
    def dma_wo_last(self):
        G = []
        for half in range(2):
            g = [ins(f"s_add_u32 s{sT1}, s{sWOo}, {half*4096}"), ins(f"s_lshl_b32 s{sWoM}, s{sW}, 13"), ins(f"s_add_u32 m0, s{sWoM}, {half*4096}")]
            for n in range(4):
                g.append(ins(f"buffer_load_dwordx4 v{VST}, s[{SWO}:{SWO+3}], s{sT1} offen offset:{1024*n} nt lds", tag=("wo",)))
                G.append(g); g = []
        return G

    FLAG = 32768
    def softmax_check(self, item):
        p = self.p
        t = S(0, 0)
        for qt in range(6): p(f"v_accvgpr_read_b32 v{t+qt}, a{LA(qt)}")
        p(f"v_max3_f32 v{t+6}, v{t}, v{t+1}, v{t+2}"); p(f"v_min3_f32 v{t+7}, v{t}, v{t+1}, v{t+2}")
        p(f"v_max3_f32 v{t+6}, v{t+6}, v{t+3}, v{t+4}"); p(f"v_min3_f32 v{t+7}, v{t+7}, v{t+3}, v{t+4}")
        p(f"v_max_f32 v{t+6}, v{t+6}, v{t+5}"); p(f"v_min_f32 v{t+7}, v{t+7}, v{t+5}")
        p(f"v_cmp_nge_f32 vcc, {f32(2.0**24)}, v{t+6}")
        p("s_mov_b64 s[88:89], vcc")
        p(f"v_cmp_nle_f32 vcc, {f32(2.0**-24)}, v{t+7}")
        p("s_or_b64 s[88:89], s[88:89], vcc")
        p("s_cmp_lg_u64 s[88:89], 0"); p("s_cselect_b32 s88, 1, 0")
        p(f"v_mov_b32 v{t}, s88"); p(f"s_lshl_b32 s89, s{sW}, 2"); p(f"v_mov_b32 v{t+1}, s89")
        p(f"ds_write_b32 v{t+1}, v{t} offset:{self.FLAG}")
        p("s_waitcnt lgkmcnt(0)"); p("s_barrier")
        p(f"v_mov_b32 v{t+1}, 0")
        p(f"ds_read_b128 v[{t+4}:{t+7}], v{t+1} offset:{self.FLAG}")
        p(f"v_or_b32 v{t+4}, v{t+4}, v{t+5}"); p(f"v_or_b32 v{t+6}, v{t+6}, v{t+7}"); p(f"v_or_b32 v{t+4}, v{t+4}, v{t+6}")
        p(f"v_readfirstlane_b32 s88, v{t+4}")
        p("s_cmp_lg_u32 s88, 0")
        p("s_cbranch_scc1 L_FB")
        p.raw(f"L_OE{item}:")

    def fallback(self):
        q = K2(self.o); q.phase = "fb"; p = q.p
        M = LS
        def load_tile():
            p(f"s_mov_b32 s{sT2}, s{sTc}")
            q.emit_groups(q.dma_kv_abs(("fb",), 0))
            p("s_waitcnt vmcnt(0)"); p("s_barrier")
        def qk(qt):
            for kt in range(2):
                for ks in range(4):
                    p.add(mfma(S(0, kt), "v", KF(0, kt, ks), "a", Q(qt, ks), "a", None if ks == 0 else S(0, kt)))
        p.raw("L_FB:")
        p("s_waitcnt vmcnt(0) lgkmcnt(0)"); p("s_barrier")
        p(f"s_mov_b32 s{SKV+2}, {KV_BYTES}")
        for qt in range(6): p(f"v_mov_b32 v{M+qt}, 0xff800000")
        p(f"s_lshl_b32 s{sTc}, s{sItem}, 17"); p(f"s_mov_b32 s{sCnt}, 16")
        p.raw("L_FB1:")
        load_tile()
        for kt in range(2):
            for ks in range(4): p.add(q.rd_k(0, kt, ks))
        for qt in range(6):
            qk(qt)
            e = [S(0, 0)+r for r in range(4)] + [S(0, 1)+r for r in range(4)]
            for k in range(0, 8, 2): p(f"v_max3_f32 v{M+qt}, v{e[k]}, v{e[k+1]}, v{M+qt}")
        p("s_waitcnt lgkmcnt(0)"); p("s_barrier")
        p(f"s_sub_u32 s{sCnt}, s{sCnt}, 1"); p(f"s_cmp_lg_u32 s{sCnt}, 0"); p("s_cbranch_scc1 L_FB1")
        t = S(1, 0)
        for qt in range(6):
            m = M + qt
            p(f"v_mov_b32 v{t}, v{m}"); p(f"v_permlane32_swap_b32 v{t}, v{m}"); p(f"v_max_f32 v{m}, v{m}, v{t}")
            p(f"v_mov_b32 v{t}, v{m}"); p(f"v_permlane16_swap_b32 v{t}, v{m}"); p(f"v_max_f32 v{m}, v{m}, v{t}")
        for r in range(192): p(f"v_mov_b32 v{ACC+r}, 0")
        p(f"v_mov_b32 v{t}, 0")
        for r in range(24): p(f"v_accvgpr_write_b32 a{LA(0)+r}, v{t}")
        p(f"s_lshl_b32 s{sTc}, s{sItem}, 17"); p(f"s_mov_b32 s{sCnt}, 16")
        p("s_nop 7")
        p.raw("L_FB2:")
        load_tile()
        for kt in range(2):
            for ks in range(4): p.add(q.rd_k(0, kt, ks))
        for dt in range(8):
            p.add(q.rd_v(0, dt, 0)); p.add(q.rd_v(0, dt, 1))
        for qt in range(6):
            qk(qt)
            e = [S(0, 0)+r for r in range(4)] + [S(0, 1)+r for r in range(4)]
            for k in range(8): p(f"v_sub_f32 v{e[k]}, v{e[k]}, v{M+qt}")
            for k in range(8): p(f"v_exp_f32 v{e[k]}, v{e[k]}")
            for k in range(0, 8, 2): p(f"v_cvt_pk_bf16_f32 v{P(0)+k//2}, v{e[k]}, v{e[k+1]}")
            for dt in range(8): p.add(mfma(acc(dt, qt), "v", VF(0, dt), "a", P(0), "v", acc(dt, qt)))
            p.add(mfma(LA(qt), "a", ONES, "a", P(0), "v", LA(qt)))
        p("s_waitcnt lgkmcnt(0)"); p("s_nop 7"); p("s_nop 7"); p("s_barrier")
        p(f"s_sub_u32 s{sCnt}, s{sCnt}, 1"); p(f"s_cmp_lg_u32 s{sCnt}, 0"); p("s_cbranch_scc1 L_FB2")
        p("s_nop 7"); p("s_nop 7")
        p(f"s_cmp_eq_u32 s{sItem}, 1"); p("s_cbranch_scc1 L_OE1"); p("s_branch L_OE0")
        L, st = finalize(p.L)
        return L

    def o_epilogue(self, last):
        p = self.p
        for qt in range(6): p(f"v_accvgpr_read_b32 v{LS+qt}, a{LA(qt)}")
        for qt in range(6): p(f"v_rcp_f32 v{LS+qt}, v{LS+qt}")
        for qt in range(6):
            for ks in range(4):
                a0, a1 = acc(2*ks, qt), acc(2*ks+1, qt)
                l = LS + qt
                for r in range(4): p(f"v_mul_f32 v{a0+r}, v{l}, v{a0+r}")
                for r in range(4): p(f"v_mul_f32 v{a1+r}, v{l}, v{a1+r}")
                t0 = SB + ((ks + 4*qt) % 6)*4
                p(f"v_cvt_pk_bf16_f32 v{t0}, v{a0}, v{a0+1}")
                p(f"v_cvt_pk_bf16_f32 v{t0+1}, v{a0+2}, v{a0+3}")
                p(f"v_cvt_pk_bf16_f32 v{t0+2}, v{a1}, v{a1+1}")
                p(f"v_cvt_pk_bf16_f32 v{t0+3}, v{a1+2}, v{a1+3}")
                n = ks*6 + qt
                if last:
                    p(f"s_add_u32 s{sT0}, s{sOo}, {n*1024}")
                    p(f"buffer_store_dwordx4 v[{t0}:{t0+3}], v{VST}, s[{SO}:{SO+3}], s{sT0} offen {self.o['last_store_mod']}", tag=("o",))
                else:
                    for r in range(4): p(f"v_accvgpr_write_b32 a{OS(n)+r}, v{t0+r}")

    def final(self):
        p = self.p
        p.wait_tag(("wo",))
        p("s_barrier")
        p("v_and_b32 v8, 15, v0"); p("v_lshrrev_b32 v2, 4, v0"); p("v_lshrrev_b32 v3, 2, v8"); p("v_and_b32 v7, 3, v8")
        p("v_lshl_add_u32 v6, v2, 2, v3"); p("v_lshlrev_b32 v6, 10, v6"); p("v_lshl_add_u32 v6, v7, 4, v6")
        p(f"s_lshl_b32 s88, s{sW}, 8"); p("v_add_u32 v6, s88, v6")
        for nt in range(8):
            u, par = nt >> 1, nt & 1
            d = 32 + nt*4
            p(f"ds_read_b64_tr_b16 v[{d}:{d+1}], v6 offset:{64*u + 8*par}")
            p(f"ds_read_b64_tr_b16 v[{d+2}:{d+3}], v6 offset:{16384 + 64*u + 8*par}")
        for nt in range(8):
            d = 32 + nt*4
            if nt % 4 == 0: p(f"s_add_u32 s{sT1}, s{sWTo}, {nt*1024}")
            p(f"buffer_store_dwordx4 v[{d}:{d+3}], v{VST}, s[{SWT}:{SWT+3}], s{sT1} offen offset:{(nt % 4)*1024} {self.o['last_store_mod']}")

    def build(self):
        p = self.p
        assert self.o["msum"]
        self.prologue()
        if self.o["timing"]: p("s_mov_b32 s99, 0")
        self.stamp()
        p(f"s_mov_b32 s{SO+2}, {0 if self.o.get('stA') else O_BYTES}")
        self.emit_groups(self.w_tile(0, 0) + self.x_tile(0) + self.w_tile(1, 0))
        self.prologue2()
        for item in range(2):
            last = item == 1
            p.raw("@@SB A"); self.qproj_a(); p.raw("@@SE A")
            p.raw(f"@@SB B{item}"); self.qproj_b(last); self.stamp(); p.raw(f"@@SE B{item}")
            p.raw("@@SB C"); self.attention_shared(); p.raw("@@SE C")
            p.raw(f"@@SB D{item}")
            self.attention_tail(last)
            self.stamp()
            if self.o.get("guard", True): self.softmax_check(item)
            self.o_epilogue(last)
            self.stamp()
            if not last:
                p(f"s_add_u32 s{sWo}, s{sWo}, 256"); p(f"s_add_u32 s{sOo}, s{sOo}, {4*6144}")
                p(f"s_mov_b32 s{sItem}, 1"); p(f"s_mov_b32 s{SO+2}, {O_BYTES}")
            else:
                self.stamp()
                p("s_waitcnt vmcnt(0)")
                self.stamp()
                self.stamp_flush()
                p("s_waitcnt vmcnt(0)")
            p.raw(f"@@SE D{item}")
        L, st = finalize(p.L)
        L = fold(L)
        segs, top = segments(L)
        out = [i for k, i in top if k == "ins"]
        lab = lambda t: I(t, "label")
        br = lambda tgt: [ins(f"s_cmp_eq_u32 s{sItem}, 1"), ins(f"s_cbranch_scc1 {tgt}")]
        out += [lab("L_A:")] + segs["A"] + br("L_B1") + segs["B0"] + [lab("L_C:")] + segs["C"] + br("L_D1") + segs["D0"] + [ins("s_branch L_A")]
        out += [lab("L_B1:")] + segs["B1"] + [ins("s_branch L_C")]
        out += [lab("L_D1:")] + segs["D1"] + [lab("K2_END:"), ins("s_endpgm")]
        if self.o.get("guard", True): out += self.fallback()
        return out, st

if __name__ == "__main__":
    k = K2(); L, st = k.build()
    print(st, len(L))
```

```python
from dsl import *
import struct

def f32(x): return "0x%08x" % struct.unpack("<I", struct.pack("<f", x))[0]

NB, SQ, DM, H, SK, DH = 16, 192, 512, 32, 512, 128
X_BYTES = NB*SQ*DM*2
KV_BYTES = NB*H*SK*DH*2
W_BYTES = DM*H*DH*2
O_BYTES = 2*NB*2*128*6*1024
WOT_OFF = O_BYTES
WOT_BYTES = 2*4*128*8*1024
OUT_BYTES = NB*SQ*1024*2

PHI = 65536
WSLOT = [65536, 81920, 98304]
XA, XB = 114688, 139264
DROP = 0x30000

ACC = 64
def acc(T, qt): return ACC + (T*6 + qt)*4
SB = 8
def S(buf, kt): return SB + buf*8 + kt*4
PB = 24
def P(buf): return PB + buf*4
LS = 32
KA = 38
VA = 42
DV = 50
WA = 54
XAD = 58
WD = [60, 61, 2, 3]
XD = [62, 63, 6, 7]
VST = 4
def Q(qt, ks): return (qt*4 + ks)*4
def OS(n): return n*4
def KF(buf, kt, ks): return 96 + buf*32 + (kt*4 + ks)*4
def VF(buf, dt): return 160 + buf*32 + dt*4
def WF(T): return 96 + T*4
def XF(buf, qt): return 128 + buf*24 + qt*4
ONES = 224
def LA(qt): return 228 + qt*4
SX, SW, SKV, SO, SWO, SWT = 4, 8, 12, 16, 20, 24
sW, sHP, sRH, sP, sB, sHG = 28, 29, 30, 31, 32, 33
sKVo, sKVl, sWo, sWl, sXo, sXl, sOo = 34, 35, 36, 37, 38, 39, 40
sT0, sT1, sC = 41, 42, 43
sWOo, sWTo = 44, 45
sItem, sCnt = 46, 47
sTile, sM, sTh1, sTh2, sWarmW, sWarmX, sWoM, sDrop, sTc, sRot = 74, 75, 76, 77, 78, 79, 80, 81, 84, 85
sT2 = 83
sWR, sXR = 78, 79

MF = "v_mfma_f32_16x16x32_bf16"
def mfma(d, dk, a, ak, b, bk, c=None):
    cs = "0" if c is None else rng(dk, c, 4)
    return ins(f"{MF} {rng(dk,d,4)}, {rng(ak,a,4)}, {rng(bk,b,4)}, {cs}")

class K2:
    def __init__(self, opts=None):
        self.o = dict(nt="nt", w_mod="", x_mod="", store_mod="sc1", last_store_mod="sc1", timing=False, msum=True, warm=False, qrot=True, drop=[])
        if opts: self.o.update(opts)
        self.p = Prog()
        self.phase = ""

    def tile_addr(self):
        if not self.o.get("rot"):
            return [ins(f"s_add_u32 s{sTile}, s{sKVo}, s{sTc}"), ins(f"s_add_u32 s{sTc}, s{sTc}, 8192")]
        return [ins(f"s_add_u32 s{sTile}, s{sTc}, s{sRot}"), ins(f"s_and_b32 s{sTile}, s{sTile}, 0x1ffff"),
                ins(f"s_and_b32 s{sT0}, s{sTc}, 0x20000"), ins(f"s_add_u32 s{sTile}, s{sTile}, s{sT0}"),
                ins(f"s_add_u32 s{sTile}, s{sTile}, s{sKVo}"), ins(f"s_add_u32 s{sTc}, s{sTc}, 8192")]
    def dma_kv(self, tag, m0a, m0b, pre=()):
        nt = self.o['nt']
        G = []
        g = list(pre) + self.tile_addr() + [ins(m0a)]
        for k in range(4):
            g.append(ins(f"buffer_load_dwordx4 v{DV+k}, s[{SKV}:{SKV+3}], s{sTile} offen offset:{1024*k} {nt} lds", tag=tag))
            G.append(g); g = []
        g = [ins(f"s_add_u32 s{sT0}, s{sTile}, 4096"), ins(m0b)]
        for k in range(4):
            g.append(ins(f"buffer_load_dwordx4 v{DV+k}, s[{SKV}:{SKV+3}], s{sT0} offen offset:{1024*k} {nt} lds", tag=tag))
            G.append(g); g = []
        return G
    def dma_kv_abs(self, tag, slot):
        o = (slot >> 1)*PHI + (slot & 1)*8192
        return self.dma_kv(tag, f"s_add_u32 m0, s{sKVl}, {o}", f"s_add_u32 m0, s{sKVl}, {o + 4096}")
    def kv_pieces(self, tile, a, b):
        G = self.dma_kv_abs(("kv", tile), tile % 4)
        out = G[a:b]
        if a not in (0, 4):
            slot = tile % 4
            o = (slot >> 1)*PHI + (slot & 1)*8192 + (4096 if a >= 4 else 0)
            out[0] = [ins(f"s_add_u32 m0, s{sKVl}, {o}")] + out[0]
        return out
    def dma_w(self, tag, base_reg, goff, m0txt, rot=None):
        G = []
        if rot is None: g = [ins(f"s_add_u32 s{sT1}, s{base_reg}, {goff}")]
        else:
            g = [ins(f"s_add_u32 s{sT1}, s{sWR}, {rot*262144}"), ins(f"s_and_b32 s{sT1}, s{sT1}, 0x3fffff"), ins(f"s_add_u32 s{sT1}, s{sT1}, s{base_reg}")]
            if goff: g.append(ins(f"s_add_u32 s{sT1}, s{sT1}, {goff}"))
        g.append(ins(m0txt))
        for n in range(4):
            g.append(ins(f"buffer_load_dwordx4 v{WD[n]}, s[{SW}:{SW+3}], s{sT1} offen offset:{1024*n} {self.o['w_mod']} lds", tag=tag))
            G.append(g); g = []
        return G
    def x_soff(self, base_reg, tt):
        if not self.o.get("qrot"): return [ins(f"s_add_u32 s{sT1}, s{base_reg}, {tt*128}")]
        return [ins(f"s_add_u32 s{sT1}, s{sXR}, {tt*128}"), ins(f"s_and_b32 s{sT1}, s{sT1}, 1023"), ins(f"s_add_u32 s{sT1}, s{sT1}, s{base_reg}")]
    def dma_x(self, tag, base_reg, tt, m0a, m0b):
        G = []
        m = self.o['x_mod']
        g = self.x_soff(base_reg, tt) + [ins(m0a)]
        for n in range(4):
            g.append(ins(f"buffer_load_dwordx4 v{XD[n]}, s[{SX}:{SX+3}], s{sT1} offen offset:{1024*n} {m} lds", tag=tag))
            G.append(g); g = []
        g = [ins(f"s_add_u32 s{sT1}, s{sT1}, {4*8192}"), ins(m0b)]
        for n in range(2):
            g.append(ins(f"buffer_load_dwordx4 v{XD[n]}, s[{SX}:{SX+3}], s{sT1} offen offset:{1024*n} {m} lds", tag=tag))
            G.append(g); g = []
        return G
    def w_tile(self, t, nxt=0):
        m0 = f"s_add_u32 m0, s{sWl}, {WSLOT[t % 3]}"
        if self.o.get("qrot"): return self.dma_w(("w", t), sWo, nxt*256, m0, rot=t)
        return self.dma_w(("w", t), sWo, nxt*256 + t*262144, m0)
    def x_tile(self, tt):
        sl = XB if tt % 2 == 0 else XA
        return self.dma_x(("x", tt), sXo, tt, f"s_add_u32 m0, s{sXl}, {sl}", f"s_add_u32 m0, s{sXl}, {sl + 4096}")
    def warmup(self, nxt):
        if not self.o["warm"]: return []
        G = []
        def ld(v, srd, soff, off, mod):
            i = ins(f"buffer_load_dwordx4 a[252:255], v{v}, s[{srd}:{srd+3}], s{soff} offen offset:{off} {mod}", tag=("warm",))
            i.kind = "dma"; i.wr = set(); i.rd.discard("m0")
            return i
        for k in range(2):
            g = [ins(f"s_add_u32 s{sT1}, s{sWarmW}, {nxt*256 + k*262144}")]
            for n in range(4):
                g.append(ld(WD[n], SW, sT1, 1024*n, self.o['w_mod'])); G.append(g); g = []
        if nxt == 0 or self.o.get("warmx1", True):
            for k in range(2):
                g = [ins(f"s_add_u32 s{sT1}, s{sWarmX}, {k*128}")]
                for n in range(4):
                    g.append(ld(XD[n], SX, sT1, 1024*n, self.o['x_mod'])); G.append(g); g = []
                g = [ins(f"s_add_u32 s{sT1}, s{sT1}, {4*8192}")]
                for n in range(2):
                    g.append(ld(XD[n], SX, sT1, 1024*n, self.o['x_mod'])); G.append(g); g = []
        return G
    def next_item_prefetch(self, nxt=1):
        return self.w_tile(0, nxt) + self.x_tile(0) + self.w_tile(1, nxt) + self.w_tile(2, nxt) + self.x_tile(1)
    def dma_wo(self):
        G = []
        for half in range(2):
            g = [ins(f"s_add_u32 s{sT1}, s{sWOo}, {half*4096}"), ins(f"s_add_u32 m0, s{sWoM}, {half*4096}")]
            for n in range(4):
                g.append(ins(f"buffer_load_dwordx4 v{VST}, s[{SWO}:{SWO+3}], s{sT1} offen offset:{1024*n} nt lds", tag=("wo",)))
                G.append(g); g = []
        return G
    def o_store(self, n, mod, prev, force=False):
        g = []
        if n % 4 == 0 or force: g.append(ins(f"s_add_u32 s{sT2}, s{sOo}, {((n & ~3)*1024 - (4*6144 if prev else 0)) & 0xffffffff}"))
        g.append(ins(f"buffer_store_dwordx4 {rng('a', OS(n), 4)}, v{VST}, s[{SO}:{SO+3}], s{sT2} offen offset:{(n % 4)*1024} {mod}", tag=("o",)))
        return g
    def rd_k(self, par, kt, ks):
        return ins(f"ds_read_b128 {rng('a', KF(par, kt, ks), 4)}, v{KA+ks} offset:{par*8192 + kt*4096}")
    def rd_v(self, par, dt, kt):
        return ins(f"ds_read_b64_tr_b16 {rng('a', VF(par, dt) + 2*kt, 2)}, v{VA+dt} offset:{par*8192 + kt*4096}")
    def rd_w(self, t, T, h2):
        ks, u = T >> 1, T & 1
        return ins(f"ds_read_b64_tr_b16 {rng('a', WF(T) + 2*h2, 2)}, v{WA+ks} offset:{(t % 3)*16384 + h2*2048 + 8*u}")
    def rd_x(self, t, qt):
        tt = t >> 1
        return ins(f"ds_read_b128 {rng('a', XF(t % 2, qt), 4)}, v{XAD + (t & 1)} offset:{(24576 if tt % 2 == 0 else 0) + qt*2048}")

    def prologue(self):
        p = self.p
        p("s_cmp_ge_u32 s2, 256")
        p("s_cbranch_scc1 K2_END")
        p("s_load_dwordx16 s[48:63], s[0:1], 0")
        p("s_load_dwordx8 s[64:71], s[0:1], 64")
        p("s_load_dwordx2 s[72:73], s[0:1], 96")
        p(f"v_lshrrev_b32 v1, 6, v0")
        p(f"v_and_b32 v0, 63, v0")
        p(f"v_readfirstlane_b32 s{sW}, v1")
        p("s_and_b32 s86, s2, 7")
        p("s_lshr_b32 s87, s2, 3")
        p(f"s_lshr_b32 s{sP}, s86, 2")
        p("s_and_b32 s88, s86, 1"); p("s_lshl_b32 s88, s88, 3"); p("s_and_b32 s82, s87, 7")
        p(f"s_add_u32 s{sB}, s88, s82")
        p("s_lshr_b32 s88, s86, 1"); p("s_and_b32 s88, s88, 1"); p("s_lshl_b32 s88, s88, 2"); p("s_lshr_b32 s83, s87, 3")
        p(f"s_add_u32 s{sHG}, s88, s83")
        p(f"s_and_b32 s{sHP}, s{sW}, 1")
        p(f"s_lshr_b32 s{sRH}, s{sW}, 1")
        p("s_waitcnt lgkmcnt(0)")
        p(f"s_cmp_eq_u32 s{sP}, 0")
        p(f"s_cselect_b32 s{SX}, s48, s58"); p(f"s_cselect_b32 s{SX+1}, s49, s59")
        p(f"s_cselect_b32 s{SW}, s54, s64"); p(f"s_cselect_b32 s{SW+1}, s55, s65")
        p(f"s_cselect_b32 s{SWO}, s56, s66"); p(f"s_cselect_b32 s{SWO+1}, s57, s67")
        p(f"s_cselect_b32 s90, s50, s60"); p(f"s_cselect_b32 s91, s51, s61")
        p(f"s_cselect_b32 s92, s52, s62"); p(f"s_cselect_b32 s93, s53, s63")
        p(f"s_cmp_eq_u32 s{sRH}, 0")
        p(f"s_cselect_b32 s{SKV}, s90, s92"); p(f"s_cselect_b32 s{SKV+1}, s91, s93")
        p(f"s_cselect_b32 s94, 64, 128"); p(f"s_cselect_b32 s95, 128, 0"); p("s_mov_b32 s96, 128"); p(f"s_cselect_b32 s96, 192, s96")
        p(f"s_cselect_b32 s97, 0, 1")
        p(f"s_cselect_b32 s{sKVl}, 0, 32768")
        for r, n in ((SX, X_BYTES), (SW, W_BYTES), (SWO, W_BYTES), (SKV, KV_BYTES)):
            p(f"s_mov_b32 s{r+2}, {n}"); p(f"s_mov_b32 s{r+3}, 0x00020000")
        p(f"s_mov_b32 s{SO}, s72"); p(f"s_mov_b32 s{SO+1}, s73"); p(f"s_mov_b32 s{SO+2}, 0"); p(f"s_mov_b32 s{SO+3}, 0x00020000")
        p(f"s_add_u32 s{SWT}, s72, {WOT_OFF}"); p(f"s_addc_u32 s{SWT+1}, s73, 0"); p(f"s_mov_b32 s{SWT+2}, {WOT_BYTES}"); p(f"s_mov_b32 s{SWT+3}, 0x00020000")
        p(f"s_lshl_b32 s88, s{sB}, 5"); p(f"s_lshl_b32 s89, s{sHG}, 2"); p("s_add_u32 s88, s88, s89"); p(f"s_lshl_b32 s89, s{sHP}, 1"); p("s_add_u32 s88, s88, s89")
        p(f"s_lshl_b32 s{sKVo}, s88, 17")
        p(f"s_lshl_b32 s89, s{sHP}, 14"); p(f"s_add_u32 s{sKVl}, s{sKVl}, s89")
        p(f"s_lshl_b32 s88, s{sW}, 16"); p(f"s_lshl_b32 s89, s{sHG}, 10"); p(f"s_add_u32 s{sWo}, s88, s89")
        p(f"s_lshl_b32 s{sWl}, s{sW}, 12")
        p(f"s_lshl_b32 s88, s82, 19"); p(f"s_add_u32 s{sWarmW}, s{sWo}, s88")
        p(f"s_mul_i32 s88, s{sB}, 196608"); p(f"s_mul_i32 s89, s{sW}, 49152"); p(f"s_add_u32 s{sXo}, s88, s89")
        p(f"s_mul_i32 s{sXl}, s{sW}, 6144")
        p(f"s_lshl_b32 s88, s83, 8"); p(f"s_add_u32 s{sWarmX}, s{sXo}, s88")
        if self.o.get("qrot"):
            assert not self.o["warm"]
            p("s_lshl_b32 s88, s83, 1"); p("s_add_u32 s88, s88, s82"); p("s_and_b32 s88, s88, 7")
            p(f"s_lshl_b32 s{sWR}, s88, 19"); p(f"s_lshl_b32 s{sXR}, s88, 7")
        p(f"s_mov_b32 s{sDrop}, {DROP}")
        p("s_mul_i32 s88, s2, 5"); p("s_lshr_b32 s89, s2, 4"); p("s_add_u32 s88, s88, s89"); p("s_and_b32 s88, s88, 15"); p(f"s_lshl_b32 s{sRot}, s88, 13")
        p(f"s_lshl_b32 s88, s{sP}, 4"); p(f"s_add_u32 s88, s88, s{sB}"); p("s_lshl_b32 s88, s88, 1"); p(f"s_add_u32 s88, s88, s{sRH}")
        p("s_lshl_b32 s88, s88, 7"); p(f"s_lshl_b32 s89, s{sHG}, 4"); p("s_add_u32 s88, s88, s89"); p(f"s_lshl_b32 s89, s{sHP}, 3"); p("s_add_u32 s88, s88, s89")
        p(f"s_mul_i32 s{sOo}, s88, 6144")
        p("s_and_b32 s88, s86, 3"); p("s_lshl_b32 s88, s88, 5"); p("s_add_u32 s88, s88, s87")
        p(f"s_lshl_b32 s89, s88, 15"); p(f"s_lshl_b32 s98, s{sW}, 13"); p(f"s_add_u32 s{sWOo}, s89, s98")
        p(f"s_lshl_b32 s89, s{sP}, 2"); p(f"s_add_u32 s89, s89, s{sW}"); p("s_lshl_b32 s89, s89, 7"); p("s_add_u32 s89, s89, s88"); p(f"s_lshl_b32 s{sWTo}, s89, 13")
        p(f"s_mov_b32 s{sC}, {f32(1.4426950408889634*128**-0.5)}")
        p(f"s_mov_b32 s{sItem}, 0")
        i_, g_, r_, c_ = "v14", "v8", "v9", "v10"
        p(f"v_and_b32 {i_}, 15, v0"); p(f"v_lshrrev_b32 {g_}, 4, v0"); p(f"v_lshrrev_b32 {r_}, 2, {i_}"); p(f"v_and_b32 {c_}, 3, {i_}")
        p(f"v_lshlrev_b32 v{VST}, 4, v0")
        p("v_lshrrev_b32 v11, 5, v0"); p("v_and_b32 v12, 15, v0"); p("v_lshlrev_b32 v13, 2, v11"); p("v_xor_b32 v12, v12, v13"); p("v_lshlrev_b32 v12, 4, v12")
        p("v_lshl_add_u32 v12, v11, 13, v12"); p("v_bfe_u32 v13, v0, 4, 1"); p(f"v_lshl_add_u32 v{WD[0]}, v13, 9, v12")
        p(f"v_xor_b32 v{WD[1]}, 128, v{WD[0]}"); p(f"v_add_u32 v{WD[2]}, {2*15360}, v{WD[0]}"); p(f"v_add_u32 v{WD[3]}, {3*15360}, v{WD[1]}"); p(f"v_add_u32 v{WD[1]}, 15360, v{WD[1]}")
        p("v_lshrrev_b32 v11, 3, v0"); p("v_and_b32 v12, 7, v0"); p(f"v_xor_b32 v12, v12, {g_}"); p("v_lshlrev_b32 v12, 4, v12")
        p(f"v_lshl_add_u32 v{XD[0]}, v11, 10, v12"); p(f"v_xor_b32 v{XD[1]}, 64, v{XD[0]}")
        p(f"v_add_u32 v{XD[2]}, {2*7168}, v{XD[0]}"); p(f"v_add_u32 v{XD[3]}, {3*7168}, v{XD[1]}"); p(f"v_add_u32 v{XD[1]}, 7168, v{XD[1]}")
        p(f"v_lshlrev_b32 v11, s97, {g_}"); p(f"v_xor_b32 v11, v11, {i_}"); p("v_lshlrev_b32 v11, 4, v11"); p(f"v_lshl_add_u32 v{DV}, {g_}, 8, v11")
        for k in range(1, 4): p(f"v_xor_b32 v{DV+k}, s{93+k}, v{DV}")
        self.lane = (i_, g_, r_, c_)
    def prologue2(self):
        p = self.p
        i_, g_, r_, c_ = self.lane
        p(f"s_lshl_b32 s88, s{sHP}, 14")
        p(f"v_xor_b32 v11, {g_}, {i_}"); p("v_lshlrev_b32 v11, 4, v11"); p(f"v_lshl_add_u32 v11, {i_}, 8, v11"); p(f"v_add_u32 v{KA}, s88, v11")
        for ks in range(1, 4): p(f"v_xor_b32 v{KA+ks}, {64*ks}, v{KA}")
        p(f"v_and_b32 v11, 1, {g_}"); p("v_lshlrev_b32 v11, 2, v11"); p(f"v_add_u32 v11, v11, {r_}"); p("v_lshlrev_b32 v11, 1, v11")
        p(f"v_lshrrev_b32 v12, 1, {c_}"); p("v_xor_b32 v11, v11, v12"); p("v_lshlrev_b32 v11, 4, v11")
        p(f"v_and_b32 v12, 1, {c_}"); p("v_lshl_add_u32 v11, v12, 3, v11")
        p(f"v_lshl_add_u32 v12, {g_}, 2, {r_}"); p("v_lshl_add_u32 v11, v12, 8, v11")
        p("s_add_u32 s89, s88, 32768"); p(f"v_add_u32 v{VA}, s89, v11")
        for dt in range(1, 8): p(f"v_xor_b32 v{VA+dt}, {32*dt}, v{VA}")
        p(f"s_lshl_b32 s88, s{sHP}, 4")
        p(f"v_add_u32 v11, s88, {c_}"); p(f"v_lshlrev_b32 v12, 2, {r_}"); p("v_xor_b32 v11, v11, v12"); p("v_lshlrev_b32 v11, 4, v11")
        p(f"v_lshl_add_u32 v12, {g_}, 3, {r_}"); p("v_lshl_add_u32 v11, v12, 9, v11"); p(f"v_add_u32 v{WA}, {WSLOT[0]}, v11")
        for ks in range(1, 4): p(f"v_xor_b32 v{WA+ks}, {64*ks}, v{WA}")
        p(f"s_mul_i32 s88, s{sRH}, {96*128}"); p(f"s_add_u32 s88, s88, {XA}")
        p(f"v_lshrrev_b32 v11, 1, {i_}"); p(f"v_xor_b32 v11, v11, {g_}"); p("v_lshlrev_b32 v11, 4, v11"); p(f"v_lshl_add_u32 v11, {i_}, 7, v11"); p(f"v_add_u32 v{XAD}, s88, v11")
        p(f"v_xor_b32 v{XAD+1}, 64, v{XAD}")
        if self.o["msum"]:
            p("v_mov_b32 v11, 0x3f803f80")
            for r in range(4): p(f"v_accvgpr_write_b32 a{ONES+r}, v11")

    def stamp(self, fine=False):
        if not self.o["timing"]: return
        if fine and not self.o.get("fine"): return
        p = self.p
        p(f"s_memrealtime s[88:89]")
        p(f"s_memtime s[90:91]")
        p("s_waitcnt lgkmcnt(0)")
        p("s_mov_b32 m0, s99"); p("s_nop 1")
        p(f"v_writelane_b32 v5, s88, m0")
        p(f"v_writelane_b32 v1, s90, m0")
        p("s_add_u32 s99, s99, 1")
    def stamp_flush(self):
        if not self.o["timing"]: return
        p = self.p
        if self.o.get("dbg") is not None:
            p(f"s_cmp_eq_u32 s2, {self.o['dbg']}"); p("s_cselect_b32 s90, 64, 0"); p(f"s_cmp_eq_u32 s{sW}, 0"); p("s_cselect_b32 s90, s90, 0")
            p("s_mov_b32 s88, s70"); p("s_mov_b32 s89, s71"); p("s_mov_b32 s91, 0x00020000")
            src = "v1" if self.o.get("dbgcyc") else "v5"
            p("v_lshlrev_b32 v6, 2, v0")
            p(f"buffer_store_dword {src}, v6, s[88:91], 0 offen")
            p("s_add_u32 s88, s88, 512"); p("s_addc_u32 s89, s89, 0"); p("s_cmp_lg_u32 s90, 0"); p("s_cselect_b32 s90, 52, 0")
            p(f"buffer_store_dword {src}, v6, s[88:91], 0 offen")
            return
        p(f"s_add_u32 s88, s72, {64<<20}"); p("s_addc_u32 s89, s73, 0"); p(f"s_mov_b32 s90, {1<<20}"); p("s_mov_b32 s91, 0x00020000")
        p(f"s_lshl_b32 s92, s2, 2"); p(f"s_add_u32 s92, s92, s{sW}"); p("s_lshl_b32 s92, s92, 9")
        p("v_lshlrev_b32 v6, 2, v0")
        p("buffer_store_dword v5, v6, s[88:91], s92 offen")
        p("buffer_store_dword v1, v6, s[88:91], s92 offen offset:256")

    def emit_groups(self, groups):
        for g in groups:
            for x in g: self.p.add(x)
    def keep(self, x):
        drop = self.o["drop"]; ph = self.phase
        if x.kind == "dma" and ph + "_dma" in drop: return False
        if x.kind == "ds_read" and ph + "_lds" in drop: return False
        if x.kind == "barrier" and ph + "_bar" in drop: return False
        if x.kind == "trans" and ph + "_exp" in drop: return False
        if x.kind == "valu" and x.txt.startswith("v_add_f32") and ph + "_add" in drop: return False
        if x.kind == "valu" and x.txt.startswith("v_cvt") and ph + "_cvt" in drop: return False
        if x.kind == "vstore" and ph + "_st" in drop: return False
        return True
    def run(self, mf, chains, pre=()):
        ch = [[([x for x in g if self.keep(x)], lo, hi) for g, lo, hi in c] for c in chains]
        ch = [[it for it in c if it[0]] for c in ch]
        if self.phase + "_mfma" in self.o["drop"]: mf = [ins("s_nop 0") for _ in mf]
        self.p.extend(gapfill(mf, ch, pre=[x for x in pre if self.keep(x)]))

    def spaced(self, G, lo, hi):
        n = len(G)
        out = []
        for k, g in enumerate(G):
            pos = lo + (k*(hi - lo + 1))//n
            out.append((g, pos, pos + 1))
        return out
    def qstep(self, t, stores=()):
        p = self.p
        self.phase = "qp"
        mf = []
        for T in range(8):
            for qt in range(6):
                mf.append(mfma(acc(T, qt), "v", WF(T), "a", XF(t % 2, qt), "a", None if t == 0 else acc(T, qt)))
        need = []
        for qt in range(6): need += R("a", XF(t % 2, qt), 4)
        for T in range(6): need += R("a", WF(T), 4)
        pre = [wait_regs(need)]
        chains = []
        BG = 11
        slow = []
        if t < 15:
            bar = [wait_tag(("w", t+1))]
            if t % 2 == 1: bar.append(wait_tag(("x", (t+1) >> 1)))
            chains.append([(bar, BG-1, BG-1), ([ins("s_waitcnt lgkmcnt(0)"), ins("s_barrier")], BG, BG)])
            cw = []
            for T in range(8):
                lo = max(BG+1, 6*T + 5)
                cw += [([self.rd_w(t+1, T, 0)], lo, min(47, lo + 8)), ([self.rd_w(t+1, T, 1)], lo, min(47, lo + 9))]
            chains.append(cw)
            chains.append([([self.rd_x(t+1, qt)], BG+1, 40) for qt in range(6)])
            GW = self.w_tile(t+3) if t + 3 <= 15 else []
            early = []; GX = []
            if t % 2 == 1 and (t >> 1) + 2 <= 7: GX = self.x_tile((t >> 1) + 2)[:3]
            if t % 2 == 0 and t >= 2 and ((t-1) >> 1) + 2 <= 7:
                tt = ((t-1) >> 1) + 2; sl = XB if tt % 2 == 0 else XA
                early = self.x_tile(tt)[3:]
                early[0] = self.x_soff(sXo, tt) + [ins(f"s_add_u32 m0, s{sXl}, {sl}")] + early[0]
            if t == 0: early = self.w_tile(2) + self.x_tile(1)
            late = GW + GX
            plan = self.o.get("kvplan", {10: (0, 0, 4), 11: (0, 4, 8), 12: (1, 0, 4), 13: (1, 4, 8)})
            if t in plan or str(t) in plan:
                slow = self.kv_pieces(*(plan.get(t) or plan.get(str(t))))
            c = []
            if t == 0:
                c = self.spaced(early + late, 0, 47); early = []; late = []
            if early:
                span = BG - 1
                for k, g in enumerate(early): c.append((g, int(k*span/len(early)), int(k*span/len(early)) + 1))
            hi = 47 if not (slow or stores) else (39 if len(slow) <= 2 else 32)
            if late: c += self.spaced(late, BG+2, hi)
            if slow: c += self.spaced(slow, (41 if len(slow) <= 2 else 34) if late else BG+2, 47)
            if c: chains.append(c)
        else:
            chains.append([([ins("s_waitcnt lgkmcnt(0)"), ins("s_barrier")], BG, BG)])
            G = self.kv_pieces(2, 0, 8) if self.o.get("kvplan") is None else self.dma_kv_abs(("kv", 2), 2) + self.dma_kv_abs(("kv", 3), 3)[:4]
            chains.append(self.spaced(G, BG+1, 47))
        if stores:
            lo = 26 if t == 12 else 0
            chains.append(self.spaced([self.o_store(n, self.o["store_mod"], True) for n in stores], lo, 47))
        self.run(mf, chains, pre)

    def qproj_a(self):
        p = self.p
        p(f"s_lshl_b32 s{sTc}, s{sItem}, 17")
        p.wait_tag(("w", 0)); p.wait_tag(("x", 0))
        p("s_barrier")
        self.stamp()
        for T in range(8):
            p.add(self.rd_w(0, T, 0)); p.add(self.rd_w(0, T, 1))
        for qt in range(6): p.add(self.rd_x(0, qt))
        for t in range(12):
            self.qstep(t)
            if t in (3, 7, 11): self.stamp(True)
    def qproj_b(self, last):
        p = self.p
        st = (lambda a, b: list(range(a, b))) if last else (lambda a, b: [])
        self.qstep(12, st(0, 3)); self.qstep(13, st(3, 9)); self.qstep(14, st(9, 15)); self.qstep(15, st(15, 18))
        self.stamp()
        for kt in range(2):
            for ks in range(4): p.add(self.rd_k(0, kt, ks))
        tmp = S(0, 0)
        rest = self.dma_kv_abs(("kv", 3), 3)[4:] if self.o.get("kvplan") is not None else []
        late = st(18, 24)
        for qt in range(6):
            for ks in range(4):
                n = qt*4 + ks
                a0, a1 = acc(2*ks, qt), acc(2*ks+1, qt)
                for r in range(4): p(f"v_mul_f32 v{a0+r}, s{sC}, v{a0+r}")
                for r in range(4): p(f"v_mul_f32 v{a1+r}, s{sC}, v{a1+r}")
                t0 = tmp + (n % 4)*4
                p(f"v_cvt_pk_bf16_f32 v{t0}, v{a0}, v{a0+1}")
                p(f"v_cvt_pk_bf16_f32 v{t0+1}, v{a0+2}, v{a0+3}")
                p(f"v_cvt_pk_bf16_f32 v{t0+2}, v{a1}, v{a1+1}")
                p(f"v_cvt_pk_bf16_f32 v{t0+3}, v{a1+2}, v{a1+3}")
                if late and n % 2 == 0 and n < 18:
                    m = late.pop(0)
                    for x in self.o_store(m, self.o["store_mod"], True, force=True): p.add(x)
                for r in range(4): p(f"v_accvgpr_write_b32 a{Q(qt,ks)+r}, v{t0+r}")
                if rest and n % 4 == 3 and n >= 7:
                    for x in rest.pop(0): p.add(x)
            if qt < 4:
                for dt in (2*qt, 2*qt+1):
                    p.add(self.rd_v(0, dt, 0)); p.add(self.rd_v(0, dt, 1))
        assert not rest and not late

    def period(self, n, dma=(), pre=(), early=(), extra=()):
        p = self.p
        self.phase = "at"
        msum = self.o["msum"]
        j, pp = divmod(n, 6)
        qk = []; pv = []
        if n < 96:
            sb = n % 2
            for kt in range(2):
                for ks in range(4):
                    qk.append(mfma(S(sb, kt), "v", KF(j % 2, kt, ks), "a", Q(pp, ks), "a", None if ks == 0 else S(sb, kt)))
        if n >= 2:
            jj, qt = divmod(n-2, 6)
            pb = (n-2) % 2
            for dt in range(8):
                pv.append(mfma(acc(dt, qt), "v", VF(jj % 2, dt), "a", P(pb), "v", None if jj == 0 else acc(dt, qt)))
        mf = []
        for k in range(8):
            if qk: mf.append(qk[k])
            if pv: mf.append(pv[k])
        if n >= 2 and msum:
            mf.append(mfma(LA(qt), "a", ONES, "a", P(pb), "v", None if jj == 0 else LA(qt)))
        nm = len(mf)
        sc = nm/17.0 if msum else nm/16.0
        def G(x): return min(nm-1, int(x*sc))
        chains = []
        if 1 <= n <= 96:
            jj2, qt2 = divmod(n-1, 6)
            sb = (n-1) % 2; pb2 = (n-1) % 2
            e = [S(sb, 0)+r for r in range(4)] + [S(sb, 1)+r for r in range(4)]
            chains.append([([ins(f"v_exp_f32 v{e[k]}, v{e[k]}")], G(2*k), G(2*k)) for k in range(8)])
            cv = []
            for k in range(8):
                if not msum: cv.append(([ins(f"v_add_f32 v{LS+qt2}, v{LS+qt2}, v{e[k]}")], G(2*k+1), G(2*k+1)))
                if k % 2 == 1:
                    cv.append(([ins(f"v_cvt_pk_bf16_f32 v{P(pb2)+k//2}, v{e[k-1]}, v{e[k]}")], G(2*k+1), G(2*k+1)))
            chains.append(cv)
        if n >= 2:
            jb, q = divmod(n-2, 6)
            if jb + 1 <= 15:
                par = (jb+1) % 2
                rds = []
                if q in (0, 1): rds = [self.rd_k(par, q, ks) for ks in range(4)]
                else:
                    for dt in range((q-2)*2, (q-2)*2+2): rds += [self.rd_v(par, dt, 0), self.rd_v(par, dt, 1)]
                gp = [1, 5, 9, 13] if q != 5 else [1, 5, 9, 10]
                chains.append([([x], G(gp[k]), G(gp[k])) for k, x in enumerate(rds)])
        if dma:
            nd = sum(1 for x in dma if x.kind == "dma")
            slots = {0: [], 1: [16], 2: [11, 16], 4: [3, 7, 11, 16], 8: [2, 4, 6, 8, 10, 12, 14, 16]}.get(nd) or [int(3 + (16-3)*k/(nd-1)) for k in range(nd)]
            ch = []; seen = 0
            for x in dma:
                if x.kind == "dma":
                    g = G(slots[seen]); seen += 1
                    grp = [x] if x.meta.get("credit") is None else [ins(f"s_waitcnt vmcnt({x.meta['credit']})"), x]
                    ch.append((grp, g, g))
                else:
                    ch.append(([x], 0, nm-1))
            for k in range(len(ch)-2, -1, -1):
                if ch[k][0][-1].kind != "dma": ch[k] = (ch[k][0], 0, max(0, ch[k+1][2] - (1 if ch[k+1][0][-1].kind == "dma" else 0)))
            chains.append(ch)
        if early: chains.append([([x], 0, nm-1) for x in early])
        if extra: chains.append([(g, (k*nm)//len(extra), nm-1) for k, g in enumerate(extra)])
        self.run(mf, chains, pre)

    def body(self, j, dmaG, tog=(), nper=6, extra=()):
        bar = []
        if j + 1 <= 15: bar.append(wait_tag(("kv", j+1)))
        if extra: bar.append(wait_tag(("wo",)))
        bar += [ins("s_waitcnt lgkmcnt(0)"), ins("s_barrier")]
        if self.o.get("baracct"):
            b0 = [ins("s_memtime s[92:93]"), ins("s_waitcnt lgkmcnt(0)")]
            b1 = [ins("s_memtime s[94:95]"), ins("s_waitcnt lgkmcnt(0)")]
            b2 = [ins("s_memtime s[96:97]"), ins("s_waitcnt lgkmcnt(0)"), ins("s_sub_u32 s98, s94, s92"), ins("s_add_u32 s100, s100, s98"),
                  ins("s_sub_u32 s98, s96, s94"), ins("s_add_u32 s101, s101, s98")]
            bar = b0 + bar[:1] + b1 + bar[1:] + b2
        tk = [x for x in tog if any(f"v{KA+z}," in x.txt for z in range(4))]
        tv = [x for x in tog if x not in tk]
        flat = [x for g in dmaG for x in g]
        cr = self.o.get("credit")
        if cr is not None:
            for x in flat:
                if x.kind == "dma": x.meta["credit"] = cr
        nd = sum(1 for x in flat if x.kind == "dma")
        if nd == 8: cnt = self.o.get("dmacnt", [1, 1, 2, 1, 1, 2])
        else: cnt = [nd//6 + (1 if q < nd % 6 else 0) for q in range(6)]
        per = [[] for _ in range(6)]
        q = 0; seen = 0
        for x in flat:
            while q < 5 and seen >= cnt[q]: q += 1; seen = 0
            per[q].append(x)
            if x.kind == "dma": seen += 1
        for q in range(6):
            e = tv[:4] if q == 0 else (tv[4:] if q == 1 else [])
            ex = []
            if extra:
                n = len(extra); ex = extra[q*n//6:(q+1)*n//6]
            self.period(6*j + 2 + q, dma=per[q], pre=(bar + tk) if q == 0 else (), early=e, extra=ex)

    def tog(self):
        return [ins(f"v_xor_b32 v{KA+x}, {PHI}, v{KA+x}") for x in range(4)] + [ins(f"v_xor_b32 v{VA+x}, {PHI}, v{VA+x}") for x in range(8)]
    def attention_shared(self):
        p = self.p
        if self.o.get("kvplan") is None:
            t3 = self.kv_pieces(3, 0, 8)
            self.period(0, dma=[x for g in t3[:4] for x in g]); self.period(1, dma=[x for g in t3[4:] for x in g])
        else:
            self.period(0); self.period(1)
        self.body(0, self.dma_kv_abs(("kv", 4), 0))
        p(f"s_mov_b32 s{sM}, s{sKVl}")
        p(f"s_mov_b32 s{sCnt}, 5")
        for k in range(5):
            j = 1 + 2*k
            p.raw(f"@@LB at {k}")
            self.stamp(True)
            g1 = self.dma_kv(("kv", j+4), f"s_add_u32 m0, s{sM}, 8192", f"s_add_u32 m0, s{sM}, 12288")
            self.body(j, g1, tog=self.tog())
            g2 = self.dma_kv(("kv", j+5), f"s_add_u32 m0, s{sM}, 0", f"s_add_u32 m0, s{sM}, 4096")
            self.body(j+1, [[ins(f"s_xor_b32 s{sM}, s{sM}, {PHI}")]] + g2)
            p(f"s_sub_u32 s{sCnt}, s{sCnt}, 1"); p(f"s_cmp_lg_u32 s{sCnt}, 0"); p("s_cbranch_scc1 L_at")
            p.raw(f"@@LE at {k}")
        self.body(11, self.dma_kv_abs(("kv", 15), 3), tog=self.tog())
        self.body(12, [])
    def attention_tail(self, last):
        if not last:
            self.body(13, [], tog=self.tog())
            self.body(14, [])
            self.body(15, self.w_tile(0, 1) + self.x_tile(0) + self.w_tile(1, 1), tog=self.tog())
        else:
            self.body(13, self.dma_wo_last(), tog=self.tog())
            self.body(14, [])
            self.body(15, [], extra=self.wo_prep_groups())
    def wo_prep_groups(self):
        setup = [ins("v_and_b32 v7, 15, v0"), ins("v_lshrrev_b32 v2, 4, v0"), ins("v_lshrrev_b32 v3, 2, v7"), ins("v_and_b32 v7, 3, v7"),
                 ins("v_lshl_add_u32 v6, v2, 2, v3"), ins("v_lshlrev_b32 v6, 10, v6"), ins("v_lshl_add_u32 v6, v7, 4, v6"),
                 ins(f"s_lshl_b32 s88, s{sW}, 8"), ins("v_add_u32 v6, s88, v6")]
        G = [[x] for x in setup]
        for nt in range(8):
            u, par = nt >> 1, nt & 1
            d = KF(0, 0, 0) + nt*4
            G.append([ins(f"ds_read_b64_tr_b16 a[{d}:{d+1}], v6 offset:{64*u + 8*par}")])
            G.append([ins(f"ds_read_b64_tr_b16 a[{d+2}:{d+3}], v6 offset:{16384 + 64*u + 8*par}")])
        for nt in range(8):
            d = KF(0, 0, 0) + nt*4
            g = []
            if nt % 4 == 0: g.append(ins(f"s_add_u32 s{sT1}, s{sWTo}, {nt*1024}"))
            g.append(ins(f"buffer_store_dwordx4 a[{d}:{d+3}], v{VST}, s[{SWT}:{SWT+3}], s{sT1} offen offset:{(nt % 4)*1024} {self.o['last_store_mod']}"))
            G.append(g)
        return G
    def dma_wo_last(self):
        G = []
        for half in range(2):
            g = [ins(f"s_add_u32 s{sT1}, s{sWOo}, {half*4096}"), ins(f"s_lshl_b32 s{sWoM}, s{sW}, 13"), ins(f"s_add_u32 m0, s{sWoM}, {half*4096}")]
            for n in range(4):
                g.append(ins(f"buffer_load_dwordx4 v{VST}, s[{SWO}:{SWO+3}], s{sT1} offen offset:{1024*n} nt lds", tag=("wo",)))
                G.append(g); g = []
        return G

    def o_epilogue(self, last):
        p = self.p
        for qt in range(6): p(f"v_accvgpr_read_b32 v{LS+qt}, a{LA(qt)}")
        for qt in range(6): p(f"v_rcp_f32 v{LS+qt}, v{LS+qt}")
        for qt in range(6):
            for ks in range(4):
                a0, a1 = acc(2*ks, qt), acc(2*ks+1, qt)
                l = LS + qt
                for r in range(4): p(f"v_mul_f32 v{a0+r}, v{l}, v{a0+r}")
                for r in range(4): p(f"v_mul_f32 v{a1+r}, v{l}, v{a1+r}")
                t0 = SB + ((ks + 4*qt) % 6)*4
                p(f"v_cvt_pk_bf16_f32 v{t0}, v{a0}, v{a0+1}")
                p(f"v_cvt_pk_bf16_f32 v{t0+1}, v{a0+2}, v{a0+3}")
                p(f"v_cvt_pk_bf16_f32 v{t0+2}, v{a1}, v{a1+1}")
                p(f"v_cvt_pk_bf16_f32 v{t0+3}, v{a1+2}, v{a1+3}")
                n = ks*6 + qt
                if last:
                    p(f"s_add_u32 s{sT0}, s{sOo}, {n*1024}")
                    p(f"buffer_store_dwordx4 v[{t0}:{t0+3}], v{VST}, s[{SO}:{SO+3}], s{sT0} offen {self.o['last_store_mod']}", tag=("o",))
                else:
                    for r in range(4): p(f"v_accvgpr_write_b32 a{OS(n)+r}, v{t0+r}")

    def final(self):
        p = self.p
        p.wait_tag(("wo",))
        p("s_barrier")
        p("v_and_b32 v8, 15, v0"); p("v_lshrrev_b32 v2, 4, v0"); p("v_lshrrev_b32 v3, 2, v8"); p("v_and_b32 v7, 3, v8")
        p("v_lshl_add_u32 v6, v2, 2, v3"); p("v_lshlrev_b32 v6, 10, v6"); p("v_lshl_add_u32 v6, v7, 4, v6")
        p(f"s_lshl_b32 s88, s{sW}, 8"); p("v_add_u32 v6, s88, v6")
        for nt in range(8):
            u, par = nt >> 1, nt & 1
            d = 32 + nt*4
            p(f"ds_read_b64_tr_b16 v[{d}:{d+1}], v6 offset:{64*u + 8*par}")
            p(f"ds_read_b64_tr_b16 v[{d+2}:{d+3}], v6 offset:{16384 + 64*u + 8*par}")
        for nt in range(8):
            d = 32 + nt*4
            if nt % 4 == 0: p(f"s_add_u32 s{sT1}, s{sWTo}, {nt*1024}")
            p(f"buffer_store_dwordx4 v[{d}:{d+3}], v{VST}, s[{SWT}:{SWT+3}], s{sT1} offen offset:{(nt % 4)*1024} {self.o['last_store_mod']}")

    def build(self):
        p = self.p
        assert self.o["msum"]
        self.prologue()
        if self.o["timing"]: p("s_mov_b32 s99, 0")
        self.stamp()
        p(f"s_mov_b32 s{SO+2}, {O_BYTES}")
        self.emit_groups(self.w_tile(0, 0) + self.x_tile(0) + self.w_tile(1, 0))
        self.prologue2()
        for item in range(2):
            last = item == 1
            p.raw("@@SB A"); self.qproj_a(); p.raw("@@SE A")
            p.raw(f"@@SB B{item}"); self.qproj_b(last); self.stamp(); p.raw(f"@@SE B{item}")
            p.raw("@@SB C"); self.attention_shared(); p.raw("@@SE C")
            p.raw(f"@@SB D{item}")
            self.attention_tail(last)
            self.stamp()
            self.o_epilogue(last)
            self.stamp()
            if not last:
                p(f"s_add_u32 s{sWo}, s{sWo}, 256"); p(f"s_add_u32 s{sOo}, s{sOo}, {4*6144}")
                p(f"s_mov_b32 s{sItem}, 1")
            else:
                self.stamp()
                p("s_waitcnt vmcnt(0)")
                self.stamp()
                self.stamp_flush()
                p("s_waitcnt vmcnt(0)")
            p.raw(f"@@SE D{item}")
        L, st = finalize(p.L)
        L = fold(L)
        segs, top = segments(L)
        out = [i for k, i in top if k == "ins"]
        lab = lambda t: I(t, "label")
        br = lambda tgt: [ins(f"s_cmp_eq_u32 s{sItem}, 1"), ins(f"s_cbranch_scc1 {tgt}")]
        out += [lab("L_A:")] + segs["A"] + br("L_B1") + segs["B0"] + [lab("L_C:")] + segs["C"] + br("L_D1") + segs["D0"] + [ins("s_branch L_A")]
        out += [lab("L_B1:")] + segs["B1"] + [ins("s_branch L_C")]
        out += [lab("L_D1:")] + segs["D1"] + [lab("K2_END:"), ins("s_endpgm")]
        return out, st

if __name__ == "__main__":
    k = K2(); L, st = k.build()
    print(st, len(L))
```

```python
from dsl import *
import struct

def f32(x): return "0x%08x" % struct.unpack("<I", struct.pack("<f", x))[0]

NB, SQ, DM, H, SK, DH = 16, 192, 512, 32, 512, 128
X_BYTES = NB*SQ*DM*2
KV_BYTES = NB*H*SK*DH*2
W_BYTES = DM*H*DH*2
O_BYTES = 2*NB*2*128*6*1024
WOT_OFF = O_BYTES
WOT_BYTES = 2*4*128*8*1024
OUT_BYTES = NB*SQ*1024*2

PHI = 65536
WSLOT = [65536, 81920, 98304]
XA, XB = 114688, 139264
DROP = 0x30000

ACC = 64
def acc(T, qt): return ACC + (T*6 + qt)*4
SB = 8
def S(buf, kt): return SB + buf*8 + kt*4
PB = 24
def P(buf): return PB + buf*4
LS = 32
KA = 38
VA = 42
DV = 50
WA = 54
XAD = 58
WD = [60, 61, 2, 3]
XD = [62, 63, 6, 7]
VST = 4
def Q(qt, ks): return (qt*4 + ks)*4
def OS(n): return n*4
def KF(buf, kt, ks): return 96 + buf*32 + (kt*4 + ks)*4
def VF(buf, dt): return 160 + buf*32 + dt*4
def WF(T): return 96 + T*4
def XF(buf, qt): return 128 + buf*24 + qt*4
ONES = 224
def LA(qt): return 228 + qt*4
SX, SW, SKV, SO, SWO, SWT = 4, 8, 12, 16, 20, 24
sW, sHP, sRH, sP, sB, sHG = 28, 29, 30, 31, 32, 33
sKVo, sKVl, sWo, sWl, sXo, sXl, sOo = 34, 35, 36, 37, 38, 39, 40
sT0, sT1, sC = 41, 42, 43
sWOo, sWTo = 44, 45
sItem, sCnt = 46, 47
sTile, sM, sTh1, sTh2, sWarmW, sWarmX, sWoM, sDrop, sTc, sRot = 74, 75, 76, 77, 78, 79, 80, 81, 84, 85
sT2 = 83
sC2 = 86
sWR, sXR = 78, 79

SFL = 92
kA, kBo, kT0, kT1, kOut, kCnt = 74, 78, 80, 81, 79, 47
sC1, sC2o = 97, 96
def oacc(nu, qt): return ACC + (nu*6 + qt)*4
def AF(buf, nu): return buf*56 + nu*4
def BF(buf, qt): return buf*56 + 32 + qt*4
VB4 = 6
VPOLL = 34
MF = "v_mfma_f32_16x16x32_bf16"
def mfma(d, dk, a, ak, b, bk, c=None):
    cs = "0" if c is None else rng(dk, c, 4)
    return ins(f"{MF} {rng(dk,d,4)}, {rng(ak,a,4)}, {rng(bk,b,4)}, {cs}")

class K2:
    def __init__(self, opts=None):
        self.o = dict(nt="nt", w_mod="", x_mod="", store_mod="sc1", last_store_mod="sc1", timing=False, msum=True, warm=False, qrot=True, drop=[])
        if opts: self.o.update(opts)
        self.p = Prog()
        self.phase = ""

    def tile_addr(self):
        if not self.o.get("rot"):
            return [ins(f"s_add_u32 s{sTile}, s{sKVo}, s{sTc}"), ins(f"s_add_u32 s{sTc}, s{sTc}, 8192")]
        return [ins(f"s_add_u32 s{sTile}, s{sTc}, s{sRot}"), ins(f"s_and_b32 s{sTile}, s{sTile}, 0x1ffff"),
                ins(f"s_and_b32 s{sT0}, s{sTc}, 0x20000"), ins(f"s_add_u32 s{sTile}, s{sTile}, s{sT0}"),
                ins(f"s_add_u32 s{sTile}, s{sTile}, s{sKVo}"), ins(f"s_add_u32 s{sTc}, s{sTc}, 8192")]
    def dma_kv(self, tag, m0a, m0b, pre=()):
        nt = self.o['nt']
        G = []
        g = list(pre) + self.tile_addr() + [ins(m0a)]
        for k in range(4):
            g.append(ins(f"buffer_load_dwordx4 v{DV+k}, s[{SKV}:{SKV+3}], s{sTile} offen offset:{1024*k} {nt} lds", tag=tag))
            G.append(g); g = []
        g = [ins(f"s_add_u32 s{sT0}, s{sTile}, 4096"), ins(m0b)]
        for k in range(4):
            g.append(ins(f"buffer_load_dwordx4 v{DV+k}, s[{SKV}:{SKV+3}], s{sT0} offen offset:{1024*k} {nt} lds", tag=tag))
            G.append(g); g = []
        return G
    def dma_kv_abs(self, tag, slot):
        o = (slot >> 1)*PHI + (slot & 1)*8192
        return self.dma_kv(tag, f"s_add_u32 m0, s{sKVl}, {o}", f"s_add_u32 m0, s{sKVl}, {o + 4096}")
    def kv_pieces(self, tile, a, b):
        G = self.dma_kv_abs(("kv", tile), tile % 4)
        out = G[a:b]
        if a not in (0, 4):
            slot = tile % 4
            o = (slot >> 1)*PHI + (slot & 1)*8192 + (4096 if a >= 4 else 0)
            out[0] = [ins(f"s_add_u32 m0, s{sKVl}, {o}")] + out[0]
        return out
    def dma_w(self, tag, base_reg, goff, m0txt, rot=None):
        G = []
        if rot is None: g = [ins(f"s_add_u32 s{sT1}, s{base_reg}, {goff}")]
        else:
            g = [ins(f"s_add_u32 s{sT1}, s{sWR}, {rot*262144}"), ins(f"s_and_b32 s{sT1}, s{sT1}, 0x3fffff"), ins(f"s_add_u32 s{sT1}, s{sT1}, s{base_reg}")]
            if goff: g.append(ins(f"s_add_u32 s{sT1}, s{sT1}, {goff}"))
        g.append(ins(m0txt))
        for n in range(4):
            g.append(ins(f"buffer_load_dwordx4 v{WD[n]}, s[{SW}:{SW+3}], s{sT1} offen offset:{1024*n} {self.o['w_mod']} lds", tag=tag))
            G.append(g); g = []
        return G
    def x_soff(self, base_reg, tt):
        if not self.o.get("qrot"): return [ins(f"s_add_u32 s{sT1}, s{base_reg}, {tt*128}")]
        return [ins(f"s_add_u32 s{sT1}, s{sXR}, {tt*128}"), ins(f"s_and_b32 s{sT1}, s{sT1}, 1023"), ins(f"s_add_u32 s{sT1}, s{sT1}, s{base_reg}")]
    def dma_x(self, tag, base_reg, tt, m0a, m0b):
        G = []
        m = self.o['x_mod']
        g = self.x_soff(base_reg, tt) + [ins(m0a)]
        for n in range(4):
            g.append(ins(f"buffer_load_dwordx4 v{XD[n]}, s[{SX}:{SX+3}], s{sT1} offen offset:{1024*n} {m} lds", tag=tag))
            G.append(g); g = []
        g = [ins(f"s_add_u32 s{sT1}, s{sT1}, {4*8192}"), ins(m0b)]
        for n in range(2):
            g.append(ins(f"buffer_load_dwordx4 v{XD[n]}, s[{SX}:{SX+3}], s{sT1} offen offset:{1024*n} {m} lds", tag=tag))
            G.append(g); g = []
        return G
    def w_tile(self, t, nxt=0):
        m0 = f"s_add_u32 m0, s{sWl}, {WSLOT[t % 3]}"
        if self.o.get("qrot"): return self.dma_w(("w", t), sWo, nxt*256, m0, rot=t)
        return self.dma_w(("w", t), sWo, nxt*256 + t*262144, m0)
    def x_tile(self, tt):
        sl = XB if tt % 2 == 0 else XA
        return self.dma_x(("x", tt), sXo, tt, f"s_add_u32 m0, s{sXl}, {sl}", f"s_add_u32 m0, s{sXl}, {sl + 4096}")
    def warmup(self, nxt):
        if not self.o["warm"]: return []
        G = []
        def ld(v, srd, soff, off, mod):
            i = ins(f"buffer_load_dwordx4 a[252:255], v{v}, s[{srd}:{srd+3}], s{soff} offen offset:{off} {mod}", tag=("warm",))
            i.kind = "dma"; i.wr = set(); i.rd.discard("m0")
            return i
        for k in range(2):
            g = [ins(f"s_add_u32 s{sT1}, s{sWarmW}, {nxt*256 + k*262144}")]
            for n in range(4):
                g.append(ld(WD[n], SW, sT1, 1024*n, self.o['w_mod'])); G.append(g); g = []
        if nxt == 0 or self.o.get("warmx1", True):
            for k in range(2):
                g = [ins(f"s_add_u32 s{sT1}, s{sWarmX}, {k*128}")]
                for n in range(4):
                    g.append(ld(XD[n], SX, sT1, 1024*n, self.o['x_mod'])); G.append(g); g = []
                g = [ins(f"s_add_u32 s{sT1}, s{sT1}, {4*8192}")]
                for n in range(2):
                    g.append(ld(XD[n], SX, sT1, 1024*n, self.o['x_mod'])); G.append(g); g = []
        return G
    def next_item_prefetch(self, nxt=1):
        return self.w_tile(0, nxt) + self.x_tile(0) + self.w_tile(1, nxt) + self.w_tile(2, nxt) + self.x_tile(1)
    def dma_wo(self):
        G = []
        for half in range(2):
            g = [ins(f"s_add_u32 s{sT1}, s{sWOo}, {half*4096}"), ins(f"s_add_u32 m0, s{sWoM}, {half*4096}")]
            for n in range(4):
                g.append(ins(f"buffer_load_dwordx4 v{VST}, s[{SWO}:{SWO+3}], s{sT1} offen offset:{1024*n} nt lds", tag=("wo",)))
                G.append(g); g = []
        return G
    def o_store(self, n, mod, prev, force=False):
        g = []
        if n % 4 == 0 or force: g.append(ins(f"s_add_u32 s{sT2}, s{sOo}, {((n & ~3)*1024 - (4*6144 if prev else 0)) & 0xffffffff}"))
        g.append(ins(f"buffer_store_dwordx4 {rng('a', OS(n), 4)}, v{VST}, s[{SO}:{SO+3}], s{sT2} offen offset:{(n % 4)*1024} {mod}", tag=("o",)))
        return g
    def rd_k(self, par, kt, ks):
        return ins(f"ds_read_b128 {rng('a', KF(par, kt, ks), 4)}, v{KA+ks} offset:{par*8192 + kt*4096}")
    def rd_v(self, par, dt, kt):
        return ins(f"ds_read_b64_tr_b16 {rng('a', VF(par, dt) + 2*kt, 2)}, v{VA+dt} offset:{par*8192 + kt*4096}")
    def rd_w(self, t, T, h2):
        ks, u = T >> 1, T & 1
        return ins(f"ds_read_b64_tr_b16 {rng('a', WF(T) + 2*h2, 2)}, v{WA+ks} offset:{(t % 3)*16384 + h2*2048 + 8*u}")
    def rd_x(self, t, qt):
        tt = t >> 1
        return ins(f"ds_read_b128 {rng('a', XF(t % 2, qt), 4)}, v{XAD + (t & 1)} offset:{(24576 if tt % 2 == 0 else 0) + qt*2048}")

    def prologue(self):
        p = self.p
        p("s_cmp_ge_u32 s2, 256")
        p("s_cbranch_scc1 K2_END")
        p("s_load_dwordx16 s[48:63], s[0:1], 0")
        p("s_load_dwordx8 s[64:71], s[0:1], 64")
        p("s_load_dwordx2 s[72:73], s[0:1], 96")
        p(f"v_lshrrev_b32 v1, 6, v0")
        p(f"v_and_b32 v0, 63, v0")
        p(f"v_readfirstlane_b32 s{sW}, v1")
        p("s_and_b32 s86, s2, 7")
        p("s_lshr_b32 s87, s2, 3")
        p(f"s_lshr_b32 s{sP}, s86, 2")
        p("s_and_b32 s88, s86, 1"); p("s_lshl_b32 s88, s88, 3"); p("s_and_b32 s82, s87, 7")
        p(f"s_add_u32 s{sB}, s88, s82")
        p("s_lshr_b32 s88, s86, 1"); p("s_and_b32 s88, s88, 1"); p("s_lshl_b32 s88, s88, 2"); p("s_lshr_b32 s83, s87, 3")
        p(f"s_add_u32 s{sHG}, s88, s83")
        p(f"s_and_b32 s{sHP}, s{sW}, 1")
        p(f"s_lshr_b32 s{sRH}, s{sW}, 1")
        p("s_waitcnt lgkmcnt(0)")
        p(f"s_cmp_eq_u32 s{sP}, 0")
        p(f"s_cselect_b32 s{SX}, s48, s58"); p(f"s_cselect_b32 s{SX+1}, s49, s59")
        p(f"s_cselect_b32 s{SW}, s54, s64"); p(f"s_cselect_b32 s{SW+1}, s55, s65")
        p(f"s_cselect_b32 s{SWO}, s56, s66"); p(f"s_cselect_b32 s{SWO+1}, s57, s67")
        p(f"s_cselect_b32 s90, s50, s60"); p(f"s_cselect_b32 s91, s51, s61")
        p(f"s_cselect_b32 s92, s52, s62"); p(f"s_cselect_b32 s93, s53, s63")
        p(f"s_cmp_eq_u32 s{sRH}, 0")
        p(f"s_cselect_b32 s{SKV}, s90, s92"); p(f"s_cselect_b32 s{SKV+1}, s91, s93")
        p(f"s_cselect_b32 s94, 64, 128"); p(f"s_cselect_b32 s95, 128, 0"); p("s_mov_b32 s96, 128"); p(f"s_cselect_b32 s96, 192, s96")
        p(f"s_cselect_b32 s97, 0, 1")
        p(f"s_cselect_b32 s{sKVl}, 0, 32768")
        for r, n in ((SX, X_BYTES), (SW, W_BYTES), (SWO, W_BYTES), (SKV, KV_BYTES)):
            p(f"s_mov_b32 s{r+2}, {n}"); p(f"s_mov_b32 s{r+3}, 0x00020000")
        p(f"s_mov_b32 s{SO}, s72"); p(f"s_mov_b32 s{SO+1}, s73"); p(f"s_mov_b32 s{SO+2}, 0"); p(f"s_mov_b32 s{SO+3}, 0x00020000")
        p(f"s_add_u32 s{SWT}, s72, {WOT_OFF}"); p(f"s_addc_u32 s{SWT+1}, s73, 0"); p(f"s_mov_b32 s{SWT+2}, {WOT_BYTES}"); p(f"s_mov_b32 s{SWT+3}, 0x00020000")
        p(f"s_lshl_b32 s88, s{sB}, 5"); p(f"s_lshl_b32 s89, s{sHG}, 2"); p("s_add_u32 s88, s88, s89"); p(f"s_lshl_b32 s89, s{sHP}, 1"); p("s_add_u32 s88, s88, s89")
        p(f"s_lshl_b32 s{sKVo}, s88, 17")
        p(f"s_lshl_b32 s89, s{sHP}, 14"); p(f"s_add_u32 s{sKVl}, s{sKVl}, s89")
        p(f"s_lshl_b32 s88, s{sW}, 16"); p(f"s_lshl_b32 s89, s{sHG}, 10"); p(f"s_add_u32 s{sWo}, s88, s89")
        p(f"s_lshl_b32 s{sWl}, s{sW}, 12")
        p(f"s_lshl_b32 s88, s82, 19"); p(f"s_add_u32 s{sWarmW}, s{sWo}, s88")
        p(f"s_mul_i32 s88, s{sB}, 196608"); p(f"s_mul_i32 s89, s{sW}, 49152"); p(f"s_add_u32 s{sXo}, s88, s89")
        p(f"s_mul_i32 s{sXl}, s{sW}, 6144")
        p(f"s_lshl_b32 s88, s83, 8"); p(f"s_add_u32 s{sWarmX}, s{sXo}, s88")
        if self.o.get("qrot"):
            assert not self.o["warm"]
            p("s_lshl_b32 s88, s83, 1"); p("s_add_u32 s88, s88, s82"); p("s_and_b32 s88, s88, 7")
            p(f"s_lshl_b32 s{sWR}, s88, 19"); p(f"s_lshl_b32 s{sXR}, s88, 7")
        p(f"s_mov_b32 s{sDrop}, {DROP}")
        p("s_mul_i32 s88, s2, 5"); p("s_lshr_b32 s89, s2, 4"); p("s_add_u32 s88, s88, s89"); p("s_and_b32 s88, s88, 15"); p(f"s_lshl_b32 s{sRot}, s88, 13")
        p(f"s_lshl_b32 s88, s{sP}, 4"); p(f"s_add_u32 s88, s88, s{sB}"); p("s_lshl_b32 s88, s88, 1"); p(f"s_add_u32 s88, s88, s{sRH}")
        p("s_lshl_b32 s88, s88, 7"); p(f"s_lshl_b32 s89, s{sHG}, 4"); p("s_add_u32 s88, s88, s89"); p(f"s_lshl_b32 s89, s{sHP}, 3"); p("s_add_u32 s88, s88, s89")
        p(f"s_mul_i32 s{sOo}, s88, 6144")
        p("s_and_b32 s88, s86, 3"); p("s_lshl_b32 s88, s88, 5"); p("s_add_u32 s88, s88, s87")
        p(f"s_lshl_b32 s89, s88, 15"); p(f"s_lshl_b32 s98, s{sW}, 13"); p(f"s_add_u32 s{sWOo}, s89, s98")
        p(f"s_lshl_b32 s89, s{sP}, 2"); p(f"s_add_u32 s89, s89, s{sW}"); p("s_lshl_b32 s89, s89, 7"); p("s_add_u32 s89, s89, s88"); p(f"s_lshl_b32 s{sWTo}, s89, 13")
        p(f"s_mov_b32 s{sC}, {f32(1.4426950408889634*128**-0.5)}")
        p(f"s_mov_b32 s{sItem}, 0")
        self.late_consts = True
        i_, g_, r_, c_ = "v14", "v8", "v9", "v10"
        p(f"v_and_b32 {i_}, 15, v0"); p(f"v_lshrrev_b32 {g_}, 4, v0"); p(f"v_lshrrev_b32 {r_}, 2, {i_}"); p(f"v_and_b32 {c_}, 3, {i_}")
        p(f"v_lshlrev_b32 v{VST}, 4, v0")
        p("v_lshrrev_b32 v11, 5, v0"); p("v_and_b32 v12, 15, v0"); p("v_lshlrev_b32 v13, 2, v11"); p("v_xor_b32 v12, v12, v13"); p("v_lshlrev_b32 v12, 4, v12")
        p("v_lshl_add_u32 v12, v11, 13, v12"); p("v_bfe_u32 v13, v0, 4, 1"); p(f"v_lshl_add_u32 v{WD[0]}, v13, 9, v12")
        p(f"v_xor_b32 v{WD[1]}, 128, v{WD[0]}"); p(f"v_add_u32 v{WD[2]}, {2*15360}, v{WD[0]}"); p(f"v_add_u32 v{WD[3]}, {3*15360}, v{WD[1]}"); p(f"v_add_u32 v{WD[1]}, 15360, v{WD[1]}")
        p("v_lshrrev_b32 v11, 3, v0"); p("v_and_b32 v12, 7, v0"); p(f"v_xor_b32 v12, v12, {g_}"); p("v_lshlrev_b32 v12, 4, v12")
        p(f"v_lshl_add_u32 v{XD[0]}, v11, 10, v12"); p(f"v_xor_b32 v{XD[1]}, 64, v{XD[0]}")
        p(f"v_add_u32 v{XD[2]}, {2*7168}, v{XD[0]}"); p(f"v_add_u32 v{XD[3]}, {3*7168}, v{XD[1]}"); p(f"v_add_u32 v{XD[1]}, 7168, v{XD[1]}")
        p(f"v_lshlrev_b32 v11, s97, {g_}"); p(f"v_xor_b32 v11, v11, {i_}"); p("v_lshlrev_b32 v11, 4, v11"); p(f"v_lshl_add_u32 v{DV}, {g_}, 8, v11")
        for k in range(1, 4): p(f"v_xor_b32 v{DV+k}, s{93+k}, v{DV}")
        self.lane = (i_, g_, r_, c_)
    def prologue2(self):
        p = self.p
        i_, g_, r_, c_ = self.lane
        p(f"s_lshl_b32 s88, s{sHP}, 14")
        p(f"v_xor_b32 v11, {g_}, {i_}"); p("v_lshlrev_b32 v11, 4, v11"); p(f"v_lshl_add_u32 v11, {i_}, 8, v11"); p(f"v_add_u32 v{KA}, s88, v11")
        for ks in range(1, 4): p(f"v_xor_b32 v{KA+ks}, {64*ks}, v{KA}")
        p(f"v_and_b32 v11, 1, {g_}"); p("v_lshlrev_b32 v11, 2, v11"); p(f"v_add_u32 v11, v11, {r_}"); p("v_lshlrev_b32 v11, 1, v11")
        p(f"v_lshrrev_b32 v12, 1, {c_}"); p("v_xor_b32 v11, v11, v12"); p("v_lshlrev_b32 v11, 4, v11")
        p(f"v_and_b32 v12, 1, {c_}"); p("v_lshl_add_u32 v11, v12, 3, v11")
        p(f"v_lshl_add_u32 v12, {g_}, 2, {r_}"); p("v_lshl_add_u32 v11, v12, 8, v11")
        p("s_add_u32 s89, s88, 32768"); p(f"v_add_u32 v{VA}, s89, v11")
        for dt in range(1, 8): p(f"v_xor_b32 v{VA+dt}, {32*dt}, v{VA}")
        p(f"s_lshl_b32 s88, s{sHP}, 4")
        p(f"v_add_u32 v11, s88, {c_}"); p(f"v_lshlrev_b32 v12, 2, {r_}"); p("v_xor_b32 v11, v11, v12"); p("v_lshlrev_b32 v11, 4, v11")
        p(f"v_lshl_add_u32 v12, {g_}, 3, {r_}"); p("v_lshl_add_u32 v11, v12, 9, v11"); p(f"v_add_u32 v{WA}, {WSLOT[0]}, v11")
        for ks in range(1, 4): p(f"v_xor_b32 v{WA+ks}, {64*ks}, v{WA}")
        p(f"s_mul_i32 s88, s{sRH}, {96*128}"); p(f"s_add_u32 s88, s88, {XA}")
        p(f"v_lshrrev_b32 v11, 1, {i_}"); p(f"v_xor_b32 v11, v11, {g_}"); p("v_lshlrev_b32 v11, 4, v11"); p(f"v_lshl_add_u32 v11, {i_}, 7, v11"); p(f"v_add_u32 v{XAD}, s88, v11")
        p(f"v_xor_b32 v{XAD+1}, 64, v{XAD}")
        p(f"s_mov_b32 s{sC2}, s{sC}"); p(f"s_mov_b32 s{sC2+1}, s{sC}")
        if self.o.get("fuse"):
            p(f"s_mov_b32 s{SFL}, s70"); p(f"s_mov_b32 s{SFL+1}, s71"); p(f"s_mov_b32 s{SFL+2}, 256"); p(f"s_mov_b32 s{SFL+3}, 0x00020000")
            p(f"s_lshl_b32 s{sC1}, s{sP}, 2")
            p(f"s_lshl_b32 s88, s{sP}, 4"); p(f"s_add_u32 s88, s88, s{sB}"); p("s_add_u32 s88, s88, 2"); p(f"s_lshl_b32 s{sC2o}, s88, 2")
        if self.o["msum"]:
            p("v_mov_b32 v11, 0x3f803f80")
            for r in range(4): p(f"v_accvgpr_write_b32 a{ONES+r}, v11")

    def stamp(self, fine=False):
        if not self.o["timing"]: return
        if fine and not self.o.get("fine"): return
        p = self.p
        p(f"s_memrealtime s[88:89]")
        p(f"s_memtime s[90:91]")
        p("s_waitcnt lgkmcnt(0)")
        p("s_mov_b32 m0, s99"); p("s_nop 1")
        p(f"v_writelane_b32 v5, s88, m0")
        p(f"v_writelane_b32 v1, s90, m0")
        p("s_add_u32 s99, s99, 1")
    def stamp_flush(self):
        if not self.o["timing"]: return
        p = self.p
        if self.o.get("dbg") is not None:
            p(f"s_cmp_eq_u32 s2, {self.o['dbg']}"); p("s_cselect_b32 s90, 64, 0"); p(f"s_cmp_eq_u32 s{sW}, 0"); p("s_cselect_b32 s90, s90, 0")
            p("s_mov_b32 s88, s70"); p("s_mov_b32 s89, s71"); p("s_mov_b32 s91, 0x00020000")
            src = "v1" if self.o.get("dbgcyc") else "v5"
            p("v_lshlrev_b32 v6, 2, v0")
            p(f"buffer_store_dword {src}, v6, s[88:91], 0 offen")
            p("s_add_u32 s88, s88, 512"); p("s_addc_u32 s89, s89, 0"); p("s_cmp_lg_u32 s90, 0"); p("s_cselect_b32 s90, 52, 0")
            p(f"buffer_store_dword {src}, v6, s[88:91], 0 offen")
            return
        p(f"s_add_u32 s88, s72, {64<<20}"); p("s_addc_u32 s89, s73, 0"); p(f"s_mov_b32 s90, {1<<20}"); p("s_mov_b32 s91, 0x00020000")
        p(f"s_lshl_b32 s92, s2, 2"); p(f"s_add_u32 s92, s92, s{sW}"); p("s_lshl_b32 s92, s92, 9")
        p("v_lshlrev_b32 v6, 2, v0")
        p("buffer_store_dword v5, v6, s[88:91], s92 offen")
        p("buffer_store_dword v1, v6, s[88:91], s92 offen offset:256")

    def emit_groups(self, groups):
        for g in groups:
            for x in g: self.p.add(x)
    def keep(self, x):
        drop = self.o["drop"]; ph = self.phase
        if x.kind == "dma" and ph + "_dma" in drop: return False
        if x.kind == "ds_read" and ph + "_lds" in drop: return False
        if x.kind == "barrier" and ph + "_bar" in drop: return False
        if x.kind == "trans" and ph + "_exp" in drop: return False
        if x.kind == "valu" and x.txt.startswith("v_add_f32") and ph + "_add" in drop: return False
        if x.kind == "valu" and x.txt.startswith("v_cvt") and ph + "_cvt" in drop: return False
        if x.kind == "vstore" and ph + "_st" in drop: return False
        return True
    def run(self, mf, chains, pre=()):
        ch = [[([x for x in g if self.keep(x)], lo, hi) for g, lo, hi in c] for c in chains]
        ch = [[it for it in c if it[0]] for c in ch]
        if self.phase + "_mfma" in self.o["drop"]: mf = [ins("s_nop 0") for _ in mf]
        self.p.extend(gapfill(mf, ch, pre=[x for x in pre if self.keep(x)]))

    def spaced(self, G, lo, hi):
        n = len(G)
        out = []
        for k, g in enumerate(G):
            pos = lo + (k*(hi - lo + 1))//n
            out.append((g, pos, pos + 1))
        return out
    def qstep(self, t, stores=(), sig=False):
        p = self.p
        self.phase = "qp"
        mf = []
        for T in range(8):
            for qt in range(6):
                mf.append(mfma(acc(T, qt), "v", WF(T), "a", XF(t % 2, qt), "a", None if t == 0 else acc(T, qt)))
        need = []
        for qt in range(6): need += R("a", XF(t % 2, qt), 4)
        for T in range(6): need += R("a", WF(T), 4)
        pre = [wait_regs(need)]
        chains = []
        BG = 11
        slow = []
        if t < 15:
            bar = [wait_tag(("w", t+1))]
            if t % 2 == 1: bar.append(wait_tag(("x", (t+1) >> 1)))
            chains.append([(bar, BG-1, BG-1), ([ins("s_waitcnt lgkmcnt(0)"), ins("s_barrier")], BG, BG)])
            cw = []
            for T in range(8):
                lo = max(BG+1, 6*T + 5)
                cw += [([self.rd_w(t+1, T, 0)], lo, min(47, lo + 8)), ([self.rd_w(t+1, T, 1)], lo, min(47, lo + 9))]
            chains.append(cw)
            chains.append([([self.rd_x(t+1, qt)], BG+1, 40) for qt in range(6)])
            GW = self.w_tile(t+3) if t + 3 <= 15 else []
            early = []; GX = []
            if t % 2 == 1 and (t >> 1) + 2 <= 7: GX = self.x_tile((t >> 1) + 2)[:3]
            if t % 2 == 0 and t >= 2 and ((t-1) >> 1) + 2 <= 7:
                tt = ((t-1) >> 1) + 2; sl = XB if tt % 2 == 0 else XA
                early = self.x_tile(tt)[3:]
                early[0] = self.x_soff(sXo, tt) + [ins(f"s_add_u32 m0, s{sXl}, {sl}")] + early[0]
            if t == 0: early = self.w_tile(2) + self.x_tile(1)
            late = GW + GX
            plan = self.o.get("kvplan", {10: (0, 0, 4), 11: (0, 4, 8), 12: (1, 0, 4), 13: (1, 4, 8)})
            if t in plan or str(t) in plan:
                slow = self.kv_pieces(*(plan.get(t) or plan.get(str(t))))
            c = []
            if t == 0:
                c = self.spaced(early + late, 0, 47); early = []; late = []
            if early:
                span = BG - 1
                for k, g in enumerate(early): c.append((g, int(k*span/len(early)), int(k*span/len(early)) + 1))
            hi = 47 if not (slow or stores) else (39 if len(slow) <= 2 else 32)
            if late: c += self.spaced(late, BG+2, hi)
            if slow: c += self.spaced(slow, (41 if len(slow) <= 2 else 34) if late else BG+2, 47)
            if c: chains.append(c)
        else:
            chains.append([([ins("s_waitcnt lgkmcnt(0)"), ins("s_barrier")], BG, BG)])
            G = self.kv_pieces(2, 0, 4 if self.o.get("look", 3) == 3 else 8)
            chains.append(self.spaced(G, BG+1, 47))
        if sig:
            chains.append([(self.signal(f"v_mov_b32 v{VPOLL+2}, s{sC1}"), BG+1, BG+3)])
        if stores:
            lo = 26 if t == 12 else 0
            if self.o.get("stA"): lo = 41
            chains.append(self.spaced([self.o_store(n, self.o["store_mod"], True, force=bool(self.o.get("stA")) and n % 2 == 0) for n in stores], lo, 47))
        self.run(mf, chains, pre)

    def qproj_a(self):
        p = self.p
        p(f"s_lshl_b32 s{sTc}, s{sItem}, 17")
        p.wait_tag(("w", 0)); p.wait_tag(("x", 0))
        p("s_barrier")
        self.stamp()
        for T in range(8):
            p.add(self.rd_w(0, T, 0)); p.add(self.rd_w(0, T, 1))
        for qt in range(6): p.add(self.rd_x(0, qt))
        for t in range(12):
            self.qstep(t, [2*t, 2*t+1] if self.o.get("stA") else ())
            if t in (3, 7, 11): self.stamp(True)
    def qproj_b(self, last):
        p = self.p
        st = (lambda a, b: list(range(a, b))) if (last and not self.o.get("stA")) else (lambda a, b: [])
        self.qstep(12, st(0, 3)); self.qstep(13, st(3, 9)); self.qstep(14, st(9, 15))
        self.qstep(15, st(15, 18), sig=bool(last and self.o.get("fuse")))
        self.stamp()
        for kt in range(2):
            for ks in range(4): p.add(self.rd_k(0, kt, ks))
        tmp = S(0, 0)
        rest = self.kv_pieces(2, 4, 8) if self.o.get("look", 3) == 3 else []
        late = st(18, 24)
        for qt in range(6):
            for ks in range(4):
                n = qt*4 + ks
                a0, a1 = acc(2*ks, qt), acc(2*ks+1, qt)
                if self.o.get("pk", True):
                    for a in (a0, a0+2, a1, a1+2): p(f"v_pk_mul_f32 v[{a}:{a+1}], v[{a}:{a+1}], s[{sC2}:{sC2+1}]")
                else:
                    for r in range(4): p(f"v_mul_f32 v{a0+r}, s{sC}, v{a0+r}")
                    for r in range(4): p(f"v_mul_f32 v{a1+r}, s{sC}, v{a1+r}")
                t0 = tmp + (n % 4)*4
                p(f"v_cvt_pk_bf16_f32 v{t0}, v{a0}, v{a0+1}")
                p(f"v_cvt_pk_bf16_f32 v{t0+1}, v{a0+2}, v{a0+3}")
                p(f"v_cvt_pk_bf16_f32 v{t0+2}, v{a1}, v{a1+1}")
                p(f"v_cvt_pk_bf16_f32 v{t0+3}, v{a1+2}, v{a1+3}")
                if late and n % 2 == 0 and n < 18:
                    m = late.pop(0)
                    for x in self.o_store(m, self.o["store_mod"], True, force=True): p.add(x)
                for r in range(4): p(f"v_accvgpr_write_b32 a{Q(qt,ks)+r}, v{t0+r}")
                if rest and n % 4 == 3 and n >= 7:
                    for x in rest.pop(0): p.add(x)
            if qt < 4:
                for dt in (2*qt, 2*qt+1):
                    p.add(self.rd_v(0, dt, 0)); p.add(self.rd_v(0, dt, 1))
        assert not rest and not late

    def period(self, n, dma=(), pre=(), early=(), extra=()):
        p = self.p
        self.phase = "at"
        msum = self.o["msum"]
        j, pp = divmod(n, 6)
        qk = []; pv = []
        if n < 96:
            sb = n % 2
            for kt in range(2):
                for ks in range(4):
                    qk.append(mfma(S(sb, kt), "v", KF(j % 2, kt, ks), "a", Q(pp, ks), "a", None if ks == 0 else S(sb, kt)))
        if n >= 2:
            jj, qt = divmod(n-2, 6)
            pb = (n-2) % 2
            for dt in range(8):
                pv.append(mfma(acc(dt, qt), "v", VF(jj % 2, dt), "a", P(pb), "v", None if jj == 0 else acc(dt, qt)))
        mf = []
        for k in range(8):
            if qk: mf.append(qk[k])
            if pv: mf.append(pv[k])
        if n >= 2 and msum:
            mf.append(mfma(LA(qt), "a", ONES, "a", P(pb), "v", None if jj == 0 else LA(qt)))
        nm = len(mf)
        sc = nm/17.0 if msum else nm/16.0
        def G(x): return min(nm-1, int(x*sc))
        chains = []
        if 1 <= n <= 96:
            jj2, qt2 = divmod(n-1, 6)
            sb = (n-1) % 2; pb2 = (n-1) % 2
            e = [S(sb, 0)+r for r in range(4)] + [S(sb, 1)+r for r in range(4)]
            chains.append([([ins(f"v_exp_f32 v{e[k]}, v{e[k]}")], G(2*k), G(2*k)) for k in range(8)])
            cv = []
            for k in range(8):
                if not msum: cv.append(([ins(f"v_add_f32 v{LS+qt2}, v{LS+qt2}, v{e[k]}")], G(2*k+1), G(2*k+1)))
                if k % 2 == 1:
                    cv.append(([ins(f"v_cvt_pk_bf16_f32 v{P(pb2)+k//2}, v{e[k-1]}, v{e[k]}")], G(2*k+1), G(2*k+1)))
            chains.append(cv)
        if n >= 2:
            jb, q = divmod(n-2, 6)
            if jb + 1 <= 15:
                par = (jb+1) % 2
                rds = []
                if q in (0, 1): rds = [self.rd_k(par, q, ks) for ks in range(4)]
                else:
                    for dt in range((q-2)*2, (q-2)*2+2): rds += [self.rd_v(par, dt, 0), self.rd_v(par, dt, 1)]
                gp = [1, 5, 9, 13] if q != 5 else [1, 5, 9, 10]
                chains.append([([x], G(gp[k]), G(gp[k])) for k, x in enumerate(rds)])
        if dma:
            nd = sum(1 for x in dma if x.kind == "dma")
            slots = {0: [], 1: [16], 2: [11, 16], 4: [3, 7, 11, 16], 8: [2, 4, 6, 8, 10, 12, 14, 16]}.get(nd) or [int(3 + (16-3)*k/(nd-1)) for k in range(nd)]
            ch = []; seen = 0
            for x in dma:
                if x.kind == "dma":
                    g = G(slots[seen]); seen += 1
                    grp = [x] if x.meta.get("credit") is None else [ins(f"s_waitcnt vmcnt({x.meta['credit']})"), x]
                    ch.append((grp, g, g))
                else:
                    ch.append(([x], 0, nm-1))
            for k in range(len(ch)-2, -1, -1):
                if ch[k][0][-1].kind != "dma": ch[k] = (ch[k][0], 0, max(0, ch[k+1][2] - (1 if ch[k+1][0][-1].kind == "dma" else 0)))
            chains.append(ch)
        if early: chains.append([([x], 0, nm-1) for x in early])
        if extra: chains.append([(g, (k*nm)//len(extra), nm-1) for k, g in enumerate(extra)])
        self.run(mf, chains, pre)

    def body(self, j, dmaG, tog=(), nper=6, extra=(), extra2=()):
        bar = []
        if j + 1 <= 15: bar.append(wait_tag(("kv", j+1)))
        if extra: bar.append(wait_tag(("wo",)))
        bar += [ins("s_waitcnt lgkmcnt(0)"), ins("s_barrier")]
        if self.o.get("baracct"):
            b0 = [ins("s_memtime s[92:93]"), ins("s_waitcnt lgkmcnt(0)")]
            b1 = [ins("s_memtime s[94:95]"), ins("s_waitcnt lgkmcnt(0)")]
            b2 = [ins("s_memtime s[96:97]"), ins("s_waitcnt lgkmcnt(0)"), ins("s_sub_u32 s98, s94, s92"), ins("s_add_u32 s100, s100, s98"),
                  ins("s_sub_u32 s98, s96, s94"), ins("s_add_u32 s101, s101, s98")]
            bar = b0 + bar[:1] + b1 + bar[1:] + b2
        tk = [x for x in tog if any(f"v{KA+z}," in x.txt for z in range(4))]
        tv = [x for x in tog if x not in tk]
        flat = [x for g in dmaG for x in g]
        cr = self.o.get("credit")
        if cr is not None:
            for x in flat:
                if x.kind == "dma": x.meta["credit"] = cr
        nd = sum(1 for x in flat if x.kind == "dma")
        if nd == 8: cnt = self.o.get("dmacnt", [1, 1, 2, 1, 1, 2])
        else: cnt = [nd//6 + (1 if q < nd % 6 else 0) for q in range(6)]
        per = [[] for _ in range(6)]
        q = 0; seen = 0
        for x in flat:
            while q < 5 and seen >= cnt[q]: q += 1; seen = 0
            per[q].append(x)
            if x.kind == "dma": seen += 1
        for q in range(6):
            e = tv[:4] if q == 0 else (tv[4:] if q == 1 else [])
            ex = []
            if extra or extra2:
                xs = list(extra) + list(extra2)
                n = len(xs); ex = xs[q*n//6:(q+1)*n//6]
            self.period(6*j + 2 + q, dma=per[q], pre=(bar + tk) if q == 0 else (), early=e, extra=ex)

    def tog(self):
        return [ins(f"v_xor_b32 v{KA+x}, {PHI}, v{KA+x}") for x in range(4)] + [ins(f"v_xor_b32 v{VA+x}, {PHI}, v{VA+x}") for x in range(8)]
    def attention_shared(self):
        p = self.p
        look = self.o.get("look", 3)
        if look == 4:
            t3 = self.kv_pieces(3, 0, 8)
            self.period(0, dma=[x for g in t3[:4] for x in g]); self.period(1, dma=[x for g in t3[4:] for x in g])
            self.body(0, self.dma_kv_abs(("kv", 4), 0))
        else:
            self.period(0); self.period(1)
            self.body(0, self.dma_kv_abs(("kv", 3), 3))
        p(f"s_mov_b32 s{sM}, s{sKVl}")
        p(f"s_mov_b32 s{sCnt}, 5")
        for k in range(5):
            j = 1 + 2*k
            p.raw(f"@@LB at {k}")
            self.stamp(True)
            if look == 4:
                g1 = self.dma_kv(("kv", j+4), f"s_add_u32 m0, s{sM}, 8192", f"s_add_u32 m0, s{sM}, 12288")
                self.body(j, g1, tog=self.tog())
                g2 = self.dma_kv(("kv", j+5), f"s_add_u32 m0, s{sM}, 0", f"s_add_u32 m0, s{sM}, 4096")
                self.body(j+1, [[ins(f"s_xor_b32 s{sM}, s{sM}, {PHI}")]] + g2)
            else:
                g1 = self.dma_kv(("kv", j+3), f"s_add_u32 m0, s{sM}, 0", f"s_add_u32 m0, s{sM}, 4096")
                self.body(j, g1, tog=self.tog())
                g2 = self.dma_kv(("kv", j+4), f"s_add_u32 m0, s{sM}, 8192", f"s_add_u32 m0, s{sM}, 12288")
                g2[-1] = g2[-1] + [ins(f"s_xor_b32 s{sM}, s{sM}, {PHI}")]
                self.body(j+1, g2)
            p(f"s_sub_u32 s{sCnt}, s{sCnt}, 1"); p(f"s_cmp_lg_u32 s{sCnt}, 0"); p("s_cbranch_scc1 L_at")
            p.raw(f"@@LE at {k}")
        if look == 4:
            self.body(11, self.dma_kv_abs(("kv", 15), 3), tog=self.tog())
            self.body(12, [])
        else:
            self.body(11, self.dma_kv_abs(("kv", 14), 2), tog=self.tog())
            self.body(12, self.dma_kv_abs(("kv", 15), 3))
    def attention_tail(self, last):
        fuse = self.o.get("fuse")
        if not last:
            self.body(13, self.dma_wo_last() if fuse else [], tog=self.tog())
            self.body(14, [])
            self.body(15, self.w_tile(0, 1) + self.x_tile(0) + self.w_tile(1, 1), tog=self.tog(), extra=self.wo_prep_groups() if fuse else ())
        elif not fuse:
            self.body(13, self.dma_wo_last(), tog=self.tog())
            self.body(14, [])
            self.body(15, [], tog=self.tog(), extra=self.wo_prep_groups())
        else:
            self.body(13, [], tog=self.tog(), extra2=[[x] for x in self.k3_setup()])
            self.body(14, [], extra2=[self.poll_issue(f"v_mov_b32 VDST, s{sC1}")])
            self.body(15, [], tog=self.tog())
            self.poll_check(128)
    def wo_prep_groups(self):
        setup = [ins("v_and_b32 v33, 15, v0"), ins("v_lshrrev_b32 v34, 4, v0"), ins("v_lshrrev_b32 v35, 2, v33"), ins("v_and_b32 v33, 3, v33"),
                 ins("v_lshl_add_u32 v32, v34, 2, v35"), ins("v_lshlrev_b32 v32, 10, v32"), ins("v_lshl_add_u32 v32, v33, 4, v32"),
                 ins(f"s_lshl_b32 s88, s{sW}, 8"), ins("v_add_u32 v32, s88, v32")]
        G = [[x] for x in setup]
        for nt in range(8):
            u, par = nt >> 1, nt & 1
            d = KF(0, 0, 0) + nt*4
            G.append([ins(f"ds_read_b64_tr_b16 a[{d}:{d+1}], v32 offset:{64*u + 8*par}")])
            G.append([ins(f"ds_read_b64_tr_b16 a[{d+2}:{d+3}], v32 offset:{16384 + 64*u + 8*par}")])
        for nt in range(8):
            d = KF(0, 0, 0) + nt*4
            g = []
            if nt % 4 == 0: g.append(ins(f"s_add_u32 s{sT2}, s{sWTo}, {nt*1024}"))
            g.append(ins(f"buffer_store_dwordx4 a[{d}:{d+3}], v{VST}, s[{SWT}:{SWT+3}], s{sT2} offen offset:{(nt % 4)*1024} {self.o['last_store_mod']}"))
            G.append(g)
        return G
    def dma_wo_last(self):
        G = []
        for half in range(2):
            g = [ins(f"s_add_u32 s{sT1}, s{sWOo}, {half*4096}"), ins(f"s_lshl_b32 s{sWoM}, s{sW}, 13"), ins(f"s_add_u32 m0, s{sWoM}, {half*4096}")]
            for n in range(4):
                g.append(ins(f"buffer_load_dwordx4 v{VST}, s[{SWO}:{SWO+3}], s{sT1} offen offset:{1024*n} nt lds", tag=("wo",)))
                G.append(g); g = []
        return G

    FLAG = 32768
    def softmax_check(self, item):
        p = self.p
        t = S(0, 0)
        for qt in range(6): p(f"v_accvgpr_read_b32 v{t+qt}, a{LA(qt)}")
        p(f"v_max3_f32 v{t+6}, v{t}, v{t+1}, v{t+2}"); p(f"v_min3_f32 v{t+7}, v{t}, v{t+1}, v{t+2}")
        p(f"v_max3_f32 v{t+6}, v{t+6}, v{t+3}, v{t+4}"); p(f"v_min3_f32 v{t+7}, v{t+7}, v{t+3}, v{t+4}")
        p(f"v_max_f32 v{t+6}, v{t+6}, v{t+5}"); p(f"v_min_f32 v{t+7}, v{t+7}, v{t+5}")
        p(f"v_cmp_nge_f32 vcc, {f32(2.0**24)}, v{t+6}")
        p("s_mov_b64 s[88:89], vcc")
        p(f"v_cmp_nle_f32 vcc, {f32(2.0**-24)}, v{t+7}")
        p("s_or_b64 s[88:89], s[88:89], vcc")
        p("s_cmp_lg_u64 s[88:89], 0"); p("s_cselect_b32 s88, 1, 0")
        p(f"v_mov_b32 v{t}, s88"); p(f"s_lshl_b32 s89, s{sW}, 2"); p(f"v_mov_b32 v{t+1}, s89")
        p(f"ds_write_b32 v{t+1}, v{t} offset:{self.FLAG}")
        p("s_waitcnt lgkmcnt(0)"); p("s_barrier")
        p(f"v_mov_b32 v{t+1}, 0")
        p(f"ds_read_b128 v[{t+4}:{t+7}], v{t+1} offset:{self.FLAG}")
        p(f"v_or_b32 v{t+4}, v{t+4}, v{t+5}"); p(f"v_or_b32 v{t+6}, v{t+6}, v{t+7}"); p(f"v_or_b32 v{t+4}, v{t+4}, v{t+6}")
        p(f"v_readfirstlane_b32 s88, v{t+4}")
        p("s_cmp_lg_u32 s88, 0")
        p("s_cbranch_scc1 L_FB")
        p.raw(f"L_OE{item}:")

    def fallback(self):
        q = K2(self.o); q.phase = "fb"; p = q.p
        M = LS
        def load_tile():
            p(f"s_mov_b32 s{sT2}, s{sTc}")
            q.emit_groups(q.dma_kv_abs(("fb",), 0))
            p("s_waitcnt vmcnt(0)"); p("s_barrier")
        def qk(qt):
            for kt in range(2):
                for ks in range(4):
                    p.add(mfma(S(0, kt), "v", KF(0, kt, ks), "a", Q(qt, ks), "a", None if ks == 0 else S(0, kt)))
        p.raw("L_FB:")
        p("s_waitcnt vmcnt(0) lgkmcnt(0)"); p("s_barrier")
        p(f"s_mov_b32 s{SKV+2}, {KV_BYTES}")
        for qt in range(6): p(f"v_mov_b32 v{M+qt}, 0xff800000")
        p(f"s_lshl_b32 s{sTc}, s{sItem}, 17"); p(f"s_mov_b32 s{sCnt}, 16")
        p.raw("L_FB1:")
        load_tile()
        for kt in range(2):
            for ks in range(4): p.add(q.rd_k(0, kt, ks))
        for qt in range(6):
            qk(qt)
            e = [S(0, 0)+r for r in range(4)] + [S(0, 1)+r for r in range(4)]
            for k in range(0, 8, 2): p(f"v_max3_f32 v{M+qt}, v{e[k]}, v{e[k+1]}, v{M+qt}")
        p("s_waitcnt lgkmcnt(0)"); p("s_barrier")
        p(f"s_sub_u32 s{sCnt}, s{sCnt}, 1"); p(f"s_cmp_lg_u32 s{sCnt}, 0"); p("s_cbranch_scc1 L_FB1")
        t = S(1, 0)
        for qt in range(6):
            m = M + qt
            p(f"v_mov_b32 v{t}, v{m}"); p(f"v_permlane32_swap_b32 v{t}, v{m}"); p(f"v_max_f32 v{m}, v{m}, v{t}")
            p(f"v_mov_b32 v{t}, v{m}"); p(f"v_permlane16_swap_b32 v{t}, v{m}"); p(f"v_max_f32 v{m}, v{m}, v{t}")
        for r in range(192): p(f"v_mov_b32 v{ACC+r}, 0")
        p(f"v_mov_b32 v{t}, 0")
        for r in range(24): p(f"v_accvgpr_write_b32 a{LA(0)+r}, v{t}")
        p(f"s_lshl_b32 s{sTc}, s{sItem}, 17"); p(f"s_mov_b32 s{sCnt}, 16")
        p("s_nop 7")
        p.raw("L_FB2:")
        load_tile()
        for kt in range(2):
            for ks in range(4): p.add(q.rd_k(0, kt, ks))
        for dt in range(8):
            p.add(q.rd_v(0, dt, 0)); p.add(q.rd_v(0, dt, 1))
        for qt in range(6):
            qk(qt)
            e = [S(0, 0)+r for r in range(4)] + [S(0, 1)+r for r in range(4)]
            for k in range(8): p(f"v_sub_f32 v{e[k]}, v{e[k]}, v{M+qt}")
            for k in range(8): p(f"v_exp_f32 v{e[k]}, v{e[k]}")
            for k in range(0, 8, 2): p(f"v_cvt_pk_bf16_f32 v{P(0)+k//2}, v{e[k]}, v{e[k+1]}")
            for dt in range(8): p.add(mfma(acc(dt, qt), "v", VF(0, dt), "a", P(0), "v", acc(dt, qt)))
            p.add(mfma(LA(qt), "a", ONES, "a", P(0), "v", LA(qt)))
        p("s_waitcnt lgkmcnt(0)"); p("s_nop 7"); p("s_nop 7"); p("s_barrier")
        p(f"s_sub_u32 s{sCnt}, s{sCnt}, 1"); p(f"s_cmp_lg_u32 s{sCnt}, 0"); p("s_cbranch_scc1 L_FB2")
        p("s_nop 7"); p("s_nop 7")
        p(f"s_cmp_eq_u32 s{sItem}, 0"); p("s_cbranch_scc1 L_OE0")
        if self.o.get("fuse"):
            for x in self.k3_setup(): p.add(x)
        p("s_branch L_OE1")
        L, st = finalize(p.L)
        return L

    def signal(self, offreg_txt, uid=None):
        uid = uid or self.uid()
        L = [ins(f"s_cmp_lg_u32 s{sW}, 0"), ins(f"s_cbranch_scc1 L_sig{uid}"),
             ins(f"v_mov_b32 v{VPOLL+1}, 1"), ins(offreg_txt), ins("s_mov_b64 exec, 1"),
             ins(f"buffer_atomic_add v{VPOLL+1}, v{VPOLL+2}, s[{SFL}:{SFL+3}], 0 offen sc1"),
             ins("s_mov_b64 exec, -1")]
        for x in L: x.meta["alt"] = True
        L.append(I(f"L_sig{uid}:", "label"))
        return L
    def uid(self):
        self._uid = getattr(self, "_uid", 0) + 1
        return self._uid
    def poll_issue(self, off_txt):
        return [ins(off_txt.replace("VDST", f"v{VPOLL+3}")), ins(f"buffer_load_dword v{VPOLL}, v{VPOLL+3}, s[{SFL}:{SFL+3}], 0 offen sc1")]
    def poll_check(self, target):
        p = self.p
        uid = self.uid()
        p(f"v_readfirstlane_b32 s88, v{VPOLL}")
        p(f"s_cmp_ge_u32 s88, {target}"); p(f"s_cbranch_scc1 L_ok{uid}")
        L = [f"s_mov_b32 s89, 0x40000", f"L_spin{uid}:", "s_sleep 2",
             f"buffer_load_dword v{VPOLL}, v{VPOLL+3}, s[{SFL}:{SFL+3}], 0 offen sc1", "s_waitcnt vmcnt(0)",
             f"v_readfirstlane_b32 s88, v{VPOLL}", "s_nop 3", "s_sub_u32 s89, s89, 1", "s_cmp_eq_u32 s89, 0", f"s_cbranch_scc1 L_ok{uid}",
             f"s_cmp_lt_u32 s88, {target}", f"s_cbranch_scc1 L_spin{uid}"]
        for t in L: p.add(I(t, "label", verbatim=True))
        p.raw(f"L_ok{uid}:")

    def k3_setup(self):
        L = []
        A = lambda t: L.append(ins(t))
        A(f"s_and_b32 s88, s{sHG}, 3"); A(f"s_lshr_b32 s89, s{sHG}, 2")
        A(f"s_lshl_b32 s90, s{sP}, 2"); A("s_add_u32 s90, s90, s88"); A("s_lshl_b32 s90, s90, 7"); A(f"s_lshl_b32 s91, s{sW}, 5"); A("s_add_u32 s90, s90, s91"); A("s_lshl_b32 s90, s90, 13")
        for pr in range(4):
            A(f"s_add_u32 s91, s{sW}, {pr}"); A("s_and_b32 s91, s91, 3"); A("s_lshl_b32 s91, s91, 11"); A(f"s_add_u32 s{kA+pr}, s90, s91")
        A(f"s_lshl_b32 s90, s{sP}, 4"); A(f"s_add_u32 s90, s90, s{sB}"); A("s_lshl_b32 s90, s90, 1"); A("s_add_u32 s90, s90, s89"); A("s_lshl_b32 s90, s90, 7")
        A(f"s_lshl_b32 s91, s{sW}, 5"); A("s_add_u32 s90, s90, s91"); A(f"s_mul_i32 s{kBo}, s90, 6144")
        A(f"s_mul_i32 s90, s{sB}, 192"); A("s_mul_i32 s91, s89, 96"); A("s_add_u32 s90, s90, s91"); A("s_lshl_b32 s90, s90, 11")
        A(f"s_lshl_b32 s91, s{sP}, 10"); A("s_add_u32 s90, s90, s91"); A("s_lshl_b32 s91, s88, 8"); A("s_add_u32 s90, s90, s91")
        A(f"s_lshl_b32 s91, s{sW}, 6"); A(f"s_add_u32 s{kOut}, s90, s91")
        A(f"s_mov_b32 s{SX}, s68"); A(f"s_mov_b32 s{SX+1}, s69"); A(f"s_mov_b32 s{SX+2}, {OUT_BYTES}"); A(f"s_mov_b32 s{SX+3}, 0x00020000")
        A(f"v_add_u32 v{VB4}, 4096, v{VST}")
        return L
    def k3_loads(self, b, o):
        m = self.o.get("k3_ld", "sc1")
        G = []
        G.append([ins(f"s_add_u32 s{kT0}, s{kBo}, {o*6144}"),
                  ins(f"buffer_load_dwordx4 {rng('a', BF(b, 0), 4)}, v{VST}, s[{SO}:{SO+3}], s{kT0} offen {m}")])
        for qt in range(1, 4):
            G.append([ins(f"buffer_load_dwordx4 {rng('a', BF(b, qt), 4)}, v{VST}, s[{SO}:{SO+3}], s{kT0} offen offset:{1024*qt} {m}")])
        G.append([ins(f"buffer_load_dwordx4 {rng('a', BF(b, 4), 4)}, v{VB4}, s[{SO}:{SO+3}], s{kT0} offen {m}")])
        G.append([ins(f"buffer_load_dwordx4 {rng('a', BF(b, 5), 4)}, v{VB4}, s[{SO}:{SO+3}], s{kT0} offen offset:1024 {m}")])
        for pr in range(4):
            t = kT1 if pr % 2 == 0 else kT0
            G.append([ins(f"s_add_u32 s{t}, s{kA+pr}, {o*8192}"),
                      ins(f"buffer_load_dwordx4 {rng('a', AF(b, 2*pr), 4)}, v{VST}, s[{SWT}:{SWT+3}], s{t} offen {m}")])
            G.append([ins(f"buffer_load_dwordx4 {rng('a', AF(b, 2*pr+1), 4)}, v{VST}, s[{SWT}:{SWT+3}], s{t} offen offset:1024 {m}")])
        return G
    def k3_adv(self, steps):
        return [ins(f"s_add_u32 s{kA+pr}, s{kA+pr}, {(steps*8192) & 0xffffffff}") for pr in range(4)] + [ins(f"s_add_u32 s{kBo}, s{kBo}, {(steps*6144) & 0xffffffff}")]
    def k3_step(self, t, G, extra=()):
        p = self.p
        b = t % 4
        n = 0
        extra = list(extra)
        for nu in range(8):
            for qt in range(6):
                p.add(mfma(oacc(nu, qt), "v", AF(b, nu), "a", BF(b, qt), "a", None if t == 0 else oacc(nu, qt)))
                if n % 3 == 1 and n//3 < len(G):
                    for x in G[n//3]: p.add(x)
                if n == 44:
                    for x in extra: p.add(x)
                n += 1
    def k3_main(self):
        p = self.p
        self.k3_step(0, self.k3_loads(3, 3), extra=self.k3_adv(8))
        p(f"s_mov_b32 s{kCnt}, 3")
        for k in range(3):
            p.raw(f"@@LB k3a {k}")
            for i in range(4):
                t = 1 + 4*k + i
                ex = self.k3_adv(8) if i == 3 else []
                if i == 0: ex = self.poll_issue(f"s_mov_b32 s88, 0") if False else []
                self.k3_step(t, self.k3_loads((t+3) % 4, i), extra=ex)
                if i == 1:
                    uid = "k3s"
                    p(f"s_cmp_lg_u32 s{kCnt}, 3"); p(f"s_cbranch_scc1 L_{uid}")
                    p.wait_tag(("o",)); p("s_barrier")
                    for x in self.signal(f"v_mov_b32 v{VPOLL+2}, s{sC2o}", uid="g2"): p.add(x)
                    p.raw(f"L_{uid}:")
                if i == 2:
                    for x in self.poll_issue(f"v_mov_b32 VDST, s{sC2o}"): p.add(x)
            p(f"s_sub_u32 s{kCnt}, s{kCnt}, 1"); p(f"s_cmp_lg_u32 s{kCnt}, 0"); p("s_cbranch_scc1 L_k3a")
            p.raw(f"@@LE k3a {k}")
        self.stamp()
        for x in self.k3_adv(4 - 32): p.add(x)
        self.poll_check(8)
        for i in range(4):
            t = 13 + i
            self.k3_step(t, self.k3_loads((t+3) % 4, i), extra=self.k3_adv(8) if i == 3 else [])
        p(f"s_mov_b32 s{kCnt}, 3")
        for k in range(3):
            p.raw(f"@@LB k3b {k}")
            for i in range(4):
                t = 17 + 4*k + i
                self.k3_step(t, self.k3_loads((t+3) % 4, i), extra=self.k3_adv(8) if i == 3 else [])
            p(f"s_sub_u32 s{kCnt}, s{kCnt}, 1"); p(f"s_cmp_lg_u32 s{kCnt}, 0"); p("s_cbranch_scc1 L_k3b")
            p.raw(f"@@LE k3b {k}")
        for t in (29, 30, 31): self.k3_step(t, [])
        self.stamp()
        for pr, v in ((1, 7), (2, 2), (3, 3)):
            p(f"s_add_u32 s88, s{sW}, {pr}"); p("s_and_b32 s88, s88, 3"); p("s_mul_i32 s88, s88, 36864"); p(f"s_add_u32 s88, s88, {(pr-1)*12288}")
            p(f"v_add_u32 v{v}, s88, v{VST}")
        p(f"s_mul_i32 s88, s{sW}, 36864"); p(f"v_add_u32 v8, s88, v{VST}")
        for pr, v in ((1, 7), (2, 2), (3, 3)):
            for par in range(2):
                for qt in range(6):
                    a = oacc(2*pr + par, qt)
                    p(f"ds_write_b128 v{v}, v[{a}:{a+3}] offset:{(par*6 + qt)*1024}")
        p("s_waitcnt lgkmcnt(0)")
        p("s_barrier")
        for sl in range(3):
            for par in range(2):
                for qt in range(6):
                    a = oacc(2*(sl+1) + par, qt)
                    p(f"ds_read_b128 v[{a}:{a+3}], v8 offset:{sl*12288 + (par*6 + qt)*1024}")
        p("v_and_b32 v12, 15, v0"); p("v_lshrrev_b32 v13, 4, v0"); p("v_lshlrev_b32 v12, 11, v12"); p("v_lshl_add_u32 v9, v13, 4, v12")
        for qt in range(6):
            for par in range(2):
                a = oacc(par, qt)
                for sl in range(3):
                    s_ = oacc(2*(sl+1) + par, qt)
                    for r in range(4): p(f"v_add_f32 v{a+r}, v{a+r}, v{s_+r}")
            a0, a1 = oacc(0, qt), oacc(1, qt)
            t0 = 16 + (qt % 4)*4
            p(f"v_cvt_pk_bf16_f32 v{t0}, v{a0}, v{a0+1}"); p(f"v_cvt_pk_bf16_f32 v{t0+1}, v{a0+2}, v{a0+3}")
            p(f"v_cvt_pk_bf16_f32 v{t0+2}, v{a1}, v{a1+1}"); p(f"v_cvt_pk_bf16_f32 v{t0+3}, v{a1+2}, v{a1+3}")
            p(f"s_add_u32 s{kT0}, s{kOut}, {qt*16*2048}")
            p(f"buffer_store_dwordx4 v[{t0}:{t0+3}], v9, s[{SX}:{SX+3}], s{kT0} offen")

    def o_epilogue(self, last):
        p = self.p
        pre = []
        if last and self.o.get("fuse"): pre = self.k3_loads(0, 0) + self.k3_loads(1, 1) + self.k3_loads(2, 2)
        for qt in range(6): p(f"v_accvgpr_read_b32 v{LS+qt}, a{LA(qt)}")
        for qt in range(6): p(f"v_rcp_f32 v{LS+qt}, v{LS+qt}")
        for qt in range(6):
            for ks in range(4):
                a0, a1 = acc(2*ks, qt), acc(2*ks+1, qt)
                l = LS + qt
                if self.o.get("pk", True):
                    lp = l & ~1; sel = "op_sel_hi:[1,0]" if l % 2 == 0 else "op_sel:[0,1] op_sel_hi:[1,1]"
                    for a in (a0, a0+2, a1, a1+2): p(f"v_pk_mul_f32 v[{a}:{a+1}], v[{a}:{a+1}], v[{lp}:{lp+1}] {sel}")
                else:
                    for r in range(4): p(f"v_mul_f32 v{a0+r}, v{l}, v{a0+r}")
                    for r in range(4): p(f"v_mul_f32 v{a1+r}, v{l}, v{a1+r}")
                t0 = SB + ((ks + 4*qt) % 6)*4
                p(f"v_cvt_pk_bf16_f32 v{t0}, v{a0}, v{a0+1}")
                p(f"v_cvt_pk_bf16_f32 v{t0+1}, v{a0+2}, v{a0+3}")
                p(f"v_cvt_pk_bf16_f32 v{t0+2}, v{a1}, v{a1+1}")
                p(f"v_cvt_pk_bf16_f32 v{t0+3}, v{a1+2}, v{a1+3}")
                n = ks*6 + qt
                if last:
                    p(f"s_add_u32 s{sT0}, s{sOo}, {n*1024}")
                    for _ in range(2):
                        if pre:
                            for x in pre.pop(0): p.add(x)
                    p(f"buffer_store_dwordx4 v[{t0}:{t0+3}], v{VST}, s[{SO}:{SO+3}], s{sT0} offen {self.o['last_store_mod']}", tag=("o",))
                else:
                    for r in range(4): p(f"v_accvgpr_write_b32 a{OS(n)+r}, v{t0+r}")

    def final(self):
        p = self.p
        p.wait_tag(("wo",))
        p("s_barrier")
        p("v_and_b32 v8, 15, v0"); p("v_lshrrev_b32 v2, 4, v0"); p("v_lshrrev_b32 v3, 2, v8"); p("v_and_b32 v7, 3, v8")
        p("v_lshl_add_u32 v6, v2, 2, v3"); p("v_lshlrev_b32 v6, 10, v6"); p("v_lshl_add_u32 v6, v7, 4, v6")
        p(f"s_lshl_b32 s88, s{sW}, 8"); p("v_add_u32 v6, s88, v6")
        for nt in range(8):
            u, par = nt >> 1, nt & 1
            d = 32 + nt*4
            p(f"ds_read_b64_tr_b16 v[{d}:{d+1}], v6 offset:{64*u + 8*par}")
            p(f"ds_read_b64_tr_b16 v[{d+2}:{d+3}], v6 offset:{16384 + 64*u + 8*par}")
        for nt in range(8):
            d = 32 + nt*4
            if nt % 4 == 0: p(f"s_add_u32 s{sT1}, s{sWTo}, {nt*1024}")
            p(f"buffer_store_dwordx4 v[{d}:{d+3}], v{VST}, s[{SWT}:{SWT+3}], s{sT1} offen offset:{(nt % 4)*1024} {self.o['last_store_mod']}")

    def build(self):
        p = self.p
        assert self.o["msum"]
        self.prologue()
        if self.o["timing"]: p("s_mov_b32 s99, 0")
        self.stamp()
        p(f"s_mov_b32 s{SO+2}, {0 if self.o.get('stA') else O_BYTES}")
        self.emit_groups(self.w_tile(0, 0) + self.x_tile(0) + self.w_tile(1, 0))
        self.prologue2()
        for item in range(2):
            last = item == 1
            p.raw("@@SB A"); self.qproj_a(); p.raw("@@SE A")
            p.raw(f"@@SB B{item}"); self.qproj_b(last); self.stamp(); p.raw(f"@@SE B{item}")
            p.raw("@@SB C"); self.attention_shared(); p.raw("@@SE C")
            p.raw(f"@@SB D{item}")
            self.attention_tail(last)
            self.stamp()
            if self.o.get("guard", True): self.softmax_check(item)
            self.o_epilogue(last)
            self.stamp()
            if not last:
                p(f"s_add_u32 s{sWo}, s{sWo}, 256"); p(f"s_add_u32 s{sOo}, s{sOo}, {4*6144}")
                p(f"s_mov_b32 s{sItem}, 1"); p(f"s_mov_b32 s{SO+2}, {O_BYTES}")
            else:
                if self.o.get("fuse"): self.k3_main()
                self.stamp()
                p("s_waitcnt vmcnt(0)")
                self.stamp()
                self.stamp_flush()
                p("s_waitcnt vmcnt(0)")
            p.raw(f"@@SE D{item}")
        L, st = finalize(p.L)
        L = fold(L)
        segs, top = segments(L)
        out = [i for k, i in top if k == "ins"]
        lab = lambda t: I(t, "label")
        br = lambda tgt: [ins(f"s_cmp_eq_u32 s{sItem}, 1"), ins(f"s_cbranch_scc1 {tgt}")]
        out += [lab("L_A:")] + segs["A"] + br("L_B1") + segs["B0"] + [lab("L_C:")] + segs["C"] + br("L_D1") + segs["D0"] + [ins("s_branch L_A")]
        out += [lab("L_B1:")] + segs["B1"] + [ins("s_branch L_C")]
        out += [lab("L_D1:")] + segs["D1"] + [lab("K2_END:"), ins("s_endpgm")]
        if self.o.get("guard", True): out += self.fallback()
        return out, st

if __name__ == "__main__":
    k = K2(); L, st = k.build()
    print(st, len(L))
```

```python
import sys, json
from dsl import text
from k2 import K2
from k3 import K3
NAME = "concat_heads__mha_block_cached__gqa_block_cached__near_ridge"
HDR = open("cdna_kernels/%s.s.ref" % NAME).read().split("; Override launch geometry")[0]
DESC = """; One persistent workgroup per CU (256 workgroups, 4 waves, 512 registers per wave), written with my own generator scripts.
"""
def kd(name, vg=512, acc=256):
    return f""".amdhsa_kernel {name}
  .amdhsa_next_free_vgpr {vg}
  .amdhsa_next_free_sgpr 102
  .amdhsa_accum_offset {acc}
  .amdhsa_group_segment_fixed_size 0
  .amdhsa_kernarg_size 104
  .amdhsa_user_sgpr_count 2
  .amdhsa_user_sgpr_kernarg_segment_ptr 1
  .amdhsa_system_sgpr_workgroup_id_x 1
  .amdhsa_float_denorm_mode_32 3
.end_amdhsa_kernel
"""
def build(o2=None, o3=None):
    if o2 and o2.get("fuse"):
        L2, s2 = K2(o2).build()
        print("K2 fused", s2, len(L2), file=sys.stderr)
        name = NAME + "_kernel"
        out = HDR + "; @launch grid=(256,1,1) block=(256,1,1) lds=163840\n" + DESC
        out += '.amdgcn_target "amdgcn-amd-amdhsa--gfx950"\n.text\n'
        out += f".globl {name}\n.p2align 8\n.type {name},@function\n{name}:\n" + text(L2)
        out += '.section .rodata,"a"\n.p2align 6\n' + kd(name)
        return out
    L2, s2 = K2(o2).build(); L3, s3 = K3(o3).build()
    print("K2", s2, len(L2), "K3", s3, len(L3), file=sys.stderr)
    out = HDR
    out += "; @launch kernel=attn_kernel grid=(256,1,1) block=(256,1,1) lds=163840\n"
    out += "; @launch kernel=oproj_kernel grid=(256,1,1) block=(256,1,1) lds=147456\n"
    out += '.amdgcn_target "amdgcn-amd-amdhsa--gfx950"\n.text\n'
    for name, L in (("attn_kernel", L2), ("oproj_kernel", L3)):
        out += f".globl {name}\n.p2align 8\n.type {name},@function\n{name}:\n" + text(L)
    out += '.section .rodata,"a"\n'
    for name in ("attn_kernel", "oproj_kernel"):
        out += ".p2align 6\n" + kd(name)
    return out
if __name__ == "__main__":
    o2 = json.loads(sys.argv[2]) if len(sys.argv) > 2 else {"fuse": True}
    o3 = json.loads(sys.argv[3]) if len(sys.argv) > 3 else None
    dst = sys.argv[1] if len(sys.argv) > 1 else "cdna_kernels/%s.s" % NAME
    open(dst, "w").write(build(o2, o3))
```

```python
from dsl import *
import struct

def f32(x): return "0x%08x" % struct.unpack("<I", struct.pack("<f", x))[0]

NB, SQ, DM, H, SK, DH = 16, 192, 512, 32, 512, 128
X_BYTES = NB*SQ*DM*2
KV_BYTES = NB*H*SK*DH*2
W_BYTES = DM*H*DH*2
O_BYTES = 2*NB*2*128*6*1024
WOT_OFF = O_BYTES
WOT_BYTES = 2*4*128*8*1024
OUT_BYTES = NB*SQ*1024*2

PHI = 65536
WSLOT = [65536, 81920, 98304]
XA, XB = 114688, 139264
DROP = 0x30000

ACC = 64
def acc(T, qt): return ACC + (T*6 + qt)*4
SB = 8
def S(buf, kt): return SB + buf*8 + kt*4
PB = 24
def P(buf): return PB + buf*4
LS = 32
KA = 38
VA = 42
DV = 50
WA = 54
XAD = 58
WD = [60, 61, 2, 3]
XD = [62, 63, 6, 7]
VST = 4
def Q(qt, ks): return (qt*4 + ks)*4
def OS(n): return n*4
def KF(buf, kt, ks): return 96 + buf*32 + (kt*4 + ks)*4
def VF(buf, dt): return 160 + buf*32 + dt*4
def WF(T): return 96 + T*4
def XF(buf, qt): return 128 + buf*24 + qt*4
ONES = 224
def LA(qt): return 228 + qt*4
SX, SW, SKV, SO, SWO, SWT = 4, 8, 12, 16, 20, 24
sW, sHP, sRH, sP, sB, sHG = 28, 29, 30, 31, 32, 33
sKVo, sKVl, sWo, sWl, sXo, sXl, sOo = 34, 35, 36, 37, 38, 39, 40
sT0, sT1, sC = 41, 42, 43
sWOo, sWTo = 44, 45
sItem, sCnt = 46, 47
sTile, sM, sTh1, sTh2, sWarmW, sWarmX, sWoM, sDrop, sTc, sRot = 74, 75, 76, 77, 78, 79, 80, 81, 84, 85
sT2 = 83
sC2 = 86
sWR, sXR = 78, 79

SFL = 92
kA, kBo, kT0, kT1, kOut, kCnt = 74, 78, 80, 81, 79, 47
sC1, sC2o = 97, 96
def oacc(nu, qt): return ACC + (nu*6 + qt)*4
def AF(buf, nu): return buf*56 + nu*4
def BF(buf, qt): return buf*56 + 32 + qt*4
VB4 = 6
VPOLL = 34
MF = "v_mfma_f32_16x16x32_bf16"
def mfma(d, dk, a, ak, b, bk, c=None):
    cs = "0" if c is None else rng(dk, c, 4)
    return ins(f"{MF} {rng(dk,d,4)}, {rng(ak,a,4)}, {rng(bk,b,4)}, {cs}")

class K2:
    def __init__(self, opts=None):
        self.o = dict(nt="nt", w_mod="", x_mod="", store_mod="sc1", last_store_mod="sc1", timing=False, msum=True, warm=False, qrot=True, drop=[])
        if opts: self.o.update(opts)
        self.p = Prog()
        self.phase = ""

    def tile_addr(self):
        if not self.o.get("rot"):
            return [ins(f"s_add_u32 s{sTile}, s{sKVo}, s{sTc}"), ins(f"s_add_u32 s{sTc}, s{sTc}, 8192")]
        return [ins(f"s_add_u32 s{sTile}, s{sTc}, s{sRot}"), ins(f"s_and_b32 s{sTile}, s{sTile}, 0x1ffff"),
                ins(f"s_and_b32 s{sT0}, s{sTc}, 0x20000"), ins(f"s_add_u32 s{sTile}, s{sTile}, s{sT0}"),
                ins(f"s_add_u32 s{sTile}, s{sTile}, s{sKVo}"), ins(f"s_add_u32 s{sTc}, s{sTc}, 8192")]
    def dma_kv(self, tag, m0a, m0b, pre=()):
        nt = self.o['nt']
        G = []
        g = list(pre) + self.tile_addr() + [ins(m0a)]
        for k in range(4):
            g.append(ins(f"buffer_load_dwordx4 v{DV+k}, s[{SKV}:{SKV+3}], s{sTile} offen offset:{1024*k} {nt} lds", tag=tag))
            G.append(g); g = []
        g = [ins(f"s_add_u32 s{sT0}, s{sTile}, 4096"), ins(m0b)]
        for k in range(4):
            g.append(ins(f"buffer_load_dwordx4 v{DV+k}, s[{SKV}:{SKV+3}], s{sT0} offen offset:{1024*k} {nt} lds", tag=tag))
            G.append(g); g = []
        return G
    def dma_kv_abs(self, tag, slot):
        o = (slot >> 1)*PHI + (slot & 1)*8192
        return self.dma_kv(tag, f"s_add_u32 m0, s{sKVl}, {o}", f"s_add_u32 m0, s{sKVl}, {o + 4096}")
    def kv_pieces(self, tile, a, b):
        G = self.dma_kv_abs(("kv", tile), tile % 4)
        out = G[a:b]
        if a not in (0, 4):
            slot = tile % 4
            o = (slot >> 1)*PHI + (slot & 1)*8192 + (4096 if a >= 4 else 0)
            out[0] = [ins(f"s_add_u32 m0, s{sKVl}, {o}")] + out[0]
        return out
    def dma_w(self, tag, base_reg, goff, m0txt, rot=None):
        G = []
        if rot is None: g = [ins(f"s_add_u32 s{sT1}, s{base_reg}, {goff}")]
        else:
            g = [ins(f"s_add_u32 s{sT1}, s{sWR}, {rot*262144}"), ins(f"s_and_b32 s{sT1}, s{sT1}, 0x3fffff"), ins(f"s_add_u32 s{sT1}, s{sT1}, s{base_reg}")]
            if goff: g.append(ins(f"s_add_u32 s{sT1}, s{sT1}, {goff}"))
        g.append(ins(m0txt))
        for n in range(4):
            g.append(ins(f"buffer_load_dwordx4 v{WD[n]}, s[{SW}:{SW+3}], s{sT1} offen offset:{1024*n} {self.o['w_mod']} lds", tag=tag))
            G.append(g); g = []
        return G
    def x_soff(self, base_reg, tt):
        if not self.o.get("qrot"): return [ins(f"s_add_u32 s{sT1}, s{base_reg}, {tt*128}")]
        return [ins(f"s_add_u32 s{sT1}, s{sXR}, {tt*128}"), ins(f"s_and_b32 s{sT1}, s{sT1}, 1023"), ins(f"s_add_u32 s{sT1}, s{sT1}, s{base_reg}")]
    def dma_x(self, tag, base_reg, tt, m0a, m0b):
        G = []
        m = self.o['x_mod']
        g = self.x_soff(base_reg, tt) + [ins(m0a)]
        for n in range(4):
            g.append(ins(f"buffer_load_dwordx4 v{XD[n]}, s[{SX}:{SX+3}], s{sT1} offen offset:{1024*n} {m} lds", tag=tag))
            G.append(g); g = []
        g = [ins(f"s_add_u32 s{sT1}, s{sT1}, {4*8192}"), ins(m0b)]
        for n in range(2):
            g.append(ins(f"buffer_load_dwordx4 v{XD[n]}, s[{SX}:{SX+3}], s{sT1} offen offset:{1024*n} {m} lds", tag=tag))
            G.append(g); g = []
        return G
    def w_tile(self, t, nxt=0):
        m0 = f"s_add_u32 m0, s{sWl}, {WSLOT[t % 3]}"
        if self.o.get("qrot"): return self.dma_w(("w", t), sWo, nxt*256, m0, rot=t)
        return self.dma_w(("w", t), sWo, nxt*256 + t*262144, m0)
    def x_tile(self, tt):
        sl = XB if tt % 2 == 0 else XA
        return self.dma_x(("x", tt), sXo, tt, f"s_add_u32 m0, s{sXl}, {sl}", f"s_add_u32 m0, s{sXl}, {sl + 4096}")
    def warmup(self, nxt):
        if not self.o["warm"]: return []
        G = []
        def ld(v, srd, soff, off, mod):
            i = ins(f"buffer_load_dwordx4 a[252:255], v{v}, s[{srd}:{srd+3}], s{soff} offen offset:{off} {mod}", tag=("warm",))
            i.kind = "dma"; i.wr = set(); i.rd.discard("m0")
            return i
        for k in range(2):
            g = [ins(f"s_add_u32 s{sT1}, s{sWarmW}, {nxt*256 + k*262144}")]
            for n in range(4):
                g.append(ld(WD[n], SW, sT1, 1024*n, self.o['w_mod'])); G.append(g); g = []
        if nxt == 0 or self.o.get("warmx1", True):
            for k in range(2):
                g = [ins(f"s_add_u32 s{sT1}, s{sWarmX}, {k*128}")]
                for n in range(4):
                    g.append(ld(XD[n], SX, sT1, 1024*n, self.o['x_mod'])); G.append(g); g = []
                g = [ins(f"s_add_u32 s{sT1}, s{sT1}, {4*8192}")]
                for n in range(2):
                    g.append(ld(XD[n], SX, sT1, 1024*n, self.o['x_mod'])); G.append(g); g = []
        return G
    def next_item_prefetch(self, nxt=1):
        return self.w_tile(0, nxt) + self.x_tile(0) + self.w_tile(1, nxt) + self.w_tile(2, nxt) + self.x_tile(1)
    def dma_wo(self):
        G = []
        for half in range(2):
            g = [ins(f"s_add_u32 s{sT1}, s{sWOo}, {half*4096}"), ins(f"s_add_u32 m0, s{sWoM}, {half*4096}")]
            for n in range(4):
                g.append(ins(f"buffer_load_dwordx4 v{VST}, s[{SWO}:{SWO+3}], s{sT1} offen offset:{1024*n} nt lds", tag=("wo",)))
                G.append(g); g = []
        return G
    def o_store(self, n, mod, prev, force=False):
        g = []
        if n % 4 == 0 or force: g.append(ins(f"s_add_u32 s{sT2}, s{sOo}, {((n & ~3)*1024 - (4*6144 if prev else 0)) & 0xffffffff}"))
        g.append(ins(f"buffer_store_dwordx4 {rng('a', OS(n), 4)}, v{VST}, s[{SO}:{SO+3}], s{sT2} offen offset:{(n % 4)*1024} {mod}", tag=("o",)))
        return g
    def rd_k(self, par, kt, ks):
        return ins(f"ds_read_b128 {rng('a', KF(par, kt, ks), 4)}, v{KA+ks} offset:{par*8192 + kt*4096}")
    def rd_v(self, par, dt, kt):
        return ins(f"ds_read_b64_tr_b16 {rng('a', VF(par, dt) + 2*kt, 2)}, v{VA+dt} offset:{par*8192 + kt*4096}")
    def rd_w(self, t, T, h2):
        ks, u = T >> 1, T & 1
        return ins(f"ds_read_b64_tr_b16 {rng('a', WF(T) + 2*h2, 2)}, v{WA+ks} offset:{(t % 3)*16384 + h2*2048 + 8*u}")
    def rd_x(self, t, qt):
        tt = t >> 1
        return ins(f"ds_read_b128 {rng('a', XF(t % 2, qt), 4)}, v{XAD + (t & 1)} offset:{(24576 if tt % 2 == 0 else 0) + qt*2048}")

    def prologue(self):
        p = self.p
        p("s_cmp_ge_u32 s2, 256")
        p("s_cbranch_scc1 K2_END")
        p("s_load_dwordx16 s[48:63], s[0:1], 0")
        p("s_load_dwordx8 s[64:71], s[0:1], 64")
        p("s_load_dwordx2 s[72:73], s[0:1], 96")
        p(f"v_lshrrev_b32 v1, 6, v0")
        p(f"v_and_b32 v0, 63, v0")
        p(f"v_readfirstlane_b32 s{sW}, v1")
        p("s_and_b32 s86, s2, 7")
        p("s_lshr_b32 s87, s2, 3")
        p(f"s_lshr_b32 s{sP}, s86, 2")
        p("s_and_b32 s88, s86, 1"); p("s_lshl_b32 s88, s88, 3"); p("s_and_b32 s82, s87, 7")
        p(f"s_add_u32 s{sB}, s88, s82")
        p("s_lshr_b32 s88, s86, 1"); p("s_and_b32 s88, s88, 1"); p("s_lshl_b32 s88, s88, 2"); p("s_lshr_b32 s83, s87, 3")
        p(f"s_add_u32 s{sHG}, s88, s83")
        p(f"s_and_b32 s{sHP}, s{sW}, 1")
        p(f"s_lshr_b32 s{sRH}, s{sW}, 1")
        p("s_waitcnt lgkmcnt(0)")
        p(f"s_cmp_eq_u32 s{sP}, 0")
        p(f"s_cselect_b32 s{SX}, s48, s58"); p(f"s_cselect_b32 s{SX+1}, s49, s59")
        p(f"s_cselect_b32 s{SW}, s54, s64"); p(f"s_cselect_b32 s{SW+1}, s55, s65")
        p(f"s_cselect_b32 s{SWO}, s56, s66"); p(f"s_cselect_b32 s{SWO+1}, s57, s67")
        p(f"s_cselect_b32 s90, s50, s60"); p(f"s_cselect_b32 s91, s51, s61")
        p(f"s_cselect_b32 s92, s52, s62"); p(f"s_cselect_b32 s93, s53, s63")
        p(f"s_cmp_eq_u32 s{sRH}, 0")
        p(f"s_cselect_b32 s{SKV}, s90, s92"); p(f"s_cselect_b32 s{SKV+1}, s91, s93")
        p(f"s_cselect_b32 s94, 64, 128"); p(f"s_cselect_b32 s95, 128, 0"); p("s_mov_b32 s96, 128"); p(f"s_cselect_b32 s96, 192, s96")
        p(f"s_cselect_b32 s97, 0, 1")
        p(f"s_cselect_b32 s{sKVl}, 0, 32768")
        for r, n in ((SX, X_BYTES), (SW, W_BYTES), (SWO, W_BYTES), (SKV, KV_BYTES)):
            p(f"s_mov_b32 s{r+2}, {n}"); p(f"s_mov_b32 s{r+3}, 0x00020000")
        p(f"s_mov_b32 s{SO}, s72"); p(f"s_mov_b32 s{SO+1}, s73"); p(f"s_mov_b32 s{SO+2}, 0"); p(f"s_mov_b32 s{SO+3}, 0x00020000")
        p(f"s_add_u32 s{SWT}, s72, {WOT_OFF}"); p(f"s_addc_u32 s{SWT+1}, s73, 0"); p(f"s_mov_b32 s{SWT+2}, {WOT_BYTES}"); p(f"s_mov_b32 s{SWT+3}, 0x00020000")
        p(f"s_lshl_b32 s88, s{sB}, 5"); p(f"s_lshl_b32 s89, s{sHG}, 2"); p("s_add_u32 s88, s88, s89"); p(f"s_lshl_b32 s89, s{sHP}, 1"); p("s_add_u32 s88, s88, s89")
        p(f"s_lshl_b32 s{sKVo}, s88, 17")
        p(f"s_lshl_b32 s89, s{sHP}, 14"); p(f"s_add_u32 s{sKVl}, s{sKVl}, s89")
        p(f"s_lshl_b32 s88, s{sW}, 16"); p(f"s_lshl_b32 s89, s{sHG}, 10"); p(f"s_add_u32 s{sWo}, s88, s89")
        p(f"s_lshl_b32 s{sWl}, s{sW}, 12")
        p(f"s_lshl_b32 s88, s82, 19"); p(f"s_add_u32 s{sWarmW}, s{sWo}, s88")
        p(f"s_mul_i32 s88, s{sB}, 196608"); p(f"s_mul_i32 s89, s{sW}, 49152"); p(f"s_add_u32 s{sXo}, s88, s89")
        p(f"s_mul_i32 s{sXl}, s{sW}, 6144")
        p(f"s_lshl_b32 s88, s83, 8"); p(f"s_add_u32 s{sWarmX}, s{sXo}, s88")
        if self.o.get("qrot"):
            assert not self.o["warm"]
            p("s_lshl_b32 s88, s83, 1"); p("s_add_u32 s88, s88, s82"); p("s_and_b32 s88, s88, 7")
            p(f"s_lshl_b32 s{sWR}, s88, 19"); p(f"s_lshl_b32 s{sXR}, s88, 7")
        p(f"s_mov_b32 s{sDrop}, {DROP}")
        p("s_mul_i32 s88, s2, 5"); p("s_lshr_b32 s89, s2, 4"); p("s_add_u32 s88, s88, s89"); p("s_and_b32 s88, s88, 15"); p(f"s_lshl_b32 s{sRot}, s88, 13")
        p(f"s_lshl_b32 s88, s{sP}, 4"); p(f"s_add_u32 s88, s88, s{sB}"); p("s_lshl_b32 s88, s88, 1"); p(f"s_add_u32 s88, s88, s{sRH}")
        p("s_lshl_b32 s88, s88, 7"); p(f"s_lshl_b32 s89, s{sHG}, 4"); p("s_add_u32 s88, s88, s89"); p(f"s_lshl_b32 s89, s{sHP}, 3"); p("s_add_u32 s88, s88, s89")
        p(f"s_mul_i32 s{sOo}, s88, 6144")
        p("s_and_b32 s88, s86, 3"); p("s_lshl_b32 s88, s88, 5"); p("s_add_u32 s88, s88, s87")
        p(f"s_lshl_b32 s89, s88, 15"); p(f"s_lshl_b32 s98, s{sW}, 13"); p(f"s_add_u32 s{sWOo}, s89, s98")
        p(f"s_lshl_b32 s89, s{sP}, 2"); p(f"s_add_u32 s89, s89, s{sW}"); p("s_lshl_b32 s89, s89, 7"); p("s_add_u32 s89, s89, s88"); p(f"s_lshl_b32 s{sWTo}, s89, 13")
        p(f"s_mov_b32 s{sC}, {f32(1.4426950408889634*128**-0.5)}")
        p(f"s_mov_b32 s{sItem}, 0")
        self.late_consts = True
        i_, g_, r_, c_ = "v14", "v8", "v9", "v10"
        p(f"v_and_b32 {i_}, 15, v0"); p(f"v_lshrrev_b32 {g_}, 4, v0"); p(f"v_lshrrev_b32 {r_}, 2, {i_}"); p(f"v_and_b32 {c_}, 3, {i_}")
        p(f"v_lshlrev_b32 v{VST}, 4, v0")
        p("v_lshrrev_b32 v11, 5, v0"); p("v_and_b32 v12, 15, v0"); p("v_lshlrev_b32 v13, 2, v11"); p("v_xor_b32 v12, v12, v13"); p("v_lshlrev_b32 v12, 4, v12")
        p("v_lshl_add_u32 v12, v11, 13, v12"); p("v_bfe_u32 v13, v0, 4, 1"); p(f"v_lshl_add_u32 v{WD[0]}, v13, 9, v12")
        p(f"v_xor_b32 v{WD[1]}, 128, v{WD[0]}"); p(f"v_add_u32 v{WD[2]}, {2*15360}, v{WD[0]}"); p(f"v_add_u32 v{WD[3]}, {3*15360}, v{WD[1]}"); p(f"v_add_u32 v{WD[1]}, 15360, v{WD[1]}")
        p("v_lshrrev_b32 v11, 3, v0"); p("v_and_b32 v12, 7, v0"); p(f"v_xor_b32 v12, v12, {g_}"); p("v_lshlrev_b32 v12, 4, v12")
        p(f"v_lshl_add_u32 v{XD[0]}, v11, 10, v12"); p(f"v_xor_b32 v{XD[1]}, 64, v{XD[0]}")
        p(f"v_add_u32 v{XD[2]}, {2*7168}, v{XD[0]}"); p(f"v_add_u32 v{XD[3]}, {3*7168}, v{XD[1]}"); p(f"v_add_u32 v{XD[1]}, 7168, v{XD[1]}")
        p(f"v_lshlrev_b32 v11, s97, {g_}"); p(f"v_xor_b32 v11, v11, {i_}"); p("v_lshlrev_b32 v11, 4, v11"); p(f"v_lshl_add_u32 v{DV}, {g_}, 8, v11")
        for k in range(1, 4): p(f"v_xor_b32 v{DV+k}, s{93+k}, v{DV}")
        self.lane = (i_, g_, r_, c_)
    def prologue2(self):
        p = self.p
        i_, g_, r_, c_ = self.lane
        p(f"s_lshl_b32 s88, s{sHP}, 14")
        p(f"v_xor_b32 v11, {g_}, {i_}"); p("v_lshlrev_b32 v11, 4, v11"); p(f"v_lshl_add_u32 v11, {i_}, 8, v11"); p(f"v_add_u32 v{KA}, s88, v11")
        for ks in range(1, 4): p(f"v_xor_b32 v{KA+ks}, {64*ks}, v{KA}")
        p(f"v_and_b32 v11, 1, {g_}"); p("v_lshlrev_b32 v11, 2, v11"); p(f"v_add_u32 v11, v11, {r_}"); p("v_lshlrev_b32 v11, 1, v11")
        p(f"v_lshrrev_b32 v12, 1, {c_}"); p("v_xor_b32 v11, v11, v12"); p("v_lshlrev_b32 v11, 4, v11")
        p(f"v_and_b32 v12, 1, {c_}"); p("v_lshl_add_u32 v11, v12, 3, v11")
        p(f"v_lshl_add_u32 v12, {g_}, 2, {r_}"); p("v_lshl_add_u32 v11, v12, 8, v11")
        p("s_add_u32 s89, s88, 32768"); p(f"v_add_u32 v{VA}, s89, v11")
        for dt in range(1, 8): p(f"v_xor_b32 v{VA+dt}, {32*dt}, v{VA}")
        p(f"s_lshl_b32 s88, s{sHP}, 4")
        p(f"v_add_u32 v11, s88, {c_}"); p(f"v_lshlrev_b32 v12, 2, {r_}"); p("v_xor_b32 v11, v11, v12"); p("v_lshlrev_b32 v11, 4, v11")
        p(f"v_lshl_add_u32 v12, {g_}, 3, {r_}"); p("v_lshl_add_u32 v11, v12, 9, v11"); p(f"v_add_u32 v{WA}, {WSLOT[0]}, v11")
        for ks in range(1, 4): p(f"v_xor_b32 v{WA+ks}, {64*ks}, v{WA}")
        p(f"s_mul_i32 s88, s{sRH}, {96*128}"); p(f"s_add_u32 s88, s88, {XA}")
        p(f"v_lshrrev_b32 v11, 1, {i_}"); p(f"v_xor_b32 v11, v11, {g_}"); p("v_lshlrev_b32 v11, 4, v11"); p(f"v_lshl_add_u32 v11, {i_}, 7, v11"); p(f"v_add_u32 v{XAD}, s88, v11")
        p(f"v_xor_b32 v{XAD+1}, 64, v{XAD}")
        p(f"s_mov_b32 s{sC2}, s{sC}"); p(f"s_mov_b32 s{sC2+1}, s{sC}")
        if self.o.get("fuse"):
            p(f"s_mov_b32 s{SFL}, s70"); p(f"s_mov_b32 s{SFL+1}, s71"); p(f"s_mov_b32 s{SFL+2}, 256"); p(f"s_mov_b32 s{SFL+3}, 0x00020000")
            sh = 16 if self.o.get("dbg") is not None else 0
            p(f"s_lshl_b32 s{sC1}, s{sP}, 2"); p(f"s_add_u32 s{sC1}, s{sC1}, {4*sh}")
            p(f"s_lshl_b32 s88, s{sP}, 4"); p(f"s_add_u32 s88, s88, s{sB}"); p(f"s_add_u32 s88, s88, {2+sh}"); p(f"s_lshl_b32 s{sC2o}, s88, 2")
        if self.o["msum"]:
            p("v_mov_b32 v11, 0x3f803f80")
            for r in range(4): p(f"v_accvgpr_write_b32 a{ONES+r}, v11")

    def stamp(self, fine=False):
        if not self.o["timing"]: return
        if fine and not self.o.get("fine"): return
        p = self.p
        p(f"s_memrealtime s[88:89]")
        p(f"s_memtime s[90:91]")
        p("s_waitcnt lgkmcnt(0)")
        p("s_mov_b32 m0, s99"); p("s_nop 1")
        p(f"v_writelane_b32 v5, s88, m0")
        p(f"v_writelane_b32 v1, s90, m0")
        p("s_add_u32 s99, s99, 1")
    def stamp_flush(self):
        if not self.o["timing"]: return
        p = self.p
        if self.o.get("dbg") is not None:
            p(f"s_cmp_eq_u32 s2, {self.o['dbg']}"); p("s_cselect_b32 s90, 64, 0"); p(f"s_cmp_eq_u32 s{sW}, 0"); p("s_cselect_b32 s90, s90, 0")
            p("s_mov_b32 s88, s70"); p("s_mov_b32 s89, s71"); p("s_mov_b32 s91, 0x00020000")
            src = "v1" if self.o.get("dbgcyc") else "v5"
            p("v_lshlrev_b32 v6, 2, v0")
            p(f"buffer_store_dword {src}, v6, s[88:91], 0 offen")
            if not self.o.get("fuse"):
                p("s_add_u32 s88, s88, 512"); p("s_addc_u32 s89, s89, 0"); p("s_cmp_lg_u32 s90, 0"); p("s_cselect_b32 s90, 52, 0")
                p(f"buffer_store_dword {src}, v6, s[88:91], 0 offen")
            return
        p(f"s_add_u32 s88, s72, {64<<20}"); p("s_addc_u32 s89, s73, 0"); p(f"s_mov_b32 s90, {1<<20}"); p("s_mov_b32 s91, 0x00020000")
        p(f"s_lshl_b32 s92, s2, 2"); p(f"s_add_u32 s92, s92, s{sW}"); p("s_lshl_b32 s92, s92, 9")
        p("v_lshlrev_b32 v6, 2, v0")
        p("buffer_store_dword v5, v6, s[88:91], s92 offen")
        p("buffer_store_dword v1, v6, s[88:91], s92 offen offset:256")

    def emit_groups(self, groups):
        for g in groups:
            for x in g: self.p.add(x)
    def keep(self, x):
        drop = self.o["drop"]; ph = self.phase
        if x.kind == "dma" and ph + "_dma" in drop: return False
        if x.kind == "ds_read" and ph + "_lds" in drop: return False
        if x.kind == "barrier" and ph + "_bar" in drop: return False
        if x.kind == "trans" and ph + "_exp" in drop: return False
        if x.kind == "valu" and x.txt.startswith("v_add_f32") and ph + "_add" in drop: return False
        if x.kind == "valu" and x.txt.startswith("v_cvt") and ph + "_cvt" in drop: return False
        if x.kind == "vstore" and ph + "_st" in drop: return False
        return True
    def run(self, mf, chains, pre=()):
        ch = [[([x for x in g if self.keep(x)], lo, hi) for g, lo, hi in c] for c in chains]
        ch = [[it for it in c if it[0]] for c in ch]
        if self.phase + "_mfma" in self.o["drop"]: mf = [ins("s_nop 0") for _ in mf]
        self.p.extend(gapfill(mf, ch, pre=[x for x in pre if self.keep(x)]))

    def spaced(self, G, lo, hi):
        n = len(G)
        out = []
        for k, g in enumerate(G):
            pos = lo + (k*(hi - lo + 1))//n
            out.append((g, pos, pos + 1))
        return out
    def qstep(self, t, stores=(), sig=False):
        p = self.p
        self.phase = "qp"
        mf = []
        for T in range(8):
            for qt in range(6):
                mf.append(mfma(acc(T, qt), "v", WF(T), "a", XF(t % 2, qt), "a", None if t == 0 else acc(T, qt)))
        need = []
        for qt in range(6): need += R("a", XF(t % 2, qt), 4)
        for T in range(6): need += R("a", WF(T), 4)
        pre = [wait_regs(need)]
        chains = []
        BG = 11
        slow = []
        if t < 15:
            bar = [wait_tag(("w", t+1))]
            if t % 2 == 1: bar.append(wait_tag(("x", (t+1) >> 1)))
            chains.append([(bar, BG-1, BG-1), ([ins("s_waitcnt lgkmcnt(0)"), ins("s_barrier")], BG, BG)])
            cw = []
            for T in range(8):
                lo = max(BG+1, 6*T + 5)
                cw += [([self.rd_w(t+1, T, 0)], lo, min(47, lo + 8)), ([self.rd_w(t+1, T, 1)], lo, min(47, lo + 9))]
            chains.append(cw)
            chains.append([([self.rd_x(t+1, qt)], BG+1, 40) for qt in range(6)])
            GW = self.w_tile(t+3) if t + 3 <= 15 else []
            early = []; GX = []
            if t % 2 == 1 and (t >> 1) + 2 <= 7: GX = self.x_tile((t >> 1) + 2)[:3]
            if t % 2 == 0 and t >= 2 and ((t-1) >> 1) + 2 <= 7:
                tt = ((t-1) >> 1) + 2; sl = XB if tt % 2 == 0 else XA
                early = self.x_tile(tt)[3:]
                early[0] = self.x_soff(sXo, tt) + [ins(f"s_add_u32 m0, s{sXl}, {sl}")] + early[0]
            if t == 0: early = self.w_tile(2) + self.x_tile(1)
            late = GW + GX
            plan = self.o.get("kvplan", {10: (0, 0, 4), 11: (0, 4, 8), 12: (1, 0, 4), 13: (1, 4, 8)})
            if t in plan or str(t) in plan:
                slow = self.kv_pieces(*(plan.get(t) or plan.get(str(t))))
            c = []
            if t == 0:
                c = self.spaced(early + late, 0, 47); early = []; late = []
            if early:
                span = BG - 1
                for k, g in enumerate(early): c.append((g, int(k*span/len(early)), int(k*span/len(early)) + 1))
            hi = 47 if not (slow or stores) else (39 if len(slow) <= 2 else 32)
            if late: c += self.spaced(late, BG+2, hi)
            if slow: c += self.spaced(slow, (41 if len(slow) <= 2 else 34) if late else BG+2, 47)
            if c: chains.append(c)
        else:
            chains.append([([ins("s_waitcnt lgkmcnt(0)"), ins("s_barrier")], BG, BG)])
            G = self.kv_pieces(2, 0, 4 if self.o.get("look", 3) == 3 else 8)
            chains.append(self.spaced(G, BG+1, 47))
        if sig:
            chains.append([(self.signal(f"v_mov_b32 v{VPOLL+2}, s{sC1}"), BG+1, BG+3)])
        if stores:
            lo = 26 if t == 12 else 0
            if self.o.get("stA"): lo = 41
            chains.append(self.spaced([self.o_store(n, self.o["store_mod"], True, force=bool(self.o.get("stA")) and n % 2 == 0) for n in stores], lo, 47))
        self.run(mf, chains, pre)

    def qproj_a(self):
        p = self.p
        p(f"s_lshl_b32 s{sTc}, s{sItem}, 17")
        p.wait_tag(("w", 0)); p.wait_tag(("x", 0))
        p("s_barrier")
        self.stamp()
        for T in range(8):
            p.add(self.rd_w(0, T, 0)); p.add(self.rd_w(0, T, 1))
        for qt in range(6): p.add(self.rd_x(0, qt))
        for t in range(12):
            self.qstep(t, [2*t, 2*t+1] if self.o.get("stA") else ())
            if t in (3, 7, 11): self.stamp(True)
    def qproj_b(self, last):
        p = self.p
        st = (lambda a, b: list(range(a, b))) if (last and not self.o.get("stA")) else (lambda a, b: [])
        self.qstep(12, st(0, 3)); self.qstep(13, st(3, 9)); self.qstep(14, st(9, 15))
        self.qstep(15, st(15, 18), sig=bool(last and self.o.get("fuse")))
        self.stamp()
        for kt in range(2):
            for ks in range(4): p.add(self.rd_k(0, kt, ks))
        tmp = S(0, 0)
        rest = self.kv_pieces(2, 4, 8) if self.o.get("look", 3) == 3 else []
        late = st(18, 24)
        for qt in range(6):
            for ks in range(4):
                n = qt*4 + ks
                a0, a1 = acc(2*ks, qt), acc(2*ks+1, qt)
                if self.o.get("pk", True):
                    for a in (a0, a0+2, a1, a1+2): p(f"v_pk_mul_f32 v[{a}:{a+1}], v[{a}:{a+1}], s[{sC2}:{sC2+1}]")
                else:
                    for r in range(4): p(f"v_mul_f32 v{a0+r}, s{sC}, v{a0+r}")
                    for r in range(4): p(f"v_mul_f32 v{a1+r}, s{sC}, v{a1+r}")
                t0 = tmp + (n % 4)*4
                p(f"v_cvt_pk_bf16_f32 v{t0}, v{a0}, v{a0+1}")
                p(f"v_cvt_pk_bf16_f32 v{t0+1}, v{a0+2}, v{a0+3}")
                p(f"v_cvt_pk_bf16_f32 v{t0+2}, v{a1}, v{a1+1}")
                p(f"v_cvt_pk_bf16_f32 v{t0+3}, v{a1+2}, v{a1+3}")
                if late and n % 2 == 0 and n < 18:
                    m = late.pop(0)
                    for x in self.o_store(m, self.o["store_mod"], True, force=True): p.add(x)
                if self.o.get("dummy_mfma"):
                    for _ in range(self.o["dummy_mfma"]): p.add(mfma(252, "a", KF(0, 0, 0), "a", KF(0, 1, 0), "a", None))
                for r in range(4): p(f"v_accvgpr_write_b32 a{Q(qt,ks)+r}, v{t0+r}")
                if rest and n % 4 == 3 and n >= 7:
                    for x in rest.pop(0): p.add(x)
            if qt < 4:
                for dt in (2*qt, 2*qt+1):
                    p.add(self.rd_v(0, dt, 0)); p.add(self.rd_v(0, dt, 1))
        assert not rest and not late

    def period(self, n, dma=(), pre=(), early=(), extra=()):
        p = self.p
        self.phase = "at"
        msum = self.o["msum"]
        j, pp = divmod(n, 6)
        qk = []; pv = []
        if n < 96:
            sb = n % 2
            for kt in range(2):
                for ks in range(4):
                    qk.append(mfma(S(sb, kt), "v", KF(j % 2, kt, ks), "a", Q(pp, ks), "a", None if ks == 0 else S(sb, kt)))
        if n >= 2:
            jj, qt = divmod(n-2, 6)
            pb = (n-2) % 2
            for dt in range(8):
                pv.append(mfma(acc(dt, qt), "v", VF(jj % 2, dt), "a", P(pb), "v", None if jj == 0 else acc(dt, qt)))
        mf = []
        for k in range(8):
            if qk: mf.append(qk[k])
            if pv: mf.append(pv[k])
        if n >= 2 and msum:
            mf.append(mfma(LA(qt), "a", ONES, "a", P(pb), "v", None if jj == 0 else LA(qt)))
        nm = len(mf)
        sc = nm/17.0 if msum else nm/16.0
        def G(x): return min(nm-1, int(x*sc))
        chains = []
        if 1 <= n <= 96:
            jj2, qt2 = divmod(n-1, 6)
            sb = (n-1) % 2; pb2 = (n-1) % 2
            e = [S(sb, 0)+r for r in range(4)] + [S(sb, 1)+r for r in range(4)]
            chains.append([([ins(f"v_exp_f32 v{e[k]}, v{e[k]}")], G(2*k), G(2*k)) for k in range(8)])
            cv = []
            for k in range(8):
                if not msum: cv.append(([ins(f"v_add_f32 v{LS+qt2}, v{LS+qt2}, v{e[k]}")], G(2*k+1), G(2*k+1)))
                if k % 2 == 1:
                    cv.append(([ins(f"v_cvt_pk_bf16_f32 v{P(pb2)+k//2}, v{e[k-1]}, v{e[k]}")], G(2*k+1), G(2*k+1)))
            chains.append(cv)
        if n >= 2:
            jb, q = divmod(n-2, 6)
            if jb + 1 <= 15:
                par = (jb+1) % 2
                rds = []
                if q in (0, 1): rds = [self.rd_k(par, q, ks) for ks in range(4)]
                else:
                    for dt in range((q-2)*2, (q-2)*2+2): rds += [self.rd_v(par, dt, 0), self.rd_v(par, dt, 1)]
                gp = [1, 5, 9, 13] if q != 5 else [1, 5, 9, 10]
                chains.append([([x], G(gp[k]), G(gp[k])) for k, x in enumerate(rds)])
        if dma:
            nd = sum(1 for x in dma if x.kind == "dma")
            slots = {0: [], 1: [16], 2: [11, 16], 4: [3, 7, 11, 16], 8: [2, 4, 6, 8, 10, 12, 14, 16]}.get(nd) or [int(3 + (16-3)*k/(nd-1)) for k in range(nd)]
            ch = []; seen = 0
            for x in dma:
                if x.kind == "dma":
                    g = G(slots[seen]); seen += 1
                    grp = [x] if x.meta.get("credit") is None else [ins(f"s_waitcnt vmcnt({x.meta['credit']})"), x]
                    ch.append((grp, g, g))
                else:
                    ch.append(([x], 0, nm-1))
            for k in range(len(ch)-2, -1, -1):
                if ch[k][0][-1].kind != "dma": ch[k] = (ch[k][0], 0, max(0, ch[k+1][2] - (1 if ch[k+1][0][-1].kind == "dma" else 0)))
            chains.append(ch)
        if early: chains.append([([x], 0, nm-1) for x in early])
        if extra: chains.append([(g, (k*nm)//len(extra), nm-1) for k, g in enumerate(extra)])
        self.run(mf, chains, pre)

    def body(self, j, dmaG, tog=(), nper=6, extra=(), extra2=()):
        bar = []
        if j + 1 <= 15: bar.append(wait_tag(("kv", j+1)))
        if extra: bar.append(wait_tag(("wo",)))
        bar += [ins("s_waitcnt lgkmcnt(0)"), ins("s_barrier")]
        if self.o.get("baracct"):
            b0 = [ins("s_memtime s[92:93]"), ins("s_waitcnt lgkmcnt(0)")]
            b1 = [ins("s_memtime s[94:95]"), ins("s_waitcnt lgkmcnt(0)")]
            b2 = [ins("s_memtime s[96:97]"), ins("s_waitcnt lgkmcnt(0)"), ins("s_sub_u32 s98, s94, s92"), ins("s_add_u32 s100, s100, s98"),
                  ins("s_sub_u32 s98, s96, s94"), ins("s_add_u32 s101, s101, s98")]
            bar = b0 + bar[:1] + b1 + bar[1:] + b2
        tk = [x for x in tog if any(f"v{KA+z}," in x.txt for z in range(4))]
        tv = [x for x in tog if x not in tk]
        flat = [x for g in dmaG for x in g]
        cr = self.o.get("credit")
        if cr is not None and j <= 12:
            for x in flat:
                if x.kind == "dma": x.meta["credit"] = cr
        nd = sum(1 for x in flat if x.kind == "dma")
        if nd == 8: cnt = self.o.get("dmacnt", [1, 1, 2, 1, 1, 2])
        else: cnt = [nd//6 + (1 if q < nd % 6 else 0) for q in range(6)]
        per = [[] for _ in range(6)]
        q = 0; seen = 0
        for x in flat:
            while q < 5 and seen >= cnt[q]: q += 1; seen = 0
            per[q].append(x)
            if x.kind == "dma": seen += 1
        for q in range(6):
            e = tv[:4] if q == 0 else (tv[4:] if q == 1 else [])
            ex = []
            if extra or extra2:
                xs = list(extra) + list(extra2)
                n = len(xs); ex = xs[q*n//6:(q+1)*n//6]
            self.period(6*j + 2 + q, dma=per[q], pre=(bar + tk) if q == 0 else (), early=e, extra=ex)

    def tog(self):
        return [ins(f"v_xor_b32 v{KA+x}, {PHI}, v{KA+x}") for x in range(4)] + [ins(f"v_xor_b32 v{VA+x}, {PHI}, v{VA+x}") for x in range(8)]
    def attention_shared(self):
        p = self.p
        look = self.o.get("look", 3)
        if look == 4:
            t3 = self.kv_pieces(3, 0, 8)
            self.period(0, dma=[x for g in t3[:4] for x in g]); self.period(1, dma=[x for g in t3[4:] for x in g])
            self.body(0, self.dma_kv_abs(("kv", 4), 0))
        else:
            self.period(0); self.period(1)
            self.body(0, self.dma_kv_abs(("kv", 3), 3))
        p(f"s_mov_b32 s{sM}, s{sKVl}")
        p(f"s_mov_b32 s{sCnt}, 5")
        for k in range(5):
            j = 1 + 2*k
            p.raw(f"@@LB at {k}")
            self.stamp(True)
            if look == 4:
                g1 = self.dma_kv(("kv", j+4), f"s_add_u32 m0, s{sM}, 8192", f"s_add_u32 m0, s{sM}, 12288")
                self.body(j, g1, tog=self.tog())
                g2 = self.dma_kv(("kv", j+5), f"s_add_u32 m0, s{sM}, 0", f"s_add_u32 m0, s{sM}, 4096")
                self.body(j+1, [[ins(f"s_xor_b32 s{sM}, s{sM}, {PHI}")]] + g2)
            else:
                g1 = self.dma_kv(("kv", j+3), f"s_add_u32 m0, s{sM}, 0", f"s_add_u32 m0, s{sM}, 4096")
                self.body(j, g1, tog=self.tog())
                g2 = self.dma_kv(("kv", j+4), f"s_add_u32 m0, s{sM}, 8192", f"s_add_u32 m0, s{sM}, 12288")
                g2[-1] = g2[-1] + [ins(f"s_xor_b32 s{sM}, s{sM}, {PHI}")]
                self.body(j+1, g2)
            p(f"s_sub_u32 s{sCnt}, s{sCnt}, 1"); p(f"s_cmp_lg_u32 s{sCnt}, 0"); p("s_cbranch_scc1 L_at")
            p.raw(f"@@LE at {k}")
        if look == 4:
            self.body(11, self.dma_kv_abs(("kv", 15), 3), tog=self.tog())
            self.body(12, [])
        else:
            self.body(11, self.dma_kv_abs(("kv", 14), 2), tog=self.tog())
            self.body(12, self.dma_kv_abs(("kv", 15), 3))
    def attention_tail(self, last):
        fuse = self.o.get("fuse")
        if not last:
            self.body(13, self.dma_wo_last() if fuse else [], tog=self.tog())
            self.body(14, [])
            self.body(15, self.w_tile(0, 1) + self.x_tile(0) + self.w_tile(1, 1), tog=self.tog(), extra=self.wo_prep_groups() if fuse else ())
        elif not fuse:
            self.body(13, self.dma_wo_last(), tog=self.tog())
            self.body(14, [])
            self.body(15, [], tog=self.tog(), extra=self.wo_prep_groups())
        else:
            self.body(13, [], tog=self.tog(), extra2=[[x] for x in self.k3_setup()])
            self.body(14, [], extra2=[self.poll_issue(f"v_mov_b32 VDST, s{sC1}")])
            self.body(15, [], tog=self.tog())
            self.poll_check(128)
    def wo_prep_groups(self):
        setup = [ins("v_and_b32 v33, 15, v0"), ins("v_lshrrev_b32 v34, 4, v0"), ins("v_lshrrev_b32 v35, 2, v33"), ins("v_and_b32 v33, 3, v33"),
                 ins("v_lshl_add_u32 v32, v34, 2, v35"), ins("v_lshlrev_b32 v32, 10, v32"), ins("v_lshl_add_u32 v32, v33, 4, v32"),
                 ins(f"s_lshl_b32 s88, s{sW}, 8"), ins("v_add_u32 v32, s88, v32")]
        G = [[x] for x in setup]
        for nt in range(8):
            u, par = nt >> 1, nt & 1
            d = KF(0, 0, 0) + nt*4
            G.append([ins(f"ds_read_b64_tr_b16 a[{d}:{d+1}], v32 offset:{64*u + 8*par}")])
            G.append([ins(f"ds_read_b64_tr_b16 a[{d+2}:{d+3}], v32 offset:{16384 + 64*u + 8*par}")])
        for nt in range(8):
            d = KF(0, 0, 0) + nt*4
            g = []
            if nt % 4 == 0: g.append(ins(f"s_add_u32 s{sT2}, s{sWTo}, {nt*1024}"))
            g.append(ins(f"buffer_store_dwordx4 a[{d}:{d+3}], v{VST}, s[{SWT}:{SWT+3}], s{sT2} offen offset:{(nt % 4)*1024} {self.o['last_store_mod']}"))
            G.append(g)
        return G
    def dma_wo_last(self):
        G = []
        for half in range(2):
            g = [ins(f"s_add_u32 s{sT1}, s{sWOo}, {half*4096}"), ins(f"s_lshl_b32 s{sWoM}, s{sW}, 13"), ins(f"s_add_u32 m0, s{sWoM}, {half*4096}")]
            for n in range(4):
                g.append(ins(f"buffer_load_dwordx4 v{VST}, s[{SWO}:{SWO+3}], s{sT1} offen offset:{1024*n} nt lds", tag=("wo",)))
                G.append(g); g = []
        return G

    FLAG = 32768
    def softmax_check(self, item):
        p = self.p
        t = S(0, 0)
        for qt in range(6): p(f"v_accvgpr_read_b32 v{t+qt}, a{LA(qt)}")
        p(f"v_max3_f32 v{t+6}, v{t}, v{t+1}, v{t+2}"); p(f"v_min3_f32 v{t+7}, v{t}, v{t+1}, v{t+2}")
        p(f"v_max3_f32 v{t+6}, v{t+6}, v{t+3}, v{t+4}"); p(f"v_min3_f32 v{t+7}, v{t+7}, v{t+3}, v{t+4}")
        p(f"v_max_f32 v{t+6}, v{t+6}, v{t+5}"); p(f"v_min_f32 v{t+7}, v{t+7}, v{t+5}")
        p(f"v_cmp_nge_f32 vcc, {f32(2.0**24)}, v{t+6}")
        p("s_mov_b64 s[88:89], vcc")
        p(f"v_cmp_nle_f32 vcc, {f32(2.0**-24)}, v{t+7}")
        p("s_or_b64 s[88:89], s[88:89], vcc")
        p("s_cmp_lg_u64 s[88:89], 0"); p("s_cselect_b32 s88, 1, 0")
        p(f"v_mov_b32 v{t}, s88"); p(f"s_lshl_b32 s89, s{sW}, 2"); p(f"v_mov_b32 v{t+1}, s89")
        p(f"ds_write_b32 v{t+1}, v{t} offset:{self.FLAG}")
        p("s_waitcnt lgkmcnt(0)"); p("s_barrier")
        p(f"v_mov_b32 v{t+1}, 0")
        p(f"ds_read_b128 v[{t+4}:{t+7}], v{t+1} offset:{self.FLAG}")
        p(f"v_or_b32 v{t+4}, v{t+4}, v{t+5}"); p(f"v_or_b32 v{t+6}, v{t+6}, v{t+7}"); p(f"v_or_b32 v{t+4}, v{t+4}, v{t+6}")
        p(f"v_readfirstlane_b32 s88, v{t+4}")
        p("s_cmp_lg_u32 s88, 0")
        p("s_cbranch_scc1 L_FB")
        p.raw(f"L_OE{item}:")

    def fallback(self):
        q = K2(self.o); q.phase = "fb"; p = q.p
        M = LS
        def load_tile():
            p(f"s_mov_b32 s{sT2}, s{sTc}")
            q.emit_groups(q.dma_kv_abs(("fb",), 0))
            p("s_waitcnt vmcnt(0)"); p("s_barrier")
        def qk(qt):
            for kt in range(2):
                for ks in range(4):
                    p.add(mfma(S(0, kt), "v", KF(0, kt, ks), "a", Q(qt, ks), "a", None if ks == 0 else S(0, kt)))
        p.raw("L_FB:")
        p("s_waitcnt vmcnt(0) lgkmcnt(0)"); p("s_barrier")
        p(f"s_mov_b32 s{SKV+2}, {KV_BYTES}")
        for qt in range(6): p(f"v_mov_b32 v{M+qt}, 0xff800000")
        p(f"s_lshl_b32 s{sTc}, s{sItem}, 17"); p(f"s_mov_b32 s{sCnt}, 16")
        p.raw("L_FB1:")
        load_tile()
        for kt in range(2):
            for ks in range(4): p.add(q.rd_k(0, kt, ks))
        for qt in range(6):
            qk(qt)
            e = [S(0, 0)+r for r in range(4)] + [S(0, 1)+r for r in range(4)]
            for k in range(0, 8, 2): p(f"v_max3_f32 v{M+qt}, v{e[k]}, v{e[k+1]}, v{M+qt}")
        p("s_waitcnt lgkmcnt(0)"); p("s_barrier")
        p(f"s_sub_u32 s{sCnt}, s{sCnt}, 1"); p(f"s_cmp_lg_u32 s{sCnt}, 0"); p("s_cbranch_scc1 L_FB1")
        t = S(1, 0)
        for qt in range(6):
            m = M + qt
            p(f"v_mov_b32 v{t}, v{m}"); p(f"v_permlane32_swap_b32 v{t}, v{m}"); p(f"v_max_f32 v{m}, v{m}, v{t}")
            p(f"v_mov_b32 v{t}, v{m}"); p(f"v_permlane16_swap_b32 v{t}, v{m}"); p(f"v_max_f32 v{m}, v{m}, v{t}")
        for r in range(192): p(f"v_mov_b32 v{ACC+r}, 0")
        p(f"v_mov_b32 v{t}, 0")
        for r in range(24): p(f"v_accvgpr_write_b32 a{LA(0)+r}, v{t}")
        p(f"s_lshl_b32 s{sTc}, s{sItem}, 17"); p(f"s_mov_b32 s{sCnt}, 16")
        p("s_nop 7")
        p.raw("L_FB2:")
        load_tile()
        for kt in range(2):
            for ks in range(4): p.add(q.rd_k(0, kt, ks))
        for dt in range(8):
            p.add(q.rd_v(0, dt, 0)); p.add(q.rd_v(0, dt, 1))
        for qt in range(6):
            qk(qt)
            e = [S(0, 0)+r for r in range(4)] + [S(0, 1)+r for r in range(4)]
            for k in range(8): p(f"v_sub_f32 v{e[k]}, v{e[k]}, v{M+qt}")
            for k in range(8): p(f"v_exp_f32 v{e[k]}, v{e[k]}")
            for k in range(0, 8, 2): p(f"v_cvt_pk_bf16_f32 v{P(0)+k//2}, v{e[k]}, v{e[k+1]}")
            for dt in range(8): p.add(mfma(acc(dt, qt), "v", VF(0, dt), "a", P(0), "v", acc(dt, qt)))
            p.add(mfma(LA(qt), "a", ONES, "a", P(0), "v", LA(qt)))
        p("s_waitcnt lgkmcnt(0)"); p("s_nop 7"); p("s_nop 7"); p("s_barrier")
        p(f"s_sub_u32 s{sCnt}, s{sCnt}, 1"); p(f"s_cmp_lg_u32 s{sCnt}, 0"); p("s_cbranch_scc1 L_FB2")
        p("s_nop 7"); p("s_nop 7")
        p(f"s_cmp_eq_u32 s{sItem}, 0"); p("s_cbranch_scc1 L_OE0")
        if self.o.get("fuse"):
            for x in self.k3_setup(): p.add(x)
        p("s_branch L_OE1")
        L, st = finalize(p.L)
        return L

    def signal(self, offreg_txt, uid=None):
        uid = uid or self.uid()
        L = [ins(f"s_cmp_lg_u32 s{sW}, 0"), ins(f"s_cbranch_scc1 L_sig{uid}"),
             ins(f"v_mov_b32 v{VPOLL+1}, 1"), ins(offreg_txt), ins("s_mov_b64 exec, 1"),
             ins(f"buffer_atomic_add v{VPOLL+1}, v{VPOLL+2}, s[{SFL}:{SFL+3}], 0 offen sc1"),
             ins("s_mov_b64 exec, -1")]
        for x in L: x.meta["alt"] = True
        L.append(I(f"L_sig{uid}:", "label"))
        return L
    def uid(self):
        self._uid = getattr(self, "_uid", 0) + 1
        return self._uid
    def poll_issue(self, off_txt):
        return [ins(off_txt.replace("VDST", f"v{VPOLL+3}")), ins(f"buffer_load_dword v{VPOLL}, v{VPOLL+3}, s[{SFL}:{SFL+3}], 0 offen sc1")]
    def poll_check(self, target):
        p = self.p
        uid = self.uid()
        p(f"v_readfirstlane_b32 s88, v{VPOLL}")
        p(f"s_cmp_ge_u32 s88, {target}"); p(f"s_cbranch_scc1 L_ok{uid}")
        L = [f"s_mov_b32 s89, 0x40000", f"L_spin{uid}:", "s_sleep 2",
             f"buffer_load_dword v{VPOLL}, v{VPOLL+3}, s[{SFL}:{SFL+3}], 0 offen sc1", "s_waitcnt vmcnt(0)",
             f"v_readfirstlane_b32 s88, v{VPOLL}", "s_nop 3", "s_sub_u32 s89, s89, 1", "s_cmp_eq_u32 s89, 0", f"s_cbranch_scc1 L_ok{uid}",
             f"s_cmp_lt_u32 s88, {target}", f"s_cbranch_scc1 L_spin{uid}"]
        for t in L: p.add(I(t, "label", verbatim=True))
        p.raw(f"L_ok{uid}:")

    def k3_setup(self):
        L = []
        A = lambda t: L.append(ins(t))
        A(f"s_and_b32 s88, s{sHG}, 3"); A(f"s_lshr_b32 s89, s{sHG}, 2")
        A(f"s_lshl_b32 s90, s{sP}, 2"); A("s_add_u32 s90, s90, s88"); A("s_lshl_b32 s90, s90, 7"); A(f"s_lshl_b32 s91, s{sW}, 5"); A("s_add_u32 s90, s90, s91"); A("s_lshl_b32 s90, s90, 13")
        for pr in range(4):
            A(f"s_add_u32 s91, s{sW}, {pr}"); A("s_and_b32 s91, s91, 3"); A("s_lshl_b32 s91, s91, 11"); A(f"s_add_u32 s{kA+pr}, s90, s91")
        A(f"s_lshl_b32 s90, s{sP}, 4"); A(f"s_add_u32 s90, s90, s{sB}"); A("s_lshl_b32 s90, s90, 1"); A("s_add_u32 s90, s90, s89"); A("s_lshl_b32 s90, s90, 7")
        A(f"s_lshl_b32 s91, s{sW}, 5"); A("s_add_u32 s90, s90, s91"); A(f"s_mul_i32 s{kBo}, s90, 6144")
        A(f"s_mul_i32 s90, s{sB}, 192"); A("s_mul_i32 s91, s89, 96"); A("s_add_u32 s90, s90, s91"); A("s_lshl_b32 s90, s90, 11")
        A(f"s_lshl_b32 s91, s{sP}, 10"); A("s_add_u32 s90, s90, s91"); A("s_lshl_b32 s91, s88, 8"); A("s_add_u32 s90, s90, s91")
        A(f"s_lshl_b32 s91, s{sW}, 6"); A(f"s_add_u32 s{kOut}, s90, s91")
        A(f"s_mov_b32 s{SX}, s68"); A(f"s_mov_b32 s{SX+1}, s69"); A(f"s_mov_b32 s{SX+2}, {OUT_BYTES}"); A(f"s_mov_b32 s{SX+3}, 0x00020000")
        A(f"v_add_u32 v{VB4}, 4096, v{VST}")
        return L
    def k3_loads(self, b, o):
        m = self.o.get("k3_ld", "sc1")
        G = []
        G.append([ins(f"s_add_u32 s{kT0}, s{kBo}, {o*6144}"),
                  ins(f"buffer_load_dwordx4 {rng('a', BF(b, 0), 4)}, v{VST}, s[{SO}:{SO+3}], s{kT0} offen {m}")])
        for qt in range(1, 4):
            G.append([ins(f"buffer_load_dwordx4 {rng('a', BF(b, qt), 4)}, v{VST}, s[{SO}:{SO+3}], s{kT0} offen offset:{1024*qt} {m}")])
        G.append([ins(f"buffer_load_dwordx4 {rng('a', BF(b, 4), 4)}, v{VB4}, s[{SO}:{SO+3}], s{kT0} offen {m}")])
        G.append([ins(f"buffer_load_dwordx4 {rng('a', BF(b, 5), 4)}, v{VB4}, s[{SO}:{SO+3}], s{kT0} offen offset:1024 {m}")])
        for pr in range(4):
            t = kT1 if pr % 2 == 0 else kT0
            G.append([ins(f"s_add_u32 s{t}, s{kA+pr}, {o*8192}"),
                      ins(f"buffer_load_dwordx4 {rng('a', AF(b, 2*pr), 4)}, v{VST}, s[{SWT}:{SWT+3}], s{t} offen {m}")])
            G.append([ins(f"buffer_load_dwordx4 {rng('a', AF(b, 2*pr+1), 4)}, v{VST}, s[{SWT}:{SWT+3}], s{t} offen offset:1024 {m}")])
        return G
    def k3_adv(self, steps):
        return [ins(f"s_add_u32 s{kA+pr}, s{kA+pr}, {(steps*8192) & 0xffffffff}") for pr in range(4)] + [ins(f"s_add_u32 s{kBo}, s{kBo}, {(steps*6144) & 0xffffffff}")]
    def k3_step(self, t, G, extra=()):
        p = self.p
        b = t % 4
        n = 0
        extra = list(extra)
        for nu in range(8):
            for qt in range(6):
                p.add(mfma(oacc(nu, qt), "v", AF(b, nu), "a", BF(b, qt), "a", None if t == 0 else oacc(nu, qt)))
                if n % 3 == 1 and n//3 < len(G):
                    for x in G[n//3]: p.add(x)
                if n == 44:
                    for x in extra: p.add(x)
                n += 1
    def k3_main(self):
        p = self.p
        self.k3_step(0, self.k3_loads(3, 3), extra=self.k3_adv(8))
        p(f"s_mov_b32 s{kCnt}, 3")
        for k in range(3):
            p.raw(f"@@LB k3a {k}")
            for i in range(4):
                t = 1 + 4*k + i
                ex = self.k3_adv(8) if i == 3 else []
                if i == 0: ex = self.poll_issue(f"s_mov_b32 s88, 0") if False else []
                self.k3_step(t, self.k3_loads((t+3) % 4, i), extra=ex)
                if i == 1:
                    uid = "k3s"
                    p(f"s_cmp_lg_u32 s{kCnt}, 3"); p(f"s_cbranch_scc1 L_{uid}")
                    p.wait_tag(("o",)); p("s_barrier")
                    for x in self.signal(f"v_mov_b32 v{VPOLL+2}, s{sC2o}", uid="g2"): p.add(x)
                    p.raw(f"L_{uid}:")
                if i == 2:
                    for x in self.poll_issue(f"v_mov_b32 VDST, s{sC2o}"): p.add(x)
            p(f"s_sub_u32 s{kCnt}, s{kCnt}, 1"); p(f"s_cmp_lg_u32 s{kCnt}, 0"); p("s_cbranch_scc1 L_k3a")
            p.raw(f"@@LE k3a {k}")
        self.stamp()
        for x in self.k3_adv(4 - 32): p.add(x)
        self.poll_check(8)
        for i in range(4):
            t = 13 + i
            self.k3_step(t, self.k3_loads((t+3) % 4, i), extra=self.k3_adv(8) if i == 3 else [])
        p(f"s_mov_b32 s{kCnt}, 3")
        for k in range(3):
            p.raw(f"@@LB k3b {k}")
            for i in range(4):
                t = 17 + 4*k + i
                self.k3_step(t, self.k3_loads((t+3) % 4, i), extra=self.k3_adv(8) if i == 3 else [])
            p(f"s_sub_u32 s{kCnt}, s{kCnt}, 1"); p(f"s_cmp_lg_u32 s{kCnt}, 0"); p("s_cbranch_scc1 L_k3b")
            p.raw(f"@@LE k3b {k}")
        for t in (29, 30, 31): self.k3_step(t, [])
        self.stamp()
        for pr, v in ((1, 7), (2, 2), (3, 3)):
            p(f"s_add_u32 s88, s{sW}, {pr}"); p("s_and_b32 s88, s88, 3"); p("s_mul_i32 s88, s88, 36864"); p(f"s_add_u32 s88, s88, {(pr-1)*12288}")
            p(f"v_add_u32 v{v}, s88, v{VST}")
        p(f"s_mul_i32 s88, s{sW}, 36864"); p(f"v_add_u32 v8, s88, v{VST}")
        for pr, v in ((1, 7), (2, 2), (3, 3)):
            for par in range(2):
                for qt in range(6):
                    a = oacc(2*pr + par, qt)
                    p(f"ds_write_b128 v{v}, v[{a}:{a+3}] offset:{(par*6 + qt)*1024}")
        p("s_waitcnt lgkmcnt(0)")
        p("s_barrier")
        for sl in range(3):
            for par in range(2):
                for qt in range(6):
                    a = oacc(2*(sl+1) + par, qt)
                    p(f"ds_read_b128 v[{a}:{a+3}], v8 offset:{sl*12288 + (par*6 + qt)*1024}")
        p("v_and_b32 v12, 15, v0"); p("v_lshrrev_b32 v13, 4, v0"); p("v_lshlrev_b32 v12, 11, v12"); p("v_lshl_add_u32 v9, v13, 4, v12")
        for qt in range(6):
            for par in range(2):
                a = oacc(par, qt)
                for sl in range(3):
                    s_ = oacc(2*(sl+1) + par, qt)
                    for r in range(4): p(f"v_add_f32 v{a+r}, v{a+r}, v{s_+r}")
            a0, a1 = oacc(0, qt), oacc(1, qt)
            t0 = 16 + (qt % 4)*4
            p(f"v_cvt_pk_bf16_f32 v{t0}, v{a0}, v{a0+1}"); p(f"v_cvt_pk_bf16_f32 v{t0+1}, v{a0+2}, v{a0+3}")
            p(f"v_cvt_pk_bf16_f32 v{t0+2}, v{a1}, v{a1+1}"); p(f"v_cvt_pk_bf16_f32 v{t0+3}, v{a1+2}, v{a1+3}")
            p(f"s_add_u32 s{kT0}, s{kOut}, {qt*16*2048}")
            p(f"buffer_store_dwordx4 v[{t0}:{t0+3}], v9, s[{SX}:{SX+3}], s{kT0} offen {self.o.get('out_mod', '')}")

    def o_epilogue(self, last):
        p = self.p
        pre = []
        if last and self.o.get("fuse"): pre = self.k3_loads(0, 0) + self.k3_loads(1, 1) + self.k3_loads(2, 2)
        for qt in range(6): p(f"v_accvgpr_read_b32 v{LS+qt}, a{LA(qt)}")
        for qt in range(6): p(f"v_rcp_f32 v{LS+qt}, v{LS+qt}")
        for qt in range(6):
            for ks in range(4):
                a0, a1 = acc(2*ks, qt), acc(2*ks+1, qt)
                l = LS + qt
                if self.o.get("pk", True):
                    lp = l & ~1; sel = "op_sel_hi:[1,0]" if l % 2 == 0 else "op_sel:[0,1] op_sel_hi:[1,1]"
                    for a in (a0, a0+2, a1, a1+2): p(f"v_pk_mul_f32 v[{a}:{a+1}], v[{a}:{a+1}], v[{lp}:{lp+1}] {sel}")
                else:
                    for r in range(4): p(f"v_mul_f32 v{a0+r}, v{l}, v{a0+r}")
                    for r in range(4): p(f"v_mul_f32 v{a1+r}, v{l}, v{a1+r}")
                t0 = SB + ((ks + 4*qt) % 6)*4
                p(f"v_cvt_pk_bf16_f32 v{t0}, v{a0}, v{a0+1}")
                p(f"v_cvt_pk_bf16_f32 v{t0+1}, v{a0+2}, v{a0+3}")
                p(f"v_cvt_pk_bf16_f32 v{t0+2}, v{a1}, v{a1+1}")
                p(f"v_cvt_pk_bf16_f32 v{t0+3}, v{a1+2}, v{a1+3}")
                n = ks*6 + qt
                if last:
                    p(f"s_add_u32 s{sT0}, s{sOo}, {n*1024}")
                    for _ in range(2):
                        if pre:
                            for x in pre.pop(0): p.add(x)
                    p(f"buffer_store_dwordx4 v[{t0}:{t0+3}], v{VST}, s[{SO}:{SO+3}], s{sT0} offen {self.o['last_store_mod']}", tag=("o",))
                else:
                    for r in range(4): p(f"v_accvgpr_write_b32 a{OS(n)+r}, v{t0+r}")

    def final(self):
        p = self.p
        p.wait_tag(("wo",))
        p("s_barrier")
        p("v_and_b32 v8, 15, v0"); p("v_lshrrev_b32 v2, 4, v0"); p("v_lshrrev_b32 v3, 2, v8"); p("v_and_b32 v7, 3, v8")
        p("v_lshl_add_u32 v6, v2, 2, v3"); p("v_lshlrev_b32 v6, 10, v6"); p("v_lshl_add_u32 v6, v7, 4, v6")
        p(f"s_lshl_b32 s88, s{sW}, 8"); p("v_add_u32 v6, s88, v6")
        for nt in range(8):
            u, par = nt >> 1, nt & 1
            d = 32 + nt*4
            p(f"ds_read_b64_tr_b16 v[{d}:{d+1}], v6 offset:{64*u + 8*par}")
            p(f"ds_read_b64_tr_b16 v[{d+2}:{d+3}], v6 offset:{16384 + 64*u + 8*par}")
        for nt in range(8):
            d = 32 + nt*4
            if nt % 4 == 0: p(f"s_add_u32 s{sT1}, s{sWTo}, {nt*1024}")
            p(f"buffer_store_dwordx4 v[{d}:{d+3}], v{VST}, s[{SWT}:{SWT+3}], s{sT1} offen offset:{(nt % 4)*1024} {self.o['last_store_mod']}")

    def build(self):
        p = self.p
        assert self.o["msum"]
        self.prologue()
        if self.o["timing"]: p("s_mov_b32 s99, 0")
        self.stamp()
        p(f"s_mov_b32 s{SO+2}, {0 if self.o.get('stA') else O_BYTES}")
        self.emit_groups(self.w_tile(0, 0) + self.x_tile(0) + self.w_tile(1, 0))
        self.prologue2()
        for item in range(2):
            last = item == 1
            p.raw("@@SB A"); self.qproj_a(); p.raw("@@SE A")
            p.raw(f"@@SB B{item}"); self.qproj_b(last); self.stamp(); p.raw(f"@@SE B{item}")
            p.raw("@@SB C"); self.attention_shared(); p.raw("@@SE C")
            p.raw(f"@@SB D{item}")
            self.attention_tail(last)
            self.stamp()
            if self.o.get("guard", True): self.softmax_check(item)
            self.o_epilogue(last)
            self.stamp()
            if not last:
                p(f"s_add_u32 s{sWo}, s{sWo}, 256"); p(f"s_add_u32 s{sOo}, s{sOo}, {4*6144}")
                p(f"s_mov_b32 s{sItem}, 1"); p(f"s_mov_b32 s{SO+2}, {O_BYTES}")
            else:
                if self.o.get("fuse"): self.k3_main()
                self.stamp()
                p("s_waitcnt vmcnt(0)")
                self.stamp()
                self.stamp_flush()
                p("s_waitcnt vmcnt(0)")
            p.raw(f"@@SE D{item}")
        L, st = finalize(p.L)
        L = fold(L)
        segs, top = segments(L)
        out = [i for k, i in top if k == "ins"]
        lab = lambda t: I(t, "label")
        br = lambda tgt: [ins(f"s_cmp_eq_u32 s{sItem}, 1"), ins(f"s_cbranch_scc1 {tgt}")]
        out += [lab("L_A:")] + segs["A"] + br("L_B1") + segs["B0"] + [lab("L_C:")] + segs["C"] + br("L_D1") + segs["D0"] + [ins("s_branch L_A")]
        out += [lab("L_B1:")] + segs["B1"] + [ins("s_branch L_C")]
        out += [lab("L_D1:")] + segs["D1"] + [lab("K2_END:"), ins("s_endpgm")]
        if self.o.get("guard", True): out += self.fallback()
        return out, st

if __name__ == "__main__":
    k = K2(); L, st = k.build()
    print(st, len(L))
```

```python
from dsl import *
import struct

def f32(x): return "0x%08x" % struct.unpack("<I", struct.pack("<f", x))[0]

NB, SQ, DM, H, SK, DH = 16, 192, 512, 32, 512, 128
X_BYTES = NB*SQ*DM*2
KV_BYTES = NB*H*SK*DH*2
W_BYTES = DM*H*DH*2
O_BYTES = 2*NB*2*128*6*1024
WOT_OFF = O_BYTES
WOT_BYTES = 2*4*128*8*1024
OUT_BYTES = NB*SQ*1024*2

PHI = 65536
WSLOT = [65536, 81920, 98304]
XA, XB = 114688, 139264
DROP = 0x30000

ACC = 64
def acc(T, qt): return ACC + (T*6 + qt)*4
SB = 8
def S(buf, kt): return SB + buf*8 + kt*4
PB = 24
def P(buf): return PB + buf*4
LS = 32
KA = 38
VA = 42
DV = 50
WA = 54
XAD = 58
WD = [60, 61, 2, 3]
XD = [62, 63, 6, 7]
VST = 4
def Q(qt, ks): return (qt*4 + ks)*4
def OS(n): return n*4
def KF(buf, kt, ks): return 96 + buf*32 + (kt*4 + ks)*4
def VF(buf, dt): return 160 + buf*32 + dt*4
def WF(T): return 96 + T*4
def XF(buf, qt): return 128 + buf*24 + qt*4
ONES = 224
def LA(qt): return 228 + qt*4
SX, SW, SKV, SO, SWO, SWT = 4, 8, 12, 16, 20, 24
sW, sHP, sRH, sP, sB, sHG = 28, 29, 30, 31, 32, 33
sKVo, sKVl, sWo, sWl, sXo, sXl, sOo = 34, 35, 36, 37, 38, 39, 40
sT0, sT1, sC = 41, 42, 43
sWOo, sWTo = 44, 45
sItem, sCnt = 46, 47
sTile, sM, sTh1, sTh2, sWarmW, sWarmX, sWoM, sDrop, sTc, sRot = 74, 75, 76, 77, 78, 79, 80, 81, 84, 85
sT2 = 83
sC2 = 86
sWR, sXR = 78, 79

SFL = 92
kA, kBo, kT0, kT1, kOut, kCnt = 74, 78, 80, 81, 79, 47
sC1, sC2o = 97, 96
def oacc(nu, qt): return ACC + (nu*6 + qt)*4
def AF(buf, nu): return buf*56 + nu*4
def BF(buf, qt): return buf*56 + 32 + qt*4
VB4 = 6
VPOLL = 34
MF = "v_mfma_f32_16x16x32_bf16"
def mfma(d, dk, a, ak, b, bk, c=None):
    cs = "0" if c is None else rng(dk, c, 4)
    return ins(f"{MF} {rng(dk,d,4)}, {rng(ak,a,4)}, {rng(bk,b,4)}, {cs}")

class K2:
    def __init__(self, opts=None):
        self.o = dict(nt="nt", w_mod="", x_mod="", store_mod="sc1", last_store_mod="sc1", timing=False, msum=True, warm=False, qrot=True, drop=[])
        if opts: self.o.update(opts)
        self.p = Prog()
        self.phase = ""

    def tile_addr(self):
        if not self.o.get("rot"):
            return [ins(f"s_add_u32 s{sTile}, s{sKVo}, s{sTc}"), ins(f"s_add_u32 s{sTc}, s{sTc}, 8192")]
        return [ins(f"s_add_u32 s{sTile}, s{sTc}, s{sRot}"), ins(f"s_and_b32 s{sTile}, s{sTile}, 0x1ffff"),
                ins(f"s_and_b32 s{sT0}, s{sTc}, 0x20000"), ins(f"s_add_u32 s{sTile}, s{sTile}, s{sT0}"),
                ins(f"s_add_u32 s{sTile}, s{sTile}, s{sKVo}"), ins(f"s_add_u32 s{sTc}, s{sTc}, 8192")]
    def dma_kv(self, tag, m0a, m0b, pre=()):
        nt = self.o['nt']
        G = []
        g = list(pre) + self.tile_addr() + [ins(m0a)]
        for k in range(4):
            g.append(ins(f"buffer_load_dwordx4 v{DV+k}, s[{SKV}:{SKV+3}], s{sTile} offen offset:{1024*k} {nt} lds", tag=tag))
            G.append(g); g = []
        g = [ins(f"s_add_u32 s{sT0}, s{sTile}, 4096"), ins(m0b)]
        for k in range(4):
            g.append(ins(f"buffer_load_dwordx4 v{DV+k}, s[{SKV}:{SKV+3}], s{sT0} offen offset:{1024*k} {nt} lds", tag=tag))
            G.append(g); g = []
        return G
    def dma_kv_abs(self, tag, slot):
        o = (slot >> 1)*PHI + (slot & 1)*8192
        return self.dma_kv(tag, f"s_add_u32 m0, s{sKVl}, {o}", f"s_add_u32 m0, s{sKVl}, {o + 4096}")
    def kv_pieces(self, tile, a, b):
        G = self.dma_kv_abs(("kv", tile), tile % 4)
        out = G[a:b]
        if a not in (0, 4):
            slot = tile % 4
            o = (slot >> 1)*PHI + (slot & 1)*8192 + (4096 if a >= 4 else 0)
            out[0] = [ins(f"s_add_u32 m0, s{sKVl}, {o}")] + out[0]
        return out
    def dma_w(self, tag, base_reg, goff, m0txt, rot=None):
        G = []
        if rot is None: g = [ins(f"s_add_u32 s{sT1}, s{base_reg}, {goff}")]
        else:
            g = [ins(f"s_add_u32 s{sT1}, s{sWR}, {rot*262144}"), ins(f"s_and_b32 s{sT1}, s{sT1}, 0x3fffff"), ins(f"s_add_u32 s{sT1}, s{sT1}, s{base_reg}")]
            if goff: g.append(ins(f"s_add_u32 s{sT1}, s{sT1}, {goff}"))
        g.append(ins(m0txt))
        for n in range(4):
            g.append(ins(f"buffer_load_dwordx4 v{WD[n]}, s[{SW}:{SW+3}], s{sT1} offen offset:{1024*n} {self.o['w_mod']} lds", tag=tag))
            G.append(g); g = []
        return G
    def x_soff(self, base_reg, tt):
        if not self.o.get("qrot"): return [ins(f"s_add_u32 s{sT1}, s{base_reg}, {tt*128}")]
        return [ins(f"s_add_u32 s{sT1}, s{sXR}, {tt*128}"), ins(f"s_and_b32 s{sT1}, s{sT1}, 1023"), ins(f"s_add_u32 s{sT1}, s{sT1}, s{base_reg}")]
    def dma_x(self, tag, base_reg, tt, m0a, m0b):
        G = []
        m = self.o['x_mod']
        g = self.x_soff(base_reg, tt) + [ins(m0a)]
        for n in range(4):
            g.append(ins(f"buffer_load_dwordx4 v{XD[n]}, s[{SX}:{SX+3}], s{sT1} offen offset:{1024*n} {m} lds", tag=tag))
            G.append(g); g = []
        g = [ins(f"s_add_u32 s{sT1}, s{sT1}, {4*8192}"), ins(m0b)]
        for n in range(2):
            g.append(ins(f"buffer_load_dwordx4 v{XD[n]}, s[{SX}:{SX+3}], s{sT1} offen offset:{1024*n} {m} lds", tag=tag))
            G.append(g); g = []
        return G
    def w_tile(self, t, nxt=0):
        m0 = f"s_add_u32 m0, s{sWl}, {WSLOT[t % 3]}"
        if self.o.get("qrot"): return self.dma_w(("w", t), sWo, nxt*256, m0, rot=t)
        return self.dma_w(("w", t), sWo, nxt*256 + t*262144, m0)
    def x_tile(self, tt):
        sl = XB if tt % 2 == 0 else XA
        return self.dma_x(("x", tt), sXo, tt, f"s_add_u32 m0, s{sXl}, {sl}", f"s_add_u32 m0, s{sXl}, {sl + 4096}")
    def warmup(self, nxt):
        if not self.o["warm"]: return []
        G = []
        def ld(v, srd, soff, off, mod):
            i = ins(f"buffer_load_dwordx4 a[252:255], v{v}, s[{srd}:{srd+3}], s{soff} offen offset:{off} {mod}", tag=("warm",))
            i.kind = "dma"; i.wr = set(); i.rd.discard("m0")
            return i
        for k in range(2):
            g = [ins(f"s_add_u32 s{sT1}, s{sWarmW}, {nxt*256 + k*262144}")]
            for n in range(4):
                g.append(ld(WD[n], SW, sT1, 1024*n, self.o['w_mod'])); G.append(g); g = []
        if nxt == 0 or self.o.get("warmx1", True):
            for k in range(2):
                g = [ins(f"s_add_u32 s{sT1}, s{sWarmX}, {k*128}")]
                for n in range(4):
                    g.append(ld(XD[n], SX, sT1, 1024*n, self.o['x_mod'])); G.append(g); g = []
                g = [ins(f"s_add_u32 s{sT1}, s{sT1}, {4*8192}")]
                for n in range(2):
                    g.append(ld(XD[n], SX, sT1, 1024*n, self.o['x_mod'])); G.append(g); g = []
        return G
    def next_item_prefetch(self, nxt=1):
        return self.w_tile(0, nxt) + self.x_tile(0) + self.w_tile(1, nxt) + self.w_tile(2, nxt) + self.x_tile(1)
    def dma_wo(self):
        G = []
        for half in range(2):
            g = [ins(f"s_add_u32 s{sT1}, s{sWOo}, {half*4096}"), ins(f"s_add_u32 m0, s{sWoM}, {half*4096}")]
            for n in range(4):
                g.append(ins(f"buffer_load_dwordx4 v{VST}, s[{SWO}:{SWO+3}], s{sT1} offen offset:{1024*n} nt lds", tag=("wo",)))
                G.append(g); g = []
        return G
    def o_store(self, n, mod, prev, force=False):
        g = []
        if n % 4 == 0 or force: g.append(ins(f"s_add_u32 s{sT2}, s{sOo}, {((n & ~3)*1024 - (4*6144 if prev else 0)) & 0xffffffff}"))
        g.append(ins(f"buffer_store_dwordx4 {rng('a', OS(n), 4)}, v{VST}, s[{SO}:{SO+3}], s{sT2} offen offset:{(n % 4)*1024} {mod}", tag=("o",)))
        return g
    def rd_k(self, par, kt, ks):
        return ins(f"ds_read_b128 {rng('a', KF(par, kt, ks), 4)}, v{KA+ks} offset:{par*8192 + kt*4096}")
    def rd_v(self, par, dt, kt):
        return ins(f"ds_read_b64_tr_b16 {rng('a', VF(par, dt) + 2*kt, 2)}, v{VA+dt} offset:{par*8192 + kt*4096}")
    def rd_w(self, t, T, h2):
        ks, u = T >> 1, T & 1
        return ins(f"ds_read_b64_tr_b16 {rng('a', WF(T) + 2*h2, 2)}, v{WA+ks} offset:{(t % 3)*16384 + h2*2048 + 8*u}")
    def rd_x(self, t, qt):
        tt = t >> 1
        return ins(f"ds_read_b128 {rng('a', XF(t % 2, qt), 4)}, v{XAD + (t & 1)} offset:{(24576 if tt % 2 == 0 else 0) + qt*2048}")

    def prologue(self):
        p = self.p
        p("s_cmp_ge_u32 s2, 256")
        p("s_cbranch_scc1 K2_END")
        p("s_load_dwordx16 s[48:63], s[0:1], 0")
        p("s_load_dwordx8 s[64:71], s[0:1], 64")
        p("s_load_dwordx2 s[72:73], s[0:1], 96")
        p(f"v_lshrrev_b32 v1, 6, v0")
        p(f"v_and_b32 v0, 63, v0")
        p(f"v_readfirstlane_b32 s{sW}, v1")
        p("s_and_b32 s86, s2, 7")
        p("s_lshr_b32 s87, s2, 3")
        p(f"s_lshr_b32 s{sP}, s86, 2")
        p("s_and_b32 s88, s86, 1"); p("s_lshl_b32 s88, s88, 3"); p("s_and_b32 s82, s87, 7")
        p(f"s_add_u32 s{sB}, s88, s82")
        p("s_lshr_b32 s88, s86, 1"); p("s_and_b32 s88, s88, 1"); p("s_lshl_b32 s88, s88, 2"); p("s_lshr_b32 s83, s87, 3")
        p(f"s_add_u32 s{sHG}, s88, s83")
        p(f"s_and_b32 s{sHP}, s{sW}, 1")
        p(f"s_lshr_b32 s{sRH}, s{sW}, 1")
        p("s_waitcnt lgkmcnt(0)")
        p(f"s_cmp_eq_u32 s{sP}, 0")
        p(f"s_cselect_b32 s{SX}, s48, s58"); p(f"s_cselect_b32 s{SX+1}, s49, s59")
        p(f"s_cselect_b32 s{SW}, s54, s64"); p(f"s_cselect_b32 s{SW+1}, s55, s65")
        p(f"s_cselect_b32 s{SWO}, s56, s66"); p(f"s_cselect_b32 s{SWO+1}, s57, s67")
        p(f"s_cselect_b32 s90, s50, s60"); p(f"s_cselect_b32 s91, s51, s61")
        p(f"s_cselect_b32 s92, s52, s62"); p(f"s_cselect_b32 s93, s53, s63")
        p(f"s_cmp_eq_u32 s{sRH}, 0")
        p(f"s_cselect_b32 s{SKV}, s90, s92"); p(f"s_cselect_b32 s{SKV+1}, s91, s93")
        p(f"s_cselect_b32 s94, 64, 128"); p(f"s_cselect_b32 s95, 128, 0"); p("s_mov_b32 s96, 128"); p(f"s_cselect_b32 s96, 192, s96")
        p(f"s_cselect_b32 s97, 0, 1")
        p(f"s_cselect_b32 s{sKVl}, 0, 32768")
        for r, n in ((SX, X_BYTES), (SW, W_BYTES), (SWO, W_BYTES), (SKV, KV_BYTES)):
            p(f"s_mov_b32 s{r+2}, {n}"); p(f"s_mov_b32 s{r+3}, 0x00020000")
        p(f"s_mov_b32 s{SO}, s72"); p(f"s_mov_b32 s{SO+1}, s73"); p(f"s_mov_b32 s{SO+2}, 0"); p(f"s_mov_b32 s{SO+3}, 0x00020000")
        p(f"s_add_u32 s{SWT}, s72, {WOT_OFF}"); p(f"s_addc_u32 s{SWT+1}, s73, 0"); p(f"s_mov_b32 s{SWT+2}, {WOT_BYTES}"); p(f"s_mov_b32 s{SWT+3}, 0x00020000")
        p(f"s_lshl_b32 s88, s{sB}, 5"); p(f"s_lshl_b32 s89, s{sHG}, 2"); p("s_add_u32 s88, s88, s89"); p(f"s_lshl_b32 s89, s{sHP}, 1"); p("s_add_u32 s88, s88, s89")
        p(f"s_lshl_b32 s{sKVo}, s88, 17")
        p(f"s_lshl_b32 s89, s{sHP}, 14"); p(f"s_add_u32 s{sKVl}, s{sKVl}, s89")
        p(f"s_lshl_b32 s88, s{sW}, 16"); p(f"s_lshl_b32 s89, s{sHG}, 10"); p(f"s_add_u32 s{sWo}, s88, s89")
        p(f"s_lshl_b32 s{sWl}, s{sW}, 12")
        p(f"s_lshl_b32 s88, s82, 19"); p(f"s_add_u32 s{sWarmW}, s{sWo}, s88")
        p(f"s_mul_i32 s88, s{sB}, 196608"); p(f"s_mul_i32 s89, s{sW}, 49152"); p(f"s_add_u32 s{sXo}, s88, s89")
        p(f"s_mul_i32 s{sXl}, s{sW}, 6144")
        p(f"s_lshl_b32 s88, s83, 8"); p(f"s_add_u32 s{sWarmX}, s{sXo}, s88")
        if self.o.get("qrot"):
            assert not self.o["warm"]
            p("s_lshl_b32 s88, s83, 1"); p("s_add_u32 s88, s88, s82"); p("s_and_b32 s88, s88, 7")
            p(f"s_lshl_b32 s{sWR}, s88, 19"); p(f"s_lshl_b32 s{sXR}, s88, 7")
        p(f"s_mov_b32 s{sDrop}, {DROP}")
        p("s_mul_i32 s88, s2, 5"); p("s_lshr_b32 s89, s2, 4"); p("s_add_u32 s88, s88, s89"); p("s_and_b32 s88, s88, 15"); p(f"s_lshl_b32 s{sRot}, s88, 13")
        p(f"s_lshl_b32 s88, s{sP}, 4"); p(f"s_add_u32 s88, s88, s{sB}"); p("s_lshl_b32 s88, s88, 1"); p(f"s_add_u32 s88, s88, s{sRH}")
        p("s_lshl_b32 s88, s88, 7"); p(f"s_lshl_b32 s89, s{sHG}, 4"); p("s_add_u32 s88, s88, s89"); p(f"s_lshl_b32 s89, s{sHP}, 3"); p("s_add_u32 s88, s88, s89")
        p(f"s_mul_i32 s{sOo}, s88, 6144")
        p("s_and_b32 s88, s86, 3"); p("s_lshl_b32 s88, s88, 5"); p("s_add_u32 s88, s88, s87")
        p(f"s_lshl_b32 s89, s88, 15"); p(f"s_lshl_b32 s98, s{sW}, 13"); p(f"s_add_u32 s{sWOo}, s89, s98")
        p(f"s_lshl_b32 s89, s{sP}, 2"); p(f"s_add_u32 s89, s89, s{sW}"); p("s_lshl_b32 s89, s89, 7"); p("s_add_u32 s89, s89, s88"); p(f"s_lshl_b32 s{sWTo}, s89, 13")
        p(f"s_mov_b32 s{sC}, {f32(1.4426950408889634*128**-0.5)}")
        p(f"s_mov_b32 s{sItem}, 0")
        self.late_consts = True
        i_, g_, r_, c_ = "v14", "v8", "v9", "v10"
        p(f"v_and_b32 {i_}, 15, v0"); p(f"v_lshrrev_b32 {g_}, 4, v0"); p(f"v_lshrrev_b32 {r_}, 2, {i_}"); p(f"v_and_b32 {c_}, 3, {i_}")
        p(f"v_lshlrev_b32 v{VST}, 4, v0")
        p("v_lshrrev_b32 v11, 5, v0"); p("v_and_b32 v12, 15, v0"); p("v_lshlrev_b32 v13, 2, v11"); p("v_xor_b32 v12, v12, v13"); p("v_lshlrev_b32 v12, 4, v12")
        p("v_lshl_add_u32 v12, v11, 13, v12"); p("v_bfe_u32 v13, v0, 4, 1"); p(f"v_lshl_add_u32 v{WD[0]}, v13, 9, v12")
        p(f"v_xor_b32 v{WD[1]}, 128, v{WD[0]}"); p(f"v_add_u32 v{WD[2]}, {2*15360}, v{WD[0]}"); p(f"v_add_u32 v{WD[3]}, {3*15360}, v{WD[1]}"); p(f"v_add_u32 v{WD[1]}, 15360, v{WD[1]}")
        p("v_lshrrev_b32 v11, 3, v0"); p("v_and_b32 v12, 7, v0"); p(f"v_xor_b32 v12, v12, {g_}"); p("v_lshlrev_b32 v12, 4, v12")
        p(f"v_lshl_add_u32 v{XD[0]}, v11, 10, v12"); p(f"v_xor_b32 v{XD[1]}, 64, v{XD[0]}")
        p(f"v_add_u32 v{XD[2]}, {2*7168}, v{XD[0]}"); p(f"v_add_u32 v{XD[3]}, {3*7168}, v{XD[1]}"); p(f"v_add_u32 v{XD[1]}, 7168, v{XD[1]}")
        p(f"v_lshlrev_b32 v11, s97, {g_}"); p(f"v_xor_b32 v11, v11, {i_}"); p("v_lshlrev_b32 v11, 4, v11"); p(f"v_lshl_add_u32 v{DV}, {g_}, 8, v11")
        for k in range(1, 4): p(f"v_xor_b32 v{DV+k}, s{93+k}, v{DV}")
        self.lane = (i_, g_, r_, c_)
    def prologue2(self):
        p = self.p
        i_, g_, r_, c_ = self.lane
        p(f"s_lshl_b32 s88, s{sHP}, 14")
        p(f"v_xor_b32 v11, {g_}, {i_}"); p("v_lshlrev_b32 v11, 4, v11"); p(f"v_lshl_add_u32 v11, {i_}, 8, v11"); p(f"v_add_u32 v{KA}, s88, v11")
        for ks in range(1, 4): p(f"v_xor_b32 v{KA+ks}, {64*ks}, v{KA}")
        p(f"v_and_b32 v11, 1, {g_}"); p("v_lshlrev_b32 v11, 2, v11"); p(f"v_add_u32 v11, v11, {r_}"); p("v_lshlrev_b32 v11, 1, v11")
        p(f"v_lshrrev_b32 v12, 1, {c_}"); p("v_xor_b32 v11, v11, v12"); p("v_lshlrev_b32 v11, 4, v11")
        p(f"v_and_b32 v12, 1, {c_}"); p("v_lshl_add_u32 v11, v12, 3, v11")
        p(f"v_lshl_add_u32 v12, {g_}, 2, {r_}"); p("v_lshl_add_u32 v11, v12, 8, v11")
        p("s_add_u32 s89, s88, 32768"); p(f"v_add_u32 v{VA}, s89, v11")
        for dt in range(1, 8): p(f"v_xor_b32 v{VA+dt}, {32*dt}, v{VA}")
        p(f"s_lshl_b32 s88, s{sHP}, 4")
        p(f"v_add_u32 v11, s88, {c_}"); p(f"v_lshlrev_b32 v12, 2, {r_}"); p("v_xor_b32 v11, v11, v12"); p("v_lshlrev_b32 v11, 4, v11")
        p(f"v_lshl_add_u32 v12, {g_}, 3, {r_}"); p("v_lshl_add_u32 v11, v12, 9, v11"); p(f"v_add_u32 v{WA}, {WSLOT[0]}, v11")
        for ks in range(1, 4): p(f"v_xor_b32 v{WA+ks}, {64*ks}, v{WA}")
        p(f"s_mul_i32 s88, s{sRH}, {96*128}"); p(f"s_add_u32 s88, s88, {XA}")
        p(f"v_lshrrev_b32 v11, 1, {i_}"); p(f"v_xor_b32 v11, v11, {g_}"); p("v_lshlrev_b32 v11, 4, v11"); p(f"v_lshl_add_u32 v11, {i_}, 7, v11"); p(f"v_add_u32 v{XAD}, s88, v11")
        p(f"v_xor_b32 v{XAD+1}, 64, v{XAD}")
        p(f"s_mov_b32 s{sC2}, s{sC}"); p(f"s_mov_b32 s{sC2+1}, s{sC}")
        if self.o.get("fuse"):
            p(f"s_mov_b32 s{SFL}, s70"); p(f"s_mov_b32 s{SFL+1}, s71"); p(f"s_mov_b32 s{SFL+2}, 256"); p(f"s_mov_b32 s{SFL+3}, 0x00020000")
            sh = 16 if self.o.get("dbg") is not None else 0
            p(f"s_lshl_b32 s{sC1}, s{sP}, 2"); p(f"s_add_u32 s{sC1}, s{sC1}, {4*sh}")
            p(f"s_lshl_b32 s88, s{sP}, 4"); p(f"s_add_u32 s88, s88, s{sB}"); p(f"s_add_u32 s88, s88, {2+sh}"); p(f"s_lshl_b32 s{sC2o}, s88, 2")
        if self.o["msum"]:
            p("v_mov_b32 v11, 0x3f803f80")
            for r in range(4): p(f"v_accvgpr_write_b32 a{ONES+r}, v11")

    def stamp(self, fine=False):
        if not self.o["timing"]: return
        if fine and not self.o.get("fine"): return
        p = self.p
        p(f"s_memrealtime s[88:89]")
        p(f"s_memtime s[90:91]")
        p("s_waitcnt lgkmcnt(0)")
        p("s_mov_b32 m0, s99"); p("s_nop 1")
        p(f"v_writelane_b32 v5, s88, m0")
        p(f"v_writelane_b32 v1, s90, m0")
        p("s_add_u32 s99, s99, 1")
    def stamp_flush(self):
        if not self.o["timing"]: return
        p = self.p
        if self.o.get("dbg") is not None:
            p(f"s_cmp_eq_u32 s2, {self.o['dbg']}"); p("s_cselect_b32 s90, 64, 0"); p(f"s_cmp_eq_u32 s{sW}, 0"); p("s_cselect_b32 s90, s90, 0")
            p("s_mov_b32 s88, s70"); p("s_mov_b32 s89, s71"); p("s_mov_b32 s91, 0x00020000")
            src = "v1" if self.o.get("dbgcyc") else "v5"
            p("v_lshlrev_b32 v6, 2, v0")
            p(f"buffer_store_dword {src}, v6, s[88:91], 0 offen")
            if not self.o.get("fuse"):
                p("s_add_u32 s88, s88, 512"); p("s_addc_u32 s89, s89, 0"); p("s_cmp_lg_u32 s90, 0"); p("s_cselect_b32 s90, 52, 0")
                p(f"buffer_store_dword {src}, v6, s[88:91], 0 offen")
            return
        p(f"s_add_u32 s88, s72, {64<<20}"); p("s_addc_u32 s89, s73, 0"); p(f"s_mov_b32 s90, {1<<20}"); p("s_mov_b32 s91, 0x00020000")
        p(f"s_lshl_b32 s92, s2, 2"); p(f"s_add_u32 s92, s92, s{sW}"); p("s_lshl_b32 s92, s92, 9")
        p("v_lshlrev_b32 v6, 2, v0")
        p("buffer_store_dword v5, v6, s[88:91], s92 offen")
        p("buffer_store_dword v1, v6, s[88:91], s92 offen offset:256")

    def emit_groups(self, groups):
        for g in groups:
            for x in g: self.p.add(x)
    def keep(self, x):
        drop = self.o["drop"]; ph = self.phase
        if x.kind == "dma" and ph + "_dma" in drop: return False
        if x.kind == "ds_read" and ph + "_lds" in drop: return False
        if x.kind == "barrier" and ph + "_bar" in drop: return False
        if x.kind == "trans" and ph + "_exp" in drop: return False
        if x.kind == "valu" and x.txt.startswith("v_add_f32") and ph + "_add" in drop: return False
        if x.kind == "valu" and x.txt.startswith("v_cvt") and ph + "_cvt" in drop: return False
        if x.kind == "vstore" and ph + "_st" in drop: return False
        return True
    def run(self, mf, chains, pre=()):
        ch = [[([x for x in g if self.keep(x)], lo, hi) for g, lo, hi in c] for c in chains]
        ch = [[it for it in c if it[0]] for c in ch]
        if self.phase + "_mfma" in self.o["drop"]: mf = [ins("s_nop 0") for _ in mf]
        self.p.extend(gapfill(mf, ch, pre=[x for x in pre if self.keep(x)]))

    def spaced(self, G, lo, hi):
        n = len(G)
        out = []
        for k, g in enumerate(G):
            pos = lo + (k*(hi - lo + 1))//n
            out.append((g, pos, pos + 1))
        return out
    def qstep(self, t, stores=(), sig=False):
        p = self.p
        self.phase = "qp"
        mf = []
        for T in range(8):
            for qt in range(6):
                mf.append(mfma(acc(T, qt), "v", WF(T), "a", XF(t % 2, qt), "a", None if t == 0 else acc(T, qt)))
        need = []
        for qt in range(6): need += R("a", XF(t % 2, qt), 4)
        for T in range(6): need += R("a", WF(T), 4)
        pre = [wait_regs(need)]
        chains = []
        BG = 11
        slow = []
        if t < 15:
            bar = [wait_tag(("w", t+1))]
            if t % 2 == 1: bar.append(wait_tag(("x", (t+1) >> 1)))
            chains.append([(bar, BG-1, BG-1), ([ins("s_waitcnt lgkmcnt(0)"), ins("s_barrier")], BG, BG)])
            cw = []
            for T in range(8):
                lo = max(BG+1, 6*T + 5)
                cw += [([self.rd_w(t+1, T, 0)], lo, min(47, lo + 8)), ([self.rd_w(t+1, T, 1)], lo, min(47, lo + 9))]
            chains.append(cw)
            chains.append([([self.rd_x(t+1, qt)], BG+1, 40) for qt in range(6)])
            GW = self.w_tile(t+3) if t + 3 <= 15 else []
            early = []; GX = []
            if t % 2 == 1 and (t >> 1) + 2 <= 7: GX = self.x_tile((t >> 1) + 2)[:3]
            if t % 2 == 0 and t >= 2 and ((t-1) >> 1) + 2 <= 7:
                tt = ((t-1) >> 1) + 2; sl = XB if tt % 2 == 0 else XA
                early = self.x_tile(tt)[3:]
                early[0] = self.x_soff(sXo, tt) + [ins(f"s_add_u32 m0, s{sXl}, {sl}")] + early[0]
            if t == 0: early = self.w_tile(2) + self.x_tile(1)
            late = GW + GX
            plan = self.o.get("kvplan", {10: (0, 0, 4), 11: (0, 4, 8), 12: (1, 0, 4), 13: (1, 4, 8)})
            if t in plan or str(t) in plan:
                slow = self.kv_pieces(*(plan.get(t) or plan.get(str(t))))
            c = []
            if t == 0:
                c = self.spaced(early + late, 0, 47); early = []; late = []
            if early:
                span = BG - 1
                for k, g in enumerate(early): c.append((g, int(k*span/len(early)), int(k*span/len(early)) + 1))
            hi = 47 if not (slow or stores) else (39 if len(slow) <= 2 else 32)
            if late: c += self.spaced(late, BG+2, hi)
            if slow: c += self.spaced(slow, (41 if len(slow) <= 2 else 34) if late else BG+2, 47)
            if c: chains.append(c)
        else:
            chains.append([([ins("s_waitcnt lgkmcnt(0)"), ins("s_barrier")], BG, BG)])
            G = self.kv_pieces(2, 0, 4 if self.o.get("look", 3) == 3 else 8)
            chains.append(self.spaced(G, BG+1, 47))
        if sig:
            chains.append([(self.signal(f"v_mov_b32 v{VPOLL+2}, s{sC1}"), BG+1, BG+3)])
        if stores:
            lo = 26 if t == 12 else 0
            if self.o.get("stA"): lo = 41
            chains.append(self.spaced([self.o_store(n, self.o["store_mod"], True, force=bool(self.o.get("stA")) and n % 2 == 0) for n in stores], lo, 47))
        self.run(mf, chains, pre)

    def qproj_a(self):
        p = self.p
        p(f"s_lshl_b32 s{sTc}, s{sItem}, 17")
        p.wait_tag(("w", 0)); p.wait_tag(("x", 0))
        p("s_barrier")
        self.stamp()
        for T in range(8):
            p.add(self.rd_w(0, T, 0)); p.add(self.rd_w(0, T, 1))
        for qt in range(6): p.add(self.rd_x(0, qt))
        for t in range(12):
            self.qstep(t, [2*t, 2*t+1] if self.o.get("stA") else ())
            if t in (3, 7, 11): self.stamp(True)
    def qproj_b(self, last):
        p = self.p
        st = (lambda a, b: list(range(a, b))) if (last and not self.o.get("stA")) else (lambda a, b: [])
        self.qstep(12, st(0, 3)); self.qstep(13, st(3, 9)); self.qstep(14, st(9, 15))
        self.qstep(15, st(15, 18), sig=bool(last and self.o.get("fuse")))
        self.stamp()
        for kt in range(2):
            for ks in range(4): p.add(self.rd_k(0, kt, ks))
        tmp = S(0, 0)
        rest = self.kv_pieces(2, 4, 8) if self.o.get("look", 3) == 3 else []
        late = st(18, 24)
        for qt in range(6):
            for ks in range(4):
                n = qt*4 + ks
                a0, a1 = acc(2*ks, qt), acc(2*ks+1, qt)
                if self.o.get("pk", True):
                    for a in (a0, a0+2, a1, a1+2): p(f"v_pk_mul_f32 v[{a}:{a+1}], v[{a}:{a+1}], s[{sC2}:{sC2+1}]")
                else:
                    for r in range(4): p(f"v_mul_f32 v{a0+r}, s{sC}, v{a0+r}")
                    for r in range(4): p(f"v_mul_f32 v{a1+r}, s{sC}, v{a1+r}")
                t0 = tmp + (n % 4)*4
                p(f"v_cvt_pk_bf16_f32 v{t0}, v{a0}, v{a0+1}")
                p(f"v_cvt_pk_bf16_f32 v{t0+1}, v{a0+2}, v{a0+3}")
                p(f"v_cvt_pk_bf16_f32 v{t0+2}, v{a1}, v{a1+1}")
                p(f"v_cvt_pk_bf16_f32 v{t0+3}, v{a1+2}, v{a1+3}")
                if late and n % 2 == 0 and n < 18:
                    m = late.pop(0)
                    for x in self.o_store(m, self.o["store_mod"], True, force=True): p.add(x)
                for r in range(4): p(f"v_accvgpr_write_b32 a{Q(qt,ks)+r}, v{t0+r}")
                if rest and n % 4 == 3 and n >= 7:
                    for x in rest.pop(0): p.add(x)
            if qt < 4:
                for dt in (2*qt, 2*qt+1):
                    p.add(self.rd_v(0, dt, 0)); p.add(self.rd_v(0, dt, 1))
        assert not rest and not late

    def period(self, n, dma=(), pre=(), early=(), extra=()):
        p = self.p
        self.phase = "at"
        msum = self.o["msum"]
        j, pp = divmod(n, 6)
        qk = []; pv = []
        if n < 96:
            sb = n % 2
            for kt in range(2):
                for ks in range(4):
                    qk.append(mfma(S(sb, kt), "v", KF(j % 2, kt, ks), "a", Q(pp, ks), "a", None if ks == 0 else S(sb, kt)))
        if n >= 2:
            jj, qt = divmod(n-2, 6)
            pb = (n-2) % 2
            for dt in range(8):
                pv.append(mfma(acc(dt, qt), "v", VF(jj % 2, dt), "a", P(pb), "v", None if jj == 0 else acc(dt, qt)))
        mf = []
        for k in range(8):
            if qk: mf.append(qk[k])
            if pv: mf.append(pv[k])
        if n >= 2 and msum:
            mf.append(mfma(LA(qt), "a", ONES, "a", P(pb), "v", None if jj == 0 else LA(qt)))
        nm = len(mf)
        sc = nm/17.0 if msum else nm/16.0
        def G(x): return min(nm-1, int(x*sc))
        chains = []
        if 1 <= n <= 96:
            jj2, qt2 = divmod(n-1, 6)
            sb = (n-1) % 2; pb2 = (n-1) % 2
            e = [S(sb, 0)+r for r in range(4)] + [S(sb, 1)+r for r in range(4)]
            chains.append([([ins(f"v_exp_f32 v{e[k]}, v{e[k]}")], G(2*k), G(2*k)) for k in range(8)])
            cv = []
            for k in range(8):
                if not msum: cv.append(([ins(f"v_add_f32 v{LS+qt2}, v{LS+qt2}, v{e[k]}")], G(2*k+1), G(2*k+1)))
                if k % 2 == 1:
                    cv.append(([ins(f"v_cvt_pk_bf16_f32 v{P(pb2)+k//2}, v{e[k-1]}, v{e[k]}")], G(2*k+1), G(2*k+1)))
            chains.append(cv)
        if n >= 2:
            jb, q = divmod(n-2, 6)
            if jb + 1 <= 15:
                par = (jb+1) % 2
                rds = []
                if q in (0, 1): rds = [self.rd_k(par, q, ks) for ks in range(4)]
                else:
                    for dt in range((q-2)*2, (q-2)*2+2): rds += [self.rd_v(par, dt, 0), self.rd_v(par, dt, 1)]
                gp = [1, 5, 9, 13] if q != 5 else [1, 5, 9, 10]
                chains.append([([x], G(gp[k]), G(gp[k])) for k, x in enumerate(rds)])
        if dma:
            nd = sum(1 for x in dma if x.kind == "dma")
            slots = {0: [], 1: [16], 2: [11, 16], 4: [3, 7, 11, 16], 8: [2, 4, 6, 8, 10, 12, 14, 16]}.get(nd) or [int(3 + (16-3)*k/(nd-1)) for k in range(nd)]
            ch = []; seen = 0
            for x in dma:
                if x.kind == "dma":
                    g = G(slots[seen]); seen += 1
                    grp = [x] if x.meta.get("credit") is None else [ins(f"s_waitcnt vmcnt({x.meta['credit']})"), x]
                    ch.append((grp, g, g))
                else:
                    ch.append(([x], 0, nm-1))
            for k in range(len(ch)-2, -1, -1):
                if ch[k][0][-1].kind != "dma": ch[k] = (ch[k][0], 0, max(0, ch[k+1][2] - (1 if ch[k+1][0][-1].kind == "dma" else 0)))
            chains.append(ch)
        if early: chains.append([([x], 0, nm-1) for x in early])
        if extra: chains.append([(g, (k*nm)//len(extra), nm-1) for k, g in enumerate(extra)])
        self.run(mf, chains, pre)

    def body(self, j, dmaG, tog=(), nper=6, extra=(), extra2=()):
        bar = []
        if j + 1 <= 15: bar.append(wait_tag(("kv", j+1)))
        if extra: bar.append(wait_tag(("wo",)))
        bar += [ins("s_waitcnt lgkmcnt(0)"), ins("s_barrier")]
        if self.o.get("baracct"):
            b0 = [ins("s_memtime s[92:93]"), ins("s_waitcnt lgkmcnt(0)")]
            b1 = [ins("s_memtime s[94:95]"), ins("s_waitcnt lgkmcnt(0)")]
            b2 = [ins("s_memtime s[96:97]"), ins("s_waitcnt lgkmcnt(0)"), ins("s_sub_u32 s98, s94, s92"), ins("s_add_u32 s100, s100, s98"),
                  ins("s_sub_u32 s98, s96, s94"), ins("s_add_u32 s101, s101, s98")]
            bar = b0 + bar[:1] + b1 + bar[1:] + b2
        tk = [x for x in tog if any(f"v{KA+z}," in x.txt for z in range(4))]
        tv = [x for x in tog if x not in tk]
        flat = [x for g in dmaG for x in g]
        cr = self.o.get("credit")
        if cr is not None:
            for x in flat:
                if x.kind == "dma": x.meta["credit"] = cr
        nd = sum(1 for x in flat if x.kind == "dma")
        if nd == 8: cnt = self.o.get("dmacnt", [1, 1, 2, 1, 1, 2])
        else: cnt = [nd//6 + (1 if q < nd % 6 else 0) for q in range(6)]
        per = [[] for _ in range(6)]
        q = 0; seen = 0
        for x in flat:
            while q < 5 and seen >= cnt[q]: q += 1; seen = 0
            per[q].append(x)
            if x.kind == "dma": seen += 1
        for q in range(6):
            e = tv[:4] if q == 0 else (tv[4:] if q == 1 else [])
            ex = []
            if extra or extra2:
                xs = list(extra) + list(extra2)
                n = len(xs); ex = xs[q*n//6:(q+1)*n//6]
            self.period(6*j + 2 + q, dma=per[q], pre=(bar + tk) if q == 0 else (), early=e, extra=ex)

    def tog(self):
        return [ins(f"v_xor_b32 v{KA+x}, {PHI}, v{KA+x}") for x in range(4)] + [ins(f"v_xor_b32 v{VA+x}, {PHI}, v{VA+x}") for x in range(8)]
    def attention_shared(self):
        p = self.p
        look = self.o.get("look", 3)
        if look == 4:
            t3 = self.kv_pieces(3, 0, 8)
            self.period(0, dma=[x for g in t3[:4] for x in g]); self.period(1, dma=[x for g in t3[4:] for x in g])
            self.body(0, self.dma_kv_abs(("kv", 4), 0))
        else:
            self.period(0); self.period(1)
            self.body(0, self.dma_kv_abs(("kv", 3), 3))
        p(f"s_mov_b32 s{sM}, s{sKVl}")
        p(f"s_mov_b32 s{sCnt}, 5")
        for k in range(5):
            j = 1 + 2*k
            p.raw(f"@@LB at {k}")
            self.stamp(True)
            if look == 4:
                g1 = self.dma_kv(("kv", j+4), f"s_add_u32 m0, s{sM}, 8192", f"s_add_u32 m0, s{sM}, 12288")
                self.body(j, g1, tog=self.tog())
                g2 = self.dma_kv(("kv", j+5), f"s_add_u32 m0, s{sM}, 0", f"s_add_u32 m0, s{sM}, 4096")
                self.body(j+1, [[ins(f"s_xor_b32 s{sM}, s{sM}, {PHI}")]] + g2)
            else:
                g1 = self.dma_kv(("kv", j+3), f"s_add_u32 m0, s{sM}, 0", f"s_add_u32 m0, s{sM}, 4096")
                self.body(j, g1, tog=self.tog())
                g2 = self.dma_kv(("kv", j+4), f"s_add_u32 m0, s{sM}, 8192", f"s_add_u32 m0, s{sM}, 12288")
                g2[-1] = g2[-1] + [ins(f"s_xor_b32 s{sM}, s{sM}, {PHI}")]
                self.body(j+1, g2)
            p(f"s_sub_u32 s{sCnt}, s{sCnt}, 1"); p(f"s_cmp_lg_u32 s{sCnt}, 0"); p("s_cbranch_scc1 L_at")
            p.raw(f"@@LE at {k}")
        if look == 4:
            self.body(11, self.dma_kv_abs(("kv", 15), 3), tog=self.tog())
            self.body(12, [])
        else:
            self.body(11, self.dma_kv_abs(("kv", 14), 2), tog=self.tog())
            self.body(12, self.dma_kv_abs(("kv", 15), 3))
    def attention_tail(self, last):
        fuse = self.o.get("fuse")
        if not last:
            self.body(13, self.dma_wo_last() if fuse else [], tog=self.tog())
            self.body(14, [])
            self.body(15, self.w_tile(0, 1) + self.x_tile(0) + self.w_tile(1, 1), tog=self.tog(), extra=self.wo_prep_groups() if fuse else ())
        elif not fuse:
            self.body(13, self.dma_wo_last(), tog=self.tog())
            self.body(14, [])
            self.body(15, [], tog=self.tog(), extra=self.wo_prep_groups())
        else:
            self.body(13, [], tog=self.tog(), extra2=[[x] for x in self.k3_setup()])
            self.body(14, [], extra2=[self.poll_issue(f"v_mov_b32 VDST, s{sC1}")])
            self.body(15, [], tog=self.tog())
            self.poll_check(128)
    def wo_prep_groups(self):
        setup = [ins("v_and_b32 v33, 15, v0"), ins("v_lshrrev_b32 v34, 4, v0"), ins("v_lshrrev_b32 v35, 2, v33"), ins("v_and_b32 v33, 3, v33"),
                 ins("v_lshl_add_u32 v32, v34, 2, v35"), ins("v_lshlrev_b32 v32, 10, v32"), ins("v_lshl_add_u32 v32, v33, 4, v32"),
                 ins(f"s_lshl_b32 s88, s{sW}, 8"), ins("v_add_u32 v32, s88, v32")]
        G = [[x] for x in setup]
        for nt in range(8):
            u, par = nt >> 1, nt & 1
            d = KF(0, 0, 0) + nt*4
            G.append([ins(f"ds_read_b64_tr_b16 a[{d}:{d+1}], v32 offset:{64*u + 8*par}")])
            G.append([ins(f"ds_read_b64_tr_b16 a[{d+2}:{d+3}], v32 offset:{16384 + 64*u + 8*par}")])
        for nt in range(8):
            d = KF(0, 0, 0) + nt*4
            g = []
            if nt % 4 == 0: g.append(ins(f"s_add_u32 s{sT2}, s{sWTo}, {nt*1024}"))
            g.append(ins(f"buffer_store_dwordx4 a[{d}:{d+3}], v{VST}, s[{SWT}:{SWT+3}], s{sT2} offen offset:{(nt % 4)*1024} {self.o['last_store_mod']}"))
            G.append(g)
        return G
    def dma_wo_last(self):
        G = []
        for half in range(2):
            g = [ins(f"s_add_u32 s{sT1}, s{sWOo}, {half*4096}"), ins(f"s_lshl_b32 s{sWoM}, s{sW}, 13"), ins(f"s_add_u32 m0, s{sWoM}, {half*4096}")]
            for n in range(4):
                g.append(ins(f"buffer_load_dwordx4 v{VST}, s[{SWO}:{SWO+3}], s{sT1} offen offset:{1024*n} nt lds", tag=("wo",)))
                G.append(g); g = []
        return G

    FLAG = 32768
    def softmax_check(self, item):
        p = self.p
        t = S(0, 0)
        for qt in range(6): p(f"v_accvgpr_read_b32 v{t+qt}, a{LA(qt)}")
        p(f"v_max3_f32 v{t+6}, v{t}, v{t+1}, v{t+2}"); p(f"v_min3_f32 v{t+7}, v{t}, v{t+1}, v{t+2}")
        p(f"v_max3_f32 v{t+6}, v{t+6}, v{t+3}, v{t+4}"); p(f"v_min3_f32 v{t+7}, v{t+7}, v{t+3}, v{t+4}")
        p(f"v_max_f32 v{t+6}, v{t+6}, v{t+5}"); p(f"v_min_f32 v{t+7}, v{t+7}, v{t+5}")
        p(f"v_cmp_nge_f32 vcc, {f32(2.0**24)}, v{t+6}")
        p("s_mov_b64 s[88:89], vcc")
        p(f"v_cmp_nle_f32 vcc, {f32(2.0**-24)}, v{t+7}")
        p("s_or_b64 s[88:89], s[88:89], vcc")
        p("s_cmp_lg_u64 s[88:89], 0"); p("s_cselect_b32 s88, 1, 0")
        p(f"v_mov_b32 v{t}, s88"); p(f"s_lshl_b32 s89, s{sW}, 2"); p(f"v_mov_b32 v{t+1}, s89")
        p(f"ds_write_b32 v{t+1}, v{t} offset:{self.FLAG}")
        p("s_waitcnt lgkmcnt(0)"); p("s_barrier")
        p(f"v_mov_b32 v{t+1}, 0")
        p(f"ds_read_b128 v[{t+4}:{t+7}], v{t+1} offset:{self.FLAG}")
        p(f"v_or_b32 v{t+4}, v{t+4}, v{t+5}"); p(f"v_or_b32 v{t+6}, v{t+6}, v{t+7}"); p(f"v_or_b32 v{t+4}, v{t+4}, v{t+6}")
        p(f"v_readfirstlane_b32 s88, v{t+4}")
        p("s_cmp_lg_u32 s88, 0")
        p("s_cbranch_scc1 L_FB")
        p.raw(f"L_OE{item}:")

    def fallback(self):
        q = K2(self.o); q.phase = "fb"; p = q.p
        M = LS
        def load_tile():
            p(f"s_mov_b32 s{sT2}, s{sTc}")
            q.emit_groups(q.dma_kv_abs(("fb",), 0))
            p("s_waitcnt vmcnt(0)"); p("s_barrier")
        def qk(qt):
            for kt in range(2):
                for ks in range(4):
                    p.add(mfma(S(0, kt), "v", KF(0, kt, ks), "a", Q(qt, ks), "a", None if ks == 0 else S(0, kt)))
        p.raw("L_FB:")
        p("s_waitcnt vmcnt(0) lgkmcnt(0)"); p("s_barrier")
        p(f"s_mov_b32 s{SKV+2}, {KV_BYTES}")
        for qt in range(6): p(f"v_mov_b32 v{M+qt}, 0xff800000")
        p(f"s_lshl_b32 s{sTc}, s{sItem}, 17"); p(f"s_mov_b32 s{sCnt}, 16")
        p.raw("L_FB1:")
        load_tile()
        for kt in range(2):
            for ks in range(4): p.add(q.rd_k(0, kt, ks))
        for qt in range(6):
            qk(qt)
            e = [S(0, 0)+r for r in range(4)] + [S(0, 1)+r for r in range(4)]
            for k in range(0, 8, 2): p(f"v_max3_f32 v{M+qt}, v{e[k]}, v{e[k+1]}, v{M+qt}")
        p("s_waitcnt lgkmcnt(0)"); p("s_barrier")
        p(f"s_sub_u32 s{sCnt}, s{sCnt}, 1"); p(f"s_cmp_lg_u32 s{sCnt}, 0"); p("s_cbranch_scc1 L_FB1")
        t = S(1, 0)
        for qt in range(6):
            m = M + qt
            p(f"v_mov_b32 v{t}, v{m}"); p(f"v_permlane32_swap_b32 v{t}, v{m}"); p(f"v_max_f32 v{m}, v{m}, v{t}")
            p(f"v_mov_b32 v{t}, v{m}"); p(f"v_permlane16_swap_b32 v{t}, v{m}"); p(f"v_max_f32 v{m}, v{m}, v{t}")
        for r in range(192): p(f"v_mov_b32 v{ACC+r}, 0")
        p(f"v_mov_b32 v{t}, 0")
        for r in range(24): p(f"v_accvgpr_write_b32 a{LA(0)+r}, v{t}")
        p(f"s_lshl_b32 s{sTc}, s{sItem}, 17"); p(f"s_mov_b32 s{sCnt}, 16")
        p("s_nop 7")
        p.raw("L_FB2:")
        load_tile()
        for kt in range(2):
            for ks in range(4): p.add(q.rd_k(0, kt, ks))
        for dt in range(8):
            p.add(q.rd_v(0, dt, 0)); p.add(q.rd_v(0, dt, 1))
        for qt in range(6):
            qk(qt)
            e = [S(0, 0)+r for r in range(4)] + [S(0, 1)+r for r in range(4)]
            for k in range(8): p(f"v_sub_f32 v{e[k]}, v{e[k]}, v{M+qt}")
            for k in range(8): p(f"v_exp_f32 v{e[k]}, v{e[k]}")
            for k in range(0, 8, 2): p(f"v_cvt_pk_bf16_f32 v{P(0)+k//2}, v{e[k]}, v{e[k+1]}")
            for dt in range(8): p.add(mfma(acc(dt, qt), "v", VF(0, dt), "a", P(0), "v", acc(dt, qt)))
            p.add(mfma(LA(qt), "a", ONES, "a", P(0), "v", LA(qt)))
        p("s_waitcnt lgkmcnt(0)"); p("s_nop 7"); p("s_nop 7"); p("s_barrier")
        p(f"s_sub_u32 s{sCnt}, s{sCnt}, 1"); p(f"s_cmp_lg_u32 s{sCnt}, 0"); p("s_cbranch_scc1 L_FB2")
        p("s_nop 7"); p("s_nop 7")
        p(f"s_cmp_eq_u32 s{sItem}, 0"); p("s_cbranch_scc1 L_OE0")
        if self.o.get("fuse"):
            for x in self.k3_setup(): p.add(x)
        p("s_branch L_OE1")
        L, st = finalize(p.L)
        return L

    def signal(self, offreg_txt, uid=None):
        uid = uid or self.uid()
        L = [ins(f"s_cmp_lg_u32 s{sW}, 0"), ins(f"s_cbranch_scc1 L_sig{uid}"),
             ins(f"v_mov_b32 v{VPOLL+1}, 1"), ins(offreg_txt), ins("s_mov_b64 exec, 1"),
             ins(f"buffer_atomic_add v{VPOLL+1}, v{VPOLL+2}, s[{SFL}:{SFL+3}], 0 offen sc1"),
             ins("s_mov_b64 exec, -1")]
        for x in L: x.meta["alt"] = True
        L.append(I(f"L_sig{uid}:", "label"))
        return L
    def uid(self):
        self._uid = getattr(self, "_uid", 0) + 1
        return self._uid
    def poll_issue(self, off_txt):
        return [ins(off_txt.replace("VDST", f"v{VPOLL+3}")), ins(f"buffer_load_dword v{VPOLL}, v{VPOLL+3}, s[{SFL}:{SFL+3}], 0 offen sc1")]
    def poll_check(self, target):
        p = self.p
        uid = self.uid()
        p(f"v_readfirstlane_b32 s88, v{VPOLL}")
        p(f"s_cmp_ge_u32 s88, {target}"); p(f"s_cbranch_scc1 L_ok{uid}")
        L = [f"s_mov_b32 s89, 0x40000", f"L_spin{uid}:", "s_sleep 2",
             f"buffer_load_dword v{VPOLL}, v{VPOLL+3}, s[{SFL}:{SFL+3}], 0 offen sc1", "s_waitcnt vmcnt(0)",
             f"v_readfirstlane_b32 s88, v{VPOLL}", "s_nop 3", "s_sub_u32 s89, s89, 1", "s_cmp_eq_u32 s89, 0", f"s_cbranch_scc1 L_ok{uid}",
             f"s_cmp_lt_u32 s88, {target}", f"s_cbranch_scc1 L_spin{uid}"]
        for t in L: p.add(I(t, "label", verbatim=True))
        p.raw(f"L_ok{uid}:")

    def k3_setup(self):
        L = []
        A = lambda t: L.append(ins(t))
        A(f"s_and_b32 s88, s{sHG}, 3"); A(f"s_lshr_b32 s89, s{sHG}, 2")
        A(f"s_lshl_b32 s90, s{sP}, 2"); A("s_add_u32 s90, s90, s88"); A("s_lshl_b32 s90, s90, 7"); A(f"s_lshl_b32 s91, s{sW}, 5"); A("s_add_u32 s90, s90, s91"); A("s_lshl_b32 s90, s90, 13")
        for pr in range(4):
            A(f"s_add_u32 s91, s{sW}, {pr}"); A("s_and_b32 s91, s91, 3"); A("s_lshl_b32 s91, s91, 11"); A(f"s_add_u32 s{kA+pr}, s90, s91")
        A(f"s_lshl_b32 s90, s{sP}, 4"); A(f"s_add_u32 s90, s90, s{sB}"); A("s_lshl_b32 s90, s90, 1"); A("s_add_u32 s90, s90, s89"); A("s_lshl_b32 s90, s90, 7")
        A(f"s_lshl_b32 s91, s{sW}, 5"); A("s_add_u32 s90, s90, s91"); A(f"s_mul_i32 s{kBo}, s90, 6144")
        A(f"s_mul_i32 s90, s{sB}, 192"); A("s_mul_i32 s91, s89, 96"); A("s_add_u32 s90, s90, s91"); A("s_lshl_b32 s90, s90, 11")
        A(f"s_lshl_b32 s91, s{sP}, 10"); A("s_add_u32 s90, s90, s91"); A("s_lshl_b32 s91, s88, 8"); A("s_add_u32 s90, s90, s91")
        A(f"s_lshl_b32 s91, s{sW}, 6"); A(f"s_add_u32 s{kOut}, s90, s91")
        A(f"s_mov_b32 s{SX}, s68"); A(f"s_mov_b32 s{SX+1}, s69"); A(f"s_mov_b32 s{SX+2}, {OUT_BYTES}"); A(f"s_mov_b32 s{SX+3}, 0x00020000")
        A(f"v_add_u32 v{VB4}, 4096, v{VST}")
        return L
    def k3_loads(self, b, o):
        m = self.o.get("k3_ld", "sc1")
        G = []
        G.append([ins(f"s_add_u32 s{kT0}, s{kBo}, {o*6144}"),
                  ins(f"buffer_load_dwordx4 {rng('a', BF(b, 0), 4)}, v{VST}, s[{SO}:{SO+3}], s{kT0} offen {m}")])
        for qt in range(1, 4):
            G.append([ins(f"buffer_load_dwordx4 {rng('a', BF(b, qt), 4)}, v{VST}, s[{SO}:{SO+3}], s{kT0} offen offset:{1024*qt} {m}")])
        G.append([ins(f"buffer_load_dwordx4 {rng('a', BF(b, 4), 4)}, v{VB4}, s[{SO}:{SO+3}], s{kT0} offen {m}")])
        G.append([ins(f"buffer_load_dwordx4 {rng('a', BF(b, 5), 4)}, v{VB4}, s[{SO}:{SO+3}], s{kT0} offen offset:1024 {m}")])
        for pr in range(4):
            t = kT1 if pr % 2 == 0 else kT0
            G.append([ins(f"s_add_u32 s{t}, s{kA+pr}, {o*8192}"),
                      ins(f"buffer_load_dwordx4 {rng('a', AF(b, 2*pr), 4)}, v{VST}, s[{SWT}:{SWT+3}], s{t} offen {m}")])
            G.append([ins(f"buffer_load_dwordx4 {rng('a', AF(b, 2*pr+1), 4)}, v{VST}, s[{SWT}:{SWT+3}], s{t} offen offset:1024 {m}")])
        return G
    def k3_adv(self, steps):
        return [ins(f"s_add_u32 s{kA+pr}, s{kA+pr}, {(steps*8192) & 0xffffffff}") for pr in range(4)] + [ins(f"s_add_u32 s{kBo}, s{kBo}, {(steps*6144) & 0xffffffff}")]
    def k3_step(self, t, G, extra=()):
        p = self.p
        b = t % 4
        n = 0
        extra = list(extra)
        for nu in range(8):
            for qt in range(6):
                p.add(mfma(oacc(nu, qt), "v", AF(b, nu), "a", BF(b, qt), "a", None if t == 0 else oacc(nu, qt)))
                if n % 3 == 1 and n//3 < len(G):
                    for x in G[n//3]: p.add(x)
                if n == 44:
                    for x in extra: p.add(x)
                n += 1
    def k3_main(self):
        p = self.p
        self.k3_step(0, self.k3_loads(3, 3), extra=self.k3_adv(8))
        p(f"s_mov_b32 s{kCnt}, 3")
        for k in range(3):
            p.raw(f"@@LB k3a {k}")
            for i in range(4):
                t = 1 + 4*k + i
                ex = self.k3_adv(8) if i == 3 else []
                if i == 0: ex = self.poll_issue(f"s_mov_b32 s88, 0") if False else []
                self.k3_step(t, self.k3_loads((t+3) % 4, i), extra=ex)
                if i == 1:
                    uid = "k3s"
                    p(f"s_cmp_lg_u32 s{kCnt}, 3"); p(f"s_cbranch_scc1 L_{uid}")
                    p.wait_tag(("o",)); p("s_barrier")
                    for x in self.signal(f"v_mov_b32 v{VPOLL+2}, s{sC2o}", uid="g2"): p.add(x)
                    p.raw(f"L_{uid}:")
                if i == 2:
                    for x in self.poll_issue(f"v_mov_b32 VDST, s{sC2o}"): p.add(x)
            p(f"s_sub_u32 s{kCnt}, s{kCnt}, 1"); p(f"s_cmp_lg_u32 s{kCnt}, 0"); p("s_cbranch_scc1 L_k3a")
            p.raw(f"@@LE k3a {k}")
        self.stamp()
        for x in self.k3_adv(4 - 32): p.add(x)
        self.poll_check(8)
        for i in range(4):
            t = 13 + i
            self.k3_step(t, self.k3_loads((t+3) % 4, i), extra=self.k3_adv(8) if i == 3 else [])
        p(f"s_mov_b32 s{kCnt}, 3")
        for k in range(3):
            p.raw(f"@@LB k3b {k}")
            for i in range(4):
                t = 17 + 4*k + i
                self.k3_step(t, self.k3_loads((t+3) % 4, i), extra=self.k3_adv(8) if i == 3 else [])
            p(f"s_sub_u32 s{kCnt}, s{kCnt}, 1"); p(f"s_cmp_lg_u32 s{kCnt}, 0"); p("s_cbranch_scc1 L_k3b")
            p.raw(f"@@LE k3b {k}")
        for t in (29, 30, 31): self.k3_step(t, [])
        self.stamp()
        for pr, v in ((1, 7), (2, 2), (3, 3)):
            p(f"s_add_u32 s88, s{sW}, {pr}"); p("s_and_b32 s88, s88, 3"); p("s_mul_i32 s88, s88, 36864"); p(f"s_add_u32 s88, s88, {(pr-1)*12288}")
            p(f"v_add_u32 v{v}, s88, v{VST}")
        p(f"s_mul_i32 s88, s{sW}, 36864"); p(f"v_add_u32 v8, s88, v{VST}")
        for pr, v in ((1, 7), (2, 2), (3, 3)):
            for par in range(2):
                for qt in range(6):
                    a = oacc(2*pr + par, qt)
                    p(f"ds_write_b128 v{v}, v[{a}:{a+3}] offset:{(par*6 + qt)*1024}")
        p("s_waitcnt lgkmcnt(0)")
        p("s_barrier")
        for sl in range(3):
            for par in range(2):
                for qt in range(6):
                    a = oacc(2*(sl+1) + par, qt)
                    p(f"ds_read_b128 v[{a}:{a+3}], v8 offset:{sl*12288 + (par*6 + qt)*1024}")
        p("v_and_b32 v12, 15, v0"); p("v_lshrrev_b32 v13, 4, v0"); p("v_lshlrev_b32 v12, 11, v12"); p("v_lshl_add_u32 v9, v13, 4, v12")
        for qt in range(6):
            for par in range(2):
                a = oacc(par, qt)
                for sl in range(3):
                    s_ = oacc(2*(sl+1) + par, qt)
                    for r in range(4): p(f"v_add_f32 v{a+r}, v{a+r}, v{s_+r}")
            a0, a1 = oacc(0, qt), oacc(1, qt)
            t0 = 16 + (qt % 4)*4
            p(f"v_cvt_pk_bf16_f32 v{t0}, v{a0}, v{a0+1}"); p(f"v_cvt_pk_bf16_f32 v{t0+1}, v{a0+2}, v{a0+3}")
            p(f"v_cvt_pk_bf16_f32 v{t0+2}, v{a1}, v{a1+1}"); p(f"v_cvt_pk_bf16_f32 v{t0+3}, v{a1+2}, v{a1+3}")
            p(f"s_add_u32 s{kT0}, s{kOut}, {qt*16*2048}")
            p(f"buffer_store_dwordx4 v[{t0}:{t0+3}], v9, s[{SX}:{SX+3}], s{kT0} offen")

    def o_epilogue(self, last):
        p = self.p
        pre = []
        if last and self.o.get("fuse"): pre = self.k3_loads(0, 0) + self.k3_loads(1, 1) + self.k3_loads(2, 2)
        for qt in range(6): p(f"v_accvgpr_read_b32 v{LS+qt}, a{LA(qt)}")
        for qt in range(6): p(f"v_rcp_f32 v{LS+qt}, v{LS+qt}")
        for qt in range(6):
            for ks in range(4):
                a0, a1 = acc(2*ks, qt), acc(2*ks+1, qt)
                l = LS + qt
                if self.o.get("pk", True):
                    lp = l & ~1; sel = "op_sel_hi:[1,0]" if l % 2 == 0 else "op_sel:[0,1] op_sel_hi:[1,1]"
                    for a in (a0, a0+2, a1, a1+2): p(f"v_pk_mul_f32 v[{a}:{a+1}], v[{a}:{a+1}], v[{lp}:{lp+1}] {sel}")
                else:
                    for r in range(4): p(f"v_mul_f32 v{a0+r}, v{l}, v{a0+r}")
                    for r in range(4): p(f"v_mul_f32 v{a1+r}, v{l}, v{a1+r}")
                t0 = SB + ((ks + 4*qt) % 6)*4
                p(f"v_cvt_pk_bf16_f32 v{t0}, v{a0}, v{a0+1}")
                p(f"v_cvt_pk_bf16_f32 v{t0+1}, v{a0+2}, v{a0+3}")
                p(f"v_cvt_pk_bf16_f32 v{t0+2}, v{a1}, v{a1+1}")
                p(f"v_cvt_pk_bf16_f32 v{t0+3}, v{a1+2}, v{a1+3}")
                n = ks*6 + qt
                if last:
                    p(f"s_add_u32 s{sT0}, s{sOo}, {n*1024}")
                    for _ in range(2):
                        if pre:
                            for x in pre.pop(0): p.add(x)
                    p(f"buffer_store_dwordx4 v[{t0}:{t0+3}], v{VST}, s[{SO}:{SO+3}], s{sT0} offen {self.o['last_store_mod']}", tag=("o",))
                else:
                    for r in range(4): p(f"v_accvgpr_write_b32 a{OS(n)+r}, v{t0+r}")

    def final(self):
        p = self.p
        p.wait_tag(("wo",))
        p("s_barrier")
        p("v_and_b32 v8, 15, v0"); p("v_lshrrev_b32 v2, 4, v0"); p("v_lshrrev_b32 v3, 2, v8"); p("v_and_b32 v7, 3, v8")
        p("v_lshl_add_u32 v6, v2, 2, v3"); p("v_lshlrev_b32 v6, 10, v6"); p("v_lshl_add_u32 v6, v7, 4, v6")
        p(f"s_lshl_b32 s88, s{sW}, 8"); p("v_add_u32 v6, s88, v6")
        for nt in range(8):
            u, par = nt >> 1, nt & 1
            d = 32 + nt*4
            p(f"ds_read_b64_tr_b16 v[{d}:{d+1}], v6 offset:{64*u + 8*par}")
            p(f"ds_read_b64_tr_b16 v[{d+2}:{d+3}], v6 offset:{16384 + 64*u + 8*par}")
        for nt in range(8):
            d = 32 + nt*4
            if nt % 4 == 0: p(f"s_add_u32 s{sT1}, s{sWTo}, {nt*1024}")
            p(f"buffer_store_dwordx4 v[{d}:{d+3}], v{VST}, s[{SWT}:{SWT+3}], s{sT1} offen offset:{(nt % 4)*1024} {self.o['last_store_mod']}")

    def build(self):
        p = self.p
        assert self.o["msum"]
        self.prologue()
        if self.o["timing"]: p("s_mov_b32 s99, 0")
        self.stamp()
        p(f"s_mov_b32 s{SO+2}, {0 if self.o.get('stA') else O_BYTES}")
        self.emit_groups(self.w_tile(0, 0) + self.x_tile(0) + self.w_tile(1, 0))
        self.prologue2()
        for item in range(2):
            last = item == 1
            p.raw("@@SB A"); self.qproj_a(); p.raw("@@SE A")
            p.raw(f"@@SB B{item}"); self.qproj_b(last); self.stamp(); p.raw(f"@@SE B{item}")
            p.raw("@@SB C"); self.attention_shared(); p.raw("@@SE C")
            p.raw(f"@@SB D{item}")
            self.attention_tail(last)
            self.stamp()
            if self.o.get("guard", True): self.softmax_check(item)
            self.o_epilogue(last)
            self.stamp()
            if not last:
                p(f"s_add_u32 s{sWo}, s{sWo}, 256"); p(f"s_add_u32 s{sOo}, s{sOo}, {4*6144}")
                p(f"s_mov_b32 s{sItem}, 1"); p(f"s_mov_b32 s{SO+2}, {O_BYTES}")
            else:
                if self.o.get("fuse"): self.k3_main()
                self.stamp()
                p("s_waitcnt vmcnt(0)")
                self.stamp()
                self.stamp_flush()
                p("s_waitcnt vmcnt(0)")
            p.raw(f"@@SE D{item}")
        L, st = finalize(p.L)
        L = fold(L)
        segs, top = segments(L)
        out = [i for k, i in top if k == "ins"]
        lab = lambda t: I(t, "label")
        br = lambda tgt: [ins(f"s_cmp_eq_u32 s{sItem}, 1"), ins(f"s_cbranch_scc1 {tgt}")]
        out += [lab("L_A:")] + segs["A"] + br("L_B1") + segs["B0"] + [lab("L_C:")] + segs["C"] + br("L_D1") + segs["D0"] + [ins("s_branch L_A")]
        out += [lab("L_B1:")] + segs["B1"] + [ins("s_branch L_C")]
        out += [lab("L_D1:")] + segs["D1"] + [lab("K2_END:"), ins("s_endpgm")]
        if self.o.get("guard", True): out += self.fallback()
        return out, st

if __name__ == "__main__":
    k = K2(); L, st = k.build()
    print(st, len(L))
```

```python
from dsl import *
import struct

def f32(x): return "0x%08x" % struct.unpack("<I", struct.pack("<f", x))[0]

NB, SQ, DM, H, SK, DH = 16, 192, 512, 32, 512, 128
X_BYTES = NB*SQ*DM*2
KV_BYTES = NB*H*SK*DH*2
W_BYTES = DM*H*DH*2
O_BYTES = 2*NB*2*128*6*1024
WOT_OFF = O_BYTES
WOT_BYTES = 2*4*128*8*1024
OUT_BYTES = NB*SQ*1024*2

PHI = 65536
WSLOT = [65536, 81920, 98304]
XA, XB = 114688, 139264
DROP = 0x30000

ACC = 64
def acc(T, qt): return ACC + (T*6 + qt)*4
SB = 8
def S(buf, kt): return SB + buf*8 + kt*4
PB = 24
def P(buf): return PB + buf*4
LS = 32
KA = 38
VA = 42
DV = 50
WA = 54
XAD = 58
WD = [60, 61, 2, 3]
XD = [62, 63, 6, 7]
VST = 4
def Q(qt, ks): return (qt*4 + ks)*4
def OS(n): return n*4
def KF(buf, kt, ks): return 96 + buf*32 + (kt*4 + ks)*4
def VF(buf, dt): return 160 + buf*32 + dt*4
def WF(T): return 96 + T*4
def XF(buf, qt): return 128 + buf*24 + qt*4
ONES = 224
def LA(qt): return 228 + qt*4
SX, SW, SKV, SO, SWO, SWT = 4, 8, 12, 16, 20, 24
sW, sHP, sRH, sP, sB, sHG = 28, 29, 30, 31, 32, 33
sKVo, sKVl, sWo, sWl, sXo, sXl, sOo = 34, 35, 36, 37, 38, 39, 40
sT0, sT1, sC = 41, 42, 43
sWOo, sWTo = 44, 45
sItem, sCnt = 46, 47
sTile, sM, sTh1, sTh2, sWarmW, sWarmX, sWoM, sDrop, sTc, sRot = 74, 75, 76, 77, 78, 79, 80, 81, 84, 85
sT2 = 83
sC2 = 86
sWR, sXR = 78, 79

SFL = 92
kA, kBo, kT0, kT1, kOut, kCnt = 74, 78, 80, 81, 79, 47
sC1, sC2o = 97, 96
def oacc(nu, qt): return ACC + (nu*6 + qt)*4
def AF(buf, nu): return buf*56 + nu*4
def BF(buf, qt): return buf*56 + 32 + qt*4
VB4 = 6
VPOLL = 34
MF = "v_mfma_f32_16x16x32_bf16"
def mfma(d, dk, a, ak, b, bk, c=None):
    cs = "0" if c is None else rng(dk, c, 4)
    return ins(f"{MF} {rng(dk,d,4)}, {rng(ak,a,4)}, {rng(bk,b,4)}, {cs}")

class K2:
    def __init__(self, opts=None):
        self.o = dict(nt="nt", w_mod="", x_mod="", store_mod="sc1", last_store_mod="sc1", timing=False, msum=True, warm=False, qrot=True, drop=[])
        if opts: self.o.update(opts)
        self.p = Prog()
        self.phase = ""

    def tile_addr(self):
        if not self.o.get("rot"):
            return [ins(f"s_add_u32 s{sTile}, s{sKVo}, s{sTc}"), ins(f"s_add_u32 s{sTc}, s{sTc}, 8192")]
        return [ins(f"s_add_u32 s{sTile}, s{sTc}, s{sRot}"), ins(f"s_and_b32 s{sTile}, s{sTile}, 0x1ffff"),
                ins(f"s_and_b32 s{sT0}, s{sTc}, 0x20000"), ins(f"s_add_u32 s{sTile}, s{sTile}, s{sT0}"),
                ins(f"s_add_u32 s{sTile}, s{sTile}, s{sKVo}"), ins(f"s_add_u32 s{sTc}, s{sTc}, 8192")]
    def dma_kv(self, tag, m0a, m0b, pre=()):
        nt = self.o['nt']
        G = []
        g = list(pre) + self.tile_addr() + [ins(m0a)]
        for k in range(4):
            g.append(ins(f"buffer_load_dwordx4 v{DV+k}, s[{SKV}:{SKV+3}], s{sTile} offen offset:{1024*k} {nt} lds", tag=tag))
            G.append(g); g = []
        g = [ins(f"s_add_u32 s{sT0}, s{sTile}, 4096"), ins(m0b)]
        for k in range(4):
            g.append(ins(f"buffer_load_dwordx4 v{DV+k}, s[{SKV}:{SKV+3}], s{sT0} offen offset:{1024*k} {nt} lds", tag=tag))
            G.append(g); g = []
        return G
    def dma_kv_abs(self, tag, slot):
        o = (slot >> 1)*PHI + (slot & 1)*8192
        return self.dma_kv(tag, f"s_add_u32 m0, s{sKVl}, {o}", f"s_add_u32 m0, s{sKVl}, {o + 4096}")
    def kv_pieces(self, tile, a, b):
        G = self.dma_kv_abs(("kv", tile), tile % 4)
        out = G[a:b]
        if a not in (0, 4):
            slot = tile % 4
            o = (slot >> 1)*PHI + (slot & 1)*8192 + (4096 if a >= 4 else 0)
            out[0] = [ins(f"s_add_u32 m0, s{sKVl}, {o}")] + out[0]
        return out
    def dma_w(self, tag, base_reg, goff, m0txt, rot=None):
        G = []
        if rot is None: g = [ins(f"s_add_u32 s{sT1}, s{base_reg}, {goff}")]
        else:
            g = [ins(f"s_add_u32 s{sT1}, s{sWR}, {rot*262144}"), ins(f"s_and_b32 s{sT1}, s{sT1}, 0x3fffff"), ins(f"s_add_u32 s{sT1}, s{sT1}, s{base_reg}")]
            if goff: g.append(ins(f"s_add_u32 s{sT1}, s{sT1}, {goff}"))
        g.append(ins(m0txt))
        for n in range(4):
            g.append(ins(f"buffer_load_dwordx4 v{WD[n]}, s[{SW}:{SW+3}], s{sT1} offen offset:{1024*n} {self.o['w_mod']} lds", tag=tag))
            G.append(g); g = []
        return G
    def x_soff(self, base_reg, tt):
        if not self.o.get("qrot"): return [ins(f"s_add_u32 s{sT1}, s{base_reg}, {tt*128}")]
        return [ins(f"s_add_u32 s{sT1}, s{sXR}, {tt*128}"), ins(f"s_and_b32 s{sT1}, s{sT1}, 1023"), ins(f"s_add_u32 s{sT1}, s{sT1}, s{base_reg}")]
    def dma_x(self, tag, base_reg, tt, m0a, m0b):
        G = []
        m = self.o['x_mod']
        g = self.x_soff(base_reg, tt) + [ins(m0a)]
        for n in range(4):
            g.append(ins(f"buffer_load_dwordx4 v{XD[n]}, s[{SX}:{SX+3}], s{sT1} offen offset:{1024*n} {m} lds", tag=tag))
            G.append(g); g = []
        g = [ins(f"s_add_u32 s{sT1}, s{sT1}, {4*8192}"), ins(m0b)]
        for n in range(2):
            g.append(ins(f"buffer_load_dwordx4 v{XD[n]}, s[{SX}:{SX+3}], s{sT1} offen offset:{1024*n} {m} lds", tag=tag))
            G.append(g); g = []
        return G
    def w_tile(self, t, nxt=0):
        m0 = f"s_add_u32 m0, s{sWl}, {WSLOT[t % 3]}"
        if self.o.get("qrot"): return self.dma_w(("w", t), sWo, nxt*256, m0, rot=t)
        return self.dma_w(("w", t), sWo, nxt*256 + t*262144, m0)
    def x_tile(self, tt):
        sl = XB if tt % 2 == 0 else XA
        return self.dma_x(("x", tt), sXo, tt, f"s_add_u32 m0, s{sXl}, {sl}", f"s_add_u32 m0, s{sXl}, {sl + 4096}")
    def warmup(self, nxt):
        if not self.o["warm"]: return []
        G = []
        def ld(v, srd, soff, off, mod):
            i = ins(f"buffer_load_dwordx4 a[252:255], v{v}, s[{srd}:{srd+3}], s{soff} offen offset:{off} {mod}", tag=("warm",))
            i.kind = "dma"; i.wr = set(); i.rd.discard("m0")
            return i
        for k in range(2):
            g = [ins(f"s_add_u32 s{sT1}, s{sWarmW}, {nxt*256 + k*262144}")]
            for n in range(4):
                g.append(ld(WD[n], SW, sT1, 1024*n, self.o['w_mod'])); G.append(g); g = []
        if nxt == 0 or self.o.get("warmx1", True):
            for k in range(2):
                g = [ins(f"s_add_u32 s{sT1}, s{sWarmX}, {k*128}")]
                for n in range(4):
                    g.append(ld(XD[n], SX, sT1, 1024*n, self.o['x_mod'])); G.append(g); g = []
                g = [ins(f"s_add_u32 s{sT1}, s{sT1}, {4*8192}")]
                for n in range(2):
                    g.append(ld(XD[n], SX, sT1, 1024*n, self.o['x_mod'])); G.append(g); g = []
        return G
    def next_item_prefetch(self, nxt=1):
        return self.w_tile(0, nxt) + self.x_tile(0) + self.w_tile(1, nxt) + self.w_tile(2, nxt) + self.x_tile(1)
    def dma_wo(self):
        G = []
        for half in range(2):
            g = [ins(f"s_add_u32 s{sT1}, s{sWOo}, {half*4096}"), ins(f"s_add_u32 m0, s{sWoM}, {half*4096}")]
            for n in range(4):
                g.append(ins(f"buffer_load_dwordx4 v{VST}, s[{SWO}:{SWO+3}], s{sT1} offen offset:{1024*n} nt lds", tag=("wo",)))
                G.append(g); g = []
        return G
    def o_store(self, n, mod, prev, force=False):
        g = []
        if n % 4 == 0 or force: g.append(ins(f"s_add_u32 s{sT2}, s{sOo}, {((n & ~3)*1024 - (4*6144 if prev else 0)) & 0xffffffff}"))
        g.append(ins(f"buffer_store_dwordx4 {rng('a', OS(n), 4)}, v{VST}, s[{SO}:{SO+3}], s{sT2} offen offset:{(n % 4)*1024} {mod}", tag=("o",)))
        return g
    def rd_k(self, par, kt, ks):
        return ins(f"ds_read_b128 {rng('a', KF(par, kt, ks), 4)}, v{KA+ks} offset:{par*8192 + kt*4096}")
    def rd_v(self, par, dt, kt):
        return ins(f"ds_read_b64_tr_b16 {rng('a', VF(par, dt) + 2*kt, 2)}, v{VA+dt} offset:{par*8192 + kt*4096}")
    def rd_w(self, t, T, h2):
        ks, u = T >> 1, T & 1
        return ins(f"ds_read_b64_tr_b16 {rng('a', WF(T) + 2*h2, 2)}, v{WA+ks} offset:{(t % 3)*16384 + h2*2048 + 8*u}")
    def rd_x(self, t, qt):
        tt = t >> 1
        return ins(f"ds_read_b128 {rng('a', XF(t % 2, qt), 4)}, v{XAD + (t & 1)} offset:{(24576 if tt % 2 == 0 else 0) + qt*2048}")

    def prologue(self):
        p = self.p
        p("s_cmp_ge_u32 s2, 256")
        p("s_cbranch_scc1 K2_END")
        p("s_load_dwordx16 s[48:63], s[0:1], 0")
        p("s_load_dwordx8 s[64:71], s[0:1], 64")
        p("s_load_dwordx2 s[72:73], s[0:1], 96")
        p(f"v_lshrrev_b32 v1, 6, v0")
        p(f"v_and_b32 v0, 63, v0")
        p(f"v_readfirstlane_b32 s{sW}, v1")
        p("s_and_b32 s86, s2, 7")
        p("s_lshr_b32 s87, s2, 3")
        p(f"s_lshr_b32 s{sP}, s86, 2")
        p("s_and_b32 s88, s86, 1"); p("s_lshl_b32 s88, s88, 3"); p("s_and_b32 s82, s87, 7")
        p(f"s_add_u32 s{sB}, s88, s82")
        p("s_lshr_b32 s88, s86, 1"); p("s_and_b32 s88, s88, 1"); p("s_lshl_b32 s88, s88, 2"); p("s_lshr_b32 s83, s87, 3")
        p(f"s_add_u32 s{sHG}, s88, s83")
        p(f"s_and_b32 s{sHP}, s{sW}, 1")
        p(f"s_lshr_b32 s{sRH}, s{sW}, 1")
        p("s_waitcnt lgkmcnt(0)")
        p(f"s_cmp_eq_u32 s{sP}, 0")
        p(f"s_cselect_b32 s{SX}, s48, s58"); p(f"s_cselect_b32 s{SX+1}, s49, s59")
        p(f"s_cselect_b32 s{SW}, s54, s64"); p(f"s_cselect_b32 s{SW+1}, s55, s65")
        p(f"s_cselect_b32 s{SWO}, s56, s66"); p(f"s_cselect_b32 s{SWO+1}, s57, s67")
        p(f"s_cselect_b32 s90, s50, s60"); p(f"s_cselect_b32 s91, s51, s61")
        p(f"s_cselect_b32 s92, s52, s62"); p(f"s_cselect_b32 s93, s53, s63")
        p(f"s_cmp_eq_u32 s{sRH}, 0")
        p(f"s_cselect_b32 s{SKV}, s90, s92"); p(f"s_cselect_b32 s{SKV+1}, s91, s93")
        p(f"s_cselect_b32 s94, 64, 128"); p(f"s_cselect_b32 s95, 128, 0"); p("s_mov_b32 s96, 128"); p(f"s_cselect_b32 s96, 192, s96")
        p(f"s_cselect_b32 s97, 0, 1")
        p(f"s_cselect_b32 s{sKVl}, 0, 32768")
        for r, n in ((SX, X_BYTES), (SW, W_BYTES), (SWO, W_BYTES), (SKV, KV_BYTES)):
            p(f"s_mov_b32 s{r+2}, {n}"); p(f"s_mov_b32 s{r+3}, 0x00020000")
        p(f"s_mov_b32 s{SO}, s72"); p(f"s_mov_b32 s{SO+1}, s73"); p(f"s_mov_b32 s{SO+2}, 0"); p(f"s_mov_b32 s{SO+3}, 0x00020000")
        p(f"s_add_u32 s{SWT}, s72, {WOT_OFF}"); p(f"s_addc_u32 s{SWT+1}, s73, 0"); p(f"s_mov_b32 s{SWT+2}, {WOT_BYTES}"); p(f"s_mov_b32 s{SWT+3}, 0x00020000")
        p(f"s_lshl_b32 s88, s{sB}, 5"); p(f"s_lshl_b32 s89, s{sHG}, 2"); p("s_add_u32 s88, s88, s89"); p(f"s_lshl_b32 s89, s{sHP}, 1"); p("s_add_u32 s88, s88, s89")
        p(f"s_lshl_b32 s{sKVo}, s88, 17")
        p(f"s_lshl_b32 s89, s{sHP}, 14"); p(f"s_add_u32 s{sKVl}, s{sKVl}, s89")
        p(f"s_lshl_b32 s88, s{sW}, 16"); p(f"s_lshl_b32 s89, s{sHG}, 10"); p(f"s_add_u32 s{sWo}, s88, s89")
        p(f"s_lshl_b32 s{sWl}, s{sW}, 12")
        p(f"s_lshl_b32 s88, s82, 19"); p(f"s_add_u32 s{sWarmW}, s{sWo}, s88")
        p(f"s_mul_i32 s88, s{sB}, 196608"); p(f"s_mul_i32 s89, s{sW}, 49152"); p(f"s_add_u32 s{sXo}, s88, s89")
        p(f"s_mul_i32 s{sXl}, s{sW}, 6144")
        p(f"s_lshl_b32 s88, s83, 8"); p(f"s_add_u32 s{sWarmX}, s{sXo}, s88")
        if self.o.get("qrot"):
            assert not self.o["warm"]
            p("s_lshl_b32 s88, s83, 1"); p("s_add_u32 s88, s88, s82"); p("s_and_b32 s88, s88, 7")
            p(f"s_lshl_b32 s{sWR}, s88, 19"); p(f"s_lshl_b32 s{sXR}, s88, 7")
        p(f"s_mov_b32 s{sDrop}, {DROP}")
        p("s_mul_i32 s88, s2, 5"); p("s_lshr_b32 s89, s2, 4"); p("s_add_u32 s88, s88, s89"); p("s_and_b32 s88, s88, 15"); p(f"s_lshl_b32 s{sRot}, s88, 13")
        p(f"s_lshl_b32 s88, s{sP}, 4"); p(f"s_add_u32 s88, s88, s{sB}"); p("s_lshl_b32 s88, s88, 1"); p(f"s_add_u32 s88, s88, s{sRH}")
        p("s_lshl_b32 s88, s88, 7"); p(f"s_lshl_b32 s89, s{sHG}, 4"); p("s_add_u32 s88, s88, s89"); p(f"s_lshl_b32 s89, s{sHP}, 3"); p("s_add_u32 s88, s88, s89")
        p(f"s_mul_i32 s{sOo}, s88, 6144")
        p("s_and_b32 s88, s86, 3"); p("s_lshl_b32 s88, s88, 5"); p("s_add_u32 s88, s88, s87")
        p(f"s_lshl_b32 s89, s88, 15"); p(f"s_lshl_b32 s98, s{sW}, 13"); p(f"s_add_u32 s{sWOo}, s89, s98")
        p(f"s_lshl_b32 s89, s{sP}, 2"); p(f"s_add_u32 s89, s89, s{sW}"); p("s_lshl_b32 s89, s89, 7"); p("s_add_u32 s89, s89, s88"); p(f"s_lshl_b32 s{sWTo}, s89, 13")
        p(f"s_mov_b32 s{sC}, {f32(1.4426950408889634*128**-0.5)}")
        p(f"s_mov_b32 s{sItem}, 0")
        self.late_consts = True
        i_, g_, r_, c_ = "v14", "v8", "v9", "v10"
        p(f"v_and_b32 {i_}, 15, v0"); p(f"v_lshrrev_b32 {g_}, 4, v0"); p(f"v_lshrrev_b32 {r_}, 2, {i_}"); p(f"v_and_b32 {c_}, 3, {i_}")
        p(f"v_lshlrev_b32 v{VST}, 4, v0")
        p("v_lshrrev_b32 v11, 5, v0"); p("v_and_b32 v12, 15, v0"); p("v_lshlrev_b32 v13, 2, v11"); p("v_xor_b32 v12, v12, v13"); p("v_lshlrev_b32 v12, 4, v12")
        p("v_lshl_add_u32 v12, v11, 13, v12"); p("v_bfe_u32 v13, v0, 4, 1"); p(f"v_lshl_add_u32 v{WD[0]}, v13, 9, v12")
        p(f"v_xor_b32 v{WD[1]}, 128, v{WD[0]}"); p(f"v_add_u32 v{WD[2]}, {2*15360}, v{WD[0]}"); p(f"v_add_u32 v{WD[3]}, {3*15360}, v{WD[1]}"); p(f"v_add_u32 v{WD[1]}, 15360, v{WD[1]}")
        p("v_lshrrev_b32 v11, 3, v0"); p("v_and_b32 v12, 7, v0"); p(f"v_xor_b32 v12, v12, {g_}"); p("v_lshlrev_b32 v12, 4, v12")
        p(f"v_lshl_add_u32 v{XD[0]}, v11, 10, v12"); p(f"v_xor_b32 v{XD[1]}, 64, v{XD[0]}")
        p(f"v_add_u32 v{XD[2]}, {2*7168}, v{XD[0]}"); p(f"v_add_u32 v{XD[3]}, {3*7168}, v{XD[1]}"); p(f"v_add_u32 v{XD[1]}, 7168, v{XD[1]}")
        p(f"v_lshlrev_b32 v11, s97, {g_}"); p(f"v_xor_b32 v11, v11, {i_}"); p("v_lshlrev_b32 v11, 4, v11"); p(f"v_lshl_add_u32 v{DV}, {g_}, 8, v11")
        for k in range(1, 4): p(f"v_xor_b32 v{DV+k}, s{93+k}, v{DV}")
        self.lane = (i_, g_, r_, c_)
    def prologue2(self):
        p = self.p
        i_, g_, r_, c_ = self.lane
        p(f"s_lshl_b32 s88, s{sHP}, 14")
        p(f"v_xor_b32 v11, {g_}, {i_}"); p("v_lshlrev_b32 v11, 4, v11"); p(f"v_lshl_add_u32 v11, {i_}, 8, v11"); p(f"v_add_u32 v{KA}, s88, v11")
        for ks in range(1, 4): p(f"v_xor_b32 v{KA+ks}, {64*ks}, v{KA}")
        p(f"v_and_b32 v11, 1, {g_}"); p("v_lshlrev_b32 v11, 2, v11"); p(f"v_add_u32 v11, v11, {r_}"); p("v_lshlrev_b32 v11, 1, v11")
        p(f"v_lshrrev_b32 v12, 1, {c_}"); p("v_xor_b32 v11, v11, v12"); p("v_lshlrev_b32 v11, 4, v11")
        p(f"v_and_b32 v12, 1, {c_}"); p("v_lshl_add_u32 v11, v12, 3, v11")
        p(f"v_lshl_add_u32 v12, {g_}, 2, {r_}"); p("v_lshl_add_u32 v11, v12, 8, v11")
        p("s_add_u32 s89, s88, 32768"); p(f"v_add_u32 v{VA}, s89, v11")
        for dt in range(1, 8): p(f"v_xor_b32 v{VA+dt}, {32*dt}, v{VA}")
        p(f"s_lshl_b32 s88, s{sHP}, 4")
        p(f"v_add_u32 v11, s88, {c_}"); p(f"v_lshlrev_b32 v12, 2, {r_}"); p("v_xor_b32 v11, v11, v12"); p("v_lshlrev_b32 v11, 4, v11")
        p(f"v_lshl_add_u32 v12, {g_}, 3, {r_}"); p("v_lshl_add_u32 v11, v12, 9, v11"); p(f"v_add_u32 v{WA}, {WSLOT[0]}, v11")
        for ks in range(1, 4): p(f"v_xor_b32 v{WA+ks}, {64*ks}, v{WA}")
        p(f"s_mul_i32 s88, s{sRH}, {96*128}"); p(f"s_add_u32 s88, s88, {XA}")
        p(f"v_lshrrev_b32 v11, 1, {i_}"); p(f"v_xor_b32 v11, v11, {g_}"); p("v_lshlrev_b32 v11, 4, v11"); p(f"v_lshl_add_u32 v11, {i_}, 7, v11"); p(f"v_add_u32 v{XAD}, s88, v11")
        p(f"v_xor_b32 v{XAD+1}, 64, v{XAD}")
        p(f"s_mov_b32 s{sC2}, s{sC}"); p(f"s_mov_b32 s{sC2+1}, s{sC}")
        if self.o.get("fuse"):
            p(f"s_mov_b32 s{SFL}, s70"); p(f"s_mov_b32 s{SFL+1}, s71"); p(f"s_mov_b32 s{SFL+2}, 256"); p(f"s_mov_b32 s{SFL+3}, 0x00020000")
            sh = 16 if self.o.get("dbg") is not None else 0
            p(f"s_lshl_b32 s{sC1}, s{sP}, 2"); p(f"s_add_u32 s{sC1}, s{sC1}, {4*sh}")
            p(f"s_lshl_b32 s88, s{sP}, 4"); p(f"s_add_u32 s88, s88, s{sB}"); p(f"s_add_u32 s88, s88, {2+sh}"); p(f"s_lshl_b32 s{sC2o}, s88, 2")
        if self.o["msum"]:
            p("v_mov_b32 v11, 0x3f803f80")
            for r in range(4): p(f"v_accvgpr_write_b32 a{ONES+r}, v11")

    def stamp(self, fine=False):
        if not self.o["timing"]: return
        if fine and not self.o.get("fine"): return
        p = self.p
        p(f"s_memrealtime s[88:89]")
        p(f"s_memtime s[90:91]")
        p("s_waitcnt lgkmcnt(0)")
        p("s_mov_b32 m0, s99"); p("s_nop 1")
        p(f"v_writelane_b32 v5, s88, m0")
        p(f"v_writelane_b32 v1, s90, m0")
        p("s_add_u32 s99, s99, 1")
    def stamp_flush(self):
        if not self.o["timing"]: return
        p = self.p
        if self.o.get("dbg") is not None:
            p(f"s_cmp_eq_u32 s2, {self.o['dbg']}"); p("s_cselect_b32 s90, 64, 0"); p(f"s_cmp_eq_u32 s{sW}, 0"); p("s_cselect_b32 s90, s90, 0")
            p("s_mov_b32 s88, s70"); p("s_mov_b32 s89, s71"); p("s_mov_b32 s91, 0x00020000")
            src = "v1" if self.o.get("dbgcyc") else "v5"
            p("v_lshlrev_b32 v6, 2, v0")
            p(f"buffer_store_dword {src}, v6, s[88:91], 0 offen")
            if not self.o.get("fuse"):
                p("s_add_u32 s88, s88, 512"); p("s_addc_u32 s89, s89, 0"); p("s_cmp_lg_u32 s90, 0"); p("s_cselect_b32 s90, 52, 0")
                p(f"buffer_store_dword {src}, v6, s[88:91], 0 offen")
            return
        p(f"s_add_u32 s88, s72, {64<<20}"); p("s_addc_u32 s89, s73, 0"); p(f"s_mov_b32 s90, {1<<20}"); p("s_mov_b32 s91, 0x00020000")
        p(f"s_lshl_b32 s92, s2, 2"); p(f"s_add_u32 s92, s92, s{sW}"); p("s_lshl_b32 s92, s92, 9")
        p("v_lshlrev_b32 v6, 2, v0")
        p("buffer_store_dword v5, v6, s[88:91], s92 offen")
        p("buffer_store_dword v1, v6, s[88:91], s92 offen offset:256")

    def emit_groups(self, groups):
        for g in groups:
            for x in g: self.p.add(x)
    def keep(self, x):
        drop = self.o["drop"]; ph = self.phase
        if x.kind == "dma" and ph + "_dma" in drop: return False
        if x.kind == "ds_read" and ph + "_lds" in drop: return False
        if x.kind == "barrier" and ph + "_bar" in drop: return False
        if x.kind == "trans" and ph + "_exp" in drop: return False
        if x.kind == "valu" and x.txt.startswith("v_add_f32") and ph + "_add" in drop: return False
        if x.kind == "valu" and x.txt.startswith("v_cvt") and ph + "_cvt" in drop: return False
        if x.kind == "vstore" and ph + "_st" in drop: return False
        return True
    def run(self, mf, chains, pre=()):
        ch = [[([x for x in g if self.keep(x)], lo, hi) for g, lo, hi in c] for c in chains]
        ch = [[it for it in c if it[0]] for c in ch]
        if self.phase + "_mfma" in self.o["drop"]: mf = [ins("s_nop 0") for _ in mf]
        self.p.extend(gapfill(mf, ch, pre=[x for x in pre if self.keep(x)]))

    def spaced(self, G, lo, hi):
        n = len(G)
        out = []
        for k, g in enumerate(G):
            pos = lo + (k*(hi - lo + 1))//n
            out.append((g, pos, pos + 1))
        return out
    def qstep(self, t, stores=(), sig=False):
        p = self.p
        self.phase = "qp"
        mf = []
        for T in range(8):
            for qt in range(6):
                mf.append(mfma(acc(T, qt), "v", WF(T), "a", XF(t % 2, qt), "a", None if t == 0 else acc(T, qt)))
        need = []
        for qt in range(6): need += R("a", XF(t % 2, qt), 4)
        for T in range(6): need += R("a", WF(T), 4)
        pre = [wait_regs(need)]
        chains = []
        BG = 11
        slow = []
        if t < 15:
            bar = [wait_tag(("w", t+1))]
            if t % 2 == 1: bar.append(wait_tag(("x", (t+1) >> 1)))
            chains.append([(bar, BG-1, BG-1), ([ins("s_waitcnt lgkmcnt(0)"), ins("s_barrier")], BG, BG)])
            cw = []
            for T in range(8):
                lo = max(BG+1, 6*T + 5)
                cw += [([self.rd_w(t+1, T, 0)], lo, min(47, lo + 8)), ([self.rd_w(t+1, T, 1)], lo, min(47, lo + 9))]
            chains.append(cw)
            chains.append([([self.rd_x(t+1, qt)], BG+1, 40) for qt in range(6)])
            GW = self.w_tile(t+3) if t + 3 <= 15 else []
            early = []; GX = []
            if t % 2 == 1 and (t >> 1) + 2 <= 7: GX = self.x_tile((t >> 1) + 2)[:3]
            if t % 2 == 0 and t >= 2 and ((t-1) >> 1) + 2 <= 7:
                tt = ((t-1) >> 1) + 2; sl = XB if tt % 2 == 0 else XA
                early = self.x_tile(tt)[3:]
                early[0] = self.x_soff(sXo, tt) + [ins(f"s_add_u32 m0, s{sXl}, {sl}")] + early[0]
            if t == 0: early = self.w_tile(2) + self.x_tile(1)
            late = GW + GX
            plan = self.o.get("kvplan", {10: (0, 0, 4), 11: (0, 4, 8), 12: (1, 0, 4), 13: (1, 4, 8)})
            if t in plan or str(t) in plan:
                slow = self.kv_pieces(*(plan.get(t) or plan.get(str(t))))
            c = []
            if t == 0:
                c = self.spaced(early + late, 0, 47); early = []; late = []
            if early:
                span = BG - 1
                for k, g in enumerate(early): c.append((g, int(k*span/len(early)), int(k*span/len(early)) + 1))
            hi = 47 if not (slow or stores) else (39 if len(slow) <= 2 else 32)
            if late: c += self.spaced(late, BG+2, hi)
            if slow: c += self.spaced(slow, (41 if len(slow) <= 2 else 34) if late else BG+2, 47)
            if c: chains.append(c)
        else:
            chains.append([([ins("s_waitcnt lgkmcnt(0)"), ins("s_barrier")], BG, BG)])
            G = self.kv_pieces(2, 0, 4 if self.o.get("look", 3) == 3 else 8)
            chains.append(self.spaced(G, BG+1, 47))
        if sig:
            chains.append([(self.signal(f"v_mov_b32 v{VPOLL+2}, s{sC1}"), BG+1, BG+3)])
        if stores:
            lo = 26 if t == 12 else 0
            if self.o.get("stA"): lo = 41
            chains.append(self.spaced([self.o_store(n, self.o["store_mod"], True, force=bool(self.o.get("stA")) and n % 2 == 0) for n in stores], lo, 47))
        self.run(mf, chains, pre)

    def qproj_a(self):
        p = self.p
        p(f"s_lshl_b32 s{sTc}, s{sItem}, 17")
        p.wait_tag(("w", 0)); p.wait_tag(("x", 0))
        p("s_barrier")
        self.stamp()
        for T in range(8):
            p.add(self.rd_w(0, T, 0)); p.add(self.rd_w(0, T, 1))
        for qt in range(6): p.add(self.rd_x(0, qt))
        for t in range(12):
            self.qstep(t, [2*t, 2*t+1] if self.o.get("stA") else ())
            if t in (3, 7, 11): self.stamp(True)
    def qproj_b(self, last):
        p = self.p
        st = (lambda a, b: list(range(a, b))) if (last and not self.o.get("stA")) else (lambda a, b: [])
        self.qstep(12, st(0, 3)); self.qstep(13, st(3, 9)); self.qstep(14, st(9, 15))
        self.qstep(15, st(15, 18), sig=bool(last and self.o.get("fuse")))
        self.stamp()
        for kt in range(2):
            for ks in range(4): p.add(self.rd_k(0, kt, ks))
        tmp = S(0, 0)
        rest = self.kv_pieces(2, 4, 8) if self.o.get("look", 3) == 3 else []
        late = st(18, 24)
        for qt in range(6):
            for ks in range(4):
                n = qt*4 + ks
                a0, a1 = acc(2*ks, qt), acc(2*ks+1, qt)
                if self.o.get("pk", True):
                    for a in (a0, a0+2, a1, a1+2): p(f"v_pk_mul_f32 v[{a}:{a+1}], v[{a}:{a+1}], s[{sC2}:{sC2+1}]")
                else:
                    for r in range(4): p(f"v_mul_f32 v{a0+r}, s{sC}, v{a0+r}")
                    for r in range(4): p(f"v_mul_f32 v{a1+r}, s{sC}, v{a1+r}")
                t0 = tmp + (n % 4)*4
                p(f"v_cvt_pk_bf16_f32 v{t0}, v{a0}, v{a0+1}")
                p(f"v_cvt_pk_bf16_f32 v{t0+1}, v{a0+2}, v{a0+3}")
                p(f"v_cvt_pk_bf16_f32 v{t0+2}, v{a1}, v{a1+1}")
                p(f"v_cvt_pk_bf16_f32 v{t0+3}, v{a1+2}, v{a1+3}")
                if late and n % 2 == 0 and n < 18:
                    m = late.pop(0)
                    for x in self.o_store(m, self.o["store_mod"], True, force=True): p.add(x)
                if self.o.get("dummy_mfma"):
                    for _ in range(self.o["dummy_mfma"]): p.add(mfma(252, "a", KF(0, 0, 0), "a", KF(0, 1, 0), "a", None))
                for r in range(4): p(f"v_accvgpr_write_b32 a{Q(qt,ks)+r}, v{t0+r}")
                if rest and n % 4 == 3 and n >= 7:
                    for x in rest.pop(0): p.add(x)
            if qt < 4:
                for dt in (2*qt, 2*qt+1):
                    p.add(self.rd_v(0, dt, 0)); p.add(self.rd_v(0, dt, 1))
        assert not rest and not late

    def period(self, n, dma=(), pre=(), early=(), extra=()):
        p = self.p
        self.phase = "at"
        msum = self.o["msum"]
        j, pp = divmod(n, 6)
        qk = []; pv = []
        if n < 96:
            sb = n % 2
            for kt in range(2):
                for ks in range(4):
                    qk.append(mfma(S(sb, kt), "v", KF(j % 2, kt, ks), "a", Q(pp, ks), "a", None if ks == 0 else S(sb, kt)))
        if n >= 2:
            jj, qt = divmod(n-2, 6)
            pb = (n-2) % 2
            for dt in range(8):
                pv.append(mfma(acc(dt, qt), "v", VF(jj % 2, dt), "a", P(pb), "v", None if jj == 0 else acc(dt, qt)))
        mf = []
        for k in range(8):
            if qk: mf.append(qk[k])
            if pv: mf.append(pv[k])
        if n >= 2 and msum:
            mf.append(mfma(LA(qt), "a", ONES, "a", P(pb), "v", None if jj == 0 else LA(qt)))
        nm = len(mf)
        sc = nm/17.0 if msum else nm/16.0
        def G(x): return min(nm-1, int(x*sc))
        chains = []
        if 1 <= n <= 96:
            jj2, qt2 = divmod(n-1, 6)
            sb = (n-1) % 2; pb2 = (n-1) % 2
            e = [S(sb, 0)+r for r in range(4)] + [S(sb, 1)+r for r in range(4)]
            chains.append([([ins(f"v_exp_f32 v{e[k]}, v{e[k]}")], G(2*k), G(2*k)) for k in range(8)])
            cv = []
            for k in range(8):
                if not msum: cv.append(([ins(f"v_add_f32 v{LS+qt2}, v{LS+qt2}, v{e[k]}")], G(2*k+1), G(2*k+1)))
                if k % 2 == 1:
                    cv.append(([ins(f"v_cvt_pk_bf16_f32 v{P(pb2)+k//2}, v{e[k-1]}, v{e[k]}")], G(2*k+1), G(2*k+1)))
            chains.append(cv)
        if n >= 2:
            jb, q = divmod(n-2, 6)
            if jb + 1 <= 15:
                par = (jb+1) % 2
                rds = []
                if q in (0, 1): rds = [self.rd_k(par, q, ks) for ks in range(4)]
                else:
                    for dt in range((q-2)*2, (q-2)*2+2): rds += [self.rd_v(par, dt, 0), self.rd_v(par, dt, 1)]
                gp = [1, 5, 9, 13] if q != 5 else [1, 5, 9, 10]
                chains.append([([x], G(gp[k]), G(gp[k])) for k, x in enumerate(rds)])
        if dma:
            nd = sum(1 for x in dma if x.kind == "dma")
            slots = {0: [], 1: [16], 2: [11, 16], 4: [3, 7, 11, 16], 8: [2, 4, 6, 8, 10, 12, 14, 16]}.get(nd) or [int(3 + (16-3)*k/(nd-1)) for k in range(nd)]
            ch = []; seen = 0
            for x in dma:
                if x.kind == "dma":
                    g = G(slots[seen]); seen += 1
                    grp = [x] if x.meta.get("credit") is None else [ins(f"s_waitcnt vmcnt({x.meta['credit']})"), x]
                    ch.append((grp, g, g))
                else:
                    ch.append(([x], 0, nm-1))
            for k in range(len(ch)-2, -1, -1):
                if ch[k][0][-1].kind != "dma": ch[k] = (ch[k][0], 0, max(0, ch[k+1][2] - (1 if ch[k+1][0][-1].kind == "dma" else 0)))
            chains.append(ch)
        if early: chains.append([([x], 0, nm-1) for x in early])
        if extra: chains.append([(g, (k*nm)//len(extra), nm-1) for k, g in enumerate(extra)])
        self.run(mf, chains, pre)

    def body(self, j, dmaG, tog=(), nper=6, extra=(), extra2=()):
        bar = []
        if j + 1 <= 15: bar.append(wait_tag(("kv", j+1)))
        if extra: bar.append(wait_tag(("wo",)))
        bar += [ins("s_waitcnt lgkmcnt(0)"), ins("s_barrier")]
        if self.o.get("baracct"):
            b0 = [ins("s_memtime s[92:93]"), ins("s_waitcnt lgkmcnt(0)")]
            b1 = [ins("s_memtime s[94:95]"), ins("s_waitcnt lgkmcnt(0)")]
            b2 = [ins("s_memtime s[96:97]"), ins("s_waitcnt lgkmcnt(0)"), ins("s_sub_u32 s98, s94, s92"), ins("s_add_u32 s100, s100, s98"),
                  ins("s_sub_u32 s98, s96, s94"), ins("s_add_u32 s101, s101, s98")]
            bar = b0 + bar[:1] + b1 + bar[1:] + b2
        tk = [x for x in tog if any(f"v{KA+z}," in x.txt for z in range(4))]
        tv = [x for x in tog if x not in tk]
        flat = [x for g in dmaG for x in g]
        cr = self.o.get("credit")
        if cr is not None and j <= 12:
            for x in flat:
                if x.kind == "dma": x.meta["credit"] = cr
        nd = sum(1 for x in flat if x.kind == "dma")
        if nd == 8: cnt = self.o.get("dmacnt", [1, 1, 2, 1, 1, 2])
        else: cnt = [nd//6 + (1 if q < nd % 6 else 0) for q in range(6)]
        per = [[] for _ in range(6)]
        q = 0; seen = 0
        for x in flat:
            while q < 5 and seen >= cnt[q]: q += 1; seen = 0
            per[q].append(x)
            if x.kind == "dma": seen += 1
        for q in range(6):
            e = tv[:4] if q == 0 else (tv[4:] if q == 1 else [])
            ex = []
            if extra or extra2:
                xs = list(extra) + list(extra2)
                n = len(xs); ex = xs[q*n//6:(q+1)*n//6]
            self.period(6*j + 2 + q, dma=per[q], pre=(bar + tk) if q == 0 else (), early=e, extra=ex)

    def tog(self):
        return [ins(f"v_xor_b32 v{KA+x}, {PHI}, v{KA+x}") for x in range(4)] + [ins(f"v_xor_b32 v{VA+x}, {PHI}, v{VA+x}") for x in range(8)]
    def attention_shared(self):
        p = self.p
        look = self.o.get("look", 3)
        if look == 4:
            t3 = self.kv_pieces(3, 0, 8)
            self.period(0, dma=[x for g in t3[:4] for x in g]); self.period(1, dma=[x for g in t3[4:] for x in g])
            self.body(0, self.dma_kv_abs(("kv", 4), 0))
        else:
            self.period(0); self.period(1)
            self.body(0, self.dma_kv_abs(("kv", 3), 3))
        p(f"s_mov_b32 s{sM}, s{sKVl}")
        p(f"s_mov_b32 s{sCnt}, 5")
        for k in range(5):
            j = 1 + 2*k
            p.raw(f"@@LB at {k}")
            self.stamp(True)
            if look == 4:
                g1 = self.dma_kv(("kv", j+4), f"s_add_u32 m0, s{sM}, 8192", f"s_add_u32 m0, s{sM}, 12288")
                self.body(j, g1, tog=self.tog())
                g2 = self.dma_kv(("kv", j+5), f"s_add_u32 m0, s{sM}, 0", f"s_add_u32 m0, s{sM}, 4096")
                self.body(j+1, [[ins(f"s_xor_b32 s{sM}, s{sM}, {PHI}")]] + g2)
            else:
                g1 = self.dma_kv(("kv", j+3), f"s_add_u32 m0, s{sM}, 0", f"s_add_u32 m0, s{sM}, 4096")
                self.body(j, g1, tog=self.tog())
                g2 = self.dma_kv(("kv", j+4), f"s_add_u32 m0, s{sM}, 8192", f"s_add_u32 m0, s{sM}, 12288")
                g2[-1] = g2[-1] + [ins(f"s_xor_b32 s{sM}, s{sM}, {PHI}")]
                self.body(j+1, g2)
            p(f"s_sub_u32 s{sCnt}, s{sCnt}, 1"); p(f"s_cmp_lg_u32 s{sCnt}, 0"); p("s_cbranch_scc1 L_at")
            p.raw(f"@@LE at {k}")
        if look == 4:
            self.body(11, self.dma_kv_abs(("kv", 15), 3), tog=self.tog())
            self.body(12, [])
        else:
            self.body(11, self.dma_kv_abs(("kv", 14), 2), tog=self.tog())
            self.body(12, self.dma_kv_abs(("kv", 15), 3))
    def attention_tail(self, last):
        fuse = self.o.get("fuse")
        prep_here = (not last) if fuse else last
        if prep_here:
            W = self.wo_prep_groups(); h = 9 + 4*3
            self.body(13, self.dma_wo_last(), tog=self.tog())
            self.body(14, [], extra=W[:h])
            self.body(15, (self.w_tile(0, 1) + self.x_tile(0) + self.w_tile(1, 1)) if not last else [], tog=self.tog(), extra2=W[h:])
        elif not last:
            self.body(13, [], tog=self.tog())
            self.body(14, [])
            self.body(15, self.w_tile(0, 1) + self.x_tile(0) + self.w_tile(1, 1), tog=self.tog())
        else:
            self.body(13, [], tog=self.tog(), extra2=[[x] for x in self.k3_setup()])
            self.body(14, [], extra2=[self.poll_issue(f"v_mov_b32 VDST, s{sC1}")])
            self.body(15, [], tog=self.tog())
            self.poll_check(128)
    def wo_prep_groups(self):
        setup = [ins("v_and_b32 v33, 15, v0"), ins("v_lshrrev_b32 v34, 4, v0"), ins("v_lshrrev_b32 v35, 2, v33"), ins("v_and_b32 v33, 3, v33"),
                 ins("v_lshl_add_u32 v32, v34, 2, v35"), ins("v_lshlrev_b32 v32, 10, v32"), ins("v_lshl_add_u32 v32, v33, 4, v32"),
                 ins(f"s_lshl_b32 s88, s{sW}, 8"), ins("v_add_u32 v32, s88, v32")]
        G = [[x] for x in setup]
        mod = self.o['last_store_mod']
        for nt in range(8):
            u, par = nt >> 1, nt & 1
            d = 252
            G.append([ins(f"ds_read_b64_tr_b16 a[{d}:{d+1}], v32 offset:{64*u + 8*par}")])
            G.append([ins(f"ds_read_b64_tr_b16 a[{d+2}:{d+3}], v32 offset:{16384 + 64*u + 8*par}")])
            g = []
            if nt % 4 == 0: g.append(ins(f"s_add_u32 s{sT2}, s{sWTo}, {nt*1024}"))
            g.append(ins(f"buffer_store_dwordx4 a[{d}:{d+3}], v{VST}, s[{SWT}:{SWT+3}], s{sT2} offen offset:{(nt % 4)*1024} {mod}"))
            G.append(g)
        return G
    def dma_wo_last(self):
        G = []
        for half in range(2):
            g = [ins(f"s_add_u32 s{sT1}, s{sWOo}, {half*4096}"), ins(f"s_lshl_b32 s{sWoM}, s{sW}, 13"), ins(f"s_add_u32 m0, s{sWoM}, {half*4096}")]
            for n in range(4):
                g.append(ins(f"buffer_load_dwordx4 v{VST}, s[{SWO}:{SWO+3}], s{sT1} offen offset:{1024*n} nt lds", tag=("wo",)))
                G.append(g); g = []
        return G

    FLAG = 32768
    def softmax_check(self, item):
        p = self.p
        t = S(0, 0)
        for qt in range(6): p(f"v_accvgpr_read_b32 v{t+qt}, a{LA(qt)}")
        p(f"v_max3_f32 v{t+6}, v{t}, v{t+1}, v{t+2}"); p(f"v_min3_f32 v{t+7}, v{t}, v{t+1}, v{t+2}")
        p(f"v_max3_f32 v{t+6}, v{t+6}, v{t+3}, v{t+4}"); p(f"v_min3_f32 v{t+7}, v{t+7}, v{t+3}, v{t+4}")
        p(f"v_max_f32 v{t+6}, v{t+6}, v{t+5}"); p(f"v_min_f32 v{t+7}, v{t+7}, v{t+5}")
        p(f"v_cmp_nge_f32 vcc, {f32(2.0**24)}, v{t+6}")
        p("s_mov_b64 s[88:89], vcc")
        p(f"v_cmp_nle_f32 vcc, {f32(2.0**-24)}, v{t+7}")
        p("s_or_b64 s[88:89], s[88:89], vcc")
        p("s_cmp_lg_u64 s[88:89], 0"); p("s_cselect_b32 s88, 1, 0")
        p(f"v_mov_b32 v{t}, s88"); p(f"s_lshl_b32 s89, s{sW}, 2"); p(f"v_mov_b32 v{t+1}, s89")
        p(f"ds_write_b32 v{t+1}, v{t} offset:{self.FLAG}")
        p("s_waitcnt lgkmcnt(0)"); p("s_barrier")
        p(f"v_mov_b32 v{t+1}, 0")
        p(f"ds_read_b128 v[{t+4}:{t+7}], v{t+1} offset:{self.FLAG}")
        p(f"v_or_b32 v{t+4}, v{t+4}, v{t+5}"); p(f"v_or_b32 v{t+6}, v{t+6}, v{t+7}"); p(f"v_or_b32 v{t+4}, v{t+4}, v{t+6}")
        p(f"v_readfirstlane_b32 s88, v{t+4}")
        p("s_cmp_lg_u32 s88, 0")
        p("s_cbranch_scc1 L_FB")
        p.raw(f"L_OE{item}:")

    def fallback(self):
        q = K2(self.o); q.phase = "fb"; p = q.p
        M = LS
        def load_tile():
            p(f"s_mov_b32 s{sT2}, s{sTc}")
            q.emit_groups(q.dma_kv_abs(("fb",), 0))
            p("s_waitcnt vmcnt(0)"); p("s_barrier")
        def qk(qt):
            for kt in range(2):
                for ks in range(4):
                    p.add(mfma(S(0, kt), "v", KF(0, kt, ks), "a", Q(qt, ks), "a", None if ks == 0 else S(0, kt)))
        p.raw("L_FB:")
        p("s_waitcnt vmcnt(0) lgkmcnt(0)"); p("s_barrier")
        p(f"s_mov_b32 s{SKV+2}, {KV_BYTES}")
        for qt in range(6): p(f"v_mov_b32 v{M+qt}, 0xff800000")
        p(f"s_lshl_b32 s{sTc}, s{sItem}, 17"); p(f"s_mov_b32 s{sCnt}, 16")
        p.raw("L_FB1:")
        load_tile()
        for kt in range(2):
            for ks in range(4): p.add(q.rd_k(0, kt, ks))
        for qt in range(6):
            qk(qt)
            e = [S(0, 0)+r for r in range(4)] + [S(0, 1)+r for r in range(4)]
            for k in range(0, 8, 2): p(f"v_max3_f32 v{M+qt}, v{e[k]}, v{e[k+1]}, v{M+qt}")
        p("s_waitcnt lgkmcnt(0)"); p("s_barrier")
        p(f"s_sub_u32 s{sCnt}, s{sCnt}, 1"); p(f"s_cmp_lg_u32 s{sCnt}, 0"); p("s_cbranch_scc1 L_FB1")
        t = S(1, 0)
        for qt in range(6):
            m = M + qt
            p(f"v_mov_b32 v{t}, v{m}"); p(f"v_permlane32_swap_b32 v{t}, v{m}"); p(f"v_max_f32 v{m}, v{m}, v{t}")
            p(f"v_mov_b32 v{t}, v{m}"); p(f"v_permlane16_swap_b32 v{t}, v{m}"); p(f"v_max_f32 v{m}, v{m}, v{t}")
        for r in range(192): p(f"v_mov_b32 v{ACC+r}, 0")
        p(f"v_mov_b32 v{t}, 0")
        for r in range(24): p(f"v_accvgpr_write_b32 a{LA(0)+r}, v{t}")
        p(f"s_lshl_b32 s{sTc}, s{sItem}, 17"); p(f"s_mov_b32 s{sCnt}, 16")
        p("s_nop 7")
        p.raw("L_FB2:")
        load_tile()
        for kt in range(2):
            for ks in range(4): p.add(q.rd_k(0, kt, ks))
        for dt in range(8):
            p.add(q.rd_v(0, dt, 0)); p.add(q.rd_v(0, dt, 1))
        for qt in range(6):
            qk(qt)
            e = [S(0, 0)+r for r in range(4)] + [S(0, 1)+r for r in range(4)]
            for k in range(8): p(f"v_sub_f32 v{e[k]}, v{e[k]}, v{M+qt}")
            for k in range(8): p(f"v_exp_f32 v{e[k]}, v{e[k]}")
            for k in range(0, 8, 2): p(f"v_cvt_pk_bf16_f32 v{P(0)+k//2}, v{e[k]}, v{e[k+1]}")
            for dt in range(8): p.add(mfma(acc(dt, qt), "v", VF(0, dt), "a", P(0), "v", acc(dt, qt)))
            p.add(mfma(LA(qt), "a", ONES, "a", P(0), "v", LA(qt)))
        p("s_waitcnt lgkmcnt(0)"); p("s_nop 7"); p("s_nop 7"); p("s_barrier")
        p(f"s_sub_u32 s{sCnt}, s{sCnt}, 1"); p(f"s_cmp_lg_u32 s{sCnt}, 0"); p("s_cbranch_scc1 L_FB2")
        p("s_nop 7"); p("s_nop 7")
        p(f"s_cmp_eq_u32 s{sItem}, 0"); p("s_cbranch_scc1 L_OE0")
        if self.o.get("fuse"):
            for x in self.k3_setup(): p.add(x)
        p("s_branch L_OE1")
        L, st = finalize(p.L)
        return L

    def signal(self, offreg_txt, uid=None):
        uid = uid or self.uid()
        L = [ins(f"s_cmp_lg_u32 s{sW}, 0"), ins(f"s_cbranch_scc1 L_sig{uid}"),
             ins(f"v_mov_b32 v{VPOLL+1}, 1"), ins(offreg_txt), ins("s_mov_b64 exec, 1"),
             ins(f"buffer_atomic_add v{VPOLL+1}, v{VPOLL+2}, s[{SFL}:{SFL+3}], 0 offen sc1"),
             ins("s_mov_b64 exec, -1")]
        for x in L: x.meta["alt"] = True
        L.append(I(f"L_sig{uid}:", "label"))
        return L
    def uid(self):
        self._uid = getattr(self, "_uid", 0) + 1
        return self._uid
    def poll_issue(self, off_txt):
        return [ins(off_txt.replace("VDST", f"v{VPOLL+3}")), ins(f"buffer_load_dword v{VPOLL}, v{VPOLL+3}, s[{SFL}:{SFL+3}], 0 offen sc1")]
    def poll_check(self, target):
        p = self.p
        uid = self.uid()
        p(f"v_readfirstlane_b32 s88, v{VPOLL}")
        p(f"s_cmp_ge_u32 s88, {target}"); p(f"s_cbranch_scc1 L_ok{uid}")
        L = [f"s_mov_b32 s89, 0x40000", f"L_spin{uid}:", "s_sleep 2",
             f"buffer_load_dword v{VPOLL}, v{VPOLL+3}, s[{SFL}:{SFL+3}], 0 offen sc1", "s_waitcnt vmcnt(0)",
             f"v_readfirstlane_b32 s88, v{VPOLL}", "s_nop 3", "s_sub_u32 s89, s89, 1", "s_cmp_eq_u32 s89, 0", f"s_cbranch_scc1 L_ok{uid}",
             f"s_cmp_lt_u32 s88, {target}", f"s_cbranch_scc1 L_spin{uid}"]
        for t in L: p.add(I(t, "label", verbatim=True))
        p.raw(f"L_ok{uid}:")

    def k3_setup(self):
        L = []
        A = lambda t: L.append(ins(t))
        A(f"s_and_b32 s88, s{sHG}, 3"); A(f"s_lshr_b32 s89, s{sHG}, 2")
        A(f"s_lshl_b32 s90, s{sP}, 2"); A("s_add_u32 s90, s90, s88"); A("s_lshl_b32 s90, s90, 7"); A(f"s_lshl_b32 s91, s{sW}, 5"); A("s_add_u32 s90, s90, s91"); A("s_lshl_b32 s90, s90, 13")
        for pr in range(4):
            A(f"s_add_u32 s91, s{sW}, {pr}"); A("s_and_b32 s91, s91, 3"); A("s_lshl_b32 s91, s91, 11"); A(f"s_add_u32 s{kA+pr}, s90, s91")
        A(f"s_lshl_b32 s90, s{sP}, 4"); A(f"s_add_u32 s90, s90, s{sB}"); A("s_lshl_b32 s90, s90, 1"); A("s_add_u32 s90, s90, s89"); A("s_lshl_b32 s90, s90, 7")
        A(f"s_lshl_b32 s91, s{sW}, 5"); A("s_add_u32 s90, s90, s91"); A(f"s_mul_i32 s{kBo}, s90, 6144")
        A(f"s_mul_i32 s90, s{sB}, 192"); A("s_mul_i32 s91, s89, 96"); A("s_add_u32 s90, s90, s91"); A("s_lshl_b32 s90, s90, 11")
        A(f"s_lshl_b32 s91, s{sP}, 10"); A("s_add_u32 s90, s90, s91"); A("s_lshl_b32 s91, s88, 8"); A("s_add_u32 s90, s90, s91")
        A(f"s_lshl_b32 s91, s{sW}, 6"); A(f"s_add_u32 s{kOut}, s90, s91")
        A(f"s_mov_b32 s{SX}, s68"); A(f"s_mov_b32 s{SX+1}, s69"); A(f"s_mov_b32 s{SX+2}, {OUT_BYTES}"); A(f"s_mov_b32 s{SX+3}, 0x00020000")
        A(f"v_add_u32 v{VB4}, 4096, v{VST}")
        return L
    def k3_loads(self, b, o):
        m = self.o.get("k3_ld", "sc1")
        G = []
        G.append([ins(f"s_add_u32 s{kT0}, s{kBo}, {o*6144}"),
                  ins(f"buffer_load_dwordx4 {rng('a', BF(b, 0), 4)}, v{VST}, s[{SO}:{SO+3}], s{kT0} offen {m}")])
        for qt in range(1, 4):
            G.append([ins(f"buffer_load_dwordx4 {rng('a', BF(b, qt), 4)}, v{VST}, s[{SO}:{SO+3}], s{kT0} offen offset:{1024*qt} {m}")])
        G.append([ins(f"buffer_load_dwordx4 {rng('a', BF(b, 4), 4)}, v{VB4}, s[{SO}:{SO+3}], s{kT0} offen {m}")])
        G.append([ins(f"buffer_load_dwordx4 {rng('a', BF(b, 5), 4)}, v{VB4}, s[{SO}:{SO+3}], s{kT0} offen offset:1024 {m}")])
        for pr in range(4):
            t = kT1 if pr % 2 == 0 else kT0
            G.append([ins(f"s_add_u32 s{t}, s{kA+pr}, {o*8192}"),
                      ins(f"buffer_load_dwordx4 {rng('a', AF(b, 2*pr), 4)}, v{VST}, s[{SWT}:{SWT+3}], s{t} offen {m}")])
            G.append([ins(f"buffer_load_dwordx4 {rng('a', AF(b, 2*pr+1), 4)}, v{VST}, s[{SWT}:{SWT+3}], s{t} offen offset:1024 {m}")])
        return G
    def k3_adv(self, steps):
        return [ins(f"s_add_u32 s{kA+pr}, s{kA+pr}, {(steps*8192) & 0xffffffff}") for pr in range(4)] + [ins(f"s_add_u32 s{kBo}, s{kBo}, {(steps*6144) & 0xffffffff}")]
    def k3_step(self, t, G, extra=(), dst=None):
        p = self.p
        dst = dst if dst is not None else []
        b = t % 4
        n = 0
        extra = list(extra)
        for nu in range(8):
            for qt in range(6):
                p.add(mfma(oacc(nu, qt), "v", AF(b, nu), "a", BF(b, qt), "a", None if t == 0 else oacc(nu, qt)))
                if n % 3 == 1 and n//3 < len(G):
                    for x in G[n//3]: p.add(x)
                if n == 44:
                    for x in extra: p.add(x)
                if n in (8, 17, 26, 35, 43) and dst:
                    for x in dst.pop(0): p.add(x)
                n += 1
    def k3_main(self):
        p = self.p
        D = self.deferred
        npeel = 0
        if D:
            assert len(D) == 18
            self.k3_step(0, self.k3_loads(3, 3), extra=self.k3_adv(8), dst=D)
            for t in range(1, 9):
                i = (t-1) % 4
                self.k3_step(t, self.k3_loads((t+3) % 4, i), extra=self.k3_adv(8) if i == 3 else [], dst=D)
                if t == self.o.get("sig2", 6):
                    p.wait_tag(("o",)); p("s_barrier")
                    for x in self.signal(f"v_mov_b32 v{VPOLL+2}, s{sC2o}", uid="g2"): p.add(x)
            assert not D
            for i in range(4):
                t = 9 + i
                self.k3_step(t, self.k3_loads((t+3) % 4, i), extra=self.k3_adv(8) if i == 3 else [])
                if i == 2:
                    for x in self.poll_issue(f"v_mov_b32 VDST, s{sC2o}"): p.add(x)
        else:
            self.k3_step(0, self.k3_loads(3, 3), extra=self.k3_adv(8))
            p(f"s_mov_b32 s{kCnt}, 3")
            for k in range(3):
                p.raw(f"@@LB k3a {k}")
                for i in range(4):
                    t = 1 + 4*k + i
                    ex = self.k3_adv(8) if i == 3 else []
                    self.k3_step(t, self.k3_loads((t+3) % 4, i), extra=ex)
                    if i == 1:
                        uid = "k3s"
                        p(f"s_cmp_lg_u32 s{kCnt}, 3"); p(f"s_cbranch_scc1 L_{uid}")
                        p.wait_tag(("o",)); p("s_barrier")
                        for x in self.signal(f"v_mov_b32 v{VPOLL+2}, s{sC2o}", uid="g2"): p.add(x)
                        p.raw(f"L_{uid}:")
                    if i == 2:
                        for x in self.poll_issue(f"v_mov_b32 VDST, s{sC2o}"): p.add(x)
                p(f"s_sub_u32 s{kCnt}, s{kCnt}, 1"); p(f"s_cmp_lg_u32 s{kCnt}, 0"); p("s_cbranch_scc1 L_k3a")
                p.raw(f"@@LE k3a {k}")
        self.stamp()
        for x in self.k3_adv(4 - 32): p.add(x)
        self.poll_check(8)
        for i in range(4):
            t = 13 + i
            self.k3_step(t, self.k3_loads((t+3) % 4, i), extra=self.k3_adv(8) if i == 3 else [])
        p(f"s_mov_b32 s{kCnt}, 3")
        for k in range(3):
            p.raw(f"@@LB k3b {k}")
            for i in range(4):
                t = 17 + 4*k + i
                self.k3_step(t, self.k3_loads((t+3) % 4, i), extra=self.k3_adv(8) if i == 3 else [])
            p(f"s_sub_u32 s{kCnt}, s{kCnt}, 1"); p(f"s_cmp_lg_u32 s{kCnt}, 0"); p("s_cbranch_scc1 L_k3b")
            p.raw(f"@@LE k3b {k}")
        for t in (29, 30, 31): self.k3_step(t, [])
        self.stamp()
        for pr, v in ((1, 7), (2, 2), (3, 3)):
            p(f"s_add_u32 s88, s{sW}, {pr}"); p("s_and_b32 s88, s88, 3"); p("s_mul_i32 s88, s88, 36864"); p(f"s_add_u32 s88, s88, {(pr-1)*12288}")
            p(f"v_add_u32 v{v}, s88, v{VST}")
        p(f"s_mul_i32 s88, s{sW}, 36864"); p(f"v_add_u32 v8, s88, v{VST}")
        for pr, v in ((1, 7), (2, 2), (3, 3)):
            for par in range(2):
                for qt in range(6):
                    a = oacc(2*pr + par, qt)
                    p(f"ds_write_b128 v{v}, v[{a}:{a+3}] offset:{(par*6 + qt)*1024}")
        p("s_waitcnt lgkmcnt(0)")
        p("s_barrier")
        for sl in range(3):
            for par in range(2):
                for qt in range(6):
                    a = oacc(2*(sl+1) + par, qt)
                    p(f"ds_read_b128 v[{a}:{a+3}], v8 offset:{sl*12288 + (par*6 + qt)*1024}")
        p("v_and_b32 v12, 15, v0"); p("v_lshrrev_b32 v13, 4, v0"); p("v_lshlrev_b32 v12, 11, v12"); p("v_lshl_add_u32 v9, v13, 4, v12")
        for qt in range(6):
            for par in range(2):
                a = oacc(par, qt)
                for sl in range(3):
                    s_ = oacc(2*(sl+1) + par, qt)
                    for r in range(4): p(f"v_add_f32 v{a+r}, v{a+r}, v{s_+r}")
            a0, a1 = oacc(0, qt), oacc(1, qt)
            t0 = 16 + (qt % 4)*4
            p(f"v_cvt_pk_bf16_f32 v{t0}, v{a0}, v{a0+1}"); p(f"v_cvt_pk_bf16_f32 v{t0+1}, v{a0+2}, v{a0+3}")
            p(f"v_cvt_pk_bf16_f32 v{t0+2}, v{a1}, v{a1+1}"); p(f"v_cvt_pk_bf16_f32 v{t0+3}, v{a1+2}, v{a1+3}")
            p(f"s_add_u32 s{kT0}, s{kOut}, {qt*16*2048}")
            p(f"buffer_store_dwordx4 v[{t0}:{t0+3}], v9, s[{SX}:{SX+3}], s{kT0} offen {self.o.get('out_mod', '')}")

    def o_epilogue(self, last):
        p = self.p
        fuse_last = last and self.o.get("fuse")
        pre = []
        if fuse_last: pre = self.k3_loads(0, 0) + self.k3_loads(1, 1) + self.k3_loads(2, 2)
        defer = fuse_last and self.o.get("defer", True)
        self.deferred = []
        for qt in range(6): p(f"v_accvgpr_read_b32 v{LS+qt}, a{LA(qt)}")
        for qt in range(6): p(f"v_rcp_f32 v{LS+qt}, v{LS+qt}")
        vstage = [8, 12, 16, 20, 24, 28, 38, 42, 46, 50]
        for qt in range(6):
            for ks in range(4):
                m = qt*4 + ks
                a0, a1 = acc(2*ks, qt), acc(2*ks+1, qt)
                l = LS + qt
                if self.o.get("pk", True):
                    lp = l & ~1; sel = "op_sel_hi:[1,0]" if l % 2 == 0 else "op_sel:[0,1] op_sel_hi:[1,1]"
                    for a in (a0, a0+2, a1, a1+2): p(f"v_pk_mul_f32 v[{a}:{a+1}], v[{a}:{a+1}], v[{lp}:{lp+1}] {sel}")
                else:
                    for r in range(4): p(f"v_mul_f32 v{a0+r}, v{l}, v{a0+r}")
                    for r in range(4): p(f"v_mul_f32 v{a1+r}, v{l}, v{a1+r}")
                if defer: t0 = (54 + (m % 2)*4) if m < 14 else vstage[m - 14]
                else: t0 = SB + ((ks + 4*qt) % 6)*4
                p(f"v_cvt_pk_bf16_f32 v{t0}, v{a0}, v{a0+1}")
                p(f"v_cvt_pk_bf16_f32 v{t0+1}, v{a0+2}, v{a0+3}")
                p(f"v_cvt_pk_bf16_f32 v{t0+2}, v{a1}, v{a1+1}")
                p(f"v_cvt_pk_bf16_f32 v{t0+3}, v{a1+2}, v{a1+3}")
                n = ks*6 + qt
                mod = self.o['last_store_mod']
                if last:
                    for _ in range(2):
                        if pre:
                            for x in pre.pop(0): p.add(x)
                    if not defer or m < 6:
                        p(f"s_add_u32 s{sT0}, s{sOo}, {n*1024}")
                        p(f"buffer_store_dwordx4 v[{t0}:{t0+3}], v{VST}, s[{SO}:{SO+3}], s{sT0} offen {mod}", tag=("o",))
                    else:
                        if m < 14:
                            d = 224 + (m - 6)*4
                            for r in range(4): p(f"v_accvgpr_write_b32 a{d+r}, v{t0+r}")
                            src = f"a[{d}:{d+3}]"
                        else: src = f"v[{t0}:{t0+3}]"
                        self.deferred.append([ins(f"s_add_u32 s{sT2}, s{sOo}, {n*1024}"),
                                              ins(f"buffer_store_dwordx4 {src}, v{VST}, s[{SO}:{SO+3}], s{sT2} offen {mod}", tag=("o",))])
                else:
                    for r in range(4): p(f"v_accvgpr_write_b32 a{OS(n)+r}, v{t0+r}")

    def final(self):
        p = self.p
        p.wait_tag(("wo",))
        p("s_barrier")
        p("v_and_b32 v8, 15, v0"); p("v_lshrrev_b32 v2, 4, v0"); p("v_lshrrev_b32 v3, 2, v8"); p("v_and_b32 v7, 3, v8")
        p("v_lshl_add_u32 v6, v2, 2, v3"); p("v_lshlrev_b32 v6, 10, v6"); p("v_lshl_add_u32 v6, v7, 4, v6")
        p(f"s_lshl_b32 s88, s{sW}, 8"); p("v_add_u32 v6, s88, v6")
        for nt in range(8):
            u, par = nt >> 1, nt & 1
            d = 32 + nt*4
            p(f"ds_read_b64_tr_b16 v[{d}:{d+1}], v6 offset:{64*u + 8*par}")
            p(f"ds_read_b64_tr_b16 v[{d+2}:{d+3}], v6 offset:{16384 + 64*u + 8*par}")
        for nt in range(8):
            d = 32 + nt*4
            if nt % 4 == 0: p(f"s_add_u32 s{sT1}, s{sWTo}, {nt*1024}")
            p(f"buffer_store_dwordx4 v[{d}:{d+3}], v{VST}, s[{SWT}:{SWT+3}], s{sT1} offen offset:{(nt % 4)*1024} {self.o['last_store_mod']}")

    def build(self):
        p = self.p
        assert self.o["msum"]
        self.prologue()
        if self.o["timing"]: p("s_mov_b32 s99, 0")
        self.stamp()
        p(f"s_mov_b32 s{SO+2}, {0 if self.o.get('stA') else O_BYTES}")
        self.emit_groups(self.w_tile(0, 0) + self.x_tile(0) + self.w_tile(1, 0))
        self.prologue2()
        for item in range(2):
            last = item == 1
            p.raw("@@SB A"); self.qproj_a(); p.raw("@@SE A")
            p.raw(f"@@SB B{item}"); self.qproj_b(last); self.stamp(); p.raw(f"@@SE B{item}")
            p.raw("@@SB C"); self.attention_shared(); p.raw("@@SE C")
            p.raw(f"@@SB D{item}")
            self.attention_tail(last)
            self.stamp()
            if self.o.get("guard", True): self.softmax_check(item)
            self.o_epilogue(last)
            self.stamp()
            if not last:
                p(f"s_add_u32 s{sWo}, s{sWo}, 256"); p(f"s_add_u32 s{sOo}, s{sOo}, {4*6144}")
                p(f"s_mov_b32 s{sItem}, 1"); p(f"s_mov_b32 s{SO+2}, {O_BYTES}")
            else:
                if self.o.get("fuse"): self.k3_main()
                self.stamp()
                p("s_waitcnt vmcnt(0)")
                self.stamp()
                self.stamp_flush()
                p("s_waitcnt vmcnt(0)")
            p.raw(f"@@SE D{item}")
        L, st = finalize(p.L)
        L = fold(L)
        segs, top = segments(L)
        out = [i for k, i in top if k == "ins"]
        lab = lambda t: I(t, "label")
        br = lambda tgt: [ins(f"s_cmp_eq_u32 s{sItem}, 1"), ins(f"s_cbranch_scc1 {tgt}")]
        out += [lab("L_A:")] + segs["A"] + br("L_B1") + segs["B0"] + [lab("L_C:")] + segs["C"] + br("L_D1") + segs["D0"] + [ins("s_branch L_A")]
        out += [lab("L_B1:")] + segs["B1"] + [ins("s_branch L_C")]
        out += [lab("L_D1:")] + segs["D1"] + [lab("K2_END:"), ins("s_endpgm")]
        if self.o.get("guard", True): out += self.fallback()
        return out, st

if __name__ == "__main__":
    k = K2(); L, st = k.build()
    print(st, len(L))
```

```python
from dsl import *
import struct

def f32(x): return "0x%08x" % struct.unpack("<I", struct.pack("<f", x))[0]

NB, SQ, DM, H, SK, DH = 16, 192, 512, 32, 512, 128
X_BYTES = NB*SQ*DM*2
KV_BYTES = NB*H*SK*DH*2
W_BYTES = DM*H*DH*2
O_BYTES = 2*NB*2*128*6*1024
WOT_OFF = O_BYTES
WOT_BYTES = 2*4*128*8*1024
OUT_BYTES = NB*SQ*1024*2

PHI = 65536
WSLOT = [65536, 81920, 98304]
XA, XB = 114688, 139264
DROP = 0x30000

ACC = 64
def acc(T, qt): return ACC + (T*6 + qt)*4
SB = 8
def S(buf, kt): return SB + buf*8 + kt*4
PB = 24
def P(buf): return PB + buf*4
LS = 32
KA = 38
VA = 42
DV = 50
WA = 54
XAD = 58
WD = [60, 61, 2, 3]
XD = [62, 63, 6, 7]
VST = 4
def Q(qt, ks): return (qt*4 + ks)*4
def OS(n): return n*4
def KF(buf, kt, ks): return 96 + buf*32 + (kt*4 + ks)*4
def VF(buf, dt): return 160 + buf*32 + dt*4
def WF(T): return 96 + T*4
def XF(buf, qt): return 128 + buf*24 + qt*4
ONES = 224
def LA(qt): return 228 + qt*4
SX, SW, SKV, SO, SWO, SWT = 4, 8, 12, 16, 20, 24
sW, sHP, sRH, sP, sB, sHG = 28, 29, 30, 31, 32, 33
sKVo, sKVl, sWo, sWl, sXo, sXl, sOo = 34, 35, 36, 37, 38, 39, 40
sT0, sT1, sC = 41, 42, 43
sWOo, sWTo = 44, 45
sItem, sCnt = 46, 47
sTile, sM, sTh1, sTh2, sWarmW, sWarmX, sWoM, sDrop, sTc, sRot = 74, 75, 76, 77, 78, 79, 80, 81, 84, 85
sT2 = 83
sC2 = 86
sWR, sXR = 78, 79

SFL = 92
kA, kBo, kT0, kT1, kOut, kCnt = 74, 78, 80, 81, 79, 47
sC1, sC2o = 97, 96
def oacc(nu, qt): return ACC + (nu*6 + qt)*4
def AF(buf, nu): return buf*56 + nu*4
def BF(buf, qt): return buf*56 + 32 + qt*4
VB4 = 6
VBQ = 58
kRho, kSig = 82, 85
sOreal = 98
sSz1, sSz2 = 76, 77
VPOLL = 34
MF = "v_mfma_f32_16x16x32_bf16"
def mfma(d, dk, a, ak, b, bk, c=None):
    cs = "0" if c is None else rng(dk, c, 4)
    return ins(f"{MF} {rng(dk,d,4)}, {rng(ak,a,4)}, {rng(bk,b,4)}, {cs}")

class K2:
    def __init__(self, opts=None):
        self.o = dict(nt="nt", w_mod="", x_mod="", store_mod="sc1", last_store_mod="sc1", timing=False, msum=True, warm=False, qrot=True, stA=True, stpat=3, credit=4, out_mod="sc1", drop=[])
        if opts: self.o.update(opts)
        self.p = Prog()
        self.phase = ""

    def tile_addr(self):
        if not self.o.get("rot"):
            return [ins(f"s_add_u32 s{sTile}, s{sKVo}, s{sTc}"), ins(f"s_add_u32 s{sTc}, s{sTc}, 8192")]
        return [ins(f"s_add_u32 s{sTile}, s{sTc}, s{sRot}"), ins(f"s_and_b32 s{sTile}, s{sTile}, 0x1ffff"),
                ins(f"s_and_b32 s{sT0}, s{sTc}, 0x20000"), ins(f"s_add_u32 s{sTile}, s{sTile}, s{sT0}"),
                ins(f"s_add_u32 s{sTile}, s{sTile}, s{sKVo}"), ins(f"s_add_u32 s{sTc}, s{sTc}, 8192")]
    def dma_kv(self, tag, m0a, m0b, pre=()):
        nt = self.o['nt']
        G = []
        g = list(pre) + self.tile_addr() + [ins(m0a)]
        for k in range(4):
            g.append(ins(f"buffer_load_dwordx4 v{DV+k}, s[{SKV}:{SKV+3}], s{sTile} offen offset:{1024*k} {nt} lds", tag=tag))
            G.append(g); g = []
        g = [ins(f"s_add_u32 s{sT0}, s{sTile}, 4096"), ins(m0b)]
        for k in range(4):
            g.append(ins(f"buffer_load_dwordx4 v{DV+k}, s[{SKV}:{SKV+3}], s{sT0} offen offset:{1024*k} {nt} lds", tag=tag))
            G.append(g); g = []
        return G
    def dma_kv_abs(self, tag, slot):
        o = (slot >> 1)*PHI + (slot & 1)*8192
        return self.dma_kv(tag, f"s_add_u32 m0, s{sKVl}, {o}", f"s_add_u32 m0, s{sKVl}, {o + 4096}")
    def kv_pieces(self, tile, a, b):
        G = self.dma_kv_abs(("kv", tile), tile % 4)
        out = G[a:b]
        if a not in (0, 4):
            slot = tile % 4
            o = (slot >> 1)*PHI + (slot & 1)*8192 + (4096 if a >= 4 else 0)
            out[0] = [ins(f"s_add_u32 m0, s{sKVl}, {o}")] + out[0]
        return out
    def dma_w(self, tag, base_reg, goff, m0txt, rot=None):
        G = []
        if rot is None: g = [ins(f"s_add_u32 s{sT1}, s{base_reg}, {goff}")]
        else:
            g = [ins(f"s_add_u32 s{sT1}, s{sWR}, {rot*262144}"), ins(f"s_and_b32 s{sT1}, s{sT1}, 0x3fffff"), ins(f"s_add_u32 s{sT1}, s{sT1}, s{base_reg}")]
            if goff: g.append(ins(f"s_add_u32 s{sT1}, s{sT1}, {goff}"))
        g.append(ins(m0txt))
        for n in range(4):
            g.append(ins(f"buffer_load_dwordx4 v{WD[n]}, s[{SW}:{SW+3}], s{sT1} offen offset:{1024*n} {self.o['w_mod']} lds", tag=tag))
            G.append(g); g = []
        return G
    def x_soff(self, base_reg, tt):
        if not self.o.get("qrot"): return [ins(f"s_add_u32 s{sT1}, s{base_reg}, {tt*128}")]
        return [ins(f"s_add_u32 s{sT1}, s{sXR}, {tt*128}"), ins(f"s_and_b32 s{sT1}, s{sT1}, 1023"), ins(f"s_add_u32 s{sT1}, s{sT1}, s{base_reg}")]
    def dma_x(self, tag, base_reg, tt, m0a, m0b):
        G = []
        m = self.o['x_mod']
        g = self.x_soff(base_reg, tt) + [ins(m0a)]
        for n in range(4):
            g.append(ins(f"buffer_load_dwordx4 v{XD[n]}, s[{SX}:{SX+3}], s{sT1} offen offset:{1024*n} {m} lds", tag=tag))
            G.append(g); g = []
        g = [ins(f"s_add_u32 s{sT1}, s{sT1}, {4*8192}"), ins(m0b)]
        for n in range(2):
            g.append(ins(f"buffer_load_dwordx4 v{XD[n]}, s[{SX}:{SX+3}], s{sT1} offen offset:{1024*n} {m} lds", tag=tag))
            G.append(g); g = []
        return G
    def w_tile(self, t, nxt=0):
        m0 = f"s_add_u32 m0, s{sWl}, {WSLOT[t % 3]}"
        if self.o.get("qrot"): return self.dma_w(("w", t), sWo, nxt*256, m0, rot=t)
        return self.dma_w(("w", t), sWo, nxt*256 + t*262144, m0)
    def x_tile(self, tt):
        sl = XB if tt % 2 == 0 else XA
        return self.dma_x(("x", tt), sXo, tt, f"s_add_u32 m0, s{sXl}, {sl}", f"s_add_u32 m0, s{sXl}, {sl + 4096}")
    def warmup(self, nxt):
        if not self.o["warm"]: return []
        G = []
        def ld(v, srd, soff, off, mod):
            i = ins(f"buffer_load_dwordx4 a[252:255], v{v}, s[{srd}:{srd+3}], s{soff} offen offset:{off} {mod}", tag=("warm",))
            i.kind = "dma"; i.wr = set(); i.rd.discard("m0")
            return i
        for k in range(2):
            g = [ins(f"s_add_u32 s{sT1}, s{sWarmW}, {nxt*256 + k*262144}")]
            for n in range(4):
                g.append(ld(WD[n], SW, sT1, 1024*n, self.o['w_mod'])); G.append(g); g = []
        if nxt == 0 or self.o.get("warmx1", True):
            for k in range(2):
                g = [ins(f"s_add_u32 s{sT1}, s{sWarmX}, {k*128}")]
                for n in range(4):
                    g.append(ld(XD[n], SX, sT1, 1024*n, self.o['x_mod'])); G.append(g); g = []
                g = [ins(f"s_add_u32 s{sT1}, s{sT1}, {4*8192}")]
                for n in range(2):
                    g.append(ld(XD[n], SX, sT1, 1024*n, self.o['x_mod'])); G.append(g); g = []
        return G
    def next_item_prefetch(self, nxt=1):
        return self.w_tile(0, nxt) + self.x_tile(0) + self.w_tile(1, nxt) + self.w_tile(2, nxt) + self.x_tile(1)
    def dma_wo(self):
        G = []
        for half in range(2):
            g = [ins(f"s_add_u32 s{sT1}, s{sWOo}, {half*4096}"), ins(f"s_add_u32 m0, s{sWoM}, {half*4096}")]
            for n in range(4):
                g.append(ins(f"buffer_load_dwordx4 v{VST}, s[{SWO}:{SWO+3}], s{sT1} offen offset:{1024*n} nt lds", tag=("wo",)))
                G.append(g); g = []
        return G
    def o_store(self, n, mod, prev, force=False):
        g = []
        if n % 4 == 0 or force: g.append(ins(f"s_add_u32 s{sT2}, s{sOo}, {((n & ~3)*1024 - (4*6144 if prev else 0)) & 0xffffffff}"))
        g.append(ins(f"buffer_store_dwordx4 {rng('a', OS(n), 4)}, v{VST}, s[{SO}:{SO+3}], s{sT2} offen offset:{(n % 4)*1024} {mod}", tag=("o",)))
        return g
    def rd_k(self, par, kt, ks):
        return ins(f"ds_read_b128 {rng('a', KF(par, kt, ks), 4)}, v{KA+ks} offset:{par*8192 + kt*4096}")
    def rd_v(self, par, dt, kt):
        return ins(f"ds_read_b64_tr_b16 {rng('a', VF(par, dt) + 2*kt, 2)}, v{VA+dt} offset:{par*8192 + kt*4096}")
    def rd_w(self, t, T, h2):
        ks, u = T >> 1, T & 1
        return ins(f"ds_read_b64_tr_b16 {rng('a', WF(T) + 2*h2, 2)}, v{WA+ks} offset:{(t % 3)*16384 + h2*2048 + 8*u}")
    def rd_x(self, t, qt):
        tt = t >> 1
        return ins(f"ds_read_b128 {rng('a', XF(t % 2, qt), 4)}, v{XAD + (t & 1)} offset:{(24576 if tt % 2 == 0 else 0) + qt*2048}")

    def prologue(self):
        p = self.p
        if self.o.get("entry"): p("s_memrealtime s[100:101]")
        p("s_cmp_ge_u32 s2, 256")
        p("s_cbranch_scc1 K2_END")
        p("s_load_dwordx16 s[48:63], s[0:1], 0")
        p("s_load_dwordx8 s[64:71], s[0:1], 64")
        p("s_load_dwordx2 s[72:73], s[0:1], 96")
        p(f"v_lshrrev_b32 v1, 6, v0")
        p(f"v_and_b32 v0, 63, v0")
        p(f"v_readfirstlane_b32 s{sW}, v1")
        p("s_and_b32 s86, s2, 7")
        p("s_lshr_b32 s87, s2, 3")
        p(f"s_lshr_b32 s{sP}, s86, 2")
        p("s_and_b32 s88, s86, 1"); p("s_lshl_b32 s88, s88, 3"); p("s_and_b32 s82, s87, 7")
        p(f"s_add_u32 s{sB}, s88, s82")
        p("s_lshr_b32 s88, s86, 1"); p("s_and_b32 s88, s88, 1"); p("s_lshl_b32 s88, s88, 2"); p("s_lshr_b32 s83, s87, 3")
        p(f"s_add_u32 s{sHG}, s88, s83")
        p(f"s_and_b32 s{sHP}, s{sW}, 1")
        p(f"s_lshr_b32 s{sRH}, s{sW}, 1")
        p("s_waitcnt lgkmcnt(0)")
        p(f"s_cmp_eq_u32 s{sP}, 0")
        p(f"s_cselect_b32 s{SX}, s48, s58"); p(f"s_cselect_b32 s{SX+1}, s49, s59")
        p(f"s_cselect_b32 s{SW}, s54, s64"); p(f"s_cselect_b32 s{SW+1}, s55, s65")
        p(f"s_cselect_b32 s{SWO}, s56, s66"); p(f"s_cselect_b32 s{SWO+1}, s57, s67")
        p(f"s_cselect_b32 s90, s50, s60"); p(f"s_cselect_b32 s91, s51, s61")
        p(f"s_cselect_b32 s92, s52, s62"); p(f"s_cselect_b32 s93, s53, s63")
        p(f"s_cmp_eq_u32 s{sRH}, 0")
        p(f"s_cselect_b32 s{SKV}, s90, s92"); p(f"s_cselect_b32 s{SKV+1}, s91, s93")
        p(f"s_cselect_b32 s94, 64, 128"); p(f"s_cselect_b32 s95, 128, 0"); p("s_mov_b32 s96, 128"); p(f"s_cselect_b32 s96, 192, s96")
        p(f"s_cselect_b32 s97, 0, 1")
        p(f"s_cselect_b32 s{sKVl}, 0, 32768")
        for r, n in ((SX, X_BYTES), (SW, W_BYTES), (SWO, W_BYTES), (SKV, KV_BYTES)):
            p(f"s_mov_b32 s{r+2}, {n}"); p(f"s_mov_b32 s{r+3}, 0x00020000")
        p(f"s_mov_b32 s{SO}, s72"); p(f"s_mov_b32 s{SO+1}, s73"); p(f"s_mov_b32 s{SO+2}, 0"); p(f"s_mov_b32 s{SO+3}, 0x00020000")
        p(f"s_add_u32 s{SWT}, s72, {WOT_OFF}"); p(f"s_addc_u32 s{SWT+1}, s73, 0"); p(f"s_mov_b32 s{SWT+2}, {WOT_BYTES}"); p(f"s_mov_b32 s{SWT+3}, 0x00020000")
        p(f"s_lshl_b32 s88, s{sB}, 5"); p(f"s_lshl_b32 s89, s{sHG}, 2"); p("s_add_u32 s88, s88, s89"); p(f"s_lshl_b32 s89, s{sHP}, 1"); p("s_add_u32 s88, s88, s89")
        p(f"s_lshl_b32 s{sKVo}, s88, 17")
        p(f"s_lshl_b32 s89, s{sHP}, 14"); p(f"s_add_u32 s{sKVl}, s{sKVl}, s89")
        p(f"s_lshl_b32 s88, s{sW}, 16"); p(f"s_lshl_b32 s89, s{sHG}, 10"); p(f"s_add_u32 s{sWo}, s88, s89")
        p(f"s_lshl_b32 s{sWl}, s{sW}, 12")
        p(f"s_lshl_b32 s88, s82, 19"); p(f"s_add_u32 s{sWarmW}, s{sWo}, s88")
        p(f"s_mul_i32 s88, s{sB}, 196608"); p(f"s_mul_i32 s89, s{sW}, 49152"); p(f"s_add_u32 s{sXo}, s88, s89")
        p(f"s_mul_i32 s{sXl}, s{sW}, 6144")
        p(f"s_lshl_b32 s88, s83, 8"); p(f"s_add_u32 s{sWarmX}, s{sXo}, s88")
        if self.o.get("qrot"):
            assert not self.o["warm"]
            p("s_lshl_b32 s88, s83, 1"); p("s_add_u32 s88, s88, s82"); p("s_and_b32 s88, s88, 7")
            p(f"s_lshl_b32 s{sWR}, s88, 19"); p(f"s_lshl_b32 s{sXR}, s88, 7")
        p(f"s_mov_b32 s{sDrop}, {DROP}")
        p("s_mul_i32 s88, s2, 5"); p("s_lshr_b32 s89, s2, 4"); p("s_add_u32 s88, s88, s89"); p("s_and_b32 s88, s88, 15"); p(f"s_lshl_b32 s{sRot}, s88, 13")
        p(f"s_lshl_b32 s88, s{sP}, 4"); p(f"s_add_u32 s88, s88, s{sB}"); p("s_lshl_b32 s88, s88, 1"); p(f"s_add_u32 s88, s88, s{sRH}")
        p("s_lshl_b32 s88, s88, 7"); p(f"s_lshl_b32 s89, s{sHG}, 4"); p("s_add_u32 s88, s88, s89"); p(f"s_lshl_b32 s89, s{sHP}, 3"); p("s_add_u32 s88, s88, s89")
        p(f"s_mul_i32 s{sOo}, s88, 6144")
        p("s_and_b32 s88, s86, 3"); p("s_lshl_b32 s88, s88, 5"); p("s_add_u32 s88, s88, s87")
        p(f"s_lshl_b32 s89, s88, 15"); p(f"s_lshl_b32 s98, s{sW}, 13"); p(f"s_add_u32 s{sWOo}, s89, s98")
        p(f"s_lshl_b32 s89, s{sP}, 2"); p(f"s_add_u32 s89, s89, s{sW}"); p("s_lshl_b32 s89, s89, 7"); p("s_add_u32 s89, s89, s88"); p(f"s_lshl_b32 s{sWTo}, s89, 13")
        p(f"s_mov_b32 s{sC}, {f32(1.4426950408889634*128**-0.5)}")
        p(f"s_mov_b32 s{sItem}, 0")
        self.late_consts = True
        i_, g_, r_, c_ = "v14", "v8", "v9", "v10"
        p(f"v_and_b32 {i_}, 15, v0"); p(f"v_lshrrev_b32 {g_}, 4, v0"); p(f"v_lshrrev_b32 {r_}, 2, {i_}"); p(f"v_and_b32 {c_}, 3, {i_}")
        p(f"v_lshlrev_b32 v{VST}, 4, v0")
        p("v_lshrrev_b32 v11, 5, v0"); p("v_and_b32 v12, 15, v0"); p("v_lshlrev_b32 v13, 2, v11"); p("v_xor_b32 v12, v12, v13"); p("v_lshlrev_b32 v12, 4, v12")
        p("v_lshl_add_u32 v12, v11, 13, v12"); p("v_bfe_u32 v13, v0, 4, 1"); p(f"v_lshl_add_u32 v{WD[0]}, v13, 9, v12")
        p(f"v_xor_b32 v{WD[1]}, 128, v{WD[0]}"); p(f"v_add_u32 v{WD[2]}, {2*15360}, v{WD[0]}"); p(f"v_add_u32 v{WD[3]}, {3*15360}, v{WD[1]}"); p(f"v_add_u32 v{WD[1]}, 15360, v{WD[1]}")
        p("v_lshrrev_b32 v11, 3, v0"); p("v_and_b32 v12, 7, v0"); p(f"v_xor_b32 v12, v12, {g_}"); p("v_lshlrev_b32 v12, 4, v12")
        p(f"v_lshl_add_u32 v{XD[0]}, v11, 10, v12"); p(f"v_xor_b32 v{XD[1]}, 64, v{XD[0]}")
        p(f"v_add_u32 v{XD[2]}, {2*7168}, v{XD[0]}"); p(f"v_add_u32 v{XD[3]}, {3*7168}, v{XD[1]}"); p(f"v_add_u32 v{XD[1]}, 7168, v{XD[1]}")
        p(f"v_lshlrev_b32 v11, s97, {g_}"); p(f"v_xor_b32 v11, v11, {i_}"); p("v_lshlrev_b32 v11, 4, v11"); p(f"v_lshl_add_u32 v{DV}, {g_}, 8, v11")
        for k in range(1, 4): p(f"v_xor_b32 v{DV+k}, s{93+k}, v{DV}")
        self.lane = (i_, g_, r_, c_)
    def prologue2(self):
        p = self.p
        i_, g_, r_, c_ = self.lane
        p(f"s_lshl_b32 s88, s{sHP}, 14")
        p(f"v_xor_b32 v11, {g_}, {i_}"); p("v_lshlrev_b32 v11, 4, v11"); p(f"v_lshl_add_u32 v11, {i_}, 8, v11"); p(f"v_add_u32 v{KA}, s88, v11")
        for ks in range(1, 4): p(f"v_xor_b32 v{KA+ks}, {64*ks}, v{KA}")
        p(f"v_and_b32 v11, 1, {g_}"); p("v_lshlrev_b32 v11, 2, v11"); p(f"v_add_u32 v11, v11, {r_}"); p("v_lshlrev_b32 v11, 1, v11")
        p(f"v_lshrrev_b32 v12, 1, {c_}"); p("v_xor_b32 v11, v11, v12"); p("v_lshlrev_b32 v11, 4, v11")
        p(f"v_and_b32 v12, 1, {c_}"); p("v_lshl_add_u32 v11, v12, 3, v11")
        p(f"v_lshl_add_u32 v12, {g_}, 2, {r_}"); p("v_lshl_add_u32 v11, v12, 8, v11")
        p("s_add_u32 s89, s88, 32768"); p(f"v_add_u32 v{VA}, s89, v11")
        for dt in range(1, 8): p(f"v_xor_b32 v{VA+dt}, {32*dt}, v{VA}")
        p(f"s_lshl_b32 s88, s{sHP}, 4")
        p(f"v_add_u32 v11, s88, {c_}"); p(f"v_lshlrev_b32 v12, 2, {r_}"); p("v_xor_b32 v11, v11, v12"); p("v_lshlrev_b32 v11, 4, v11")
        p(f"v_lshl_add_u32 v12, {g_}, 3, {r_}"); p("v_lshl_add_u32 v11, v12, 9, v11"); p(f"v_add_u32 v{WA}, {WSLOT[0]}, v11")
        for ks in range(1, 4): p(f"v_xor_b32 v{WA+ks}, {64*ks}, v{WA}")
        p(f"s_mul_i32 s88, s{sRH}, {96*128}"); p(f"s_add_u32 s88, s88, {XA}")
        p(f"v_lshrrev_b32 v11, 1, {i_}"); p(f"v_xor_b32 v11, v11, {g_}"); p("v_lshlrev_b32 v11, 4, v11"); p(f"v_lshl_add_u32 v11, {i_}, 7, v11"); p(f"v_add_u32 v{XAD}, s88, v11")
        p(f"v_xor_b32 v{XAD+1}, 64, v{XAD}")
        p(f"s_mov_b32 s{sC2}, s{sC}"); p(f"s_mov_b32 s{sC2+1}, s{sC}")
        if self.o.get("fuse"):
            p(f"s_mov_b32 s{SFL}, s70"); p(f"s_mov_b32 s{SFL+1}, s71"); p(f"s_mov_b32 s{SFL+2}, 256"); p(f"s_mov_b32 s{SFL+3}, 0x00020000")
            sh = 16 if self.o.get("dbg") is not None else 0
            p(f"s_lshl_b32 s{sC1}, s{sP}, 2"); p(f"s_add_u32 s{sC1}, s{sC1}, {4*sh}")
            p(f"s_lshl_b32 s88, s{sP}, 4"); p(f"s_add_u32 s88, s88, s{sB}"); p(f"s_add_u32 s88, s88, {2+sh}"); p(f"s_lshl_b32 s{sC2o}, s88, 2")
        if self.o["msum"]:
            p("v_mov_b32 v11, 0x3f803f80")
            for r in range(4): p(f"v_accvgpr_write_b32 a{ONES+r}, v11")

    def stamp(self, fine=False):
        if not self.o["timing"]: return
        if fine and not self.o.get("fine"): return
        p = self.p
        p(f"s_memrealtime s[88:89]")
        p(f"s_memtime s[90:91]")
        p("s_waitcnt lgkmcnt(0)")
        p("s_mov_b32 m0, s99"); p("s_nop 1")
        p(f"v_writelane_b32 v5, s88, m0")
        p(f"v_writelane_b32 v1, s90, m0")
        p("s_add_u32 s99, s99, 1")
    def stamp_flush(self):
        if not self.o["timing"]: return
        p = self.p
        if self.o.get("dbg") is not None:
            p(f"s_cmp_eq_u32 s2, {self.o['dbg']}"); p("s_cselect_b32 s90, 64, 0"); p(f"s_cmp_eq_u32 s{sW}, 0"); p("s_cselect_b32 s90, s90, 0")
            p("s_mov_b32 s88, s70"); p("s_mov_b32 s89, s71"); p("s_mov_b32 s91, 0x00020000")
            src = "v1" if self.o.get("dbgcyc") else "v5"
            p("v_lshlrev_b32 v6, 2, v0")
            p(f"buffer_store_dword {src}, v6, s[88:91], 0 offen")
            if not self.o.get("fuse"):
                p("s_add_u32 s88, s88, 512"); p("s_addc_u32 s89, s89, 0"); p("s_cmp_lg_u32 s90, 0"); p("s_cselect_b32 s90, 52, 0")
                p(f"buffer_store_dword {src}, v6, s[88:91], 0 offen")
            return
        p(f"s_add_u32 s88, s72, {64<<20}"); p("s_addc_u32 s89, s73, 0"); p(f"s_mov_b32 s90, {1<<20}"); p("s_mov_b32 s91, 0x00020000")
        p(f"s_lshl_b32 s92, s2, 2"); p(f"s_add_u32 s92, s92, s{sW}"); p("s_lshl_b32 s92, s92, 9")
        p("v_lshlrev_b32 v6, 2, v0")
        p("buffer_store_dword v5, v6, s[88:91], s92 offen")
        p("buffer_store_dword v1, v6, s[88:91], s92 offen offset:256")

    def emit_groups(self, groups):
        for g in groups:
            for x in g: self.p.add(x)
    def keep(self, x):
        drop = self.o["drop"]; ph = self.phase
        if x.kind == "dma" and ph + "_dma" in drop: return False
        if x.kind == "ds_read" and ph + "_lds" in drop: return False
        if x.kind == "barrier" and ph + "_bar" in drop: return False
        if x.kind == "trans" and ph + "_exp" in drop: return False
        if x.kind == "valu" and x.txt.startswith("v_add_f32") and ph + "_add" in drop: return False
        if x.kind == "valu" and x.txt.startswith("v_cvt") and ph + "_cvt" in drop: return False
        if x.kind == "vstore" and ph + "_st" in drop: return False
        return True
    def run(self, mf, chains, pre=()):
        ch = [[([x for x in g if self.keep(x)], lo, hi) for g, lo, hi in c] for c in chains]
        ch = [[it for it in c if it[0]] for c in ch]
        if self.phase + "_mfma" in self.o["drop"]: mf = [ins("s_nop 0") for _ in mf]
        self.p.extend(gapfill(mf, ch, pre=[x for x in pre if self.keep(x)]))

    def spaced(self, G, lo, hi):
        n = len(G)
        out = []
        for k, g in enumerate(G):
            pos = lo + (k*(hi - lo + 1))//n
            out.append((g, pos, pos + 1))
        return out
    def qstep(self, t, stores=(), sig=False):
        p = self.p
        self.phase = "qp"
        mf = []
        for T in range(8):
            for qt in range(6):
                mf.append(mfma(acc(T, qt), "v", WF(T), "a", XF(t % 2, qt), "a", None if t == 0 else acc(T, qt)))
        need = []
        for qt in range(6): need += R("a", XF(t % 2, qt), 4)
        for T in range(6): need += R("a", WF(T), 4)
        pre = [wait_regs(need)]
        chains = []
        BG = 11
        slow = []
        if t < 15:
            bar = [wait_tag(("w", t+1))]
            if t % 2 == 1: bar.append(wait_tag(("x", (t+1) >> 1)))
            chains.append([(bar, BG-1, BG-1), ([ins("s_waitcnt lgkmcnt(0)"), ins("s_barrier")], BG, BG)])
            cw = []
            for T in range(8):
                lo = max(BG+1, 6*T + 5)
                cw += [([self.rd_w(t+1, T, 0)], lo, min(47, lo + 8)), ([self.rd_w(t+1, T, 1)], lo, min(47, lo + 9))]
            chains.append(cw)
            chains.append([([self.rd_x(t+1, qt)], BG+1, 40) for qt in range(6)])
            GW = self.w_tile(t+3) if t + 3 <= 15 else []
            early = []; GX = []
            if t % 2 == 1 and (t >> 1) + 2 <= 7: GX = self.x_tile((t >> 1) + 2)[:3]
            if t % 2 == 0 and t >= 2 and ((t-1) >> 1) + 2 <= 7:
                tt = ((t-1) >> 1) + 2; sl = XB if tt % 2 == 0 else XA
                early = self.x_tile(tt)[3:]
                early[0] = self.x_soff(sXo, tt) + [ins(f"s_add_u32 m0, s{sXl}, {sl}")] + early[0]
            if t == 0: early = self.w_tile(2) + self.x_tile(1)
            late = GW + GX
            plan = self.o.get("kvplan", {10: (0, 0, 4), 11: (0, 4, 8), 12: (1, 0, 4), 13: (1, 4, 8)})
            if t in plan or str(t) in plan:
                slow = self.kv_pieces(*(plan.get(t) or plan.get(str(t))))
            c = []
            if t == 0:
                c = self.spaced(early + late, 0, 47); early = []; late = []
            if early:
                span = BG - 1
                for k, g in enumerate(early): c.append((g, int(k*span/len(early)), int(k*span/len(early)) + 1))
            hi = 47 if not (slow or stores) else (39 if len(slow) <= 2 else 32)
            if late: c += self.spaced(late, BG+2, hi)
            if slow: c += self.spaced(slow, (41 if len(slow) <= 2 else 34) if late else BG+2, 47)
            if c: chains.append(c)
        else:
            chains.append([([wait_tag(("kv", 0))], BG-1, BG-1), ([ins("s_waitcnt lgkmcnt(0)"), ins("s_barrier")], BG, BG)])
            G = self.kv_pieces(2, 0, 4 if self.o.get("look", 3) == 3 else 8)
            if self.o.get("kv15"): G = self.kv_pieces(*self.o["kv15"]) + G
            chains.append(self.spaced(G, BG+1, 47))
        if self.o.get("womid"):
            if t == 2:
                W = self.wo_prep_groups(stage=12)
                blk = [ins(f"s_cmp_eq_u32 s{sItem}, 1"), ins("s_cbranch_scc1 L_nowo")] + [x for g in W for x in g]
                for x in blk: x.meta["alt"] = True
                blk.append(I("L_nowo:", "label"))
                chains.append([(blk, BG+1, BG+1)])
            if t == 4: chains.append([([ins(f"s_mov_b32 s{SO+2}, s{sSz1}")], 0, 2)])
            if t == 7: chains.append([([ins(f"s_mov_b32 s{SO+2}, s{sSz2}")], 0, 2)])
        if sig:
            chains.append([(self.signal(f"v_mov_b32 v{VPOLL+2}, s{sC1}"), BG+1, BG+3)])
        if stores:
            lo = 26 if t == 12 else 0
            if self.o.get("stA"): lo = {2: 41, 3: 36, 4: 30}[len(stores)]
            chains.append(self.spaced([self.o_store(n, self.o["store_mod"], True, force=bool(self.o.get("stA")) and n == stores[0]) for n in stores], lo, 47))
        self.run(mf, chains, pre)

    def qproj_a(self):
        p = self.p
        p(f"s_lshl_b32 s{sTc}, s{sItem}, 17")
        p.wait_tag(("w", 0)); p.wait_tag(("x", 0))
        p("s_barrier")
        self.stamp()
        for T in range(8):
            p.add(self.rd_w(0, T, 0)); p.add(self.rd_w(0, T, 1))
        for qt in range(6): p.add(self.rd_x(0, qt))
        for t in range(12):
            pat = self.o.get("stpat", 2)
            if pat == 2: ss = [2*t, 2*t+1]
            elif pat == 3: ss = [3*t, 3*t+1, 3*t+2] if t < 8 else []
            elif pat == 4: ss = [4*(t//2) + k for k in range(4)] if t % 2 == 0 else []
            elif pat == 5: ss = [4*(t//2) + k for k in range(4)] if t % 2 == 1 else []
            self.qstep(t, ss if self.o.get("stA") else ())
            if t in (3, 7, 11): self.stamp(True)
    def qproj_b(self, last):
        p = self.p
        st = (lambda a, b: list(range(a, b))) if (last and not self.o.get("stA")) else (lambda a, b: [])
        self.qstep(12, st(0, 3)); self.qstep(13, st(3, 9)); self.qstep(14, st(9, 15))
        self.qstep(15, st(15, 18), sig=bool(last and self.o.get("fuse")))
        self.stamp()
        for kt in range(2):
            for ks in range(4): p.add(self.rd_k(0, kt, ks))
        tmp = S(0, 0)
        rest = self.kv_pieces(2, 4, 8) if self.o.get("look", 3) == 3 else []
        late = st(18, 24)
        for qt in range(6):
            for ks in range(4):
                n = qt*4 + ks
                a0, a1 = acc(2*ks, qt), acc(2*ks+1, qt)
                if self.o.get("pk", True):
                    for a in (a0, a0+2, a1, a1+2): p(f"v_pk_mul_f32 v[{a}:{a+1}], v[{a}:{a+1}], s[{sC2}:{sC2+1}]")
                else:
                    for r in range(4): p(f"v_mul_f32 v{a0+r}, s{sC}, v{a0+r}")
                    for r in range(4): p(f"v_mul_f32 v{a1+r}, s{sC}, v{a1+r}")
                t0 = tmp + (n % 4)*4
                p(f"v_cvt_pk_bf16_f32 v{t0}, v{a0}, v{a0+1}")
                p(f"v_cvt_pk_bf16_f32 v{t0+1}, v{a0+2}, v{a0+3}")
                p(f"v_cvt_pk_bf16_f32 v{t0+2}, v{a1}, v{a1+1}")
                p(f"v_cvt_pk_bf16_f32 v{t0+3}, v{a1+2}, v{a1+3}")
                if late and n % 2 == 0 and n < 18:
                    m = late.pop(0)
                    for x in self.o_store(m, self.o["store_mod"], True, force=True): p.add(x)
                if self.o.get("dummy_mfma"):
                    for _ in range(self.o["dummy_mfma"]): p.add(mfma(252, "a", KF(0, 0, 0), "a", KF(0, 1, 0), "a", None))
                for r in range(4): p(f"v_accvgpr_write_b32 a{Q(qt,ks)+r}, v{t0+r}")
                if rest and n % 4 == 3 and n >= 7:
                    for x in rest.pop(0): p.add(x)
            if qt < 4:
                for dt in (2*qt, 2*qt+1):
                    p.add(self.rd_v(0, dt, 0)); p.add(self.rd_v(0, dt, 1))
        assert not rest and not late

    def period(self, n, dma=(), pre=(), early=(), extra=()):
        p = self.p
        self.phase = "at"
        msum = self.o["msum"]
        j, pp = divmod(n, 6)
        qk = []; pv = []
        if n < 96:
            sb = n % 2
            for kt in range(2):
                for ks in range(4):
                    qk.append(mfma(S(sb, kt), "v", KF(j % 2, kt, ks), "a", Q(pp, ks), "a", None if ks == 0 else S(sb, kt)))
        if n >= 2:
            jj, qt = divmod(n-2, 6)
            pb = (n-2) % 2
            for dt in range(8):
                pv.append(mfma(acc(dt, qt), "v", VF(jj % 2, dt), "a", P(pb), "v", None if jj == 0 else acc(dt, qt)))
        mf = []
        for k in range(8):
            if qk: mf.append(qk[k])
            if pv: mf.append(pv[k])
        if n >= 2 and msum:
            mf.append(mfma(LA(qt), "a", ONES, "a", P(pb), "v", None if jj == 0 else LA(qt)))
        nm = len(mf)
        sc = nm/17.0 if msum else nm/16.0
        def G(x): return min(nm-1, int(x*sc))
        chains = []
        if 1 <= n <= 96:
            jj2, qt2 = divmod(n-1, 6)
            sb = (n-1) % 2; pb2 = (n-1) % 2
            e = [S(sb, 0)+r for r in range(4)] + [S(sb, 1)+r for r in range(4)]
            chains.append([([ins(f"v_exp_f32 v{e[k]}, v{e[k]}")], G(2*k), G(2*k)) for k in range(8)])
            cv = []
            for k in range(8):
                if not msum: cv.append(([ins(f"v_add_f32 v{LS+qt2}, v{LS+qt2}, v{e[k]}")], G(2*k+1), G(2*k+1)))
                if k % 2 == 1:
                    cv.append(([ins(f"v_cvt_pk_bf16_f32 v{P(pb2)+k//2}, v{e[k-1]}, v{e[k]}")], G(2*k+1), G(2*k+1)))
            chains.append(cv)
        if n >= 2:
            jb, q = divmod(n-2, 6)
            if jb + 1 <= 15:
                par = (jb+1) % 2
                rds = []
                if q in (0, 1): rds = [self.rd_k(par, q, ks) for ks in range(4)]
                else:
                    for dt in range((q-2)*2, (q-2)*2+2): rds += [self.rd_v(par, dt, 0), self.rd_v(par, dt, 1)]
                gp = [1, 5, 9, 13] if q != 5 else [1, 5, 9, 10]
                chains.append([([x], G(gp[k]), G(gp[k])) for k, x in enumerate(rds)])
        if dma:
            nd = sum(1 for x in dma if x.kind == "dma")
            slots = {0: [], 1: [16], 2: [11, 16], 4: [3, 7, 11, 16], 8: [2, 4, 6, 8, 10, 12, 14, 16]}.get(nd) or [int(3 + (16-3)*k/(nd-1)) for k in range(nd)]
            ch = []; seen = 0
            for x in dma:
                if x.kind == "dma":
                    g = G(slots[seen]); seen += 1
                    grp = [x] if x.meta.get("credit") is None else [ins(f"s_waitcnt vmcnt({x.meta['credit']})"), x]
                    ch.append((grp, g, g))
                else:
                    ch.append(([x], 0, nm-1))
            for k in range(len(ch)-2, -1, -1):
                if ch[k][0][-1].kind != "dma": ch[k] = (ch[k][0], 0, max(0, ch[k+1][2] - (1 if ch[k+1][0][-1].kind == "dma" else 0)))
            chains.append(ch)
        if early: chains.append([([x], 0, nm-1) for x in early])
        if extra: chains.append([(g, (k*nm)//len(extra), nm-1) for k, g in enumerate(extra)])
        self.run(mf, chains, pre)

    def body(self, j, dmaG, tog=(), nper=6, extra=(), extra2=()):
        bar = []
        if j + 1 <= 15: bar.append(wait_tag(("kv", j+1)))
        if extra: bar.append(wait_tag(("wo",)))
        bar += [ins("s_waitcnt lgkmcnt(0)"), ins("s_barrier")]
        if self.o.get("baracct"):
            b0 = [ins("s_memtime s[92:93]"), ins("s_waitcnt lgkmcnt(0)")]
            b1 = [ins("s_memtime s[94:95]"), ins("s_waitcnt lgkmcnt(0)")]
            b2 = [ins("s_memtime s[96:97]"), ins("s_waitcnt lgkmcnt(0)"), ins("s_sub_u32 s98, s94, s92"), ins("s_add_u32 s100, s100, s98"),
                  ins("s_sub_u32 s98, s96, s94"), ins("s_add_u32 s101, s101, s98")]
            bar = b0 + bar[:1] + b1 + bar[1:] + b2
        tk = [x for x in tog if any(f"v{KA+z}," in x.txt for z in range(4))]
        tv = [x for x in tog if x not in tk]
        flat = [x for g in dmaG for x in g]
        cr = self.o.get("credit")
        if cr is not None and j <= 12:
            k = 0
            for x in flat:
                if x.kind == "dma":
                    x.meta["credit"] = cr[k % len(cr)] if isinstance(cr, list) else cr
                    k += 1
        nd = sum(1 for x in flat if x.kind == "dma")
        if nd == 8: cnt = self.o.get("dmacnt", [1, 1, 2, 1, 1, 2])
        else: cnt = [nd//6 + (1 if q < nd % 6 else 0) for q in range(6)]
        per = [[] for _ in range(6)]
        q = 0; seen = 0
        for x in flat:
            while q < 5 and seen >= cnt[q]: q += 1; seen = 0
            per[q].append(x)
            if x.kind == "dma": seen += 1
        for q in range(6):
            e = tv[:4] if q == 0 else (tv[4:] if q == 1 else [])
            ex = []
            if extra or extra2:
                xs = list(extra) + list(extra2)
                n = len(xs); ex = xs[q*n//6:(q+1)*n//6]
            self.period(6*j + 2 + q, dma=per[q], pre=(bar + tk) if q == 0 else (), early=e, extra=ex)

    def tog(self):
        return [ins(f"v_xor_b32 v{KA+x}, {PHI}, v{KA+x}") for x in range(4)] + [ins(f"v_xor_b32 v{VA+x}, {PHI}, v{VA+x}") for x in range(8)]
    def attention_shared(self):
        p = self.p
        look = self.o.get("look", 3)
        if look == 4:
            t3 = self.kv_pieces(3, 0, 8)
            self.period(0, dma=[x for g in t3[:4] for x in g]); self.period(1, dma=[x for g in t3[4:] for x in g])
            self.body(0, self.dma_kv_abs(("kv", 4), 0))
        else:
            self.period(0); self.period(1)
            self.body(0, self.dma_kv_abs(("kv", 3), 3))
        p(f"s_mov_b32 s{sM}, s{sKVl}")
        p(f"s_mov_b32 s{sCnt}, 5")
        for k in range(5):
            j = 1 + 2*k
            p.raw(f"@@LB at {k}")
            self.stamp(True)
            if look == 4:
                g1 = self.dma_kv(("kv", j+4), f"s_add_u32 m0, s{sM}, 8192", f"s_add_u32 m0, s{sM}, 12288")
                self.body(j, g1, tog=self.tog())
                g2 = self.dma_kv(("kv", j+5), f"s_add_u32 m0, s{sM}, 0", f"s_add_u32 m0, s{sM}, 4096")
                self.body(j+1, [[ins(f"s_xor_b32 s{sM}, s{sM}, {PHI}")]] + g2)
            else:
                g1 = self.dma_kv(("kv", j+3), f"s_add_u32 m0, s{sM}, 0", f"s_add_u32 m0, s{sM}, 4096")
                self.body(j, g1, tog=self.tog())
                g2 = self.dma_kv(("kv", j+4), f"s_add_u32 m0, s{sM}, 8192", f"s_add_u32 m0, s{sM}, 12288")
                g2[-1] = g2[-1] + [ins(f"s_xor_b32 s{sM}, s{sM}, {PHI}")]
                self.body(j+1, g2)
            p(f"s_sub_u32 s{sCnt}, s{sCnt}, 1"); p(f"s_cmp_lg_u32 s{sCnt}, 0"); p("s_cbranch_scc1 L_at")
            p.raw(f"@@LE at {k}")
        if look == 4:
            self.body(11, self.dma_kv_abs(("kv", 15), 3), tog=self.tog())
            self.body(12, [])
        else:
            self.body(11, self.dma_kv_abs(("kv", 14), 2), tog=self.tog())
            self.body(12, self.dma_kv_abs(("kv", 15), 3))
    def attention_tail(self, last):
        fuse = self.o.get("fuse")
        prep_here = ((not last) if fuse else last) and not self.o.get("woearly") and not self.o.get("womid")
        self.stamp(True)
        if prep_here:
            W = self.wo_prep_groups(); h = 9 + 4*3
            self.body(13, self.dma_wo_last(), tog=self.tog())
            self.body(14, [], extra=W[:h])
            self.body(15, (self.w_tile(0, 1) + self.x_tile(0) + self.w_tile(1, 1)) if not last else [], tog=self.tog(), extra2=W[h:])
        elif not last:
            self.body(13, [], tog=self.tog())
            self.body(14, [])
            self.body(15, self.w_tile(0, 1) + self.x_tile(0) + self.w_tile(1, 1), tog=self.tog())
        else:
            self.body(13, [], tog=self.tog(), extra2=[[x] for x in self.k3_setup()])
            self.body(14, [], extra2=[self.poll_issue(f"v_mov_b32 VDST, s{sC1}")])
            self.body(15, [], tog=self.tog())
            self.poll_check(128)
    def wo_prep_groups(self, stage=False):
        setup = [ins("v_and_b32 v33, 15, v0"), ins("v_lshrrev_b32 v34, 4, v0"), ins("v_lshrrev_b32 v35, 2, v33"), ins("v_and_b32 v33, 3, v33"),
                 ins("v_lshl_add_u32 v32, v34, 2, v35"), ins("v_lshlrev_b32 v32, 10, v32"), ins("v_lshl_add_u32 v32, v33, 4, v32"),
                 ins(f"s_lshl_b32 s88, s{sW}, 8"), ins("v_add_u32 v32, s88, v32")]
        G = [[x] for x in setup]
        mod = self.o['last_store_mod']
        for nt in range(8):
            u, par = nt >> 1, nt & 1
            d = 252 if not stage else OS(nt + (0 if stage is True else stage))
            G.append([ins(f"ds_read_b64_tr_b16 a[{d}:{d+1}], v32 offset:{64*u + 8*par}")])
            G.append([ins(f"ds_read_b64_tr_b16 a[{d+2}:{d+3}], v32 offset:{16384 + 64*u + 8*par}")])
            if stage: continue
            g = []
            if nt % 4 == 0: g.append(ins(f"s_add_u32 s{sT2}, s{sWTo}, {nt*1024}"))
            g.append(ins(f"buffer_store_dwordx4 a[{d}:{d+3}], v{VST}, s[{SWT}:{SWT+3}], s{sT2} offen offset:{(nt % 4)*1024} {mod}"))
            G.append(g)
        return G
    def dma_wo_last(self):
        G = []
        for half in range(2):
            g = [ins(f"s_add_u32 s{sT1}, s{sWOo}, {half*4096}"), ins(f"s_lshl_b32 s{sWoM}, s{sW}, 13"), ins(f"s_add_u32 m0, s{sWoM}, {half*4096}")]
            for n in range(4):
                g.append(ins(f"buffer_load_dwordx4 v{VST}, s[{SWO}:{SWO+3}], s{sT1} offen offset:{1024*n} nt lds", tag=("wo",)))
                G.append(g); g = []
        return G

    FLAG = 32768
    def softmax_check(self, item):
        p = self.p
        t = S(0, 0)
        for qt in range(6): p(f"v_accvgpr_read_b32 v{t+qt}, a{LA(qt)}")
        p(f"v_max3_f32 v{t+6}, v{t}, v{t+1}, v{t+2}"); p(f"v_min3_f32 v{t+7}, v{t}, v{t+1}, v{t+2}")
        p(f"v_max3_f32 v{t+6}, v{t+6}, v{t+3}, v{t+4}"); p(f"v_min3_f32 v{t+7}, v{t+7}, v{t+3}, v{t+4}")
        p(f"v_max_f32 v{t+6}, v{t+6}, v{t+5}"); p(f"v_min_f32 v{t+7}, v{t+7}, v{t+5}")
        p(f"v_cmp_nge_f32 vcc, {f32(2.0**24)}, v{t+6}")
        p("s_mov_b64 s[88:89], vcc")
        p(f"v_cmp_nle_f32 vcc, {f32(2.0**-24)}, v{t+7}")
        p("s_or_b64 s[88:89], s[88:89], vcc")
        p("s_cmp_lg_u64 s[88:89], 0"); p("s_cselect_b32 s88, 1, 0")
        p(f"v_mov_b32 v{t}, s88"); p(f"s_lshl_b32 s89, s{sW}, 2"); p(f"v_mov_b32 v{t+1}, s89")
        p(f"ds_write_b32 v{t+1}, v{t} offset:{self.FLAG}")
        p("s_waitcnt lgkmcnt(0)"); p("s_barrier")
        p(f"v_mov_b32 v{t+1}, 0")
        p(f"ds_read_b128 v[{t+4}:{t+7}], v{t+1} offset:{self.FLAG}")
        p(f"v_or_b32 v{t+4}, v{t+4}, v{t+5}"); p(f"v_or_b32 v{t+6}, v{t+6}, v{t+7}"); p(f"v_or_b32 v{t+4}, v{t+4}, v{t+6}")
        p(f"v_readfirstlane_b32 s88, v{t+4}")
        p("s_cmp_lg_u32 s88, 0")
        p("s_cbranch_scc1 L_FB")
        p.raw(f"L_OE{item}:")

    def fallback(self):
        q = K2(self.o); q.phase = "fb"; p = q.p
        M = LS
        def load_tile():
            p(f"s_mov_b32 s{sT2}, s{sTc}")
            q.emit_groups(q.dma_kv_abs(("fb",), 0))
            p("s_waitcnt vmcnt(0)"); p("s_barrier")
        def qk(qt):
            for kt in range(2):
                for ks in range(4):
                    p.add(mfma(S(0, kt), "v", KF(0, kt, ks), "a", Q(qt, ks), "a", None if ks == 0 else S(0, kt)))
        p.raw("L_FB:")
        p("s_waitcnt vmcnt(0) lgkmcnt(0)"); p("s_barrier")
        p(f"s_mov_b32 s{SKV+2}, {KV_BYTES}")
        for qt in range(6): p(f"v_mov_b32 v{M+qt}, 0xff800000")
        p(f"s_lshl_b32 s{sTc}, s{sItem}, 17"); p(f"s_mov_b32 s{sCnt}, 16")
        p.raw("L_FB1:")
        load_tile()
        for kt in range(2):
            for ks in range(4): p.add(q.rd_k(0, kt, ks))
        for qt in range(6):
            qk(qt)
            e = [S(0, 0)+r for r in range(4)] + [S(0, 1)+r for r in range(4)]
            for k in range(0, 8, 2): p(f"v_max3_f32 v{M+qt}, v{e[k]}, v{e[k+1]}, v{M+qt}")
        p("s_waitcnt lgkmcnt(0)"); p("s_barrier")
        p(f"s_sub_u32 s{sCnt}, s{sCnt}, 1"); p(f"s_cmp_lg_u32 s{sCnt}, 0"); p("s_cbranch_scc1 L_FB1")
        t = S(1, 0)
        for qt in range(6):
            m = M + qt
            p(f"v_mov_b32 v{t}, v{m}"); p(f"v_permlane32_swap_b32 v{t}, v{m}"); p(f"v_max_f32 v{m}, v{m}, v{t}")
            p(f"v_mov_b32 v{t}, v{m}"); p(f"v_permlane16_swap_b32 v{t}, v{m}"); p(f"v_max_f32 v{m}, v{m}, v{t}")
        for r in range(192): p(f"v_mov_b32 v{ACC+r}, 0")
        p(f"v_mov_b32 v{t}, 0")
        for r in range(24): p(f"v_accvgpr_write_b32 a{LA(0)+r}, v{t}")
        p(f"s_lshl_b32 s{sTc}, s{sItem}, 17"); p(f"s_mov_b32 s{sCnt}, 16")
        p("s_nop 7")
        p.raw("L_FB2:")
        load_tile()
        for kt in range(2):
            for ks in range(4): p.add(q.rd_k(0, kt, ks))
        for dt in range(8):
            p.add(q.rd_v(0, dt, 0)); p.add(q.rd_v(0, dt, 1))
        for qt in range(6):
            qk(qt)
            e = [S(0, 0)+r for r in range(4)] + [S(0, 1)+r for r in range(4)]
            for k in range(8): p(f"v_sub_f32 v{e[k]}, v{e[k]}, v{M+qt}")
            for k in range(8): p(f"v_exp_f32 v{e[k]}, v{e[k]}")
            for k in range(0, 8, 2): p(f"v_cvt_pk_bf16_f32 v{P(0)+k//2}, v{e[k]}, v{e[k+1]}")
            for dt in range(8): p.add(mfma(acc(dt, qt), "v", VF(0, dt), "a", P(0), "v", acc(dt, qt)))
            p.add(mfma(LA(qt), "a", ONES, "a", P(0), "v", LA(qt)))
        p("s_waitcnt lgkmcnt(0)"); p("s_nop 7"); p("s_nop 7"); p("s_barrier")
        p(f"s_sub_u32 s{sCnt}, s{sCnt}, 1"); p(f"s_cmp_lg_u32 s{sCnt}, 0"); p("s_cbranch_scc1 L_FB2")
        p("s_nop 7"); p("s_nop 7")
        p(f"s_cmp_eq_u32 s{sItem}, 0"); p("s_cbranch_scc1 L_OE0")
        if self.o.get("fuse"):
            for x in self.k3_setup(): p.add(x)
        p("s_branch L_OE1")
        L, st = finalize(p.L)
        return L

    def signal(self, offreg_txt, uid=None):
        uid = uid or self.uid()
        L = [ins(f"s_cmp_lg_u32 s{sW}, 0"), ins(f"s_cbranch_scc1 L_sig{uid}"),
             ins(f"v_mov_b32 v{VPOLL+1}, 1"), ins(offreg_txt), ins("s_mov_b64 exec, 1"),
             ins(f"buffer_atomic_add v{VPOLL+1}, v{VPOLL+2}, s[{SFL}:{SFL+3}], 0 offen sc1"),
             ins("s_mov_b64 exec, -1")]
        for x in L: x.meta["alt"] = True
        L.append(I(f"L_sig{uid}:", "label"))
        return L
    def uid(self):
        self._uid = getattr(self, "_uid", 0) + 1
        return self._uid
    def poll_issue(self, off_txt):
        return [ins(off_txt.replace("VDST", f"v{VPOLL+3}")), ins(f"buffer_load_dword v{VPOLL}, v{VPOLL+3}, s[{SFL}:{SFL+3}], 0 offen sc1")]
    def poll_check(self, target):
        p = self.p
        uid = self.uid()
        p(f"v_readfirstlane_b32 s88, v{VPOLL}")
        p(f"s_cmp_ge_u32 s88, {target}"); p(f"s_cbranch_scc1 L_ok{uid}")
        L = [f"s_mov_b32 s89, 0x40000", f"L_spin{uid}:", "s_sleep 2",
             f"buffer_load_dword v{VPOLL}, v{VPOLL+3}, s[{SFL}:{SFL+3}], 0 offen sc1", "s_waitcnt vmcnt(0)",
             f"v_readfirstlane_b32 s88, v{VPOLL}", "s_nop 3", "s_sub_u32 s89, s89, 1", "s_cmp_eq_u32 s89, 0", f"s_cbranch_scc1 L_ok{uid}",
             f"s_cmp_lt_u32 s88, {target}", f"s_cbranch_scc1 L_spin{uid}"]
        for t in L: p.add(I(t, "label", verbatim=True))
        p.raw(f"L_ok{uid}:")

    def k3_setup(self):
        L = []
        A = lambda t: L.append(ins(t))
        A(f"s_and_b32 s88, s{sHG}, 3"); A(f"s_lshr_b32 s89, s{sHG}, 2")
        A(f"s_lshl_b32 s90, s{sP}, 2"); A("s_add_u32 s90, s90, s88"); A("s_lshl_b32 s90, s90, 7"); A(f"s_lshl_b32 s91, s{sW}, 5"); A("s_add_u32 s90, s90, s91"); A("s_lshl_b32 s90, s90, 13")
        rot = self.o.get("k3rot", True)
        if rot: A(f"s_and_b32 s{kRho}, s{sB}, 3"); A(f"s_add_u32 s{kRho}, s{kRho}, s{sW}")
        else: A(f"s_mov_b32 s{kRho}, s{sW}")
        for pr in range(4):
            A(f"s_add_u32 s91, s{kRho}, {pr}"); A("s_and_b32 s91, s91, 3"); A("s_lshl_b32 s91, s91, 11"); A(f"s_add_u32 s{kA+pr}, s90, s91")
        if rot: A("s_lshr_b32 s91, s88, 1"); A(f"s_add_u32 s{kSig}, s88, s91")
        else: A(f"s_mov_b32 s{kSig}, 0")
        for qt in range(6):
            A(f"s_add_u32 s91, s{kSig}, {qt}"); A("s_cmp_ge_u32 s91, 6"); A("s_cselect_b32 s98, 6, 0"); A("s_sub_u32 s91, s91, s98"); A("s_lshl_b32 s91, s91, 10")
            A(f"v_add_u32 v{VBQ+qt}, s91, v{VST}")
        A(f"s_lshl_b32 s90, s{sP}, 4"); A(f"s_add_u32 s90, s90, s{sB}"); A("s_lshl_b32 s90, s90, 1"); A("s_add_u32 s90, s90, s89"); A("s_lshl_b32 s90, s90, 7")
        A(f"s_lshl_b32 s91, s{sW}, 5"); A("s_add_u32 s90, s90, s91"); A(f"s_mul_i32 s{kBo}, s90, 6144")
        A(f"s_mul_i32 s90, s{sB}, 192"); A("s_mul_i32 s91, s89, 96"); A("s_add_u32 s90, s90, s91"); A("s_lshl_b32 s90, s90, 11")
        A(f"s_lshl_b32 s91, s{sP}, 10"); A("s_add_u32 s90, s90, s91"); A("s_lshl_b32 s91, s88, 8"); A("s_add_u32 s90, s90, s91")
        A(f"s_and_b32 s91, s{kRho}, 3"); A("s_lshl_b32 s91, s91, 6"); A(f"s_add_u32 s{kOut}, s90, s91")
        A(f"s_mov_b32 s{SX}, s68"); A(f"s_mov_b32 s{SX+1}, s69"); A(f"s_mov_b32 s{SX+2}, {OUT_BYTES}"); A(f"s_mov_b32 s{SX+3}, 0x00020000")
        A(f"v_add_u32 v{VB4}, 4096, v{VST}")
        return L
    def k3_loads(self, b, o):
        m = self.o.get("k3_ld", "sc1")
        G = []
        for qt in range(6):
            g = [ins(f"s_add_u32 s{kT0}, s{kBo}, {o*6144}")] if qt == 0 else []
            g.append(ins(f"buffer_load_dwordx4 {rng('a', BF(b, qt), 4)}, v{VBQ+qt}, s[{SO}:{SO+3}], s{kT0} offen {m}"))
            G.append(g)
        for pr in range(4):
            t = kT1 if pr % 2 == 0 else kT0
            G.append([ins(f"s_add_u32 s{t}, s{kA+pr}, {o*8192}"),
                      ins(f"buffer_load_dwordx4 {rng('a', AF(b, 2*pr), 4)}, v{VST}, s[{SWT}:{SWT+3}], s{t} offen {m}")])
            G.append([ins(f"buffer_load_dwordx4 {rng('a', AF(b, 2*pr+1), 4)}, v{VST}, s[{SWT}:{SWT+3}], s{t} offen offset:1024 {m}")])
        return G
    def k3_adv(self, steps):
        return [ins(f"s_add_u32 s{kA+pr}, s{kA+pr}, {(steps*8192) & 0xffffffff}") for pr in range(4)] + [ins(f"s_add_u32 s{kBo}, s{kBo}, {(steps*6144) & 0xffffffff}")]
    def k3_step(self, t, G, extra=(), dst=None):
        p = self.p
        dst = dst if dst is not None else []
        b = t % 4
        n = 0
        extra = list(extra)
        for nu in range(8):
            for qt in range(6):
                p.add(mfma(oacc(nu, qt), "v", AF(b, nu), "a", BF(b, qt), "a", None if t == 0 else oacc(nu, qt)))
                if n % 3 == 1 and n//3 < len(G):
                    for x in G[n//3]: p.add(x)
                if n == 44:
                    for x in extra: p.add(x)
                if n in (8, 17, 26, 35, 43) and dst:
                    for x in dst.pop(0): p.add(x)
                n += 1
    def k3_main(self):
        p = self.p
        D = self.deferred
        npeel = 0
        if D:
            assert len(D) == 18
            self.k3_step(0, self.k3_loads(3, 3), extra=self.k3_adv(8), dst=D)
            for t in range(1, 9):
                i = (t-1) % 4
                self.k3_step(t, self.k3_loads((t+3) % 4, i), extra=self.k3_adv(8) if i == 3 else [], dst=D)
                if t == self.o.get("sig2", 6):
                    p.wait_tag(("o",)); p("s_barrier")
                    for x in self.signal(f"v_mov_b32 v{VPOLL+2}, s{sC2o}", uid="g2"): p.add(x)
            assert not D
            for i in range(4):
                t = 9 + i
                self.k3_step(t, self.k3_loads((t+3) % 4, i), extra=self.k3_adv(8) if i == 3 else [])
                if i == 2:
                    for x in self.poll_issue(f"v_mov_b32 VDST, s{sC2o}"): p.add(x)
        else:
            self.k3_step(0, self.k3_loads(3, 3), extra=self.k3_adv(8))
            p(f"s_mov_b32 s{kCnt}, 3")
            for k in range(3):
                p.raw(f"@@LB k3a {k}")
                for i in range(4):
                    t = 1 + 4*k + i
                    ex = self.k3_adv(8) if i == 3 else []
                    self.k3_step(t, self.k3_loads((t+3) % 4, i), extra=ex)
                    if i == 1:
                        uid = "k3s"
                        p(f"s_cmp_lg_u32 s{kCnt}, 3"); p(f"s_cbranch_scc1 L_{uid}")
                        p.wait_tag(("o",)); p("s_barrier")
                        for x in self.signal(f"v_mov_b32 v{VPOLL+2}, s{sC2o}", uid="g2"): p.add(x)
                        p.raw(f"L_{uid}:")
                    if i == 2:
                        for x in self.poll_issue(f"v_mov_b32 VDST, s{sC2o}"): p.add(x)
                p(f"s_sub_u32 s{kCnt}, s{kCnt}, 1"); p(f"s_cmp_lg_u32 s{kCnt}, 0"); p("s_cbranch_scc1 L_k3a")
                p.raw(f"@@LE k3a {k}")
        self.stamp()
        for x in self.k3_adv(4 - 32): p.add(x)
        self.poll_check(8)
        for i in range(4):
            t = 13 + i
            self.k3_step(t, self.k3_loads((t+3) % 4, i), extra=self.k3_adv(8) if i == 3 else [])
        p(f"s_mov_b32 s{kCnt}, 3")
        for k in range(3):
            p.raw(f"@@LB k3b {k}")
            for i in range(4):
                t = 17 + 4*k + i
                self.k3_step(t, self.k3_loads((t+3) % 4, i), extra=self.k3_adv(8) if i == 3 else [])
            p(f"s_sub_u32 s{kCnt}, s{kCnt}, 1"); p(f"s_cmp_lg_u32 s{kCnt}, 0"); p("s_cbranch_scc1 L_k3b")
            p.raw(f"@@LE k3b {k}")
        for t in (29, 30, 31): self.k3_step(t, [])
        self.stamp()
        for pr, v in ((1, 7), (2, 2), (3, 3)):
            p(f"s_add_u32 s88, s{sW}, {pr}"); p("s_and_b32 s88, s88, 3"); p("s_mul_i32 s88, s88, 36864"); p(f"s_add_u32 s88, s88, {(pr-1)*12288}")
            p(f"v_add_u32 v{v}, s88, v{VST}")
        p(f"s_mul_i32 s88, s{sW}, 36864"); p(f"v_add_u32 v8, s88, v{VST}")
        for pr, v in ((1, 7), (2, 2), (3, 3)):
            for par in range(2):
                for qt in range(6):
                    a = oacc(2*pr + par, qt)
                    p(f"ds_write_b128 v{v}, v[{a}:{a+3}] offset:{(par*6 + qt)*1024}")
        p("s_waitcnt lgkmcnt(0)")
        p("s_barrier")
        for sl in range(3):
            for par in range(2):
                for qt in range(6):
                    a = oacc(2*(sl+1) + par, qt)
                    p(f"ds_read_b128 v[{a}:{a+3}], v8 offset:{sl*12288 + (par*6 + qt)*1024}")
        p("v_and_b32 v12, 15, v0"); p("v_lshrrev_b32 v13, 4, v0"); p("v_lshlrev_b32 v12, 11, v12"); p("v_lshl_add_u32 v9, v13, 4, v12")
        for qt in range(6):
            for par in range(2):
                a = oacc(par, qt)
                for sl in range(3):
                    s_ = oacc(2*(sl+1) + par, qt)
                    for r in range(4): p(f"v_add_f32 v{a+r}, v{a+r}, v{s_+r}")
            a0, a1 = oacc(0, qt), oacc(1, qt)
            t0 = 16 + (qt % 4)*4
            p(f"v_cvt_pk_bf16_f32 v{t0}, v{a0}, v{a0+1}"); p(f"v_cvt_pk_bf16_f32 v{t0+1}, v{a0+2}, v{a0+3}")
            p(f"v_cvt_pk_bf16_f32 v{t0+2}, v{a1}, v{a1+1}"); p(f"v_cvt_pk_bf16_f32 v{t0+3}, v{a1+2}, v{a1+3}")
            p(f"s_add_u32 s88, s{kSig}, {qt}"); p("s_cmp_ge_u32 s88, 6"); p("s_cselect_b32 s89, 6, 0"); p("s_sub_u32 s88, s88, s89"); p("s_lshl_b32 s88, s88, 15")
            p(f"s_add_u32 s{kT0}, s{kOut}, s88")
            p(f"buffer_store_dwordx4 v[{t0}:{t0+3}], v9, s[{SX}:{SX+3}], s{kT0} offen {self.o.get('out_mod', '')}")

    def o_epilogue(self, last):
        p = self.p
        fuse_last = last and self.o.get("fuse")
        pre = []
        if fuse_last: pre = self.k3_loads(0, 0) + self.k3_loads(1, 1) + self.k3_loads(2, 2)
        defer = fuse_last and self.o.get("defer", True)
        self.deferred = []
        for qt in range(6): p(f"v_accvgpr_read_b32 v{LS+qt}, a{LA(qt)}")
        for qt in range(6): p(f"v_rcp_f32 v{LS+qt}, v{LS+qt}")
        vstage = [8, 12, 16, 20, 24, 28, 38, 42, 46, 50]
        for qt in range(6):
            for ks in range(4):
                m = qt*4 + ks
                a0, a1 = acc(2*ks, qt), acc(2*ks+1, qt)
                l = LS + qt
                if self.o.get("pk", True):
                    lp = l & ~1; sel = "op_sel_hi:[1,0]" if l % 2 == 0 else "op_sel:[0,1] op_sel_hi:[1,1]"
                    for a in (a0, a0+2, a1, a1+2): p(f"v_pk_mul_f32 v[{a}:{a+1}], v[{a}:{a+1}], v[{lp}:{lp+1}] {sel}")
                else:
                    for r in range(4): p(f"v_mul_f32 v{a0+r}, v{l}, v{a0+r}")
                    for r in range(4): p(f"v_mul_f32 v{a1+r}, v{l}, v{a1+r}")
                if defer: t0 = 54 if m < 14 else vstage[m - 14]
                else: t0 = SB + ((ks + 4*qt) % 6)*4
                p(f"v_cvt_pk_bf16_f32 v{t0}, v{a0}, v{a0+1}")
                p(f"v_cvt_pk_bf16_f32 v{t0+1}, v{a0+2}, v{a0+3}")
                p(f"v_cvt_pk_bf16_f32 v{t0+2}, v{a1}, v{a1+1}")
                p(f"v_cvt_pk_bf16_f32 v{t0+3}, v{a1+2}, v{a1+3}")
                n = ks*6 + qt
                mod = self.o['last_store_mod']
                if last:
                    for _ in range(2):
                        if pre:
                            for x in pre.pop(0): p.add(x)
                    if not defer or m < 6:
                        p(f"s_add_u32 s{sT0}, s{sOo}, {n*1024}")
                        p(f"buffer_store_dwordx4 v[{t0}:{t0+3}], v{VST}, s[{SO}:{SO+3}], s{sT0} offen {mod}", tag=("o",))
                    else:
                        if m < 14:
                            d = 224 + (m - 6)*4
                            for r in range(4): p(f"v_accvgpr_write_b32 a{d+r}, v{t0+r}")
                            src = f"a[{d}:{d+3}]"
                        else: src = f"v[{t0}:{t0+3}]"
                        self.deferred.append([ins(f"s_add_u32 s{sT2}, s{sOo}, {n*1024}"),
                                              ins(f"buffer_store_dwordx4 {src}, v{VST}, s[{SO}:{SO+3}], s{sT2} offen {mod}", tag=("o",))])
                else:
                    for r in range(4): p(f"v_accvgpr_write_b32 a{OS(n)+r}, v{t0+r}")

    def final(self):
        p = self.p
        p.wait_tag(("wo",))
        p("s_barrier")
        p("v_and_b32 v8, 15, v0"); p("v_lshrrev_b32 v2, 4, v0"); p("v_lshrrev_b32 v3, 2, v8"); p("v_and_b32 v7, 3, v8")
        p("v_lshl_add_u32 v6, v2, 2, v3"); p("v_lshlrev_b32 v6, 10, v6"); p("v_lshl_add_u32 v6, v7, 4, v6")
        p(f"s_lshl_b32 s88, s{sW}, 8"); p("v_add_u32 v6, s88, v6")
        for nt in range(8):
            u, par = nt >> 1, nt & 1
            d = 32 + nt*4
            p(f"ds_read_b64_tr_b16 v[{d}:{d+1}], v6 offset:{64*u + 8*par}")
            p(f"ds_read_b64_tr_b16 v[{d+2}:{d+3}], v6 offset:{16384 + 64*u + 8*par}")
        for nt in range(8):
            d = 32 + nt*4
            if nt % 4 == 0: p(f"s_add_u32 s{sT1}, s{sWTo}, {nt*1024}")
            p(f"buffer_store_dwordx4 v[{d}:{d+3}], v{VST}, s[{SWT}:{SWT+3}], s{sT1} offen offset:{(nt % 4)*1024} {self.o['last_store_mod']}")

    def build(self):
        p = self.p
        assert self.o["msum"]
        self.prologue()
        if self.o["timing"]: p("s_mov_b32 s99, 0")
        if self.o.get("delaywg"):
            p("s_and_b32 s88, s2, 7"); p("s_cmp_lg_u32 s88, 3"); p("s_cbranch_scc1 L_nodelay")
            p("s_memrealtime s[88:89]"); p("s_waitcnt lgkmcnt(0)"); p(f"s_add_u32 s90, s88, {self.o['delaywg']}")
            p.raw("L_spinw:"); p("s_memrealtime s[88:89]"); p("s_waitcnt lgkmcnt(0)"); p("s_cmp_lt_u32 s88, s90"); p("s_cbranch_scc1 L_spinw")
            p.raw("L_nodelay:")
        self.stamp()
        if self.o.get("entry"):
            p("s_mov_b32 m0, 62"); p("s_nop 1"); p("v_writelane_b32 v5, s100, m0")
        early = self.o.get("woearly")
        p(f"s_mov_b32 s{SO+2}, {0 if self.o.get('stA') else O_BYTES}")
        mid = self.o.get("womid")
        if mid:
            assert self.o.get("stA") and self.o.get("fuse") and self.o.get("stpat") == 3
            self.emit_groups(self.w_tile(0, 0) + self.x_tile(0) + self.w_tile(1, 0) + self.dma_wo_last())
        elif early:
            assert self.o.get("stA") and self.o.get("fuse")
            self.emit_groups(self.w_tile(0, 0) + self.x_tile(0) + self.dma_wo_last() + self.w_tile(1, 0))
        else:
            self.emit_groups(self.w_tile(0, 0) + self.x_tile(0) + self.w_tile(1, 0))
        self.prologue2()
        if mid:
            p(f"s_mov_b32 s{sOreal}, s{sOo}"); p(f"s_mov_b32 s{sOo}, {4*6144}")
            p(f"s_add_u32 s{SO}, s{SWT}, s{sWTo}"); p(f"s_addc_u32 s{SO+1}, s{SWT+1}, 0")
            p(f"s_sub_u32 s{SO}, s{SO}, {12*1024}"); p(f"s_subb_u32 s{SO+1}, s{SO+1}, 0")
            p(f"s_mov_b32 s{SO+2}, 0"); p(f"s_mov_b32 s{sSz1}, {20*1024}"); p(f"s_mov_b32 s{sSz2}, 0")
        if early:
            p(f"s_mov_b32 s{sOreal}, s{sOo}"); p(f"s_mov_b32 s{sOo}, {4*6144}")
            p(f"s_add_u32 s{SO}, s{SWT}, s{sWTo}"); p(f"s_addc_u32 s{SO+1}, s{SWT+1}, 0"); p(f"s_mov_b32 s{SO+2}, 8192")
            W = self.wo_prep_groups(stage=True)
            for g in W[:9]:
                for x in g: p.add(x)
            p.wait_tag(("wo",)); p("s_barrier")
            for g in W[9:]:
                for x in g: p.add(x)
        for item in range(2):
            last = item == 1
            p.raw("@@SB A"); self.qproj_a(); p.raw("@@SE A")
            p.raw(f"@@SB B{item}"); self.qproj_b(last); self.stamp(); p.raw(f"@@SE B{item}")
            p.raw("@@SB C"); self.attention_shared(); p.raw("@@SE C")
            p.raw(f"@@SB D{item}")
            self.attention_tail(last)
            self.stamp()
            if self.o.get("guard", True): self.softmax_check(item)
            self.o_epilogue(last)
            self.stamp()
            if not last:
                if self.o.get("woearly") or self.o.get("womid"):
                    p(f"s_mov_b32 s{sOo}, s{sOreal}"); p(f"s_mov_b32 s{SO}, s72"); p(f"s_mov_b32 s{SO+1}, s73")
                if self.o.get("womid"):
                    p(f"s_mov_b32 s{sSz1}, {O_BYTES}"); p(f"s_mov_b32 s{sSz2}, {O_BYTES}")
                p(f"s_add_u32 s{sWo}, s{sWo}, 256"); p(f"s_add_u32 s{sOo}, s{sOo}, {4*6144}")
                p(f"s_mov_b32 s{sItem}, 1"); p(f"s_mov_b32 s{SO+2}, {O_BYTES}")
            else:
                if self.o.get("fuse"): self.k3_main()
                self.stamp()
                p("s_waitcnt vmcnt(0)")
                self.stamp()
                self.stamp_flush()
                p("s_waitcnt vmcnt(0)")
            p.raw(f"@@SE D{item}")
        L, st = finalize(p.L)
        L = fold(L)
        segs, top = segments(L)
        out = [i for k, i in top if k == "ins"]
        lab = lambda t: I(t, "label")
        br = lambda tgt: [ins(f"s_cmp_eq_u32 s{sItem}, 1"), ins(f"s_cbranch_scc1 {tgt}")]
        out += [lab("L_A:")] + segs["A"] + br("L_B1") + segs["B0"] + [lab("L_C:")] + segs["C"] + br("L_D1") + segs["D0"] + [ins("s_branch L_A")]
        out += [lab("L_B1:")] + segs["B1"] + [ins("s_branch L_C")]
        out += [lab("L_D1:")] + segs["D1"] + [lab("K2_END:"), ins("s_endpgm")]
        if self.o.get("guard", True): out += self.fallback()
        return out, st

if __name__ == "__main__":
    k = K2(); L, st = k.build()
    print(st, len(L))
```

```python
from dsl import *
import struct

def f32(x): return "0x%08x" % struct.unpack("<I", struct.pack("<f", x))[0]

NB, SQ, DM, H, SK, DH = 16, 192, 512, 32, 512, 128
X_BYTES = NB*SQ*DM*2
KV_BYTES = NB*H*SK*DH*2
W_BYTES = DM*H*DH*2
O_BYTES = 2*NB*2*128*6*1024
WOT_OFF = O_BYTES
WOT_BYTES = 2*4*128*8*1024
OUT_BYTES = NB*SQ*1024*2

PHI = 65536
WSLOT = [65536, 81920, 98304]
XA, XB = 114688, 139264
DROP = 0x30000

ACC = 64
def acc(T, qt): return ACC + (T*6 + qt)*4
SB = 8
def S(buf, kt): return SB + buf*8 + kt*4
PB = 24
def P(buf): return PB + buf*4
LS = 32
KA = 38
VA = 42
DV = 50
WA = 54
XAD = 58
WD = [60, 61, 2, 3]
XD = [62, 63, 6, 7]
VST = 4
def Q(qt, ks): return (qt*4 + ks)*4
def OS(n): return n*4
def KF(buf, kt, ks): return 96 + buf*32 + (kt*4 + ks)*4
def VF(buf, dt): return 160 + buf*32 + dt*4
def WF(T): return 96 + T*4
def XF(buf, qt): return 128 + buf*24 + qt*4
ONES = 224
def LA(qt): return 228 + qt*4
SX, SW, SKV, SO, SWO, SWT = 4, 8, 12, 16, 20, 24
sW, sHP, sRH, sP, sB, sHG = 28, 29, 30, 31, 32, 33
sKVo, sKVl, sWo, sWl, sXo, sXl, sOo = 34, 35, 36, 37, 38, 39, 40
sT0, sT1, sC = 41, 42, 43
sWOo, sWTo = 44, 45
sItem, sCnt = 46, 47
sTile, sM, sTh1, sTh2, sWarmW, sWarmX, sWoM, sDrop, sTc, sRot = 74, 75, 76, 77, 78, 79, 80, 81, 84, 85
sT2 = 83
sC2 = 86
sWR, sXR = 78, 79

SFL = 92
kA, kBo, kT0, kT1, kOut, kCnt = 74, 78, 80, 81, 79, 47
sC1, sC2o = 97, 96
def oacc(nu, qt): return ACC + (nu*6 + qt)*4
def AF(buf, nu): return buf*56 + nu*4
def BF(buf, qt): return buf*56 + 32 + qt*4
VB4 = 6
VBQ = 58
kRho, kSig = 82, 85
sOreal = 98
VPOLL = 34
MF = "v_mfma_f32_16x16x32_bf16"
def mfma(d, dk, a, ak, b, bk, c=None):
    cs = "0" if c is None else rng(dk, c, 4)
    return ins(f"{MF} {rng(dk,d,4)}, {rng(ak,a,4)}, {rng(bk,b,4)}, {cs}")

class K2:
    def __init__(self, opts=None):
        self.o = dict(nt="nt", w_mod="", x_mod="", store_mod="sc1", last_store_mod="sc1", timing=False, msum=True, warm=False, qrot=True, stA=True, credit=4, out_mod="sc1", drop=[])
        if opts: self.o.update(opts)
        self.p = Prog()
        self.phase = ""

    def tile_addr(self):
        if not self.o.get("rot"):
            return [ins(f"s_add_u32 s{sTile}, s{sKVo}, s{sTc}"), ins(f"s_add_u32 s{sTc}, s{sTc}, 8192")]
        return [ins(f"s_add_u32 s{sTile}, s{sTc}, s{sRot}"), ins(f"s_and_b32 s{sTile}, s{sTile}, 0x1ffff"),
                ins(f"s_and_b32 s{sT0}, s{sTc}, 0x20000"), ins(f"s_add_u32 s{sTile}, s{sTile}, s{sT0}"),
                ins(f"s_add_u32 s{sTile}, s{sTile}, s{sKVo}"), ins(f"s_add_u32 s{sTc}, s{sTc}, 8192")]
    def dma_kv(self, tag, m0a, m0b, pre=()):
        nt = self.o['nt']
        G = []
        g = list(pre) + self.tile_addr() + [ins(m0a)]
        for k in range(4):
            g.append(ins(f"buffer_load_dwordx4 v{DV+k}, s[{SKV}:{SKV+3}], s{sTile} offen offset:{1024*k} {nt} lds", tag=tag))
            G.append(g); g = []
        g = [ins(f"s_add_u32 s{sT0}, s{sTile}, 4096"), ins(m0b)]
        for k in range(4):
            g.append(ins(f"buffer_load_dwordx4 v{DV+k}, s[{SKV}:{SKV+3}], s{sT0} offen offset:{1024*k} {nt} lds", tag=tag))
            G.append(g); g = []
        return G
    def dma_kv_abs(self, tag, slot):
        o = (slot >> 1)*PHI + (slot & 1)*8192
        return self.dma_kv(tag, f"s_add_u32 m0, s{sKVl}, {o}", f"s_add_u32 m0, s{sKVl}, {o + 4096}")
    def kv_pieces(self, tile, a, b):
        G = self.dma_kv_abs(("kv", tile), tile % 4)
        out = G[a:b]
        if a not in (0, 4):
            slot = tile % 4
            o = (slot >> 1)*PHI + (slot & 1)*8192 + (4096 if a >= 4 else 0)
            out[0] = [ins(f"s_add_u32 m0, s{sKVl}, {o}")] + out[0]
        return out
    def dma_w(self, tag, base_reg, goff, m0txt, rot=None):
        G = []
        if rot is None: g = [ins(f"s_add_u32 s{sT1}, s{base_reg}, {goff}")]
        else:
            g = [ins(f"s_add_u32 s{sT1}, s{sWR}, {rot*262144}"), ins(f"s_and_b32 s{sT1}, s{sT1}, 0x3fffff"), ins(f"s_add_u32 s{sT1}, s{sT1}, s{base_reg}")]
            if goff: g.append(ins(f"s_add_u32 s{sT1}, s{sT1}, {goff}"))
        g.append(ins(m0txt))
        for n in range(4):
            g.append(ins(f"buffer_load_dwordx4 v{WD[n]}, s[{SW}:{SW+3}], s{sT1} offen offset:{1024*n} {self.o['w_mod']} lds", tag=tag))
            G.append(g); g = []
        return G
    def x_soff(self, base_reg, tt):
        if not self.o.get("qrot"): return [ins(f"s_add_u32 s{sT1}, s{base_reg}, {tt*128}")]
        return [ins(f"s_add_u32 s{sT1}, s{sXR}, {tt*128}"), ins(f"s_and_b32 s{sT1}, s{sT1}, 1023"), ins(f"s_add_u32 s{sT1}, s{sT1}, s{base_reg}")]
    def dma_x(self, tag, base_reg, tt, m0a, m0b):
        G = []
        m = self.o['x_mod']
        g = self.x_soff(base_reg, tt) + [ins(m0a)]
        for n in range(4):
            g.append(ins(f"buffer_load_dwordx4 v{XD[n]}, s[{SX}:{SX+3}], s{sT1} offen offset:{1024*n} {m} lds", tag=tag))
            G.append(g); g = []
        g = [ins(f"s_add_u32 s{sT1}, s{sT1}, {4*8192}"), ins(m0b)]
        for n in range(2):
            g.append(ins(f"buffer_load_dwordx4 v{XD[n]}, s[{SX}:{SX+3}], s{sT1} offen offset:{1024*n} {m} lds", tag=tag))
            G.append(g); g = []
        return G
    def w_tile(self, t, nxt=0):
        m0 = f"s_add_u32 m0, s{sWl}, {WSLOT[t % 3]}"
        if self.o.get("qrot"): return self.dma_w(("w", t), sWo, nxt*256, m0, rot=t)
        return self.dma_w(("w", t), sWo, nxt*256 + t*262144, m0)
    def x_tile(self, tt):
        sl = XB if tt % 2 == 0 else XA
        return self.dma_x(("x", tt), sXo, tt, f"s_add_u32 m0, s{sXl}, {sl}", f"s_add_u32 m0, s{sXl}, {sl + 4096}")
    def warmup(self, nxt):
        if not self.o["warm"]: return []
        G = []
        def ld(v, srd, soff, off, mod):
            i = ins(f"buffer_load_dwordx4 a[252:255], v{v}, s[{srd}:{srd+3}], s{soff} offen offset:{off} {mod}", tag=("warm",))
            i.kind = "dma"; i.wr = set(); i.rd.discard("m0")
            return i
        for k in range(2):
            g = [ins(f"s_add_u32 s{sT1}, s{sWarmW}, {nxt*256 + k*262144}")]
            for n in range(4):
                g.append(ld(WD[n], SW, sT1, 1024*n, self.o['w_mod'])); G.append(g); g = []
        if nxt == 0 or self.o.get("warmx1", True):
            for k in range(2):
                g = [ins(f"s_add_u32 s{sT1}, s{sWarmX}, {k*128}")]
                for n in range(4):
                    g.append(ld(XD[n], SX, sT1, 1024*n, self.o['x_mod'])); G.append(g); g = []
                g = [ins(f"s_add_u32 s{sT1}, s{sT1}, {4*8192}")]
                for n in range(2):
                    g.append(ld(XD[n], SX, sT1, 1024*n, self.o['x_mod'])); G.append(g); g = []
        return G
    def next_item_prefetch(self, nxt=1):
        return self.w_tile(0, nxt) + self.x_tile(0) + self.w_tile(1, nxt) + self.w_tile(2, nxt) + self.x_tile(1)
    def dma_wo(self):
        G = []
        for half in range(2):
            g = [ins(f"s_add_u32 s{sT1}, s{sWOo}, {half*4096}"), ins(f"s_add_u32 m0, s{sWoM}, {half*4096}")]
            for n in range(4):
                g.append(ins(f"buffer_load_dwordx4 v{VST}, s[{SWO}:{SWO+3}], s{sT1} offen offset:{1024*n} nt lds", tag=("wo",)))
                G.append(g); g = []
        return G
    def o_store(self, n, mod, prev, force=False):
        g = []
        if n % 4 == 0 or force: g.append(ins(f"s_add_u32 s{sT2}, s{sOo}, {((n & ~3)*1024 - (4*6144 if prev else 0)) & 0xffffffff}"))
        g.append(ins(f"buffer_store_dwordx4 {rng('a', OS(n), 4)}, v{VST}, s[{SO}:{SO+3}], s{sT2} offen offset:{(n % 4)*1024} {mod}", tag=("o",)))
        return g
    def rd_k(self, par, kt, ks):
        return ins(f"ds_read_b128 {rng('a', KF(par, kt, ks), 4)}, v{KA+ks} offset:{par*8192 + kt*4096}")
    def rd_v(self, par, dt, kt):
        return ins(f"ds_read_b64_tr_b16 {rng('a', VF(par, dt) + 2*kt, 2)}, v{VA+dt} offset:{par*8192 + kt*4096}")
    def rd_w(self, t, T, h2):
        ks, u = T >> 1, T & 1
        return ins(f"ds_read_b64_tr_b16 {rng('a', WF(T) + 2*h2, 2)}, v{WA+ks} offset:{(t % 3)*16384 + h2*2048 + 8*u}")
    def rd_x(self, t, qt):
        tt = t >> 1
        return ins(f"ds_read_b128 {rng('a', XF(t % 2, qt), 4)}, v{XAD + (t & 1)} offset:{(24576 if tt % 2 == 0 else 0) + qt*2048}")

    def prologue(self):
        p = self.p
        if self.o.get("entry"): p("s_memrealtime s[100:101]")
        p("s_cmp_ge_u32 s2, 256")
        p("s_cbranch_scc1 K2_END")
        p("s_load_dwordx16 s[48:63], s[0:1], 0")
        p("s_load_dwordx8 s[64:71], s[0:1], 64")
        p("s_load_dwordx2 s[72:73], s[0:1], 96")
        p(f"v_lshrrev_b32 v1, 6, v0")
        p(f"v_and_b32 v0, 63, v0")
        p(f"v_readfirstlane_b32 s{sW}, v1")
        p("s_and_b32 s86, s2, 7")
        p("s_lshr_b32 s87, s2, 3")
        p(f"s_lshr_b32 s{sP}, s86, 2")
        p("s_and_b32 s88, s86, 1"); p("s_lshl_b32 s88, s88, 3"); p("s_and_b32 s82, s87, 7")
        p(f"s_add_u32 s{sB}, s88, s82")
        p("s_lshr_b32 s88, s86, 1"); p("s_and_b32 s88, s88, 1"); p("s_lshl_b32 s88, s88, 2"); p("s_lshr_b32 s83, s87, 3")
        p(f"s_add_u32 s{sHG}, s88, s83")
        p(f"s_and_b32 s{sHP}, s{sW}, 1")
        p(f"s_lshr_b32 s{sRH}, s{sW}, 1")
        p("s_waitcnt lgkmcnt(0)")
        p(f"s_cmp_eq_u32 s{sP}, 0")
        p(f"s_cselect_b32 s{SX}, s48, s58"); p(f"s_cselect_b32 s{SX+1}, s49, s59")
        p(f"s_cselect_b32 s{SW}, s54, s64"); p(f"s_cselect_b32 s{SW+1}, s55, s65")
        p(f"s_cselect_b32 s{SWO}, s56, s66"); p(f"s_cselect_b32 s{SWO+1}, s57, s67")
        p(f"s_cselect_b32 s90, s50, s60"); p(f"s_cselect_b32 s91, s51, s61")
        p(f"s_cselect_b32 s92, s52, s62"); p(f"s_cselect_b32 s93, s53, s63")
        p(f"s_cmp_eq_u32 s{sRH}, 0")
        p(f"s_cselect_b32 s{SKV}, s90, s92"); p(f"s_cselect_b32 s{SKV+1}, s91, s93")
        p(f"s_cselect_b32 s94, 64, 128"); p(f"s_cselect_b32 s95, 128, 0"); p("s_mov_b32 s96, 128"); p(f"s_cselect_b32 s96, 192, s96")
        p(f"s_cselect_b32 s97, 0, 1")
        p(f"s_cselect_b32 s{sKVl}, 0, 32768")
        for r, n in ((SX, X_BYTES), (SW, W_BYTES), (SWO, W_BYTES), (SKV, KV_BYTES)):
            p(f"s_mov_b32 s{r+2}, {n}"); p(f"s_mov_b32 s{r+3}, 0x00020000")
        p(f"s_mov_b32 s{SO}, s72"); p(f"s_mov_b32 s{SO+1}, s73"); p(f"s_mov_b32 s{SO+2}, 0"); p(f"s_mov_b32 s{SO+3}, 0x00020000")
        p(f"s_add_u32 s{SWT}, s72, {WOT_OFF}"); p(f"s_addc_u32 s{SWT+1}, s73, 0"); p(f"s_mov_b32 s{SWT+2}, {WOT_BYTES}"); p(f"s_mov_b32 s{SWT+3}, 0x00020000")
        p(f"s_lshl_b32 s88, s{sB}, 5"); p(f"s_lshl_b32 s89, s{sHG}, 2"); p("s_add_u32 s88, s88, s89"); p(f"s_lshl_b32 s89, s{sHP}, 1"); p("s_add_u32 s88, s88, s89")
        p(f"s_lshl_b32 s{sKVo}, s88, 17")
        p(f"s_lshl_b32 s89, s{sHP}, 14"); p(f"s_add_u32 s{sKVl}, s{sKVl}, s89")
        p(f"s_lshl_b32 s88, s{sW}, 16"); p(f"s_lshl_b32 s89, s{sHG}, 10"); p(f"s_add_u32 s{sWo}, s88, s89")
        p(f"s_lshl_b32 s{sWl}, s{sW}, 12")
        p(f"s_lshl_b32 s88, s82, 19"); p(f"s_add_u32 s{sWarmW}, s{sWo}, s88")
        p(f"s_mul_i32 s88, s{sB}, 196608"); p(f"s_mul_i32 s89, s{sW}, 49152"); p(f"s_add_u32 s{sXo}, s88, s89")
        p(f"s_mul_i32 s{sXl}, s{sW}, 6144")
        p(f"s_lshl_b32 s88, s83, 8"); p(f"s_add_u32 s{sWarmX}, s{sXo}, s88")
        if self.o.get("qrot"):
            assert not self.o["warm"]
            p("s_lshl_b32 s88, s83, 1"); p("s_add_u32 s88, s88, s82"); p("s_and_b32 s88, s88, 7")
            p(f"s_lshl_b32 s{sWR}, s88, 19"); p(f"s_lshl_b32 s{sXR}, s88, 7")
        p(f"s_mov_b32 s{sDrop}, {DROP}")
        p("s_mul_i32 s88, s2, 5"); p("s_lshr_b32 s89, s2, 4"); p("s_add_u32 s88, s88, s89"); p("s_and_b32 s88, s88, 15"); p(f"s_lshl_b32 s{sRot}, s88, 13")
        p(f"s_lshl_b32 s88, s{sP}, 4"); p(f"s_add_u32 s88, s88, s{sB}"); p("s_lshl_b32 s88, s88, 1"); p(f"s_add_u32 s88, s88, s{sRH}")
        p("s_lshl_b32 s88, s88, 7"); p(f"s_lshl_b32 s89, s{sHG}, 4"); p("s_add_u32 s88, s88, s89"); p(f"s_lshl_b32 s89, s{sHP}, 3"); p("s_add_u32 s88, s88, s89")
        p(f"s_mul_i32 s{sOo}, s88, 6144")
        p("s_and_b32 s88, s86, 3"); p("s_lshl_b32 s88, s88, 5"); p("s_add_u32 s88, s88, s87")
        p(f"s_lshl_b32 s89, s88, 15"); p(f"s_lshl_b32 s98, s{sW}, 13"); p(f"s_add_u32 s{sWOo}, s89, s98")
        p(f"s_lshl_b32 s89, s{sP}, 2"); p(f"s_add_u32 s89, s89, s{sW}"); p("s_lshl_b32 s89, s89, 7"); p("s_add_u32 s89, s89, s88"); p(f"s_lshl_b32 s{sWTo}, s89, 13")
        p(f"s_mov_b32 s{sC}, {f32(1.4426950408889634*128**-0.5)}")
        p(f"s_mov_b32 s{sItem}, 0")
        self.late_consts = True
        i_, g_, r_, c_ = "v14", "v8", "v9", "v10"
        p(f"v_and_b32 {i_}, 15, v0"); p(f"v_lshrrev_b32 {g_}, 4, v0"); p(f"v_lshrrev_b32 {r_}, 2, {i_}"); p(f"v_and_b32 {c_}, 3, {i_}")
        p(f"v_lshlrev_b32 v{VST}, 4, v0")
        p("v_lshrrev_b32 v11, 5, v0"); p("v_and_b32 v12, 15, v0"); p("v_lshlrev_b32 v13, 2, v11"); p("v_xor_b32 v12, v12, v13"); p("v_lshlrev_b32 v12, 4, v12")
        p("v_lshl_add_u32 v12, v11, 13, v12"); p("v_bfe_u32 v13, v0, 4, 1"); p(f"v_lshl_add_u32 v{WD[0]}, v13, 9, v12")
        p(f"v_xor_b32 v{WD[1]}, 128, v{WD[0]}"); p(f"v_add_u32 v{WD[2]}, {2*15360}, v{WD[0]}"); p(f"v_add_u32 v{WD[3]}, {3*15360}, v{WD[1]}"); p(f"v_add_u32 v{WD[1]}, 15360, v{WD[1]}")
        p("v_lshrrev_b32 v11, 3, v0"); p("v_and_b32 v12, 7, v0"); p(f"v_xor_b32 v12, v12, {g_}"); p("v_lshlrev_b32 v12, 4, v12")
        p(f"v_lshl_add_u32 v{XD[0]}, v11, 10, v12"); p(f"v_xor_b32 v{XD[1]}, 64, v{XD[0]}")
        p(f"v_add_u32 v{XD[2]}, {2*7168}, v{XD[0]}"); p(f"v_add_u32 v{XD[3]}, {3*7168}, v{XD[1]}"); p(f"v_add_u32 v{XD[1]}, 7168, v{XD[1]}")
        p(f"v_lshlrev_b32 v11, s97, {g_}"); p(f"v_xor_b32 v11, v11, {i_}"); p("v_lshlrev_b32 v11, 4, v11"); p(f"v_lshl_add_u32 v{DV}, {g_}, 8, v11")
        for k in range(1, 4): p(f"v_xor_b32 v{DV+k}, s{93+k}, v{DV}")
        self.lane = (i_, g_, r_, c_)
    def prologue2(self):
        p = self.p
        i_, g_, r_, c_ = self.lane
        p(f"s_lshl_b32 s88, s{sHP}, 14")
        p(f"v_xor_b32 v11, {g_}, {i_}"); p("v_lshlrev_b32 v11, 4, v11"); p(f"v_lshl_add_u32 v11, {i_}, 8, v11"); p(f"v_add_u32 v{KA}, s88, v11")
        for ks in range(1, 4): p(f"v_xor_b32 v{KA+ks}, {64*ks}, v{KA}")
        p(f"v_and_b32 v11, 1, {g_}"); p("v_lshlrev_b32 v11, 2, v11"); p(f"v_add_u32 v11, v11, {r_}"); p("v_lshlrev_b32 v11, 1, v11")
        p(f"v_lshrrev_b32 v12, 1, {c_}"); p("v_xor_b32 v11, v11, v12"); p("v_lshlrev_b32 v11, 4, v11")
        p(f"v_and_b32 v12, 1, {c_}"); p("v_lshl_add_u32 v11, v12, 3, v11")
        p(f"v_lshl_add_u32 v12, {g_}, 2, {r_}"); p("v_lshl_add_u32 v11, v12, 8, v11")
        p("s_add_u32 s89, s88, 32768"); p(f"v_add_u32 v{VA}, s89, v11")
        for dt in range(1, 8): p(f"v_xor_b32 v{VA+dt}, {32*dt}, v{VA}")
        p(f"s_lshl_b32 s88, s{sHP}, 4")
        p(f"v_add_u32 v11, s88, {c_}"); p(f"v_lshlrev_b32 v12, 2, {r_}"); p("v_xor_b32 v11, v11, v12"); p("v_lshlrev_b32 v11, 4, v11")
        p(f"v_lshl_add_u32 v12, {g_}, 3, {r_}"); p("v_lshl_add_u32 v11, v12, 9, v11"); p(f"v_add_u32 v{WA}, {WSLOT[0]}, v11")
        for ks in range(1, 4): p(f"v_xor_b32 v{WA+ks}, {64*ks}, v{WA}")
        p(f"s_mul_i32 s88, s{sRH}, {96*128}"); p(f"s_add_u32 s88, s88, {XA}")
        p(f"v_lshrrev_b32 v11, 1, {i_}"); p(f"v_xor_b32 v11, v11, {g_}"); p("v_lshlrev_b32 v11, 4, v11"); p(f"v_lshl_add_u32 v11, {i_}, 7, v11"); p(f"v_add_u32 v{XAD}, s88, v11")
        p(f"v_xor_b32 v{XAD+1}, 64, v{XAD}")
        p(f"s_mov_b32 s{sC2}, s{sC}"); p(f"s_mov_b32 s{sC2+1}, s{sC}")
        if self.o.get("fuse"):
            p(f"s_mov_b32 s{SFL}, s70"); p(f"s_mov_b32 s{SFL+1}, s71"); p(f"s_mov_b32 s{SFL+2}, 256"); p(f"s_mov_b32 s{SFL+3}, 0x00020000")
            sh = 16 if self.o.get("dbg") is not None else 0
            p(f"s_lshl_b32 s{sC1}, s{sP}, 2"); p(f"s_add_u32 s{sC1}, s{sC1}, {4*sh}")
            p(f"s_lshl_b32 s88, s{sP}, 4"); p(f"s_add_u32 s88, s88, s{sB}"); p(f"s_add_u32 s88, s88, {2+sh}"); p(f"s_lshl_b32 s{sC2o}, s88, 2")
        if self.o["msum"]:
            p("v_mov_b32 v11, 0x3f803f80")
            for r in range(4): p(f"v_accvgpr_write_b32 a{ONES+r}, v11")

    def stamp(self, fine=False):
        if not self.o["timing"]: return
        if fine and not self.o.get("fine"): return
        p = self.p
        p(f"s_memrealtime s[88:89]")
        p(f"s_memtime s[90:91]")
        p("s_waitcnt lgkmcnt(0)")
        p("s_mov_b32 m0, s99"); p("s_nop 1")
        p(f"v_writelane_b32 v5, s88, m0")
        p(f"v_writelane_b32 v1, s90, m0")
        p("s_add_u32 s99, s99, 1")
    def stamp_flush(self):
        if not self.o["timing"]: return
        p = self.p
        if self.o.get("dbg") is not None:
            p(f"s_cmp_eq_u32 s2, {self.o['dbg']}"); p("s_cselect_b32 s90, 64, 0"); p(f"s_cmp_eq_u32 s{sW}, 0"); p("s_cselect_b32 s90, s90, 0")
            p("s_mov_b32 s88, s70"); p("s_mov_b32 s89, s71"); p("s_mov_b32 s91, 0x00020000")
            src = "v1" if self.o.get("dbgcyc") else "v5"
            p("v_lshlrev_b32 v6, 2, v0")
            p(f"buffer_store_dword {src}, v6, s[88:91], 0 offen")
            if not self.o.get("fuse"):
                p("s_add_u32 s88, s88, 512"); p("s_addc_u32 s89, s89, 0"); p("s_cmp_lg_u32 s90, 0"); p("s_cselect_b32 s90, 52, 0")
                p(f"buffer_store_dword {src}, v6, s[88:91], 0 offen")
            return
        p(f"s_add_u32 s88, s72, {64<<20}"); p("s_addc_u32 s89, s73, 0"); p(f"s_mov_b32 s90, {1<<20}"); p("s_mov_b32 s91, 0x00020000")
        p(f"s_lshl_b32 s92, s2, 2"); p(f"s_add_u32 s92, s92, s{sW}"); p("s_lshl_b32 s92, s92, 9")
        p("v_lshlrev_b32 v6, 2, v0")
        p("buffer_store_dword v5, v6, s[88:91], s92 offen")
        p("buffer_store_dword v1, v6, s[88:91], s92 offen offset:256")

    def emit_groups(self, groups):
        for g in groups:
            for x in g: self.p.add(x)
    def keep(self, x):
        drop = self.o["drop"]; ph = self.phase
        if x.kind == "dma" and ph + "_dma" in drop: return False
        if x.kind == "ds_read" and ph + "_lds" in drop: return False
        if x.kind == "barrier" and ph + "_bar" in drop: return False
        if x.kind == "trans" and ph + "_exp" in drop: return False
        if x.kind == "valu" and x.txt.startswith("v_add_f32") and ph + "_add" in drop: return False
        if x.kind == "valu" and x.txt.startswith("v_cvt") and ph + "_cvt" in drop: return False
        if x.kind == "vstore" and ph + "_st" in drop: return False
        return True
    def run(self, mf, chains, pre=()):
        ch = [[([x for x in g if self.keep(x)], lo, hi) for g, lo, hi in c] for c in chains]
        ch = [[it for it in c if it[0]] for c in ch]
        if self.phase + "_mfma" in self.o["drop"]: mf = [ins("s_nop 0") for _ in mf]
        self.p.extend(gapfill(mf, ch, pre=[x for x in pre if self.keep(x)]))

    def spaced(self, G, lo, hi):
        n = len(G)
        out = []
        for k, g in enumerate(G):
            pos = lo + (k*(hi - lo + 1))//n
            out.append((g, pos, pos + 1))
        return out
    def qstep(self, t, stores=(), sig=False):
        p = self.p
        self.phase = "qp"
        mf = []
        for T in range(8):
            for qt in range(6):
                mf.append(mfma(acc(T, qt), "v", WF(T), "a", XF(t % 2, qt), "a", None if t == 0 else acc(T, qt)))
        need = []
        for qt in range(6): need += R("a", XF(t % 2, qt), 4)
        for T in range(6): need += R("a", WF(T), 4)
        pre = [wait_regs(need)]
        chains = []
        BG = 11
        slow = []
        if t < 15:
            bar = [wait_tag(("w", t+1))]
            if t % 2 == 1: bar.append(wait_tag(("x", (t+1) >> 1)))
            chains.append([(bar, BG-1, BG-1), ([ins("s_waitcnt lgkmcnt(0)"), ins("s_barrier")], BG, BG)])
            cw = []
            for T in range(8):
                lo = max(BG+1, 6*T + 5)
                cw += [([self.rd_w(t+1, T, 0)], lo, min(47, lo + 8)), ([self.rd_w(t+1, T, 1)], lo, min(47, lo + 9))]
            chains.append(cw)
            chains.append([([self.rd_x(t+1, qt)], BG+1, 40) for qt in range(6)])
            GW = self.w_tile(t+3) if t + 3 <= 15 else []
            early = []; GX = []
            if t % 2 == 1 and (t >> 1) + 2 <= 7: GX = self.x_tile((t >> 1) + 2)[:3]
            if t % 2 == 0 and t >= 2 and ((t-1) >> 1) + 2 <= 7:
                tt = ((t-1) >> 1) + 2; sl = XB if tt % 2 == 0 else XA
                early = self.x_tile(tt)[3:]
                early[0] = self.x_soff(sXo, tt) + [ins(f"s_add_u32 m0, s{sXl}, {sl}")] + early[0]
            if t == 0: early = self.w_tile(2) + self.x_tile(1)
            late = GW + GX
            plan = self.o.get("kvplan", {10: (0, 0, 4), 11: (0, 4, 8), 12: (1, 0, 4), 13: (1, 4, 8)})
            if t in plan or str(t) in plan:
                slow = self.kv_pieces(*(plan.get(t) or plan.get(str(t))))
            c = []
            if t == 0:
                c = self.spaced(early + late, 0, 47); early = []; late = []
            if early:
                span = BG - 1
                for k, g in enumerate(early): c.append((g, int(k*span/len(early)), int(k*span/len(early)) + 1))
            hi = 47 if not (slow or stores) else (39 if len(slow) <= 2 else 32)
            if late: c += self.spaced(late, BG+2, hi)
            if slow: c += self.spaced(slow, (41 if len(slow) <= 2 else 34) if late else BG+2, 47)
            if c: chains.append(c)
        else:
            chains.append([([wait_tag(("kv", 0))], BG-1, BG-1), ([ins("s_waitcnt lgkmcnt(0)"), ins("s_barrier")], BG, BG)])
            G = self.kv_pieces(2, 0, 4 if self.o.get("look", 3) == 3 else 8)
            if self.o.get("kv15"): G = self.kv_pieces(*self.o["kv15"]) + G
            chains.append(self.spaced(G, BG+1, 47))
        if sig:
            chains.append([(self.signal(f"v_mov_b32 v{VPOLL+2}, s{sC1}"), BG+1, BG+3)])
        if stores:
            lo = 26 if t == 12 else 0
            if self.o.get("stA"): lo = 41
            chains.append(self.spaced([self.o_store(n, self.o["store_mod"], True, force=bool(self.o.get("stA")) and n % 2 == 0) for n in stores], lo, 47))
        self.run(mf, chains, pre)

    def qproj_a(self):
        p = self.p
        p(f"s_lshl_b32 s{sTc}, s{sItem}, 17")
        p.wait_tag(("w", 0)); p.wait_tag(("x", 0))
        p("s_barrier")
        self.stamp()
        for T in range(8):
            p.add(self.rd_w(0, T, 0)); p.add(self.rd_w(0, T, 1))
        for qt in range(6): p.add(self.rd_x(0, qt))
        for t in range(12):
            self.qstep(t, [2*t, 2*t+1] if self.o.get("stA") else ())
            if t in (3, 7, 11): self.stamp(True)
    def qproj_b(self, last):
        p = self.p
        st = (lambda a, b: list(range(a, b))) if (last and not self.o.get("stA")) else (lambda a, b: [])
        self.qstep(12, st(0, 3)); self.qstep(13, st(3, 9)); self.qstep(14, st(9, 15))
        self.qstep(15, st(15, 18), sig=bool(last and self.o.get("fuse")))
        self.stamp()
        for kt in range(2):
            for ks in range(4): p.add(self.rd_k(0, kt, ks))
        tmp = S(0, 0)
        rest = self.kv_pieces(2, 4, 8) if self.o.get("look", 3) == 3 else []
        late = st(18, 24)
        for qt in range(6):
            for ks in range(4):
                n = qt*4 + ks
                a0, a1 = acc(2*ks, qt), acc(2*ks+1, qt)
                if self.o.get("pk", True):
                    for a in (a0, a0+2, a1, a1+2): p(f"v_pk_mul_f32 v[{a}:{a+1}], v[{a}:{a+1}], s[{sC2}:{sC2+1}]")
                else:
                    for r in range(4): p(f"v_mul_f32 v{a0+r}, s{sC}, v{a0+r}")
                    for r in range(4): p(f"v_mul_f32 v{a1+r}, s{sC}, v{a1+r}")
                t0 = tmp + (n % 4)*4
                p(f"v_cvt_pk_bf16_f32 v{t0}, v{a0}, v{a0+1}")
                p(f"v_cvt_pk_bf16_f32 v{t0+1}, v{a0+2}, v{a0+3}")
                p(f"v_cvt_pk_bf16_f32 v{t0+2}, v{a1}, v{a1+1}")
                p(f"v_cvt_pk_bf16_f32 v{t0+3}, v{a1+2}, v{a1+3}")
                if late and n % 2 == 0 and n < 18:
                    m = late.pop(0)
                    for x in self.o_store(m, self.o["store_mod"], True, force=True): p.add(x)
                if self.o.get("dummy_mfma"):
                    for _ in range(self.o["dummy_mfma"]): p.add(mfma(252, "a", KF(0, 0, 0), "a", KF(0, 1, 0), "a", None))
                for r in range(4): p(f"v_accvgpr_write_b32 a{Q(qt,ks)+r}, v{t0+r}")
                if rest and n % 4 == 3 and n >= 7:
                    for x in rest.pop(0): p.add(x)
            if qt < 4:
                for dt in (2*qt, 2*qt+1):
                    p.add(self.rd_v(0, dt, 0)); p.add(self.rd_v(0, dt, 1))
        assert not rest and not late

    def period(self, n, dma=(), pre=(), early=(), extra=()):
        p = self.p
        self.phase = "at"
        msum = self.o["msum"]
        j, pp = divmod(n, 6)
        qk = []; pv = []
        if n < 96:
            sb = n % 2
            for kt in range(2):
                for ks in range(4):
                    qk.append(mfma(S(sb, kt), "v", KF(j % 2, kt, ks), "a", Q(pp, ks), "a", None if ks == 0 else S(sb, kt)))
        if n >= 2:
            jj, qt = divmod(n-2, 6)
            pb = (n-2) % 2
            for dt in range(8):
                pv.append(mfma(acc(dt, qt), "v", VF(jj % 2, dt), "a", P(pb), "v", None if jj == 0 else acc(dt, qt)))
        mf = []
        for k in range(8):
            if qk: mf.append(qk[k])
            if pv: mf.append(pv[k])
        if n >= 2 and msum:
            mf.append(mfma(LA(qt), "a", ONES, "a", P(pb), "v", None if jj == 0 else LA(qt)))
        nm = len(mf)
        sc = nm/17.0 if msum else nm/16.0
        def G(x): return min(nm-1, int(x*sc))
        chains = []
        if 1 <= n <= 96:
            jj2, qt2 = divmod(n-1, 6)
            sb = (n-1) % 2; pb2 = (n-1) % 2
            e = [S(sb, 0)+r for r in range(4)] + [S(sb, 1)+r for r in range(4)]
            chains.append([([ins(f"v_exp_f32 v{e[k]}, v{e[k]}")], G(2*k), G(2*k)) for k in range(8)])
            cv = []
            for k in range(8):
                if not msum: cv.append(([ins(f"v_add_f32 v{LS+qt2}, v{LS+qt2}, v{e[k]}")], G(2*k+1), G(2*k+1)))
                if k % 2 == 1:
                    cv.append(([ins(f"v_cvt_pk_bf16_f32 v{P(pb2)+k//2}, v{e[k-1]}, v{e[k]}")], G(2*k+1), G(2*k+1)))
            chains.append(cv)
        if n >= 2:
            jb, q = divmod(n-2, 6)
            if jb + 1 <= 15:
                par = (jb+1) % 2
                rds = []
                if q in (0, 1): rds = [self.rd_k(par, q, ks) for ks in range(4)]
                else:
                    for dt in range((q-2)*2, (q-2)*2+2): rds += [self.rd_v(par, dt, 0), self.rd_v(par, dt, 1)]
                gp = [1, 5, 9, 13] if q != 5 else [1, 5, 9, 10]
                chains.append([([x], G(gp[k]), G(gp[k])) for k, x in enumerate(rds)])
        if dma:
            nd = sum(1 for x in dma if x.kind == "dma")
            slots = {0: [], 1: [16], 2: [11, 16], 4: [3, 7, 11, 16], 8: [2, 4, 6, 8, 10, 12, 14, 16]}.get(nd) or [int(3 + (16-3)*k/(nd-1)) for k in range(nd)]
            ch = []; seen = 0
            for x in dma:
                if x.kind == "dma":
                    g = G(slots[seen]); seen += 1
                    grp = [x] if x.meta.get("credit") is None else [ins(f"s_waitcnt vmcnt({x.meta['credit']})"), x]
                    ch.append((grp, g, g))
                else:
                    ch.append(([x], 0, nm-1))
            for k in range(len(ch)-2, -1, -1):
                if ch[k][0][-1].kind != "dma": ch[k] = (ch[k][0], 0, max(0, ch[k+1][2] - (1 if ch[k+1][0][-1].kind == "dma" else 0)))
            chains.append(ch)
        if early: chains.append([([x], 0, nm-1) for x in early])
        if extra: chains.append([(g, (k*nm)//len(extra), nm-1) for k, g in enumerate(extra)])
        self.run(mf, chains, pre)

    def body(self, j, dmaG, tog=(), nper=6, extra=(), extra2=()):
        bar = []
        if j + 1 <= 15: bar.append(wait_tag(("kv", j+1)))
        if extra: bar.append(wait_tag(("wo",)))
        bar += [ins("s_waitcnt lgkmcnt(0)"), ins("s_barrier")]
        if self.o.get("baracct"):
            b0 = [ins("s_memtime s[92:93]"), ins("s_waitcnt lgkmcnt(0)")]
            b1 = [ins("s_memtime s[94:95]"), ins("s_waitcnt lgkmcnt(0)")]
            b2 = [ins("s_memtime s[96:97]"), ins("s_waitcnt lgkmcnt(0)"), ins("s_sub_u32 s98, s94, s92"), ins("s_add_u32 s100, s100, s98"),
                  ins("s_sub_u32 s98, s96, s94"), ins("s_add_u32 s101, s101, s98")]
            bar = b0 + bar[:1] + b1 + bar[1:] + b2
        tk = [x for x in tog if any(f"v{KA+z}," in x.txt for z in range(4))]
        tv = [x for x in tog if x not in tk]
        flat = [x for g in dmaG for x in g]
        cr = self.o.get("credit")
        if cr is not None and j <= 12:
            for x in flat:
                if x.kind == "dma": x.meta["credit"] = cr
        nd = sum(1 for x in flat if x.kind == "dma")
        if nd == 8: cnt = self.o.get("dmacnt", [1, 1, 2, 1, 1, 2])
        else: cnt = [nd//6 + (1 if q < nd % 6 else 0) for q in range(6)]
        per = [[] for _ in range(6)]
        q = 0; seen = 0
        for x in flat:
            while q < 5 and seen >= cnt[q]: q += 1; seen = 0
            per[q].append(x)
            if x.kind == "dma": seen += 1
        for q in range(6):
            e = tv[:4] if q == 0 else (tv[4:] if q == 1 else [])
            ex = []
            if extra or extra2:
                xs = list(extra) + list(extra2)
                n = len(xs); ex = xs[q*n//6:(q+1)*n//6]
            self.period(6*j + 2 + q, dma=per[q], pre=(bar + tk) if q == 0 else (), early=e, extra=ex)

    def tog(self):
        return [ins(f"v_xor_b32 v{KA+x}, {PHI}, v{KA+x}") for x in range(4)] + [ins(f"v_xor_b32 v{VA+x}, {PHI}, v{VA+x}") for x in range(8)]
    def attention_shared(self):
        p = self.p
        look = self.o.get("look", 3)
        if look == 4:
            t3 = self.kv_pieces(3, 0, 8)
            self.period(0, dma=[x for g in t3[:4] for x in g]); self.period(1, dma=[x for g in t3[4:] for x in g])
            self.body(0, self.dma_kv_abs(("kv", 4), 0))
        else:
            self.period(0); self.period(1)
            self.body(0, self.dma_kv_abs(("kv", 3), 3))
        p(f"s_mov_b32 s{sM}, s{sKVl}")
        p(f"s_mov_b32 s{sCnt}, 5")
        for k in range(5):
            j = 1 + 2*k
            p.raw(f"@@LB at {k}")
            self.stamp(True)
            if look == 4:
                g1 = self.dma_kv(("kv", j+4), f"s_add_u32 m0, s{sM}, 8192", f"s_add_u32 m0, s{sM}, 12288")
                self.body(j, g1, tog=self.tog())
                g2 = self.dma_kv(("kv", j+5), f"s_add_u32 m0, s{sM}, 0", f"s_add_u32 m0, s{sM}, 4096")
                self.body(j+1, [[ins(f"s_xor_b32 s{sM}, s{sM}, {PHI}")]] + g2)
            else:
                g1 = self.dma_kv(("kv", j+3), f"s_add_u32 m0, s{sM}, 0", f"s_add_u32 m0, s{sM}, 4096")
                self.body(j, g1, tog=self.tog())
                g2 = self.dma_kv(("kv", j+4), f"s_add_u32 m0, s{sM}, 8192", f"s_add_u32 m0, s{sM}, 12288")
                g2[-1] = g2[-1] + [ins(f"s_xor_b32 s{sM}, s{sM}, {PHI}")]
                self.body(j+1, g2)
            p(f"s_sub_u32 s{sCnt}, s{sCnt}, 1"); p(f"s_cmp_lg_u32 s{sCnt}, 0"); p("s_cbranch_scc1 L_at")
            p.raw(f"@@LE at {k}")
        if look == 4:
            self.body(11, self.dma_kv_abs(("kv", 15), 3), tog=self.tog())
            self.body(12, [])
        else:
            self.body(11, self.dma_kv_abs(("kv", 14), 2), tog=self.tog())
            self.body(12, self.dma_kv_abs(("kv", 15), 3))
    def attention_tail(self, last):
        fuse = self.o.get("fuse")
        prep_here = ((not last) if fuse else last) and not self.o.get("woearly")
        self.stamp(True)
        if prep_here:
            W = self.wo_prep_groups(); h = 9 + 4*3
            self.body(13, self.dma_wo_last(), tog=self.tog())
            self.body(14, [], extra=W[:h])
            self.body(15, (self.w_tile(0, 1) + self.x_tile(0) + self.w_tile(1, 1)) if not last else [], tog=self.tog(), extra2=W[h:])
        elif not last:
            self.body(13, [], tog=self.tog())
            self.body(14, [])
            self.body(15, self.w_tile(0, 1) + self.x_tile(0) + self.w_tile(1, 1), tog=self.tog())
        else:
            self.body(13, [], tog=self.tog(), extra2=[[x] for x in self.k3_setup()])
            self.body(14, [], extra2=[self.poll_issue(f"v_mov_b32 VDST, s{sC1}")])
            self.body(15, [], tog=self.tog())
            self.poll_check(128)
    def wo_prep_groups(self, stage=False):
        setup = [ins("v_and_b32 v33, 15, v0"), ins("v_lshrrev_b32 v34, 4, v0"), ins("v_lshrrev_b32 v35, 2, v33"), ins("v_and_b32 v33, 3, v33"),
                 ins("v_lshl_add_u32 v32, v34, 2, v35"), ins("v_lshlrev_b32 v32, 10, v32"), ins("v_lshl_add_u32 v32, v33, 4, v32"),
                 ins(f"s_lshl_b32 s88, s{sW}, 8"), ins("v_add_u32 v32, s88, v32")]
        G = [[x] for x in setup]
        mod = self.o['last_store_mod']
        for nt in range(8):
            u, par = nt >> 1, nt & 1
            d = 252 if not stage else OS(nt)
            G.append([ins(f"ds_read_b64_tr_b16 a[{d}:{d+1}], v32 offset:{64*u + 8*par}")])
            G.append([ins(f"ds_read_b64_tr_b16 a[{d+2}:{d+3}], v32 offset:{16384 + 64*u + 8*par}")])
            if stage: continue
            g = []
            if nt % 4 == 0: g.append(ins(f"s_add_u32 s{sT2}, s{sWTo}, {nt*1024}"))
            g.append(ins(f"buffer_store_dwordx4 a[{d}:{d+3}], v{VST}, s[{SWT}:{SWT+3}], s{sT2} offen offset:{(nt % 4)*1024} {mod}"))
            G.append(g)
        return G
    def dma_wo_last(self):
        G = []
        for half in range(2):
            g = [ins(f"s_add_u32 s{sT1}, s{sWOo}, {half*4096}"), ins(f"s_lshl_b32 s{sWoM}, s{sW}, 13"), ins(f"s_add_u32 m0, s{sWoM}, {half*4096}")]
            for n in range(4):
                g.append(ins(f"buffer_load_dwordx4 v{VST}, s[{SWO}:{SWO+3}], s{sT1} offen offset:{1024*n} nt lds", tag=("wo",)))
                G.append(g); g = []
        return G

    FLAG = 32768
    def softmax_check(self, item):
        p = self.p
        t = S(0, 0)
        for qt in range(6): p(f"v_accvgpr_read_b32 v{t+qt}, a{LA(qt)}")
        p(f"v_max3_f32 v{t+6}, v{t}, v{t+1}, v{t+2}"); p(f"v_min3_f32 v{t+7}, v{t}, v{t+1}, v{t+2}")
        p(f"v_max3_f32 v{t+6}, v{t+6}, v{t+3}, v{t+4}"); p(f"v_min3_f32 v{t+7}, v{t+7}, v{t+3}, v{t+4}")
        p(f"v_max_f32 v{t+6}, v{t+6}, v{t+5}"); p(f"v_min_f32 v{t+7}, v{t+7}, v{t+5}")
        p(f"v_cmp_nge_f32 vcc, {f32(2.0**24)}, v{t+6}")
        p("s_mov_b64 s[88:89], vcc")
        p(f"v_cmp_nle_f32 vcc, {f32(2.0**-24)}, v{t+7}")
        p("s_or_b64 s[88:89], s[88:89], vcc")
        p("s_cmp_lg_u64 s[88:89], 0"); p("s_cselect_b32 s88, 1, 0")
        p(f"v_mov_b32 v{t}, s88"); p(f"s_lshl_b32 s89, s{sW}, 2"); p(f"v_mov_b32 v{t+1}, s89")
        p(f"ds_write_b32 v{t+1}, v{t} offset:{self.FLAG}")
        p("s_waitcnt lgkmcnt(0)"); p("s_barrier")
        p(f"v_mov_b32 v{t+1}, 0")
        p(f"ds_read_b128 v[{t+4}:{t+7}], v{t+1} offset:{self.FLAG}")
        p(f"v_or_b32 v{t+4}, v{t+4}, v{t+5}"); p(f"v_or_b32 v{t+6}, v{t+6}, v{t+7}"); p(f"v_or_b32 v{t+4}, v{t+4}, v{t+6}")
        p(f"v_readfirstlane_b32 s88, v{t+4}")
        p("s_cmp_lg_u32 s88, 0")
        p("s_cbranch_scc1 L_FB")
        p.raw(f"L_OE{item}:")

    def fallback(self):
        q = K2(self.o); q.phase = "fb"; p = q.p
        M = LS
        def load_tile():
            p(f"s_mov_b32 s{sT2}, s{sTc}")
            q.emit_groups(q.dma_kv_abs(("fb",), 0))
            p("s_waitcnt vmcnt(0)"); p("s_barrier")
        def qk(qt):
            for kt in range(2):
                for ks in range(4):
                    p.add(mfma(S(0, kt), "v", KF(0, kt, ks), "a", Q(qt, ks), "a", None if ks == 0 else S(0, kt)))
        p.raw("L_FB:")
        p("s_waitcnt vmcnt(0) lgkmcnt(0)"); p("s_barrier")
        p(f"s_mov_b32 s{SKV+2}, {KV_BYTES}")
        for qt in range(6): p(f"v_mov_b32 v{M+qt}, 0xff800000")
        p(f"s_lshl_b32 s{sTc}, s{sItem}, 17"); p(f"s_mov_b32 s{sCnt}, 16")
        p.raw("L_FB1:")
        load_tile()
        for kt in range(2):
            for ks in range(4): p.add(q.rd_k(0, kt, ks))
        for qt in range(6):
            qk(qt)
            e = [S(0, 0)+r for r in range(4)] + [S(0, 1)+r for r in range(4)]
            for k in range(0, 8, 2): p(f"v_max3_f32 v{M+qt}, v{e[k]}, v{e[k+1]}, v{M+qt}")
        p("s_waitcnt lgkmcnt(0)"); p("s_barrier")
        p(f"s_sub_u32 s{sCnt}, s{sCnt}, 1"); p(f"s_cmp_lg_u32 s{sCnt}, 0"); p("s_cbranch_scc1 L_FB1")
        t = S(1, 0)
        for qt in range(6):
            m = M + qt
            p(f"v_mov_b32 v{t}, v{m}"); p(f"v_permlane32_swap_b32 v{t}, v{m}"); p(f"v_max_f32 v{m}, v{m}, v{t}")
            p(f"v_mov_b32 v{t}, v{m}"); p(f"v_permlane16_swap_b32 v{t}, v{m}"); p(f"v_max_f32 v{m}, v{m}, v{t}")
        for r in range(192): p(f"v_mov_b32 v{ACC+r}, 0")
        p(f"v_mov_b32 v{t}, 0")
        for r in range(24): p(f"v_accvgpr_write_b32 a{LA(0)+r}, v{t}")
        p(f"s_lshl_b32 s{sTc}, s{sItem}, 17"); p(f"s_mov_b32 s{sCnt}, 16")
        p("s_nop 7")
        p.raw("L_FB2:")
        load_tile()
        for kt in range(2):
            for ks in range(4): p.add(q.rd_k(0, kt, ks))
        for dt in range(8):
            p.add(q.rd_v(0, dt, 0)); p.add(q.rd_v(0, dt, 1))
        for qt in range(6):
            qk(qt)
            e = [S(0, 0)+r for r in range(4)] + [S(0, 1)+r for r in range(4)]
            for k in range(8): p(f"v_sub_f32 v{e[k]}, v{e[k]}, v{M+qt}")
            for k in range(8): p(f"v_exp_f32 v{e[k]}, v{e[k]}")
            for k in range(0, 8, 2): p(f"v_cvt_pk_bf16_f32 v{P(0)+k//2}, v{e[k]}, v{e[k+1]}")
            for dt in range(8): p.add(mfma(acc(dt, qt), "v", VF(0, dt), "a", P(0), "v", acc(dt, qt)))
            p.add(mfma(LA(qt), "a", ONES, "a", P(0), "v", LA(qt)))
        p("s_waitcnt lgkmcnt(0)"); p("s_nop 7"); p("s_nop 7"); p("s_barrier")
        p(f"s_sub_u32 s{sCnt}, s{sCnt}, 1"); p(f"s_cmp_lg_u32 s{sCnt}, 0"); p("s_cbranch_scc1 L_FB2")
        p("s_nop 7"); p("s_nop 7")
        p(f"s_cmp_eq_u32 s{sItem}, 0"); p("s_cbranch_scc1 L_OE0")
        if self.o.get("fuse"):
            for x in self.k3_setup(): p.add(x)
        p("s_branch L_OE1")
        L, st = finalize(p.L)
        return L

    def signal(self, offreg_txt, uid=None):
        uid = uid or self.uid()
        L = [ins(f"s_cmp_lg_u32 s{sW}, 0"), ins(f"s_cbranch_scc1 L_sig{uid}"),
             ins(f"v_mov_b32 v{VPOLL+1}, 1"), ins(offreg_txt), ins("s_mov_b64 exec, 1"),
             ins(f"buffer_atomic_add v{VPOLL+1}, v{VPOLL+2}, s[{SFL}:{SFL+3}], 0 offen sc1"),
             ins("s_mov_b64 exec, -1")]
        for x in L: x.meta["alt"] = True
        L.append(I(f"L_sig{uid}:", "label"))
        return L
    def uid(self):
        self._uid = getattr(self, "_uid", 0) + 1
        return self._uid
    def poll_issue(self, off_txt):
        return [ins(off_txt.replace("VDST", f"v{VPOLL+3}")), ins(f"buffer_load_dword v{VPOLL}, v{VPOLL+3}, s[{SFL}:{SFL+3}], 0 offen sc1")]
    def poll_check(self, target):
        p = self.p
        uid = self.uid()
        p(f"v_readfirstlane_b32 s88, v{VPOLL}")
        p(f"s_cmp_ge_u32 s88, {target}"); p(f"s_cbranch_scc1 L_ok{uid}")
        L = [f"s_mov_b32 s89, 0x40000", f"L_spin{uid}:", "s_sleep 2",
             f"buffer_load_dword v{VPOLL}, v{VPOLL+3}, s[{SFL}:{SFL+3}], 0 offen sc1", "s_waitcnt vmcnt(0)",
             f"v_readfirstlane_b32 s88, v{VPOLL}", "s_nop 3", "s_sub_u32 s89, s89, 1", "s_cmp_eq_u32 s89, 0", f"s_cbranch_scc1 L_ok{uid}",
             f"s_cmp_lt_u32 s88, {target}", f"s_cbranch_scc1 L_spin{uid}"]
        for t in L: p.add(I(t, "label", verbatim=True))
        p.raw(f"L_ok{uid}:")

    def k3_setup(self):
        L = []
        A = lambda t: L.append(ins(t))
        A(f"s_and_b32 s88, s{sHG}, 3"); A(f"s_lshr_b32 s89, s{sHG}, 2")
        A(f"s_lshl_b32 s90, s{sP}, 2"); A("s_add_u32 s90, s90, s88"); A("s_lshl_b32 s90, s90, 7"); A(f"s_lshl_b32 s91, s{sW}, 5"); A("s_add_u32 s90, s90, s91"); A("s_lshl_b32 s90, s90, 13")
        rot = self.o.get("k3rot", True)
        if rot: A(f"s_and_b32 s{kRho}, s{sB}, 3"); A(f"s_add_u32 s{kRho}, s{kRho}, s{sW}")
        else: A(f"s_mov_b32 s{kRho}, s{sW}")
        for pr in range(4):
            A(f"s_add_u32 s91, s{kRho}, {pr}"); A("s_and_b32 s91, s91, 3"); A("s_lshl_b32 s91, s91, 11"); A(f"s_add_u32 s{kA+pr}, s90, s91")
        if rot: A("s_lshr_b32 s91, s88, 1"); A(f"s_add_u32 s{kSig}, s88, s91")
        else: A(f"s_mov_b32 s{kSig}, 0")
        for qt in range(6):
            A(f"s_add_u32 s91, s{kSig}, {qt}"); A("s_cmp_ge_u32 s91, 6"); A("s_cselect_b32 s98, 6, 0"); A("s_sub_u32 s91, s91, s98"); A("s_lshl_b32 s91, s91, 10")
            A(f"v_add_u32 v{VBQ+qt}, s91, v{VST}")
        A(f"s_lshl_b32 s90, s{sP}, 4"); A(f"s_add_u32 s90, s90, s{sB}"); A("s_lshl_b32 s90, s90, 1"); A("s_add_u32 s90, s90, s89"); A("s_lshl_b32 s90, s90, 7")
        A(f"s_lshl_b32 s91, s{sW}, 5"); A("s_add_u32 s90, s90, s91"); A(f"s_mul_i32 s{kBo}, s90, 6144")
        A(f"s_mul_i32 s90, s{sB}, 192"); A("s_mul_i32 s91, s89, 96"); A("s_add_u32 s90, s90, s91"); A("s_lshl_b32 s90, s90, 11")
        A(f"s_lshl_b32 s91, s{sP}, 10"); A("s_add_u32 s90, s90, s91"); A("s_lshl_b32 s91, s88, 8"); A("s_add_u32 s90, s90, s91")
        A(f"s_and_b32 s91, s{kRho}, 3"); A("s_lshl_b32 s91, s91, 6"); A(f"s_add_u32 s{kOut}, s90, s91")
        A(f"s_mov_b32 s{SX}, s68"); A(f"s_mov_b32 s{SX+1}, s69"); A(f"s_mov_b32 s{SX+2}, {OUT_BYTES}"); A(f"s_mov_b32 s{SX+3}, 0x00020000")
        A(f"v_add_u32 v{VB4}, 4096, v{VST}")
        return L
    def k3_loads(self, b, o):
        m = self.o.get("k3_ld", "sc1")
        G = []
        for qt in range(6):
            g = [ins(f"s_add_u32 s{kT0}, s{kBo}, {o*6144}")] if qt == 0 else []
            g.append(ins(f"buffer_load_dwordx4 {rng('a', BF(b, qt), 4)}, v{VBQ+qt}, s[{SO}:{SO+3}], s{kT0} offen {m}"))
            G.append(g)
        for pr in range(4):
            t = kT1 if pr % 2 == 0 else kT0
            G.append([ins(f"s_add_u32 s{t}, s{kA+pr}, {o*8192}"),
                      ins(f"buffer_load_dwordx4 {rng('a', AF(b, 2*pr), 4)}, v{VST}, s[{SWT}:{SWT+3}], s{t} offen {m}")])
            G.append([ins(f"buffer_load_dwordx4 {rng('a', AF(b, 2*pr+1), 4)}, v{VST}, s[{SWT}:{SWT+3}], s{t} offen offset:1024 {m}")])
        return G
    def k3_adv(self, steps):
        return [ins(f"s_add_u32 s{kA+pr}, s{kA+pr}, {(steps*8192) & 0xffffffff}") for pr in range(4)] + [ins(f"s_add_u32 s{kBo}, s{kBo}, {(steps*6144) & 0xffffffff}")]
    def k3_step(self, t, G, extra=(), dst=None):
        p = self.p
        dst = dst if dst is not None else []
        b = t % 4
        n = 0
        extra = list(extra)
        for nu in range(8):
            for qt in range(6):
                p.add(mfma(oacc(nu, qt), "v", AF(b, nu), "a", BF(b, qt), "a", None if t == 0 else oacc(nu, qt)))
                if n % 3 == 1 and n//3 < len(G):
                    for x in G[n//3]: p.add(x)
                if n == 44:
                    for x in extra: p.add(x)
                if n in (8, 17, 26, 35, 43) and dst:
                    for x in dst.pop(0): p.add(x)
                n += 1
    def k3_main(self):
        p = self.p
        D = self.deferred
        npeel = 0
        if D:
            assert len(D) == 18
            self.k3_step(0, self.k3_loads(3, 3), extra=self.k3_adv(8), dst=D)
            for t in range(1, 9):
                i = (t-1) % 4
                self.k3_step(t, self.k3_loads((t+3) % 4, i), extra=self.k3_adv(8) if i == 3 else [], dst=D)
                if t == self.o.get("sig2", 6):
                    p.wait_tag(("o",)); p("s_barrier")
                    for x in self.signal(f"v_mov_b32 v{VPOLL+2}, s{sC2o}", uid="g2"): p.add(x)
            assert not D
            for i in range(4):
                t = 9 + i
                self.k3_step(t, self.k3_loads((t+3) % 4, i), extra=self.k3_adv(8) if i == 3 else [])
                if i == 2:
                    for x in self.poll_issue(f"v_mov_b32 VDST, s{sC2o}"): p.add(x)
        else:
            self.k3_step(0, self.k3_loads(3, 3), extra=self.k3_adv(8))
            p(f"s_mov_b32 s{kCnt}, 3")
            for k in range(3):
                p.raw(f"@@LB k3a {k}")
                for i in range(4):
                    t = 1 + 4*k + i
                    ex = self.k3_adv(8) if i == 3 else []
                    self.k3_step(t, self.k3_loads((t+3) % 4, i), extra=ex)
                    if i == 1:
                        uid = "k3s"
                        p(f"s_cmp_lg_u32 s{kCnt}, 3"); p(f"s_cbranch_scc1 L_{uid}")
                        p.wait_tag(("o",)); p("s_barrier")
                        for x in self.signal(f"v_mov_b32 v{VPOLL+2}, s{sC2o}", uid="g2"): p.add(x)
                        p.raw(f"L_{uid}:")
                    if i == 2:
                        for x in self.poll_issue(f"v_mov_b32 VDST, s{sC2o}"): p.add(x)
                p(f"s_sub_u32 s{kCnt}, s{kCnt}, 1"); p(f"s_cmp_lg_u32 s{kCnt}, 0"); p("s_cbranch_scc1 L_k3a")
                p.raw(f"@@LE k3a {k}")
        self.stamp()
        for x in self.k3_adv(4 - 32): p.add(x)
        self.poll_check(8)
        for i in range(4):
            t = 13 + i
            self.k3_step(t, self.k3_loads((t+3) % 4, i), extra=self.k3_adv(8) if i == 3 else [])
        p(f"s_mov_b32 s{kCnt}, 3")
        for k in range(3):
            p.raw(f"@@LB k3b {k}")
            for i in range(4):
                t = 17 + 4*k + i
                self.k3_step(t, self.k3_loads((t+3) % 4, i), extra=self.k3_adv(8) if i == 3 else [])
            p(f"s_sub_u32 s{kCnt}, s{kCnt}, 1"); p(f"s_cmp_lg_u32 s{kCnt}, 0"); p("s_cbranch_scc1 L_k3b")
            p.raw(f"@@LE k3b {k}")
        for t in (29, 30, 31): self.k3_step(t, [])
        self.stamp()
        for pr, v in ((1, 7), (2, 2), (3, 3)):
            p(f"s_add_u32 s88, s{sW}, {pr}"); p("s_and_b32 s88, s88, 3"); p("s_mul_i32 s88, s88, 36864"); p(f"s_add_u32 s88, s88, {(pr-1)*12288}")
            p(f"v_add_u32 v{v}, s88, v{VST}")
        p(f"s_mul_i32 s88, s{sW}, 36864"); p(f"v_add_u32 v8, s88, v{VST}")
        for pr, v in ((1, 7), (2, 2), (3, 3)):
            for par in range(2):
                for qt in range(6):
                    a = oacc(2*pr + par, qt)
                    p(f"ds_write_b128 v{v}, v[{a}:{a+3}] offset:{(par*6 + qt)*1024}")
        p("s_waitcnt lgkmcnt(0)")
        p("s_barrier")
        for sl in range(3):
            for par in range(2):
                for qt in range(6):
                    a = oacc(2*(sl+1) + par, qt)
                    p(f"ds_read_b128 v[{a}:{a+3}], v8 offset:{sl*12288 + (par*6 + qt)*1024}")
        p("v_and_b32 v12, 15, v0"); p("v_lshrrev_b32 v13, 4, v0"); p("v_lshlrev_b32 v12, 11, v12"); p("v_lshl_add_u32 v9, v13, 4, v12")
        for qt in range(6):
            for par in range(2):
                a = oacc(par, qt)
                for sl in range(3):
                    s_ = oacc(2*(sl+1) + par, qt)
                    for r in range(4): p(f"v_add_f32 v{a+r}, v{a+r}, v{s_+r}")
            a0, a1 = oacc(0, qt), oacc(1, qt)
            t0 = 16 + (qt % 4)*4
            p(f"v_cvt_pk_bf16_f32 v{t0}, v{a0}, v{a0+1}"); p(f"v_cvt_pk_bf16_f32 v{t0+1}, v{a0+2}, v{a0+3}")
            p(f"v_cvt_pk_bf16_f32 v{t0+2}, v{a1}, v{a1+1}"); p(f"v_cvt_pk_bf16_f32 v{t0+3}, v{a1+2}, v{a1+3}")
            p(f"s_add_u32 s88, s{kSig}, {qt}"); p("s_cmp_ge_u32 s88, 6"); p("s_cselect_b32 s89, 6, 0"); p("s_sub_u32 s88, s88, s89"); p("s_lshl_b32 s88, s88, 15")
            p(f"s_add_u32 s{kT0}, s{kOut}, s88")
            p(f"buffer_store_dwordx4 v[{t0}:{t0+3}], v9, s[{SX}:{SX+3}], s{kT0} offen {self.o.get('out_mod', '')}")

    def o_epilogue(self, last):
        p = self.p
        fuse_last = last and self.o.get("fuse")
        pre = []
        if fuse_last: pre = self.k3_loads(0, 0) + self.k3_loads(1, 1) + self.k3_loads(2, 2)
        defer = fuse_last and self.o.get("defer", True)
        self.deferred = []
        for qt in range(6): p(f"v_accvgpr_read_b32 v{LS+qt}, a{LA(qt)}")
        for qt in range(6): p(f"v_rcp_f32 v{LS+qt}, v{LS+qt}")
        vstage = [8, 12, 16, 20, 24, 28, 38, 42, 46, 50]
        for qt in range(6):
            for ks in range(4):
                m = qt*4 + ks
                a0, a1 = acc(2*ks, qt), acc(2*ks+1, qt)
                l = LS + qt
                if self.o.get("pk", True):
                    lp = l & ~1; sel = "op_sel_hi:[1,0]" if l % 2 == 0 else "op_sel:[0,1] op_sel_hi:[1,1]"
                    for a in (a0, a0+2, a1, a1+2): p(f"v_pk_mul_f32 v[{a}:{a+1}], v[{a}:{a+1}], v[{lp}:{lp+1}] {sel}")
                else:
                    for r in range(4): p(f"v_mul_f32 v{a0+r}, v{l}, v{a0+r}")
                    for r in range(4): p(f"v_mul_f32 v{a1+r}, v{l}, v{a1+r}")
                if defer: t0 = 54 if m < 14 else vstage[m - 14]
                else: t0 = SB + ((ks + 4*qt) % 6)*4
                p(f"v_cvt_pk_bf16_f32 v{t0}, v{a0}, v{a0+1}")
                p(f"v_cvt_pk_bf16_f32 v{t0+1}, v{a0+2}, v{a0+3}")
                p(f"v_cvt_pk_bf16_f32 v{t0+2}, v{a1}, v{a1+1}")
                p(f"v_cvt_pk_bf16_f32 v{t0+3}, v{a1+2}, v{a1+3}")
                n = ks*6 + qt
                mod = self.o['last_store_mod']
                if last:
                    for _ in range(2):
                        if pre:
                            for x in pre.pop(0): p.add(x)
                    if not defer or m < 6:
                        p(f"s_add_u32 s{sT0}, s{sOo}, {n*1024}")
                        p(f"buffer_store_dwordx4 v[{t0}:{t0+3}], v{VST}, s[{SO}:{SO+3}], s{sT0} offen {mod}", tag=("o",))
                    else:
                        if m < 14:
                            d = 224 + (m - 6)*4
                            for r in range(4): p(f"v_accvgpr_write_b32 a{d+r}, v{t0+r}")
                            src = f"a[{d}:{d+3}]"
                        else: src = f"v[{t0}:{t0+3}]"
                        self.deferred.append([ins(f"s_add_u32 s{sT2}, s{sOo}, {n*1024}"),
                                              ins(f"buffer_store_dwordx4 {src}, v{VST}, s[{SO}:{SO+3}], s{sT2} offen {mod}", tag=("o",))])
                else:
                    for r in range(4): p(f"v_accvgpr_write_b32 a{OS(n)+r}, v{t0+r}")

    def final(self):
        p = self.p
        p.wait_tag(("wo",))
        p("s_barrier")
        p("v_and_b32 v8, 15, v0"); p("v_lshrrev_b32 v2, 4, v0"); p("v_lshrrev_b32 v3, 2, v8"); p("v_and_b32 v7, 3, v8")
        p("v_lshl_add_u32 v6, v2, 2, v3"); p("v_lshlrev_b32 v6, 10, v6"); p("v_lshl_add_u32 v6, v7, 4, v6")
        p(f"s_lshl_b32 s88, s{sW}, 8"); p("v_add_u32 v6, s88, v6")
        for nt in range(8):
            u, par = nt >> 1, nt & 1
            d = 32 + nt*4
            p(f"ds_read_b64_tr_b16 v[{d}:{d+1}], v6 offset:{64*u + 8*par}")
            p(f"ds_read_b64_tr_b16 v[{d+2}:{d+3}], v6 offset:{16384 + 64*u + 8*par}")
        for nt in range(8):
            d = 32 + nt*4
            if nt % 4 == 0: p(f"s_add_u32 s{sT1}, s{sWTo}, {nt*1024}")
            p(f"buffer_store_dwordx4 v[{d}:{d+3}], v{VST}, s[{SWT}:{SWT+3}], s{sT1} offen offset:{(nt % 4)*1024} {self.o['last_store_mod']}")

    def build(self):
        p = self.p
        assert self.o["msum"]
        self.prologue()
        if self.o["timing"]: p("s_mov_b32 s99, 0")
        self.stamp()
        if self.o.get("entry"):
            p("s_mov_b32 m0, 62"); p("s_nop 1"); p("v_writelane_b32 v5, s100, m0")
        early = self.o.get("woearly")
        p(f"s_mov_b32 s{SO+2}, {0 if self.o.get('stA') else O_BYTES}")
        if early:
            assert self.o.get("stA") and self.o.get("fuse")
            self.emit_groups(self.w_tile(0, 0) + self.x_tile(0) + self.dma_wo_last() + self.w_tile(1, 0))
        else:
            self.emit_groups(self.w_tile(0, 0) + self.x_tile(0) + self.w_tile(1, 0))
        self.prologue2()
        if early:
            p(f"s_mov_b32 s{sOreal}, s{sOo}"); p(f"s_mov_b32 s{sOo}, {4*6144}")
            p(f"s_add_u32 s{SO}, s{SWT}, s{sWTo}"); p(f"s_addc_u32 s{SO+1}, s{SWT+1}, 0"); p(f"s_mov_b32 s{SO+2}, 8192")
            W = self.wo_prep_groups(stage=True)
            for g in W[:9]:
                for x in g: p.add(x)
            p.wait_tag(("wo",)); p("s_barrier")
            for g in W[9:]:
                for x in g: p.add(x)
        for item in range(2):
            last = item == 1
            p.raw("@@SB A"); self.qproj_a(); p.raw("@@SE A")
            p.raw(f"@@SB B{item}"); self.qproj_b(last); self.stamp(); p.raw(f"@@SE B{item}")
            p.raw("@@SB C"); self.attention_shared(); p.raw("@@SE C")
            p.raw(f"@@SB D{item}")
            self.attention_tail(last)
            self.stamp()
            if self.o.get("guard", True): self.softmax_check(item)
            self.o_epilogue(last)
            self.stamp()
            if not last:
                if self.o.get("woearly"):
                    p(f"s_mov_b32 s{sOo}, s{sOreal}"); p(f"s_mov_b32 s{SO}, s72"); p(f"s_mov_b32 s{SO+1}, s73")
                p(f"s_add_u32 s{sWo}, s{sWo}, 256"); p(f"s_add_u32 s{sOo}, s{sOo}, {4*6144}")
                p(f"s_mov_b32 s{sItem}, 1"); p(f"s_mov_b32 s{SO+2}, {O_BYTES}")
            else:
                if self.o.get("fuse"): self.k3_main()
                self.stamp()
                p("s_waitcnt vmcnt(0)")
                self.stamp()
                self.stamp_flush()
                p("s_waitcnt vmcnt(0)")
            p.raw(f"@@SE D{item}")
        L, st = finalize(p.L)
        L = fold(L)
        segs, top = segments(L)
        out = [i for k, i in top if k == "ins"]
        lab = lambda t: I(t, "label")
        br = lambda tgt: [ins(f"s_cmp_eq_u32 s{sItem}, 1"), ins(f"s_cbranch_scc1 {tgt}")]
        out += [lab("L_A:")] + segs["A"] + br("L_B1") + segs["B0"] + [lab("L_C:")] + segs["C"] + br("L_D1") + segs["D0"] + [ins("s_branch L_A")]
        out += [lab("L_B1:")] + segs["B1"] + [ins("s_branch L_C")]
        out += [lab("L_D1:")] + segs["D1"] + [lab("K2_END:"), ins("s_endpgm")]
        if self.o.get("guard", True): out += self.fallback()
        return out, st

if __name__ == "__main__":
    k = K2(); L, st = k.build()
    print(st, len(L))
```

```python
from dsl import *
import struct

def f32(x): return "0x%08x" % struct.unpack("<I", struct.pack("<f", x))[0]

NB, SQ, DM, H, SK, DH = 16, 192, 512, 32, 512, 128
X_BYTES = NB*SQ*DM*2
KV_BYTES = NB*H*SK*DH*2
W_BYTES = DM*H*DH*2
O_BYTES = 2*NB*2*128*6*1024
WOT_OFF = O_BYTES
WOT_BYTES = 2*4*128*8*1024
OUT_BYTES = NB*SQ*1024*2

PHI = 65536
WSLOT = [65536, 81920, 98304]
XA, XB = 114688, 139264
DROP = 0x30000

ACC = 64
def acc(T, qt): return ACC + (T*6 + qt)*4
SB = 8
def S(buf, kt): return SB + buf*8 + kt*4
PB = 24
def P(buf): return PB + buf*4
LS = 32
KA = 38
VA = 42
DV = 50
WA = 54
XAD = 58
WD = [60, 61, 2, 3]
XD = [62, 63, 6, 7]
VST = 4
def Q(qt, ks): return (qt*4 + ks)*4
def OS(n): return n*4
def KF(buf, kt, ks): return 96 + buf*32 + (kt*4 + ks)*4
def VF(buf, dt): return 160 + buf*32 + dt*4
def WF(T): return 96 + T*4
def XF(buf, qt): return 128 + buf*24 + qt*4
ONES = 224
def LA(qt): return 228 + qt*4
SX, SW, SKV, SO, SWO, SWT = 4, 8, 12, 16, 20, 24
sW, sHP, sRH, sP, sB, sHG = 28, 29, 30, 31, 32, 33
sKVo, sKVl, sWo, sWl, sXo, sXl, sOo = 34, 35, 36, 37, 38, 39, 40
sT0, sT1, sC = 41, 42, 43
sWOo, sWTo = 44, 45
sItem, sCnt = 46, 47
sTile, sM, sTh1, sTh2, sWarmW, sWarmX, sWoM, sDrop, sTc, sRot = 74, 75, 76, 77, 78, 79, 80, 81, 84, 85
sT2 = 83
sC2 = 86
sWR, sXR = 78, 79

SFL = 92
kA, kBo, kT0, kT1, kOut, kCnt = 74, 78, 80, 81, 79, 47
sC1, sC2o = 97, 96
def oacc(nu, qt): return ACC + (nu*6 + qt)*4
def AF(buf, nu): return buf*56 + nu*4
def BF(buf, qt): return buf*56 + 32 + qt*4
VB4 = 6
VBQ = 58
kRho, kSig = 82, 85
VAD2, VAR2 = 46, 50
VAR = 38
VAD = 50
def AF2(buf, nu): return buf*32 + nu*4
def BF2(buf, qt): return 64 + buf*24 + qt*4
sOreal = 98
sSz1, sSz2 = 76, 77
VPOLL = 34
MF = "v_mfma_f32_16x16x32_bf16"
def mfma(d, dk, a, ak, b, bk, c=None):
    cs = "0" if c is None else rng(dk, c, 4)
    return ins(f"{MF} {rng(dk,d,4)}, {rng(ak,a,4)}, {rng(bk,b,4)}, {cs}")

class K2:
    def __init__(self, opts=None):
        self.o = dict(nt="nt", w_mod="", x_mod="", store_mod="sc1", last_store_mod="sc1", timing=False, msum=True, warm=False, qrot=True, stA=True, stpat=3, credit=4, out_mod="sc1", drop=[])
        if opts: self.o.update(opts)
        self.p = Prog()
        self.phase = ""

    def tile_addr(self):
        if self.o.get("perm4"):
            return [ins(f"s_and_b32 s{sTile}, s{sTc}, 0x6000"), ins(f"s_lshl_b32 s{sTile}, s{sTile}, 2"),
                    ins(f"s_and_b32 s{sT0}, s{sTc}, 0x18000"), ins(f"s_lshr_b32 s{sT0}, s{sT0}, 2"), ins(f"s_or_b32 s{sTile}, s{sTile}, s{sT0}"),
                    ins(f"s_and_b32 s{sT0}, s{sTc}, 0x20000"), ins(f"s_or_b32 s{sTile}, s{sTile}, s{sT0}"),
                    ins(f"s_add_u32 s{sTile}, s{sTile}, s{sKVo}"), ins(f"s_add_u32 s{sTc}, s{sTc}, 8192")]
        if not self.o.get("rot"):
            return [ins(f"s_add_u32 s{sTile}, s{sKVo}, s{sTc}"), ins(f"s_add_u32 s{sTc}, s{sTc}, 8192")]
        return [ins(f"s_add_u32 s{sTile}, s{sTc}, s{sRot}"), ins(f"s_and_b32 s{sTile}, s{sTile}, 0x1ffff"),
                ins(f"s_and_b32 s{sT0}, s{sTc}, 0x20000"), ins(f"s_add_u32 s{sTile}, s{sTile}, s{sT0}"),
                ins(f"s_add_u32 s{sTile}, s{sTile}, s{sKVo}"), ins(f"s_add_u32 s{sTc}, s{sTc}, 8192")]
    def dma_kv(self, tag, m0a, m0b, pre=()):
        nt = self.o['nt']
        G = []
        g = list(pre) + self.tile_addr() + [ins(m0a)]
        for k in range(4):
            g.append(ins(f"buffer_load_dwordx4 v{DV+k}, s[{SKV}:{SKV+3}], s{sTile} offen offset:{1024*k} {nt} lds", tag=tag))
            G.append(g); g = []
        g = [ins(f"s_add_u32 s{sT0}, s{sTile}, 4096"), ins(m0b)]
        for k in range(4):
            g.append(ins(f"buffer_load_dwordx4 v{DV+k}, s[{SKV}:{SKV+3}], s{sT0} offen offset:{1024*k} {nt} lds", tag=tag))
            G.append(g); g = []
        return G
    def dma_kv_abs(self, tag, slot):
        o = (slot >> 1)*PHI + (slot & 1)*8192
        return self.dma_kv(tag, f"s_add_u32 m0, s{sKVl}, {o}", f"s_add_u32 m0, s{sKVl}, {o + 4096}")
    def kv_pieces(self, tile, a, b):
        G = self.dma_kv_abs(("kv", tile), tile % 4)
        out = G[a:b]
        if a not in (0, 4):
            slot = tile % 4
            o = (slot >> 1)*PHI + (slot & 1)*8192 + (4096 if a >= 4 else 0)
            out[0] = [ins(f"s_add_u32 m0, s{sKVl}, {o}")] + out[0]
        return out
    def dma_w(self, tag, base_reg, goff, m0txt, rot=None):
        G = []
        if rot is None: g = [ins(f"s_add_u32 s{sT1}, s{base_reg}, {goff}")]
        else:
            g = [ins(f"s_add_u32 s{sT1}, s{sWR}, {rot*262144}"), ins(f"s_and_b32 s{sT1}, s{sT1}, 0x3fffff"), ins(f"s_add_u32 s{sT1}, s{sT1}, s{base_reg}")]
            if goff: g.append(ins(f"s_add_u32 s{sT1}, s{sT1}, {goff}"))
        g.append(ins(m0txt))
        for n in range(4):
            g.append(ins(f"buffer_load_dwordx4 v{WD[n]}, s[{SW}:{SW+3}], s{sT1} offen offset:{1024*n} {self.o['w_mod']} lds", tag=tag))
            G.append(g); g = []
        return G
    def x_soff(self, base_reg, tt):
        if not self.o.get("qrot"): return [ins(f"s_add_u32 s{sT1}, s{base_reg}, {tt*128}")]
        return [ins(f"s_add_u32 s{sT1}, s{sXR}, {tt*128}"), ins(f"s_and_b32 s{sT1}, s{sT1}, 1023"), ins(f"s_add_u32 s{sT1}, s{sT1}, s{base_reg}")]
    def dma_x(self, tag, base_reg, tt, m0a, m0b):
        G = []
        m = self.o['x_mod']
        g = self.x_soff(base_reg, tt) + [ins(m0a)]
        for n in range(4):
            g.append(ins(f"buffer_load_dwordx4 v{XD[n]}, s[{SX}:{SX+3}], s{sT1} offen offset:{1024*n} {m} lds", tag=tag))
            G.append(g); g = []
        g = [ins(f"s_add_u32 s{sT1}, s{sT1}, {4*8192}"), ins(m0b)]
        for n in range(2):
            g.append(ins(f"buffer_load_dwordx4 v{XD[n]}, s[{SX}:{SX+3}], s{sT1} offen offset:{1024*n} {m} lds", tag=tag))
            G.append(g); g = []
        return G
    def w_tile(self, t, nxt=0):
        m0 = f"s_add_u32 m0, s{sWl}, {WSLOT[t % 3]}"
        if self.o.get("qrot"): return self.dma_w(("w", t), sWo, nxt*256, m0, rot=t)
        return self.dma_w(("w", t), sWo, nxt*256 + t*262144, m0)
    def x_tile(self, tt):
        sl = XB if tt % 2 == 0 else XA
        return self.dma_x(("x", tt), sXo, tt, f"s_add_u32 m0, s{sXl}, {sl}", f"s_add_u32 m0, s{sXl}, {sl + 4096}")
    def warmup(self, nxt):
        if not self.o["warm"]: return []
        G = []
        def ld(v, srd, soff, off, mod):
            i = ins(f"buffer_load_dwordx4 a[252:255], v{v}, s[{srd}:{srd+3}], s{soff} offen offset:{off} {mod}", tag=("warm",))
            i.kind = "dma"; i.wr = set(); i.rd.discard("m0")
            return i
        for k in range(2):
            g = [ins(f"s_add_u32 s{sT1}, s{sWarmW}, {nxt*256 + k*262144}")]
            for n in range(4):
                g.append(ld(WD[n], SW, sT1, 1024*n, self.o['w_mod'])); G.append(g); g = []
        if nxt == 0 or self.o.get("warmx1", True):
            for k in range(2):
                g = [ins(f"s_add_u32 s{sT1}, s{sWarmX}, {k*128}")]
                for n in range(4):
                    g.append(ld(XD[n], SX, sT1, 1024*n, self.o['x_mod'])); G.append(g); g = []
                g = [ins(f"s_add_u32 s{sT1}, s{sT1}, {4*8192}")]
                for n in range(2):
                    g.append(ld(XD[n], SX, sT1, 1024*n, self.o['x_mod'])); G.append(g); g = []
        return G
    def next_item_prefetch(self, nxt=1):
        return self.w_tile(0, nxt) + self.x_tile(0) + self.w_tile(1, nxt) + self.w_tile(2, nxt) + self.x_tile(1)
    def dma_wo(self):
        G = []
        for half in range(2):
            g = [ins(f"s_add_u32 s{sT1}, s{sWOo}, {half*4096}"), ins(f"s_add_u32 m0, s{sWoM}, {half*4096}")]
            for n in range(4):
                g.append(ins(f"buffer_load_dwordx4 v{VST}, s[{SWO}:{SWO+3}], s{sT1} offen offset:{1024*n} nt lds", tag=("wo",)))
                G.append(g); g = []
        return G
    def o_store(self, n, mod, prev, force=False):
        g = []
        if n % 4 == 0 or force: g.append(ins(f"s_add_u32 s{sT2}, s{sOo}, {((n & ~3)*1024 - (4*6144 if prev else 0)) & 0xffffffff}"))
        g.append(ins(f"buffer_store_dwordx4 {rng('a', OS(n), 4)}, v{VST}, s[{SO}:{SO+3}], s{sT2} offen offset:{(n % 4)*1024} {mod}", tag=("o",)))
        return g
    def rd_k(self, par, kt, ks):
        return ins(f"ds_read_b128 {rng('a', KF(par, kt, ks), 4)}, v{KA+ks} offset:{par*8192 + kt*4096}")
    def rd_v(self, par, dt, kt):
        return ins(f"ds_read_b64_tr_b16 {rng('a', VF(par, dt) + 2*kt, 2)}, v{VA+dt} offset:{par*8192 + kt*4096}")
    def rd_w(self, t, T, h2):
        ks, u = T >> 1, T & 1
        return ins(f"ds_read_b64_tr_b16 {rng('a', WF(T) + 2*h2, 2)}, v{WA+ks} offset:{(t % 3)*16384 + h2*2048 + 8*u}")
    def rd_x(self, t, qt):
        tt = t >> 1
        return ins(f"ds_read_b128 {rng('a', XF(t % 2, qt), 4)}, v{XAD + (t & 1)} offset:{(24576 if tt % 2 == 0 else 0) + qt*2048}")

    def prologue(self):
        p = self.p
        if self.o.get("entry"): p("s_memrealtime s[100:101]")
        p("s_cmp_ge_u32 s2, 256")
        p("s_cbranch_scc1 K2_END")
        p("s_load_dwordx16 s[48:63], s[0:1], 0")
        p("s_load_dwordx8 s[64:71], s[0:1], 64")
        p("s_load_dwordx2 s[72:73], s[0:1], 96")
        p(f"v_lshrrev_b32 v1, 6, v0")
        p(f"v_and_b32 v0, 63, v0")
        p(f"v_readfirstlane_b32 s{sW}, v1")
        p("s_and_b32 s86, s2, 7")
        p("s_lshr_b32 s87, s2, 3")
        p(f"s_lshr_b32 s{sP}, s86, 2")
        p("s_and_b32 s88, s86, 1"); p("s_lshl_b32 s88, s88, 3"); p("s_and_b32 s82, s87, 7")
        p(f"s_add_u32 s{sB}, s88, s82")
        p("s_lshr_b32 s88, s86, 1"); p("s_and_b32 s88, s88, 1"); p("s_lshl_b32 s88, s88, 2"); p("s_lshr_b32 s83, s87, 3")
        p(f"s_add_u32 s{sHG}, s88, s83")
        p(f"s_and_b32 s{sHP}, s{sW}, 1")
        p(f"s_lshr_b32 s{sRH}, s{sW}, 1")
        p("s_waitcnt lgkmcnt(0)")
        p(f"s_cmp_eq_u32 s{sP}, 0")
        p(f"s_cselect_b32 s{SX}, s48, s58"); p(f"s_cselect_b32 s{SX+1}, s49, s59")
        p(f"s_cselect_b32 s{SW}, s54, s64"); p(f"s_cselect_b32 s{SW+1}, s55, s65")
        p(f"s_cselect_b32 s{SWO}, s56, s66"); p(f"s_cselect_b32 s{SWO+1}, s57, s67")
        p(f"s_cselect_b32 s90, s50, s60"); p(f"s_cselect_b32 s91, s51, s61")
        p(f"s_cselect_b32 s92, s52, s62"); p(f"s_cselect_b32 s93, s53, s63")
        p(f"s_cmp_eq_u32 s{sRH}, 0")
        p(f"s_cselect_b32 s{SKV}, s90, s92"); p(f"s_cselect_b32 s{SKV+1}, s91, s93")
        p(f"s_cselect_b32 s94, 64, 128"); p(f"s_cselect_b32 s95, 128, 0"); p("s_mov_b32 s96, 128"); p(f"s_cselect_b32 s96, 192, s96")
        p(f"s_cselect_b32 s97, 0, 1")
        p(f"s_cselect_b32 s{sKVl}, 0, 32768")
        for r, n in ((SX, X_BYTES), (SW, W_BYTES), (SWO, W_BYTES), (SKV, KV_BYTES)):
            p(f"s_mov_b32 s{r+2}, {n}"); p(f"s_mov_b32 s{r+3}, 0x00020000")
        p(f"s_mov_b32 s{SO}, s72"); p(f"s_mov_b32 s{SO+1}, s73"); p(f"s_mov_b32 s{SO+2}, 0"); p(f"s_mov_b32 s{SO+3}, 0x00020000")
        p(f"s_add_u32 s{SWT}, s72, {WOT_OFF}"); p(f"s_addc_u32 s{SWT+1}, s73, 0"); p(f"s_mov_b32 s{SWT+2}, {WOT_BYTES}"); p(f"s_mov_b32 s{SWT+3}, 0x00020000")
        p(f"s_lshl_b32 s88, s{sB}, 5"); p(f"s_lshl_b32 s89, s{sHG}, 2"); p("s_add_u32 s88, s88, s89"); p(f"s_lshl_b32 s89, s{sHP}, 1"); p("s_add_u32 s88, s88, s89")
        p(f"s_lshl_b32 s{sKVo}, s88, 17")
        p(f"s_lshl_b32 s89, s{sHP}, 14"); p(f"s_add_u32 s{sKVl}, s{sKVl}, s89")
        p(f"s_lshl_b32 s88, s{sW}, 16"); p(f"s_lshl_b32 s89, s{sHG}, 10"); p(f"s_add_u32 s{sWo}, s88, s89")
        p(f"s_lshl_b32 s{sWl}, s{sW}, 12")
        p(f"s_lshl_b32 s88, s82, 19"); p(f"s_add_u32 s{sWarmW}, s{sWo}, s88")
        p(f"s_mul_i32 s88, s{sB}, 196608"); p(f"s_mul_i32 s89, s{sW}, 49152"); p(f"s_add_u32 s{sXo}, s88, s89")
        p(f"s_mul_i32 s{sXl}, s{sW}, 6144")
        p(f"s_lshl_b32 s88, s83, 8"); p(f"s_add_u32 s{sWarmX}, s{sXo}, s88")
        if self.o.get("qrot"):
            assert not self.o["warm"]
            p("s_lshl_b32 s88, s83, 1"); p("s_add_u32 s88, s88, s82"); p("s_and_b32 s88, s88, 7")
            p(f"s_lshl_b32 s{sWR}, s88, 19"); p(f"s_lshl_b32 s{sXR}, s88, 7")
        p(f"s_mov_b32 s{sDrop}, {DROP}")
        p("s_mul_i32 s88, s2, 5"); p("s_lshr_b32 s89, s2, 4"); p("s_add_u32 s88, s88, s89"); p("s_and_b32 s88, s88, 15"); p(f"s_lshl_b32 s{sRot}, s88, 13")
        p(f"s_lshl_b32 s88, s{sP}, 4"); p(f"s_add_u32 s88, s88, s{sB}"); p("s_lshl_b32 s88, s88, 1"); p(f"s_add_u32 s88, s88, s{sRH}")
        p("s_lshl_b32 s88, s88, 7"); p(f"s_lshl_b32 s89, s{sHG}, 4"); p("s_add_u32 s88, s88, s89"); p(f"s_lshl_b32 s89, s{sHP}, 3"); p("s_add_u32 s88, s88, s89")
        p(f"s_mul_i32 s{sOo}, s88, 6144")
        p("s_and_b32 s88, s86, 3"); p("s_lshl_b32 s88, s88, 5"); p("s_add_u32 s88, s88, s87")
        p(f"s_lshl_b32 s89, s88, 15"); p(f"s_lshl_b32 s98, s{sW}, 13"); p(f"s_add_u32 s{sWOo}, s89, s98")
        p(f"s_lshl_b32 s89, s{sP}, 2"); p(f"s_add_u32 s89, s89, s{sW}"); p("s_lshl_b32 s89, s89, 7"); p("s_add_u32 s89, s89, s88"); p(f"s_lshl_b32 s{sWTo}, s89, 13")
        p(f"s_mov_b32 s{sC}, {f32(1.4426950408889634*128**-0.5)}")
        p(f"s_mov_b32 s{sItem}, 0")
        self.late_consts = True
        i_, g_, r_, c_ = "v14", "v8", "v9", "v10"
        p(f"v_and_b32 {i_}, 15, v0"); p(f"v_lshrrev_b32 {g_}, 4, v0"); p(f"v_lshrrev_b32 {r_}, 2, {i_}"); p(f"v_and_b32 {c_}, 3, {i_}")
        p(f"v_lshlrev_b32 v{VST}, 4, v0")
        p("v_lshrrev_b32 v11, 5, v0"); p("v_and_b32 v12, 15, v0"); p("v_lshlrev_b32 v13, 2, v11"); p("v_xor_b32 v12, v12, v13"); p("v_lshlrev_b32 v12, 4, v12")
        p("v_lshl_add_u32 v12, v11, 13, v12"); p("v_bfe_u32 v13, v0, 4, 1"); p(f"v_lshl_add_u32 v{WD[0]}, v13, 9, v12")
        p(f"v_xor_b32 v{WD[1]}, 128, v{WD[0]}"); p(f"v_add_u32 v{WD[2]}, {2*15360}, v{WD[0]}"); p(f"v_add_u32 v{WD[3]}, {3*15360}, v{WD[1]}"); p(f"v_add_u32 v{WD[1]}, 15360, v{WD[1]}")
        p("v_lshrrev_b32 v11, 3, v0"); p("v_and_b32 v12, 7, v0"); p(f"v_xor_b32 v12, v12, {g_}"); p("v_lshlrev_b32 v12, 4, v12")
        p(f"v_lshl_add_u32 v{XD[0]}, v11, 10, v12"); p(f"v_xor_b32 v{XD[1]}, 64, v{XD[0]}")
        p(f"v_add_u32 v{XD[2]}, {2*7168}, v{XD[0]}"); p(f"v_add_u32 v{XD[3]}, {3*7168}, v{XD[1]}"); p(f"v_add_u32 v{XD[1]}, 7168, v{XD[1]}")
        p(f"v_lshlrev_b32 v11, s97, {g_}"); p(f"v_xor_b32 v11, v11, {i_}"); p("v_lshlrev_b32 v11, 4, v11"); p(f"v_lshl_add_u32 v{DV}, {g_}, 8, v11")
        for k in range(1, 4): p(f"v_xor_b32 v{DV+k}, s{93+k}, v{DV}")
        self.lane = (i_, g_, r_, c_)
    def prologue2(self):
        p = self.p
        i_, g_, r_, c_ = self.lane
        p(f"s_lshl_b32 s88, s{sHP}, 14")
        p(f"v_xor_b32 v11, {g_}, {i_}"); p("v_lshlrev_b32 v11, 4, v11"); p(f"v_lshl_add_u32 v11, {i_}, 8, v11"); p(f"v_add_u32 v{KA}, s88, v11")
        for ks in range(1, 4): p(f"v_xor_b32 v{KA+ks}, {64*ks}, v{KA}")
        p(f"v_and_b32 v11, 1, {g_}"); p("v_lshlrev_b32 v11, 2, v11"); p(f"v_add_u32 v11, v11, {r_}"); p("v_lshlrev_b32 v11, 1, v11")
        p(f"v_lshrrev_b32 v12, 1, {c_}"); p("v_xor_b32 v11, v11, v12"); p("v_lshlrev_b32 v11, 4, v11")
        p(f"v_and_b32 v12, 1, {c_}"); p("v_lshl_add_u32 v11, v12, 3, v11")
        p(f"v_lshl_add_u32 v12, {g_}, 2, {r_}"); p("v_lshl_add_u32 v11, v12, 8, v11")
        p("s_add_u32 s89, s88, 32768"); p(f"v_add_u32 v{VA}, s89, v11")
        for dt in range(1, 8): p(f"v_xor_b32 v{VA+dt}, {32*dt}, v{VA}")
        p(f"s_lshl_b32 s88, s{sHP}, 4")
        p(f"v_add_u32 v11, s88, {c_}"); p(f"v_lshlrev_b32 v12, 2, {r_}"); p("v_xor_b32 v11, v11, v12"); p("v_lshlrev_b32 v11, 4, v11")
        p(f"v_lshl_add_u32 v12, {g_}, 3, {r_}"); p("v_lshl_add_u32 v11, v12, 9, v11"); p(f"v_add_u32 v{WA}, {WSLOT[0]}, v11")
        for ks in range(1, 4): p(f"v_xor_b32 v{WA+ks}, {64*ks}, v{WA}")
        p(f"s_mul_i32 s88, s{sRH}, {96*128}"); p(f"s_add_u32 s88, s88, {XA}")
        p(f"v_lshrrev_b32 v11, 1, {i_}"); p(f"v_xor_b32 v11, v11, {g_}"); p("v_lshlrev_b32 v11, 4, v11"); p(f"v_lshl_add_u32 v11, {i_}, 7, v11"); p(f"v_add_u32 v{XAD}, s88, v11")
        p(f"v_xor_b32 v{XAD+1}, 64, v{XAD}")
        p(f"s_mov_b32 s{sC2}, s{sC}"); p(f"s_mov_b32 s{sC2+1}, s{sC}")
        if self.o.get("fuse"):
            p(f"s_mov_b32 s{SFL}, s70"); p(f"s_mov_b32 s{SFL+1}, s71"); p(f"s_mov_b32 s{SFL+2}, 256"); p(f"s_mov_b32 s{SFL+3}, 0x00020000")
            sh = 16 if self.o.get("dbg") is not None else 0
            p(f"s_lshl_b32 s{sC1}, s{sP}, 2"); p(f"s_add_u32 s{sC1}, s{sC1}, {4*sh}")
            p(f"s_lshl_b32 s88, s{sP}, 4"); p(f"s_add_u32 s88, s88, s{sB}"); p(f"s_add_u32 s88, s88, {2+sh}"); p(f"s_lshl_b32 s{sC2o}, s88, 2")
            if self.o.get("rawwo"): p(f"s_mov_b32 s{sC1}, s{sC2o}")
        if self.o["msum"]:
            p("v_mov_b32 v11, 0x3f803f80")
            for r in range(4): p(f"v_accvgpr_write_b32 a{ONES+r}, v11")

    def stamp(self, fine=False):
        if not self.o["timing"]: return
        if fine and not self.o.get("fine"): return
        p = self.p
        p(f"s_memrealtime s[88:89]")
        p(f"s_memtime s[90:91]")
        p("s_waitcnt lgkmcnt(0)")
        p("s_mov_b32 m0, s99"); p("s_nop 1")
        p(f"v_writelane_b32 v5, s88, m0")
        p(f"v_writelane_b32 v1, s90, m0")
        p("s_add_u32 s99, s99, 1")
    def stamp_flush(self):
        if not self.o["timing"]: return
        p = self.p
        if self.o.get("dbg") is not None:
            p(f"s_cmp_eq_u32 s2, {self.o['dbg']}"); p("s_cselect_b32 s90, 64, 0"); p(f"s_cmp_eq_u32 s{sW}, 0"); p("s_cselect_b32 s90, s90, 0")
            p("s_mov_b32 s88, s70"); p("s_mov_b32 s89, s71"); p("s_mov_b32 s91, 0x00020000")
            src = "v1" if self.o.get("dbgcyc") else "v5"
            p("v_lshlrev_b32 v6, 2, v0")
            p(f"buffer_store_dword {src}, v6, s[88:91], 0 offen")
            if not self.o.get("fuse"):
                p("s_add_u32 s88, s88, 512"); p("s_addc_u32 s89, s89, 0"); p("s_cmp_lg_u32 s90, 0"); p("s_cselect_b32 s90, 52, 0")
                p(f"buffer_store_dword {src}, v6, s[88:91], 0 offen")
            return
        p(f"s_add_u32 s88, s72, {64<<20}"); p("s_addc_u32 s89, s73, 0"); p(f"s_mov_b32 s90, {1<<20}"); p("s_mov_b32 s91, 0x00020000")
        p(f"s_lshl_b32 s92, s2, 2"); p(f"s_add_u32 s92, s92, s{sW}"); p("s_lshl_b32 s92, s92, 9")
        p("v_lshlrev_b32 v6, 2, v0")
        p("buffer_store_dword v5, v6, s[88:91], s92 offen")
        p("buffer_store_dword v1, v6, s[88:91], s92 offen offset:256")

    def emit_groups(self, groups):
        for g in groups:
            for x in g: self.p.add(x)
    def keep(self, x):
        drop = self.o["drop"]; ph = self.phase
        if x.kind == "dma" and ph + "_dma" in drop: return False
        if x.kind == "ds_read" and ph + "_lds" in drop: return False
        if x.kind == "barrier" and ph + "_bar" in drop: return False
        if x.kind == "trans" and ph + "_exp" in drop: return False
        if x.kind == "valu" and x.txt.startswith("v_add_f32") and ph + "_add" in drop: return False
        if x.kind == "valu" and x.txt.startswith("v_cvt") and ph + "_cvt" in drop: return False
        if x.kind == "vstore" and ph + "_st" in drop: return False
        return True
    def run(self, mf, chains, pre=()):
        ch = [[([x for x in g if self.keep(x)], lo, hi) for g, lo, hi in c] for c in chains]
        ch = [[it for it in c if it[0]] for c in ch]
        if self.phase + "_mfma" in self.o["drop"]: mf = [ins("s_nop 0") for _ in mf]
        self.p.extend(gapfill(mf, ch, pre=[x for x in pre if self.keep(x)]))

    def spaced(self, G, lo, hi):
        n = len(G)
        out = []
        for k, g in enumerate(G):
            pos = lo + (k*(hi - lo + 1))//n
            out.append((g, pos, pos + 1))
        return out
    def qstep(self, t, stores=(), sig=False):
        p = self.p
        self.phase = "qp"
        mf = []
        for T in range(8):
            for qt in range(6):
                mf.append(mfma(acc(T, qt), "v", WF(T), "a", XF(t % 2, qt), "a", None if t == 0 else acc(T, qt)))
        need = []
        for qt in range(6): need += R("a", XF(t % 2, qt), 4)
        for T in range(6): need += R("a", WF(T), 4)
        pre = [wait_regs(need)]
        chains = []
        BG = self.o.get("bg", 11)
        slow = []
        if t < 15:
            bar = [wait_tag(("w", t+1))]
            if t % 2 == 1: bar.append(wait_tag(("x", (t+1) >> 1)))
            chains.append([(bar, BG-1, BG-1), ([ins("s_waitcnt lgkmcnt(0)"), ins("s_barrier")], BG, BG)])
            cw = []
            for T in range(8):
                lo = max(BG+1, 6*T + 5)
                cw += [([self.rd_w(t+1, T, 0)], lo, min(47, lo + 8)), ([self.rd_w(t+1, T, 1)], lo, min(47, lo + 9))]
            chains.append(cw)
            chains.append([([self.rd_x(t+1, qt)], BG+1, 40) for qt in range(6)])
            GW = self.w_tile(t+3) if t + 3 <= 15 else []
            early = []; GX = []
            if t % 2 == 1 and (t >> 1) + 2 <= 7: GX = self.x_tile((t >> 1) + 2)[:3]
            if t % 2 == 0 and t >= 2 and ((t-1) >> 1) + 2 <= 7:
                tt = ((t-1) >> 1) + 2; sl = XB if tt % 2 == 0 else XA
                early = self.x_tile(tt)[3:]
                early[0] = self.x_soff(sXo, tt) + [ins(f"s_add_u32 m0, s{sXl}, {sl}")] + early[0]
            if t == 0:
                early = self.w_tile(2) + self.x_tile(1)
                if self.o.get("w1late"): early = self.w_tile(1) + early
            late = GW + GX
            plan = self.o.get("kvplan", {10: (0, 0, 4), 11: (0, 4, 8), 12: (1, 0, 4), 13: (1, 4, 8)})
            if t in plan or str(t) in plan:
                slow = self.kv_pieces(*(plan.get(t) or plan.get(str(t))))
            c = []
            if t == 0:
                c = self.spaced(early + late, 0, 47); early = []; late = []
            if early:
                span = BG - 1
                for k, g in enumerate(early): c.append((g, int(k*span/len(early)), int(k*span/len(early)) + 1))
            hi = 47 if not (slow or stores) else (39 if len(slow) <= 2 else 32)
            if late: c += self.spaced(late, BG+2, hi)
            if slow: c += self.spaced(slow, (41 if len(slow) <= 2 else 34) if late else BG+2, 47)
            if c: chains.append(c)
        else:
            chains.append([([wait_tag(("kv", 0))], BG-1, BG-1), ([ins("s_waitcnt lgkmcnt(0)"), ins("s_barrier")], BG, BG)])
            G = self.kv_pieces(2, 0, 4 if self.o.get("look", 3) == 3 else 8)
            if self.o.get("kv15"): G = self.kv_pieces(*self.o["kv15"]) + G
            chains.append(self.spaced(G, BG+1, 47))
        if self.o.get("womid"):
            if t == 2:
                W = self.wo_prep_groups(stage=12)
                blk = [ins(f"s_cmp_eq_u32 s{sItem}, 1"), ins("s_cbranch_scc1 L_nowo")] + [x for g in W for x in g]
                for x in blk: x.meta["alt"] = True
                blk.append(I("L_nowo:", "label"))
                chains.append([(blk, BG+1, BG+1)])
            if t == 4: chains.append([([ins(f"s_mov_b32 s{SO+2}, s{sSz1}")], 0, 2)])
            if t == 7: chains.append([([ins(f"s_mov_b32 s{SO+2}, s{sSz2}")], 0, 2)])
        if sig:
            chains.append([(self.signal(f"v_mov_b32 v{VPOLL+2}, s{sC1}"), BG+1, BG+3)])
        if stores:
            lo = 26 if t == 12 else 0
            if self.o.get("stA"): lo = {2: 41, 3: 36, 4: 30}[len(stores)]
            chains.append(self.spaced([self.o_store(n, self.o["store_mod"], True, force=bool(self.o.get("stA")) and n == stores[0]) for n in stores], lo, 47))
        self.run(mf, chains, pre)

    def qproj_a(self):
        p = self.p
        p(f"s_lshl_b32 s{sTc}, s{sItem}, 17")
        p.wait_tag(("w", 0)); p.wait_tag(("x", 0))
        p("s_barrier")
        self.stamp()
        for T in range(8):
            p.add(self.rd_w(0, T, 0)); p.add(self.rd_w(0, T, 1))
        for qt in range(6): p.add(self.rd_x(0, qt))
        for t in range(12):
            pat = self.o.get("stpat", 2)
            if pat == 2: ss = [2*t, 2*t+1]
            elif pat == 3: ss = [3*t, 3*t+1, 3*t+2] if t < 8 else []
            elif pat == 4: ss = [4*(t//2) + k for k in range(4)] if t % 2 == 0 else []
            elif pat == 5: ss = [4*(t//2) + k for k in range(4)] if t % 2 == 1 else []
            self.qstep(t, ss if self.o.get("stA") else ())
            if t in (3, 7, 11): self.stamp(True)
    def qproj_b(self, last):
        p = self.p
        st = (lambda a, b: list(range(a, b))) if (last and not self.o.get("stA")) else (lambda a, b: [])
        self.qstep(12, st(0, 3)); self.qstep(13, st(3, 9)); self.qstep(14, st(9, 15))
        sig_late = self.o.get("siglate", False)
        self.qstep(15, st(15, 18), sig=bool(last and self.o.get("fuse") and not sig_late))
        self.stamp()
        for kt in range(2):
            for ks in range(4): p.add(self.rd_k(0, kt, ks))
        tmp = S(0, 0)
        rest = self.kv_pieces(2, 4, 8) if self.o.get("look", 3) == 3 else []
        late = st(18, 24)
        for qt in range(6):
            for ks in range(4):
                n = qt*4 + ks
                a0, a1 = acc(2*ks, qt), acc(2*ks+1, qt)
                if self.o.get("pk", True):
                    for a in (a0, a0+2, a1, a1+2): p(f"v_pk_mul_f32 v[{a}:{a+1}], v[{a}:{a+1}], s[{sC2}:{sC2+1}]")
                else:
                    for r in range(4): p(f"v_mul_f32 v{a0+r}, s{sC}, v{a0+r}")
                    for r in range(4): p(f"v_mul_f32 v{a1+r}, s{sC}, v{a1+r}")
                t0 = tmp + (n % 4)*4
                p(f"v_cvt_pk_bf16_f32 v{t0}, v{a0}, v{a0+1}")
                p(f"v_cvt_pk_bf16_f32 v{t0+1}, v{a0+2}, v{a0+3}")
                p(f"v_cvt_pk_bf16_f32 v{t0+2}, v{a1}, v{a1+1}")
                p(f"v_cvt_pk_bf16_f32 v{t0+3}, v{a1+2}, v{a1+3}")
                if late and n % 2 == 0 and n < 18:
                    m = late.pop(0)
                    for x in self.o_store(m, self.o["store_mod"], True, force=True): p.add(x)
                if self.o.get("dummy_mfma"):
                    for _ in range(self.o["dummy_mfma"]): p.add(mfma(252, "a", KF(0, 0, 0), "a", KF(0, 1, 0), "a", None))
                for r in range(4): p(f"v_accvgpr_write_b32 a{Q(qt,ks)+r}, v{t0+r}")
                if rest and n % 4 == 3 and n >= 7:
                    for x in rest.pop(0): p.add(x)
            if qt < 4:
                for dt in (2*qt, 2*qt+1):
                    p.add(self.rd_v(0, dt, 0)); p.add(self.rd_v(0, dt, 1))
        assert not rest and not late
        if last and self.o.get("fuse") and sig_late:
            for x in self.signal(f"v_mov_b32 v{VPOLL+2}, s{sC1}"): p.add(x)

    def period(self, n, dma=(), pre=(), early=(), extra=()):
        p = self.p
        self.phase = "at"
        msum = self.o["msum"]
        j, pp = divmod(n, 6)
        qk = []; pv = []
        if n < 96:
            sb = n % 2
            for kt in range(2):
                for ks in range(4):
                    qk.append(mfma(S(sb, kt), "v", KF(j % 2, kt, ks), "a", Q(pp, ks), "a", None if ks == 0 else S(sb, kt)))
        if n >= 2:
            jj, qt = divmod(n-2, 6)
            pb = (n-2) % 2
            for dt in range(8):
                pv.append(mfma(acc(dt, qt), "v", VF(jj % 2, dt), "a", P(pb), "v", None if jj == 0 else acc(dt, qt)))
        mf = []
        for k in range(8):
            if qk: mf.append(qk[k])
            if pv: mf.append(pv[k])
        if n >= 2 and msum:
            mf.append(mfma(LA(qt), "a", ONES, "a", P(pb), "v", None if jj == 0 else LA(qt)))
        nm = len(mf)
        sc = nm/17.0 if msum else nm/16.0
        def G(x): return min(nm-1, int(x*sc))
        chains = []
        if 1 <= n <= 96:
            jj2, qt2 = divmod(n-1, 6)
            sb = (n-1) % 2; pb2 = (n-1) % 2
            e = [S(sb, 0)+r for r in range(4)] + [S(sb, 1)+r for r in range(4)]
            chains.append([([ins(f"v_exp_f32 v{e[k]}, v{e[k]}")], G(2*k), G(2*k)) for k in range(8)])
            cv = []
            for k in range(8):
                if not msum: cv.append(([ins(f"v_add_f32 v{LS+qt2}, v{LS+qt2}, v{e[k]}")], G(2*k+1), G(2*k+1)))
                if k % 2 == 1:
                    cv.append(([ins(f"v_cvt_pk_bf16_f32 v{P(pb2)+k//2}, v{e[k-1]}, v{e[k]}")], G(2*k+1), G(2*k+1)))
            chains.append(cv)
        if n >= 2:
            jb, q = divmod(n-2, 6)
            if jb + 1 <= 15:
                par = (jb+1) % 2
                rds = []
                if q in (0, 1): rds = [self.rd_k(par, q, ks) for ks in range(4)]
                else:
                    for dt in range((q-2)*2, (q-2)*2+2): rds += [self.rd_v(par, dt, 0), self.rd_v(par, dt, 1)]
                gp = [1, 5, 9, 13] if q != 5 else [1, 5, 9, 10]
                chains.append([([x], G(gp[k]), G(gp[k])) for k, x in enumerate(rds)])
        if dma:
            nd = sum(1 for x in dma if x.kind == "dma")
            slots = {0: [], 1: [16], 2: [11, 16], 4: [3, 7, 11, 16], 8: [2, 4, 6, 8, 10, 12, 14, 16]}.get(nd) or [int(3 + (16-3)*k/(nd-1)) for k in range(nd)]
            ch = []; seen = 0
            for x in dma:
                if x.kind == "dma":
                    g = G(slots[seen]); seen += 1
                    grp = [x] if x.meta.get("credit") is None else [ins(f"s_waitcnt vmcnt({x.meta['credit']})"), x]
                    ch.append((grp, g, g))
                else:
                    ch.append(([x], 0, nm-1))
            for k in range(len(ch)-2, -1, -1):
                if ch[k][0][-1].kind != "dma": ch[k] = (ch[k][0], 0, max(0, ch[k+1][2] - (1 if ch[k+1][0][-1].kind == "dma" else 0)))
            chains.append(ch)
        if early: chains.append([([x], 0, nm-1) for x in early])
        if extra: chains.append([(g, (k*nm)//len(extra), nm-1) for k, g in enumerate(extra)])
        self.run(mf, chains, pre)

    def body(self, j, dmaG, tog=(), nper=6, extra=(), extra2=()):
        bar = []
        if j + 1 <= 15: bar.append(wait_tag(("kv", j+1)))
        if extra: bar.append(wait_tag(("wo",)))
        bar += [ins("s_waitcnt lgkmcnt(0)"), ins("s_barrier")]
        if self.o.get("baracct"):
            b0 = [ins("s_memtime s[92:93]"), ins("s_waitcnt lgkmcnt(0)")]
            b1 = [ins("s_memtime s[94:95]"), ins("s_waitcnt lgkmcnt(0)")]
            b2 = [ins("s_memtime s[96:97]"), ins("s_waitcnt lgkmcnt(0)"), ins("s_sub_u32 s98, s94, s92"), ins("s_add_u32 s100, s100, s98"),
                  ins("s_sub_u32 s98, s96, s94"), ins("s_add_u32 s101, s101, s98")]
            bar = b0 + bar[:1] + b1 + bar[1:] + b2
        tk = [x for x in tog if any(f"v{KA+z}," in x.txt for z in range(4))]
        tv = [x for x in tog if x not in tk]
        flat = [x for g in dmaG for x in g]
        cr = self.o.get("credit")
        if cr is not None and j <= 12:
            k = 0
            for x in flat:
                if x.kind == "dma":
                    x.meta["credit"] = cr[k % len(cr)] if isinstance(cr, list) else cr
                    k += 1
        nd = sum(1 for x in flat if x.kind == "dma")
        if nd == 8: cnt = self.o.get("dmacnt", [1, 1, 2, 1, 1, 2])
        else: cnt = [nd//6 + (1 if q < nd % 6 else 0) for q in range(6)]
        per = [[] for _ in range(6)]
        q = 0; seen = 0
        for x in flat:
            while q < 5 and seen >= cnt[q]: q += 1; seen = 0
            per[q].append(x)
            if x.kind == "dma": seen += 1
        for q in range(6):
            e = tv[:4] if q == 0 else (tv[4:] if q == 1 else [])
            ex = []
            if extra or extra2:
                xs = list(extra) + list(extra2)
                n = len(xs); ex = xs[q*n//6:(q+1)*n//6]
            self.period(6*j + 2 + q, dma=per[q], pre=(bar + tk) if q == 0 else (), early=e, extra=ex)

    def tog(self):
        return [ins(f"v_xor_b32 v{KA+x}, {PHI}, v{KA+x}") for x in range(4)] + [ins(f"v_xor_b32 v{VA+x}, {PHI}, v{VA+x}") for x in range(8)]
    def attention_shared(self):
        p = self.p
        look = self.o.get("look", 3)
        if look == 4:
            t3 = self.kv_pieces(3, 0, 8)
            self.period(0, dma=[x for g in t3[:4] for x in g]); self.period(1, dma=[x for g in t3[4:] for x in g])
            self.body(0, self.dma_kv_abs(("kv", 4), 0))
        else:
            self.period(0); self.period(1)
            self.body(0, self.dma_kv_abs(("kv", 3), 3))
        p(f"s_mov_b32 s{sM}, s{sKVl}")
        p(f"s_mov_b32 s{sCnt}, 5")
        for k in range(5):
            j = 1 + 2*k
            p.raw(f"@@LB at {k}")
            self.stamp(True)
            if look == 4:
                g1 = self.dma_kv(("kv", j+4), f"s_add_u32 m0, s{sM}, 8192", f"s_add_u32 m0, s{sM}, 12288")
                self.body(j, g1, tog=self.tog())
                g2 = self.dma_kv(("kv", j+5), f"s_add_u32 m0, s{sM}, 0", f"s_add_u32 m0, s{sM}, 4096")
                self.body(j+1, [[ins(f"s_xor_b32 s{sM}, s{sM}, {PHI}")]] + g2)
            else:
                g1 = self.dma_kv(("kv", j+3), f"s_add_u32 m0, s{sM}, 0", f"s_add_u32 m0, s{sM}, 4096")
                self.body(j, g1, tog=self.tog())
                g2 = self.dma_kv(("kv", j+4), f"s_add_u32 m0, s{sM}, 8192", f"s_add_u32 m0, s{sM}, 12288")
                g2[-1] = g2[-1] + [ins(f"s_xor_b32 s{sM}, s{sM}, {PHI}")]
                self.body(j+1, g2)
            p(f"s_sub_u32 s{sCnt}, s{sCnt}, 1"); p(f"s_cmp_lg_u32 s{sCnt}, 0"); p("s_cbranch_scc1 L_at")
            p.raw(f"@@LE at {k}")
        if look == 4:
            self.body(11, self.dma_kv_abs(("kv", 15), 3), tog=self.tog())
            self.body(12, [])
        else:
            self.body(11, self.dma_kv_abs(("kv", 14), 2), tog=self.tog())
            self.body(12, self.dma_kv_abs(("kv", 15), 3))
    def attention_tail(self, last):
        fuse = self.o.get("fuse")
        prep_here = ((not last) if fuse else last) and not self.o.get("woearly") and not self.o.get("womid") and not self.o.get("rawwo")
        self.stamp(True)
        if prep_here:
            W = self.wo_prep_groups(); h = 9 + 4*3
            self.body(13, self.dma_wo_last(), tog=self.tog())
            self.body(14, [], extra=W[:h])
            self.body(15, (self.w_tile(0, 1) + self.x_tile(0) + ([] if self.o.get("w1late") else self.w_tile(1, 1))) if not last else [], tog=self.tog(), extra2=W[h:])
        elif not last:
            self.body(13, self.warm_wo() if self.o.get("rawwo") else [], tog=self.tog())
            self.body(14, [])
            self.body(15, self.w_tile(0, 1) + self.x_tile(0) + ([] if self.o.get("w1late") else self.w_tile(1, 1)), tog=self.tog())
        else:
            self.body(13, [], tog=self.tog(), extra2=[[x] for x in self.k3_setup()])
            self.body(14, [], extra2=[self.poll_issue(f"v_mov_b32 VDST, s{sC1}")])
            self.body(15, [], tog=self.tog())
            self.poll_check(8 if self.o.get('rawwo') else 128)
    def wo_prep_groups(self, stage=False):
        setup = [ins("v_and_b32 v33, 15, v0"), ins("v_lshrrev_b32 v34, 4, v0"), ins("v_lshrrev_b32 v35, 2, v33"), ins("v_and_b32 v33, 3, v33"),
                 ins("v_lshl_add_u32 v32, v34, 2, v35"), ins("v_lshlrev_b32 v32, 10, v32"), ins("v_lshl_add_u32 v32, v33, 4, v32"),
                 ins(f"s_lshl_b32 s88, s{sW}, 8"), ins("v_add_u32 v32, s88, v32")]
        G = [[x] for x in setup]
        mod = self.o['last_store_mod']
        for nt in range(8):
            u, par = nt >> 1, nt & 1
            d = 252 if not stage else OS(nt + (0 if stage is True else stage))
            G.append([ins(f"ds_read_b64_tr_b16 a[{d}:{d+1}], v32 offset:{64*u + 8*par}")])
            G.append([ins(f"ds_read_b64_tr_b16 a[{d+2}:{d+3}], v32 offset:{16384 + 64*u + 8*par}")])
            if stage: continue
            g = []
            if nt % 4 == 0: g.append(ins(f"s_add_u32 s{sT2}, s{sWTo}, {nt*1024}"))
            g.append(ins(f"buffer_store_dwordx4 a[{d}:{d+3}], v{VST}, s[{SWT}:{SWT+3}], s{sT2} offen offset:{(nt % 4)*1024} {mod}"))
            G.append(g)
        return G
    def warm_wo(self):
        G = []
        for half in range(2):
            g = [ins(f"s_add_u32 s{sT1}, s{sWOo}, {half*4096}")]
            for n in range(4):
                i = ins(f"buffer_load_dwordx4 a[252:255], v{VST}, s[{SWO}:{SWO+3}], s{sT1} offen offset:{1024*n}", tag=("warm",))
                i.kind = "dma"; i.wr = set(); i.rd.discard("m0")
                g.append(i); G.append(g); g = []
        return G
    def dma_wo_last(self):
        G = []
        for half in range(2):
            g = [ins(f"s_add_u32 s{sT1}, s{sWOo}, {half*4096}"), ins(f"s_lshl_b32 s{sWoM}, s{sW}, 13"), ins(f"s_add_u32 m0, s{sWoM}, {half*4096}")]
            for n in range(4):
                g.append(ins(f"buffer_load_dwordx4 v{VST}, s[{SWO}:{SWO+3}], s{sT1} offen offset:{1024*n} nt lds", tag=("wo",)))
                G.append(g); g = []
        return G

    FLAG = 131072
    def softmax_check(self, item):
        p = self.p
        t = S(0, 0)
        for qt in range(6): p(f"v_accvgpr_read_b32 v{t+qt}, a{LA(qt)}")
        p(f"v_max3_f32 v{t+6}, v{t}, v{t+1}, v{t+2}"); p(f"v_min3_f32 v{t+7}, v{t}, v{t+1}, v{t+2}")
        p(f"v_max3_f32 v{t+6}, v{t+6}, v{t+3}, v{t+4}"); p(f"v_min3_f32 v{t+7}, v{t+7}, v{t+3}, v{t+4}")
        p(f"v_max_f32 v{t+6}, v{t+6}, v{t+5}"); p(f"v_min_f32 v{t+7}, v{t+7}, v{t+5}")
        p(f"v_cmp_nge_f32 vcc, {f32(2.0**24)}, v{t+6}")
        p("s_mov_b64 s[88:89], vcc")
        p(f"v_cmp_nle_f32 vcc, {f32(2.0**-24)}, v{t+7}")
        p("s_or_b64 s[88:89], s[88:89], vcc")
        p("s_cmp_lg_u64 s[88:89], 0"); p("s_cselect_b32 s88, 1, 0")
        p(f"v_mov_b32 v{t}, s88"); p(f"s_lshl_b32 s89, s{sW}, 2"); p(f"s_add_u32 s89, s89, {self.FLAG}"); p(f"v_mov_b32 v{t+1}, s89")
        p(f"ds_write_b32 v{t+1}, v{t}")
        p("s_waitcnt lgkmcnt(0)"); p("s_barrier")
        p(f"v_mov_b32 v{t+1}, {self.FLAG}")
        p(f"ds_read_b128 v[{t+4}:{t+7}], v{t+1}")
        p(f"v_or_b32 v{t+4}, v{t+4}, v{t+5}"); p(f"v_or_b32 v{t+6}, v{t+6}, v{t+7}"); p(f"v_or_b32 v{t+4}, v{t+4}, v{t+6}")
        p(f"v_readfirstlane_b32 s88, v{t+4}")
        p("s_cmp_lg_u32 s88, 0")
        p("s_cbranch_scc1 L_FB")
        p.raw(f"L_OE{item}:")

    def fallback(self):
        q = K2(self.o); q.phase = "fb"; p = q.p
        M = LS
        def load_tile():
            p(f"s_mov_b32 s{sT2}, s{sTc}")
            q.emit_groups(q.dma_kv_abs(("fb",), 0))
            p("s_waitcnt vmcnt(0)"); p("s_barrier")
        def qk(qt):
            for kt in range(2):
                for ks in range(4):
                    p.add(mfma(S(0, kt), "v", KF(0, kt, ks), "a", Q(qt, ks), "a", None if ks == 0 else S(0, kt)))
        p.raw("L_FB:")
        p("s_waitcnt vmcnt(0) lgkmcnt(0)"); p("s_barrier")
        p(f"s_mov_b32 s{SKV+2}, {KV_BYTES}")
        for qt in range(6): p(f"v_mov_b32 v{M+qt}, 0xff800000")
        p(f"s_lshl_b32 s{sTc}, s{sItem}, 17"); p(f"s_mov_b32 s{sCnt}, 16")
        p.raw("L_FB1:")
        load_tile()
        for kt in range(2):
            for ks in range(4): p.add(q.rd_k(0, kt, ks))
        for qt in range(6):
            qk(qt)
            e = [S(0, 0)+r for r in range(4)] + [S(0, 1)+r for r in range(4)]
            for k in range(0, 8, 2): p(f"v_max3_f32 v{M+qt}, v{e[k]}, v{e[k+1]}, v{M+qt}")
        p("s_waitcnt lgkmcnt(0)"); p("s_barrier")
        p(f"s_sub_u32 s{sCnt}, s{sCnt}, 1"); p(f"s_cmp_lg_u32 s{sCnt}, 0"); p("s_cbranch_scc1 L_FB1")
        t = S(1, 0)
        for qt in range(6):
            m = M + qt
            p(f"v_mov_b32 v{t}, v{m}"); p(f"v_permlane32_swap_b32 v{t}, v{m}"); p(f"v_max_f32 v{m}, v{m}, v{t}")
            p(f"v_mov_b32 v{t}, v{m}"); p(f"v_permlane16_swap_b32 v{t}, v{m}"); p(f"v_max_f32 v{m}, v{m}, v{t}")
        for r in range(192): p(f"v_mov_b32 v{ACC+r}, 0")
        p(f"v_mov_b32 v{t}, 0")
        for r in range(24): p(f"v_accvgpr_write_b32 a{LA(0)+r}, v{t}")
        p(f"s_lshl_b32 s{sTc}, s{sItem}, 17"); p(f"s_mov_b32 s{sCnt}, 16")
        p("s_nop 7")
        p.raw("L_FB2:")
        load_tile()
        for kt in range(2):
            for ks in range(4): p.add(q.rd_k(0, kt, ks))
        for dt in range(8):
            p.add(q.rd_v(0, dt, 0)); p.add(q.rd_v(0, dt, 1))
        for qt in range(6):
            qk(qt)
            e = [S(0, 0)+r for r in range(4)] + [S(0, 1)+r for r in range(4)]
            for k in range(8): p(f"v_sub_f32 v{e[k]}, v{e[k]}, v{M+qt}")
            for k in range(8): p(f"v_exp_f32 v{e[k]}, v{e[k]}")
            for k in range(0, 8, 2): p(f"v_cvt_pk_bf16_f32 v{P(0)+k//2}, v{e[k]}, v{e[k+1]}")
            for dt in range(8): p.add(mfma(acc(dt, qt), "v", VF(0, dt), "a", P(0), "v", acc(dt, qt)))
            p.add(mfma(LA(qt), "a", ONES, "a", P(0), "v", LA(qt)))
        p("s_waitcnt lgkmcnt(0)"); p("s_nop 7"); p("s_nop 7"); p("s_barrier")
        p(f"s_sub_u32 s{sCnt}, s{sCnt}, 1"); p(f"s_cmp_lg_u32 s{sCnt}, 0"); p("s_cbranch_scc1 L_FB2")
        p("s_nop 7"); p("s_nop 7")
        p(f"s_cmp_eq_u32 s{sItem}, 0"); p("s_cbranch_scc1 L_OE0")
        if self.o.get("fuse"):
            for x in self.k3_setup(): p.add(x)
        p("s_branch L_OE1")
        L, st = finalize(p.L)
        return L

    def signal(self, offreg_txt, uid=None):
        uid = uid or self.uid()
        L = [ins(f"s_cmp_lg_u32 s{sW}, 0"), ins(f"s_cbranch_scc1 L_sig{uid}"),
             ins(f"v_mov_b32 v{VPOLL+1}, 1"), ins(offreg_txt), ins("s_mov_b64 exec, 1"),
             ins(f"buffer_atomic_add v{VPOLL+1}, v{VPOLL+2}, s[{SFL}:{SFL+3}], 0 offen sc1"),
             ins("s_mov_b64 exec, -1")]
        for x in L: x.meta["alt"] = True
        L.append(I(f"L_sig{uid}:", "label"))
        return L
    def uid(self):
        self._uid = getattr(self, "_uid", 0) + 1
        return self._uid
    def poll_issue(self, off_txt):
        return [ins(off_txt.replace("VDST", f"v{VPOLL+3}")), ins(f"buffer_load_dword v{VPOLL}, v{VPOLL+3}, s[{SFL}:{SFL+3}], 0 offen sc1")]
    def poll_check(self, target):
        p = self.p
        uid = self.uid()
        p(f"v_readfirstlane_b32 s88, v{VPOLL}")
        p(f"s_cmp_ge_u32 s88, {target}"); p(f"s_cbranch_scc1 L_ok{uid}")
        L = [f"s_mov_b32 s89, 0x40000", f"L_spin{uid}:", "s_sleep 2",
             f"buffer_load_dword v{VPOLL}, v{VPOLL+3}, s[{SFL}:{SFL+3}], 0 offen sc1", "s_waitcnt vmcnt(0)",
             f"v_readfirstlane_b32 s88, v{VPOLL}", "s_nop 3", "s_sub_u32 s89, s89, 1", "s_cmp_eq_u32 s89, 0", f"s_cbranch_scc1 L_ok{uid}",
             f"s_cmp_lt_u32 s88, {target}", f"s_cbranch_scc1 L_spin{uid}"]
        for t in L: p.add(I(t, "label", verbatim=True))
        p.raw(f"L_ok{uid}:")

    def k3_setup(self):
        L = []
        A = lambda t: L.append(ins(t))
        A(f"s_and_b32 s88, s{sHG}, 3"); A(f"s_lshr_b32 s89, s{sHG}, 2")
        A(f"s_lshl_b32 s90, s{sP}, 2"); A("s_add_u32 s90, s90, s88"); A("s_lshl_b32 s90, s90, 7"); A(f"s_lshl_b32 s91, s{sW}, 5"); A("s_add_u32 s90, s90, s91"); A("s_lshl_b32 s90, s90, 13")
        rot = self.o.get("k3rot", True)
        if rot: A(f"s_and_b32 s{kRho}, s{sB}, 3"); A(f"s_add_u32 s{kRho}, s{kRho}, s{sW}")
        else: A(f"s_mov_b32 s{kRho}, s{sW}")
        for pr in range(4):
            A(f"s_add_u32 s91, s{kRho}, {pr}"); A("s_and_b32 s91, s91, 3"); A("s_lshl_b32 s91, s91, 11"); A(f"s_add_u32 s{kA+pr}, s90, s91")
        if rot: A("s_lshr_b32 s91, s88, 1"); A(f"s_add_u32 s{kSig}, s88, s91")
        else: A(f"s_mov_b32 s{kSig}, 0")
        for qt in range(6):
            A(f"s_add_u32 s91, s{kSig}, {qt}"); A("s_cmp_ge_u32 s91, 6"); A("s_cselect_b32 s98, 6, 0"); A("s_sub_u32 s91, s91, s98"); A("s_lshl_b32 s91, s91, 10")
            A(f"v_add_u32 v{VBQ+qt}, s91, v{VST}")
        A(f"s_lshl_b32 s90, s{sP}, 4"); A(f"s_add_u32 s90, s90, s{sB}"); A("s_lshl_b32 s90, s90, 1"); A("s_add_u32 s90, s90, s89"); A("s_lshl_b32 s90, s90, 7")
        A(f"s_lshl_b32 s91, s{sW}, 5"); A("s_add_u32 s90, s90, s91"); A(f"s_mul_i32 s{kBo}, s90, 6144")
        A(f"s_mul_i32 s90, s{sB}, 192"); A("s_mul_i32 s91, s89, 96"); A("s_add_u32 s90, s90, s91"); A("s_lshl_b32 s90, s90, 11")
        A(f"s_lshl_b32 s91, s{sP}, 10"); A("s_add_u32 s90, s90, s91"); A("s_lshl_b32 s91, s88, 8"); A("s_add_u32 s90, s90, s91")
        A(f"s_and_b32 s91, s{kRho}, 3"); A("s_lshl_b32 s91, s91, 6"); A(f"s_add_u32 s{kOut}, s90, s91")
        A(f"s_mov_b32 s{SX}, s68"); A(f"s_mov_b32 s{SX+1}, s69"); A(f"s_mov_b32 s{SX+2}, {OUT_BYTES}"); A(f"s_mov_b32 s{SX+3}, 0x00020000")
        A(f"v_add_u32 v{VB4}, 4096, v{VST}")
        if self.o.get("rawwo"):
            A(f"s_lshl_b32 s90, s{sW}, 20"); A("s_lshl_b32 s91, s88, 8"); A(f"s_add_u32 s{kA}, s90, s91")
            A(f"s_lshl_b32 s{kA+1}, s{sW}, 15")
        return L
    def k3_setup2(self):
        L = []
        A = lambda t: L.append(ins(t))
        A("v_and_b32 v2, 15, v0"); A("v_lshrrev_b32 v3, 4, v0"); A("v_lshlrev_b32 v7, 2, v3"); A("v_xor_b32 v7, v7, v2"); A("v_lshlrev_b32 v7, 4, v7")
        A(f"v_lshl_add_u32 v{VAD2}, v3, 10, v7")
        for n in range(1, 4): A(f"v_add_u32 v{VAD2+n}, {n*3072}, v{VAD2}")
        A("v_lshrrev_b32 v7, 2, v2"); A("v_and_b32 v2, 3, v2")
        A("v_lshl_add_u32 v3, v3, 2, v7"); A("v_lshlrev_b32 v3, 8, v3"); A(f"v_add_u32 v3, s{kA+1}, v3")
        A("v_lshlrev_b32 v7, 2, v7")
        for pr in range(4):
            A(f"s_add_u32 s91, s{kRho}, {pr}"); A("s_and_b32 s91, s91, 3"); A("s_lshl_b32 s91, s91, 2")
            A(f"v_add_u32 v{VAR2+pr}, s91, v2"); A(f"v_xor_b32 v{VAR2+pr}, v{VAR2+pr}, v7"); A(f"v_lshl_add_u32 v{VAR2+pr}, v{VAR2+pr}, 4, v3")
        return L
    def k3_loads(self, b, o, j=None):
        m = self.o.get("k3_ld", "sc1")
        raw = self.o.get("rawwo")
        bf = BF2 if raw else BF
        G = []
        for qt in range(6):
            g = [ins(f"s_add_u32 s{kT0}, s{kBo}, {o*6144}")] if qt == 0 else []
            g.append(ins(f"buffer_load_dwordx4 {rng('a', bf(b, qt), 4)}, v{VBQ+qt}, s[{SO}:{SO+3}], s{kT0} offen {m}"))
            G.append(g)
        if raw:
            for half in range(2):
                g = [ins(f"s_add_u32 s{kT1}, s{kA}, {o*32768 + half*16384}"), ins(f"s_add_u32 m0, s{kA+1}, {b*8192 + half*4096}")]
                for n in range(4):
                    g.append(ins(f"buffer_load_dwordx4 v{VAD2+n}, s[{SWO}:{SWO+3}], s{kT1} offen offset:{1024*n} lds", tag=("A", j)))
                    G.append(g); g = []
            return G
        for pr in range(4):
            t = kT1 if pr % 2 == 0 else kT0
            G.append([ins(f"s_add_u32 s{t}, s{kA+pr}, {o*8192}"),
                      ins(f"buffer_load_dwordx4 {rng('a', AF(b, 2*pr), 4)}, v{VST}, s[{SWT}:{SWT+3}], s{t} offen {m}")])
            G.append([ins(f"buffer_load_dwordx4 {rng('a', AF(b, 2*pr+1), 4)}, v{VST}, s[{SWT}:{SWT+3}], s{t} offen offset:1024 {m}")])
        return G
    def k3_tr(self, t):
        L = []
        for nu in range(8):
            pr, par = nu >> 1, nu & 1
            d = AF2(t % 2, nu)
            L.append(ins(f"ds_read_b64_tr_b16 a[{d}:{d+1}], v{VAR2+pr} offset:{(t % 4)*8192 + 8*par}"))
            L.append(ins(f"ds_read_b64_tr_b16 a[{d+2}:{d+3}], v{VAR2+pr} offset:{(t % 4)*8192 + 4096 + 8*par}"))
        return L
    def k3_adv(self, steps):
        if self.o.get("rawwo"):
            return [ins(f"s_add_u32 s{kA}, s{kA}, {(steps*32768) & 0xffffffff}"), ins(f"s_add_u32 s{kBo}, s{kBo}, {(steps*6144) & 0xffffffff}")]
        return [ins(f"s_add_u32 s{kA+pr}, s{kA+pr}, {(steps*8192) & 0xffffffff}") for pr in range(4)] + [ins(f"s_add_u32 s{kBo}, s{kBo}, {(steps*6144) & 0xffffffff}")]
    def k3_step(self, t, G, extra=(), dst=None, order=None, post=None):
        p = self.p
        dst = dst if dst is not None else []
        raw = self.o.get("rawwo")
        b = t % 4
        af = (lambda nu: AF2(t % 2, nu)) if raw else (lambda nu: AF(b, nu))
        bf = (lambda qt: BF2(b, qt)) if raw else (lambda qt: BF(b, qt))
        tr = []
        if raw and t + 1 <= 31:
            p.wait_tag(("A", t+1)); tr = self.k3_tr(t+1)
        n = 0
        extra = list(extra)
        for nu in (order or range(8)):
            for qt in range(6):
                p.add(mfma(oacc(nu, qt), "v", af(nu), "a", bf(qt), "a", None if t == 0 else oacc(nu, qt)))
                if n % 3 == 1 and n//3 < len(G):
                    for x in G[n//3]: p.add(x)
                elif tr and n % 3 != 1 and n >= 2: p.add(tr.pop(0))
                if n == 44:
                    for x in extra: p.add(x)
                if n in (8, 17, 26, 35, 43) and dst:
                    for x in dst.pop(0): p.add(x)
                if post: post(nu, qt)
                n += 1
        assert not tr
    def k3_main(self):
        p = self.p
        D = self.deferred
        if self.o.get("rawwo"):
            p.wait_tag(("A", 0))
            for x in self.k3_tr(0): p.add(x)
        if D:
            assert len(D) <= 24
            self.k3_step(0, self.k3_loads(3, 3, 3), extra=self.k3_adv(8), dst=D)
            for t in range(1, 9):
                i = (t-1) % 4
                self.k3_step(t, self.k3_loads((t+3) % 4, i, t+3), extra=self.k3_adv(8) if i == 3 else [], dst=D)
                if t == self.o.get("sig2", 7 if self.o.get("rawwo") else 6):
                    p.wait_tag(("o",)); p("s_barrier")
                    for x in self.signal(f"v_mov_b32 v{VPOLL+2}, s{sC2o}", uid="g2"): p.add(x)
            assert not D
            for i in range(4):
                t = 9 + i
                self.k3_step(t, self.k3_loads((t+3) % 4, i, t+3), extra=self.k3_adv(8) if i == 3 else [])
                if i == 2:
                    for x in self.poll_issue(f"v_mov_b32 VDST, s{sC2o}"): p.add(x)
        else:
            self.k3_step(0, self.k3_loads(3, 3, 3), extra=self.k3_adv(8))
            p(f"s_mov_b32 s{kCnt}, 3")
            for k in range(3):
                p.raw(f"@@LB k3a {k}")
                for i in range(4):
                    t = 1 + 4*k + i
                    ex = self.k3_adv(8) if i == 3 else []
                    self.k3_step(t, self.k3_loads((t+3) % 4, i, t+3), extra=ex)
                    if i == 1:
                        uid = "k3s"
                        p(f"s_cmp_lg_u32 s{kCnt}, 3"); p(f"s_cbranch_scc1 L_{uid}")
                        p.wait_tag(("o",)); p("s_barrier")
                        for x in self.signal(f"v_mov_b32 v{VPOLL+2}, s{sC2o}", uid="g2"): p.add(x)
                        p.raw(f"L_{uid}:")
                    if i == 2:
                        for x in self.poll_issue(f"v_mov_b32 VDST, s{sC2o}"): p.add(x)
                p(f"s_sub_u32 s{kCnt}, s{kCnt}, 1"); p(f"s_cmp_lg_u32 s{kCnt}, 0"); p("s_cbranch_scc1 L_k3a")
                p.raw(f"@@LE k3a {k}")
        self.stamp()
        for x in self.k3_adv(4 - 32): p.add(x)
        self.poll_check(16 if self.o.get('rawwo') else 8)
        for i in range(4):
            t = 13 + i
            self.k3_step(t, self.k3_loads((t+3) % 4, i, t+3), extra=self.k3_adv(8) if i == 3 else [])
        p(f"s_mov_b32 s{kCnt}, 3")
        for k in range(3):
            p.raw(f"@@LB k3b {k}")
            for i in range(4):
                t = 17 + 4*k + i
                self.k3_step(t, self.k3_loads((t+3) % 4, i, t+3), extra=self.k3_adv(8) if i == 3 else [])
            p(f"s_sub_u32 s{kCnt}, s{kCnt}, 1"); p(f"s_cmp_lg_u32 s{kCnt}, 0"); p("s_cbranch_scc1 L_k3b")
            p.raw(f"@@LE k3b {k}")
        for t in (29, 30): self.k3_step(t, [])
        if self.o.get("redovl", True):
            for pr, v in ((1, 7), (2, 2), (3, 3)):
                p(f"s_add_u32 s88, s{sW}, {pr}"); p("s_and_b32 s88, s88, 3"); p("s_mul_i32 s88, s88, 36864"); p(f"s_add_u32 s88, s88, {(pr-1)*12288}")
                p(f"v_add_u32 v{v}, s88, v{VST}")
            if self.o.get("rawwo"):
                p("s_waitcnt lgkmcnt(0)"); p("s_barrier")
            pend = []
            def post(nu, qt):
                if pend and qt in (1, 3, 5): p.add(pend.pop(0))
                if qt == 5 and nu >= 2:
                    pr, par = nu >> 1, nu & 1
                    v = {1: 7, 2: 2, 3: 3}[pr]
                    pend.extend(ins(f"ds_write_b128 v{v}, v[{oacc(nu, q)}:{oacc(nu, q)+3}] offset:{(par*6 + q)*1024}") for q in range(6))
            self.k3_step(31, [], order=[2, 3, 4, 5, 6, 7, 0, 1], post=post)
            self.red_pending = pend
        else:
            assert not self.o.get("rawwo")
            self.k3_step(31, [])
        self.stamp()
        if self.o.get("redovl", True):
            for x in self.red_pending: p.add(x)
            p(f"s_mul_i32 s88, s{sW}, 36864"); p(f"v_add_u32 v8, s88, v{VST}")
        else:
            for pr, v in ((1, 7), (2, 2), (3, 3)):
                p(f"s_add_u32 s88, s{sW}, {pr}"); p("s_and_b32 s88, s88, 3"); p("s_mul_i32 s88, s88, 36864"); p(f"s_add_u32 s88, s88, {(pr-1)*12288}")
                p(f"v_add_u32 v{v}, s88, v{VST}")
            p(f"s_mul_i32 s88, s{sW}, 36864"); p(f"v_add_u32 v8, s88, v{VST}")
            for pr, v in ((1, 7), (2, 2), (3, 3)):
                for par in range(2):
                    for qt in range(6):
                        a = oacc(2*pr + par, qt)
                        p(f"ds_write_b128 v{v}, v[{a}:{a+3}] offset:{(par*6 + qt)*1024}")
        p("s_waitcnt lgkmcnt(0)")
        p("s_barrier")
        for sl in range(3):
            for par in range(2):
                for qt in range(6):
                    a = oacc(2*(sl+1) + par, qt)
                    p(f"ds_read_b128 v[{a}:{a+3}], v8 offset:{sl*12288 + (par*6 + qt)*1024}")
        p("v_and_b32 v12, 15, v0"); p("v_lshrrev_b32 v13, 4, v0"); p("v_lshlrev_b32 v12, 11, v12"); p("v_lshl_add_u32 v9, v13, 4, v12")
        for qt in range(6):
            for par in range(2):
                a = oacc(par, qt)
                for sl in range(3):
                    s_ = oacc(2*(sl+1) + par, qt)
                    for r in range(4): p(f"v_add_f32 v{a+r}, v{a+r}, v{s_+r}")
            a0, a1 = oacc(0, qt), oacc(1, qt)
            t0 = 16 + (qt % 4)*4
            p(f"v_cvt_pk_bf16_f32 v{t0}, v{a0}, v{a0+1}"); p(f"v_cvt_pk_bf16_f32 v{t0+1}, v{a0+2}, v{a0+3}")
            p(f"v_cvt_pk_bf16_f32 v{t0+2}, v{a1}, v{a1+1}"); p(f"v_cvt_pk_bf16_f32 v{t0+3}, v{a1+2}, v{a1+3}")
            p(f"s_add_u32 s88, s{kSig}, {qt}"); p("s_cmp_ge_u32 s88, 6"); p("s_cselect_b32 s89, 6, 0"); p("s_sub_u32 s88, s88, s89"); p("s_lshl_b32 s88, s88, 15")
            p(f"s_add_u32 s{kT0}, s{kOut}, s88")
            p(f"buffer_store_dwordx4 v[{t0}:{t0+3}], v9, s[{SX}:{SX+3}], s{kT0} offen {self.o.get('out_mod', '')}")

    def o_epilogue(self, last):
        p = self.p
        fuse_last = last and self.o.get("fuse")
        pre = []
        raw = self.o.get("rawwo")
        if fuse_last:
            if raw:
                for x in self.k3_setup2(): p.add(x)
            pre = self.k3_loads(0, 0, 0) + self.k3_loads(1, 1, 1) + self.k3_loads(2, 2, 2)
        defer = fuse_last and self.o.get("defer", True)
        self.deferred = []
        for qt in range(6): p(f"v_accvgpr_read_b32 v{LS+qt}, a{LA(qt)}")
        for qt in range(6): p(f"v_rcp_f32 v{LS+qt}, v{LS+qt}")
        vstage = [8, 12, 16, 20, 24, 28, 38, 42, 46, 50]
        ndir = 6
        nag = 8; abase = 224
        if fuse_last and raw:
            vstage = vstage[:8]; ndir = self.o.get("ndir", 0); nag = 24 - ndir; abase = 160
        for qt in range(6):
            for ks in range(4):
                m = qt*4 + ks
                a0, a1 = acc(2*ks, qt), acc(2*ks+1, qt)
                l = LS + qt
                if self.o.get("pk", True):
                    lp = l & ~1; sel = "op_sel_hi:[1,0]" if l % 2 == 0 else "op_sel:[0,1] op_sel_hi:[1,1]"
                    for a in (a0, a0+2, a1, a1+2): p(f"v_pk_mul_f32 v[{a}:{a+1}], v[{a}:{a+1}], v[{lp}:{lp+1}] {sel}")
                else:
                    for r in range(4): p(f"v_mul_f32 v{a0+r}, v{l}, v{a0+r}")
                    for r in range(4): p(f"v_mul_f32 v{a1+r}, v{l}, v{a1+r}")
                if defer: t0 = (54 if m % 2 == 0 or not raw else 8) if m < ndir + nag else vstage[m - ndir - nag]
                else: t0 = SB + ((ks + 4*qt) % 6)*4
                p(f"v_cvt_pk_bf16_f32 v{t0}, v{a0}, v{a0+1}")
                p(f"v_cvt_pk_bf16_f32 v{t0+1}, v{a0+2}, v{a0+3}")
                p(f"v_cvt_pk_bf16_f32 v{t0+2}, v{a1}, v{a1+1}")
                p(f"v_cvt_pk_bf16_f32 v{t0+3}, v{a1+2}, v{a1+3}")
                n = ks*6 + qt
                mod = self.o['last_store_mod']
                if last:
                    for _ in range(2):
                        if pre:
                            for x in pre.pop(0): p.add(x)
                    if not defer or m < ndir:
                        p(f"s_add_u32 s{sT0}, s{sOo}, {n*1024}")
                        p(f"buffer_store_dwordx4 v[{t0}:{t0+3}], v{VST}, s[{SO}:{SO+3}], s{sT0} offen {mod}", tag=("o",))
                    else:
                        if m < ndir + nag:
                            d = abase + (m - ndir)*4
                            for r in range(4): p(f"v_accvgpr_write_b32 a{d+r}, v{t0+r}")
                            src = f"a[{d}:{d+3}]"
                        else: src = f"v[{t0}:{t0+3}]"
                        self.deferred.append([ins(f"s_add_u32 s{sT2}, s{sOo}, {n*1024}"),
                                              ins(f"buffer_store_dwordx4 {src}, v{VST}, s[{SO}:{SO+3}], s{sT2} offen {mod}", tag=("o",))])
                else:
                    for r in range(4): p(f"v_accvgpr_write_b32 a{OS(n)+r}, v{t0+r}")

    def final(self):
        p = self.p
        p.wait_tag(("wo",))
        p("s_barrier")
        p("v_and_b32 v8, 15, v0"); p("v_lshrrev_b32 v2, 4, v0"); p("v_lshrrev_b32 v3, 2, v8"); p("v_and_b32 v7, 3, v8")
        p("v_lshl_add_u32 v6, v2, 2, v3"); p("v_lshlrev_b32 v6, 10, v6"); p("v_lshl_add_u32 v6, v7, 4, v6")
        p(f"s_lshl_b32 s88, s{sW}, 8"); p("v_add_u32 v6, s88, v6")
        for nt in range(8):
            u, par = nt >> 1, nt & 1
            d = 32 + nt*4
            p(f"ds_read_b64_tr_b16 v[{d}:{d+1}], v6 offset:{64*u + 8*par}")
            p(f"ds_read_b64_tr_b16 v[{d+2}:{d+3}], v6 offset:{16384 + 64*u + 8*par}")
        for nt in range(8):
            d = 32 + nt*4
            if nt % 4 == 0: p(f"s_add_u32 s{sT1}, s{sWTo}, {nt*1024}")
            p(f"buffer_store_dwordx4 v[{d}:{d+3}], v{VST}, s[{SWT}:{SWT+3}], s{sT1} offen offset:{(nt % 4)*1024} {self.o['last_store_mod']}")

    def build(self):
        p = self.p
        assert self.o["msum"]
        self.prologue()
        if self.o["timing"]: p("s_mov_b32 s99, 0")
        if self.o.get("delaywg"):
            p("s_and_b32 s88, s2, 7"); p("s_cmp_lg_u32 s88, 3"); p("s_cbranch_scc1 L_nodelay")
            p("s_memrealtime s[88:89]"); p("s_waitcnt lgkmcnt(0)"); p(f"s_add_u32 s90, s88, {self.o['delaywg']}")
            p.raw("L_spinw:"); p("s_memrealtime s[88:89]"); p("s_waitcnt lgkmcnt(0)"); p("s_cmp_lt_u32 s88, s90"); p("s_cbranch_scc1 L_spinw")
            p.raw("L_nodelay:")
        self.stamp()
        if self.o.get("entry"):
            p("s_mov_b32 m0, 62"); p("s_nop 1"); p("v_writelane_b32 v5, s100, m0")
        early = self.o.get("woearly")
        p(f"s_mov_b32 s{SO+2}, {0 if self.o.get('stA') else O_BYTES}")
        mid = self.o.get("womid")
        if mid:
            assert self.o.get("stA") and self.o.get("fuse") and self.o.get("stpat") == 3
            self.emit_groups(self.w_tile(0, 0) + self.x_tile(0) + self.w_tile(1, 0) + self.dma_wo_last())
        elif early:
            assert self.o.get("stA") and self.o.get("fuse")
            self.emit_groups(self.w_tile(0, 0) + self.x_tile(0) + self.dma_wo_last() + self.w_tile(1, 0))
        else:
            self.emit_groups(self.w_tile(0, 0) + self.x_tile(0) + ([] if self.o.get("w1late") else self.w_tile(1, 0)))
        self.prologue2()
        if mid:
            p(f"s_mov_b32 s{sOreal}, s{sOo}"); p(f"s_mov_b32 s{sOo}, {4*6144}")
            p(f"s_add_u32 s{SO}, s{SWT}, s{sWTo}"); p(f"s_addc_u32 s{SO+1}, s{SWT+1}, 0")
            p(f"s_sub_u32 s{SO}, s{SO}, {12*1024}"); p(f"s_subb_u32 s{SO+1}, s{SO+1}, 0")
            p(f"s_mov_b32 s{SO+2}, 0"); p(f"s_mov_b32 s{sSz1}, {20*1024}"); p(f"s_mov_b32 s{sSz2}, 0")
        if early:
            p(f"s_mov_b32 s{sOreal}, s{sOo}"); p(f"s_mov_b32 s{sOo}, {4*6144}")
            p(f"s_add_u32 s{SO}, s{SWT}, s{sWTo}"); p(f"s_addc_u32 s{SO+1}, s{SWT+1}, 0"); p(f"s_mov_b32 s{SO+2}, 8192")
            W = self.wo_prep_groups(stage=True)
            for g in W[:9]:
                for x in g: p.add(x)
            p.wait_tag(("wo",)); p("s_barrier")
            for g in W[9:]:
                for x in g: p.add(x)
        for item in range(2):
            last = item == 1
            p.raw("@@SB A"); self.qproj_a(); p.raw("@@SE A")
            p.raw(f"@@SB B{item}"); self.qproj_b(last); self.stamp(); p.raw(f"@@SE B{item}")
            p.raw("@@SB C"); self.attention_shared(); p.raw("@@SE C")
            p.raw(f"@@SB D{item}")
            self.attention_tail(last)
            self.stamp()
            if self.o.get("guard", True): self.softmax_check(item)
            self.o_epilogue(last)
            self.stamp()
            if not last:
                if self.o.get("woearly") or self.o.get("womid"):
                    p(f"s_mov_b32 s{sOo}, s{sOreal}"); p(f"s_mov_b32 s{SO}, s72"); p(f"s_mov_b32 s{SO+1}, s73")
                if self.o.get("womid"):
                    p(f"s_mov_b32 s{sSz1}, {O_BYTES}"); p(f"s_mov_b32 s{sSz2}, {O_BYTES}")
                p(f"s_add_u32 s{sWo}, s{sWo}, 256"); p(f"s_add_u32 s{sOo}, s{sOo}, {4*6144}")
                p(f"s_mov_b32 s{sItem}, 1"); p(f"s_mov_b32 s{SO+2}, {O_BYTES}")
            else:
                if self.o.get("fuse"): self.k3_main()
                self.stamp()
                p("s_waitcnt vmcnt(0)")
                self.stamp()
                self.stamp_flush()
                p("s_waitcnt vmcnt(0)")
            p.raw(f"@@SE D{item}")
        L, st = finalize(p.L)
        L = fold(L)
        segs, top = segments(L)
        out = [i for k, i in top if k == "ins"]
        lab = lambda t: I(t, "label")
        br = lambda tgt: [ins(f"s_cmp_eq_u32 s{sItem}, 1"), ins(f"s_cbranch_scc1 {tgt}")]
        out += [lab("L_A:")] + segs["A"] + br("L_B1") + segs["B0"] + [lab("L_C:")] + segs["C"] + br("L_D1") + segs["D0"] + [ins("s_branch L_A")]
        out += [lab("L_B1:")] + segs["B1"] + [ins("s_branch L_C")]
        out += [lab("L_D1:")] + segs["D1"] + [lab("K2_END:"), ins("s_endpgm")]
        if self.o.get("guard", True): out += self.fallback()
        return out, st

if __name__ == "__main__":
    k = K2(); L, st = k.build()
    print(st, len(L))
```

```python
from dsl import *
import struct

def f32(x): return "0x%08x" % struct.unpack("<I", struct.pack("<f", x))[0]

NB, SQ, DM, H, SK, DH = 16, 192, 512, 32, 512, 128
X_BYTES = NB*SQ*DM*2
KV_BYTES = NB*H*SK*DH*2
W_BYTES = DM*H*DH*2
O_BYTES = 2*NB*2*128*6*1024
WOT_OFF = O_BYTES
WOT_BYTES = 2*4*128*8*1024
OUT_BYTES = NB*SQ*1024*2

PHI = 65536
WSLOT = [65536, 81920, 98304]
XA, XB = 114688, 139264
DROP = 0x30000

ACC = 64
def acc(T, qt): return ACC + (T*6 + qt)*4
SB = 8
def S(buf, kt): return SB + buf*8 + kt*4
PB = 24
def P(buf): return PB + buf*4
LS = 32
KA = 38
VA = 42
DV = 50
WA = 54
XAD = 58
WD = [60, 61, 2, 3]
XD = [62, 63, 6, 7]
VST = 4
def Q(qt, ks): return (qt*4 + ks)*4
def OS(n): return n*4
def KF(buf, kt, ks): return 96 + buf*32 + (kt*4 + ks)*4
def VF(buf, dt): return 160 + buf*32 + dt*4
def WF(T): return 96 + T*4
def XF(buf, qt): return 128 + buf*24 + qt*4
ONES = 224
def LA(qt): return 228 + qt*4
SX, SW, SKV, SO, SWO, SWT = 4, 8, 12, 16, 20, 24
sW, sHP, sRH, sP, sB, sHG = 28, 29, 30, 31, 32, 33
sKVo, sKVl, sWo, sWl, sXo, sXl, sOo = 34, 35, 36, 37, 38, 39, 40
sT0, sT1, sC = 41, 42, 43
sWOo, sWTo = 44, 45
sItem, sCnt = 46, 47
sTile, sM, sTh1, sTh2, sWarmW, sWarmX, sWoM, sDrop, sTc, sRot = 74, 75, 76, 77, 78, 79, 80, 81, 84, 85
sT2 = 83
sC2 = 86
sWR, sXR = 78, 79

SFL = 92
kA, kBo, kT0, kT1, kOut, kCnt = 74, 78, 80, 81, 79, 47
sC1, sC2o = 97, 96
def oacc(nu, qt): return ACC + (nu*6 + qt)*4
def AF(buf, nu): return buf*56 + nu*4
def BF(buf, qt): return buf*56 + 32 + qt*4
VB4 = 6
VBQ = 58
kRho, kSig = 82, 85
VAD2, VAR2 = 46, 50
VAR = 38
VAD = 50
def AF2(buf, nu): return buf*32 + nu*4
def BF2(buf, qt): return 64 + buf*24 + qt*4
sOreal = 98
sSz1, sSz2 = 76, 77
VPOLL = 34
MF = "v_mfma_f32_16x16x32_bf16"
def mfma(d, dk, a, ak, b, bk, c=None):
    cs = "0" if c is None else rng(dk, c, 4)
    return ins(f"{MF} {rng(dk,d,4)}, {rng(ak,a,4)}, {rng(bk,b,4)}, {cs}")

class K2:
    def __init__(self, opts=None):
        self.o = dict(nt="nt", w_mod="", x_mod="", store_mod="sc1", last_store_mod="sc1", timing=False, msum=True, warm=False, qrot=True, stA=True, stpat=3, credit=4, out_mod="sc1", rawwo=True, afirst=True, drop=[])
        if opts: self.o.update(opts)
        self.p = Prog()
        self.phase = ""

    def tile_addr(self):
        if self.o.get("perm4"):
            return [ins(f"s_and_b32 s{sTile}, s{sTc}, 0x6000"), ins(f"s_lshl_b32 s{sTile}, s{sTile}, 2"),
                    ins(f"s_and_b32 s{sT0}, s{sTc}, 0x18000"), ins(f"s_lshr_b32 s{sT0}, s{sT0}, 2"), ins(f"s_or_b32 s{sTile}, s{sTile}, s{sT0}"),
                    ins(f"s_and_b32 s{sT0}, s{sTc}, 0x20000"), ins(f"s_or_b32 s{sTile}, s{sTile}, s{sT0}"),
                    ins(f"s_add_u32 s{sTile}, s{sTile}, s{sKVo}"), ins(f"s_add_u32 s{sTc}, s{sTc}, 8192")]
        if not self.o.get("rot"):
            return [ins(f"s_add_u32 s{sTile}, s{sKVo}, s{sTc}"), ins(f"s_add_u32 s{sTc}, s{sTc}, 8192")]
        return [ins(f"s_add_u32 s{sTile}, s{sTc}, s{sRot}"), ins(f"s_and_b32 s{sTile}, s{sTile}, 0x1ffff"),
                ins(f"s_and_b32 s{sT0}, s{sTc}, 0x20000"), ins(f"s_add_u32 s{sTile}, s{sTile}, s{sT0}"),
                ins(f"s_add_u32 s{sTile}, s{sTile}, s{sKVo}"), ins(f"s_add_u32 s{sTc}, s{sTc}, 8192")]
    def dma_kv(self, tag, m0a, m0b, pre=()):
        nt = self.o['nt']
        G = []
        g = list(pre) + self.tile_addr() + [ins(m0a)]
        for k in range(4):
            g.append(ins(f"buffer_load_dwordx4 v{DV+k}, s[{SKV}:{SKV+3}], s{sTile} offen offset:{1024*k} {nt} lds", tag=tag))
            G.append(g); g = []
        g = [ins(f"s_add_u32 s{sT0}, s{sTile}, 4096"), ins(m0b)]
        for k in range(4):
            g.append(ins(f"buffer_load_dwordx4 v{DV+k}, s[{SKV}:{SKV+3}], s{sT0} offen offset:{1024*k} {nt} lds", tag=tag))
            G.append(g); g = []
        return G
    def dma_kv_abs(self, tag, slot):
        o = (slot >> 1)*PHI + (slot & 1)*8192
        return self.dma_kv(tag, f"s_add_u32 m0, s{sKVl}, {o}", f"s_add_u32 m0, s{sKVl}, {o + 4096}")
    def kv_pieces(self, tile, a, b):
        G = self.dma_kv_abs(("kv", tile), tile % 4)
        out = G[a:b]
        if a not in (0, 4):
            slot = tile % 4
            o = (slot >> 1)*PHI + (slot & 1)*8192 + (4096 if a >= 4 else 0)
            out[0] = [ins(f"s_add_u32 m0, s{sKVl}, {o}")] + out[0]
        return out
    def dma_w(self, tag, base_reg, goff, m0txt, rot=None):
        G = []
        if rot is None: g = [ins(f"s_add_u32 s{sT1}, s{base_reg}, {goff}")]
        else:
            g = [ins(f"s_add_u32 s{sT1}, s{sWR}, {rot*262144}"), ins(f"s_and_b32 s{sT1}, s{sT1}, 0x3fffff"), ins(f"s_add_u32 s{sT1}, s{sT1}, s{base_reg}")]
            if goff: g.append(ins(f"s_add_u32 s{sT1}, s{sT1}, {goff}"))
        g.append(ins(m0txt))
        for n in range(4):
            g.append(ins(f"buffer_load_dwordx4 v{WD[n]}, s[{SW}:{SW+3}], s{sT1} offen offset:{1024*n} {self.o['w_mod']} lds", tag=tag))
            G.append(g); g = []
        return G
    def x_soff(self, base_reg, tt):
        if not self.o.get("qrot"): return [ins(f"s_add_u32 s{sT1}, s{base_reg}, {tt*128}")]
        return [ins(f"s_add_u32 s{sT1}, s{sXR}, {tt*128}"), ins(f"s_and_b32 s{sT1}, s{sT1}, 1023"), ins(f"s_add_u32 s{sT1}, s{sT1}, s{base_reg}")]
    def dma_x(self, tag, base_reg, tt, m0a, m0b):
        G = []
        m = self.o['x_mod']
        g = self.x_soff(base_reg, tt) + [ins(m0a)]
        for n in range(4):
            g.append(ins(f"buffer_load_dwordx4 v{XD[n]}, s[{SX}:{SX+3}], s{sT1} offen offset:{1024*n} {m} lds", tag=tag))
            G.append(g); g = []
        g = [ins(f"s_add_u32 s{sT1}, s{sT1}, {4*8192}"), ins(m0b)]
        for n in range(2):
            g.append(ins(f"buffer_load_dwordx4 v{XD[n]}, s[{SX}:{SX+3}], s{sT1} offen offset:{1024*n} {m} lds", tag=tag))
            G.append(g); g = []
        return G
    def w_tile(self, t, nxt=0):
        m0 = f"s_add_u32 m0, s{sWl}, {WSLOT[t % 3]}"
        if self.o.get("qrot"): return self.dma_w(("w", t), sWo, nxt*256, m0, rot=t)
        return self.dma_w(("w", t), sWo, nxt*256 + t*262144, m0)
    def x_tile(self, tt):
        sl = XB if tt % 2 == 0 else XA
        return self.dma_x(("x", tt), sXo, tt, f"s_add_u32 m0, s{sXl}, {sl}", f"s_add_u32 m0, s{sXl}, {sl + 4096}")
    def warmup(self, nxt):
        if not self.o["warm"]: return []
        G = []
        def ld(v, srd, soff, off, mod):
            i = ins(f"buffer_load_dwordx4 a[252:255], v{v}, s[{srd}:{srd+3}], s{soff} offen offset:{off} {mod}", tag=("warm",))
            i.kind = "dma"; i.wr = set(); i.rd.discard("m0")
            return i
        for k in range(2):
            g = [ins(f"s_add_u32 s{sT1}, s{sWarmW}, {nxt*256 + k*262144}")]
            for n in range(4):
                g.append(ld(WD[n], SW, sT1, 1024*n, self.o['w_mod'])); G.append(g); g = []
        if nxt == 0 or self.o.get("warmx1", True):
            for k in range(2):
                g = [ins(f"s_add_u32 s{sT1}, s{sWarmX}, {k*128}")]
                for n in range(4):
                    g.append(ld(XD[n], SX, sT1, 1024*n, self.o['x_mod'])); G.append(g); g = []
                g = [ins(f"s_add_u32 s{sT1}, s{sT1}, {4*8192}")]
                for n in range(2):
                    g.append(ld(XD[n], SX, sT1, 1024*n, self.o['x_mod'])); G.append(g); g = []
        return G
    def next_item_prefetch(self, nxt=1):
        return self.w_tile(0, nxt) + self.x_tile(0) + self.w_tile(1, nxt) + self.w_tile(2, nxt) + self.x_tile(1)
    def dma_wo(self):
        G = []
        for half in range(2):
            g = [ins(f"s_add_u32 s{sT1}, s{sWOo}, {half*4096}"), ins(f"s_add_u32 m0, s{sWoM}, {half*4096}")]
            for n in range(4):
                g.append(ins(f"buffer_load_dwordx4 v{VST}, s[{SWO}:{SWO+3}], s{sT1} offen offset:{1024*n} nt lds", tag=("wo",)))
                G.append(g); g = []
        return G
    def o_store(self, n, mod, prev, force=False):
        g = []
        if n % 4 == 0 or force: g.append(ins(f"s_add_u32 s{sT2}, s{sOo}, {((n & ~3)*1024 - (4*6144 if prev else 0)) & 0xffffffff}"))
        g.append(ins(f"buffer_store_dwordx4 {rng('a', OS(n), 4)}, v{VST}, s[{SO}:{SO+3}], s{sT2} offen offset:{(n % 4)*1024} {mod}", tag=("o",)))
        return g
    def rd_k(self, par, kt, ks):
        return ins(f"ds_read_b128 {rng('a', KF(par, kt, ks), 4)}, v{KA+ks} offset:{par*8192 + kt*4096}")
    def rd_v(self, par, dt, kt):
        return ins(f"ds_read_b64_tr_b16 {rng('a', VF(par, dt) + 2*kt, 2)}, v{VA+dt} offset:{par*8192 + kt*4096}")
    def rd_w(self, t, T, h2):
        ks, u = T >> 1, T & 1
        return ins(f"ds_read_b64_tr_b16 {rng('a', WF(T) + 2*h2, 2)}, v{WA+ks} offset:{(t % 3)*16384 + h2*2048 + 8*u}")
    def rd_x(self, t, qt):
        tt = t >> 1
        return ins(f"ds_read_b128 {rng('a', XF(t % 2, qt), 4)}, v{XAD + (t & 1)} offset:{(24576 if tt % 2 == 0 else 0) + qt*2048}")

    def prologue(self):
        p = self.p
        if self.o.get("entry"): p("s_memrealtime s[100:101]")
        p("s_cmp_ge_u32 s2, 256")
        p("s_cbranch_scc1 K2_END")
        p("s_load_dwordx16 s[48:63], s[0:1], 0")
        p("s_load_dwordx8 s[64:71], s[0:1], 64")
        p("s_load_dwordx2 s[72:73], s[0:1], 96")
        p(f"v_lshrrev_b32 v1, 6, v0")
        p(f"v_and_b32 v0, 63, v0")
        p(f"v_readfirstlane_b32 s{sW}, v1")
        p("s_and_b32 s86, s2, 7")
        p("s_lshr_b32 s87, s2, 3")
        p(f"s_lshr_b32 s{sP}, s86, 2")
        p("s_and_b32 s88, s86, 1"); p("s_lshl_b32 s88, s88, 3"); p("s_and_b32 s82, s87, 7")
        p(f"s_add_u32 s{sB}, s88, s82")
        p("s_lshr_b32 s88, s86, 1"); p("s_and_b32 s88, s88, 1"); p("s_lshl_b32 s88, s88, 2"); p("s_lshr_b32 s83, s87, 3")
        p(f"s_add_u32 s{sHG}, s88, s83")
        p(f"s_and_b32 s{sHP}, s{sW}, 1")
        p(f"s_lshr_b32 s{sRH}, s{sW}, 1")
        p("s_waitcnt lgkmcnt(0)")
        p(f"s_cmp_eq_u32 s{sP}, 0")
        p(f"s_cselect_b32 s{SX}, s48, s58"); p(f"s_cselect_b32 s{SX+1}, s49, s59")
        p(f"s_cselect_b32 s{SW}, s54, s64"); p(f"s_cselect_b32 s{SW+1}, s55, s65")
        p(f"s_cselect_b32 s{SWO}, s56, s66"); p(f"s_cselect_b32 s{SWO+1}, s57, s67")
        p(f"s_cselect_b32 s90, s50, s60"); p(f"s_cselect_b32 s91, s51, s61")
        p(f"s_cselect_b32 s92, s52, s62"); p(f"s_cselect_b32 s93, s53, s63")
        p(f"s_cmp_eq_u32 s{sRH}, 0")
        p(f"s_cselect_b32 s{SKV}, s90, s92"); p(f"s_cselect_b32 s{SKV+1}, s91, s93")
        p(f"s_cselect_b32 s94, 64, 128"); p(f"s_cselect_b32 s95, 128, 0"); p("s_mov_b32 s96, 128"); p(f"s_cselect_b32 s96, 192, s96")
        p(f"s_cselect_b32 s97, 0, 1")
        p(f"s_cselect_b32 s{sKVl}, 0, 32768")
        for r, n in ((SX, X_BYTES), (SW, W_BYTES), (SWO, W_BYTES), (SKV, KV_BYTES)):
            p(f"s_mov_b32 s{r+2}, {n}"); p(f"s_mov_b32 s{r+3}, 0x00020000")
        p(f"s_mov_b32 s{SO}, s72"); p(f"s_mov_b32 s{SO+1}, s73"); p(f"s_mov_b32 s{SO+2}, 0"); p(f"s_mov_b32 s{SO+3}, 0x00020000")
        p(f"s_add_u32 s{SWT}, s72, {WOT_OFF}"); p(f"s_addc_u32 s{SWT+1}, s73, 0"); p(f"s_mov_b32 s{SWT+2}, {WOT_BYTES}"); p(f"s_mov_b32 s{SWT+3}, 0x00020000")
        p(f"s_lshl_b32 s88, s{sB}, 5"); p(f"s_lshl_b32 s89, s{sHG}, 2"); p("s_add_u32 s88, s88, s89"); p(f"s_lshl_b32 s89, s{sHP}, 1"); p("s_add_u32 s88, s88, s89")
        p(f"s_lshl_b32 s{sKVo}, s88, 17")
        p(f"s_lshl_b32 s89, s{sHP}, 14"); p(f"s_add_u32 s{sKVl}, s{sKVl}, s89")
        p(f"s_lshl_b32 s88, s{sW}, 16"); p(f"s_lshl_b32 s89, s{sHG}, 10"); p(f"s_add_u32 s{sWo}, s88, s89")
        p(f"s_lshl_b32 s{sWl}, s{sW}, 12")
        p(f"s_lshl_b32 s88, s82, 19"); p(f"s_add_u32 s{sWarmW}, s{sWo}, s88")
        p(f"s_mul_i32 s88, s{sB}, 196608"); p(f"s_mul_i32 s89, s{sW}, 49152"); p(f"s_add_u32 s{sXo}, s88, s89")
        p(f"s_mul_i32 s{sXl}, s{sW}, 6144")
        p(f"s_lshl_b32 s88, s83, 8"); p(f"s_add_u32 s{sWarmX}, s{sXo}, s88")
        if self.o.get("qrot"):
            assert not self.o["warm"]
            p("s_lshl_b32 s88, s83, 1"); p("s_add_u32 s88, s88, s82"); p("s_and_b32 s88, s88, 7")
            p(f"s_lshl_b32 s{sWR}, s88, 19"); p(f"s_lshl_b32 s{sXR}, s88, 7")
        p(f"s_mov_b32 s{sDrop}, {DROP}")
        p("s_mul_i32 s88, s2, 5"); p("s_lshr_b32 s89, s2, 4"); p("s_add_u32 s88, s88, s89"); p("s_and_b32 s88, s88, 15"); p(f"s_lshl_b32 s{sRot}, s88, 13")
        p(f"s_lshl_b32 s88, s{sP}, 4"); p(f"s_add_u32 s88, s88, s{sB}"); p("s_lshl_b32 s88, s88, 1"); p(f"s_add_u32 s88, s88, s{sRH}")
        p("s_lshl_b32 s88, s88, 7"); p(f"s_lshl_b32 s89, s{sHG}, 4"); p("s_add_u32 s88, s88, s89"); p(f"s_lshl_b32 s89, s{sHP}, 3"); p("s_add_u32 s88, s88, s89")
        p(f"s_mul_i32 s{sOo}, s88, 6144")
        p("s_and_b32 s88, s86, 3"); p("s_lshl_b32 s88, s88, 5"); p("s_add_u32 s88, s88, s87")
        p(f"s_lshl_b32 s89, s88, 15"); p(f"s_lshl_b32 s98, s{sW}, 13"); p(f"s_add_u32 s{sWOo}, s89, s98")
        p(f"s_lshl_b32 s89, s{sP}, 2"); p(f"s_add_u32 s89, s89, s{sW}"); p("s_lshl_b32 s89, s89, 7"); p("s_add_u32 s89, s89, s88"); p(f"s_lshl_b32 s{sWTo}, s89, 13")
        p(f"s_mov_b32 s{sC}, {f32(1.4426950408889634*128**-0.5)}")
        p(f"s_mov_b32 s{sItem}, 0")
        self.late_consts = True
        i_, g_, r_, c_ = "v14", "v8", "v9", "v10"
        p(f"v_and_b32 {i_}, 15, v0"); p(f"v_lshrrev_b32 {g_}, 4, v0"); p(f"v_lshrrev_b32 {r_}, 2, {i_}"); p(f"v_and_b32 {c_}, 3, {i_}")
        p(f"v_lshlrev_b32 v{VST}, 4, v0")
        p("v_lshrrev_b32 v11, 5, v0"); p("v_and_b32 v12, 15, v0"); p("v_lshlrev_b32 v13, 2, v11"); p("v_xor_b32 v12, v12, v13"); p("v_lshlrev_b32 v12, 4, v12")
        p("v_lshl_add_u32 v12, v11, 13, v12"); p("v_bfe_u32 v13, v0, 4, 1"); p(f"v_lshl_add_u32 v{WD[0]}, v13, 9, v12")
        p(f"v_xor_b32 v{WD[1]}, 128, v{WD[0]}"); p(f"v_add_u32 v{WD[2]}, {2*15360}, v{WD[0]}"); p(f"v_add_u32 v{WD[3]}, {3*15360}, v{WD[1]}"); p(f"v_add_u32 v{WD[1]}, 15360, v{WD[1]}")
        p("v_lshrrev_b32 v11, 3, v0"); p("v_and_b32 v12, 7, v0"); p(f"v_xor_b32 v12, v12, {g_}"); p("v_lshlrev_b32 v12, 4, v12")
        p(f"v_lshl_add_u32 v{XD[0]}, v11, 10, v12"); p(f"v_xor_b32 v{XD[1]}, 64, v{XD[0]}")
        p(f"v_add_u32 v{XD[2]}, {2*7168}, v{XD[0]}"); p(f"v_add_u32 v{XD[3]}, {3*7168}, v{XD[1]}"); p(f"v_add_u32 v{XD[1]}, 7168, v{XD[1]}")
        p(f"v_lshlrev_b32 v11, s97, {g_}"); p(f"v_xor_b32 v11, v11, {i_}"); p("v_lshlrev_b32 v11, 4, v11"); p(f"v_lshl_add_u32 v{DV}, {g_}, 8, v11")
        for k in range(1, 4): p(f"v_xor_b32 v{DV+k}, s{93+k}, v{DV}")
        self.lane = (i_, g_, r_, c_)
    def prologue2(self):
        p = self.p
        i_, g_, r_, c_ = self.lane
        p(f"s_lshl_b32 s88, s{sHP}, 14")
        p(f"v_xor_b32 v11, {g_}, {i_}"); p("v_lshlrev_b32 v11, 4, v11"); p(f"v_lshl_add_u32 v11, {i_}, 8, v11"); p(f"v_add_u32 v{KA}, s88, v11")
        for ks in range(1, 4): p(f"v_xor_b32 v{KA+ks}, {64*ks}, v{KA}")
        p(f"v_and_b32 v11, 1, {g_}"); p("v_lshlrev_b32 v11, 2, v11"); p(f"v_add_u32 v11, v11, {r_}"); p("v_lshlrev_b32 v11, 1, v11")
        p(f"v_lshrrev_b32 v12, 1, {c_}"); p("v_xor_b32 v11, v11, v12"); p("v_lshlrev_b32 v11, 4, v11")
        p(f"v_and_b32 v12, 1, {c_}"); p("v_lshl_add_u32 v11, v12, 3, v11")
        p(f"v_lshl_add_u32 v12, {g_}, 2, {r_}"); p("v_lshl_add_u32 v11, v12, 8, v11")
        p("s_add_u32 s89, s88, 32768"); p(f"v_add_u32 v{VA}, s89, v11")
        for dt in range(1, 8): p(f"v_xor_b32 v{VA+dt}, {32*dt}, v{VA}")
        p(f"s_lshl_b32 s88, s{sHP}, 4")
        p(f"v_add_u32 v11, s88, {c_}"); p(f"v_lshlrev_b32 v12, 2, {r_}"); p("v_xor_b32 v11, v11, v12"); p("v_lshlrev_b32 v11, 4, v11")
        p(f"v_lshl_add_u32 v12, {g_}, 3, {r_}"); p("v_lshl_add_u32 v11, v12, 9, v11"); p(f"v_add_u32 v{WA}, {WSLOT[0]}, v11")
        for ks in range(1, 4): p(f"v_xor_b32 v{WA+ks}, {64*ks}, v{WA}")
        p(f"s_mul_i32 s88, s{sRH}, {96*128}"); p(f"s_add_u32 s88, s88, {XA}")
        p(f"v_lshrrev_b32 v11, 1, {i_}"); p(f"v_xor_b32 v11, v11, {g_}"); p("v_lshlrev_b32 v11, 4, v11"); p(f"v_lshl_add_u32 v11, {i_}, 7, v11"); p(f"v_add_u32 v{XAD}, s88, v11")
        p(f"v_xor_b32 v{XAD+1}, 64, v{XAD}")
        p(f"s_mov_b32 s{sC2}, s{sC}"); p(f"s_mov_b32 s{sC2+1}, s{sC}")
        if self.o.get("fuse"):
            p(f"s_mov_b32 s{SFL}, s70"); p(f"s_mov_b32 s{SFL+1}, s71"); p(f"s_mov_b32 s{SFL+2}, 256"); p(f"s_mov_b32 s{SFL+3}, 0x00020000")
            sh = 16 if self.o.get("dbg") is not None else 0
            p(f"s_lshl_b32 s{sC1}, s{sP}, 2"); p(f"s_add_u32 s{sC1}, s{sC1}, {4*sh}")
            p(f"s_lshl_b32 s88, s{sP}, 4"); p(f"s_add_u32 s88, s88, s{sB}"); p(f"s_add_u32 s88, s88, {2+sh}"); p(f"s_lshl_b32 s{sC2o}, s88, 2")
            if self.o.get("rawwo"): p(f"s_mov_b32 s{sC1}, s{sC2o}")
        if self.o["msum"]:
            p("v_mov_b32 v11, 0x3f803f80")
            for r in range(4): p(f"v_accvgpr_write_b32 a{ONES+r}, v11")

    def stamp(self, fine=False):
        if not self.o["timing"]: return
        if fine and not self.o.get("fine"): return
        p = self.p
        p(f"s_memrealtime s[88:89]")
        p(f"s_memtime s[90:91]")
        p("s_waitcnt lgkmcnt(0)")
        p("s_mov_b32 m0, s99"); p("s_nop 1")
        p(f"v_writelane_b32 v5, s88, m0")
        p(f"v_writelane_b32 v1, s90, m0")
        p("s_add_u32 s99, s99, 1")
    def stamp_flush(self):
        if not self.o["timing"]: return
        p = self.p
        if self.o.get("dbg") is not None:
            p(f"s_cmp_eq_u32 s2, {self.o['dbg']}"); p("s_cselect_b32 s90, 64, 0"); p(f"s_cmp_eq_u32 s{sW}, 0"); p("s_cselect_b32 s90, s90, 0")
            p("s_mov_b32 s88, s70"); p("s_mov_b32 s89, s71"); p("s_mov_b32 s91, 0x00020000")
            src = "v1" if self.o.get("dbgcyc") else "v5"
            p("v_lshlrev_b32 v6, 2, v0")
            p(f"buffer_store_dword {src}, v6, s[88:91], 0 offen")
            if not self.o.get("fuse"):
                p("s_add_u32 s88, s88, 512"); p("s_addc_u32 s89, s89, 0"); p("s_cmp_lg_u32 s90, 0"); p("s_cselect_b32 s90, 52, 0")
                p(f"buffer_store_dword {src}, v6, s[88:91], 0 offen")
            return
        p(f"s_add_u32 s88, s72, {64<<20}"); p("s_addc_u32 s89, s73, 0"); p(f"s_mov_b32 s90, {1<<20}"); p("s_mov_b32 s91, 0x00020000")
        p(f"s_lshl_b32 s92, s2, 2"); p(f"s_add_u32 s92, s92, s{sW}"); p("s_lshl_b32 s92, s92, 9")
        p("v_lshlrev_b32 v6, 2, v0")
        p("buffer_store_dword v5, v6, s[88:91], s92 offen")
        p("buffer_store_dword v1, v6, s[88:91], s92 offen offset:256")

    def emit_groups(self, groups):
        for g in groups:
            for x in g: self.p.add(x)
    def keep(self, x):
        drop = self.o["drop"]; ph = self.phase
        if x.kind == "dma" and ph + "_dma" in drop: return False
        if x.kind == "ds_read" and ph + "_lds" in drop: return False
        if x.kind == "barrier" and ph + "_bar" in drop: return False
        if x.kind == "trans" and ph + "_exp" in drop: return False
        if x.kind == "valu" and x.txt.startswith("v_add_f32") and ph + "_add" in drop: return False
        if x.kind == "valu" and x.txt.startswith("v_cvt") and ph + "_cvt" in drop: return False
        if x.kind == "vstore" and ph + "_st" in drop: return False
        return True
    def run(self, mf, chains, pre=()):
        ch = [[([x for x in g if self.keep(x)], lo, hi) for g, lo, hi in c] for c in chains]
        ch = [[it for it in c if it[0]] for c in ch]
        if self.phase + "_mfma" in self.o["drop"]: mf = [ins("s_nop 0") for _ in mf]
        self.p.extend(gapfill(mf, ch, pre=[x for x in pre if self.keep(x)]))

    def spaced(self, G, lo, hi):
        n = len(G)
        out = []
        for k, g in enumerate(G):
            pos = lo + (k*(hi - lo + 1))//n
            out.append((g, pos, pos + 1))
        return out
    def qstep(self, t, stores=(), sig=False):
        p = self.p
        self.phase = "qp"
        mf = []
        for T in range(8):
            for qt in range(6):
                mf.append(mfma(acc(T, qt), "v", WF(T), "a", XF(t % 2, qt), "a", None if t == 0 else acc(T, qt)))
        need = []
        for qt in range(6): need += R("a", XF(t % 2, qt), 4)
        for T in range(6): need += R("a", WF(T), 4)
        pre = [wait_regs(need)]
        chains = []
        BG = self.o.get("bg", 11)
        slow = []
        if t < 15:
            bar = [wait_tag(("w", t+1))]
            if t % 2 == 1: bar.append(wait_tag(("x", (t+1) >> 1)))
            chains.append([(bar, BG-1, BG-1), ([ins("s_waitcnt lgkmcnt(0)"), ins("s_barrier")], BG, BG)])
            cw = []
            for T in range(8):
                lo = max(BG+1, 6*T + 5)
                cw += [([self.rd_w(t+1, T, 0)], lo, min(47, lo + 8)), ([self.rd_w(t+1, T, 1)], lo, min(47, lo + 9))]
            chains.append(cw)
            chains.append([([self.rd_x(t+1, qt)], BG+1, 40) for qt in range(6)])
            GW = self.w_tile(t+3) if t + 3 <= 15 else []
            early = []; GX = []
            if t % 2 == 1 and (t >> 1) + 2 <= 7: GX = self.x_tile((t >> 1) + 2)[:3]
            if t % 2 == 0 and t >= 2 and ((t-1) >> 1) + 2 <= 7:
                tt = ((t-1) >> 1) + 2; sl = XB if tt % 2 == 0 else XA
                early = self.x_tile(tt)[3:]
                early[0] = self.x_soff(sXo, tt) + [ins(f"s_add_u32 m0, s{sXl}, {sl}")] + early[0]
            if t == 0:
                early = self.w_tile(2) + self.x_tile(1)
                if self.o.get("w1late"): early = self.w_tile(1) + early
            late = GW + GX
            plan = self.o.get("kvplan", {10: (0, 0, 4), 11: (0, 4, 8), 12: (1, 0, 4), 13: (1, 4, 8)})
            if t in plan or str(t) in plan:
                slow = self.kv_pieces(*(plan.get(t) or plan.get(str(t))))
            c = []
            if t == 0:
                c = self.spaced(early + late, 0, 47); early = []; late = []
            if early:
                span = BG - 1
                for k, g in enumerate(early): c.append((g, int(k*span/len(early)), int(k*span/len(early)) + 1))
            hi = 47 if not (slow or stores) else (39 if len(slow) <= 2 else 32)
            if late: c += self.spaced(late, BG+2, hi)
            if slow: c += self.spaced(slow, (41 if len(slow) <= 2 else 34) if late else BG+2, 47)
            if c: chains.append(c)
        else:
            chains.append([([wait_tag(("kv", 0))], BG-1, BG-1), ([ins("s_waitcnt lgkmcnt(0)"), ins("s_barrier")], BG, BG)])
            G = self.kv_pieces(2, 0, 4 if self.o.get("look", 3) == 3 else 8)
            if self.o.get("kv15"): G = self.kv_pieces(*self.o["kv15"]) + G
            chains.append(self.spaced(G, BG+1, 47))
        if self.o.get("womid"):
            if t == 2:
                W = self.wo_prep_groups(stage=12)
                blk = [ins(f"s_cmp_eq_u32 s{sItem}, 1"), ins("s_cbranch_scc1 L_nowo")] + [x for g in W for x in g]
                for x in blk: x.meta["alt"] = True
                blk.append(I("L_nowo:", "label"))
                chains.append([(blk, BG+1, BG+1)])
            if t == 4: chains.append([([ins(f"s_mov_b32 s{SO+2}, s{sSz1}")], 0, 2)])
            if t == 7: chains.append([([ins(f"s_mov_b32 s{SO+2}, s{sSz2}")], 0, 2)])
        if sig:
            chains.append([(self.signal(f"v_mov_b32 v{VPOLL+2}, s{sC1}"), BG+1, BG+3)])
        if stores:
            lo = 26 if t == 12 else 0
            if self.o.get("stA"): lo = {2: 41, 3: 36, 4: 30}[len(stores)]
            chains.append(self.spaced([self.o_store(n, self.o["store_mod"], True, force=bool(self.o.get("stA")) and n == stores[0]) for n in stores], lo, 47))
        self.run(mf, chains, pre)

    def qproj_a(self):
        p = self.p
        p(f"s_lshl_b32 s{sTc}, s{sItem}, 17")
        p.wait_tag(("w", 0)); p.wait_tag(("x", 0))
        p("s_barrier")
        self.stamp()
        for T in range(8):
            p.add(self.rd_w(0, T, 0)); p.add(self.rd_w(0, T, 1))
        for qt in range(6): p.add(self.rd_x(0, qt))
        for t in range(12):
            pat = self.o.get("stpat", 2)
            if pat == 2: ss = [2*t, 2*t+1]
            elif pat == 3: ss = [3*t, 3*t+1, 3*t+2] if t < 8 else []
            elif pat == 4: ss = [4*(t//2) + k for k in range(4)] if t % 2 == 0 else []
            elif pat == 5: ss = [4*(t//2) + k for k in range(4)] if t % 2 == 1 else []
            self.qstep(t, ss if self.o.get("stA") else ())
            if t in (3, 7, 11): self.stamp(True)
    def qproj_b(self, last):
        p = self.p
        st = (lambda a, b: list(range(a, b))) if (last and not self.o.get("stA")) else (lambda a, b: [])
        self.qstep(12, st(0, 3)); self.qstep(13, st(3, 9)); self.qstep(14, st(9, 15))
        sig_late = self.o.get("siglate", False)
        self.qstep(15, st(15, 18), sig=bool(last and self.o.get("fuse") and not sig_late))
        self.stamp()
        for kt in range(2):
            for ks in range(4): p.add(self.rd_k(0, kt, ks))
        tmp = S(0, 0)
        rest = self.kv_pieces(2, 4, 8) if self.o.get("look", 3) == 3 else []
        late = st(18, 24)
        for qt in range(6):
            for ks in range(4):
                n = qt*4 + ks
                a0, a1 = acc(2*ks, qt), acc(2*ks+1, qt)
                if self.o.get("pk", True):
                    for a in (a0, a0+2, a1, a1+2): p(f"v_pk_mul_f32 v[{a}:{a+1}], v[{a}:{a+1}], s[{sC2}:{sC2+1}]")
                else:
                    for r in range(4): p(f"v_mul_f32 v{a0+r}, s{sC}, v{a0+r}")
                    for r in range(4): p(f"v_mul_f32 v{a1+r}, s{sC}, v{a1+r}")
                t0 = tmp + (n % 4)*4
                p(f"v_cvt_pk_bf16_f32 v{t0}, v{a0}, v{a0+1}")
                p(f"v_cvt_pk_bf16_f32 v{t0+1}, v{a0+2}, v{a0+3}")
                p(f"v_cvt_pk_bf16_f32 v{t0+2}, v{a1}, v{a1+1}")
                p(f"v_cvt_pk_bf16_f32 v{t0+3}, v{a1+2}, v{a1+3}")
                if late and n % 2 == 0 and n < 18:
                    m = late.pop(0)
                    for x in self.o_store(m, self.o["store_mod"], True, force=True): p.add(x)
                if self.o.get("dummy_mfma"):
                    for _ in range(self.o["dummy_mfma"]): p.add(mfma(252, "a", KF(0, 0, 0), "a", KF(0, 1, 0), "a", None))
                for r in range(4): p(f"v_accvgpr_write_b32 a{Q(qt,ks)+r}, v{t0+r}")
                if rest and n % 4 == 3 and n >= 7:
                    for x in rest.pop(0): p.add(x)
            if qt < 4:
                for dt in (2*qt, 2*qt+1):
                    p.add(self.rd_v(0, dt, 0)); p.add(self.rd_v(0, dt, 1))
        assert not rest and not late
        if last and self.o.get("fuse") and sig_late:
            for x in self.signal(f"v_mov_b32 v{VPOLL+2}, s{sC1}"): p.add(x)

    def period(self, n, dma=(), pre=(), early=(), extra=()):
        p = self.p
        self.phase = "at"
        msum = self.o["msum"]
        j, pp = divmod(n, 6)
        qk = []; pv = []
        if n < 96:
            sb = n % 2
            for kt in range(2):
                for ks in range(4):
                    qk.append(mfma(S(sb, kt), "v", KF(j % 2, kt, ks), "a", Q(pp, ks), "a", None if ks == 0 else S(sb, kt)))
        if n >= 2:
            jj, qt = divmod(n-2, 6)
            pb = (n-2) % 2
            for dt in range(8):
                pv.append(mfma(acc(dt, qt), "v", VF(jj % 2, dt), "a", P(pb), "v", None if jj == 0 else acc(dt, qt)))
        mf = []
        for k in range(8):
            if qk: mf.append(qk[k])
            if pv: mf.append(pv[k])
        if n >= 2 and msum:
            mf.append(mfma(LA(qt), "a", ONES, "a", P(pb), "v", None if jj == 0 else LA(qt)))
        nm = len(mf)
        sc = nm/17.0 if msum else nm/16.0
        def G(x): return min(nm-1, int(x*sc))
        chains = []
        if 1 <= n <= 96:
            jj2, qt2 = divmod(n-1, 6)
            sb = (n-1) % 2; pb2 = (n-1) % 2
            e = [S(sb, 0)+r for r in range(4)] + [S(sb, 1)+r for r in range(4)]
            chains.append([([ins(f"v_exp_f32 v{e[k]}, v{e[k]}")], G(2*k), G(2*k)) for k in range(8)])
            cv = []
            for k in range(8):
                if not msum: cv.append(([ins(f"v_add_f32 v{LS+qt2}, v{LS+qt2}, v{e[k]}")], G(2*k+1), G(2*k+1)))
                if k % 2 == 1:
                    cv.append(([ins(f"v_cvt_pk_bf16_f32 v{P(pb2)+k//2}, v{e[k-1]}, v{e[k]}")], G(2*k+1), G(2*k+1)))
            chains.append(cv)
        if n >= 2:
            jb, q = divmod(n-2, 6)
            if jb + 1 <= 15:
                par = (jb+1) % 2
                rds = []
                if q in (0, 1): rds = [self.rd_k(par, q, ks) for ks in range(4)]
                else:
                    for dt in range((q-2)*2, (q-2)*2+2): rds += [self.rd_v(par, dt, 0), self.rd_v(par, dt, 1)]
                gp = [1, 5, 9, 13] if q != 5 else [1, 5, 9, 10]
                chains.append([([x], G(gp[k]), G(gp[k])) for k, x in enumerate(rds)])
        if dma:
            nd = sum(1 for x in dma if x.kind == "dma")
            slots = {0: [], 1: [16], 2: [11, 16], 4: [3, 7, 11, 16], 8: [2, 4, 6, 8, 10, 12, 14, 16]}.get(nd) or [int(3 + (16-3)*k/(nd-1)) for k in range(nd)]
            ch = []; seen = 0
            for x in dma:
                if x.kind == "dma":
                    g = G(slots[seen]); seen += 1
                    grp = [x] if x.meta.get("credit") is None else [ins(f"s_waitcnt vmcnt({x.meta['credit']})"), x]
                    ch.append((grp, g, g))
                else:
                    ch.append(([x], 0, nm-1))
            for k in range(len(ch)-2, -1, -1):
                if ch[k][0][-1].kind != "dma": ch[k] = (ch[k][0], 0, max(0, ch[k+1][2] - (1 if ch[k+1][0][-1].kind == "dma" else 0)))
            chains.append(ch)
        if early: chains.append([([x], 0, nm-1) for x in early])
        if extra: chains.append([(g, (k*nm)//len(extra), nm-1) for k, g in enumerate(extra)])
        self.run(mf, chains, pre)

    def body(self, j, dmaG, tog=(), nper=6, extra=(), extra2=()):
        bar = []
        if j + 1 <= 15: bar.append(wait_tag(("kv", j+1)))
        if extra: bar.append(wait_tag(("wo",)))
        bar += [ins("s_waitcnt lgkmcnt(0)"), ins("s_barrier")]
        if self.o.get("baracct"):
            b0 = [ins("s_memtime s[92:93]"), ins("s_waitcnt lgkmcnt(0)")]
            b1 = [ins("s_memtime s[94:95]"), ins("s_waitcnt lgkmcnt(0)")]
            b2 = [ins("s_memtime s[96:97]"), ins("s_waitcnt lgkmcnt(0)"), ins("s_sub_u32 s98, s94, s92"), ins("s_add_u32 s100, s100, s98"),
                  ins("s_sub_u32 s98, s96, s94"), ins("s_add_u32 s101, s101, s98")]
            bar = b0 + bar[:1] + b1 + bar[1:] + b2
        tk = [x for x in tog if any(f"v{KA+z}," in x.txt for z in range(4))]
        tv = [x for x in tog if x not in tk]
        flat = [x for g in dmaG for x in g]
        cr = self.o.get("credit")
        if cr is not None and j <= 12:
            k = 0
            for x in flat:
                if x.kind == "dma":
                    x.meta["credit"] = cr[k % len(cr)] if isinstance(cr, list) else cr
                    k += 1
        nd = sum(1 for x in flat if x.kind == "dma")
        if nd == 8: cnt = self.o.get("dmacnt", [1, 1, 2, 1, 1, 2])
        else: cnt = [nd//6 + (1 if q < nd % 6 else 0) for q in range(6)]
        per = [[] for _ in range(6)]
        q = 0; seen = 0
        for x in flat:
            while q < 5 and seen >= cnt[q]: q += 1; seen = 0
            per[q].append(x)
            if x.kind == "dma": seen += 1
        for q in range(6):
            e = tv[:4] if q == 0 else (tv[4:] if q == 1 else [])
            ex = []
            if extra or extra2:
                xs = list(extra) + list(extra2)
                n = len(xs); ex = xs[q*n//6:(q+1)*n//6]
            self.period(6*j + 2 + q, dma=per[q], pre=(bar + tk) if q == 0 else (), early=e, extra=ex)

    def tog(self):
        return [ins(f"v_xor_b32 v{KA+x}, {PHI}, v{KA+x}") for x in range(4)] + [ins(f"v_xor_b32 v{VA+x}, {PHI}, v{VA+x}") for x in range(8)]
    def attention_shared(self):
        p = self.p
        look = self.o.get("look", 3)
        if look == 4:
            t3 = self.kv_pieces(3, 0, 8)
            self.period(0, dma=[x for g in t3[:4] for x in g]); self.period(1, dma=[x for g in t3[4:] for x in g])
            self.body(0, self.dma_kv_abs(("kv", 4), 0))
        else:
            self.period(0); self.period(1)
            self.body(0, self.dma_kv_abs(("kv", 3), 3))
        p(f"s_mov_b32 s{sM}, s{sKVl}")
        split = self.o.get("atsplit")
        runs = [("at", 0, 5, self.o.get("credit"))] if not split else [("at", 0, split[0], split[1]), ("au", split[0], 5, split[2])]
        saved = self.o.get("credit")
        for name, k0, k1, cr in runs:
            self.o["credit"] = cr
            p(f"s_mov_b32 s{sCnt}, {k1 - k0}")
            for k in range(k0, k1):
                j = 1 + 2*k
                p.raw(f"@@LB {name} {k - k0}")
                self.stamp(True)
                if look == 4:
                    g1 = self.dma_kv(("kv", j+4), f"s_add_u32 m0, s{sM}, 8192", f"s_add_u32 m0, s{sM}, 12288")
                    self.body(j, g1, tog=self.tog())
                    g2 = self.dma_kv(("kv", j+5), f"s_add_u32 m0, s{sM}, 0", f"s_add_u32 m0, s{sM}, 4096")
                    self.body(j+1, [[ins(f"s_xor_b32 s{sM}, s{sM}, {PHI}")]] + g2)
                else:
                    g1 = self.dma_kv(("kv", j+3), f"s_add_u32 m0, s{sM}, 0", f"s_add_u32 m0, s{sM}, 4096")
                    self.body(j, g1, tog=self.tog())
                    g2 = self.dma_kv(("kv", j+4), f"s_add_u32 m0, s{sM}, 8192", f"s_add_u32 m0, s{sM}, 12288")
                    g2[-1] = g2[-1] + [ins(f"s_xor_b32 s{sM}, s{sM}, {PHI}")]
                    self.body(j+1, g2)
                p(f"s_sub_u32 s{sCnt}, s{sCnt}, 1"); p(f"s_cmp_lg_u32 s{sCnt}, 0"); p(f"s_cbranch_scc1 L_{name}")
                p.raw(f"@@LE {name} {k - k0}")
        self.o["credit"] = saved if not split else split[2]
        if look == 4:
            self.body(11, self.dma_kv_abs(("kv", 15), 3), tog=self.tog())
            self.body(12, [])
        else:
            self.body(11, self.dma_kv_abs(("kv", 14), 2), tog=self.tog())
            self.body(12, self.dma_kv_abs(("kv", 15), 3))
        self.o["credit"] = saved
    def attention_tail(self, last):
        fuse = self.o.get("fuse")
        prep_here = ((not last) if fuse else last) and not self.o.get("woearly") and not self.o.get("womid") and not self.o.get("rawwo")
        self.stamp(True)
        if prep_here:
            W = self.wo_prep_groups(); h = 9 + 4*3
            self.body(13, self.dma_wo_last(), tog=self.tog())
            self.body(14, [], extra=W[:h])
            self.body(15, (self.w_tile(0, 1) + self.x_tile(0) + ([] if self.o.get("w1late") else self.w_tile(1, 1))) if not last else [], tog=self.tog(), extra2=W[h:])
        elif not last:
            self.body(13, self.warm_wo() if self.o.get("rawwo") else [], tog=self.tog())
            self.body(14, [])
            self.body(15, self.w_tile(0, 1) + self.x_tile(0) + ([] if self.o.get("w1late") else self.w_tile(1, 1)), tog=self.tog())
        else:
            self.body(13, [], tog=self.tog(), extra2=[[x] for x in self.k3_setup()])
            self.body(14, [], extra2=[self.poll_issue(f"v_mov_b32 VDST, s{sC1}")])
            self.body(15, [], tog=self.tog())
            self.poll_check(8 if self.o.get('rawwo') else 128)
    def wo_prep_groups(self, stage=False):
        setup = [ins("v_and_b32 v33, 15, v0"), ins("v_lshrrev_b32 v34, 4, v0"), ins("v_lshrrev_b32 v35, 2, v33"), ins("v_and_b32 v33, 3, v33"),
                 ins("v_lshl_add_u32 v32, v34, 2, v35"), ins("v_lshlrev_b32 v32, 10, v32"), ins("v_lshl_add_u32 v32, v33, 4, v32"),
                 ins(f"s_lshl_b32 s88, s{sW}, 8"), ins("v_add_u32 v32, s88, v32")]
        G = [[x] for x in setup]
        mod = self.o['last_store_mod']
        for nt in range(8):
            u, par = nt >> 1, nt & 1
            d = 252 if not stage else OS(nt + (0 if stage is True else stage))
            G.append([ins(f"ds_read_b64_tr_b16 a[{d}:{d+1}], v32 offset:{64*u + 8*par}")])
            G.append([ins(f"ds_read_b64_tr_b16 a[{d+2}:{d+3}], v32 offset:{16384 + 64*u + 8*par}")])
            if stage: continue
            g = []
            if nt % 4 == 0: g.append(ins(f"s_add_u32 s{sT2}, s{sWTo}, {nt*1024}"))
            g.append(ins(f"buffer_store_dwordx4 a[{d}:{d+3}], v{VST}, s[{SWT}:{SWT+3}], s{sT2} offen offset:{(nt % 4)*1024} {mod}"))
            G.append(g)
        return G
    def warm_wo(self):
        G = []
        for half in range(2):
            g = [ins(f"s_add_u32 s{sT1}, s{sWOo}, {half*4096}")]
            for n in range(4):
                i = ins(f"buffer_load_dwordx4 a[252:255], v{VST}, s[{SWO}:{SWO+3}], s{sT1} offen offset:{1024*n}", tag=("warm",))
                i.kind = "dma"; i.wr = set(); i.rd.discard("m0")
                g.append(i); G.append(g); g = []
        return G
    def dma_wo_last(self):
        G = []
        for half in range(2):
            g = [ins(f"s_add_u32 s{sT1}, s{sWOo}, {half*4096}"), ins(f"s_lshl_b32 s{sWoM}, s{sW}, 13"), ins(f"s_add_u32 m0, s{sWoM}, {half*4096}")]
            for n in range(4):
                g.append(ins(f"buffer_load_dwordx4 v{VST}, s[{SWO}:{SWO+3}], s{sT1} offen offset:{1024*n} nt lds", tag=("wo",)))
                G.append(g); g = []
        return G

    FLAG = 131072
    def softmax_check(self, item):
        p = self.p
        t = S(0, 0)
        for qt in range(6): p(f"v_accvgpr_read_b32 v{t+qt}, a{LA(qt)}")
        p(f"v_max3_f32 v{t+6}, v{t}, v{t+1}, v{t+2}"); p(f"v_min3_f32 v{t+7}, v{t}, v{t+1}, v{t+2}")
        p(f"v_max3_f32 v{t+6}, v{t+6}, v{t+3}, v{t+4}"); p(f"v_min3_f32 v{t+7}, v{t+7}, v{t+3}, v{t+4}")
        p(f"v_max_f32 v{t+6}, v{t+6}, v{t+5}"); p(f"v_min_f32 v{t+7}, v{t+7}, v{t+5}")
        p(f"v_cmp_nge_f32 vcc, {f32(2.0**24)}, v{t+6}")
        p("s_mov_b64 s[88:89], vcc")
        p(f"v_cmp_nle_f32 vcc, {f32(2.0**-24)}, v{t+7}")
        p("s_or_b64 s[88:89], s[88:89], vcc")
        p("s_cmp_lg_u64 s[88:89], 0"); p("s_cselect_b32 s88, 1, 0")
        p(f"v_mov_b32 v{t}, s88"); p(f"s_lshl_b32 s89, s{sW}, 2"); p(f"s_add_u32 s89, s89, {self.FLAG}"); p(f"v_mov_b32 v{t+1}, s89")
        p(f"ds_write_b32 v{t+1}, v{t}")
        p("s_waitcnt lgkmcnt(0)"); p("s_barrier")
        p(f"v_mov_b32 v{t+1}, {self.FLAG}")
        p(f"ds_read_b128 v[{t+4}:{t+7}], v{t+1}")
        p(f"v_or_b32 v{t+4}, v{t+4}, v{t+5}"); p(f"v_or_b32 v{t+6}, v{t+6}, v{t+7}"); p(f"v_or_b32 v{t+4}, v{t+4}, v{t+6}")
        p(f"v_readfirstlane_b32 s88, v{t+4}")
        p("s_cmp_lg_u32 s88, 0")
        p("s_cbranch_scc1 L_FB")
        p.raw(f"L_OE{item}:")

    def fallback(self):
        q = K2(self.o); q.phase = "fb"; p = q.p
        M = LS
        def load_tile():
            p(f"s_mov_b32 s{sT2}, s{sTc}")
            q.emit_groups(q.dma_kv_abs(("fb",), 0))
            p("s_waitcnt vmcnt(0)"); p("s_barrier")
        def qk(qt):
            for kt in range(2):
                for ks in range(4):
                    p.add(mfma(S(0, kt), "v", KF(0, kt, ks), "a", Q(qt, ks), "a", None if ks == 0 else S(0, kt)))
        p.raw("L_FB:")
        p("s_waitcnt vmcnt(0) lgkmcnt(0)"); p("s_barrier")
        p(f"s_mov_b32 s{SKV+2}, {KV_BYTES}")
        for qt in range(6): p(f"v_mov_b32 v{M+qt}, 0xff800000")
        p(f"s_lshl_b32 s{sTc}, s{sItem}, 17"); p(f"s_mov_b32 s{sCnt}, 16")
        p.raw("L_FB1:")
        load_tile()
        for kt in range(2):
            for ks in range(4): p.add(q.rd_k(0, kt, ks))
        for qt in range(6):
            qk(qt)
            e = [S(0, 0)+r for r in range(4)] + [S(0, 1)+r for r in range(4)]
            for k in range(0, 8, 2): p(f"v_max3_f32 v{M+qt}, v{e[k]}, v{e[k+1]}, v{M+qt}")
        p("s_waitcnt lgkmcnt(0)"); p("s_barrier")
        p(f"s_sub_u32 s{sCnt}, s{sCnt}, 1"); p(f"s_cmp_lg_u32 s{sCnt}, 0"); p("s_cbranch_scc1 L_FB1")
        t = S(1, 0)
        for qt in range(6):
            m = M + qt
            p(f"v_mov_b32 v{t}, v{m}"); p(f"v_permlane32_swap_b32 v{t}, v{m}"); p(f"v_max_f32 v{m}, v{m}, v{t}")
            p(f"v_mov_b32 v{t}, v{m}"); p(f"v_permlane16_swap_b32 v{t}, v{m}"); p(f"v_max_f32 v{m}, v{m}, v{t}")
        for r in range(192): p(f"v_mov_b32 v{ACC+r}, 0")
        p(f"v_mov_b32 v{t}, 0")
        for r in range(24): p(f"v_accvgpr_write_b32 a{LA(0)+r}, v{t}")
        p(f"s_lshl_b32 s{sTc}, s{sItem}, 17"); p(f"s_mov_b32 s{sCnt}, 16")
        p("s_nop 7")
        p.raw("L_FB2:")
        load_tile()
        for kt in range(2):
            for ks in range(4): p.add(q.rd_k(0, kt, ks))
        for dt in range(8):
            p.add(q.rd_v(0, dt, 0)); p.add(q.rd_v(0, dt, 1))
        for qt in range(6):
            qk(qt)
            e = [S(0, 0)+r for r in range(4)] + [S(0, 1)+r for r in range(4)]
            for k in range(8): p(f"v_sub_f32 v{e[k]}, v{e[k]}, v{M+qt}")
            for k in range(8): p(f"v_exp_f32 v{e[k]}, v{e[k]}")
            for k in range(0, 8, 2): p(f"v_cvt_pk_bf16_f32 v{P(0)+k//2}, v{e[k]}, v{e[k+1]}")
            for dt in range(8): p.add(mfma(acc(dt, qt), "v", VF(0, dt), "a", P(0), "v", acc(dt, qt)))
            p.add(mfma(LA(qt), "a", ONES, "a", P(0), "v", LA(qt)))
        p("s_waitcnt lgkmcnt(0)"); p("s_nop 7"); p("s_nop 7"); p("s_barrier")
        p(f"s_sub_u32 s{sCnt}, s{sCnt}, 1"); p(f"s_cmp_lg_u32 s{sCnt}, 0"); p("s_cbranch_scc1 L_FB2")
        p("s_nop 7"); p("s_nop 7")
        p(f"s_cmp_eq_u32 s{sItem}, 0"); p("s_cbranch_scc1 L_OE0")
        if self.o.get("fuse"):
            for x in self.k3_setup(): p.add(x)
        p("s_branch L_OE1")
        L, st = finalize(p.L)
        return L

    def signal(self, offreg_txt, uid=None):
        uid = uid or self.uid()
        L = [ins(f"s_cmp_lg_u32 s{sW}, 0"), ins(f"s_cbranch_scc1 L_sig{uid}"),
             ins(f"v_mov_b32 v{VPOLL+1}, 1"), ins(offreg_txt), ins("s_mov_b64 exec, 1"),
             ins(f"buffer_atomic_add v{VPOLL+1}, v{VPOLL+2}, s[{SFL}:{SFL+3}], 0 offen sc1"),
             ins("s_mov_b64 exec, -1")]
        for x in L: x.meta["alt"] = True
        L.append(I(f"L_sig{uid}:", "label"))
        return L
    def uid(self):
        self._uid = getattr(self, "_uid", 0) + 1
        return self._uid
    def poll_issue(self, off_txt):
        return [ins(off_txt.replace("VDST", f"v{VPOLL+3}")), ins(f"buffer_load_dword v{VPOLL}, v{VPOLL+3}, s[{SFL}:{SFL+3}], 0 offen sc1")]
    def poll_check(self, target):
        p = self.p
        uid = self.uid()
        p(f"v_readfirstlane_b32 s88, v{VPOLL}")
        p(f"s_cmp_ge_u32 s88, {target}"); p(f"s_cbranch_scc1 L_ok{uid}")
        L = [f"s_mov_b32 s89, 0x40000", f"L_spin{uid}:", "s_sleep 2",
             f"buffer_load_dword v{VPOLL}, v{VPOLL+3}, s[{SFL}:{SFL+3}], 0 offen sc1", "s_waitcnt vmcnt(0)",
             f"v_readfirstlane_b32 s88, v{VPOLL}", "s_nop 3", "s_sub_u32 s89, s89, 1", "s_cmp_eq_u32 s89, 0", f"s_cbranch_scc1 L_ok{uid}",
             f"s_cmp_lt_u32 s88, {target}", f"s_cbranch_scc1 L_spin{uid}"]
        for t in L: p.add(I(t, "label", verbatim=True))
        p.raw(f"L_ok{uid}:")

    def k3_setup(self):
        L = []
        A = lambda t: L.append(ins(t))
        A(f"s_and_b32 s88, s{sHG}, 3"); A(f"s_lshr_b32 s89, s{sHG}, 2")
        A(f"s_lshl_b32 s90, s{sP}, 2"); A("s_add_u32 s90, s90, s88"); A("s_lshl_b32 s90, s90, 7"); A(f"s_lshl_b32 s91, s{sW}, 5"); A("s_add_u32 s90, s90, s91"); A("s_lshl_b32 s90, s90, 13")
        rot = self.o.get("k3rot", True)
        if rot: A(f"s_and_b32 s{kRho}, s{sB}, 3"); A(f"s_add_u32 s{kRho}, s{kRho}, s{sW}")
        else: A(f"s_mov_b32 s{kRho}, s{sW}")
        for pr in range(4):
            A(f"s_add_u32 s91, s{kRho}, {pr}"); A("s_and_b32 s91, s91, 3"); A("s_lshl_b32 s91, s91, 11"); A(f"s_add_u32 s{kA+pr}, s90, s91")
        if rot: A("s_lshr_b32 s91, s88, 1"); A(f"s_add_u32 s{kSig}, s88, s91")
        else: A(f"s_mov_b32 s{kSig}, 0")
        for qt in range(6):
            A(f"s_add_u32 s91, s{kSig}, {qt}"); A("s_cmp_ge_u32 s91, 6"); A("s_cselect_b32 s98, 6, 0"); A("s_sub_u32 s91, s91, s98"); A("s_lshl_b32 s91, s91, 10")
            A(f"v_add_u32 v{VBQ+qt}, s91, v{VST}")
        A(f"s_lshl_b32 s90, s{sP}, 4"); A(f"s_add_u32 s90, s90, s{sB}"); A("s_lshl_b32 s90, s90, 1"); A("s_add_u32 s90, s90, s89"); A("s_lshl_b32 s90, s90, 7")
        A(f"s_lshl_b32 s91, s{sW}, 5"); A("s_add_u32 s90, s90, s91"); A(f"s_mul_i32 s{kBo}, s90, 6144")
        A(f"s_mul_i32 s90, s{sB}, 192"); A("s_mul_i32 s91, s89, 96"); A("s_add_u32 s90, s90, s91"); A("s_lshl_b32 s90, s90, 11")
        A(f"s_lshl_b32 s91, s{sP}, 10"); A("s_add_u32 s90, s90, s91"); A("s_lshl_b32 s91, s88, 8"); A("s_add_u32 s90, s90, s91")
        A(f"s_and_b32 s91, s{kRho}, 3"); A("s_lshl_b32 s91, s91, 6"); A(f"s_add_u32 s{kOut}, s90, s91")
        A(f"s_mov_b32 s{SX}, s68"); A(f"s_mov_b32 s{SX+1}, s69"); A(f"s_mov_b32 s{SX+2}, {OUT_BYTES}"); A(f"s_mov_b32 s{SX+3}, 0x00020000")
        A(f"v_add_u32 v{VB4}, 4096, v{VST}")
        if self.o.get("rawwo"):
            A(f"s_lshl_b32 s90, s{sW}, 20"); A("s_lshl_b32 s91, s88, 8"); A(f"s_add_u32 s{kA}, s90, s91")
            A(f"s_lshl_b32 s{kA+1}, s{sW}, 15")
        return L
    def k3_setup2(self):
        L = []
        A = lambda t: L.append(ins(t))
        A("v_and_b32 v2, 15, v0"); A("v_lshrrev_b32 v3, 4, v0"); A("v_lshlrev_b32 v7, 2, v3"); A("v_xor_b32 v7, v7, v2"); A("v_lshlrev_b32 v7, 4, v7")
        A(f"v_lshl_add_u32 v{VAD2}, v3, 10, v7")
        for n in range(1, 4): A(f"v_add_u32 v{VAD2+n}, {n*3072}, v{VAD2}")
        A("v_lshrrev_b32 v7, 2, v2"); A("v_and_b32 v2, 3, v2")
        A("v_lshl_add_u32 v3, v3, 2, v7"); A("v_lshlrev_b32 v3, 8, v3"); A(f"v_add_u32 v3, s{kA+1}, v3")
        A("v_lshlrev_b32 v7, 2, v7")
        for pr in range(4):
            A(f"s_add_u32 s91, s{kRho}, {pr}"); A("s_and_b32 s91, s91, 3"); A("s_lshl_b32 s91, s91, 2")
            A(f"v_add_u32 v{VAR2+pr}, s91, v2"); A(f"v_xor_b32 v{VAR2+pr}, v{VAR2+pr}, v7"); A(f"v_lshl_add_u32 v{VAR2+pr}, v{VAR2+pr}, 4, v3")
        return L
    def k3_loads(self, b, o, j=None):
        m = self.o.get("k3_ld", "sc1")
        raw = self.o.get("rawwo")
        bf = BF2 if raw else BF
        G = []
        for qt in range(6):
            g = [ins(f"s_add_u32 s{kT0}, s{kBo}, {o*6144}")] if qt == 0 else []
            g.append(ins(f"buffer_load_dwordx4 {rng('a', bf(b, qt), 4)}, v{VBQ+qt}, s[{SO}:{SO+3}], s{kT0} offen {m}"))
            G.append(g)
        if raw:
            for half in range(2):
                g = [ins(f"s_add_u32 s{kT1}, s{kA}, {o*32768 + half*16384}"), ins(f"s_add_u32 m0, s{kA+1}, {b*8192 + half*4096}")]
                for n in range(4):
                    g.append(ins(f"buffer_load_dwordx4 v{VAD2+n}, s[{SWO}:{SWO+3}], s{kT1} offen offset:{1024*n} lds", tag=("A", j)))
                    G.append(g); g = []
            if self.o.get("afirst"): G = G[6:] + G[:6]
            return G
        for pr in range(4):
            t = kT1 if pr % 2 == 0 else kT0
            G.append([ins(f"s_add_u32 s{t}, s{kA+pr}, {o*8192}"),
                      ins(f"buffer_load_dwordx4 {rng('a', AF(b, 2*pr), 4)}, v{VST}, s[{SWT}:{SWT+3}], s{t} offen {m}")])
            G.append([ins(f"buffer_load_dwordx4 {rng('a', AF(b, 2*pr+1), 4)}, v{VST}, s[{SWT}:{SWT+3}], s{t} offen offset:1024 {m}")])
        return G
    def k3_tr(self, t):
        L = []
        for nu in range(8):
            pr, par = nu >> 1, nu & 1
            d = AF2(t % 2, nu)
            L.append(ins(f"ds_read_b64_tr_b16 a[{d}:{d+1}], v{VAR2+pr} offset:{(t % 4)*8192 + 8*par}"))
            L.append(ins(f"ds_read_b64_tr_b16 a[{d+2}:{d+3}], v{VAR2+pr} offset:{(t % 4)*8192 + 4096 + 8*par}"))
        return L
    def k3_adv(self, steps):
        if self.o.get("rawwo"):
            return [ins(f"s_add_u32 s{kA}, s{kA}, {(steps*32768) & 0xffffffff}"), ins(f"s_add_u32 s{kBo}, s{kBo}, {(steps*6144) & 0xffffffff}")]
        return [ins(f"s_add_u32 s{kA+pr}, s{kA+pr}, {(steps*8192) & 0xffffffff}") for pr in range(4)] + [ins(f"s_add_u32 s{kBo}, s{kBo}, {(steps*6144) & 0xffffffff}")]
    def k3_step(self, t, G, extra=(), dst=None, order=None, post=None):
        p = self.p
        dst = dst if dst is not None else []
        raw = self.o.get("rawwo")
        b = t % 4
        af = (lambda nu: AF2(t % 2, nu)) if raw else (lambda nu: AF(b, nu))
        bf = (lambda qt: BF2(b, qt)) if raw else (lambda qt: BF(b, qt))
        tr = []
        if raw and t + 1 <= 31:
            p.wait_tag(("A", t+1)); tr = self.k3_tr(t+1)
        n = 0
        extra = list(extra)
        for nu in (order or range(8)):
            for qt in range(6):
                p.add(mfma(oacc(nu, qt), "v", af(nu), "a", bf(qt), "a", None if t == 0 else oacc(nu, qt)))
                if n % 3 == 1 and n//3 < len(G):
                    for x in G[n//3]: p.add(x)
                elif tr and n % 3 != 1 and n >= 2: p.add(tr.pop(0))
                if n == 44:
                    for x in extra: p.add(x)
                if n in (8, 17, 26, 35, 43) and dst:
                    for x in dst.pop(0): p.add(x)
                if post: post(nu, qt)
                n += 1
        assert not tr
    def k3_main(self):
        p = self.p
        D = self.deferred
        if self.o.get("rawwo"):
            p.wait_tag(("A", 0))
            for x in self.k3_tr(0): p.add(x)
        if D:
            assert len(D) <= 24
            self.k3_step(0, self.k3_loads(3, 3, 3), extra=self.k3_adv(8), dst=D)
            for t in range(1, 9):
                i = (t-1) % 4
                self.k3_step(t, self.k3_loads((t+3) % 4, i, t+3), extra=self.k3_adv(8) if i == 3 else [], dst=D)
                if t == self.o.get("sig2", 7 if self.o.get("rawwo") else 6):
                    p.wait_tag(("o",)); p("s_barrier")
                    for x in self.signal(f"v_mov_b32 v{VPOLL+2}, s{sC2o}", uid="g2"): p.add(x)
            assert not D
            for i in range(4):
                t = 9 + i
                self.k3_step(t, self.k3_loads((t+3) % 4, i, t+3), extra=self.k3_adv(8) if i == 3 else [])
                if i == 2:
                    for x in self.poll_issue(f"v_mov_b32 VDST, s{sC2o}"): p.add(x)
        else:
            self.k3_step(0, self.k3_loads(3, 3, 3), extra=self.k3_adv(8))
            p(f"s_mov_b32 s{kCnt}, 3")
            for k in range(3):
                p.raw(f"@@LB k3a {k}")
                for i in range(4):
                    t = 1 + 4*k + i
                    ex = self.k3_adv(8) if i == 3 else []
                    self.k3_step(t, self.k3_loads((t+3) % 4, i, t+3), extra=ex)
                    if i == 1:
                        uid = "k3s"
                        p(f"s_cmp_lg_u32 s{kCnt}, 3"); p(f"s_cbranch_scc1 L_{uid}")
                        p.wait_tag(("o",)); p("s_barrier")
                        for x in self.signal(f"v_mov_b32 v{VPOLL+2}, s{sC2o}", uid="g2"): p.add(x)
                        p.raw(f"L_{uid}:")
                    if i == 2:
                        for x in self.poll_issue(f"v_mov_b32 VDST, s{sC2o}"): p.add(x)
                p(f"s_sub_u32 s{kCnt}, s{kCnt}, 1"); p(f"s_cmp_lg_u32 s{kCnt}, 0"); p("s_cbranch_scc1 L_k3a")
                p.raw(f"@@LE k3a {k}")
        self.stamp()
        for x in self.k3_adv(4 - 32): p.add(x)
        self.poll_check(16 if self.o.get('rawwo') else 8)
        for i in range(4):
            t = 13 + i
            self.k3_step(t, self.k3_loads((t+3) % 4, i, t+3), extra=self.k3_adv(8) if i == 3 else [])
        p(f"s_mov_b32 s{kCnt}, 3")
        for k in range(3):
            p.raw(f"@@LB k3b {k}")
            for i in range(4):
                t = 17 + 4*k + i
                self.k3_step(t, self.k3_loads((t+3) % 4, i, t+3), extra=self.k3_adv(8) if i == 3 else [])
            p(f"s_sub_u32 s{kCnt}, s{kCnt}, 1"); p(f"s_cmp_lg_u32 s{kCnt}, 0"); p("s_cbranch_scc1 L_k3b")
            p.raw(f"@@LE k3b {k}")
        for t in (29, 30): self.k3_step(t, [])
        if self.o.get("redovl", True):
            for pr, v in ((1, 7), (2, 2), (3, 3)):
                p(f"s_add_u32 s88, s{sW}, {pr}"); p("s_and_b32 s88, s88, 3"); p("s_mul_i32 s88, s88, 36864"); p(f"s_add_u32 s88, s88, {(pr-1)*12288}")
                p(f"v_add_u32 v{v}, s88, v{VST}")
            if self.o.get("rawwo"):
                p("s_waitcnt lgkmcnt(0)"); p("s_barrier")
            pend = []
            def post(nu, qt):
                if pend and qt in (1, 3, 5): p.add(pend.pop(0))
                if qt == 5 and nu >= 2:
                    pr, par = nu >> 1, nu & 1
                    v = {1: 7, 2: 2, 3: 3}[pr]
                    pend.extend(ins(f"ds_write_b128 v{v}, v[{oacc(nu, q)}:{oacc(nu, q)+3}] offset:{(par*6 + q)*1024}") for q in range(6))
            self.k3_step(31, [], order=[2, 3, 4, 5, 6, 7, 0, 1], post=post)
            self.red_pending = pend
        else:
            assert not self.o.get("rawwo")
            self.k3_step(31, [])
        self.stamp()
        if self.o.get("redovl", True):
            for x in self.red_pending: p.add(x)
            p(f"s_mul_i32 s88, s{sW}, 36864"); p(f"v_add_u32 v8, s88, v{VST}")
        else:
            for pr, v in ((1, 7), (2, 2), (3, 3)):
                p(f"s_add_u32 s88, s{sW}, {pr}"); p("s_and_b32 s88, s88, 3"); p("s_mul_i32 s88, s88, 36864"); p(f"s_add_u32 s88, s88, {(pr-1)*12288}")
                p(f"v_add_u32 v{v}, s88, v{VST}")
            p(f"s_mul_i32 s88, s{sW}, 36864"); p(f"v_add_u32 v8, s88, v{VST}")
            for pr, v in ((1, 7), (2, 2), (3, 3)):
                for par in range(2):
                    for qt in range(6):
                        a = oacc(2*pr + par, qt)
                        p(f"ds_write_b128 v{v}, v[{a}:{a+3}] offset:{(par*6 + qt)*1024}")
        p("s_waitcnt lgkmcnt(0)")
        p("s_barrier")
        for sl in range(3):
            for par in range(2):
                for qt in range(6):
                    a = oacc(2*(sl+1) + par, qt)
                    p(f"ds_read_b128 v[{a}:{a+3}], v8 offset:{sl*12288 + (par*6 + qt)*1024}")
        p("v_and_b32 v12, 15, v0"); p("v_lshrrev_b32 v13, 4, v0"); p("v_lshlrev_b32 v12, 11, v12"); p("v_lshl_add_u32 v9, v13, 4, v12")
        for qt in range(6):
            for par in range(2):
                a = oacc(par, qt)
                for sl in range(3):
                    s_ = oacc(2*(sl+1) + par, qt)
                    for r in range(4): p(f"v_add_f32 v{a+r}, v{a+r}, v{s_+r}")
            a0, a1 = oacc(0, qt), oacc(1, qt)
            t0 = 16 + (qt % 4)*4
            p(f"v_cvt_pk_bf16_f32 v{t0}, v{a0}, v{a0+1}"); p(f"v_cvt_pk_bf16_f32 v{t0+1}, v{a0+2}, v{a0+3}")
            p(f"v_cvt_pk_bf16_f32 v{t0+2}, v{a1}, v{a1+1}"); p(f"v_cvt_pk_bf16_f32 v{t0+3}, v{a1+2}, v{a1+3}")
            p(f"s_add_u32 s88, s{kSig}, {qt}"); p("s_cmp_ge_u32 s88, 6"); p("s_cselect_b32 s89, 6, 0"); p("s_sub_u32 s88, s88, s89"); p("s_lshl_b32 s88, s88, 15")
            p(f"s_add_u32 s{kT0}, s{kOut}, s88")
            p(f"buffer_store_dwordx4 v[{t0}:{t0+3}], v9, s[{SX}:{SX+3}], s{kT0} offen {self.o.get('out_mod', '')}")

    def o_epilogue(self, last):
        p = self.p
        fuse_last = last and self.o.get("fuse")
        pre = []
        raw = self.o.get("rawwo")
        if fuse_last:
            if raw:
                for x in self.k3_setup2(): p.add(x)
            pre = self.k3_loads(0, 0, 0) + self.k3_loads(1, 1, 1) + self.k3_loads(2, 2, 2)
        defer = fuse_last and self.o.get("defer", True)
        self.deferred = []
        for qt in range(6): p(f"v_accvgpr_read_b32 v{LS+qt}, a{LA(qt)}")
        for qt in range(6): p(f"v_rcp_f32 v{LS+qt}, v{LS+qt}")
        vstage = [8, 12, 16, 20, 24, 28, 38, 42, 46, 50]
        ndir = 6
        nag = 8; abase = 224
        if fuse_last and raw:
            vstage = vstage[:8]; ndir = self.o.get("ndir", 4); nag = 24 - ndir; abase = 160
        for qt in range(6):
            for ks in range(4):
                m = qt*4 + ks
                a0, a1 = acc(2*ks, qt), acc(2*ks+1, qt)
                l = LS + qt
                if self.o.get("pk", True):
                    lp = l & ~1; sel = "op_sel_hi:[1,0]" if l % 2 == 0 else "op_sel:[0,1] op_sel_hi:[1,1]"
                    for a in (a0, a0+2, a1, a1+2): p(f"v_pk_mul_f32 v[{a}:{a+1}], v[{a}:{a+1}], v[{lp}:{lp+1}] {sel}")
                else:
                    for r in range(4): p(f"v_mul_f32 v{a0+r}, v{l}, v{a0+r}")
                    for r in range(4): p(f"v_mul_f32 v{a1+r}, v{l}, v{a1+r}")
                if defer: t0 = (54 if m % 2 == 0 or not raw else 8) if m < ndir + nag else vstage[m - ndir - nag]
                else: t0 = SB + ((ks + 4*qt) % 6)*4
                p(f"v_cvt_pk_bf16_f32 v{t0}, v{a0}, v{a0+1}")
                p(f"v_cvt_pk_bf16_f32 v{t0+1}, v{a0+2}, v{a0+3}")
                p(f"v_cvt_pk_bf16_f32 v{t0+2}, v{a1}, v{a1+1}")
                p(f"v_cvt_pk_bf16_f32 v{t0+3}, v{a1+2}, v{a1+3}")
                n = ks*6 + qt
                mod = self.o['last_store_mod']
                if last:
                    for _ in range(2):
                        if pre:
                            for x in pre.pop(0): p.add(x)
                    if not defer or m < ndir:
                        p(f"s_add_u32 s{sT0}, s{sOo}, {n*1024}")
                        p(f"buffer_store_dwordx4 v[{t0}:{t0+3}], v{VST}, s[{SO}:{SO+3}], s{sT0} offen {mod}", tag=("o",))
                    else:
                        if m < ndir + nag:
                            d = abase + (m - ndir)*4
                            for r in range(4): p(f"v_accvgpr_write_b32 a{d+r}, v{t0+r}")
                            src = f"a[{d}:{d+3}]"
                        else: src = f"v[{t0}:{t0+3}]"
                        self.deferred.append([ins(f"s_add_u32 s{sT2}, s{sOo}, {n*1024}"),
                                              ins(f"buffer_store_dwordx4 {src}, v{VST}, s[{SO}:{SO+3}], s{sT2} offen {mod}", tag=("o",))])
                else:
                    for r in range(4): p(f"v_accvgpr_write_b32 a{OS(n)+r}, v{t0+r}")

    def final(self):
        p = self.p
        p.wait_tag(("wo",))
        p("s_barrier")
        p("v_and_b32 v8, 15, v0"); p("v_lshrrev_b32 v2, 4, v0"); p("v_lshrrev_b32 v3, 2, v8"); p("v_and_b32 v7, 3, v8")
        p("v_lshl_add_u32 v6, v2, 2, v3"); p("v_lshlrev_b32 v6, 10, v6"); p("v_lshl_add_u32 v6, v7, 4, v6")
        p(f"s_lshl_b32 s88, s{sW}, 8"); p("v_add_u32 v6, s88, v6")
        for nt in range(8):
            u, par = nt >> 1, nt & 1
            d = 32 + nt*4
            p(f"ds_read_b64_tr_b16 v[{d}:{d+1}], v6 offset:{64*u + 8*par}")
            p(f"ds_read_b64_tr_b16 v[{d+2}:{d+3}], v6 offset:{16384 + 64*u + 8*par}")
        for nt in range(8):
            d = 32 + nt*4
            if nt % 4 == 0: p(f"s_add_u32 s{sT1}, s{sWTo}, {nt*1024}")
            p(f"buffer_store_dwordx4 v[{d}:{d+3}], v{VST}, s[{SWT}:{SWT+3}], s{sT1} offen offset:{(nt % 4)*1024} {self.o['last_store_mod']}")

    def build(self):
        p = self.p
        assert self.o["msum"]
        self.prologue()
        if self.o["timing"]: p("s_mov_b32 s99, 0")
        if self.o.get("delaywg"):
            p("s_and_b32 s88, s2, 7"); p("s_cmp_lg_u32 s88, 3"); p("s_cbranch_scc1 L_nodelay")
            p("s_memrealtime s[88:89]"); p("s_waitcnt lgkmcnt(0)"); p(f"s_add_u32 s90, s88, {self.o['delaywg']}")
            p.raw("L_spinw:"); p("s_memrealtime s[88:89]"); p("s_waitcnt lgkmcnt(0)"); p("s_cmp_lt_u32 s88, s90"); p("s_cbranch_scc1 L_spinw")
            p.raw("L_nodelay:")
        self.stamp()
        if self.o.get("entry"):
            p("s_mov_b32 m0, 62"); p("s_nop 1"); p("v_writelane_b32 v5, s100, m0")
        early = self.o.get("woearly")
        p(f"s_mov_b32 s{SO+2}, {0 if self.o.get('stA') else O_BYTES}")
        mid = self.o.get("womid")
        if mid:
            assert self.o.get("stA") and self.o.get("fuse") and self.o.get("stpat") == 3
            self.emit_groups(self.w_tile(0, 0) + self.x_tile(0) + self.w_tile(1, 0) + self.dma_wo_last())
        elif early:
            assert self.o.get("stA") and self.o.get("fuse")
            self.emit_groups(self.w_tile(0, 0) + self.x_tile(0) + self.dma_wo_last() + self.w_tile(1, 0))
        else:
            self.emit_groups(self.w_tile(0, 0) + self.x_tile(0) + ([] if self.o.get("w1late") else self.w_tile(1, 0)))
        self.prologue2()
        if mid:
            p(f"s_mov_b32 s{sOreal}, s{sOo}"); p(f"s_mov_b32 s{sOo}, {4*6144}")
            p(f"s_add_u32 s{SO}, s{SWT}, s{sWTo}"); p(f"s_addc_u32 s{SO+1}, s{SWT+1}, 0")
            p(f"s_sub_u32 s{SO}, s{SO}, {12*1024}"); p(f"s_subb_u32 s{SO+1}, s{SO+1}, 0")
            p(f"s_mov_b32 s{SO+2}, 0"); p(f"s_mov_b32 s{sSz1}, {20*1024}"); p(f"s_mov_b32 s{sSz2}, 0")
        if early:
            p(f"s_mov_b32 s{sOreal}, s{sOo}"); p(f"s_mov_b32 s{sOo}, {4*6144}")
            p(f"s_add_u32 s{SO}, s{SWT}, s{sWTo}"); p(f"s_addc_u32 s{SO+1}, s{SWT+1}, 0"); p(f"s_mov_b32 s{SO+2}, 8192")
            W = self.wo_prep_groups(stage=True)
            for g in W[:9]:
                for x in g: p.add(x)
            p.wait_tag(("wo",)); p("s_barrier")
            for g in W[9:]:
                for x in g: p.add(x)
        for item in range(2):
            last = item == 1
            p.raw("@@SB A"); self.qproj_a(); p.raw("@@SE A")
            p.raw(f"@@SB B{item}"); self.qproj_b(last); self.stamp(); p.raw(f"@@SE B{item}")
            p.raw("@@SB C"); self.attention_shared(); p.raw("@@SE C")
            p.raw(f"@@SB D{item}")
            self.attention_tail(last)
            self.stamp()
            if self.o.get("guard", True): self.softmax_check(item)
            self.o_epilogue(last)
            self.stamp()
            if not last:
                if self.o.get("woearly") or self.o.get("womid"):
                    p(f"s_mov_b32 s{sOo}, s{sOreal}"); p(f"s_mov_b32 s{SO}, s72"); p(f"s_mov_b32 s{SO+1}, s73")
                if self.o.get("womid"):
                    p(f"s_mov_b32 s{sSz1}, {O_BYTES}"); p(f"s_mov_b32 s{sSz2}, {O_BYTES}")
                p(f"s_add_u32 s{sWo}, s{sWo}, 256"); p(f"s_add_u32 s{sOo}, s{sOo}, {4*6144}")
                p(f"s_mov_b32 s{sItem}, 1"); p(f"s_mov_b32 s{SO+2}, {O_BYTES}")
            else:
                if self.o.get("fuse"): self.k3_main()
                self.stamp()
                p("s_waitcnt vmcnt(0)")
                self.stamp()
                self.stamp_flush()
                p("s_waitcnt vmcnt(0)")
            p.raw(f"@@SE D{item}")
        L, st = finalize(p.L)
        L = fold(L)
        segs, top = segments(L)
        out = [i for k, i in top if k == "ins"]
        lab = lambda t: I(t, "label")
        br = lambda tgt: [ins(f"s_cmp_eq_u32 s{sItem}, 1"), ins(f"s_cbranch_scc1 {tgt}")]
        out += [lab("L_A:")] + segs["A"] + br("L_B1") + segs["B0"] + [lab("L_C:")] + segs["C"] + br("L_D1") + segs["D0"] + [ins("s_branch L_A")]
        out += [lab("L_B1:")] + segs["B1"] + [ins("s_branch L_C")]
        out += [lab("L_D1:")] + segs["D1"] + [lab("K2_END:"), ins("s_endpgm")]
        if self.o.get("guard", True): out += self.fallback()
        return out, st

if __name__ == "__main__":
    k = K2(); L, st = k.build()
    print(st, len(L))
```

```python
from dsl import *
import struct

def f32(x): return "0x%08x" % struct.unpack("<I", struct.pack("<f", x))[0]

NB, SQ, DM, H, SK, DH = 16, 192, 512, 32, 512, 128
X_BYTES = NB*SQ*DM*2
KV_BYTES = NB*H*SK*DH*2
W_BYTES = DM*H*DH*2
O_BYTES = 2*NB*2*128*6*1024
WOT_OFF = O_BYTES
WOT_BYTES = 2*4*128*8*1024
OUT_BYTES = NB*SQ*1024*2

PHI = 65536
WSLOT = [65536, 81920, 98304]
XA, XB = 114688, 139264
DROP = 0x30000

ACC = 64
def acc(T, qt): return ACC + (T*6 + qt)*4
SB = 8
def S(buf, kt): return SB + buf*8 + kt*4
PB = 24
def P(buf): return PB + buf*4
LS = 32
KA = 38
VA = 42
DV = 50
WA = 54
XAD = 58
WD = [60, 61, 2, 3]
XD = [62, 63, 6, 7]
VST = 4
def Q(qt, ks): return (qt*4 + ks)*4
def OS(n): return n*4
def KF(buf, kt, ks): return 96 + buf*32 + (kt*4 + ks)*4
def VF(buf, dt): return 160 + buf*32 + dt*4
def WF(T): return 96 + T*4
def XF(buf, qt): return 128 + buf*24 + qt*4
ONES = 224
def LA(qt): return 228 + qt*4
SX, SW, SKV, SO, SWO, SWT = 4, 8, 12, 16, 20, 24
sW, sHP, sRH, sP, sB, sHG = 28, 29, 30, 31, 32, 33
sKVo, sKVl, sWo, sWl, sXo, sXl, sOo = 34, 35, 36, 37, 38, 39, 40
sT0, sT1, sC = 41, 42, 43
sWOo, sWTo = 44, 45
sItem, sCnt = 46, 47
sTile, sM, sTh1, sTh2, sWarmW, sWarmX, sWoM, sDrop, sTc, sRot = 74, 75, 76, 77, 78, 79, 80, 81, 84, 85
sT2 = 83
sC2 = 86
sWR, sXR = 78, 79

SFL = 92
kA, kBo, kT0, kT1, kOut, kCnt = 74, 78, 80, 81, 79, 47
sC1, sC2o = 97, 96
def oacc(nu, qt): return ACC + (nu*6 + qt)*4
def AF(buf, nu): return buf*56 + nu*4
def BF(buf, qt): return buf*56 + 32 + qt*4
VB4 = 6
VBQ = 58
kRho, kSig = 82, 85
VAD2 = [2, 3, 6, 7]
VAR2 = 54
VAR = 38
VAD = 50
def AF2(buf, nu): return buf*32 + nu*4
def BF2(buf, qt): return 64 + buf*24 + qt*4
sOreal = 98
sSz1, sSz2 = 76, 77
VPOLL = 34
MF = "v_mfma_f32_16x16x32_bf16"
def mfma(d, dk, a, ak, b, bk, c=None):
    cs = "0" if c is None else rng(dk, c, 4)
    return ins(f"{MF} {rng(dk,d,4)}, {rng(ak,a,4)}, {rng(bk,b,4)}, {cs}")

class K2:
    def __init__(self, opts=None):
        self.o = dict(nt="nt", w_mod="", x_mod="", store_mod="sc1", last_store_mod="sc1", timing=False, msum=True, warm=False, qrot=True, stA=True, stpat=3, credit=4, out_mod="sc1", rawwo=True, afirst=True, drop=[])
        if opts: self.o.update(opts)
        self.p = Prog()
        self.phase = ""

    def tile_addr(self):
        if self.o.get("perm4"):
            return [ins(f"s_and_b32 s{sTile}, s{sTc}, 0x6000"), ins(f"s_lshl_b32 s{sTile}, s{sTile}, 2"),
                    ins(f"s_and_b32 s{sT0}, s{sTc}, 0x18000"), ins(f"s_lshr_b32 s{sT0}, s{sT0}, 2"), ins(f"s_or_b32 s{sTile}, s{sTile}, s{sT0}"),
                    ins(f"s_and_b32 s{sT0}, s{sTc}, 0x20000"), ins(f"s_or_b32 s{sTile}, s{sTile}, s{sT0}"),
                    ins(f"s_add_u32 s{sTile}, s{sTile}, s{sKVo}"), ins(f"s_add_u32 s{sTc}, s{sTc}, 8192")]
        if not self.o.get("rot"):
            return [ins(f"s_add_u32 s{sTile}, s{sKVo}, s{sTc}"), ins(f"s_add_u32 s{sTc}, s{sTc}, 8192")]
        return [ins(f"s_add_u32 s{sTile}, s{sTc}, s{sRot}"), ins(f"s_and_b32 s{sTile}, s{sTile}, 0x1ffff"),
                ins(f"s_and_b32 s{sT0}, s{sTc}, 0x20000"), ins(f"s_add_u32 s{sTile}, s{sTile}, s{sT0}"),
                ins(f"s_add_u32 s{sTile}, s{sTile}, s{sKVo}"), ins(f"s_add_u32 s{sTc}, s{sTc}, 8192")]
    def dma_kv(self, tag, m0a, m0b, pre=()):
        nt = self.o['nt']
        G = []
        g = list(pre) + self.tile_addr() + [ins(m0a)]
        for k in range(4):
            g.append(ins(f"buffer_load_dwordx4 v{DV+k}, s[{SKV}:{SKV+3}], s{sTile} offen offset:{1024*k} {nt} lds", tag=tag))
            G.append(g); g = []
        g = [ins(f"s_add_u32 s{sT0}, s{sTile}, 4096"), ins(m0b)]
        for k in range(4):
            g.append(ins(f"buffer_load_dwordx4 v{DV+k}, s[{SKV}:{SKV+3}], s{sT0} offen offset:{1024*k} {nt} lds", tag=tag))
            G.append(g); g = []
        return G
    def dma_kv_abs(self, tag, slot):
        o = (slot >> 1)*PHI + (slot & 1)*8192
        return self.dma_kv(tag, f"s_add_u32 m0, s{sKVl}, {o}", f"s_add_u32 m0, s{sKVl}, {o + 4096}")
    def kv_pieces(self, tile, a, b):
        G = self.dma_kv_abs(("kv", tile), tile % 4)
        out = G[a:b]
        if a not in (0, 4):
            slot = tile % 4
            o = (slot >> 1)*PHI + (slot & 1)*8192 + (4096 if a >= 4 else 0)
            out[0] = [ins(f"s_add_u32 m0, s{sKVl}, {o}")] + out[0]
        return out
    def dma_w(self, tag, base_reg, goff, m0txt, rot=None):
        G = []
        if rot is None: g = [ins(f"s_add_u32 s{sT1}, s{base_reg}, {goff}")]
        else:
            g = [ins(f"s_add_u32 s{sT1}, s{sWR}, {rot*262144}"), ins(f"s_and_b32 s{sT1}, s{sT1}, 0x3fffff"), ins(f"s_add_u32 s{sT1}, s{sT1}, s{base_reg}")]
            if goff: g.append(ins(f"s_add_u32 s{sT1}, s{sT1}, {goff}"))
        g.append(ins(m0txt))
        for n in range(4):
            g.append(ins(f"buffer_load_dwordx4 v{WD[n]}, s[{SW}:{SW+3}], s{sT1} offen offset:{1024*n} {self.o['w_mod']} lds", tag=tag))
            G.append(g); g = []
        return G
    def x_soff(self, base_reg, tt):
        if not self.o.get("qrot"): return [ins(f"s_add_u32 s{sT1}, s{base_reg}, {tt*128}")]
        return [ins(f"s_add_u32 s{sT1}, s{sXR}, {tt*128}"), ins(f"s_and_b32 s{sT1}, s{sT1}, 1023"), ins(f"s_add_u32 s{sT1}, s{sT1}, s{base_reg}")]
    def dma_x(self, tag, base_reg, tt, m0a, m0b):
        G = []
        m = self.o['x_mod']
        g = self.x_soff(base_reg, tt) + [ins(m0a)]
        for n in range(4):
            g.append(ins(f"buffer_load_dwordx4 v{XD[n]}, s[{SX}:{SX+3}], s{sT1} offen offset:{1024*n} {m} lds", tag=tag))
            G.append(g); g = []
        g = [ins(f"s_add_u32 s{sT1}, s{sT1}, {4*8192}"), ins(m0b)]
        for n in range(2):
            g.append(ins(f"buffer_load_dwordx4 v{XD[n]}, s[{SX}:{SX+3}], s{sT1} offen offset:{1024*n} {m} lds", tag=tag))
            G.append(g); g = []
        return G
    def w_tile(self, t, nxt=0):
        m0 = f"s_add_u32 m0, s{sWl}, {WSLOT[t % 3]}"
        if self.o.get("qrot"): return self.dma_w(("w", t), sWo, nxt*256, m0, rot=t)
        return self.dma_w(("w", t), sWo, nxt*256 + t*262144, m0)
    def x_tile(self, tt):
        sl = XB if tt % 2 == 0 else XA
        return self.dma_x(("x", tt), sXo, tt, f"s_add_u32 m0, s{sXl}, {sl}", f"s_add_u32 m0, s{sXl}, {sl + 4096}")
    def warmup(self, nxt):
        if not self.o["warm"]: return []
        G = []
        def ld(v, srd, soff, off, mod):
            i = ins(f"buffer_load_dwordx4 a[252:255], v{v}, s[{srd}:{srd+3}], s{soff} offen offset:{off} {mod}", tag=("warm",))
            i.kind = "dma"; i.wr = set(); i.rd.discard("m0")
            return i
        for k in range(2):
            g = [ins(f"s_add_u32 s{sT1}, s{sWarmW}, {nxt*256 + k*262144}")]
            for n in range(4):
                g.append(ld(WD[n], SW, sT1, 1024*n, self.o['w_mod'])); G.append(g); g = []
        if nxt == 0 or self.o.get("warmx1", True):
            for k in range(2):
                g = [ins(f"s_add_u32 s{sT1}, s{sWarmX}, {k*128}")]
                for n in range(4):
                    g.append(ld(XD[n], SX, sT1, 1024*n, self.o['x_mod'])); G.append(g); g = []
                g = [ins(f"s_add_u32 s{sT1}, s{sT1}, {4*8192}")]
                for n in range(2):
                    g.append(ld(XD[n], SX, sT1, 1024*n, self.o['x_mod'])); G.append(g); g = []
        return G
    def next_item_prefetch(self, nxt=1):
        return self.w_tile(0, nxt) + self.x_tile(0) + self.w_tile(1, nxt) + self.w_tile(2, nxt) + self.x_tile(1)
    def dma_wo(self):
        G = []
        for half in range(2):
            g = [ins(f"s_add_u32 s{sT1}, s{sWOo}, {half*4096}"), ins(f"s_add_u32 m0, s{sWoM}, {half*4096}")]
            for n in range(4):
                g.append(ins(f"buffer_load_dwordx4 v{VST}, s[{SWO}:{SWO+3}], s{sT1} offen offset:{1024*n} nt lds", tag=("wo",)))
                G.append(g); g = []
        return G
    def o_store(self, n, mod, prev, force=False):
        g = []
        if n % 4 == 0 or force: g.append(ins(f"s_add_u32 s{sT2}, s{sOo}, {((n & ~3)*1024 - (4*6144 if prev else 0)) & 0xffffffff}"))
        g.append(ins(f"buffer_store_dwordx4 {rng('a', OS(n), 4)}, v{VST}, s[{SO}:{SO+3}], s{sT2} offen offset:{(n % 4)*1024} {mod}", tag=("o",)))
        return g
    def rd_k(self, par, kt, ks):
        return ins(f"ds_read_b128 {rng('a', KF(par, kt, ks), 4)}, v{KA+ks} offset:{par*8192 + kt*4096}")
    def rd_v(self, par, dt, kt):
        return ins(f"ds_read_b64_tr_b16 {rng('a', VF(par, dt) + 2*kt, 2)}, v{VA+dt} offset:{par*8192 + kt*4096}")
    def rd_w(self, t, T, h2):
        ks, u = T >> 1, T & 1
        return ins(f"ds_read_b64_tr_b16 {rng('a', WF(T) + 2*h2, 2)}, v{WA+ks} offset:{(t % 3)*16384 + h2*2048 + 8*u}")
    def rd_x(self, t, qt):
        tt = t >> 1
        return ins(f"ds_read_b128 {rng('a', XF(t % 2, qt), 4)}, v{XAD + (t & 1)} offset:{(24576 if tt % 2 == 0 else 0) + qt*2048}")

    def prologue(self):
        p = self.p
        if self.o.get("entry"): p("s_memrealtime s[100:101]")
        p("s_cmp_ge_u32 s2, 256")
        p("s_cbranch_scc1 K2_END")
        p("s_load_dwordx16 s[48:63], s[0:1], 0")
        p("s_load_dwordx8 s[64:71], s[0:1], 64")
        p("s_load_dwordx2 s[72:73], s[0:1], 96")
        p(f"v_lshrrev_b32 v1, 6, v0")
        p(f"v_and_b32 v0, 63, v0")
        p(f"v_readfirstlane_b32 s{sW}, v1")
        p("s_and_b32 s86, s2, 7")
        p("s_lshr_b32 s87, s2, 3")
        p(f"s_lshr_b32 s{sP}, s86, 2")
        p("s_and_b32 s88, s86, 1"); p("s_lshl_b32 s88, s88, 3"); p("s_and_b32 s82, s87, 7")
        p(f"s_add_u32 s{sB}, s88, s82")
        p("s_lshr_b32 s88, s86, 1"); p("s_and_b32 s88, s88, 1"); p("s_lshl_b32 s88, s88, 2"); p("s_lshr_b32 s83, s87, 3")
        p(f"s_add_u32 s{sHG}, s88, s83")
        p(f"s_and_b32 s{sHP}, s{sW}, 1")
        p(f"s_lshr_b32 s{sRH}, s{sW}, 1")
        p("s_waitcnt lgkmcnt(0)")
        p(f"s_cmp_eq_u32 s{sP}, 0")
        p(f"s_cselect_b32 s{SX}, s48, s58"); p(f"s_cselect_b32 s{SX+1}, s49, s59")
        p(f"s_cselect_b32 s{SW}, s54, s64"); p(f"s_cselect_b32 s{SW+1}, s55, s65")
        p(f"s_cselect_b32 s{SWO}, s56, s66"); p(f"s_cselect_b32 s{SWO+1}, s57, s67")
        p(f"s_cselect_b32 s90, s50, s60"); p(f"s_cselect_b32 s91, s51, s61")
        p(f"s_cselect_b32 s92, s52, s62"); p(f"s_cselect_b32 s93, s53, s63")
        p(f"s_cmp_eq_u32 s{sRH}, 0")
        p(f"s_cselect_b32 s{SKV}, s90, s92"); p(f"s_cselect_b32 s{SKV+1}, s91, s93")
        p(f"s_cselect_b32 s94, 64, 128"); p(f"s_cselect_b32 s95, 128, 0"); p("s_mov_b32 s96, 128"); p(f"s_cselect_b32 s96, 192, s96")
        p(f"s_cselect_b32 s97, 0, 1")
        p(f"s_cselect_b32 s{sKVl}, 0, 32768")
        for r, n in ((SX, X_BYTES), (SW, W_BYTES), (SWO, W_BYTES), (SKV, KV_BYTES)):
            p(f"s_mov_b32 s{r+2}, {n}"); p(f"s_mov_b32 s{r+3}, 0x00020000")
        p(f"s_mov_b32 s{SO}, s72"); p(f"s_mov_b32 s{SO+1}, s73"); p(f"s_mov_b32 s{SO+2}, 0"); p(f"s_mov_b32 s{SO+3}, 0x00020000")
        p(f"s_add_u32 s{SWT}, s72, {WOT_OFF}"); p(f"s_addc_u32 s{SWT+1}, s73, 0"); p(f"s_mov_b32 s{SWT+2}, {WOT_BYTES}"); p(f"s_mov_b32 s{SWT+3}, 0x00020000")
        p(f"s_lshl_b32 s88, s{sB}, 5"); p(f"s_lshl_b32 s89, s{sHG}, 2"); p("s_add_u32 s88, s88, s89"); p(f"s_lshl_b32 s89, s{sHP}, 1"); p("s_add_u32 s88, s88, s89")
        p(f"s_lshl_b32 s{sKVo}, s88, 17")
        p(f"s_lshl_b32 s89, s{sHP}, 14"); p(f"s_add_u32 s{sKVl}, s{sKVl}, s89")
        p(f"s_lshl_b32 s88, s{sW}, 16"); p(f"s_lshl_b32 s89, s{sHG}, 10"); p(f"s_add_u32 s{sWo}, s88, s89")
        p(f"s_lshl_b32 s{sWl}, s{sW}, 12")
        p(f"s_lshl_b32 s88, s82, 19"); p(f"s_add_u32 s{sWarmW}, s{sWo}, s88")
        p(f"s_mul_i32 s88, s{sB}, 196608"); p(f"s_mul_i32 s89, s{sW}, 49152"); p(f"s_add_u32 s{sXo}, s88, s89")
        p(f"s_mul_i32 s{sXl}, s{sW}, 6144")
        p(f"s_lshl_b32 s88, s83, 8"); p(f"s_add_u32 s{sWarmX}, s{sXo}, s88")
        if self.o.get("qrot"):
            assert not self.o["warm"]
            p("s_lshl_b32 s88, s83, 1"); p("s_add_u32 s88, s88, s82"); p("s_and_b32 s88, s88, 7")
            p(f"s_lshl_b32 s{sWR}, s88, 19"); p(f"s_lshl_b32 s{sXR}, s88, 7")
        p(f"s_mov_b32 s{sDrop}, {DROP}")
        p("s_mul_i32 s88, s2, 5"); p("s_lshr_b32 s89, s2, 4"); p("s_add_u32 s88, s88, s89"); p("s_and_b32 s88, s88, 15"); p(f"s_lshl_b32 s{sRot}, s88, 13")
        p(f"s_lshl_b32 s88, s{sP}, 4"); p(f"s_add_u32 s88, s88, s{sB}"); p("s_lshl_b32 s88, s88, 1"); p(f"s_add_u32 s88, s88, s{sRH}")
        p("s_lshl_b32 s88, s88, 7"); p(f"s_lshl_b32 s89, s{sHG}, 4"); p("s_add_u32 s88, s88, s89"); p(f"s_lshl_b32 s89, s{sHP}, 3"); p("s_add_u32 s88, s88, s89")
        p(f"s_mul_i32 s{sOo}, s88, 6144")
        p("s_and_b32 s88, s86, 3"); p("s_lshl_b32 s88, s88, 5"); p("s_add_u32 s88, s88, s87")
        p(f"s_lshl_b32 s89, s88, 15"); p(f"s_lshl_b32 s98, s{sW}, 13"); p(f"s_add_u32 s{sWOo}, s89, s98")
        p(f"s_lshl_b32 s89, s{sP}, 2"); p(f"s_add_u32 s89, s89, s{sW}"); p("s_lshl_b32 s89, s89, 7"); p("s_add_u32 s89, s89, s88"); p(f"s_lshl_b32 s{sWTo}, s89, 13")
        p(f"s_mov_b32 s{sC}, {f32(1.4426950408889634*128**-0.5)}")
        p(f"s_mov_b32 s{sItem}, 0")
        self.late_consts = True
        i_, g_, r_, c_ = "v14", "v8", "v9", "v10"
        p(f"v_and_b32 {i_}, 15, v0"); p(f"v_lshrrev_b32 {g_}, 4, v0"); p(f"v_lshrrev_b32 {r_}, 2, {i_}"); p(f"v_and_b32 {c_}, 3, {i_}")
        p(f"v_lshlrev_b32 v{VST}, 4, v0")
        p("v_lshrrev_b32 v11, 5, v0"); p("v_and_b32 v12, 15, v0"); p("v_lshlrev_b32 v13, 2, v11"); p("v_xor_b32 v12, v12, v13"); p("v_lshlrev_b32 v12, 4, v12")
        p("v_lshl_add_u32 v12, v11, 13, v12"); p("v_bfe_u32 v13, v0, 4, 1"); p(f"v_lshl_add_u32 v{WD[0]}, v13, 9, v12")
        p(f"v_xor_b32 v{WD[1]}, 128, v{WD[0]}"); p(f"v_add_u32 v{WD[2]}, {2*15360}, v{WD[0]}"); p(f"v_add_u32 v{WD[3]}, {3*15360}, v{WD[1]}"); p(f"v_add_u32 v{WD[1]}, 15360, v{WD[1]}")
        p("v_lshrrev_b32 v11, 3, v0"); p("v_and_b32 v12, 7, v0"); p(f"v_xor_b32 v12, v12, {g_}"); p("v_lshlrev_b32 v12, 4, v12")
        p(f"v_lshl_add_u32 v{XD[0]}, v11, 10, v12"); p(f"v_xor_b32 v{XD[1]}, 64, v{XD[0]}")
        p(f"v_add_u32 v{XD[2]}, {2*7168}, v{XD[0]}"); p(f"v_add_u32 v{XD[3]}, {3*7168}, v{XD[1]}"); p(f"v_add_u32 v{XD[1]}, 7168, v{XD[1]}")
        p(f"v_lshlrev_b32 v11, s97, {g_}"); p(f"v_xor_b32 v11, v11, {i_}"); p("v_lshlrev_b32 v11, 4, v11"); p(f"v_lshl_add_u32 v{DV}, {g_}, 8, v11")
        for k in range(1, 4): p(f"v_xor_b32 v{DV+k}, s{93+k}, v{DV}")
        self.lane = (i_, g_, r_, c_)
    def prologue2(self):
        p = self.p
        i_, g_, r_, c_ = self.lane
        p(f"s_lshl_b32 s88, s{sHP}, 14")
        p(f"v_xor_b32 v11, {g_}, {i_}"); p("v_lshlrev_b32 v11, 4, v11"); p(f"v_lshl_add_u32 v11, {i_}, 8, v11"); p(f"v_add_u32 v{KA}, s88, v11")
        for ks in range(1, 4): p(f"v_xor_b32 v{KA+ks}, {64*ks}, v{KA}")
        p(f"v_and_b32 v11, 1, {g_}"); p("v_lshlrev_b32 v11, 2, v11"); p(f"v_add_u32 v11, v11, {r_}"); p("v_lshlrev_b32 v11, 1, v11")
        p(f"v_lshrrev_b32 v12, 1, {c_}"); p("v_xor_b32 v11, v11, v12"); p("v_lshlrev_b32 v11, 4, v11")
        p(f"v_and_b32 v12, 1, {c_}"); p("v_lshl_add_u32 v11, v12, 3, v11")
        p(f"v_lshl_add_u32 v12, {g_}, 2, {r_}"); p("v_lshl_add_u32 v11, v12, 8, v11")
        p("s_add_u32 s89, s88, 32768"); p(f"v_add_u32 v{VA}, s89, v11")
        for dt in range(1, 8): p(f"v_xor_b32 v{VA+dt}, {32*dt}, v{VA}")
        p(f"s_lshl_b32 s88, s{sHP}, 4")
        p(f"v_add_u32 v11, s88, {c_}"); p(f"v_lshlrev_b32 v12, 2, {r_}"); p("v_xor_b32 v11, v11, v12"); p("v_lshlrev_b32 v11, 4, v11")
        p(f"v_lshl_add_u32 v12, {g_}, 3, {r_}"); p("v_lshl_add_u32 v11, v12, 9, v11"); p(f"v_add_u32 v{WA}, {WSLOT[0]}, v11")
        for ks in range(1, 4): p(f"v_xor_b32 v{WA+ks}, {64*ks}, v{WA}")
        p(f"s_mul_i32 s88, s{sRH}, {96*128}"); p(f"s_add_u32 s88, s88, {XA}")
        p(f"v_lshrrev_b32 v11, 1, {i_}"); p(f"v_xor_b32 v11, v11, {g_}"); p("v_lshlrev_b32 v11, 4, v11"); p(f"v_lshl_add_u32 v11, {i_}, 7, v11"); p(f"v_add_u32 v{XAD}, s88, v11")
        p(f"v_xor_b32 v{XAD+1}, 64, v{XAD}")
        p(f"s_mov_b32 s{sC2}, s{sC}"); p(f"s_mov_b32 s{sC2+1}, s{sC}")
        if self.o.get("fuse"):
            p(f"s_mov_b32 s{SFL}, s70"); p(f"s_mov_b32 s{SFL+1}, s71"); p(f"s_mov_b32 s{SFL+2}, 256"); p(f"s_mov_b32 s{SFL+3}, 0x00020000")
            sh = 16 if self.o.get("dbg") is not None else 0
            p(f"s_lshl_b32 s{sC1}, s{sP}, 2"); p(f"s_add_u32 s{sC1}, s{sC1}, {4*sh}")
            p(f"s_lshl_b32 s88, s{sP}, 4"); p(f"s_add_u32 s88, s88, s{sB}"); p(f"s_add_u32 s88, s88, {2+sh}"); p(f"s_lshl_b32 s{sC2o}, s88, 2")
            if self.o.get("rawwo"): p(f"s_mov_b32 s{sC1}, s{sC2o}")
        if self.o["msum"]:
            p("v_mov_b32 v11, 0x3f803f80")
            for r in range(4): p(f"v_accvgpr_write_b32 a{ONES+r}, v11")

    def stamp(self, fine=False):
        if not self.o["timing"]: return
        if fine and not self.o.get("fine"): return
        p = self.p
        p(f"s_memrealtime s[88:89]")
        p(f"s_memtime s[90:91]")
        p("s_waitcnt lgkmcnt(0)")
        p("s_mov_b32 m0, s99"); p("s_nop 1")
        p(f"v_writelane_b32 v5, s88, m0")
        p(f"v_writelane_b32 v1, s90, m0")
        p("s_add_u32 s99, s99, 1")
    def stamp_flush(self):
        if not self.o["timing"]: return
        p = self.p
        if self.o.get("dbg") is not None:
            p(f"s_cmp_eq_u32 s2, {self.o['dbg']}"); p("s_cselect_b32 s90, 64, 0"); p(f"s_cmp_eq_u32 s{sW}, 0"); p("s_cselect_b32 s90, s90, 0")
            p("s_mov_b32 s88, s70"); p("s_mov_b32 s89, s71"); p("s_mov_b32 s91, 0x00020000")
            src = "v1" if self.o.get("dbgcyc") else "v5"
            p("v_lshlrev_b32 v6, 2, v0")
            p(f"buffer_store_dword {src}, v6, s[88:91], 0 offen")
            if not self.o.get("fuse"):
                p("s_add_u32 s88, s88, 512"); p("s_addc_u32 s89, s89, 0"); p("s_cmp_lg_u32 s90, 0"); p("s_cselect_b32 s90, 52, 0")
                p(f"buffer_store_dword {src}, v6, s[88:91], 0 offen")
            return
        p(f"s_add_u32 s88, s72, {64<<20}"); p("s_addc_u32 s89, s73, 0"); p(f"s_mov_b32 s90, {1<<20}"); p("s_mov_b32 s91, 0x00020000")
        p(f"s_lshl_b32 s92, s2, 2"); p(f"s_add_u32 s92, s92, s{sW}"); p("s_lshl_b32 s92, s92, 9")
        p("v_lshlrev_b32 v6, 2, v0")
        p("buffer_store_dword v5, v6, s[88:91], s92 offen")
        p("buffer_store_dword v1, v6, s[88:91], s92 offen offset:256")

    def emit_groups(self, groups):
        for g in groups:
            for x in g: self.p.add(x)
    def keep(self, x):
        drop = self.o["drop"]; ph = self.phase
        if x.kind == "dma" and ph + "_dma" in drop: return False
        if x.kind == "ds_read" and ph + "_lds" in drop: return False
        if x.kind == "barrier" and ph + "_bar" in drop: return False
        if x.kind == "trans" and ph + "_exp" in drop: return False
        if x.kind == "valu" and x.txt.startswith("v_add_f32") and ph + "_add" in drop: return False
        if x.kind == "valu" and x.txt.startswith("v_cvt") and ph + "_cvt" in drop: return False
        if x.kind == "vstore" and ph + "_st" in drop: return False
        return True
    def run(self, mf, chains, pre=()):
        ch = [[([x for x in g if self.keep(x)], lo, hi) for g, lo, hi in c] for c in chains]
        ch = [[it for it in c if it[0]] for c in ch]
        if self.phase + "_mfma" in self.o["drop"]: mf = [ins("s_nop 0") for _ in mf]
        self.p.extend(gapfill(mf, ch, pre=[x for x in pre if self.keep(x)]))

    def spaced(self, G, lo, hi):
        n = len(G)
        out = []
        for k, g in enumerate(G):
            pos = lo + (k*(hi - lo + 1))//n
            out.append((g, pos, pos + 1))
        return out
    def qstep(self, t, stores=(), sig=False):
        p = self.p
        self.phase = "qp"
        mf = []
        for T in range(8):
            for qt in range(6):
                mf.append(mfma(acc(T, qt), "v", WF(T), "a", XF(t % 2, qt), "a", None if t == 0 else acc(T, qt)))
        need = []
        for qt in range(6): need += R("a", XF(t % 2, qt), 4)
        for T in range(6): need += R("a", WF(T), 4)
        pre = [wait_regs(need)]
        chains = []
        BG = self.o.get("bg", 11)
        slow = []
        if t < 15:
            bar = [wait_tag(("w", t+1))]
            if t % 2 == 1: bar.append(wait_tag(("x", (t+1) >> 1)))
            chains.append([(bar, BG-1, BG-1), ([ins("s_waitcnt lgkmcnt(0)"), ins("s_barrier")], BG, BG)])
            cw = []
            for T in range(8):
                lo = max(BG+1, 6*T + 5)
                cw += [([self.rd_w(t+1, T, 0)], lo, min(47, lo + 8)), ([self.rd_w(t+1, T, 1)], lo, min(47, lo + 9))]
            chains.append(cw)
            chains.append([([self.rd_x(t+1, qt)], BG+1, 40) for qt in range(6)])
            GW = self.w_tile(t+3) if t + 3 <= 15 else []
            early = []; GX = []
            if t % 2 == 1 and (t >> 1) + 2 <= 7: GX = self.x_tile((t >> 1) + 2)[:3]
            if t % 2 == 0 and t >= 2 and ((t-1) >> 1) + 2 <= 7:
                tt = ((t-1) >> 1) + 2; sl = XB if tt % 2 == 0 else XA
                early = self.x_tile(tt)[3:]
                early[0] = self.x_soff(sXo, tt) + [ins(f"s_add_u32 m0, s{sXl}, {sl}")] + early[0]
            if t == 0:
                early = self.w_tile(2) + self.x_tile(1)
                if self.o.get("w1late"): early = self.w_tile(1) + early
            late = GW + GX
            plan = self.o.get("kvplan", {10: (0, 0, 4), 11: (0, 4, 8), 12: (1, 0, 4), 13: (1, 4, 8)})
            if t in plan or str(t) in plan:
                slow = self.kv_pieces(*(plan.get(t) or plan.get(str(t))))
            c = []
            if t == 0:
                c = self.spaced(early + late, 0, 47); early = []; late = []
            if early:
                span = BG - 1
                for k, g in enumerate(early): c.append((g, int(k*span/len(early)), int(k*span/len(early)) + 1))
            hi = 47 if not (slow or stores) else (39 if len(slow) <= 2 else 32)
            if late: c += self.spaced(late, BG+2, hi)
            if slow: c += self.spaced(slow, (41 if len(slow) <= 2 else 34) if late else BG+2, 47)
            if c: chains.append(c)
        else:
            chains.append([([wait_tag(("kv", 0))], BG-1, BG-1), ([ins("s_waitcnt lgkmcnt(0)"), ins("s_barrier")], BG, BG)])
            G = self.kv_pieces(2, 0, 4 if self.o.get("look", 3) == 3 else 8)
            if self.o.get("kv15"): G = self.kv_pieces(*self.o["kv15"]) + G
            chains.append(self.spaced(G, BG+1, 47))
            ne = self.o.get("qearly", 0)
            if ne:
                c = []
                for qt in range(ne):
                    c += [([x], 14, 47) for x in self.q_convert(qt, 0, S(0, 0) + (qt % 4)*4)]
                chains.append(c)
        if self.o.get("womid"):
            if t == 2:
                W = self.wo_prep_groups(stage=12)
                blk = [ins(f"s_cmp_eq_u32 s{sItem}, 1"), ins("s_cbranch_scc1 L_nowo")] + [x for g in W for x in g]
                for x in blk: x.meta["alt"] = True
                blk.append(I("L_nowo:", "label"))
                chains.append([(blk, BG+1, BG+1)])
            if t == 4: chains.append([([ins(f"s_mov_b32 s{SO+2}, s{sSz1}")], 0, 2)])
            if t == 7: chains.append([([ins(f"s_mov_b32 s{SO+2}, s{sSz2}")], 0, 2)])
        if sig:
            chains.append([(self.signal(f"v_mov_b32 v{VPOLL+2}, s{sC1}"), BG+1, BG+3)])
        if stores:
            lo = 26 if t == 12 else 0
            if self.o.get("stA"): lo = {2: 41, 3: 36, 4: 30}[len(stores)]
            chains.append(self.spaced([self.o_store(n, self.o["store_mod"], True, force=bool(self.o.get("stA")) and n == stores[0]) for n in stores], lo, 47))
        self.run(mf, chains, pre)

    def q_convert(self, qt, ks, t0):
        a0, a1 = acc(2*ks, qt), acc(2*ks+1, qt)
        L = [ins(f"v_mul_f32 v{a+r}, s{sC}, v{a+r}") for a in (a0, a1) for r in range(4)]
        L += [ins(f"v_cvt_pk_bf16_f32 v{t0}, v{a0}, v{a0+1}"), ins(f"v_cvt_pk_bf16_f32 v{t0+1}, v{a0+2}, v{a0+3}"),
              ins(f"v_cvt_pk_bf16_f32 v{t0+2}, v{a1}, v{a1+1}"), ins(f"v_cvt_pk_bf16_f32 v{t0+3}, v{a1+2}, v{a1+3}")]
        L += [ins(f"v_accvgpr_write_b32 a{Q(qt,ks)+r}, v{t0+r}") for r in range(4)]
        return L
    def qproj_a(self):
        p = self.p
        p(f"s_lshl_b32 s{sTc}, s{sItem}, 17")
        p.wait_tag(("w", 0)); p.wait_tag(("x", 0))
        p("s_barrier")
        self.stamp()
        for T in range(8):
            p.add(self.rd_w(0, T, 0)); p.add(self.rd_w(0, T, 1))
        for qt in range(6): p.add(self.rd_x(0, qt))
        for t in range(12):
            pat = self.o.get("stpat", 2)
            if pat == 2: ss = [2*t, 2*t+1]
            elif pat == 3: ss = [3*t, 3*t+1, 3*t+2] if t < 8 else []
            elif pat == 4: ss = [4*(t//2) + k for k in range(4)] if t % 2 == 0 else []
            elif pat == 5: ss = [4*(t//2) + k for k in range(4)] if t % 2 == 1 else []
            self.qstep(t, ss if self.o.get("stA") else ())
            if t in (3, 7, 11): self.stamp(True)
    def qproj_b(self, last):
        p = self.p
        st = (lambda a, b: list(range(a, b))) if (last and not self.o.get("stA")) else (lambda a, b: [])
        self.qstep(12, st(0, 3)); self.qstep(13, st(3, 9)); self.qstep(14, st(9, 15))
        sig_late = self.o.get("siglate", False)
        self.qstep(15, st(15, 18), sig=bool(last and self.o.get("fuse") and not sig_late))
        self.stamp()
        for kt in range(2):
            for ks in range(4): p.add(self.rd_k(0, kt, ks))
        tmp = S(0, 0)
        rest = self.kv_pieces(2, 4, 8) if self.o.get("look", 3) == 3 else []
        late = st(18, 24)
        for qt in range(6):
            for ks in range(4):
                n = qt*4 + ks
                a0, a1 = acc(2*ks, qt), acc(2*ks+1, qt)
                if ks == 0 and qt < self.o.get("qearly", 0):
                    if qt < 4:
                        pass
                    continue
                if self.o.get("pk", True):
                    for a in (a0, a0+2, a1, a1+2): p(f"v_pk_mul_f32 v[{a}:{a+1}], v[{a}:{a+1}], s[{sC2}:{sC2+1}]")
                else:
                    for r in range(4): p(f"v_mul_f32 v{a0+r}, s{sC}, v{a0+r}")
                    for r in range(4): p(f"v_mul_f32 v{a1+r}, s{sC}, v{a1+r}")
                t0 = tmp + (n % 4)*4
                p(f"v_cvt_pk_bf16_f32 v{t0}, v{a0}, v{a0+1}")
                p(f"v_cvt_pk_bf16_f32 v{t0+1}, v{a0+2}, v{a0+3}")
                p(f"v_cvt_pk_bf16_f32 v{t0+2}, v{a1}, v{a1+1}")
                p(f"v_cvt_pk_bf16_f32 v{t0+3}, v{a1+2}, v{a1+3}")
                if late and n % 2 == 0 and n < 18:
                    m = late.pop(0)
                    for x in self.o_store(m, self.o["store_mod"], True, force=True): p.add(x)
                if self.o.get("dummy_mfma"):
                    for _ in range(self.o["dummy_mfma"]): p.add(mfma(252, "a", KF(0, 0, 0), "a", KF(0, 1, 0), "a", None))
                for r in range(4): p(f"v_accvgpr_write_b32 a{Q(qt,ks)+r}, v{t0+r}")
                if rest and n % 4 == 3 and n >= 7:
                    for x in rest.pop(0): p.add(x)
            if qt < 4:
                for dt in (2*qt, 2*qt+1):
                    p.add(self.rd_v(0, dt, 0)); p.add(self.rd_v(0, dt, 1))
        assert not rest and not late
        if last and self.o.get("fuse") and sig_late:
            for x in self.signal(f"v_mov_b32 v{VPOLL+2}, s{sC1}"): p.add(x)

    def period(self, n, dma=(), pre=(), early=(), extra=()):
        p = self.p
        self.phase = "at"
        msum = self.o["msum"]
        j, pp = divmod(n, 6)
        qk = []; pv = []
        if n < 96:
            sb = n % 2
            for kt in range(2):
                for ks in range(4):
                    qk.append(mfma(S(sb, kt), "v", KF(j % 2, kt, ks), "a", Q(pp, ks), "a", None if ks == 0 else S(sb, kt)))
        if n >= 2:
            jj, qt = divmod(n-2, 6)
            pb = (n-2) % 2
            for dt in range(8):
                pv.append(mfma(acc(dt, qt), "v", VF(jj % 2, dt), "a", P(pb), "v", None if jj == 0 else acc(dt, qt)))
        mf = []
        for k in range(8):
            if qk: mf.append(qk[k])
            if pv: mf.append(pv[k])
        if n >= 2 and msum:
            mf.append(mfma(LA(qt), "a", ONES, "a", P(pb), "v", None if jj == 0 else LA(qt)))
        nm = len(mf)
        sc = nm/17.0 if msum else nm/16.0
        def G(x): return min(nm-1, int(x*sc))
        chains = []
        if 1 <= n <= 96:
            jj2, qt2 = divmod(n-1, 6)
            sb = (n-1) % 2; pb2 = (n-1) % 2
            e = [S(sb, 0)+r for r in range(4)] + [S(sb, 1)+r for r in range(4)]
            chains.append([([ins(f"v_exp_f32 v{e[k]}, v{e[k]}")], G(2*k), G(2*k)) for k in range(8)])
            cv = []
            for k in range(8):
                if not msum: cv.append(([ins(f"v_add_f32 v{LS+qt2}, v{LS+qt2}, v{e[k]}")], G(2*k+1), G(2*k+1)))
                if k % 2 == 1:
                    cv.append(([ins(f"v_cvt_pk_bf16_f32 v{P(pb2)+k//2}, v{e[k-1]}, v{e[k]}")], G(2*k+1), G(2*k+1)))
            chains.append(cv)
        if n >= 2:
            jb, q = divmod(n-2, 6)
            if jb + 1 <= 15:
                par = (jb+1) % 2
                rds = []
                if q in (0, 1): rds = [self.rd_k(par, q, ks) for ks in range(4)]
                else:
                    for dt in range((q-2)*2, (q-2)*2+2): rds += [self.rd_v(par, dt, 0), self.rd_v(par, dt, 1)]
                gp = [1, 5, 9, 13] if q != 5 else [1, 5, 9, 10]
                chains.append([([x], G(gp[k]), G(gp[k])) for k, x in enumerate(rds)])
        if dma:
            nd = sum(1 for x in dma if x.kind == "dma")
            slots = {0: [], 1: [16], 2: [11, 16], 4: [3, 7, 11, 16], 8: [2, 4, 6, 8, 10, 12, 14, 16]}.get(nd) or [int(3 + (16-3)*k/(nd-1)) for k in range(nd)]
            ch = []; seen = 0
            for x in dma:
                if x.kind == "dma":
                    g = G(slots[seen]); seen += 1
                    grp = [x] if x.meta.get("credit") is None else [ins(f"s_waitcnt vmcnt({x.meta['credit']})"), x]
                    ch.append((grp, g, g))
                else:
                    ch.append(([x], 0, nm-1))
            for k in range(len(ch)-2, -1, -1):
                if ch[k][0][-1].kind != "dma": ch[k] = (ch[k][0], 0, max(0, ch[k+1][2] - (1 if ch[k+1][0][-1].kind == "dma" else 0)))
            chains.append(ch)
        if early: chains.append([([x], 0, nm-1) for x in early])
        if extra: chains.append([(g, (k*nm)//len(extra), nm-1) for k, g in enumerate(extra)])
        self.run(mf, chains, pre)

    def body(self, j, dmaG, tog=(), nper=6, extra=(), extra2=()):
        bar = []
        if j + 1 <= 15: bar.append(wait_tag(("kv", j+1)))
        if extra: bar.append(wait_tag(("wo",)))
        bar += [ins("s_waitcnt lgkmcnt(0)"), ins("s_barrier")]
        if self.o.get("baracct"):
            b0 = [ins("s_memtime s[92:93]"), ins("s_waitcnt lgkmcnt(0)")]
            b1 = [ins("s_memtime s[94:95]"), ins("s_waitcnt lgkmcnt(0)")]
            b2 = [ins("s_memtime s[96:97]"), ins("s_waitcnt lgkmcnt(0)"), ins("s_sub_u32 s98, s94, s92"), ins("s_add_u32 s100, s100, s98"),
                  ins("s_sub_u32 s98, s96, s94"), ins("s_add_u32 s101, s101, s98")]
            bar = b0 + bar[:1] + b1 + bar[1:] + b2
        tk = [x for x in tog if any(f"v{KA+z}," in x.txt for z in range(4))]
        tv = [x for x in tog if x not in tk]
        flat = [x for g in dmaG for x in g]
        cr = self.o.get("credit")
        if cr is not None and j <= 12:
            k = 0
            for x in flat:
                if x.kind == "dma":
                    x.meta["credit"] = cr[k % len(cr)] if isinstance(cr, list) else cr
                    k += 1
        nd = sum(1 for x in flat if x.kind == "dma")
        if nd == 8: cnt = self.o.get("dmacnt", [1, 1, 2, 1, 1, 2])
        else: cnt = [nd//6 + (1 if q < nd % 6 else 0) for q in range(6)]
        per = [[] for _ in range(6)]
        q = 0; seen = 0
        for x in flat:
            while q < 5 and seen >= cnt[q]: q += 1; seen = 0
            per[q].append(x)
            if x.kind == "dma": seen += 1
        for q in range(6):
            e = tv[:4] if q == 0 else (tv[4:] if q == 1 else [])
            ex = []
            if extra or extra2:
                xs = list(extra) + list(extra2)
                n = len(xs); ex = xs[q*n//6:(q+1)*n//6]
            self.period(6*j + 2 + q, dma=per[q], pre=(bar + tk) if q == 0 else (), early=e, extra=ex)

    def tog(self):
        return [ins(f"v_xor_b32 v{KA+x}, {PHI}, v{KA+x}") for x in range(4)] + [ins(f"v_xor_b32 v{VA+x}, {PHI}, v{VA+x}") for x in range(8)]
    def attention_shared(self):
        p = self.p
        look = self.o.get("look", 3)
        if look == 4:
            t3 = self.kv_pieces(3, 0, 8)
            self.period(0, dma=[x for g in t3[:4] for x in g]); self.period(1, dma=[x for g in t3[4:] for x in g])
            self.body(0, self.dma_kv_abs(("kv", 4), 0))
        else:
            self.period(0); self.period(1)
            self.body(0, self.dma_kv_abs(("kv", 3), 3))
        p(f"s_mov_b32 s{sM}, s{sKVl}")
        split = self.o.get("atsplit")
        runs = [("at", 0, 5, self.o.get("credit"))] if not split else [("at", 0, split[0], split[1]), ("au", split[0], 5, split[2])]
        saved = self.o.get("credit")
        for name, k0, k1, cr in runs:
            self.o["credit"] = cr
            p(f"s_mov_b32 s{sCnt}, {k1 - k0}")
            for k in range(k0, k1):
                j = 1 + 2*k
                p.raw(f"@@LB {name} {k - k0}")
                self.stamp(True)
                if look == 4:
                    g1 = self.dma_kv(("kv", j+4), f"s_add_u32 m0, s{sM}, 8192", f"s_add_u32 m0, s{sM}, 12288")
                    self.body(j, g1, tog=self.tog())
                    g2 = self.dma_kv(("kv", j+5), f"s_add_u32 m0, s{sM}, 0", f"s_add_u32 m0, s{sM}, 4096")
                    self.body(j+1, [[ins(f"s_xor_b32 s{sM}, s{sM}, {PHI}")]] + g2)
                else:
                    g1 = self.dma_kv(("kv", j+3), f"s_add_u32 m0, s{sM}, 0", f"s_add_u32 m0, s{sM}, 4096")
                    self.body(j, g1, tog=self.tog())
                    g2 = self.dma_kv(("kv", j+4), f"s_add_u32 m0, s{sM}, 8192", f"s_add_u32 m0, s{sM}, 12288")
                    g2[-1] = g2[-1] + [ins(f"s_xor_b32 s{sM}, s{sM}, {PHI}")]
                    self.body(j+1, g2)
                p(f"s_sub_u32 s{sCnt}, s{sCnt}, 1"); p(f"s_cmp_lg_u32 s{sCnt}, 0"); p(f"s_cbranch_scc1 L_{name}")
                p.raw(f"@@LE {name} {k - k0}")
        self.o["credit"] = saved if not split else split[2]
        if look == 4:
            self.body(11, self.dma_kv_abs(("kv", 15), 3), tog=self.tog())
            self.body(12, [])
        else:
            self.body(11, self.dma_kv_abs(("kv", 14), 2), tog=self.tog())
            self.body(12, self.dma_kv_abs(("kv", 15), 3))
        self.o["credit"] = saved
    def attention_tail(self, last):
        fuse = self.o.get("fuse")
        prep_here = ((not last) if fuse else last) and not self.o.get("woearly") and not self.o.get("womid") and not self.o.get("rawwo")
        self.stamp(True)
        if prep_here:
            W = self.wo_prep_groups(); h = 9 + 4*3
            self.body(13, self.dma_wo_last(), tog=self.tog())
            self.body(14, [], extra=W[:h])
            self.body(15, (self.w_tile(0, 1) + self.x_tile(0) + ([] if self.o.get("w1late") else self.w_tile(1, 1))) if not last else [], tog=self.tog(), extra2=W[h:])
        elif not last:
            self.body(13, self.warm_wo() if self.o.get("rawwo") else [], tog=self.tog())
            self.body(14, [])
            self.body(15, self.w_tile(0, 1) + self.x_tile(0) + ([] if self.o.get("w1late") else self.w_tile(1, 1)), tog=self.tog())
        else:
            self.body(13, [], tog=self.tog(), extra2=[[x] for x in self.k3_setup()])
            self.body(14, [], extra2=[self.poll_issue(f"v_mov_b32 VDST, s{sC1}")] + ([[x] for x in self.k3_setup2()] if self.o.get("rawwo") and self.o.get("apre", False) else []))
            if self.o.get("rawwo") and self.o.get("apre", False):
                A3 = self.k3_loads(0, 0, 0, "A") + self.k3_loads(1, 1, 1, "A") + self.k3_loads(2, 2, 2, "A")
                self.body(15, A3, tog=self.tog())
            else:
                self.body(15, [], tog=self.tog())
            self.poll_check(8 if self.o.get('rawwo') else 128)
    def wo_prep_groups(self, stage=False):
        setup = [ins("v_and_b32 v33, 15, v0"), ins("v_lshrrev_b32 v34, 4, v0"), ins("v_lshrrev_b32 v35, 2, v33"), ins("v_and_b32 v33, 3, v33"),
                 ins("v_lshl_add_u32 v32, v34, 2, v35"), ins("v_lshlrev_b32 v32, 10, v32"), ins("v_lshl_add_u32 v32, v33, 4, v32"),
                 ins(f"s_lshl_b32 s88, s{sW}, 8"), ins("v_add_u32 v32, s88, v32")]
        G = [[x] for x in setup]
        mod = self.o['last_store_mod']
        for nt in range(8):
            u, par = nt >> 1, nt & 1
            d = 252 if not stage else OS(nt + (0 if stage is True else stage))
            G.append([ins(f"ds_read_b64_tr_b16 a[{d}:{d+1}], v32 offset:{64*u + 8*par}")])
            G.append([ins(f"ds_read_b64_tr_b16 a[{d+2}:{d+3}], v32 offset:{16384 + 64*u + 8*par}")])
            if stage: continue
            g = []
            if nt % 4 == 0: g.append(ins(f"s_add_u32 s{sT2}, s{sWTo}, {nt*1024}"))
            g.append(ins(f"buffer_store_dwordx4 a[{d}:{d+3}], v{VST}, s[{SWT}:{SWT+3}], s{sT2} offen offset:{(nt % 4)*1024} {mod}"))
            G.append(g)
        return G
    def warm_wo(self):
        G = []
        for half in range(2):
            g = [ins(f"s_add_u32 s{sT1}, s{sWOo}, {half*4096}")]
            for n in range(4):
                i = ins(f"buffer_load_dwordx4 a[252:255], v{VST}, s[{SWO}:{SWO+3}], s{sT1} offen offset:{1024*n}", tag=("warm",))
                i.kind = "dma"; i.wr = set(); i.rd.discard("m0")
                g.append(i); G.append(g); g = []
        return G
    def dma_wo_last(self):
        G = []
        for half in range(2):
            g = [ins(f"s_add_u32 s{sT1}, s{sWOo}, {half*4096}"), ins(f"s_lshl_b32 s{sWoM}, s{sW}, 13"), ins(f"s_add_u32 m0, s{sWoM}, {half*4096}")]
            for n in range(4):
                g.append(ins(f"buffer_load_dwordx4 v{VST}, s[{SWO}:{SWO+3}], s{sT1} offen offset:{1024*n} nt lds", tag=("wo",)))
                G.append(g); g = []
        return G

    FLAG = 131072
    def softmax_check(self, item):
        p = self.p
        t = S(0, 0)
        for qt in range(6): p(f"v_accvgpr_read_b32 v{t+qt}, a{LA(qt)}")
        p(f"v_max3_f32 v{t+6}, v{t}, v{t+1}, v{t+2}"); p(f"v_min3_f32 v{t+7}, v{t}, v{t+1}, v{t+2}")
        p(f"v_max3_f32 v{t+6}, v{t+6}, v{t+3}, v{t+4}"); p(f"v_min3_f32 v{t+7}, v{t+7}, v{t+3}, v{t+4}")
        p(f"v_max_f32 v{t+6}, v{t+6}, v{t+5}"); p(f"v_min_f32 v{t+7}, v{t+7}, v{t+5}")
        p(f"v_cmp_nge_f32 vcc, {f32(2.0**20)}, v{t+6}")
        p("s_mov_b64 s[88:89], vcc")
        p(f"v_cmp_nle_f32 vcc, {f32(2.0**-12)}, v{t+7}")
        p("s_or_b64 s[88:89], s[88:89], vcc")
        p("s_cmp_lg_u64 s[88:89], 0"); p("s_cselect_b32 s88, 1, 0")
        p(f"v_mov_b32 v{t}, s88"); p(f"s_lshl_b32 s89, s{sW}, 2"); p(f"s_add_u32 s89, s89, {self.FLAG}"); p(f"v_mov_b32 v{t+1}, s89")
        p(f"ds_write_b32 v{t+1}, v{t}")
        p("s_waitcnt lgkmcnt(0)"); p("s_barrier")
        p(f"v_mov_b32 v{t+1}, {self.FLAG}")
        p(f"ds_read_b128 v[{t+4}:{t+7}], v{t+1}")
        p(f"v_or_b32 v{t+4}, v{t+4}, v{t+5}"); p(f"v_or_b32 v{t+6}, v{t+6}, v{t+7}"); p(f"v_or_b32 v{t+4}, v{t+4}, v{t+6}")
        p(f"v_readfirstlane_b32 s88, v{t+4}")
        p("s_cmp_lg_u32 s88, 0")
        p("s_cbranch_scc1 L_FB")
        p.raw(f"L_OE{item}:")

    def fallback(self):
        q = K2(self.o); q.phase = "fb"; p = q.p
        M = LS
        def load_tile():
            p(f"s_mov_b32 s{sT2}, s{sTc}")
            q.emit_groups(q.dma_kv_abs(("fb",), 0))
            p("s_waitcnt vmcnt(0)"); p("s_barrier")
        def qk(qt):
            for kt in range(2):
                for ks in range(4):
                    p.add(mfma(S(0, kt), "v", KF(0, kt, ks), "a", Q(qt, ks), "a", None if ks == 0 else S(0, kt)))
        p.raw("L_FB:")
        p("s_waitcnt vmcnt(0) lgkmcnt(0)"); p("s_barrier")
        p(f"s_mov_b32 s{SKV+2}, {KV_BYTES}")
        for qt in range(6): p(f"v_mov_b32 v{M+qt}, 0xff800000")
        p(f"s_lshl_b32 s{sTc}, s{sItem}, 17"); p(f"s_mov_b32 s{sCnt}, 16")
        p.raw("L_FB1:")
        load_tile()
        for kt in range(2):
            for ks in range(4): p.add(q.rd_k(0, kt, ks))
        for qt in range(6):
            qk(qt)
            e = [S(0, 0)+r for r in range(4)] + [S(0, 1)+r for r in range(4)]
            for k in range(0, 8, 2): p(f"v_max3_f32 v{M+qt}, v{e[k]}, v{e[k+1]}, v{M+qt}")
        p("s_waitcnt lgkmcnt(0)"); p("s_barrier")
        p(f"s_sub_u32 s{sCnt}, s{sCnt}, 1"); p(f"s_cmp_lg_u32 s{sCnt}, 0"); p("s_cbranch_scc1 L_FB1")
        t = S(1, 0)
        for qt in range(6):
            m = M + qt
            p(f"v_mov_b32 v{t}, v{m}"); p(f"v_permlane32_swap_b32 v{t}, v{m}"); p(f"v_max_f32 v{m}, v{m}, v{t}")
            p(f"v_mov_b32 v{t}, v{m}"); p(f"v_permlane16_swap_b32 v{t}, v{m}"); p(f"v_max_f32 v{m}, v{m}, v{t}")
        for r in range(192): p(f"v_mov_b32 v{ACC+r}, 0")
        p(f"v_mov_b32 v{t}, 0")
        for r in range(24): p(f"v_accvgpr_write_b32 a{LA(0)+r}, v{t}")
        p(f"s_lshl_b32 s{sTc}, s{sItem}, 17"); p(f"s_mov_b32 s{sCnt}, 16")
        p("s_nop 7")
        p.raw("L_FB2:")
        load_tile()
        for kt in range(2):
            for ks in range(4): p.add(q.rd_k(0, kt, ks))
        for dt in range(8):
            p.add(q.rd_v(0, dt, 0)); p.add(q.rd_v(0, dt, 1))
        for qt in range(6):
            qk(qt)
            e = [S(0, 0)+r for r in range(4)] + [S(0, 1)+r for r in range(4)]
            for k in range(8): p(f"v_sub_f32 v{e[k]}, v{e[k]}, v{M+qt}")
            for k in range(8): p(f"v_exp_f32 v{e[k]}, v{e[k]}")
            for k in range(0, 8, 2): p(f"v_cvt_pk_bf16_f32 v{P(0)+k//2}, v{e[k]}, v{e[k+1]}")
            for dt in range(8): p.add(mfma(acc(dt, qt), "v", VF(0, dt), "a", P(0), "v", acc(dt, qt)))
            p.add(mfma(LA(qt), "a", ONES, "a", P(0), "v", LA(qt)))
        p("s_waitcnt lgkmcnt(0)"); p("s_nop 7"); p("s_nop 7"); p("s_barrier")
        p(f"s_sub_u32 s{sCnt}, s{sCnt}, 1"); p(f"s_cmp_lg_u32 s{sCnt}, 0"); p("s_cbranch_scc1 L_FB2")
        p("s_nop 7"); p("s_nop 7")
        p(f"s_cmp_eq_u32 s{sItem}, 0"); p("s_cbranch_scc1 L_OE0")
        if self.o.get("fuse"):
            for x in self.k3_setup(): p.add(x)
            if self.o.get("rawwo") and self.o.get("apre", False):
                for x in self.k3_setup2(): p.add(x)
                for g in self.k3_loads(0, 0, 0, "A") + self.k3_loads(1, 1, 1, "A") + self.k3_loads(2, 2, 2, "A"):
                    for x in g: p.add(x)
        p("s_branch L_OE1")
        L, st = finalize(p.L)
        return L

    def signal(self, offreg_txt, uid=None):
        uid = uid or self.uid()
        L = [ins(f"s_cmp_lg_u32 s{sW}, 0"), ins(f"s_cbranch_scc1 L_sig{uid}"),
             ins(f"v_mov_b32 v{VPOLL+1}, 1"), ins(offreg_txt), ins("s_mov_b64 exec, 1"),
             ins(f"buffer_atomic_add v{VPOLL+1}, v{VPOLL+2}, s[{SFL}:{SFL+3}], 0 offen sc1"),
             ins("s_mov_b64 exec, -1")]
        for x in L: x.meta["alt"] = True
        L.append(I(f"L_sig{uid}:", "label"))
        return L
    def uid(self):
        self._uid = getattr(self, "_uid", 0) + 1
        return self._uid
    def poll_issue(self, off_txt):
        return [ins(off_txt.replace("VDST", f"v{VPOLL+3}")), ins(f"buffer_load_dword v{VPOLL}, v{VPOLL+3}, s[{SFL}:{SFL+3}], 0 offen sc1")]
    def poll_check(self, target):
        p = self.p
        uid = self.uid()
        p(f"v_readfirstlane_b32 s88, v{VPOLL}")
        p(f"s_cmp_ge_u32 s88, {target}"); p(f"s_cbranch_scc1 L_ok{uid}")
        L = [f"s_mov_b32 s89, 0x40000", f"L_spin{uid}:", "s_sleep 2",
             f"buffer_load_dword v{VPOLL}, v{VPOLL+3}, s[{SFL}:{SFL+3}], 0 offen sc1", "s_waitcnt vmcnt(0)",
             f"v_readfirstlane_b32 s88, v{VPOLL}", "s_nop 3", "s_sub_u32 s89, s89, 1", "s_cmp_eq_u32 s89, 0", f"s_cbranch_scc1 L_ok{uid}",
             f"s_cmp_lt_u32 s88, {target}", f"s_cbranch_scc1 L_spin{uid}"]
        for t in L: p.add(I(t, "label", verbatim=True))
        p.raw(f"L_ok{uid}:")

    def k3_setup(self):
        L = []
        A = lambda t: L.append(ins(t))
        A(f"s_and_b32 s88, s{sHG}, 3"); A(f"s_lshr_b32 s89, s{sHG}, 2")
        A(f"s_lshl_b32 s90, s{sP}, 2"); A("s_add_u32 s90, s90, s88"); A("s_lshl_b32 s90, s90, 7"); A(f"s_lshl_b32 s91, s{sW}, 5"); A("s_add_u32 s90, s90, s91"); A("s_lshl_b32 s90, s90, 13")
        rot = self.o.get("k3rot", True)
        if rot: A(f"s_and_b32 s{kRho}, s{sB}, 3"); A(f"s_add_u32 s{kRho}, s{kRho}, s{sW}")
        else: A(f"s_mov_b32 s{kRho}, s{sW}")
        for pr in range(4):
            A(f"s_add_u32 s91, s{kRho}, {pr}"); A("s_and_b32 s91, s91, 3"); A("s_lshl_b32 s91, s91, 11"); A(f"s_add_u32 s{kA+pr}, s90, s91")
        if rot: A("s_lshr_b32 s91, s88, 1"); A(f"s_add_u32 s{kSig}, s88, s91")
        else: A(f"s_mov_b32 s{kSig}, 0")
        for qt in range(6):
            A(f"s_add_u32 s91, s{kSig}, {qt}"); A("s_cmp_ge_u32 s91, 6"); A("s_cselect_b32 s98, 6, 0"); A("s_sub_u32 s91, s91, s98"); A("s_lshl_b32 s91, s91, 10")
            A(f"v_add_u32 v{VBQ+qt}, s91, v{VST}")
        A(f"s_lshl_b32 s90, s{sP}, 4"); A(f"s_add_u32 s90, s90, s{sB}"); A("s_lshl_b32 s90, s90, 1"); A("s_add_u32 s90, s90, s89"); A("s_lshl_b32 s90, s90, 7")
        A(f"s_lshl_b32 s91, s{sW}, 5"); A("s_add_u32 s90, s90, s91"); A(f"s_mul_i32 s{kBo}, s90, 6144")
        A(f"s_mul_i32 s90, s{sB}, 192"); A("s_mul_i32 s91, s89, 96"); A("s_add_u32 s90, s90, s91"); A("s_lshl_b32 s90, s90, 11")
        A(f"s_lshl_b32 s91, s{sP}, 10"); A("s_add_u32 s90, s90, s91"); A("s_lshl_b32 s91, s88, 8"); A("s_add_u32 s90, s90, s91")
        A(f"s_and_b32 s91, s{kRho}, 3"); A("s_lshl_b32 s91, s91, 6"); A(f"s_add_u32 s{kOut}, s90, s91")
        A(f"s_mov_b32 s{SX}, s68"); A(f"s_mov_b32 s{SX+1}, s69"); A(f"s_mov_b32 s{SX+2}, {OUT_BYTES}"); A(f"s_mov_b32 s{SX+3}, 0x00020000")
        A(f"v_add_u32 v{VB4}, 4096, v{VST}")
        if self.o.get("rawwo"):
            A(f"s_lshl_b32 s90, s{sW}, 20"); A("s_lshl_b32 s91, s88, 8"); A(f"s_add_u32 s{kA}, s90, s91")
            A(f"s_lshl_b32 s{kA+1}, s{sW}, 15")
        return L
    def k3_setup2(self):
        L = []
        A = lambda t: L.append(ins(t))
        A("v_and_b32 v32, 15, v0"); A("v_lshrrev_b32 v33, 4, v0"); A("v_lshlrev_b32 v35, 2, v33"); A("v_xor_b32 v35, v35, v32"); A("v_lshlrev_b32 v35, 4, v35")
        A(f"v_lshl_add_u32 v{VAD2[0]}, v33, 10, v35")
        for n in range(1, 4): A(f"v_add_u32 v{VAD2[n]}, {n*3072}, v{VAD2[0]}")
        A("v_lshrrev_b32 v35, 2, v32"); A("v_and_b32 v32, 3, v32")
        A("v_lshl_add_u32 v33, v33, 2, v35"); A("v_lshlrev_b32 v33, 8, v33"); A(f"v_add_u32 v33, s{kA+1}, v33")
        A("v_lshlrev_b32 v35, 2, v35")
        for pr in range(4):
            A(f"s_add_u32 s91, s{kRho}, {pr}"); A("s_and_b32 s91, s91, 3"); A("s_lshl_b32 s91, s91, 2")
            A(f"v_add_u32 v{VAR2+pr}, s91, v32"); A(f"v_xor_b32 v{VAR2+pr}, v{VAR2+pr}, v35"); A(f"v_lshl_add_u32 v{VAR2+pr}, v{VAR2+pr}, 4, v33")
        return L
    def k3_loads(self, b, o, j=None, part=None):
        m = self.o.get("k3_ld", "sc1")
        raw = self.o.get("rawwo")
        bf = BF2 if raw else BF
        G = []
        for qt in range(6):
            g = [ins(f"s_add_u32 s{kT0}, s{kBo}, {o*6144}")] if qt == 0 else []
            g.append(ins(f"buffer_load_dwordx4 {rng('a', bf(b, qt), 4)}, v{VBQ+qt}, s[{SO}:{SO+3}], s{kT0} offen {m}"))
            G.append(g)
        if raw:
            for half in range(2):
                g = [ins(f"s_add_u32 s{kT1}, s{kA}, {o*32768 + half*16384}"), ins(f"s_add_u32 m0, s{kA+1}, {b*8192 + half*4096}")]
                for n in range(4):
                    g.append(ins(f"buffer_load_dwordx4 v{VAD2[n]}, s[{SWO}:{SWO+3}], s{kT1} offen offset:{1024*n} lds", tag=("A", j)))
                    G.append(g); g = []
            if part == "A": return G[6:]
            if part == "B": return G[:6]
            if self.o.get("afirst"): G = G[6:] + G[:6]
            return G
        for pr in range(4):
            t = kT1 if pr % 2 == 0 else kT0
            G.append([ins(f"s_add_u32 s{t}, s{kA+pr}, {o*8192}"),
                      ins(f"buffer_load_dwordx4 {rng('a', AF(b, 2*pr), 4)}, v{VST}, s[{SWT}:{SWT+3}], s{t} offen {m}")])
            G.append([ins(f"buffer_load_dwordx4 {rng('a', AF(b, 2*pr+1), 4)}, v{VST}, s[{SWT}:{SWT+3}], s{t} offen offset:1024 {m}")])
        return G
    def k3_tr(self, t):
        L = []
        for nu in range(8):
            pr, par = nu >> 1, nu & 1
            d = AF2(t % 2, nu)
            L.append(ins(f"ds_read_b64_tr_b16 a[{d}:{d+1}], v{VAR2+pr} offset:{(t % 4)*8192 + 8*par}"))
            L.append(ins(f"ds_read_b64_tr_b16 a[{d+2}:{d+3}], v{VAR2+pr} offset:{(t % 4)*8192 + 4096 + 8*par}"))
        return L
    def k3_adv(self, steps):
        if self.o.get("rawwo"):
            return [ins(f"s_add_u32 s{kA}, s{kA}, {(steps*32768) & 0xffffffff}"), ins(f"s_add_u32 s{kBo}, s{kBo}, {(steps*6144) & 0xffffffff}")]
        return [ins(f"s_add_u32 s{kA+pr}, s{kA+pr}, {(steps*8192) & 0xffffffff}") for pr in range(4)] + [ins(f"s_add_u32 s{kBo}, s{kBo}, {(steps*6144) & 0xffffffff}")]
    def k3_step(self, t, G, extra=(), dst=None, order=None, post=None):
        p = self.p
        dst = dst if dst is not None else []
        raw = self.o.get("rawwo")
        b = t % 4
        af = (lambda nu: AF2(t % 2, nu)) if raw else (lambda nu: AF(b, nu))
        bf = (lambda qt: BF2(b, qt)) if raw else (lambda qt: BF(b, qt))
        tr = []
        if raw and t + 1 <= 31:
            p.wait_tag(("A", t+1)); tr = self.k3_tr(t+1)
        n = 0
        extra = list(extra)
        for nu in (order or range(8)):
            for qt in range(6):
                p.add(mfma(oacc(nu, qt), "v", af(nu), "a", bf(qt), "a", None if t == 0 else oacc(nu, qt)))
                if n % 3 == 1 and n//3 < len(G):
                    for x in G[n//3]: p.add(x)
                elif tr and n % 3 != 1 and n >= 2: p.add(tr.pop(0))
                if n == 44:
                    for x in extra: p.add(x)
                if n in (8, 17, 26, 35, 43) and dst:
                    for x in dst.pop(0): p.add(x)
                if post: post(nu, qt)
                n += 1
        assert not tr
    def k3_main(self):
        p = self.p
        D = self.deferred
        if self.o.get("rawwo"):
            p.wait_tag(("A", 0))
            for x in self.k3_tr(0): p.add(x)
        if D:
            assert len(D) <= 24
            self.k3_step(0, self.k3_loads(3, 3, 3), extra=self.k3_adv(8), dst=D)
            for t in range(1, 9):
                i = (t-1) % 4
                self.k3_step(t, self.k3_loads((t+3) % 4, i, t+3), extra=self.k3_adv(8) if i == 3 else [], dst=D)
                if t == self.o.get("sig2", 7 if self.o.get("rawwo") else 6):
                    p.wait_tag(("o",)); p("s_barrier")
                    for x in self.signal(f"v_mov_b32 v{VPOLL+2}, s{sC2o}", uid="g2"): p.add(x)
            assert not D
            for i in range(4):
                t = 9 + i
                self.k3_step(t, self.k3_loads((t+3) % 4, i, t+3), extra=self.k3_adv(8) if i == 3 else [])
                if i == 2:
                    for x in self.poll_issue(f"v_mov_b32 VDST, s{sC2o}"): p.add(x)
        else:
            self.k3_step(0, self.k3_loads(3, 3, 3), extra=self.k3_adv(8))
            p(f"s_mov_b32 s{kCnt}, 3")
            for k in range(3):
                p.raw(f"@@LB k3a {k}")
                for i in range(4):
                    t = 1 + 4*k + i
                    ex = self.k3_adv(8) if i == 3 else []
                    self.k3_step(t, self.k3_loads((t+3) % 4, i, t+3), extra=ex)
                    if i == 1:
                        uid = "k3s"
                        p(f"s_cmp_lg_u32 s{kCnt}, 3"); p(f"s_cbranch_scc1 L_{uid}")
                        p.wait_tag(("o",)); p("s_barrier")
                        for x in self.signal(f"v_mov_b32 v{VPOLL+2}, s{sC2o}", uid="g2"): p.add(x)
                        p.raw(f"L_{uid}:")
                    if i == 2:
                        for x in self.poll_issue(f"v_mov_b32 VDST, s{sC2o}"): p.add(x)
                p(f"s_sub_u32 s{kCnt}, s{kCnt}, 1"); p(f"s_cmp_lg_u32 s{kCnt}, 0"); p("s_cbranch_scc1 L_k3a")
                p.raw(f"@@LE k3a {k}")
        self.stamp()
        for x in self.k3_adv(4 - 32): p.add(x)
        self.poll_check(16 if self.o.get('rawwo') else 8)
        for i in range(4):
            t = 13 + i
            self.k3_step(t, self.k3_loads((t+3) % 4, i, t+3), extra=self.k3_adv(8) if i == 3 else [])
        p(f"s_mov_b32 s{kCnt}, 3")
        for k in range(3):
            p.raw(f"@@LB k3b {k}")
            for i in range(4):
                t = 17 + 4*k + i
                self.k3_step(t, self.k3_loads((t+3) % 4, i, t+3), extra=self.k3_adv(8) if i == 3 else [])
            p(f"s_sub_u32 s{kCnt}, s{kCnt}, 1"); p(f"s_cmp_lg_u32 s{kCnt}, 0"); p("s_cbranch_scc1 L_k3b")
            p.raw(f"@@LE k3b {k}")
        for t in (29, 30): self.k3_step(t, [])
        if self.o.get("redovl", True):
            for pr, v in ((1, 7), (2, 2), (3, 3)):
                p(f"s_add_u32 s88, s{sW}, {pr}"); p("s_and_b32 s88, s88, 3"); p("s_mul_i32 s88, s88, 36864"); p(f"s_add_u32 s88, s88, {(pr-1)*12288}")
                p(f"v_add_u32 v{v}, s88, v{VST}")
            if self.o.get("rawwo"):
                p("s_waitcnt lgkmcnt(0)"); p("s_barrier")
            pend = []
            def post(nu, qt):
                if pend and qt in (1, 3, 5): p.add(pend.pop(0))
                if qt == 5 and nu >= 2:
                    pr, par = nu >> 1, nu & 1
                    v = {1: 7, 2: 2, 3: 3}[pr]
                    pend.extend(ins(f"ds_write_b128 v{v}, v[{oacc(nu, q)}:{oacc(nu, q)+3}] offset:{(par*6 + q)*1024}") for q in range(6))
            self.k3_step(31, [], order=[2, 3, 4, 5, 6, 7, 0, 1], post=post)
            self.red_pending = pend
        else:
            assert not self.o.get("rawwo")
            self.k3_step(31, [])
        self.stamp()
        if self.o.get("redovl", True):
            for x in self.red_pending: p.add(x)
            p(f"s_mul_i32 s88, s{sW}, 36864"); p(f"v_add_u32 v8, s88, v{VST}")
        else:
            for pr, v in ((1, 7), (2, 2), (3, 3)):
                p(f"s_add_u32 s88, s{sW}, {pr}"); p("s_and_b32 s88, s88, 3"); p("s_mul_i32 s88, s88, 36864"); p(f"s_add_u32 s88, s88, {(pr-1)*12288}")
                p(f"v_add_u32 v{v}, s88, v{VST}")
            p(f"s_mul_i32 s88, s{sW}, 36864"); p(f"v_add_u32 v8, s88, v{VST}")
            for pr, v in ((1, 7), (2, 2), (3, 3)):
                for par in range(2):
                    for qt in range(6):
                        a = oacc(2*pr + par, qt)
                        p(f"ds_write_b128 v{v}, v[{a}:{a+3}] offset:{(par*6 + qt)*1024}")
        p("s_waitcnt lgkmcnt(0)")
        p("s_barrier")
        for sl in range(3):
            for par in range(2):
                for qt in range(6):
                    a = oacc(2*(sl+1) + par, qt)
                    p(f"ds_read_b128 v[{a}:{a+3}], v8 offset:{sl*12288 + (par*6 + qt)*1024}")
        p("v_and_b32 v12, 15, v0"); p("v_lshrrev_b32 v13, 4, v0"); p("v_lshlrev_b32 v12, 11, v12"); p("v_lshl_add_u32 v9, v13, 4, v12")
        for qt in range(6):
            for par in range(2):
                a = oacc(par, qt)
                for sl in range(3):
                    s_ = oacc(2*(sl+1) + par, qt)
                    for r in (0, 2): p(f"v_pk_add_f32 v[{a+r}:{a+r+1}], v[{a+r}:{a+r+1}], v[{s_+r}:{s_+r+1}]")
            a0, a1 = oacc(0, qt), oacc(1, qt)
            t0 = 16 + (qt % 4)*4
            p(f"v_cvt_pk_bf16_f32 v{t0}, v{a0}, v{a0+1}"); p(f"v_cvt_pk_bf16_f32 v{t0+1}, v{a0+2}, v{a0+3}")
            p(f"v_cvt_pk_bf16_f32 v{t0+2}, v{a1}, v{a1+1}"); p(f"v_cvt_pk_bf16_f32 v{t0+3}, v{a1+2}, v{a1+3}")
            p(f"s_add_u32 s88, s{kSig}, {qt}"); p("s_cmp_ge_u32 s88, 6"); p("s_cselect_b32 s89, 6, 0"); p("s_sub_u32 s88, s88, s89"); p("s_lshl_b32 s88, s88, 15")
            p(f"s_add_u32 s{kT0}, s{kOut}, s88")
            p(f"buffer_store_dwordx4 v[{t0}:{t0+3}], v9, s[{SX}:{SX+3}], s{kT0} offen {self.o.get('out_mod', '')}")

    def o_epilogue(self, last):
        p = self.p
        fuse_last = last and self.o.get("fuse")
        pre = []
        raw = self.o.get("rawwo")
        if fuse_last:
            apre = raw and self.o.get("apre", False)
            if raw and not apre:
                for x in self.k3_setup2(): p.add(x)
            part = "B" if apre else None
            pre = self.k3_loads(0, 0, 0, part) + self.k3_loads(1, 1, 1, part) + self.k3_loads(2, 2, 2, part)
        defer = fuse_last and self.o.get("defer", True)
        self.deferred = []
        for qt in range(6): p(f"v_accvgpr_read_b32 v{LS+qt}, a{LA(qt)}")
        for qt in range(6): p(f"v_rcp_f32 v{LS+qt}, v{LS+qt}")
        vstage = [8, 12, 16, 20, 24, 28, 38, 42, 46, 50]
        ndir = 6
        nag = 8; abase = 224
        if fuse_last and raw:
            vstage = vstage[:8]; ndir = self.o.get("ndir", 4); nag = 24 - ndir; abase = 160
        for qt in range(6):
            for ks in range(4):
                m = qt*4 + ks
                a0, a1 = acc(2*ks, qt), acc(2*ks+1, qt)
                l = LS + qt
                if self.o.get("pk", True):
                    lp = l & ~1; sel = "op_sel_hi:[1,0]" if l % 2 == 0 else "op_sel:[0,1] op_sel_hi:[1,1]"
                    for a in (a0, a0+2, a1, a1+2): p(f"v_pk_mul_f32 v[{a}:{a+1}], v[{a}:{a+1}], v[{lp}:{lp+1}] {sel}")
                else:
                    for r in range(4): p(f"v_mul_f32 v{a0+r}, v{l}, v{a0+r}")
                    for r in range(4): p(f"v_mul_f32 v{a1+r}, v{l}, v{a1+r}")
                if defer: t0 = ((12 if m % 2 == 0 else 8) if raw else 54) if m < ndir + nag else vstage[m - ndir - nag]
                else: t0 = SB + ((ks + 4*qt) % 6)*4
                p(f"v_cvt_pk_bf16_f32 v{t0}, v{a0}, v{a0+1}")
                p(f"v_cvt_pk_bf16_f32 v{t0+1}, v{a0+2}, v{a0+3}")
                p(f"v_cvt_pk_bf16_f32 v{t0+2}, v{a1}, v{a1+1}")
                p(f"v_cvt_pk_bf16_f32 v{t0+3}, v{a1+2}, v{a1+3}")
                n = ks*6 + qt
                mod = self.o['last_store_mod']
                if last:
                    for _ in range(2):
                        if pre:
                            for x in pre.pop(0): p.add(x)
                    if not defer or m < ndir:
                        p(f"s_add_u32 s{sT0}, s{sOo}, {n*1024}")
                        p(f"buffer_store_dwordx4 v[{t0}:{t0+3}], v{VST}, s[{SO}:{SO+3}], s{sT0} offen {mod}", tag=("o",))
                    else:
                        if m < ndir + nag:
                            d = abase + (m - ndir)*4
                            for r in range(4): p(f"v_accvgpr_write_b32 a{d+r}, v{t0+r}")
                            src = f"a[{d}:{d+3}]"
                        else: src = f"v[{t0}:{t0+3}]"
                        self.deferred.append([ins(f"s_add_u32 s{sT2}, s{sOo}, {n*1024}"),
                                              ins(f"buffer_store_dwordx4 {src}, v{VST}, s[{SO}:{SO+3}], s{sT2} offen {mod}", tag=("o",))])
                else:
                    for r in range(4): p(f"v_accvgpr_write_b32 a{OS(n)+r}, v{t0+r}")

    def final(self):
        p = self.p
        p.wait_tag(("wo",))
        p("s_barrier")
        p("v_and_b32 v8, 15, v0"); p("v_lshrrev_b32 v2, 4, v0"); p("v_lshrrev_b32 v3, 2, v8"); p("v_and_b32 v7, 3, v8")
        p("v_lshl_add_u32 v6, v2, 2, v3"); p("v_lshlrev_b32 v6, 10, v6"); p("v_lshl_add_u32 v6, v7, 4, v6")
        p(f"s_lshl_b32 s88, s{sW}, 8"); p("v_add_u32 v6, s88, v6")
        for nt in range(8):
            u, par = nt >> 1, nt & 1
            d = 32 + nt*4
            p(f"ds_read_b64_tr_b16 v[{d}:{d+1}], v6 offset:{64*u + 8*par}")
            p(f"ds_read_b64_tr_b16 v[{d+2}:{d+3}], v6 offset:{16384 + 64*u + 8*par}")
        for nt in range(8):
            d = 32 + nt*4
            if nt % 4 == 0: p(f"s_add_u32 s{sT1}, s{sWTo}, {nt*1024}")
            p(f"buffer_store_dwordx4 v[{d}:{d+3}], v{VST}, s[{SWT}:{SWT+3}], s{sT1} offen offset:{(nt % 4)*1024} {self.o['last_store_mod']}")

    def build(self):
        p = self.p
        assert self.o["msum"]
        self.prologue()
        if self.o["timing"]: p("s_mov_b32 s99, 0")
        if self.o.get("delaywg"):
            p("s_and_b32 s88, s2, 7"); p("s_cmp_lg_u32 s88, 3"); p("s_cbranch_scc1 L_nodelay")
            p("s_memrealtime s[88:89]"); p("s_waitcnt lgkmcnt(0)"); p(f"s_add_u32 s90, s88, {self.o['delaywg']}")
            p.raw("L_spinw:"); p("s_memrealtime s[88:89]"); p("s_waitcnt lgkmcnt(0)"); p("s_cmp_lt_u32 s88, s90"); p("s_cbranch_scc1 L_spinw")
            p.raw("L_nodelay:")
        self.stamp()
        if self.o.get("entry"):
            p("s_mov_b32 m0, 62"); p("s_nop 1"); p("v_writelane_b32 v5, s100, m0")
        early = self.o.get("woearly")
        p(f"s_mov_b32 s{SO+2}, {0 if self.o.get('stA') else O_BYTES}")
        mid = self.o.get("womid")
        if mid:
            assert self.o.get("stA") and self.o.get("fuse") and self.o.get("stpat") == 3
            self.emit_groups(self.w_tile(0, 0) + self.x_tile(0) + self.w_tile(1, 0) + self.dma_wo_last())
        elif early:
            assert self.o.get("stA") and self.o.get("fuse")
            self.emit_groups(self.w_tile(0, 0) + self.x_tile(0) + self.dma_wo_last() + self.w_tile(1, 0))
        else:
            self.emit_groups(self.w_tile(0, 0) + self.x_tile(0) + ([] if self.o.get("w1late") else self.w_tile(1, 0)))
        self.prologue2()
        if mid:
            p(f"s_mov_b32 s{sOreal}, s{sOo}"); p(f"s_mov_b32 s{sOo}, {4*6144}")
            p(f"s_add_u32 s{SO}, s{SWT}, s{sWTo}"); p(f"s_addc_u32 s{SO+1}, s{SWT+1}, 0")
            p(f"s_sub_u32 s{SO}, s{SO}, {12*1024}"); p(f"s_subb_u32 s{SO+1}, s{SO+1}, 0")
            p(f"s_mov_b32 s{SO+2}, 0"); p(f"s_mov_b32 s{sSz1}, {20*1024}"); p(f"s_mov_b32 s{sSz2}, 0")
        if early:
            p(f"s_mov_b32 s{sOreal}, s{sOo}"); p(f"s_mov_b32 s{sOo}, {4*6144}")
            p(f"s_add_u32 s{SO}, s{SWT}, s{sWTo}"); p(f"s_addc_u32 s{SO+1}, s{SWT+1}, 0"); p(f"s_mov_b32 s{SO+2}, 8192")
            W = self.wo_prep_groups(stage=True)
            for g in W[:9]:
                for x in g: p.add(x)
            p.wait_tag(("wo",)); p("s_barrier")
            for g in W[9:]:
                for x in g: p.add(x)
        for item in range(2):
            last = item == 1
            p.raw("@@SB A"); self.qproj_a(); p.raw("@@SE A")
            p.raw(f"@@SB B{item}"); self.qproj_b(last); self.stamp(); p.raw(f"@@SE B{item}")
            p.raw("@@SB C"); self.attention_shared(); p.raw("@@SE C")
            p.raw(f"@@SB D{item}")
            self.attention_tail(last)
            self.stamp()
            if self.o.get("guard", True): self.softmax_check(item)
            self.o_epilogue(last)
            self.stamp()
            if not last:
                if self.o.get("woearly") or self.o.get("womid"):
                    p(f"s_mov_b32 s{sOo}, s{sOreal}"); p(f"s_mov_b32 s{SO}, s72"); p(f"s_mov_b32 s{SO+1}, s73")
                if self.o.get("womid"):
                    p(f"s_mov_b32 s{sSz1}, {O_BYTES}"); p(f"s_mov_b32 s{sSz2}, {O_BYTES}")
                p(f"s_add_u32 s{sWo}, s{sWo}, 256"); p(f"s_add_u32 s{sOo}, s{sOo}, {4*6144}")
                p(f"s_mov_b32 s{sItem}, 1"); p(f"s_mov_b32 s{SO+2}, {O_BYTES}")
            else:
                if self.o.get("fuse"): self.k3_main()
                self.stamp()
                p("s_waitcnt vmcnt(0)")
                self.stamp()
                self.stamp_flush()
                p("s_waitcnt vmcnt(0)")
            p.raw(f"@@SE D{item}")
        L, st = finalize(p.L)
        L = fold(L)
        segs, top = segments(L)
        out = [i for k, i in top if k == "ins"]
        lab = lambda t: I(t, "label")
        br = lambda tgt: [ins(f"s_cmp_eq_u32 s{sItem}, 1"), ins(f"s_cbranch_scc1 {tgt}")]
        out += [lab("L_A:")] + segs["A"] + br("L_B1") + segs["B0"] + [lab("L_C:")] + segs["C"] + br("L_D1") + segs["D0"] + [ins("s_branch L_A")]
        out += [lab("L_B1:")] + segs["B1"] + [ins("s_branch L_C")]
        out += [lab("L_D1:")] + segs["D1"] + [lab("K2_END:"), ins("s_endpgm")]
        if self.o.get("guard", True): out += self.fallback()
        return out, st

if __name__ == "__main__":
    k = K2(); L, st = k.build()
    print(st, len(L))
```

```python
from dsl import *
import struct

def f32(x): return "0x%08x" % struct.unpack("<I", struct.pack("<f", x))[0]

NB, SQ, DM, H, SK, DH = 16, 192, 512, 32, 512, 128
X_BYTES = NB*SQ*DM*2
KV_BYTES = NB*H*SK*DH*2
W_BYTES = DM*H*DH*2
O_BYTES = 2*NB*2*128*6*1024
WOT_OFF = O_BYTES
WOT_BYTES = 2*4*128*8*1024
OUT_BYTES = NB*SQ*1024*2

PHI = 65536
WSLOT = [65536, 81920, 98304]
XA, XB = 114688, 139264
DROP = 0x30000

ACC = 64
def acc(T, qt): return ACC + (T*6 + qt)*4
SB = 8
def S(buf, kt): return SB + buf*8 + kt*4
PB = 24
def P(buf): return PB + buf*4
LS = 32
KA = 38
VA = 42
DV = 50
WA = 54
XAD = 58
WD = [60, 61, 2, 3]
XD = [62, 63, 6, 7]
VST = 4
def Q(qt, ks): return (qt*4 + ks)*4
def OS(n): return n*4
def KF(buf, kt, ks): return 96 + buf*32 + (kt*4 + ks)*4
def VF(buf, dt): return 160 + buf*32 + dt*4
def WF(T): return 96 + T*4
def XF(buf, qt): return 128 + buf*24 + qt*4
ONES = 224
def LA(qt): return 228 + qt*4
SX, SW, SKV, SO, SWO, SWT = 4, 8, 12, 16, 20, 24
sW, sHP, sRH, sP, sB, sHG = 28, 29, 30, 31, 32, 33
sKVo, sKVl, sWo, sWl, sXo, sXl, sOo = 34, 35, 36, 37, 38, 39, 40
sT0, sT1, sC = 41, 42, 43
sWOo, sWTo = 44, 45
sItem, sCnt = 46, 47
sTile, sM, sTh1, sTh2, sWarmW, sWarmX, sWoM, sDrop, sTc, sRot = 74, 75, 76, 77, 78, 79, 80, 81, 84, 85
sT2 = 83
sC2 = 86
sWR, sXR = 78, 79

SFL = 92
kA, kBo, kT0, kT1, kOut, kCnt = 74, 78, 80, 81, 79, 47
sC1, sC2o = 97, 96
def oacc(nu, qt): return ACC + (nu*6 + qt)*4
def AF(buf, nu): return buf*56 + nu*4
def BF(buf, qt): return buf*56 + 32 + qt*4
VB4 = 6
VBQ = 58
kRho, kSig = 82, 85
VAD2 = [2, 3, 6, 7]
VAR2 = 54
VAR = 38
VAD = 50
def AF2(buf, nu): return buf*32 + nu*4
def BF2(buf, qt): return 64 + buf*24 + qt*4
sOreal = 98
sSz1, sSz2 = 76, 77
VPOLL = 34
MF = "v_mfma_f32_16x16x32_bf16"
def mfma(d, dk, a, ak, b, bk, c=None):
    cs = "0" if c is None else rng(dk, c, 4)
    return ins(f"{MF} {rng(dk,d,4)}, {rng(ak,a,4)}, {rng(bk,b,4)}, {cs}")

class K2:
    def __init__(self, opts=None):
        self.o = dict(nt="nt", w_mod="", x_mod="", store_mod="sc1", last_store_mod="sc1", timing=False, msum=True, warm=False, qrot=True, stA=True, stpat=3, credit=4, out_mod="sc1", rawwo=True, afirst=True, drop=[])
        if opts: self.o.update(opts)
        self.p = Prog()
        self.phase = ""

    def tile_addr(self):
        if self.o.get("perm4"):
            return [ins(f"s_and_b32 s{sTile}, s{sTc}, 0x6000"), ins(f"s_lshl_b32 s{sTile}, s{sTile}, 2"),
                    ins(f"s_and_b32 s{sT0}, s{sTc}, 0x18000"), ins(f"s_lshr_b32 s{sT0}, s{sT0}, 2"), ins(f"s_or_b32 s{sTile}, s{sTile}, s{sT0}"),
                    ins(f"s_and_b32 s{sT0}, s{sTc}, 0x20000"), ins(f"s_or_b32 s{sTile}, s{sTile}, s{sT0}"),
                    ins(f"s_add_u32 s{sTile}, s{sTile}, s{sKVo}"), ins(f"s_add_u32 s{sTc}, s{sTc}, 8192")]
        if not self.o.get("rot"):
            return [ins(f"s_add_u32 s{sTile}, s{sKVo}, s{sTc}"), ins(f"s_add_u32 s{sTc}, s{sTc}, 8192")]
        return [ins(f"s_add_u32 s{sTile}, s{sTc}, s{sRot}"), ins(f"s_and_b32 s{sTile}, s{sTile}, 0x1ffff"),
                ins(f"s_and_b32 s{sT0}, s{sTc}, 0x20000"), ins(f"s_add_u32 s{sTile}, s{sTile}, s{sT0}"),
                ins(f"s_add_u32 s{sTile}, s{sTile}, s{sKVo}"), ins(f"s_add_u32 s{sTc}, s{sTc}, 8192")]
    def dma_kv(self, tag, m0a, m0b, pre=()):
        nt = self.o['nt']
        G = []
        g = list(pre) + self.tile_addr() + [ins(m0a)]
        for k in range(4):
            g.append(ins(f"buffer_load_dwordx4 v{DV+k}, s[{SKV}:{SKV+3}], s{sTile} offen offset:{1024*k} {nt} lds", tag=tag))
            G.append(g); g = []
        g = [ins(f"s_add_u32 s{sT0}, s{sTile}, 4096"), ins(m0b)]
        for k in range(4):
            g.append(ins(f"buffer_load_dwordx4 v{DV+k}, s[{SKV}:{SKV+3}], s{sT0} offen offset:{1024*k} {nt} lds", tag=tag))
            G.append(g); g = []
        return G
    def dma_kv_abs(self, tag, slot):
        o = (slot >> 1)*PHI + (slot & 1)*8192
        return self.dma_kv(tag, f"s_add_u32 m0, s{sKVl}, {o}", f"s_add_u32 m0, s{sKVl}, {o + 4096}")
    def kv_pieces(self, tile, a, b):
        G = self.dma_kv_abs(("kv", tile), tile % 4)
        out = G[a:b]
        if a not in (0, 4):
            slot = tile % 4
            o = (slot >> 1)*PHI + (slot & 1)*8192 + (4096 if a >= 4 else 0)
            out[0] = [ins(f"s_add_u32 m0, s{sKVl}, {o}")] + out[0]
        return out
    def dma_w(self, tag, base_reg, goff, m0txt, rot=None):
        G = []
        if rot is None: g = [ins(f"s_add_u32 s{sT1}, s{base_reg}, {goff}")]
        else:
            g = [ins(f"s_add_u32 s{sT1}, s{sWR}, {rot*262144}"), ins(f"s_and_b32 s{sT1}, s{sT1}, 0x3fffff"), ins(f"s_add_u32 s{sT1}, s{sT1}, s{base_reg}")]
            if goff: g.append(ins(f"s_add_u32 s{sT1}, s{sT1}, {goff}"))
        g.append(ins(m0txt))
        for n in range(4):
            g.append(ins(f"buffer_load_dwordx4 v{WD[n]}, s[{SW}:{SW+3}], s{sT1} offen offset:{1024*n} {self.o['w_mod']} lds", tag=tag))
            G.append(g); g = []
        return G
    def x_soff(self, base_reg, tt):
        if not self.o.get("qrot"): return [ins(f"s_add_u32 s{sT1}, s{base_reg}, {tt*128}")]
        return [ins(f"s_add_u32 s{sT1}, s{sXR}, {tt*128}"), ins(f"s_and_b32 s{sT1}, s{sT1}, 1023"), ins(f"s_add_u32 s{sT1}, s{sT1}, s{base_reg}")]
    def dma_x(self, tag, base_reg, tt, m0a, m0b):
        G = []
        m = self.o['x_mod']
        g = self.x_soff(base_reg, tt) + [ins(m0a)]
        for n in range(4):
            g.append(ins(f"buffer_load_dwordx4 v{XD[n]}, s[{SX}:{SX+3}], s{sT1} offen offset:{1024*n} {m} lds", tag=tag))
            G.append(g); g = []
        g = [ins(f"s_add_u32 s{sT1}, s{sT1}, {4*8192}"), ins(m0b)]
        for n in range(2):
            g.append(ins(f"buffer_load_dwordx4 v{XD[n]}, s[{SX}:{SX+3}], s{sT1} offen offset:{1024*n} {m} lds", tag=tag))
            G.append(g); g = []
        return G
    def w_tile(self, t, nxt=0):
        m0 = f"s_add_u32 m0, s{sWl}, {WSLOT[t % 3]}"
        if self.o.get("qrot"): return self.dma_w(("w", t), sWo, nxt*256, m0, rot=t)
        return self.dma_w(("w", t), sWo, nxt*256 + t*262144, m0)
    def x_tile(self, tt):
        sl = XB if tt % 2 == 0 else XA
        return self.dma_x(("x", tt), sXo, tt, f"s_add_u32 m0, s{sXl}, {sl}", f"s_add_u32 m0, s{sXl}, {sl + 4096}")
    def warmup(self, nxt):
        if not self.o["warm"]: return []
        G = []
        def ld(v, srd, soff, off, mod):
            i = ins(f"buffer_load_dwordx4 a[252:255], v{v}, s[{srd}:{srd+3}], s{soff} offen offset:{off} {mod}", tag=("warm",))
            i.kind = "dma"; i.wr = set(); i.rd.discard("m0")
            return i
        for k in range(2):
            g = [ins(f"s_add_u32 s{sT1}, s{sWarmW}, {nxt*256 + k*262144}")]
            for n in range(4):
                g.append(ld(WD[n], SW, sT1, 1024*n, self.o['w_mod'])); G.append(g); g = []
        if nxt == 0 or self.o.get("warmx1", True):
            for k in range(2):
                g = [ins(f"s_add_u32 s{sT1}, s{sWarmX}, {k*128}")]
                for n in range(4):
                    g.append(ld(XD[n], SX, sT1, 1024*n, self.o['x_mod'])); G.append(g); g = []
                g = [ins(f"s_add_u32 s{sT1}, s{sT1}, {4*8192}")]
                for n in range(2):
                    g.append(ld(XD[n], SX, sT1, 1024*n, self.o['x_mod'])); G.append(g); g = []
        return G
    def next_item_prefetch(self, nxt=1):
        return self.w_tile(0, nxt) + self.x_tile(0) + self.w_tile(1, nxt) + self.w_tile(2, nxt) + self.x_tile(1)
    def dma_wo(self):
        G = []
        for half in range(2):
            g = [ins(f"s_add_u32 s{sT1}, s{sWOo}, {half*4096}"), ins(f"s_add_u32 m0, s{sWoM}, {half*4096}")]
            for n in range(4):
                g.append(ins(f"buffer_load_dwordx4 v{VST}, s[{SWO}:{SWO+3}], s{sT1} offen offset:{1024*n} nt lds", tag=("wo",)))
                G.append(g); g = []
        return G
    def o_store(self, n, mod, prev, force=False):
        g = []
        if n % 4 == 0 or force: g.append(ins(f"s_add_u32 s{sT2}, s{sOo}, {((n & ~3)*1024 - (4*6144 if prev else 0)) & 0xffffffff}"))
        g.append(ins(f"buffer_store_dwordx4 {rng('a', OS(n), 4)}, v{VST}, s[{SO}:{SO+3}], s{sT2} offen offset:{(n % 4)*1024} {mod}", tag=("o",)))
        return g
    def rd_k(self, par, kt, ks):
        return ins(f"ds_read_b128 {rng('a', KF(par, kt, ks), 4)}, v{KA+ks} offset:{par*8192 + kt*4096}")
    def rd_v(self, par, dt, kt):
        return ins(f"ds_read_b64_tr_b16 {rng('a', VF(par, dt) + 2*kt, 2)}, v{VA+dt} offset:{par*8192 + kt*4096}")
    def rd_w(self, t, T, h2):
        ks, u = T >> 1, T & 1
        return ins(f"ds_read_b64_tr_b16 {rng('a', WF(T) + 2*h2, 2)}, v{WA+ks} offset:{(t % 3)*16384 + h2*2048 + 8*u}")
    def rd_x(self, t, qt):
        tt = t >> 1
        return ins(f"ds_read_b128 {rng('a', XF(t % 2, qt), 4)}, v{XAD + (t & 1)} offset:{(24576 if tt % 2 == 0 else 0) + qt*2048}")

    def prologue(self):
        p = self.p
        if self.o.get("entry"): p("s_memrealtime s[100:101]")
        p("s_cmp_ge_u32 s2, 256")
        p("s_cbranch_scc1 K2_END")
        p("s_load_dwordx16 s[48:63], s[0:1], 0")
        p("s_load_dwordx8 s[64:71], s[0:1], 64")
        p("s_load_dwordx2 s[72:73], s[0:1], 96")
        p(f"v_lshrrev_b32 v1, 6, v0")
        p(f"v_and_b32 v0, 63, v0")
        p(f"v_readfirstlane_b32 s{sW}, v1")
        p("s_and_b32 s86, s2, 7")
        p("s_lshr_b32 s87, s2, 3")
        p(f"s_lshr_b32 s{sP}, s86, 2")
        p("s_and_b32 s88, s86, 1"); p("s_lshl_b32 s88, s88, 3"); p("s_and_b32 s82, s87, 7")
        p(f"s_add_u32 s{sB}, s88, s82")
        p("s_lshr_b32 s88, s86, 1"); p("s_and_b32 s88, s88, 1"); p("s_lshl_b32 s88, s88, 2"); p("s_lshr_b32 s83, s87, 3")
        p(f"s_add_u32 s{sHG}, s88, s83")
        p(f"s_and_b32 s{sHP}, s{sW}, 1")
        p(f"s_lshr_b32 s{sRH}, s{sW}, 1")
        p("s_waitcnt lgkmcnt(0)")
        p(f"s_cmp_eq_u32 s{sP}, 0")
        p(f"s_cselect_b32 s{SX}, s48, s58"); p(f"s_cselect_b32 s{SX+1}, s49, s59")
        p(f"s_cselect_b32 s{SW}, s54, s64"); p(f"s_cselect_b32 s{SW+1}, s55, s65")
        p(f"s_cselect_b32 s{SWO}, s56, s66"); p(f"s_cselect_b32 s{SWO+1}, s57, s67")
        p(f"s_cselect_b32 s90, s50, s60"); p(f"s_cselect_b32 s91, s51, s61")
        p(f"s_cselect_b32 s92, s52, s62"); p(f"s_cselect_b32 s93, s53, s63")
        p(f"s_cmp_eq_u32 s{sRH}, 0")
        p(f"s_cselect_b32 s{SKV}, s90, s92"); p(f"s_cselect_b32 s{SKV+1}, s91, s93")
        p(f"s_cselect_b32 s94, 64, 128"); p(f"s_cselect_b32 s95, 128, 0"); p("s_mov_b32 s96, 128"); p(f"s_cselect_b32 s96, 192, s96")
        p(f"s_cselect_b32 s97, 0, 1")
        p(f"s_cselect_b32 s{sKVl}, 0, 32768")
        for r, n in ((SX, X_BYTES), (SW, W_BYTES), (SWO, W_BYTES), (SKV, KV_BYTES)):
            p(f"s_mov_b32 s{r+2}, {n}"); p(f"s_mov_b32 s{r+3}, 0x00020000")
        p(f"s_mov_b32 s{SO}, s72"); p(f"s_mov_b32 s{SO+1}, s73"); p(f"s_mov_b32 s{SO+2}, 0"); p(f"s_mov_b32 s{SO+3}, 0x00020000")
        p(f"s_add_u32 s{SWT}, s72, {WOT_OFF}"); p(f"s_addc_u32 s{SWT+1}, s73, 0"); p(f"s_mov_b32 s{SWT+2}, {WOT_BYTES}"); p(f"s_mov_b32 s{SWT+3}, 0x00020000")
        p(f"s_lshl_b32 s88, s{sB}, 5"); p(f"s_lshl_b32 s89, s{sHG}, 2"); p("s_add_u32 s88, s88, s89"); p(f"s_lshl_b32 s89, s{sHP}, 1"); p("s_add_u32 s88, s88, s89")
        p(f"s_lshl_b32 s{sKVo}, s88, 17")
        p(f"s_lshl_b32 s89, s{sHP}, 14"); p(f"s_add_u32 s{sKVl}, s{sKVl}, s89")
        p(f"s_lshl_b32 s88, s{sW}, 16"); p(f"s_lshl_b32 s89, s{sHG}, 10"); p(f"s_add_u32 s{sWo}, s88, s89")
        p(f"s_lshl_b32 s{sWl}, s{sW}, 12")
        p(f"s_lshl_b32 s88, s82, 19"); p(f"s_add_u32 s{sWarmW}, s{sWo}, s88")
        p(f"s_mul_i32 s88, s{sB}, 196608"); p(f"s_mul_i32 s89, s{sW}, 49152"); p(f"s_add_u32 s{sXo}, s88, s89")
        p(f"s_mul_i32 s{sXl}, s{sW}, 6144")
        p(f"s_lshl_b32 s88, s83, 8"); p(f"s_add_u32 s{sWarmX}, s{sXo}, s88")
        if self.o.get("qrot"):
            assert not self.o["warm"]
            p("s_lshl_b32 s88, s83, 1"); p("s_add_u32 s88, s88, s82"); p("s_and_b32 s88, s88, 7")
            p(f"s_lshl_b32 s{sWR}, s88, 19"); p(f"s_lshl_b32 s{sXR}, s88, 7")
        p(f"s_mov_b32 s{sDrop}, {DROP}")
        p("s_mul_i32 s88, s2, 5"); p("s_lshr_b32 s89, s2, 4"); p("s_add_u32 s88, s88, s89"); p("s_and_b32 s88, s88, 15"); p(f"s_lshl_b32 s{sRot}, s88, 13")
        p(f"s_lshl_b32 s88, s{sP}, 4"); p(f"s_add_u32 s88, s88, s{sB}"); p("s_lshl_b32 s88, s88, 1"); p(f"s_add_u32 s88, s88, s{sRH}")
        p("s_lshl_b32 s88, s88, 7"); p(f"s_lshl_b32 s89, s{sHG}, 4"); p("s_add_u32 s88, s88, s89"); p(f"s_lshl_b32 s89, s{sHP}, 3"); p("s_add_u32 s88, s88, s89")
        p(f"s_mul_i32 s{sOo}, s88, 6144")
        p("s_and_b32 s88, s86, 3"); p("s_lshl_b32 s88, s88, 5"); p("s_add_u32 s88, s88, s87")
        p(f"s_lshl_b32 s89, s88, 15"); p(f"s_lshl_b32 s98, s{sW}, 13"); p(f"s_add_u32 s{sWOo}, s89, s98")
        p(f"s_lshl_b32 s89, s{sP}, 2"); p(f"s_add_u32 s89, s89, s{sW}"); p("s_lshl_b32 s89, s89, 7"); p("s_add_u32 s89, s89, s88"); p(f"s_lshl_b32 s{sWTo}, s89, 13")
        p(f"s_mov_b32 s{sC}, {f32(1.4426950408889634*128**-0.5)}")
        p(f"s_mov_b32 s{sItem}, 0")
        self.late_consts = True
        i_, g_, r_, c_ = "v14", "v8", "v9", "v10"
        p(f"v_and_b32 {i_}, 15, v0"); p(f"v_lshrrev_b32 {g_}, 4, v0"); p(f"v_lshrrev_b32 {r_}, 2, {i_}"); p(f"v_and_b32 {c_}, 3, {i_}")
        p(f"v_lshlrev_b32 v{VST}, 4, v0")
        p("v_lshrrev_b32 v11, 5, v0"); p("v_and_b32 v12, 15, v0"); p("v_lshlrev_b32 v13, 2, v11"); p("v_xor_b32 v12, v12, v13"); p("v_lshlrev_b32 v12, 4, v12")
        p("v_lshl_add_u32 v12, v11, 13, v12"); p("v_bfe_u32 v13, v0, 4, 1"); p(f"v_lshl_add_u32 v{WD[0]}, v13, 9, v12")
        p(f"v_xor_b32 v{WD[1]}, 128, v{WD[0]}"); p(f"v_add_u32 v{WD[2]}, {2*15360}, v{WD[0]}"); p(f"v_add_u32 v{WD[3]}, {3*15360}, v{WD[1]}"); p(f"v_add_u32 v{WD[1]}, 15360, v{WD[1]}")
        p("v_lshrrev_b32 v11, 3, v0"); p("v_and_b32 v12, 7, v0"); p(f"v_xor_b32 v12, v12, {g_}"); p("v_lshlrev_b32 v12, 4, v12")
        p(f"v_lshl_add_u32 v{XD[0]}, v11, 10, v12"); p(f"v_xor_b32 v{XD[1]}, 64, v{XD[0]}")
        p(f"v_add_u32 v{XD[2]}, {2*7168}, v{XD[0]}"); p(f"v_add_u32 v{XD[3]}, {3*7168}, v{XD[1]}"); p(f"v_add_u32 v{XD[1]}, 7168, v{XD[1]}")
        p(f"v_lshlrev_b32 v11, s97, {g_}"); p(f"v_xor_b32 v11, v11, {i_}"); p("v_lshlrev_b32 v11, 4, v11"); p(f"v_lshl_add_u32 v{DV}, {g_}, 8, v11")
        for k in range(1, 4): p(f"v_xor_b32 v{DV+k}, s{93+k}, v{DV}")
        self.lane = (i_, g_, r_, c_)
    def prologue2(self):
        p = self.p
        i_, g_, r_, c_ = self.lane
        p(f"s_lshl_b32 s88, s{sHP}, 14")
        p(f"v_xor_b32 v11, {g_}, {i_}"); p("v_lshlrev_b32 v11, 4, v11"); p(f"v_lshl_add_u32 v11, {i_}, 8, v11"); p(f"v_add_u32 v{KA}, s88, v11")
        for ks in range(1, 4): p(f"v_xor_b32 v{KA+ks}, {64*ks}, v{KA}")
        p(f"v_and_b32 v11, 1, {g_}"); p("v_lshlrev_b32 v11, 2, v11"); p(f"v_add_u32 v11, v11, {r_}"); p("v_lshlrev_b32 v11, 1, v11")
        p(f"v_lshrrev_b32 v12, 1, {c_}"); p("v_xor_b32 v11, v11, v12"); p("v_lshlrev_b32 v11, 4, v11")
        p(f"v_and_b32 v12, 1, {c_}"); p("v_lshl_add_u32 v11, v12, 3, v11")
        p(f"v_lshl_add_u32 v12, {g_}, 2, {r_}"); p("v_lshl_add_u32 v11, v12, 8, v11")
        p("s_add_u32 s89, s88, 32768"); p(f"v_add_u32 v{VA}, s89, v11")
        for dt in range(1, 8): p(f"v_xor_b32 v{VA+dt}, {32*dt}, v{VA}")
        p(f"s_lshl_b32 s88, s{sHP}, 4")
        p(f"v_add_u32 v11, s88, {c_}"); p(f"v_lshlrev_b32 v12, 2, {r_}"); p("v_xor_b32 v11, v11, v12"); p("v_lshlrev_b32 v11, 4, v11")
        p(f"v_lshl_add_u32 v12, {g_}, 3, {r_}"); p("v_lshl_add_u32 v11, v12, 9, v11"); p(f"v_add_u32 v{WA}, {WSLOT[0]}, v11")
        for ks in range(1, 4): p(f"v_xor_b32 v{WA+ks}, {64*ks}, v{WA}")
        p(f"s_mul_i32 s88, s{sRH}, {96*128}"); p(f"s_add_u32 s88, s88, {XA}")
        p(f"v_lshrrev_b32 v11, 1, {i_}"); p(f"v_xor_b32 v11, v11, {g_}"); p("v_lshlrev_b32 v11, 4, v11"); p(f"v_lshl_add_u32 v11, {i_}, 7, v11"); p(f"v_add_u32 v{XAD}, s88, v11")
        p(f"v_xor_b32 v{XAD+1}, 64, v{XAD}")
        p(f"s_mov_b32 s{sC2}, s{sC}"); p(f"s_mov_b32 s{sC2+1}, s{sC}")
        if self.o.get("fuse"):
            p(f"s_mov_b32 s{SFL}, s70"); p(f"s_mov_b32 s{SFL+1}, s71"); p(f"s_mov_b32 s{SFL+2}, 256"); p(f"s_mov_b32 s{SFL+3}, 0x00020000")
            sh = 16 if self.o.get("dbg") is not None else 0
            p(f"s_lshl_b32 s{sC1}, s{sP}, 2"); p(f"s_add_u32 s{sC1}, s{sC1}, {4*sh}")
            p(f"s_lshl_b32 s88, s{sP}, 4"); p(f"s_add_u32 s88, s88, s{sB}"); p(f"s_add_u32 s88, s88, {2+sh}"); p(f"s_lshl_b32 s{sC2o}, s88, 2")
            if self.o.get("rawwo"): p(f"s_mov_b32 s{sC1}, s{sC2o}")
        if self.o["msum"]:
            p("v_mov_b32 v11, 0x3f803f80")
            for r in range(4): p(f"v_accvgpr_write_b32 a{ONES+r}, v11")

    def stamp(self, fine=False):
        if not self.o["timing"]: return
        if fine and not self.o.get("fine"): return
        p = self.p
        p(f"s_memrealtime s[88:89]")
        p(f"s_memtime s[90:91]")
        p("s_waitcnt lgkmcnt(0)")
        p("s_mov_b32 m0, s99"); p("s_nop 1")
        p(f"v_writelane_b32 v5, s88, m0")
        p(f"v_writelane_b32 v1, s90, m0")
        p("s_add_u32 s99, s99, 1")
    def stamp_flush(self):
        if not self.o["timing"]: return
        p = self.p
        if self.o.get("dbg") is not None:
            p(f"s_cmp_eq_u32 s2, {self.o['dbg']}"); p("s_cselect_b32 s90, 64, 0"); p(f"s_cmp_eq_u32 s{sW}, 0"); p("s_cselect_b32 s90, s90, 0")
            p("s_mov_b32 s88, s70"); p("s_mov_b32 s89, s71"); p("s_mov_b32 s91, 0x00020000")
            src = "v1" if self.o.get("dbgcyc") else "v5"
            p("v_lshlrev_b32 v6, 2, v0")
            p(f"buffer_store_dword {src}, v6, s[88:91], 0 offen")
            if not self.o.get("fuse"):
                p("s_add_u32 s88, s88, 512"); p("s_addc_u32 s89, s89, 0"); p("s_cmp_lg_u32 s90, 0"); p("s_cselect_b32 s90, 52, 0")
                p(f"buffer_store_dword {src}, v6, s[88:91], 0 offen")
            return
        p(f"s_add_u32 s88, s72, {64<<20}"); p("s_addc_u32 s89, s73, 0"); p(f"s_mov_b32 s90, {1<<20}"); p("s_mov_b32 s91, 0x00020000")
        p(f"s_lshl_b32 s92, s2, 2"); p(f"s_add_u32 s92, s92, s{sW}"); p("s_lshl_b32 s92, s92, 9")
        p("v_lshlrev_b32 v6, 2, v0")
        p("buffer_store_dword v5, v6, s[88:91], s92 offen")
        p("buffer_store_dword v1, v6, s[88:91], s92 offen offset:256")

    def emit_groups(self, groups):
        for g in groups:
            for x in g: self.p.add(x)
    def keep(self, x):
        drop = self.o["drop"]; ph = self.phase
        if x.kind == "dma" and ph + "_dma" in drop: return False
        if x.kind == "ds_read" and ph + "_lds" in drop: return False
        if x.kind == "barrier" and ph + "_bar" in drop: return False
        if x.kind == "trans" and ph + "_exp" in drop: return False
        if x.kind == "valu" and x.txt.startswith("v_add_f32") and ph + "_add" in drop: return False
        if x.kind == "valu" and x.txt.startswith("v_cvt") and ph + "_cvt" in drop: return False
        if x.kind == "vstore" and ph + "_st" in drop: return False
        return True
    def run(self, mf, chains, pre=()):
        ch = [[([x for x in g if self.keep(x)], lo, hi) for g, lo, hi in c] for c in chains]
        ch = [[it for it in c if it[0]] for c in ch]
        if self.phase + "_mfma" in self.o["drop"]: mf = [ins("s_nop 0") for _ in mf]
        self.p.extend(gapfill(mf, ch, pre=[x for x in pre if self.keep(x)]))

    def spaced(self, G, lo, hi):
        n = len(G)
        out = []
        for k, g in enumerate(G):
            pos = lo + (k*(hi - lo + 1))//n
            out.append((g, pos, pos + 1))
        return out
    def qstep(self, t, stores=(), sig=False):
        p = self.p
        self.phase = "qp"
        mf = []
        for T in range(8):
            for qt in range(6):
                mf.append(mfma(acc(T, qt), "v", WF(T), "a", XF(t % 2, qt), "a", None if t == 0 else acc(T, qt)))
        need = []
        for qt in range(6): need += R("a", XF(t % 2, qt), 4)
        for T in range(6): need += R("a", WF(T), 4)
        pre = [wait_regs(need)]
        chains = []
        BG = self.o.get("bg", 11)
        slow = []
        if t < 15:
            bar = [wait_tag(("w", t+1))]
            if t % 2 == 1: bar.append(wait_tag(("x", (t+1) >> 1)))
            chains.append([(bar, BG-1, BG-1), ([ins("s_waitcnt lgkmcnt(0)"), ins("s_barrier")], BG, BG)])
            cw = []
            for T in range(8):
                lo = max(BG+1, 6*T + 5)
                cw += [([self.rd_w(t+1, T, 0)], lo, min(47, lo + 8)), ([self.rd_w(t+1, T, 1)], lo, min(47, lo + 9))]
            chains.append(cw)
            chains.append([([self.rd_x(t+1, qt)], BG+1, 40) for qt in range(6)])
            GW = self.w_tile(t+3) if t + 3 <= 15 else []
            early = []; GX = []
            if t % 2 == 1 and (t >> 1) + 2 <= 7: GX = self.x_tile((t >> 1) + 2)[:3]
            if t % 2 == 0 and t >= 2 and ((t-1) >> 1) + 2 <= 7:
                tt = ((t-1) >> 1) + 2; sl = XB if tt % 2 == 0 else XA
                early = self.x_tile(tt)[3:]
                early[0] = self.x_soff(sXo, tt) + [ins(f"s_add_u32 m0, s{sXl}, {sl}")] + early[0]
            if t == 0:
                early = self.w_tile(2) + self.x_tile(1)
                if self.o.get("w1late"): early = self.w_tile(1) + early
            late = GW + GX
            plan = self.o.get("kvplan", {10: (0, 0, 4), 11: (0, 4, 8), 12: (1, 0, 4), 13: (1, 4, 8)})
            if t in plan or str(t) in plan:
                slow = self.kv_pieces(*(plan.get(t) or plan.get(str(t))))
            c = []
            if t == 0:
                c = self.spaced(early + late, 0, 47); early = []; late = []
            if early:
                span = BG - 1
                for k, g in enumerate(early): c.append((g, int(k*span/len(early)), int(k*span/len(early)) + 1))
            hi = 47 if not (slow or stores) else (39 if len(slow) <= 2 else 32)
            if late: c += self.spaced(late, BG+2, hi)
            if slow: c += self.spaced(slow, (41 if len(slow) <= 2 else 34) if late else BG+2, 47)
            if c: chains.append(c)
        else:
            chains.append([([wait_tag(("kv", 0))], BG-1, BG-1), ([ins("s_waitcnt lgkmcnt(0)"), ins("s_barrier")], BG, BG)])
            G = self.kv_pieces(2, 0, 4 if self.o.get("look", 3) == 3 else 8)
            if self.o.get("kv15"): G = self.kv_pieces(*self.o["kv15"]) + G
            chains.append(self.spaced(G, BG+1, 47))
            ne = self.o.get("qearly", 0)
            if ne:
                c = []
                for qt in range(ne):
                    c += [([x], 14, 47) for x in self.q_convert(qt, 0, S(0, 0) + (qt % 4)*4)]
                chains.append(c)
        if self.o.get("womid"):
            if t == 2:
                W = self.wo_prep_groups(stage=12)
                blk = [ins(f"s_cmp_eq_u32 s{sItem}, 1"), ins("s_cbranch_scc1 L_nowo")] + [x for g in W for x in g]
                for x in blk: x.meta["alt"] = True
                blk.append(I("L_nowo:", "label"))
                chains.append([(blk, BG+1, BG+1)])
            if t == 4: chains.append([([ins(f"s_mov_b32 s{SO+2}, s{sSz1}")], 0, 2)])
            if t == 7: chains.append([([ins(f"s_mov_b32 s{SO+2}, s{sSz2}")], 0, 2)])
        if sig:
            chains.append([(self.signal(f"v_mov_b32 v{VPOLL+2}, s{sC1}"), BG+1, BG+3)])
        if stores:
            lo = 26 if t == 12 else 0
            if self.o.get("stA"): lo = {2: 41, 3: 36, 4: 30}[len(stores)]
            chains.append(self.spaced([self.o_store(n, self.o["store_mod"], True, force=bool(self.o.get("stA")) and n == stores[0]) for n in stores], lo, 47))
        self.run(mf, chains, pre)

    def q_convert(self, qt, ks, t0):
        a0, a1 = acc(2*ks, qt), acc(2*ks+1, qt)
        L = [ins(f"v_mul_f32 v{a+r}, s{sC}, v{a+r}") for a in (a0, a1) for r in range(4)]
        L += [ins(f"v_cvt_pk_bf16_f32 v{t0}, v{a0}, v{a0+1}"), ins(f"v_cvt_pk_bf16_f32 v{t0+1}, v{a0+2}, v{a0+3}"),
              ins(f"v_cvt_pk_bf16_f32 v{t0+2}, v{a1}, v{a1+1}"), ins(f"v_cvt_pk_bf16_f32 v{t0+3}, v{a1+2}, v{a1+3}")]
        L += [ins(f"v_accvgpr_write_b32 a{Q(qt,ks)+r}, v{t0+r}") for r in range(4)]
        return L
    def qproj_a(self):
        p = self.p
        p(f"s_lshl_b32 s{sTc}, s{sItem}, 17")
        p.wait_tag(("w", 0)); p.wait_tag(("x", 0))
        p("s_barrier")
        self.stamp()
        for T in range(8):
            p.add(self.rd_w(0, T, 0)); p.add(self.rd_w(0, T, 1))
        for qt in range(6): p.add(self.rd_x(0, qt))
        for t in range(12):
            pat = self.o.get("stpat", 2)
            if pat == 2: ss = [2*t, 2*t+1]
            elif pat == 3: ss = [3*t, 3*t+1, 3*t+2] if t < 8 else []
            elif pat == 4: ss = [4*(t//2) + k for k in range(4)] if t % 2 == 0 else []
            elif pat == 5: ss = [4*(t//2) + k for k in range(4)] if t % 2 == 1 else []
            self.qstep(t, ss if self.o.get("stA") else ())
            if t in (3, 7, 11): self.stamp(True)
    def qproj_b(self, last):
        p = self.p
        st = (lambda a, b: list(range(a, b))) if (last and not self.o.get("stA")) else (lambda a, b: [])
        self.qstep(12, st(0, 3)); self.qstep(13, st(3, 9)); self.qstep(14, st(9, 15))
        sig_late = self.o.get("siglate", False)
        self.qstep(15, st(15, 18), sig=bool(last and self.o.get("fuse") and not sig_late))
        self.stamp()
        for kt in range(2):
            for ks in range(4): p.add(self.rd_k(0, kt, ks))
        tmp = S(0, 0)
        rest = self.kv_pieces(2, 4, 8) if self.o.get("look", 3) == 3 else []
        late = st(18, 24)
        for qt in range(6):
            for ks in range(4):
                n = qt*4 + ks
                a0, a1 = acc(2*ks, qt), acc(2*ks+1, qt)
                if ks == 0 and qt < self.o.get("qearly", 0):
                    if qt < 4:
                        pass
                    continue
                if self.o.get("pk", True):
                    for a in (a0, a0+2, a1, a1+2): p(f"v_pk_mul_f32 v[{a}:{a+1}], v[{a}:{a+1}], s[{sC2}:{sC2+1}]")
                else:
                    for r in range(4): p(f"v_mul_f32 v{a0+r}, s{sC}, v{a0+r}")
                    for r in range(4): p(f"v_mul_f32 v{a1+r}, s{sC}, v{a1+r}")
                t0 = tmp + (n % 4)*4
                p(f"v_cvt_pk_bf16_f32 v{t0}, v{a0}, v{a0+1}")
                p(f"v_cvt_pk_bf16_f32 v{t0+1}, v{a0+2}, v{a0+3}")
                p(f"v_cvt_pk_bf16_f32 v{t0+2}, v{a1}, v{a1+1}")
                p(f"v_cvt_pk_bf16_f32 v{t0+3}, v{a1+2}, v{a1+3}")
                if late and n % 2 == 0 and n < 18:
                    m = late.pop(0)
                    for x in self.o_store(m, self.o["store_mod"], True, force=True): p.add(x)
                if self.o.get("dummy_mfma"):
                    for _ in range(self.o["dummy_mfma"]): p.add(mfma(252, "a", KF(0, 0, 0), "a", KF(0, 1, 0), "a", None))
                for r in range(4): p(f"v_accvgpr_write_b32 a{Q(qt,ks)+r}, v{t0+r}")
                if rest and n % 4 == 3 and n >= 7:
                    for x in rest.pop(0): p.add(x)
            if qt < 4:
                for dt in (2*qt, 2*qt+1):
                    p.add(self.rd_v(0, dt, 0)); p.add(self.rd_v(0, dt, 1))
        assert not rest and not late
        if last and self.o.get("fuse") and sig_late:
            for x in self.signal(f"v_mov_b32 v{VPOLL+2}, s{sC1}"): p.add(x)

    def period(self, n, dma=(), pre=(), early=(), extra=()):
        p = self.p
        self.phase = "at"
        msum = self.o["msum"]
        j, pp = divmod(n, 6)
        qk = []; pv = []
        if n < 96:
            sb = n % 2
            for kt in range(2):
                for ks in range(4):
                    qk.append(mfma(S(sb, kt), "v", KF(j % 2, kt, ks), "a", Q(pp, ks), "a", None if ks == 0 else S(sb, kt)))
        if n >= 2:
            jj, qt = divmod(n-2, 6)
            pb = (n-2) % 2
            for dt in range(8):
                pv.append(mfma(acc(dt, qt), "v", VF(jj % 2, dt), "a", P(pb), "v", None if jj == 0 else acc(dt, qt)))
        mf = []
        for k in range(8):
            if qk: mf.append(qk[k])
            if pv: mf.append(pv[k])
        if n >= 2 and msum:
            mf.append(mfma(LA(qt), "a", ONES, "a", P(pb), "v", None if jj == 0 else LA(qt)))
        nm = len(mf)
        sc = nm/17.0 if msum else nm/16.0
        def G(x): return min(nm-1, int(x*sc))
        chains = []
        if 1 <= n <= 96:
            jj2, qt2 = divmod(n-1, 6)
            sb = (n-1) % 2; pb2 = (n-1) % 2
            e = [S(sb, 0)+r for r in range(4)] + [S(sb, 1)+r for r in range(4)]
            chains.append([([ins(f"v_exp_f32 v{e[k]}, v{e[k]}")], G(2*k), G(2*k)) for k in range(8)])
            cv = []
            for k in range(8):
                if not msum: cv.append(([ins(f"v_add_f32 v{LS+qt2}, v{LS+qt2}, v{e[k]}")], G(2*k+1), G(2*k+1)))
                if k % 2 == 1:
                    cv.append(([ins(f"v_cvt_pk_bf16_f32 v{P(pb2)+k//2}, v{e[k-1]}, v{e[k]}")], G(2*k+1), G(2*k+1)))
            chains.append(cv)
        if n >= 2:
            jb, q = divmod(n-2, 6)
            if jb + 1 <= 15:
                par = (jb+1) % 2
                rds = []
                if q in (0, 1): rds = [self.rd_k(par, q, ks) for ks in range(4)]
                else:
                    for dt in range((q-2)*2, (q-2)*2+2): rds += [self.rd_v(par, dt, 0), self.rd_v(par, dt, 1)]
                gp = [1, 5, 9, 13] if q != 5 else [1, 5, 9, 10]
                chains.append([([x], G(gp[k]), G(gp[k])) for k, x in enumerate(rds)])
        if dma:
            nd = sum(1 for x in dma if x.kind == "dma")
            slots = {0: [], 1: [16], 2: [11, 16], 4: [3, 7, 11, 16], 8: [2, 4, 6, 8, 10, 12, 14, 16]}.get(nd) or [int(3 + (16-3)*k/(nd-1)) for k in range(nd)]
            ch = []; seen = 0
            for x in dma:
                if x.kind == "dma":
                    g = G(slots[seen]); seen += 1
                    grp = [x] if x.meta.get("credit") is None else [ins(f"s_waitcnt vmcnt({x.meta['credit']})"), x]
                    ch.append((grp, g, g))
                else:
                    ch.append(([x], 0, nm-1))
            for k in range(len(ch)-2, -1, -1):
                if ch[k][0][-1].kind != "dma": ch[k] = (ch[k][0], 0, max(0, ch[k+1][2] - (1 if ch[k+1][0][-1].kind == "dma" else 0)))
            chains.append(ch)
        if early: chains.append([([x], 0, nm-1) for x in early])
        if extra: chains.append([(g, (k*nm)//len(extra), nm-1) for k, g in enumerate(extra)])
        self.run(mf, chains, pre)

    def body(self, j, dmaG, tog=(), nper=6, extra=(), extra2=()):
        bar = []
        if j + 1 <= 15: bar.append(wait_tag(("kv", j+1)))
        if extra: bar.append(wait_tag(("wo",)))
        bar += [ins("s_waitcnt lgkmcnt(0)"), ins("s_barrier")]
        if self.o.get("baracct"):
            b0 = [ins("s_memtime s[92:93]"), ins("s_waitcnt lgkmcnt(0)")]
            b1 = [ins("s_memtime s[94:95]"), ins("s_waitcnt lgkmcnt(0)")]
            b2 = [ins("s_memtime s[96:97]"), ins("s_waitcnt lgkmcnt(0)"), ins("s_sub_u32 s98, s94, s92"), ins("s_add_u32 s100, s100, s98"),
                  ins("s_sub_u32 s98, s96, s94"), ins("s_add_u32 s101, s101, s98")]
            bar = b0 + bar[:1] + b1 + bar[1:] + b2
        tk = [x for x in tog if any(f"v{KA+z}," in x.txt for z in range(4))]
        tv = [x for x in tog if x not in tk]
        flat = [x for g in dmaG for x in g]
        cr = self.o.get("credit")
        if cr is not None and j <= 12:
            k = 0
            for x in flat:
                if x.kind == "dma":
                    x.meta["credit"] = cr[k % len(cr)] if isinstance(cr, list) else cr
                    k += 1
        nd = sum(1 for x in flat if x.kind == "dma")
        if nd == 8: cnt = self.o.get("dmacnt", [1, 1, 2, 1, 1, 2])
        else: cnt = [nd//6 + (1 if q < nd % 6 else 0) for q in range(6)]
        per = [[] for _ in range(6)]
        q = 0; seen = 0
        for x in flat:
            while q < 5 and seen >= cnt[q]: q += 1; seen = 0
            per[q].append(x)
            if x.kind == "dma": seen += 1
        for q in range(6):
            e = tv[:4] if q == 0 else (tv[4:] if q == 1 else [])
            ex = []
            if extra or extra2:
                xs = list(extra) + list(extra2)
                n = len(xs); ex = xs[q*n//6:(q+1)*n//6]
            self.period(6*j + 2 + q, dma=per[q], pre=(bar + tk) if q == 0 else (), early=e, extra=ex)

    def tog(self):
        return [ins(f"v_xor_b32 v{KA+x}, {PHI}, v{KA+x}") for x in range(4)] + [ins(f"v_xor_b32 v{VA+x}, {PHI}, v{VA+x}") for x in range(8)]
    def attention_shared(self):
        p = self.p
        look = self.o.get("look", 3)
        if look == 4:
            t3 = self.kv_pieces(3, 0, 8)
            self.period(0, dma=[x for g in t3[:4] for x in g]); self.period(1, dma=[x for g in t3[4:] for x in g])
            self.body(0, self.dma_kv_abs(("kv", 4), 0))
        else:
            self.period(0); self.period(1)
            self.body(0, self.dma_kv_abs(("kv", 3), 3))
        p(f"s_mov_b32 s{sM}, s{sKVl}")
        split = self.o.get("atsplit")
        runs = [("at", 0, 5, self.o.get("credit"))] if not split else [("at", 0, split[0], split[1]), ("au", split[0], 5, split[2])]
        saved = self.o.get("credit")
        for name, k0, k1, cr in runs:
            self.o["credit"] = cr
            p(f"s_mov_b32 s{sCnt}, {k1 - k0}")
            for k in range(k0, k1):
                j = 1 + 2*k
                p.raw(f"@@LB {name} {k - k0}")
                self.stamp(True)
                if look == 4:
                    g1 = self.dma_kv(("kv", j+4), f"s_add_u32 m0, s{sM}, 8192", f"s_add_u32 m0, s{sM}, 12288")
                    self.body(j, g1, tog=self.tog())
                    g2 = self.dma_kv(("kv", j+5), f"s_add_u32 m0, s{sM}, 0", f"s_add_u32 m0, s{sM}, 4096")
                    self.body(j+1, [[ins(f"s_xor_b32 s{sM}, s{sM}, {PHI}")]] + g2)
                else:
                    g1 = self.dma_kv(("kv", j+3), f"s_add_u32 m0, s{sM}, 0", f"s_add_u32 m0, s{sM}, 4096")
                    self.body(j, g1, tog=self.tog())
                    g2 = self.dma_kv(("kv", j+4), f"s_add_u32 m0, s{sM}, 8192", f"s_add_u32 m0, s{sM}, 12288")
                    g2[-1] = g2[-1] + [ins(f"s_xor_b32 s{sM}, s{sM}, {PHI}")]
                    self.body(j+1, g2)
                p(f"s_sub_u32 s{sCnt}, s{sCnt}, 1"); p(f"s_cmp_lg_u32 s{sCnt}, 0"); p(f"s_cbranch_scc1 L_{name}")
                p.raw(f"@@LE {name} {k - k0}")
        self.o["credit"] = saved if not split else split[2]
        if look == 4:
            self.body(11, self.dma_kv_abs(("kv", 15), 3), tog=self.tog())
            self.body(12, [])
        else:
            self.body(11, self.dma_kv_abs(("kv", 14), 2), tog=self.tog())
            self.body(12, self.dma_kv_abs(("kv", 15), 3))
        self.o["credit"] = saved
    def attention_tail(self, last):
        fuse = self.o.get("fuse")
        prep_here = ((not last) if fuse else last) and not self.o.get("woearly") and not self.o.get("womid") and not self.o.get("rawwo")
        self.stamp(True)
        if prep_here:
            W = self.wo_prep_groups(); h = 9 + 4*3
            self.body(13, self.dma_wo_last(), tog=self.tog())
            self.body(14, [], extra=W[:h])
            self.body(15, (self.w_tile(0, 1) + self.x_tile(0) + ([] if self.o.get("w1late") else self.w_tile(1, 1))) if not last else [], tog=self.tog(), extra2=W[h:])
        elif not last:
            self.body(13, self.warm_wo() if self.o.get("rawwo") else [], tog=self.tog())
            self.body(14, [])
            self.body(15, self.w_tile(0, 1) + self.x_tile(0) + ([] if self.o.get("w1late") else self.w_tile(1, 1)), tog=self.tog())
        else:
            self.body(13, [], tog=self.tog(), extra2=[[x] for x in self.k3_setup()])
            self.body(14, [], extra2=[self.poll_issue(f"v_mov_b32 VDST, s{sC1}")] + ([[x] for x in self.k3_setup2()] if self.o.get("rawwo") and self.o.get("apre", False) else []))
            if self.o.get("rawwo") and self.o.get("apre", False):
                A3 = self.k3_loads(0, 0, 0, "A") + self.k3_loads(1, 1, 1, "A") + self.k3_loads(2, 2, 2, "A")
                self.body(15, A3, tog=self.tog())
            else:
                self.body(15, [], tog=self.tog())
            self.poll_check(8 if self.o.get('rawwo') else 128)
    def wo_prep_groups(self, stage=False):
        setup = [ins("v_and_b32 v33, 15, v0"), ins("v_lshrrev_b32 v34, 4, v0"), ins("v_lshrrev_b32 v35, 2, v33"), ins("v_and_b32 v33, 3, v33"),
                 ins("v_lshl_add_u32 v32, v34, 2, v35"), ins("v_lshlrev_b32 v32, 10, v32"), ins("v_lshl_add_u32 v32, v33, 4, v32"),
                 ins(f"s_lshl_b32 s88, s{sW}, 8"), ins("v_add_u32 v32, s88, v32")]
        G = [[x] for x in setup]
        mod = self.o['last_store_mod']
        for nt in range(8):
            u, par = nt >> 1, nt & 1
            d = 252 if not stage else OS(nt + (0 if stage is True else stage))
            G.append([ins(f"ds_read_b64_tr_b16 a[{d}:{d+1}], v32 offset:{64*u + 8*par}")])
            G.append([ins(f"ds_read_b64_tr_b16 a[{d+2}:{d+3}], v32 offset:{16384 + 64*u + 8*par}")])
            if stage: continue
            g = []
            if nt % 4 == 0: g.append(ins(f"s_add_u32 s{sT2}, s{sWTo}, {nt*1024}"))
            g.append(ins(f"buffer_store_dwordx4 a[{d}:{d+3}], v{VST}, s[{SWT}:{SWT+3}], s{sT2} offen offset:{(nt % 4)*1024} {mod}"))
            G.append(g)
        return G
    def warm_wo(self):
        G = []
        for half in range(2):
            g = [ins(f"s_add_u32 s{sT1}, s{sWOo}, {half*4096}")]
            for n in range(4):
                i = ins(f"buffer_load_dwordx4 a[252:255], v{VST}, s[{SWO}:{SWO+3}], s{sT1} offen offset:{1024*n}", tag=("warm",))
                i.kind = "dma"; i.wr = set(); i.rd.discard("m0")
                g.append(i); G.append(g); g = []
        return G
    def dma_wo_last(self):
        G = []
        for half in range(2):
            g = [ins(f"s_add_u32 s{sT1}, s{sWOo}, {half*4096}"), ins(f"s_lshl_b32 s{sWoM}, s{sW}, 13"), ins(f"s_add_u32 m0, s{sWoM}, {half*4096}")]
            for n in range(4):
                g.append(ins(f"buffer_load_dwordx4 v{VST}, s[{SWO}:{SWO+3}], s{sT1} offen offset:{1024*n} nt lds", tag=("wo",)))
                G.append(g); g = []
        return G

    FLAG = 131072
    def softmax_check(self, item):
        p = self.p
        t = S(0, 0)
        for qt in range(6): p(f"v_accvgpr_read_b32 v{t+qt}, a{LA(qt)}")
        p(f"v_max3_f32 v{t+6}, v{t}, v{t+1}, v{t+2}"); p(f"v_min3_f32 v{t+7}, v{t}, v{t+1}, v{t+2}")
        p(f"v_max3_f32 v{t+6}, v{t+6}, v{t+3}, v{t+4}"); p(f"v_min3_f32 v{t+7}, v{t+7}, v{t+3}, v{t+4}")
        p(f"v_max_f32 v{t+6}, v{t+6}, v{t+5}"); p(f"v_min_f32 v{t+7}, v{t+7}, v{t+5}")
        p(f"v_cmp_nge_f32 vcc, {f32(2.0**24)}, v{t+6}")
        p("s_mov_b64 s[88:89], vcc")
        p(f"v_cmp_nle_f32 vcc, {f32(2.0**-24)}, v{t+7}")
        p("s_or_b64 s[88:89], s[88:89], vcc")
        p("s_cmp_lg_u64 s[88:89], 0"); p("s_cselect_b32 s88, 1, 0")
        p(f"v_mov_b32 v{t}, s88"); p(f"s_lshl_b32 s89, s{sW}, 2"); p(f"s_add_u32 s89, s89, {self.FLAG}"); p(f"v_mov_b32 v{t+1}, s89")
        p(f"ds_write_b32 v{t+1}, v{t}")
        p("s_waitcnt lgkmcnt(0)"); p("s_barrier")
        p(f"v_mov_b32 v{t+1}, {self.FLAG}")
        p(f"ds_read_b128 v[{t+4}:{t+7}], v{t+1}")
        p(f"v_or_b32 v{t+4}, v{t+4}, v{t+5}"); p(f"v_or_b32 v{t+6}, v{t+6}, v{t+7}"); p(f"v_or_b32 v{t+4}, v{t+4}, v{t+6}")
        p(f"v_readfirstlane_b32 s88, v{t+4}")
        p("s_cmp_lg_u32 s88, 0")
        p("s_cbranch_scc1 L_FB")
        p.raw(f"L_OE{item}:")

    def fallback(self):
        q = K2(self.o); q.phase = "fb"; p = q.p
        M = LS
        def load_tile():
            p(f"s_mov_b32 s{sT2}, s{sTc}")
            q.emit_groups(q.dma_kv_abs(("fb",), 0))
            p("s_waitcnt vmcnt(0)"); p("s_barrier")
        def qk(qt):
            for kt in range(2):
                for ks in range(4):
                    p.add(mfma(S(0, kt), "v", KF(0, kt, ks), "a", Q(qt, ks), "a", None if ks == 0 else S(0, kt)))
        p.raw("L_FB:")
        p("s_waitcnt vmcnt(0) lgkmcnt(0)"); p("s_barrier")
        p(f"s_mov_b32 s{SKV+2}, {KV_BYTES}")
        for qt in range(6): p(f"v_mov_b32 v{M+qt}, 0xff800000")
        p(f"s_lshl_b32 s{sTc}, s{sItem}, 17"); p(f"s_mov_b32 s{sCnt}, 16")
        p.raw("L_FB1:")
        load_tile()
        for kt in range(2):
            for ks in range(4): p.add(q.rd_k(0, kt, ks))
        for qt in range(6):
            qk(qt)
            e = [S(0, 0)+r for r in range(4)] + [S(0, 1)+r for r in range(4)]
            for k in range(0, 8, 2): p(f"v_max3_f32 v{M+qt}, v{e[k]}, v{e[k+1]}, v{M+qt}")
        p("s_waitcnt lgkmcnt(0)"); p("s_barrier")
        p(f"s_sub_u32 s{sCnt}, s{sCnt}, 1"); p(f"s_cmp_lg_u32 s{sCnt}, 0"); p("s_cbranch_scc1 L_FB1")
        t = S(1, 0)
        for qt in range(6):
            m = M + qt
            p(f"v_mov_b32 v{t}, v{m}"); p(f"v_permlane32_swap_b32 v{t}, v{m}"); p(f"v_max_f32 v{m}, v{m}, v{t}")
            p(f"v_mov_b32 v{t}, v{m}"); p(f"v_permlane16_swap_b32 v{t}, v{m}"); p(f"v_max_f32 v{m}, v{m}, v{t}")
        for r in range(192): p(f"v_mov_b32 v{ACC+r}, 0")
        p(f"v_mov_b32 v{t}, 0")
        for r in range(24): p(f"v_accvgpr_write_b32 a{LA(0)+r}, v{t}")
        p(f"s_lshl_b32 s{sTc}, s{sItem}, 17"); p(f"s_mov_b32 s{sCnt}, 16")
        p("s_nop 7")
        p.raw("L_FB2:")
        load_tile()
        for kt in range(2):
            for ks in range(4): p.add(q.rd_k(0, kt, ks))
        for dt in range(8):
            p.add(q.rd_v(0, dt, 0)); p.add(q.rd_v(0, dt, 1))
        for qt in range(6):
            qk(qt)
            e = [S(0, 0)+r for r in range(4)] + [S(0, 1)+r for r in range(4)]
            for k in range(8): p(f"v_sub_f32 v{e[k]}, v{e[k]}, v{M+qt}")
            for k in range(8): p(f"v_exp_f32 v{e[k]}, v{e[k]}")
            for k in range(0, 8, 2): p(f"v_cvt_pk_bf16_f32 v{P(0)+k//2}, v{e[k]}, v{e[k+1]}")
            for dt in range(8): p.add(mfma(acc(dt, qt), "v", VF(0, dt), "a", P(0), "v", acc(dt, qt)))
            p.add(mfma(LA(qt), "a", ONES, "a", P(0), "v", LA(qt)))
        p("s_waitcnt lgkmcnt(0)"); p("s_nop 7"); p("s_nop 7"); p("s_barrier")
        p(f"s_sub_u32 s{sCnt}, s{sCnt}, 1"); p(f"s_cmp_lg_u32 s{sCnt}, 0"); p("s_cbranch_scc1 L_FB2")
        p("s_nop 7"); p("s_nop 7")
        p(f"s_cmp_eq_u32 s{sItem}, 0"); p("s_cbranch_scc1 L_OE0")
        if self.o.get("fuse"):
            for x in self.k3_setup(): p.add(x)
            if self.o.get("rawwo") and self.o.get("apre", False):
                for x in self.k3_setup2(): p.add(x)
                for g in self.k3_loads(0, 0, 0, "A") + self.k3_loads(1, 1, 1, "A") + self.k3_loads(2, 2, 2, "A"):
                    for x in g: p.add(x)
        p("s_branch L_OE1")
        L, st = finalize(p.L)
        return L

    def signal(self, offreg_txt, uid=None):
        uid = uid or self.uid()
        L = [ins(f"s_cmp_lg_u32 s{sW}, 0"), ins(f"s_cbranch_scc1 L_sig{uid}"),
             ins(f"v_mov_b32 v{VPOLL+1}, 1"), ins(offreg_txt), ins("s_mov_b64 exec, 1"),
             ins(f"buffer_atomic_add v{VPOLL+1}, v{VPOLL+2}, s[{SFL}:{SFL+3}], 0 offen sc1"),
             ins("s_mov_b64 exec, -1")]
        for x in L: x.meta["alt"] = True
        L.append(I(f"L_sig{uid}:", "label"))
        return L
    def uid(self):
        self._uid = getattr(self, "_uid", 0) + 1
        return self._uid
    def poll_issue(self, off_txt):
        return [ins(off_txt.replace("VDST", f"v{VPOLL+3}")), ins(f"buffer_load_dword v{VPOLL}, v{VPOLL+3}, s[{SFL}:{SFL+3}], 0 offen sc1")]
    def poll_check(self, target):
        p = self.p
        uid = self.uid()
        p(f"v_readfirstlane_b32 s88, v{VPOLL}")
        p(f"s_cmp_ge_u32 s88, {target}"); p(f"s_cbranch_scc1 L_ok{uid}")
        L = [f"s_mov_b32 s89, 0x40000", f"L_spin{uid}:", "s_sleep 2",
             f"buffer_load_dword v{VPOLL}, v{VPOLL+3}, s[{SFL}:{SFL+3}], 0 offen sc1", "s_waitcnt vmcnt(0)",
             f"v_readfirstlane_b32 s88, v{VPOLL}", "s_nop 3", "s_sub_u32 s89, s89, 1", "s_cmp_eq_u32 s89, 0", f"s_cbranch_scc1 L_ok{uid}",
             f"s_cmp_lt_u32 s88, {target}", f"s_cbranch_scc1 L_spin{uid}"]
        for t in L: p.add(I(t, "label", verbatim=True))
        p.raw(f"L_ok{uid}:")

    def k3_setup(self):
        L = []
        A = lambda t: L.append(ins(t))
        A(f"s_and_b32 s88, s{sHG}, 3"); A(f"s_lshr_b32 s89, s{sHG}, 2")
        A(f"s_lshl_b32 s90, s{sP}, 2"); A("s_add_u32 s90, s90, s88"); A("s_lshl_b32 s90, s90, 7"); A(f"s_lshl_b32 s91, s{sW}, 5"); A("s_add_u32 s90, s90, s91"); A("s_lshl_b32 s90, s90, 13")
        rot = self.o.get("k3rot", True)
        if rot: A(f"s_and_b32 s{kRho}, s{sB}, 3"); A(f"s_add_u32 s{kRho}, s{kRho}, s{sW}")
        else: A(f"s_mov_b32 s{kRho}, s{sW}")
        for pr in range(4):
            A(f"s_add_u32 s91, s{kRho}, {pr}"); A("s_and_b32 s91, s91, 3"); A("s_lshl_b32 s91, s91, 11"); A(f"s_add_u32 s{kA+pr}, s90, s91")
        if rot: A("s_lshr_b32 s91, s88, 1"); A(f"s_add_u32 s{kSig}, s88, s91")
        else: A(f"s_mov_b32 s{kSig}, 0")
        for qt in range(6):
            A(f"s_add_u32 s91, s{kSig}, {qt}"); A("s_cmp_ge_u32 s91, 6"); A("s_cselect_b32 s98, 6, 0"); A("s_sub_u32 s91, s91, s98"); A("s_lshl_b32 s91, s91, 10")
            A(f"v_add_u32 v{VBQ+qt}, s91, v{VST}")
        A(f"s_lshl_b32 s90, s{sP}, 4"); A(f"s_add_u32 s90, s90, s{sB}"); A("s_lshl_b32 s90, s90, 1"); A("s_add_u32 s90, s90, s89"); A("s_lshl_b32 s90, s90, 7")
        A(f"s_lshl_b32 s91, s{sW}, 5"); A("s_add_u32 s90, s90, s91"); A(f"s_mul_i32 s{kBo}, s90, 6144")
        A(f"s_mul_i32 s90, s{sB}, 192"); A("s_mul_i32 s91, s89, 96"); A("s_add_u32 s90, s90, s91"); A("s_lshl_b32 s90, s90, 11")
        A(f"s_lshl_b32 s91, s{sP}, 10"); A("s_add_u32 s90, s90, s91"); A("s_lshl_b32 s91, s88, 8"); A("s_add_u32 s90, s90, s91")
        A(f"s_and_b32 s91, s{kRho}, 3"); A("s_lshl_b32 s91, s91, 6"); A(f"s_add_u32 s{kOut}, s90, s91")
        A(f"s_mov_b32 s{SX}, s68"); A(f"s_mov_b32 s{SX+1}, s69"); A(f"s_mov_b32 s{SX+2}, {OUT_BYTES}"); A(f"s_mov_b32 s{SX+3}, 0x00020000")
        A(f"v_add_u32 v{VB4}, 4096, v{VST}")
        if self.o.get("rawwo"):
            A(f"s_lshl_b32 s90, s{sW}, 20"); A("s_lshl_b32 s91, s88, 8"); A(f"s_add_u32 s{kA}, s90, s91")
            A(f"s_lshl_b32 s{kA+1}, s{sW}, 15")
        return L
    def k3_setup2(self):
        L = []
        A = lambda t: L.append(ins(t))
        A("v_and_b32 v32, 15, v0"); A("v_lshrrev_b32 v33, 4, v0"); A("v_lshlrev_b32 v35, 2, v33"); A("v_xor_b32 v35, v35, v32"); A("v_lshlrev_b32 v35, 4, v35")
        A(f"v_lshl_add_u32 v{VAD2[0]}, v33, 10, v35")
        for n in range(1, 4): A(f"v_add_u32 v{VAD2[n]}, {n*3072}, v{VAD2[0]}")
        A("v_lshrrev_b32 v35, 2, v32"); A("v_and_b32 v32, 3, v32")
        A("v_lshl_add_u32 v33, v33, 2, v35"); A("v_lshlrev_b32 v33, 8, v33"); A(f"v_add_u32 v33, s{kA+1}, v33")
        A("v_lshlrev_b32 v35, 2, v35")
        for pr in range(4):
            A(f"s_add_u32 s91, s{kRho}, {pr}"); A("s_and_b32 s91, s91, 3"); A("s_lshl_b32 s91, s91, 2")
            A(f"v_add_u32 v{VAR2+pr}, s91, v32"); A(f"v_xor_b32 v{VAR2+pr}, v{VAR2+pr}, v35"); A(f"v_lshl_add_u32 v{VAR2+pr}, v{VAR2+pr}, 4, v33")
        return L
    def k3_loads(self, b, o, j=None, part=None):
        m = self.o.get("k3_ld", "sc1")
        raw = self.o.get("rawwo")
        bf = BF2 if raw else BF
        G = []
        for qt in range(6):
            g = [ins(f"s_add_u32 s{kT0}, s{kBo}, {o*6144}")] if qt == 0 else []
            g.append(ins(f"buffer_load_dwordx4 {rng('a', bf(b, qt), 4)}, v{VBQ+qt}, s[{SO}:{SO+3}], s{kT0} offen {m}"))
            G.append(g)
        if raw:
            for half in range(2):
                g = [ins(f"s_add_u32 s{kT1}, s{kA}, {o*32768 + half*16384}"), ins(f"s_add_u32 m0, s{kA+1}, {b*8192 + half*4096}")]
                for n in range(4):
                    g.append(ins(f"buffer_load_dwordx4 v{VAD2[n]}, s[{SWO}:{SWO+3}], s{kT1} offen offset:{1024*n} lds", tag=("A", j)))
                    G.append(g); g = []
            if part == "A": return G[6:]
            if part == "B": return G[:6]
            if self.o.get("afirst"): G = G[6:] + G[:6]
            return G
        for pr in range(4):
            t = kT1 if pr % 2 == 0 else kT0
            G.append([ins(f"s_add_u32 s{t}, s{kA+pr}, {o*8192}"),
                      ins(f"buffer_load_dwordx4 {rng('a', AF(b, 2*pr), 4)}, v{VST}, s[{SWT}:{SWT+3}], s{t} offen {m}")])
            G.append([ins(f"buffer_load_dwordx4 {rng('a', AF(b, 2*pr+1), 4)}, v{VST}, s[{SWT}:{SWT+3}], s{t} offen offset:1024 {m}")])
        return G
    def k3_tr(self, t):
        L = []
        for nu in range(8):
            pr, par = nu >> 1, nu & 1
            d = AF2(t % 2, nu)
            L.append(ins(f"ds_read_b64_tr_b16 a[{d}:{d+1}], v{VAR2+pr} offset:{(t % 4)*8192 + 8*par}"))
            L.append(ins(f"ds_read_b64_tr_b16 a[{d+2}:{d+3}], v{VAR2+pr} offset:{(t % 4)*8192 + 4096 + 8*par}"))
        return L
    def k3_adv(self, steps):
        if self.o.get("rawwo"):
            return [ins(f"s_add_u32 s{kA}, s{kA}, {(steps*32768) & 0xffffffff}"), ins(f"s_add_u32 s{kBo}, s{kBo}, {(steps*6144) & 0xffffffff}")]
        return [ins(f"s_add_u32 s{kA+pr}, s{kA+pr}, {(steps*8192) & 0xffffffff}") for pr in range(4)] + [ins(f"s_add_u32 s{kBo}, s{kBo}, {(steps*6144) & 0xffffffff}")]
    def k3_step(self, t, G, extra=(), dst=None, order=None, post=None):
        p = self.p
        dst = dst if dst is not None else []
        raw = self.o.get("rawwo")
        b = t % 4
        af = (lambda nu: AF2(t % 2, nu)) if raw else (lambda nu: AF(b, nu))
        bf = (lambda qt: BF2(b, qt)) if raw else (lambda qt: BF(b, qt))
        tr = []
        if raw and t + 1 <= 31:
            p.wait_tag(("A", t+1)); tr = self.k3_tr(t+1)
        n = 0
        extra = list(extra)
        for nu in (order or range(8)):
            for qt in range(6):
                p.add(mfma(oacc(nu, qt), "v", af(nu), "a", bf(qt), "a", None if t == 0 else oacc(nu, qt)))
                if n % 3 == 1 and n//3 < len(G):
                    for x in G[n//3]: p.add(x)
                elif tr and n % 3 != 1 and n >= 2: p.add(tr.pop(0))
                if n == 44:
                    for x in extra: p.add(x)
                if n in (8, 17, 26, 35, 43) and dst:
                    for x in dst.pop(0): p.add(x)
                if post: post(nu, qt)
                n += 1
        assert not tr
    def k3_main(self):
        p = self.p
        D = self.deferred
        if self.o.get("rawwo"):
            p.wait_tag(("A", 0))
            for x in self.k3_tr(0): p.add(x)
        if D:
            assert len(D) <= 24
            self.k3_step(0, self.k3_loads(3, 3, 3), extra=self.k3_adv(8), dst=D)
            for t in range(1, 9):
                i = (t-1) % 4
                self.k3_step(t, self.k3_loads((t+3) % 4, i, t+3), extra=self.k3_adv(8) if i == 3 else [], dst=D)
                if t == self.o.get("sig2", 7 if self.o.get("rawwo") else 6):
                    p.wait_tag(("o",)); p("s_barrier")
                    for x in self.signal(f"v_mov_b32 v{VPOLL+2}, s{sC2o}", uid="g2"): p.add(x)
            assert not D
            for i in range(4):
                t = 9 + i
                self.k3_step(t, self.k3_loads((t+3) % 4, i, t+3), extra=self.k3_adv(8) if i == 3 else [])
                if i == 2:
                    for x in self.poll_issue(f"v_mov_b32 VDST, s{sC2o}"): p.add(x)
        else:
            self.k3_step(0, self.k3_loads(3, 3, 3), extra=self.k3_adv(8))
            p(f"s_mov_b32 s{kCnt}, 3")
            for k in range(3):
                p.raw(f"@@LB k3a {k}")
                for i in range(4):
                    t = 1 + 4*k + i
                    ex = self.k3_adv(8) if i == 3 else []
                    self.k3_step(t, self.k3_loads((t+3) % 4, i, t+3), extra=ex)
                    if i == 1:
                        uid = "k3s"
                        p(f"s_cmp_lg_u32 s{kCnt}, 3"); p(f"s_cbranch_scc1 L_{uid}")
                        p.wait_tag(("o",)); p("s_barrier")
                        for x in self.signal(f"v_mov_b32 v{VPOLL+2}, s{sC2o}", uid="g2"): p.add(x)
                        p.raw(f"L_{uid}:")
                    if i == 2:
                        for x in self.poll_issue(f"v_mov_b32 VDST, s{sC2o}"): p.add(x)
                p(f"s_sub_u32 s{kCnt}, s{kCnt}, 1"); p(f"s_cmp_lg_u32 s{kCnt}, 0"); p("s_cbranch_scc1 L_k3a")
                p.raw(f"@@LE k3a {k}")
        self.stamp()
        for x in self.k3_adv(4 - 32): p.add(x)
        self.poll_check(16 if self.o.get('rawwo') else 8)
        for i in range(4):
            t = 13 + i
            self.k3_step(t, self.k3_loads((t+3) % 4, i, t+3), extra=self.k3_adv(8) if i == 3 else [])
        p(f"s_mov_b32 s{kCnt}, 3")
        for k in range(3):
            p.raw(f"@@LB k3b {k}")
            for i in range(4):
                t = 17 + 4*k + i
                self.k3_step(t, self.k3_loads((t+3) % 4, i, t+3), extra=self.k3_adv(8) if i == 3 else [])
            p(f"s_sub_u32 s{kCnt}, s{kCnt}, 1"); p(f"s_cmp_lg_u32 s{kCnt}, 0"); p("s_cbranch_scc1 L_k3b")
            p.raw(f"@@LE k3b {k}")
        for t in (29, 30): self.k3_step(t, [])
        if self.o.get("redovl", True):
            for pr, v in ((1, 7), (2, 2), (3, 3)):
                p(f"s_add_u32 s88, s{sW}, {pr}"); p("s_and_b32 s88, s88, 3"); p("s_mul_i32 s88, s88, 36864"); p(f"s_add_u32 s88, s88, {(pr-1)*12288}")
                p(f"v_add_u32 v{v}, s88, v{VST}")
            if self.o.get("rawwo"):
                p("s_waitcnt lgkmcnt(0)"); p("s_barrier")
            pend = []
            def post(nu, qt):
                if pend and qt in (1, 3, 5): p.add(pend.pop(0))
                if qt == 5 and nu >= 2:
                    pr, par = nu >> 1, nu & 1
                    v = {1: 7, 2: 2, 3: 3}[pr]
                    pend.extend(ins(f"ds_write_b128 v{v}, v[{oacc(nu, q)}:{oacc(nu, q)+3}] offset:{(par*6 + q)*1024}") for q in range(6))
            self.k3_step(31, [], order=[2, 3, 4, 5, 6, 7, 0, 1], post=post)
            self.red_pending = pend
        else:
            assert not self.o.get("rawwo")
            self.k3_step(31, [])
        self.stamp()
        if self.o.get("redovl", True):
            for x in self.red_pending: p.add(x)
            p(f"s_mul_i32 s88, s{sW}, 36864"); p(f"v_add_u32 v8, s88, v{VST}")
        else:
            for pr, v in ((1, 7), (2, 2), (3, 3)):
                p(f"s_add_u32 s88, s{sW}, {pr}"); p("s_and_b32 s88, s88, 3"); p("s_mul_i32 s88, s88, 36864"); p(f"s_add_u32 s88, s88, {(pr-1)*12288}")
                p(f"v_add_u32 v{v}, s88, v{VST}")
            p(f"s_mul_i32 s88, s{sW}, 36864"); p(f"v_add_u32 v8, s88, v{VST}")
            for pr, v in ((1, 7), (2, 2), (3, 3)):
                for par in range(2):
                    for qt in range(6):
                        a = oacc(2*pr + par, qt)
                        p(f"ds_write_b128 v{v}, v[{a}:{a+3}] offset:{(par*6 + qt)*1024}")
        p("s_waitcnt lgkmcnt(0)")
        p("s_barrier")
        for sl in range(3):
            for par in range(2):
                for qt in range(6):
                    a = oacc(2*(sl+1) + par, qt)
                    p(f"ds_read_b128 v[{a}:{a+3}], v8 offset:{sl*12288 + (par*6 + qt)*1024}")
        p("v_and_b32 v12, 15, v0"); p("v_lshrrev_b32 v13, 4, v0"); p("v_lshlrev_b32 v12, 11, v12"); p("v_lshl_add_u32 v9, v13, 4, v12")
        for qt in range(6):
            for par in range(2):
                a = oacc(par, qt)
                for sl in range(3):
                    s_ = oacc(2*(sl+1) + par, qt)
                    for r in range(4): p(f"v_add_f32 v{a+r}, v{a+r}, v{s_+r}")
            a0, a1 = oacc(0, qt), oacc(1, qt)
            t0 = 16 + (qt % 4)*4
            p(f"v_cvt_pk_bf16_f32 v{t0}, v{a0}, v{a0+1}"); p(f"v_cvt_pk_bf16_f32 v{t0+1}, v{a0+2}, v{a0+3}")
            p(f"v_cvt_pk_bf16_f32 v{t0+2}, v{a1}, v{a1+1}"); p(f"v_cvt_pk_bf16_f32 v{t0+3}, v{a1+2}, v{a1+3}")
            p(f"s_add_u32 s88, s{kSig}, {qt}"); p("s_cmp_ge_u32 s88, 6"); p("s_cselect_b32 s89, 6, 0"); p("s_sub_u32 s88, s88, s89"); p("s_lshl_b32 s88, s88, 15")
            p(f"s_add_u32 s{kT0}, s{kOut}, s88")
            p(f"buffer_store_dwordx4 v[{t0}:{t0+3}], v9, s[{SX}:{SX+3}], s{kT0} offen {self.o.get('out_mod', '')}")

    def o_epilogue(self, last):
        p = self.p
        fuse_last = last and self.o.get("fuse")
        pre = []
        raw = self.o.get("rawwo")
        if fuse_last:
            apre = raw and self.o.get("apre", False)
            if raw and not apre:
                for x in self.k3_setup2(): p.add(x)
            part = "B" if apre else None
            pre = self.k3_loads(0, 0, 0, part) + self.k3_loads(1, 1, 1, part) + self.k3_loads(2, 2, 2, part)
        defer = fuse_last and self.o.get("defer", True)
        self.deferred = []
        for qt in range(6): p(f"v_accvgpr_read_b32 v{LS+qt}, a{LA(qt)}")
        for qt in range(6): p(f"v_rcp_f32 v{LS+qt}, v{LS+qt}")
        vstage = [8, 12, 16, 20, 24, 28, 38, 42, 46, 50]
        ndir = 6
        nag = 8; abase = 224
        if fuse_last and raw:
            vstage = vstage[:8]; ndir = self.o.get("ndir", 4); nag = 24 - ndir; abase = 160
        for qt in range(6):
            for ks in range(4):
                m = qt*4 + ks
                a0, a1 = acc(2*ks, qt), acc(2*ks+1, qt)
                l = LS + qt
                if self.o.get("pk", True):
                    lp = l & ~1; sel = "op_sel_hi:[1,0]" if l % 2 == 0 else "op_sel:[0,1] op_sel_hi:[1,1]"
                    for a in (a0, a0+2, a1, a1+2): p(f"v_pk_mul_f32 v[{a}:{a+1}], v[{a}:{a+1}], v[{lp}:{lp+1}] {sel}")
                else:
                    for r in range(4): p(f"v_mul_f32 v{a0+r}, v{l}, v{a0+r}")
                    for r in range(4): p(f"v_mul_f32 v{a1+r}, v{l}, v{a1+r}")
                if defer: t0 = ((12 if m % 2 == 0 else 8) if raw else 54) if m < ndir + nag else vstage[m - ndir - nag]
                else: t0 = SB + ((ks + 4*qt) % 6)*4
                p(f"v_cvt_pk_bf16_f32 v{t0}, v{a0}, v{a0+1}")
                p(f"v_cvt_pk_bf16_f32 v{t0+1}, v{a0+2}, v{a0+3}")
                p(f"v_cvt_pk_bf16_f32 v{t0+2}, v{a1}, v{a1+1}")
                p(f"v_cvt_pk_bf16_f32 v{t0+3}, v{a1+2}, v{a1+3}")
                n = ks*6 + qt
                mod = self.o['last_store_mod']
                if last:
                    for _ in range(2):
                        if pre:
                            for x in pre.pop(0): p.add(x)
                    if not defer or m < ndir:
                        p(f"s_add_u32 s{sT0}, s{sOo}, {n*1024}")
                        p(f"buffer_store_dwordx4 v[{t0}:{t0+3}], v{VST}, s[{SO}:{SO+3}], s{sT0} offen {mod}", tag=("o",))
                    else:
                        if m < ndir + nag:
                            d = abase + (m - ndir)*4
                            for r in range(4): p(f"v_accvgpr_write_b32 a{d+r}, v{t0+r}")
                            src = f"a[{d}:{d+3}]"
                        else: src = f"v[{t0}:{t0+3}]"
                        self.deferred.append([ins(f"s_add_u32 s{sT2}, s{sOo}, {n*1024}"),
                                              ins(f"buffer_store_dwordx4 {src}, v{VST}, s[{SO}:{SO+3}], s{sT2} offen {mod}", tag=("o",))])
                else:
                    for r in range(4): p(f"v_accvgpr_write_b32 a{OS(n)+r}, v{t0+r}")

    def final(self):
        p = self.p
        p.wait_tag(("wo",))
        p("s_barrier")
        p("v_and_b32 v8, 15, v0"); p("v_lshrrev_b32 v2, 4, v0"); p("v_lshrrev_b32 v3, 2, v8"); p("v_and_b32 v7, 3, v8")
        p("v_lshl_add_u32 v6, v2, 2, v3"); p("v_lshlrev_b32 v6, 10, v6"); p("v_lshl_add_u32 v6, v7, 4, v6")
        p(f"s_lshl_b32 s88, s{sW}, 8"); p("v_add_u32 v6, s88, v6")
        for nt in range(8):
            u, par = nt >> 1, nt & 1
            d = 32 + nt*4
            p(f"ds_read_b64_tr_b16 v[{d}:{d+1}], v6 offset:{64*u + 8*par}")
            p(f"ds_read_b64_tr_b16 v[{d+2}:{d+3}], v6 offset:{16384 + 64*u + 8*par}")
        for nt in range(8):
            d = 32 + nt*4
            if nt % 4 == 0: p(f"s_add_u32 s{sT1}, s{sWTo}, {nt*1024}")
            p(f"buffer_store_dwordx4 v[{d}:{d+3}], v{VST}, s[{SWT}:{SWT+3}], s{sT1} offen offset:{(nt % 4)*1024} {self.o['last_store_mod']}")

    def build(self):
        p = self.p
        assert self.o["msum"]
        self.prologue()
        if self.o["timing"]: p("s_mov_b32 s99, 0")
        if self.o.get("delaywg"):
            p("s_and_b32 s88, s2, 7"); p("s_cmp_lg_u32 s88, 3"); p("s_cbranch_scc1 L_nodelay")
            p("s_memrealtime s[88:89]"); p("s_waitcnt lgkmcnt(0)"); p(f"s_add_u32 s90, s88, {self.o['delaywg']}")
            p.raw("L_spinw:"); p("s_memrealtime s[88:89]"); p("s_waitcnt lgkmcnt(0)"); p("s_cmp_lt_u32 s88, s90"); p("s_cbranch_scc1 L_spinw")
            p.raw("L_nodelay:")
        self.stamp()
        if self.o.get("entry"):
            p("s_mov_b32 m0, 62"); p("s_nop 1"); p("v_writelane_b32 v5, s100, m0")
        early = self.o.get("woearly")
        p(f"s_mov_b32 s{SO+2}, {0 if self.o.get('stA') else O_BYTES}")
        mid = self.o.get("womid")
        if mid:
            assert self.o.get("stA") and self.o.get("fuse") and self.o.get("stpat") == 3
            self.emit_groups(self.w_tile(0, 0) + self.x_tile(0) + self.w_tile(1, 0) + self.dma_wo_last())
        elif early:
            assert self.o.get("stA") and self.o.get("fuse")
            self.emit_groups(self.w_tile(0, 0) + self.x_tile(0) + self.dma_wo_last() + self.w_tile(1, 0))
        else:
            self.emit_groups(self.w_tile(0, 0) + self.x_tile(0) + ([] if self.o.get("w1late") else self.w_tile(1, 0)))
        self.prologue2()
        if mid:
            p(f"s_mov_b32 s{sOreal}, s{sOo}"); p(f"s_mov_b32 s{sOo}, {4*6144}")
            p(f"s_add_u32 s{SO}, s{SWT}, s{sWTo}"); p(f"s_addc_u32 s{SO+1}, s{SWT+1}, 0")
            p(f"s_sub_u32 s{SO}, s{SO}, {12*1024}"); p(f"s_subb_u32 s{SO+1}, s{SO+1}, 0")
            p(f"s_mov_b32 s{SO+2}, 0"); p(f"s_mov_b32 s{sSz1}, {20*1024}"); p(f"s_mov_b32 s{sSz2}, 0")
        if early:
            p(f"s_mov_b32 s{sOreal}, s{sOo}"); p(f"s_mov_b32 s{sOo}, {4*6144}")
            p(f"s_add_u32 s{SO}, s{SWT}, s{sWTo}"); p(f"s_addc_u32 s{SO+1}, s{SWT+1}, 0"); p(f"s_mov_b32 s{SO+2}, 8192")
            W = self.wo_prep_groups(stage=True)
            for g in W[:9]:
                for x in g: p.add(x)
            p.wait_tag(("wo",)); p("s_barrier")
            for g in W[9:]:
                for x in g: p.add(x)
        for item in range(2):
            last = item == 1
            p.raw("@@SB A"); self.qproj_a(); p.raw("@@SE A")
            p.raw(f"@@SB B{item}"); self.qproj_b(last); self.stamp(); p.raw(f"@@SE B{item}")
            p.raw("@@SB C"); self.attention_shared(); p.raw("@@SE C")
            p.raw(f"@@SB D{item}")
            self.attention_tail(last)
            self.stamp()
            if self.o.get("guard", True): self.softmax_check(item)
            self.o_epilogue(last)
            self.stamp()
            if not last:
                if self.o.get("woearly") or self.o.get("womid"):
                    p(f"s_mov_b32 s{sOo}, s{sOreal}"); p(f"s_mov_b32 s{SO}, s72"); p(f"s_mov_b32 s{SO+1}, s73")
                if self.o.get("womid"):
                    p(f"s_mov_b32 s{sSz1}, {O_BYTES}"); p(f"s_mov_b32 s{sSz2}, {O_BYTES}")
                p(f"s_add_u32 s{sWo}, s{sWo}, 256"); p(f"s_add_u32 s{sOo}, s{sOo}, {4*6144}")
                p(f"s_mov_b32 s{sItem}, 1"); p(f"s_mov_b32 s{SO+2}, {O_BYTES}")
            else:
                if self.o.get("fuse"): self.k3_main()
                self.stamp()
                p("s_waitcnt vmcnt(0)")
                self.stamp()
                self.stamp_flush()
                p("s_waitcnt vmcnt(0)")
            p.raw(f"@@SE D{item}")
        L, st = finalize(p.L)
        L = fold(L)
        segs, top = segments(L)
        out = [i for k, i in top if k == "ins"]
        lab = lambda t: I(t, "label")
        br = lambda tgt: [ins(f"s_cmp_eq_u32 s{sItem}, 1"), ins(f"s_cbranch_scc1 {tgt}")]
        out += [lab("L_A:")] + segs["A"] + br("L_B1") + segs["B0"] + [lab("L_C:")] + segs["C"] + br("L_D1") + segs["D0"] + [ins("s_branch L_A")]
        out += [lab("L_B1:")] + segs["B1"] + [ins("s_branch L_C")]
        out += [lab("L_D1:")] + segs["D1"] + [lab("K2_END:"), ins("s_endpgm")]
        if self.o.get("guard", True): out += self.fallback()
        return out, st

if __name__ == "__main__":
    k = K2(); L, st = k.build()
    print(st, len(L))
```

```python
from dsl import *
import struct

def f32(x): return "0x%08x" % struct.unpack("<I", struct.pack("<f", x))[0]

NB, SQ, DM, H, SK, DH = 16, 192, 512, 32, 512, 128
X_BYTES = NB*SQ*DM*2
KV_BYTES = NB*H*SK*DH*2
W_BYTES = DM*H*DH*2
O_BYTES = 2*NB*2*128*6*1024
WOT_OFF = O_BYTES
WOT_BYTES = 2*4*128*8*1024
OUT_BYTES = NB*SQ*1024*2

PHI = 65536
WSLOT = [65536, 81920, 98304]
XA, XB = 114688, 139264
DROP = 0x30000

ACC = 64
def acc(T, qt): return ACC + (T*6 + qt)*4
SB = 8
def S(buf, kt): return SB + buf*8 + kt*4
PB = 24
def P(buf): return PB + buf*4
LS = 32
KA = 38
VA = 42
DV = 50
WA = 54
XAD = 58
WD = [60, 61, 2, 3]
XD = [62, 63, 6, 7]
VST = 4
def Q(qt, ks): return (qt*4 + ks)*4
def OS(n): return n*4
def KF(buf, kt, ks): return 96 + buf*32 + (kt*4 + ks)*4
def VF(buf, dt): return 160 + buf*32 + dt*4
def WF(T): return 96 + T*4
def XF(buf, qt): return 128 + buf*24 + qt*4
ONES = 224
def LA(qt): return 228 + qt*4
SX, SW, SKV, SO, SWO, SWT = 4, 8, 12, 16, 20, 24
sW, sHP, sRH, sP, sB, sHG = 28, 29, 30, 31, 32, 33
sKVo, sKVl, sWo, sWl, sXo, sXl, sOo = 34, 35, 36, 37, 38, 39, 40
sT0, sT1, sC = 41, 42, 43
sWOo, sWTo = 44, 45
sItem, sCnt = 46, 47
sTile, sM, sTh1, sTh2, sWarmW, sWarmX, sWoM, sDrop, sTc, sRot = 74, 75, 76, 77, 78, 79, 80, 81, 84, 85
sT2 = 83
sC2 = 86
sWR, sXR = 78, 79

SFL = 92
kA, kBo, kT0, kT1, kOut, kCnt = 74, 78, 80, 81, 79, 47
sC1, sC2o = 97, 96
def oacc(nu, qt): return ACC + (nu*6 + qt)*4
def AF(buf, nu): return buf*56 + nu*4
def BF(buf, qt): return buf*56 + 32 + qt*4
VB4 = 6
VBQ = 58
kRho, kSig = 82, 85
VAD2 = [2, 3, 6, 7]
VAR2 = 54
VAR = 38
VAD = 50
def AF2(buf, nu): return buf*32 + nu*4
def BF2(buf, qt): return 64 + buf*24 + qt*4
sOreal = 98
sSz1, sSz2 = 76, 77
VPOLL = 34
MF = "v_mfma_f32_16x16x32_bf16"
def mfma(d, dk, a, ak, b, bk, c=None):
    cs = "0" if c is None else rng(dk, c, 4)
    return ins(f"{MF} {rng(dk,d,4)}, {rng(ak,a,4)}, {rng(bk,b,4)}, {cs}")

class K2:
    def __init__(self, opts=None):
        self.o = dict(nt="nt", w_mod="", x_mod="", store_mod="sc1", last_store_mod="sc1", timing=False, msum=True, warm=False, qrot=True, stA=True, stpat=3, credit=4, out_mod="sc1", rawwo=True, afirst=True, drop=[])
        if opts: self.o.update(opts)
        self.p = Prog()
        self.phase = ""

    def tile_addr(self):
        if self.o.get("perm4"):
            return [ins(f"s_and_b32 s{sTile}, s{sTc}, 0x6000"), ins(f"s_lshl_b32 s{sTile}, s{sTile}, 2"),
                    ins(f"s_and_b32 s{sT0}, s{sTc}, 0x18000"), ins(f"s_lshr_b32 s{sT0}, s{sT0}, 2"), ins(f"s_or_b32 s{sTile}, s{sTile}, s{sT0}"),
                    ins(f"s_and_b32 s{sT0}, s{sTc}, 0x20000"), ins(f"s_or_b32 s{sTile}, s{sTile}, s{sT0}"),
                    ins(f"s_add_u32 s{sTile}, s{sTile}, s{sKVo}"), ins(f"s_add_u32 s{sTc}, s{sTc}, 8192")]
        if not self.o.get("rot"):
            return [ins(f"s_add_u32 s{sTile}, s{sKVo}, s{sTc}"), ins(f"s_add_u32 s{sTc}, s{sTc}, 8192")]
        return [ins(f"s_add_u32 s{sTile}, s{sTc}, s{sRot}"), ins(f"s_and_b32 s{sTile}, s{sTile}, 0x1ffff"),
                ins(f"s_and_b32 s{sT0}, s{sTc}, 0x20000"), ins(f"s_add_u32 s{sTile}, s{sTile}, s{sT0}"),
                ins(f"s_add_u32 s{sTile}, s{sTile}, s{sKVo}"), ins(f"s_add_u32 s{sTc}, s{sTc}, 8192")]
    def dma_kv(self, tag, m0a, m0b, pre=()):
        nt = self.o['nt']
        G = []
        g = list(pre) + self.tile_addr() + [ins(m0a)]
        for k in range(4):
            g.append(ins(f"buffer_load_dwordx4 v{DV+k}, s[{SKV}:{SKV+3}], s{sTile} offen offset:{1024*k} {nt} lds", tag=tag))
            G.append(g); g = []
        g = [ins(f"s_add_u32 s{sT0}, s{sTile}, 4096"), ins(m0b)]
        for k in range(4):
            g.append(ins(f"buffer_load_dwordx4 v{DV+k}, s[{SKV}:{SKV+3}], s{sT0} offen offset:{1024*k} {nt} lds", tag=tag))
            G.append(g); g = []
        return G
    def dma_kv_abs(self, tag, slot):
        o = (slot >> 1)*PHI + (slot & 1)*8192
        return self.dma_kv(tag, f"s_add_u32 m0, s{sKVl}, {o}", f"s_add_u32 m0, s{sKVl}, {o + 4096}")
    def kv_pieces(self, tile, a, b):
        G = self.dma_kv_abs(("kv", tile), tile % 4)
        out = G[a:b]
        if a not in (0, 4):
            slot = tile % 4
            o = (slot >> 1)*PHI + (slot & 1)*8192 + (4096 if a >= 4 else 0)
            out[0] = [ins(f"s_add_u32 m0, s{sKVl}, {o}")] + out[0]
        return out
    def dma_w(self, tag, base_reg, goff, m0txt, rot=None):
        G = []
        if rot is None: g = [ins(f"s_add_u32 s{sT1}, s{base_reg}, {goff}")]
        else:
            g = [ins(f"s_add_u32 s{sT1}, s{sWR}, {rot*262144}"), ins(f"s_and_b32 s{sT1}, s{sT1}, 0x3fffff"), ins(f"s_add_u32 s{sT1}, s{sT1}, s{base_reg}")]
            if goff: g.append(ins(f"s_add_u32 s{sT1}, s{sT1}, {goff}"))
        g.append(ins(m0txt))
        for n in range(4):
            g.append(ins(f"buffer_load_dwordx4 v{WD[n]}, s[{SW}:{SW+3}], s{sT1} offen offset:{1024*n} {self.o['w_mod']} lds", tag=tag))
            G.append(g); g = []
        return G
    def x_soff(self, base_reg, tt):
        if not self.o.get("qrot"): return [ins(f"s_add_u32 s{sT1}, s{base_reg}, {tt*128}")]
        return [ins(f"s_add_u32 s{sT1}, s{sXR}, {tt*128}"), ins(f"s_and_b32 s{sT1}, s{sT1}, 1023"), ins(f"s_add_u32 s{sT1}, s{sT1}, s{base_reg}")]
    def dma_x(self, tag, base_reg, tt, m0a, m0b):
        G = []
        m = self.o['x_mod']
        g = self.x_soff(base_reg, tt) + [ins(m0a)]
        for n in range(4):
            g.append(ins(f"buffer_load_dwordx4 v{XD[n]}, s[{SX}:{SX+3}], s{sT1} offen offset:{1024*n} {m} lds", tag=tag))
            G.append(g); g = []
        g = [ins(f"s_add_u32 s{sT1}, s{sT1}, {4*8192}"), ins(m0b)]
        for n in range(2):
            g.append(ins(f"buffer_load_dwordx4 v{XD[n]}, s[{SX}:{SX+3}], s{sT1} offen offset:{1024*n} {m} lds", tag=tag))
            G.append(g); g = []
        return G
    def w_tile(self, t, nxt=0):
        m0 = f"s_add_u32 m0, s{sWl}, {WSLOT[t % 3]}"
        if self.o.get("qrot"): return self.dma_w(("w", t), sWo, nxt*256, m0, rot=t)
        return self.dma_w(("w", t), sWo, nxt*256 + t*262144, m0)
    def x_tile(self, tt):
        sl = XB if tt % 2 == 0 else XA
        return self.dma_x(("x", tt), sXo, tt, f"s_add_u32 m0, s{sXl}, {sl}", f"s_add_u32 m0, s{sXl}, {sl + 4096}")
    def warmup(self, nxt):
        if not self.o["warm"]: return []
        G = []
        def ld(v, srd, soff, off, mod):
            i = ins(f"buffer_load_dwordx4 a[252:255], v{v}, s[{srd}:{srd+3}], s{soff} offen offset:{off} {mod}", tag=("warm",))
            i.kind = "dma"; i.wr = set(); i.rd.discard("m0")
            return i
        for k in range(2):
            g = [ins(f"s_add_u32 s{sT1}, s{sWarmW}, {nxt*256 + k*262144}")]
            for n in range(4):
                g.append(ld(WD[n], SW, sT1, 1024*n, self.o['w_mod'])); G.append(g); g = []
        if nxt == 0 or self.o.get("warmx1", True):
            for k in range(2):
                g = [ins(f"s_add_u32 s{sT1}, s{sWarmX}, {k*128}")]
                for n in range(4):
                    g.append(ld(XD[n], SX, sT1, 1024*n, self.o['x_mod'])); G.append(g); g = []
                g = [ins(f"s_add_u32 s{sT1}, s{sT1}, {4*8192}")]
                for n in range(2):
                    g.append(ld(XD[n], SX, sT1, 1024*n, self.o['x_mod'])); G.append(g); g = []
        return G
    def next_item_prefetch(self, nxt=1):
        return self.w_tile(0, nxt) + self.x_tile(0) + self.w_tile(1, nxt) + self.w_tile(2, nxt) + self.x_tile(1)
    def dma_wo(self):
        G = []
        for half in range(2):
            g = [ins(f"s_add_u32 s{sT1}, s{sWOo}, {half*4096}"), ins(f"s_add_u32 m0, s{sWoM}, {half*4096}")]
            for n in range(4):
                g.append(ins(f"buffer_load_dwordx4 v{VST}, s[{SWO}:{SWO+3}], s{sT1} offen offset:{1024*n} nt lds", tag=("wo",)))
                G.append(g); g = []
        return G
    def o_store(self, n, mod, prev, force=False):
        g = []
        if n % 4 == 0 or force: g.append(ins(f"s_add_u32 s{sT2}, s{sOo}, {((n & ~3)*1024 - (4*6144 if prev else 0)) & 0xffffffff}"))
        g.append(ins(f"buffer_store_dwordx4 {rng('a', OS(n), 4)}, v{VST}, s[{SO}:{SO+3}], s{sT2} offen offset:{(n % 4)*1024} {mod}", tag=("o",)))
        return g
    def rd_k(self, par, kt, ks):
        return ins(f"ds_read_b128 {rng('a', KF(par, kt, ks), 4)}, v{KA+ks} offset:{par*8192 + kt*4096}")
    def rd_v(self, par, dt, kt):
        return ins(f"ds_read_b64_tr_b16 {rng('a', VF(par, dt) + 2*kt, 2)}, v{VA+dt} offset:{par*8192 + kt*4096}")
    def rd_w(self, t, T, h2):
        ks, u = T >> 1, T & 1
        return ins(f"ds_read_b64_tr_b16 {rng('a', WF(T) + 2*h2, 2)}, v{WA+ks} offset:{(t % 3)*16384 + h2*2048 + 8*u}")
    def rd_x(self, t, qt):
        tt = t >> 1
        return ins(f"ds_read_b128 {rng('a', XF(t % 2, qt), 4)}, v{XAD + (t & 1)} offset:{(24576 if tt % 2 == 0 else 0) + qt*2048}")

    def prologue(self):
        p = self.p
        if self.o.get("entry"): p("s_memrealtime s[100:101]")
        p("s_cmp_ge_u32 s2, 256")
        p("s_cbranch_scc1 K2_END")
        p("s_load_dwordx16 s[48:63], s[0:1], 0")
        p("s_load_dwordx8 s[64:71], s[0:1], 64")
        p("s_load_dwordx2 s[72:73], s[0:1], 96")
        p(f"v_lshrrev_b32 v1, 6, v0")
        p(f"v_and_b32 v0, 63, v0")
        p(f"v_readfirstlane_b32 s{sW}, v1")
        p("s_and_b32 s86, s2, 7")
        p("s_lshr_b32 s87, s2, 3")
        p(f"s_lshr_b32 s{sP}, s86, 2")
        p("s_and_b32 s88, s86, 1"); p("s_lshl_b32 s88, s88, 3"); p("s_and_b32 s82, s87, 7")
        p(f"s_add_u32 s{sB}, s88, s82")
        p("s_lshr_b32 s88, s86, 1"); p("s_and_b32 s88, s88, 1"); p("s_lshl_b32 s88, s88, 2"); p("s_lshr_b32 s83, s87, 3")
        p(f"s_add_u32 s{sHG}, s88, s83")
        p(f"s_and_b32 s{sHP}, s{sW}, 1")
        p(f"s_lshr_b32 s{sRH}, s{sW}, 1")
        p("s_waitcnt lgkmcnt(0)")
        p(f"s_cmp_eq_u32 s{sP}, 0")
        p(f"s_cselect_b32 s{SX}, s48, s58"); p(f"s_cselect_b32 s{SX+1}, s49, s59")
        p(f"s_cselect_b32 s{SW}, s54, s64"); p(f"s_cselect_b32 s{SW+1}, s55, s65")
        p(f"s_cselect_b32 s{SWO}, s56, s66"); p(f"s_cselect_b32 s{SWO+1}, s57, s67")
        p(f"s_cselect_b32 s90, s50, s60"); p(f"s_cselect_b32 s91, s51, s61")
        p(f"s_cselect_b32 s92, s52, s62"); p(f"s_cselect_b32 s93, s53, s63")
        p(f"s_cmp_eq_u32 s{sRH}, 0")
        p(f"s_cselect_b32 s{SKV}, s90, s92"); p(f"s_cselect_b32 s{SKV+1}, s91, s93")
        p(f"s_cselect_b32 s94, 64, 128"); p(f"s_cselect_b32 s95, 128, 0"); p("s_mov_b32 s96, 128"); p(f"s_cselect_b32 s96, 192, s96")
        p(f"s_cselect_b32 s97, 0, 1")
        p(f"s_cselect_b32 s{sKVl}, 0, 32768")
        for r, n in ((SX, X_BYTES), (SW, W_BYTES), (SWO, W_BYTES), (SKV, KV_BYTES)):
            p(f"s_mov_b32 s{r+2}, {n}"); p(f"s_mov_b32 s{r+3}, 0x00020000")
        p(f"s_mov_b32 s{SO}, s72"); p(f"s_mov_b32 s{SO+1}, s73"); p(f"s_mov_b32 s{SO+2}, 0"); p(f"s_mov_b32 s{SO+3}, 0x00020000")
        p(f"s_add_u32 s{SWT}, s72, {WOT_OFF}"); p(f"s_addc_u32 s{SWT+1}, s73, 0"); p(f"s_mov_b32 s{SWT+2}, {WOT_BYTES}"); p(f"s_mov_b32 s{SWT+3}, 0x00020000")
        p(f"s_lshl_b32 s88, s{sB}, 5"); p(f"s_lshl_b32 s89, s{sHG}, 2"); p("s_add_u32 s88, s88, s89"); p(f"s_lshl_b32 s89, s{sHP}, 1"); p("s_add_u32 s88, s88, s89")
        p(f"s_lshl_b32 s{sKVo}, s88, 17")
        p(f"s_lshl_b32 s89, s{sHP}, 14"); p(f"s_add_u32 s{sKVl}, s{sKVl}, s89")
        p(f"s_lshl_b32 s88, s{sW}, 16"); p(f"s_lshl_b32 s89, s{sHG}, 10"); p(f"s_add_u32 s{sWo}, s88, s89")
        p(f"s_lshl_b32 s{sWl}, s{sW}, 12")
        p(f"s_lshl_b32 s88, s82, 19"); p(f"s_add_u32 s{sWarmW}, s{sWo}, s88")
        p(f"s_mul_i32 s88, s{sB}, 196608"); p(f"s_mul_i32 s89, s{sW}, 49152"); p(f"s_add_u32 s{sXo}, s88, s89")
        p(f"s_mul_i32 s{sXl}, s{sW}, 6144")
        p(f"s_lshl_b32 s88, s83, 8"); p(f"s_add_u32 s{sWarmX}, s{sXo}, s88")
        if self.o.get("qrot"):
            assert not self.o["warm"]
            p("s_lshl_b32 s88, s83, 1"); p("s_add_u32 s88, s88, s82"); p("s_and_b32 s88, s88, 7")
            p(f"s_lshl_b32 s{sWR}, s88, 19"); p(f"s_lshl_b32 s{sXR}, s88, 7")
        p(f"s_mov_b32 s{sDrop}, {DROP}")
        p("s_mul_i32 s88, s2, 5"); p("s_lshr_b32 s89, s2, 4"); p("s_add_u32 s88, s88, s89"); p("s_and_b32 s88, s88, 15"); p(f"s_lshl_b32 s{sRot}, s88, 13")
        p(f"s_lshl_b32 s88, s{sP}, 4"); p(f"s_add_u32 s88, s88, s{sB}"); p("s_lshl_b32 s88, s88, 1"); p(f"s_add_u32 s88, s88, s{sRH}")
        p("s_lshl_b32 s88, s88, 7"); p(f"s_lshl_b32 s89, s{sHG}, 4"); p("s_add_u32 s88, s88, s89"); p(f"s_lshl_b32 s89, s{sHP}, 3"); p("s_add_u32 s88, s88, s89")
        p(f"s_mul_i32 s{sOo}, s88, 6144")
        p("s_and_b32 s88, s86, 3"); p("s_lshl_b32 s88, s88, 5"); p("s_add_u32 s88, s88, s87")
        p(f"s_lshl_b32 s89, s88, 15"); p(f"s_lshl_b32 s98, s{sW}, 13"); p(f"s_add_u32 s{sWOo}, s89, s98")
        p(f"s_lshl_b32 s89, s{sP}, 2"); p(f"s_add_u32 s89, s89, s{sW}"); p("s_lshl_b32 s89, s89, 7"); p("s_add_u32 s89, s89, s88"); p(f"s_lshl_b32 s{sWTo}, s89, 13")
        p(f"s_mov_b32 s{sC}, {f32(1.4426950408889634*128**-0.5)}")
        p(f"s_mov_b32 s{sItem}, 0")
        self.late_consts = True
        i_, g_, r_, c_ = "v14", "v8", "v9", "v10"
        p(f"v_and_b32 {i_}, 15, v0"); p(f"v_lshrrev_b32 {g_}, 4, v0"); p(f"v_lshrrev_b32 {r_}, 2, {i_}"); p(f"v_and_b32 {c_}, 3, {i_}")
        p(f"v_lshlrev_b32 v{VST}, 4, v0")
        p("v_lshrrev_b32 v11, 5, v0"); p("v_and_b32 v12, 15, v0"); p("v_lshlrev_b32 v13, 2, v11"); p("v_xor_b32 v12, v12, v13"); p("v_lshlrev_b32 v12, 4, v12")
        p("v_lshl_add_u32 v12, v11, 13, v12"); p("v_bfe_u32 v13, v0, 4, 1"); p(f"v_lshl_add_u32 v{WD[0]}, v13, 9, v12")
        p(f"v_xor_b32 v{WD[1]}, 128, v{WD[0]}"); p(f"v_add_u32 v{WD[2]}, {2*15360}, v{WD[0]}"); p(f"v_add_u32 v{WD[3]}, {3*15360}, v{WD[1]}"); p(f"v_add_u32 v{WD[1]}, 15360, v{WD[1]}")
        p("v_lshrrev_b32 v11, 3, v0"); p("v_and_b32 v12, 7, v0"); p(f"v_xor_b32 v12, v12, {g_}"); p("v_lshlrev_b32 v12, 4, v12")
        p(f"v_lshl_add_u32 v{XD[0]}, v11, 10, v12"); p(f"v_xor_b32 v{XD[1]}, 64, v{XD[0]}")
        p(f"v_add_u32 v{XD[2]}, {2*7168}, v{XD[0]}"); p(f"v_add_u32 v{XD[3]}, {3*7168}, v{XD[1]}"); p(f"v_add_u32 v{XD[1]}, 7168, v{XD[1]}")
        p(f"v_lshlrev_b32 v11, s97, {g_}"); p(f"v_xor_b32 v11, v11, {i_}"); p("v_lshlrev_b32 v11, 4, v11"); p(f"v_lshl_add_u32 v{DV}, {g_}, 8, v11")
        for k in range(1, 4): p(f"v_xor_b32 v{DV+k}, s{93+k}, v{DV}")
        self.lane = (i_, g_, r_, c_)
    def prologue2(self):
        p = self.p
        i_, g_, r_, c_ = self.lane
        p(f"s_lshl_b32 s88, s{sHP}, 14")
        p(f"v_xor_b32 v11, {g_}, {i_}"); p("v_lshlrev_b32 v11, 4, v11"); p(f"v_lshl_add_u32 v11, {i_}, 8, v11"); p(f"v_add_u32 v{KA}, s88, v11")
        for ks in range(1, 4): p(f"v_xor_b32 v{KA+ks}, {64*ks}, v{KA}")
        p(f"v_and_b32 v11, 1, {g_}"); p("v_lshlrev_b32 v11, 2, v11"); p(f"v_add_u32 v11, v11, {r_}"); p("v_lshlrev_b32 v11, 1, v11")
        p(f"v_lshrrev_b32 v12, 1, {c_}"); p("v_xor_b32 v11, v11, v12"); p("v_lshlrev_b32 v11, 4, v11")
        p(f"v_and_b32 v12, 1, {c_}"); p("v_lshl_add_u32 v11, v12, 3, v11")
        p(f"v_lshl_add_u32 v12, {g_}, 2, {r_}"); p("v_lshl_add_u32 v11, v12, 8, v11")
        p("s_add_u32 s89, s88, 32768"); p(f"v_add_u32 v{VA}, s89, v11")
        for dt in range(1, 8): p(f"v_xor_b32 v{VA+dt}, {32*dt}, v{VA}")
        p(f"s_lshl_b32 s88, s{sHP}, 4")
        p(f"v_add_u32 v11, s88, {c_}"); p(f"v_lshlrev_b32 v12, 2, {r_}"); p("v_xor_b32 v11, v11, v12"); p("v_lshlrev_b32 v11, 4, v11")
        p(f"v_lshl_add_u32 v12, {g_}, 3, {r_}"); p("v_lshl_add_u32 v11, v12, 9, v11"); p(f"v_add_u32 v{WA}, {WSLOT[0]}, v11")
        for ks in range(1, 4): p(f"v_xor_b32 v{WA+ks}, {64*ks}, v{WA}")
        p(f"s_mul_i32 s88, s{sRH}, {96*128}"); p(f"s_add_u32 s88, s88, {XA}")
        p(f"v_lshrrev_b32 v11, 1, {i_}"); p(f"v_xor_b32 v11, v11, {g_}"); p("v_lshlrev_b32 v11, 4, v11"); p(f"v_lshl_add_u32 v11, {i_}, 7, v11"); p(f"v_add_u32 v{XAD}, s88, v11")
        p(f"v_xor_b32 v{XAD+1}, 64, v{XAD}")
        p(f"s_mov_b32 s{sC2}, s{sC}"); p(f"s_mov_b32 s{sC2+1}, s{sC}")
        if self.o.get("fuse"):
            p(f"s_mov_b32 s{SFL}, s70"); p(f"s_mov_b32 s{SFL+1}, s71"); p(f"s_mov_b32 s{SFL+2}, 256"); p(f"s_mov_b32 s{SFL+3}, 0x00020000")
            sh = 16 if self.o.get("dbg") is not None else 0
            p(f"s_lshl_b32 s{sC1}, s{sP}, 2"); p(f"s_add_u32 s{sC1}, s{sC1}, {4*sh}")
            p(f"s_lshl_b32 s88, s{sP}, 4"); p(f"s_add_u32 s88, s88, s{sB}"); p(f"s_add_u32 s88, s88, {2+sh}"); p(f"s_lshl_b32 s{sC2o}, s88, 2")
            if self.o.get("rawwo"): p(f"s_mov_b32 s{sC1}, s{sC2o}")
        if self.o["msum"]:
            p("v_mov_b32 v11, 0x3f803f80")
            for r in range(4): p(f"v_accvgpr_write_b32 a{ONES+r}, v11")

    def stamp(self, fine=False):
        if not self.o["timing"]: return
        if fine and not self.o.get("fine"): return
        p = self.p
        p(f"s_memrealtime s[88:89]")
        p(f"s_memtime s[90:91]")
        p("s_waitcnt lgkmcnt(0)")
        p("s_mov_b32 m0, s99"); p("s_nop 1")
        p(f"v_writelane_b32 v5, s88, m0")
        p(f"v_writelane_b32 v1, s90, m0")
        p("s_add_u32 s99, s99, 1")
    def stamp_flush(self):
        if not self.o["timing"]: return
        p = self.p
        if self.o.get("dbg") is not None:
            p(f"s_cmp_eq_u32 s2, {self.o['dbg']}"); p("s_cselect_b32 s90, 64, 0"); p(f"s_cmp_eq_u32 s{sW}, 0"); p("s_cselect_b32 s90, s90, 0")
            p("s_mov_b32 s88, s70"); p("s_mov_b32 s89, s71"); p("s_mov_b32 s91, 0x00020000")
            src = "v1" if self.o.get("dbgcyc") else "v5"
            p("v_lshlrev_b32 v6, 2, v0")
            p(f"buffer_store_dword {src}, v6, s[88:91], 0 offen")
            if not self.o.get("fuse"):
                p("s_add_u32 s88, s88, 512"); p("s_addc_u32 s89, s89, 0"); p("s_cmp_lg_u32 s90, 0"); p("s_cselect_b32 s90, 52, 0")
                p(f"buffer_store_dword {src}, v6, s[88:91], 0 offen")
            return
        p(f"s_add_u32 s88, s72, {64<<20}"); p("s_addc_u32 s89, s73, 0"); p(f"s_mov_b32 s90, {1<<20}"); p("s_mov_b32 s91, 0x00020000")
        p(f"s_lshl_b32 s92, s2, 2"); p(f"s_add_u32 s92, s92, s{sW}"); p("s_lshl_b32 s92, s92, 9")
        p("v_lshlrev_b32 v6, 2, v0")
        p("buffer_store_dword v5, v6, s[88:91], s92 offen")
        p("buffer_store_dword v1, v6, s[88:91], s92 offen offset:256")

    def emit_groups(self, groups):
        for g in groups:
            for x in g: self.p.add(x)
    def keep(self, x):
        drop = self.o["drop"]; ph = self.phase
        if x.kind == "dma" and ph + "_dma" in drop: return False
        if x.kind == "ds_read" and ph + "_lds" in drop: return False
        if x.kind == "barrier" and ph + "_bar" in drop: return False
        if x.kind == "trans" and ph + "_exp" in drop: return False
        if x.kind == "valu" and x.txt.startswith("v_add_f32") and ph + "_add" in drop: return False
        if x.kind == "valu" and x.txt.startswith("v_cvt") and ph + "_cvt" in drop: return False
        if x.kind == "vstore" and ph + "_st" in drop: return False
        return True
    def run(self, mf, chains, pre=()):
        ch = [[([x for x in g if self.keep(x)], lo, hi) for g, lo, hi in c] for c in chains]
        ch = [[it for it in c if it[0]] for c in ch]
        if self.phase + "_mfma" in self.o["drop"]: mf = [ins("s_nop 0") for _ in mf]
        self.p.extend(gapfill(mf, ch, pre=[x for x in pre if self.keep(x)]))

    def spaced(self, G, lo, hi):
        n = len(G)
        out = []
        for k, g in enumerate(G):
            pos = lo + (k*(hi - lo + 1))//n
            out.append((g, pos, pos + 1))
        return out
    def qstep(self, t, stores=(), sig=False):
        p = self.p
        self.phase = "qp"
        mf = []
        for T in range(8):
            for qt in range(6):
                mf.append(mfma(acc(T, qt), "v", WF(T), "a", XF(t % 2, qt), "a", None if t == 0 else acc(T, qt)))
        need = []
        for qt in range(6): need += R("a", XF(t % 2, qt), 4)
        for T in range(6): need += R("a", WF(T), 4)
        pre = [wait_regs(need)]
        chains = []
        BG = self.o.get("bg", 11)
        slow = []
        if t < 15:
            bar = [wait_tag(("w", t+1))]
            if t % 2 == 1: bar.append(wait_tag(("x", (t+1) >> 1)))
            chains.append([(bar, BG-1, BG-1), ([ins("s_waitcnt lgkmcnt(0)"), ins("s_barrier")], BG, BG)])
            cw = []
            for T in range(8):
                lo = max(BG+1, 6*T + 5)
                cw += [([self.rd_w(t+1, T, 0)], lo, min(47, lo + 8)), ([self.rd_w(t+1, T, 1)], lo, min(47, lo + 9))]
            chains.append(cw)
            chains.append([([self.rd_x(t+1, qt)], BG+1, 40) for qt in range(6)])
            GW = self.w_tile(t+3) if t + 3 <= 15 else []
            early = []; GX = []
            if t % 2 == 1 and (t >> 1) + 2 <= 7: GX = self.x_tile((t >> 1) + 2)[:3]
            if t % 2 == 0 and t >= 2 and ((t-1) >> 1) + 2 <= 7:
                tt = ((t-1) >> 1) + 2; sl = XB if tt % 2 == 0 else XA
                early = self.x_tile(tt)[3:]
                early[0] = self.x_soff(sXo, tt) + [ins(f"s_add_u32 m0, s{sXl}, {sl}")] + early[0]
            if t == 0:
                early = self.w_tile(2) + self.x_tile(1)
                if self.o.get("w1late"): early = self.w_tile(1) + early
            late = GW + GX
            plan = self.o.get("kvplan", {10: (0, 0, 4), 11: (0, 4, 8), 12: (1, 0, 4), 13: (1, 4, 8)})
            if t in plan or str(t) in plan:
                slow = self.kv_pieces(*(plan.get(t) or plan.get(str(t))))
            c = []
            if t == 0:
                c = self.spaced(early + late, 0, 47); early = []; late = []
            if early:
                span = BG - 1
                for k, g in enumerate(early): c.append((g, int(k*span/len(early)), int(k*span/len(early)) + 1))
            hi = 47 if not (slow or stores) else (39 if len(slow) <= 2 else 32)
            if late: c += self.spaced(late, BG+2, hi)
            if slow: c += self.spaced(slow, (41 if len(slow) <= 2 else 34) if late else BG+2, 47)
            if c: chains.append(c)
        else:
            chains.append([([wait_tag(("kv", 0))], BG-1, BG-1), ([ins("s_waitcnt lgkmcnt(0)"), ins("s_barrier")], BG, BG)])
            G = self.kv_pieces(2, 0, 4 if self.o.get("look", 3) == 3 else 8)
            if self.o.get("kv15"): G = self.kv_pieces(*self.o["kv15"]) + G
            chains.append(self.spaced(G, BG+1, 47))
            ne = self.o.get("qearly", 0)
            if ne:
                c = []
                for qt in range(ne):
                    c += [([x], 14, 47) for x in self.q_convert(qt, 0, S(0, 0) + (qt % 4)*4)]
                chains.append(c)
        if self.o.get("womid"):
            if t == 2:
                W = self.wo_prep_groups(stage=12)
                blk = [ins(f"s_cmp_eq_u32 s{sItem}, 1"), ins("s_cbranch_scc1 L_nowo")] + [x for g in W for x in g]
                for x in blk: x.meta["alt"] = True
                blk.append(I("L_nowo:", "label"))
                chains.append([(blk, BG+1, BG+1)])
            if t == 4: chains.append([([ins(f"s_mov_b32 s{SO+2}, s{sSz1}")], 0, 2)])
            if t == 7: chains.append([([ins(f"s_mov_b32 s{SO+2}, s{sSz2}")], 0, 2)])
        if sig:
            chains.append([(self.signal(f"v_mov_b32 v{VPOLL+2}, s{sC1}"), BG+1, BG+3)])
        if stores:
            lo = 26 if t == 12 else 0
            if self.o.get("stA"): lo = {2: 41, 3: 36, 4: 30}[len(stores)]
            chains.append(self.spaced([self.o_store(n, self.o["store_mod"], True, force=bool(self.o.get("stA")) and n == stores[0]) for n in stores], lo, 47))
        self.run(mf, chains, pre)

    def q_convert(self, qt, ks, t0):
        a0, a1 = acc(2*ks, qt), acc(2*ks+1, qt)
        L = [ins(f"v_mul_f32 v{a+r}, s{sC}, v{a+r}") for a in (a0, a1) for r in range(4)]
        L += [ins(f"v_cvt_pk_bf16_f32 v{t0}, v{a0}, v{a0+1}"), ins(f"v_cvt_pk_bf16_f32 v{t0+1}, v{a0+2}, v{a0+3}"),
              ins(f"v_cvt_pk_bf16_f32 v{t0+2}, v{a1}, v{a1+1}"), ins(f"v_cvt_pk_bf16_f32 v{t0+3}, v{a1+2}, v{a1+3}")]
        L += [ins(f"v_accvgpr_write_b32 a{Q(qt,ks)+r}, v{t0+r}") for r in range(4)]
        return L
    def qproj_a(self):
        p = self.p
        p(f"s_lshl_b32 s{sTc}, s{sItem}, 17")
        p.wait_tag(("w", 0)); p.wait_tag(("x", 0))
        p("s_barrier")
        self.stamp()
        for T in range(8):
            p.add(self.rd_w(0, T, 0)); p.add(self.rd_w(0, T, 1))
        for qt in range(6): p.add(self.rd_x(0, qt))
        for t in range(12):
            pat = self.o.get("stpat", 2)
            if pat == 2: ss = [2*t, 2*t+1]
            elif pat == 3: ss = [3*t, 3*t+1, 3*t+2] if t < 8 else []
            elif pat == 4: ss = [4*(t//2) + k for k in range(4)] if t % 2 == 0 else []
            elif pat == 5: ss = [4*(t//2) + k for k in range(4)] if t % 2 == 1 else []
            self.qstep(t, ss if self.o.get("stA") else ())
            if t in (3, 7, 11): self.stamp(True)
    def qproj_b(self, last):
        p = self.p
        st = (lambda a, b: list(range(a, b))) if (last and not self.o.get("stA")) else (lambda a, b: [])
        self.qstep(12, st(0, 3)); self.qstep(13, st(3, 9)); self.qstep(14, st(9, 15))
        sig_late = self.o.get("siglate", False)
        self.qstep(15, st(15, 18), sig=bool(last and self.o.get("fuse") and not sig_late))
        self.stamp()
        for kt in range(2):
            for ks in range(4): p.add(self.rd_k(0, kt, ks))
        tmp = S(0, 0)
        rest = self.kv_pieces(2, 4, 8) if self.o.get("look", 3) == 3 else []
        late = st(18, 24)
        for qt in range(6):
            for ks in range(4):
                n = qt*4 + ks
                a0, a1 = acc(2*ks, qt), acc(2*ks+1, qt)
                if ks == 0 and qt < self.o.get("qearly", 0):
                    if qt < 4:
                        pass
                    continue
                if self.o.get("pk", True):
                    for a in (a0, a0+2, a1, a1+2): p(f"v_pk_mul_f32 v[{a}:{a+1}], v[{a}:{a+1}], s[{sC2}:{sC2+1}]")
                else:
                    for r in range(4): p(f"v_mul_f32 v{a0+r}, s{sC}, v{a0+r}")
                    for r in range(4): p(f"v_mul_f32 v{a1+r}, s{sC}, v{a1+r}")
                t0 = tmp + (n % 4)*4
                p(f"v_cvt_pk_bf16_f32 v{t0}, v{a0}, v{a0+1}")
                p(f"v_cvt_pk_bf16_f32 v{t0+1}, v{a0+2}, v{a0+3}")
                p(f"v_cvt_pk_bf16_f32 v{t0+2}, v{a1}, v{a1+1}")
                p(f"v_cvt_pk_bf16_f32 v{t0+3}, v{a1+2}, v{a1+3}")
                if late and n % 2 == 0 and n < 18:
                    m = late.pop(0)
                    for x in self.o_store(m, self.o["store_mod"], True, force=True): p.add(x)
                if self.o.get("dummy_mfma"):
                    for _ in range(self.o["dummy_mfma"]): p.add(mfma(252, "a", KF(0, 0, 0), "a", KF(0, 1, 0), "a", None))
                for r in range(4): p(f"v_accvgpr_write_b32 a{Q(qt,ks)+r}, v{t0+r}")
                if rest and n % 4 == 3 and n >= 7:
                    for x in rest.pop(0): p.add(x)
            if qt < 4:
                for dt in (2*qt, 2*qt+1):
                    p.add(self.rd_v(0, dt, 0)); p.add(self.rd_v(0, dt, 1))
        assert not rest and not late
        if last and self.o.get("fuse") and sig_late:
            for x in self.signal(f"v_mov_b32 v{VPOLL+2}, s{sC1}"): p.add(x)

    def period(self, n, dma=(), pre=(), early=(), extra=()):
        p = self.p
        self.phase = "at"
        msum = self.o["msum"]
        j, pp = divmod(n, 6)
        qk = []; pv = []
        if n < 96:
            sb = n % 2
            for kt in range(2):
                for ks in range(4):
                    qk.append(mfma(S(sb, kt), "v", KF(j % 2, kt, ks), "a", Q(pp, ks), "a", None if ks == 0 else S(sb, kt)))
        if n >= 2:
            jj, qt = divmod(n-2, 6)
            pb = (n-2) % 2
            for dt in range(8):
                pv.append(mfma(acc(dt, qt), "v", VF(jj % 2, dt), "a", P(pb), "v", None if jj == 0 else acc(dt, qt)))
        mf = []
        for k in range(8):
            if qk: mf.append(qk[k])
            if pv: mf.append(pv[k])
        if n >= 2 and msum:
            mf.append(mfma(LA(qt), "a", ONES, "a", P(pb), "v", None if jj == 0 else LA(qt)))
        nm = len(mf)
        sc = nm/17.0 if msum else nm/16.0
        def G(x): return min(nm-1, int(x*sc))
        chains = []
        if 1 <= n <= 96:
            jj2, qt2 = divmod(n-1, 6)
            sb = (n-1) % 2; pb2 = (n-1) % 2
            e = [S(sb, 0)+r for r in range(4)] + [S(sb, 1)+r for r in range(4)]
            chains.append([([ins(f"v_exp_f32 v{e[k]}, v{e[k]}")], G(2*k), G(2*k)) for k in range(8)])
            cv = []
            for k in range(8):
                if not msum: cv.append(([ins(f"v_add_f32 v{LS+qt2}, v{LS+qt2}, v{e[k]}")], G(2*k+1), G(2*k+1)))
                if k % 2 == 1:
                    cv.append(([ins(f"v_cvt_pk_bf16_f32 v{P(pb2)+k//2}, v{e[k-1]}, v{e[k]}")], G(2*k+1), G(2*k+1)))
            chains.append(cv)
        if n >= 2:
            jb, q = divmod(n-2, 6)
            if jb + 1 <= 15:
                par = (jb+1) % 2
                rds = []
                if q in (0, 1): rds = [self.rd_k(par, q, ks) for ks in range(4)]
                else:
                    for dt in range((q-2)*2, (q-2)*2+2): rds += [self.rd_v(par, dt, 0), self.rd_v(par, dt, 1)]
                gp = [1, 5, 9, 13] if q != 5 else [1, 5, 9, 10]
                chains.append([([x], G(gp[k]), G(gp[k])) for k, x in enumerate(rds)])
        if dma:
            nd = sum(1 for x in dma if x.kind == "dma")
            slots = {0: [], 1: [16], 2: [11, 16], 4: [3, 7, 11, 16], 8: [2, 4, 6, 8, 10, 12, 14, 16]}.get(nd) or [int(3 + (16-3)*k/(nd-1)) for k in range(nd)]
            ch = []; seen = 0
            for x in dma:
                if x.kind == "dma":
                    g = G(slots[seen]); seen += 1
                    grp = [x] if x.meta.get("credit") is None else [ins(f"s_waitcnt vmcnt({x.meta['credit']})"), x]
                    ch.append((grp, g, g))
                else:
                    ch.append(([x], 0, nm-1))
            for k in range(len(ch)-2, -1, -1):
                if ch[k][0][-1].kind != "dma": ch[k] = (ch[k][0], 0, max(0, ch[k+1][2] - (1 if ch[k+1][0][-1].kind == "dma" else 0)))
            chains.append(ch)
        if early: chains.append([([x], 0, nm-1) for x in early])
        if extra: chains.append([(g, (k*nm)//len(extra), nm-1) for k, g in enumerate(extra)])
        self.run(mf, chains, pre)

    def body(self, j, dmaG, tog=(), nper=6, extra=(), extra2=()):
        bar = []
        if j + 1 <= 15: bar.append(wait_tag(("kv", j+1)))
        if extra: bar.append(wait_tag(("wo",)))
        bar += [ins("s_waitcnt lgkmcnt(0)"), ins("s_barrier")]
        if self.o.get("baracct"):
            b0 = [ins("s_memtime s[92:93]"), ins("s_waitcnt lgkmcnt(0)")]
            b1 = [ins("s_memtime s[94:95]"), ins("s_waitcnt lgkmcnt(0)")]
            b2 = [ins("s_memtime s[96:97]"), ins("s_waitcnt lgkmcnt(0)"), ins("s_sub_u32 s98, s94, s92"), ins("s_add_u32 s100, s100, s98"),
                  ins("s_sub_u32 s98, s96, s94"), ins("s_add_u32 s101, s101, s98")]
            bar = b0 + bar[:1] + b1 + bar[1:] + b2
        tk = [x for x in tog if any(f"v{KA+z}," in x.txt for z in range(4))]
        tv = [x for x in tog if x not in tk]
        flat = [x for g in dmaG for x in g]
        cr = self.o.get("credit")
        if cr is not None and j <= 12:
            k = 0
            for x in flat:
                if x.kind == "dma":
                    x.meta["credit"] = cr[k % len(cr)] if isinstance(cr, list) else cr
                    k += 1
        nd = sum(1 for x in flat if x.kind == "dma")
        if nd == 8: cnt = self.o.get("dmacnt", [1, 1, 2, 1, 1, 2])
        else: cnt = [nd//6 + (1 if q < nd % 6 else 0) for q in range(6)]
        per = [[] for _ in range(6)]
        q = 0; seen = 0
        for x in flat:
            while q < 5 and seen >= cnt[q]: q += 1; seen = 0
            per[q].append(x)
            if x.kind == "dma": seen += 1
        for q in range(6):
            e = tv[:4] if q == 0 else (tv[4:] if q == 1 else [])
            ex = []
            if extra or extra2:
                xs = list(extra) + list(extra2)
                n = len(xs); ex = xs[q*n//6:(q+1)*n//6]
            self.period(6*j + 2 + q, dma=per[q], pre=(bar + tk) if q == 0 else (), early=e, extra=ex)

    def tog(self):
        return [ins(f"v_xor_b32 v{KA+x}, {PHI}, v{KA+x}") for x in range(4)] + [ins(f"v_xor_b32 v{VA+x}, {PHI}, v{VA+x}") for x in range(8)]
    def attention_shared(self):
        p = self.p
        look = self.o.get("look", 3)
        if look == 4:
            t3 = self.kv_pieces(3, 0, 8)
            self.period(0, dma=[x for g in t3[:4] for x in g]); self.period(1, dma=[x for g in t3[4:] for x in g])
            self.body(0, self.dma_kv_abs(("kv", 4), 0))
        else:
            self.period(0); self.period(1)
            self.body(0, self.dma_kv_abs(("kv", 3), 3))
        p(f"s_mov_b32 s{sM}, s{sKVl}")
        split = self.o.get("atsplit")
        runs = [("at", 0, 5, self.o.get("credit"))] if not split else [("at", 0, split[0], split[1]), ("au", split[0], 5, split[2])]
        saved = self.o.get("credit")
        for name, k0, k1, cr in runs:
            self.o["credit"] = cr
            p(f"s_mov_b32 s{sCnt}, {k1 - k0}")
            for k in range(k0, k1):
                j = 1 + 2*k
                p.raw(f"@@LB {name} {k - k0}")
                self.stamp(True)
                if look == 4:
                    g1 = self.dma_kv(("kv", j+4), f"s_add_u32 m0, s{sM}, 8192", f"s_add_u32 m0, s{sM}, 12288")
                    self.body(j, g1, tog=self.tog())
                    g2 = self.dma_kv(("kv", j+5), f"s_add_u32 m0, s{sM}, 0", f"s_add_u32 m0, s{sM}, 4096")
                    self.body(j+1, [[ins(f"s_xor_b32 s{sM}, s{sM}, {PHI}")]] + g2)
                else:
                    g1 = self.dma_kv(("kv", j+3), f"s_add_u32 m0, s{sM}, 0", f"s_add_u32 m0, s{sM}, 4096")
                    self.body(j, g1, tog=self.tog())
                    g2 = self.dma_kv(("kv", j+4), f"s_add_u32 m0, s{sM}, 8192", f"s_add_u32 m0, s{sM}, 12288")
                    g2[-1] = g2[-1] + [ins(f"s_xor_b32 s{sM}, s{sM}, {PHI}")]
                    self.body(j+1, g2)
                p(f"s_sub_u32 s{sCnt}, s{sCnt}, 1"); p(f"s_cmp_lg_u32 s{sCnt}, 0"); p(f"s_cbranch_scc1 L_{name}")
                p.raw(f"@@LE {name} {k - k0}")
        self.o["credit"] = saved if not split else split[2]
        if look == 4:
            self.body(11, self.dma_kv_abs(("kv", 15), 3), tog=self.tog())
            self.body(12, [])
        else:
            self.body(11, self.dma_kv_abs(("kv", 14), 2), tog=self.tog())
            self.body(12, self.dma_kv_abs(("kv", 15), 3))
        self.o["credit"] = saved
    def attention_tail(self, last):
        fuse = self.o.get("fuse")
        prep_here = ((not last) if fuse else last) and not self.o.get("woearly") and not self.o.get("womid") and not self.o.get("rawwo")
        self.stamp(True)
        if prep_here:
            W = self.wo_prep_groups(); h = 9 + 4*3
            self.body(13, self.dma_wo_last(), tog=self.tog())
            self.body(14, [], extra=W[:h])
            self.body(15, (self.w_tile(0, 1) + self.x_tile(0) + ([] if self.o.get("w1late") else self.w_tile(1, 1))) if not last else [], tog=self.tog(), extra2=W[h:])
        elif not last:
            self.body(13, self.warm_wo() if self.o.get("rawwo") else [], tog=self.tog())
            self.body(14, [])
            self.body(15, self.w_tile(0, 1) + self.x_tile(0) + ([] if self.o.get("w1late") else self.w_tile(1, 1)), tog=self.tog())
        else:
            self.body(13, [], tog=self.tog(), extra2=[[x] for x in self.k3_setup()])
            self.body(14, [], extra2=[self.poll_issue(f"v_mov_b32 VDST, s{sC1}")] + ([[x] for x in self.k3_setup2()] if self.o.get("rawwo") and self.o.get("apre", True) else []))
            if self.o.get("rawwo") and self.o.get("apre", True):
                A3 = self.k3_loads(0, 0, 0, "A") + self.k3_loads(1, 1, 1, "A") + self.k3_loads(2, 2, 2, "A")
                self.body(15, A3, tog=self.tog())
            else:
                self.body(15, [], tog=self.tog())
            self.poll_check(8 if self.o.get('rawwo') else 128)
    def wo_prep_groups(self, stage=False):
        setup = [ins("v_and_b32 v33, 15, v0"), ins("v_lshrrev_b32 v34, 4, v0"), ins("v_lshrrev_b32 v35, 2, v33"), ins("v_and_b32 v33, 3, v33"),
                 ins("v_lshl_add_u32 v32, v34, 2, v35"), ins("v_lshlrev_b32 v32, 10, v32"), ins("v_lshl_add_u32 v32, v33, 4, v32"),
                 ins(f"s_lshl_b32 s88, s{sW}, 8"), ins("v_add_u32 v32, s88, v32")]
        G = [[x] for x in setup]
        mod = self.o['last_store_mod']
        for nt in range(8):
            u, par = nt >> 1, nt & 1
            d = 252 if not stage else OS(nt + (0 if stage is True else stage))
            G.append([ins(f"ds_read_b64_tr_b16 a[{d}:{d+1}], v32 offset:{64*u + 8*par}")])
            G.append([ins(f"ds_read_b64_tr_b16 a[{d+2}:{d+3}], v32 offset:{16384 + 64*u + 8*par}")])
            if stage: continue
            g = []
            if nt % 4 == 0: g.append(ins(f"s_add_u32 s{sT2}, s{sWTo}, {nt*1024}"))
            g.append(ins(f"buffer_store_dwordx4 a[{d}:{d+3}], v{VST}, s[{SWT}:{SWT+3}], s{sT2} offen offset:{(nt % 4)*1024} {mod}"))
            G.append(g)
        return G
    def warm_wo(self):
        G = []
        for half in range(2):
            g = [ins(f"s_add_u32 s{sT1}, s{sWOo}, {half*4096}")]
            for n in range(4):
                i = ins(f"buffer_load_dwordx4 a[252:255], v{VST}, s[{SWO}:{SWO+3}], s{sT1} offen offset:{1024*n}", tag=("warm",))
                i.kind = "dma"; i.wr = set(); i.rd.discard("m0")
                g.append(i); G.append(g); g = []
        return G
    def dma_wo_last(self):
        G = []
        for half in range(2):
            g = [ins(f"s_add_u32 s{sT1}, s{sWOo}, {half*4096}"), ins(f"s_lshl_b32 s{sWoM}, s{sW}, 13"), ins(f"s_add_u32 m0, s{sWoM}, {half*4096}")]
            for n in range(4):
                g.append(ins(f"buffer_load_dwordx4 v{VST}, s[{SWO}:{SWO+3}], s{sT1} offen offset:{1024*n} nt lds", tag=("wo",)))
                G.append(g); g = []
        return G

    FLAG = 131072
    def softmax_check(self, item):
        p = self.p
        t = S(0, 0)
        for qt in range(6): p(f"v_accvgpr_read_b32 v{t+qt}, a{LA(qt)}")
        p(f"v_max3_f32 v{t+6}, v{t}, v{t+1}, v{t+2}"); p(f"v_min3_f32 v{t+7}, v{t}, v{t+1}, v{t+2}")
        p(f"v_max3_f32 v{t+6}, v{t+6}, v{t+3}, v{t+4}"); p(f"v_min3_f32 v{t+7}, v{t+7}, v{t+3}, v{t+4}")
        p(f"v_max_f32 v{t+6}, v{t+6}, v{t+5}"); p(f"v_min_f32 v{t+7}, v{t+7}, v{t+5}")
        p(f"v_cmp_nge_f32 vcc, {f32(2.0**20)}, v{t+6}")
        p("s_mov_b64 s[88:89], vcc")
        p(f"v_cmp_nle_f32 vcc, {f32(2.0**-12)}, v{t+7}")
        p("s_or_b64 s[88:89], s[88:89], vcc")
        p("s_cmp_lg_u64 s[88:89], 0"); p("s_cselect_b32 s88, 1, 0")
        p(f"v_mov_b32 v{t}, s88"); p(f"s_lshl_b32 s89, s{sW}, 2"); p(f"s_add_u32 s89, s89, {self.FLAG}"); p(f"v_mov_b32 v{t+1}, s89")
        p(f"ds_write_b32 v{t+1}, v{t}")
        p("s_waitcnt lgkmcnt(0)"); p("s_barrier")
        p(f"v_mov_b32 v{t+1}, {self.FLAG}")
        p(f"ds_read_b128 v[{t+4}:{t+7}], v{t+1}")
        p(f"v_or_b32 v{t+4}, v{t+4}, v{t+5}"); p(f"v_or_b32 v{t+6}, v{t+6}, v{t+7}"); p(f"v_or_b32 v{t+4}, v{t+4}, v{t+6}")
        p(f"v_readfirstlane_b32 s88, v{t+4}")
        p("s_cmp_lg_u32 s88, 0")
        p("s_cbranch_scc1 L_FB")
        p.raw(f"L_OE{item}:")

    def fallback(self):
        q = K2(self.o); q.phase = "fb"; p = q.p
        M = LS
        def load_tile():
            p(f"s_mov_b32 s{sT2}, s{sTc}")
            q.emit_groups(q.dma_kv_abs(("fb",), 0))
            p("s_waitcnt vmcnt(0)"); p("s_barrier")
        def qk(qt):
            for kt in range(2):
                for ks in range(4):
                    p.add(mfma(S(0, kt), "v", KF(0, kt, ks), "a", Q(qt, ks), "a", None if ks == 0 else S(0, kt)))
        p.raw("L_FB:")
        p("s_waitcnt vmcnt(0) lgkmcnt(0)"); p("s_barrier")
        p(f"s_mov_b32 s{SKV+2}, {KV_BYTES}")
        for qt in range(6): p(f"v_mov_b32 v{M+qt}, 0xff800000")
        p(f"s_lshl_b32 s{sTc}, s{sItem}, 17"); p(f"s_mov_b32 s{sCnt}, 16")
        p.raw("L_FB1:")
        load_tile()
        for kt in range(2):
            for ks in range(4): p.add(q.rd_k(0, kt, ks))
        for qt in range(6):
            qk(qt)
            e = [S(0, 0)+r for r in range(4)] + [S(0, 1)+r for r in range(4)]
            for k in range(0, 8, 2): p(f"v_max3_f32 v{M+qt}, v{e[k]}, v{e[k+1]}, v{M+qt}")
        p("s_waitcnt lgkmcnt(0)"); p("s_barrier")
        p(f"s_sub_u32 s{sCnt}, s{sCnt}, 1"); p(f"s_cmp_lg_u32 s{sCnt}, 0"); p("s_cbranch_scc1 L_FB1")
        t = S(1, 0)
        for qt in range(6):
            m = M + qt
            p(f"v_mov_b32 v{t}, v{m}"); p(f"v_permlane32_swap_b32 v{t}, v{m}"); p(f"v_max_f32 v{m}, v{m}, v{t}")
            p(f"v_mov_b32 v{t}, v{m}"); p(f"v_permlane16_swap_b32 v{t}, v{m}"); p(f"v_max_f32 v{m}, v{m}, v{t}")
        for r in range(192): p(f"v_mov_b32 v{ACC+r}, 0")
        p(f"v_mov_b32 v{t}, 0")
        for r in range(24): p(f"v_accvgpr_write_b32 a{LA(0)+r}, v{t}")
        p(f"s_lshl_b32 s{sTc}, s{sItem}, 17"); p(f"s_mov_b32 s{sCnt}, 16")
        p("s_nop 7")
        p.raw("L_FB2:")
        load_tile()
        for kt in range(2):
            for ks in range(4): p.add(q.rd_k(0, kt, ks))
        for dt in range(8):
            p.add(q.rd_v(0, dt, 0)); p.add(q.rd_v(0, dt, 1))
        for qt in range(6):
            qk(qt)
            e = [S(0, 0)+r for r in range(4)] + [S(0, 1)+r for r in range(4)]
            for k in range(8): p(f"v_sub_f32 v{e[k]}, v{e[k]}, v{M+qt}")
            for k in range(8): p(f"v_exp_f32 v{e[k]}, v{e[k]}")
            for k in range(0, 8, 2): p(f"v_cvt_pk_bf16_f32 v{P(0)+k//2}, v{e[k]}, v{e[k+1]}")
            for dt in range(8): p.add(mfma(acc(dt, qt), "v", VF(0, dt), "a", P(0), "v", acc(dt, qt)))
            p.add(mfma(LA(qt), "a", ONES, "a", P(0), "v", LA(qt)))
        p("s_waitcnt lgkmcnt(0)"); p("s_nop 7"); p("s_nop 7"); p("s_barrier")
        p(f"s_sub_u32 s{sCnt}, s{sCnt}, 1"); p(f"s_cmp_lg_u32 s{sCnt}, 0"); p("s_cbranch_scc1 L_FB2")
        p("s_nop 7"); p("s_nop 7")
        p(f"s_cmp_eq_u32 s{sItem}, 0"); p("s_cbranch_scc1 L_OE0")
        if self.o.get("fuse"):
            for x in self.k3_setup(): p.add(x)
            if self.o.get("rawwo") and self.o.get("apre", True):
                for x in self.k3_setup2(): p.add(x)
                for g in self.k3_loads(0, 0, 0, "A") + self.k3_loads(1, 1, 1, "A") + self.k3_loads(2, 2, 2, "A"):
                    for x in g: p.add(x)
        p("s_branch L_OE1")
        L, st = finalize(p.L)
        return L

    def signal(self, offreg_txt, uid=None):
        uid = uid or self.uid()
        L = [ins(f"s_cmp_lg_u32 s{sW}, 0"), ins(f"s_cbranch_scc1 L_sig{uid}"),
             ins(f"v_mov_b32 v{VPOLL+1}, 1"), ins(offreg_txt), ins("s_mov_b64 exec, 1"),
             ins(f"buffer_atomic_add v{VPOLL+1}, v{VPOLL+2}, s[{SFL}:{SFL+3}], 0 offen sc1"),
             ins("s_mov_b64 exec, -1")]
        for x in L: x.meta["alt"] = True
        L.append(I(f"L_sig{uid}:", "label"))
        return L
    def uid(self):
        self._uid = getattr(self, "_uid", 0) + 1
        return self._uid
    def poll_issue(self, off_txt):
        return [ins(off_txt.replace("VDST", f"v{VPOLL+3}")), ins(f"buffer_load_dword v{VPOLL}, v{VPOLL+3}, s[{SFL}:{SFL+3}], 0 offen sc1")]
    def poll_check(self, target):
        p = self.p
        uid = self.uid()
        p(f"v_readfirstlane_b32 s88, v{VPOLL}")
        p(f"s_cmp_ge_u32 s88, {target}"); p(f"s_cbranch_scc1 L_ok{uid}")
        L = [f"s_mov_b32 s89, 0x40000", f"L_spin{uid}:", "s_sleep 2",
             f"buffer_load_dword v{VPOLL}, v{VPOLL+3}, s[{SFL}:{SFL+3}], 0 offen sc1", "s_waitcnt vmcnt(0)",
             f"v_readfirstlane_b32 s88, v{VPOLL}", "s_nop 3", "s_sub_u32 s89, s89, 1", "s_cmp_eq_u32 s89, 0", f"s_cbranch_scc1 L_ok{uid}",
             f"s_cmp_lt_u32 s88, {target}", f"s_cbranch_scc1 L_spin{uid}"]
        for t in L: p.add(I(t, "label", verbatim=True))
        p.raw(f"L_ok{uid}:")

    def k3_setup(self):
        L = []
        A = lambda t: L.append(ins(t))
        A(f"s_and_b32 s88, s{sHG}, 3"); A(f"s_lshr_b32 s89, s{sHG}, 2")
        A(f"s_lshl_b32 s90, s{sP}, 2"); A("s_add_u32 s90, s90, s88"); A("s_lshl_b32 s90, s90, 7"); A(f"s_lshl_b32 s91, s{sW}, 5"); A("s_add_u32 s90, s90, s91"); A("s_lshl_b32 s90, s90, 13")
        rot = self.o.get("k3rot", True)
        if rot: A(f"s_and_b32 s{kRho}, s{sB}, 3"); A(f"s_add_u32 s{kRho}, s{kRho}, s{sW}")
        else: A(f"s_mov_b32 s{kRho}, s{sW}")
        for pr in range(4):
            A(f"s_add_u32 s91, s{kRho}, {pr}"); A("s_and_b32 s91, s91, 3"); A("s_lshl_b32 s91, s91, 11"); A(f"s_add_u32 s{kA+pr}, s90, s91")
        if rot: A("s_lshr_b32 s91, s88, 1"); A(f"s_add_u32 s{kSig}, s88, s91")
        else: A(f"s_mov_b32 s{kSig}, 0")
        for qt in range(6):
            A(f"s_add_u32 s91, s{kSig}, {qt}"); A("s_cmp_ge_u32 s91, 6"); A("s_cselect_b32 s98, 6, 0"); A("s_sub_u32 s91, s91, s98"); A("s_lshl_b32 s91, s91, 10")
            A(f"v_add_u32 v{VBQ+qt}, s91, v{VST}")
        A(f"s_lshl_b32 s90, s{sP}, 4"); A(f"s_add_u32 s90, s90, s{sB}"); A("s_lshl_b32 s90, s90, 1"); A("s_add_u32 s90, s90, s89"); A("s_lshl_b32 s90, s90, 7")
        A(f"s_lshl_b32 s91, s{sW}, 5"); A("s_add_u32 s90, s90, s91"); A(f"s_mul_i32 s{kBo}, s90, 6144")
        A(f"s_mul_i32 s90, s{sB}, 192"); A("s_mul_i32 s91, s89, 96"); A("s_add_u32 s90, s90, s91"); A("s_lshl_b32 s90, s90, 11")
        A(f"s_lshl_b32 s91, s{sP}, 10"); A("s_add_u32 s90, s90, s91"); A("s_lshl_b32 s91, s88, 8"); A("s_add_u32 s90, s90, s91")
        A(f"s_and_b32 s91, s{kRho}, 3"); A("s_lshl_b32 s91, s91, 6"); A(f"s_add_u32 s{kOut}, s90, s91")
        A(f"s_mov_b32 s{SX}, s68"); A(f"s_mov_b32 s{SX+1}, s69"); A(f"s_mov_b32 s{SX+2}, {OUT_BYTES}"); A(f"s_mov_b32 s{SX+3}, 0x00020000")
        A(f"v_add_u32 v{VB4}, 4096, v{VST}")
        if self.o.get("rawwo"):
            A(f"s_lshl_b32 s90, s{sW}, 20"); A("s_lshl_b32 s91, s88, 8"); A(f"s_add_u32 s{kA}, s90, s91")
            A(f"s_lshl_b32 s{kA+1}, s{sW}, 15")
        return L
    def k3_setup2(self):
        L = []
        A = lambda t: L.append(ins(t))
        A("v_and_b32 v32, 15, v0"); A("v_lshrrev_b32 v33, 4, v0"); A("v_lshlrev_b32 v35, 2, v33"); A("v_xor_b32 v35, v35, v32"); A("v_lshlrev_b32 v35, 4, v35")
        A(f"v_lshl_add_u32 v{VAD2[0]}, v33, 10, v35")
        for n in range(1, 4): A(f"v_add_u32 v{VAD2[n]}, {n*3072}, v{VAD2[0]}")
        A("v_lshrrev_b32 v35, 2, v32"); A("v_and_b32 v32, 3, v32")
        A("v_lshl_add_u32 v33, v33, 2, v35"); A("v_lshlrev_b32 v33, 8, v33"); A(f"v_add_u32 v33, s{kA+1}, v33")
        A("v_lshlrev_b32 v35, 2, v35")
        for pr in range(4):
            A(f"s_add_u32 s91, s{kRho}, {pr}"); A("s_and_b32 s91, s91, 3"); A("s_lshl_b32 s91, s91, 2")
            A(f"v_add_u32 v{VAR2+pr}, s91, v32"); A(f"v_xor_b32 v{VAR2+pr}, v{VAR2+pr}, v35"); A(f"v_lshl_add_u32 v{VAR2+pr}, v{VAR2+pr}, 4, v33")
        return L
    def k3_loads(self, b, o, j=None, part=None):
        m = self.o.get("k3_ld", "sc1")
        raw = self.o.get("rawwo")
        bf = BF2 if raw else BF
        G = []
        for qt in range(6):
            g = [ins(f"s_add_u32 s{kT0}, s{kBo}, {o*6144}")] if qt == 0 else []
            g.append(ins(f"buffer_load_dwordx4 {rng('a', bf(b, qt), 4)}, v{VBQ+qt}, s[{SO}:{SO+3}], s{kT0} offen {m}"))
            G.append(g)
        if raw:
            for half in range(2):
                g = [ins(f"s_add_u32 s{kT1}, s{kA}, {o*32768 + half*16384}"), ins(f"s_add_u32 m0, s{kA+1}, {b*8192 + half*4096}")]
                for n in range(4):
                    g.append(ins(f"buffer_load_dwordx4 v{VAD2[n]}, s[{SWO}:{SWO+3}], s{kT1} offen offset:{1024*n} lds", tag=("A", j)))
                    G.append(g); g = []
            if part == "A": return G[6:]
            if part == "B": return G[:6]
            if self.o.get("afirst"): G = G[6:] + G[:6]
            return G
        for pr in range(4):
            t = kT1 if pr % 2 == 0 else kT0
            G.append([ins(f"s_add_u32 s{t}, s{kA+pr}, {o*8192}"),
                      ins(f"buffer_load_dwordx4 {rng('a', AF(b, 2*pr), 4)}, v{VST}, s[{SWT}:{SWT+3}], s{t} offen {m}")])
            G.append([ins(f"buffer_load_dwordx4 {rng('a', AF(b, 2*pr+1), 4)}, v{VST}, s[{SWT}:{SWT+3}], s{t} offen offset:1024 {m}")])
        return G
    def k3_tr(self, t):
        L = []
        for nu in range(8):
            pr, par = nu >> 1, nu & 1
            d = AF2(t % 2, nu)
            L.append(ins(f"ds_read_b64_tr_b16 a[{d}:{d+1}], v{VAR2+pr} offset:{(t % 4)*8192 + 8*par}"))
            L.append(ins(f"ds_read_b64_tr_b16 a[{d+2}:{d+3}], v{VAR2+pr} offset:{(t % 4)*8192 + 4096 + 8*par}"))
        return L
    def k3_adv(self, steps):
        if self.o.get("rawwo"):
            return [ins(f"s_add_u32 s{kA}, s{kA}, {(steps*32768) & 0xffffffff}"), ins(f"s_add_u32 s{kBo}, s{kBo}, {(steps*6144) & 0xffffffff}")]
        return [ins(f"s_add_u32 s{kA+pr}, s{kA+pr}, {(steps*8192) & 0xffffffff}") for pr in range(4)] + [ins(f"s_add_u32 s{kBo}, s{kBo}, {(steps*6144) & 0xffffffff}")]
    def k3_step(self, t, G, extra=(), dst=None, order=None, post=None):
        p = self.p
        dst = dst if dst is not None else []
        raw = self.o.get("rawwo")
        b = t % 4
        af = (lambda nu: AF2(t % 2, nu)) if raw else (lambda nu: AF(b, nu))
        bf = (lambda qt: BF2(b, qt)) if raw else (lambda qt: BF(b, qt))
        tr = []
        if raw and t + 1 <= 31:
            p.wait_tag(("A", t+1)); tr = self.k3_tr(t+1)
        n = 0
        extra = list(extra)
        for nu in (order or range(8)):
            for qt in range(6):
                p.add(mfma(oacc(nu, qt), "v", af(nu), "a", bf(qt), "a", None if t == 0 else oacc(nu, qt)))
                if n % 3 == 1 and n//3 < len(G):
                    for x in G[n//3]: p.add(x)
                elif tr and n % 3 != 1 and n >= 2: p.add(tr.pop(0))
                if n == 44:
                    for x in extra: p.add(x)
                if n in (8, 17, 26, 35, 43) and dst:
                    for x in dst.pop(0): p.add(x)
                if post: post(nu, qt)
                n += 1
        assert not tr
    def k3_main(self):
        p = self.p
        D = self.deferred
        if self.o.get("rawwo"):
            p.wait_tag(("A", 0))
            for x in self.k3_tr(0): p.add(x)
        if D:
            assert len(D) <= 24
            self.k3_step(0, self.k3_loads(3, 3, 3), extra=self.k3_adv(8), dst=D)
            for t in range(1, 9):
                i = (t-1) % 4
                self.k3_step(t, self.k3_loads((t+3) % 4, i, t+3), extra=self.k3_adv(8) if i == 3 else [], dst=D)
                if t == self.o.get("sig2", 7 if self.o.get("rawwo") else 6):
                    p.wait_tag(("o",)); p("s_barrier")
                    for x in self.signal(f"v_mov_b32 v{VPOLL+2}, s{sC2o}", uid="g2"): p.add(x)
            assert not D
            for i in range(4):
                t = 9 + i
                self.k3_step(t, self.k3_loads((t+3) % 4, i, t+3), extra=self.k3_adv(8) if i == 3 else [])
                if i == 2:
                    for x in self.poll_issue(f"v_mov_b32 VDST, s{sC2o}"): p.add(x)
        else:
            self.k3_step(0, self.k3_loads(3, 3, 3), extra=self.k3_adv(8))
            p(f"s_mov_b32 s{kCnt}, 3")
            for k in range(3):
                p.raw(f"@@LB k3a {k}")
                for i in range(4):
                    t = 1 + 4*k + i
                    ex = self.k3_adv(8) if i == 3 else []
                    self.k3_step(t, self.k3_loads((t+3) % 4, i, t+3), extra=ex)
                    if i == 1:
                        uid = "k3s"
                        p(f"s_cmp_lg_u32 s{kCnt}, 3"); p(f"s_cbranch_scc1 L_{uid}")
                        p.wait_tag(("o",)); p("s_barrier")
                        for x in self.signal(f"v_mov_b32 v{VPOLL+2}, s{sC2o}", uid="g2"): p.add(x)
                        p.raw(f"L_{uid}:")
                    if i == 2:
                        for x in self.poll_issue(f"v_mov_b32 VDST, s{sC2o}"): p.add(x)
                p(f"s_sub_u32 s{kCnt}, s{kCnt}, 1"); p(f"s_cmp_lg_u32 s{kCnt}, 0"); p("s_cbranch_scc1 L_k3a")
                p.raw(f"@@LE k3a {k}")
        self.stamp()
        for x in self.k3_adv(4 - 32): p.add(x)
        self.poll_check(16 if self.o.get('rawwo') else 8)
        for i in range(4):
            t = 13 + i
            self.k3_step(t, self.k3_loads((t+3) % 4, i, t+3), extra=self.k3_adv(8) if i == 3 else [])
        p(f"s_mov_b32 s{kCnt}, 3")
        for k in range(3):
            p.raw(f"@@LB k3b {k}")
            for i in range(4):
                t = 17 + 4*k + i
                self.k3_step(t, self.k3_loads((t+3) % 4, i, t+3), extra=self.k3_adv(8) if i == 3 else [])
            p(f"s_sub_u32 s{kCnt}, s{kCnt}, 1"); p(f"s_cmp_lg_u32 s{kCnt}, 0"); p("s_cbranch_scc1 L_k3b")
            p.raw(f"@@LE k3b {k}")
        for t in (29, 30): self.k3_step(t, [])
        if self.o.get("redovl", True):
            for pr, v in ((1, 7), (2, 2), (3, 3)):
                p(f"s_add_u32 s88, s{sW}, {pr}"); p("s_and_b32 s88, s88, 3"); p("s_mul_i32 s88, s88, 36864"); p(f"s_add_u32 s88, s88, {(pr-1)*12288}")
                p(f"v_add_u32 v{v}, s88, v{VST}")
            if self.o.get("rawwo"):
                p("s_waitcnt lgkmcnt(0)"); p("s_barrier")
            pend = []
            def post(nu, qt):
                if pend and qt in (1, 3, 5): p.add(pend.pop(0))
                if qt == 5 and nu >= 2:
                    pr, par = nu >> 1, nu & 1
                    v = {1: 7, 2: 2, 3: 3}[pr]
                    pend.extend(ins(f"ds_write_b128 v{v}, v[{oacc(nu, q)}:{oacc(nu, q)+3}] offset:{(par*6 + q)*1024}") for q in range(6))
            self.k3_step(31, [], order=[2, 3, 4, 5, 6, 7, 0, 1], post=post)
            self.red_pending = pend
        else:
            assert not self.o.get("rawwo")
            self.k3_step(31, [])
        self.stamp()
        if self.o.get("redovl", True):
            for x in self.red_pending: p.add(x)
            p(f"s_mul_i32 s88, s{sW}, 36864"); p(f"v_add_u32 v8, s88, v{VST}")
        else:
            for pr, v in ((1, 7), (2, 2), (3, 3)):
                p(f"s_add_u32 s88, s{sW}, {pr}"); p("s_and_b32 s88, s88, 3"); p("s_mul_i32 s88, s88, 36864"); p(f"s_add_u32 s88, s88, {(pr-1)*12288}")
                p(f"v_add_u32 v{v}, s88, v{VST}")
            p(f"s_mul_i32 s88, s{sW}, 36864"); p(f"v_add_u32 v8, s88, v{VST}")
            for pr, v in ((1, 7), (2, 2), (3, 3)):
                for par in range(2):
                    for qt in range(6):
                        a = oacc(2*pr + par, qt)
                        p(f"ds_write_b128 v{v}, v[{a}:{a+3}] offset:{(par*6 + qt)*1024}")
        p("s_waitcnt lgkmcnt(0)")
        p("s_barrier")
        for sl in range(3):
            for par in range(2):
                for qt in range(6):
                    a = oacc(2*(sl+1) + par, qt)
                    p(f"ds_read_b128 v[{a}:{a+3}], v8 offset:{sl*12288 + (par*6 + qt)*1024}")
        p("v_and_b32 v12, 15, v0"); p("v_lshrrev_b32 v13, 4, v0"); p("v_lshlrev_b32 v12, 11, v12"); p("v_lshl_add_u32 v9, v13, 4, v12")
        for qt in range(6):
            for par in range(2):
                a = oacc(par, qt)
                for sl in range(3):
                    s_ = oacc(2*(sl+1) + par, qt)
                    for r in (0, 2): p(f"v_pk_add_f32 v[{a+r}:{a+r+1}], v[{a+r}:{a+r+1}], v[{s_+r}:{s_+r+1}]")
            a0, a1 = oacc(0, qt), oacc(1, qt)
            t0 = 16 + (qt % 4)*4
            p(f"v_cvt_pk_bf16_f32 v{t0}, v{a0}, v{a0+1}"); p(f"v_cvt_pk_bf16_f32 v{t0+1}, v{a0+2}, v{a0+3}")
            p(f"v_cvt_pk_bf16_f32 v{t0+2}, v{a1}, v{a1+1}"); p(f"v_cvt_pk_bf16_f32 v{t0+3}, v{a1+2}, v{a1+3}")
            p(f"s_add_u32 s88, s{kSig}, {qt}"); p("s_cmp_ge_u32 s88, 6"); p("s_cselect_b32 s89, 6, 0"); p("s_sub_u32 s88, s88, s89"); p("s_lshl_b32 s88, s88, 15")
            p(f"s_add_u32 s{kT0}, s{kOut}, s88")
            p(f"buffer_store_dwordx4 v[{t0}:{t0+3}], v9, s[{SX}:{SX+3}], s{kT0} offen {self.o.get('out_mod', '')}")

    def o_epilogue(self, last):
        p = self.p
        fuse_last = last and self.o.get("fuse")
        pre = []
        raw = self.o.get("rawwo")
        if fuse_last:
            apre = raw and self.o.get("apre", True)
            if raw and not apre:
                for x in self.k3_setup2(): p.add(x)
            part = "B" if apre else None
            pre = self.k3_loads(0, 0, 0, part) + self.k3_loads(1, 1, 1, part) + self.k3_loads(2, 2, 2, part)
        defer = fuse_last and self.o.get("defer", True)
        self.deferred = []
        for qt in range(6): p(f"v_accvgpr_read_b32 v{LS+qt}, a{LA(qt)}")
        for qt in range(6): p(f"v_rcp_f32 v{LS+qt}, v{LS+qt}")
        vstage = [8, 12, 16, 20, 24, 28, 38, 42, 46, 50]
        ndir = 6
        nag = 8; abase = 224
        if fuse_last and raw:
            vstage = vstage[:8]; ndir = self.o.get("ndir", 4); nag = 24 - ndir; abase = 160
        for qt in range(6):
            for ks in range(4):
                m = qt*4 + ks
                a0, a1 = acc(2*ks, qt), acc(2*ks+1, qt)
                l = LS + qt
                if self.o.get("pk", True):
                    lp = l & ~1; sel = "op_sel_hi:[1,0]" if l % 2 == 0 else "op_sel:[0,1] op_sel_hi:[1,1]"
                    for a in (a0, a0+2, a1, a1+2): p(f"v_pk_mul_f32 v[{a}:{a+1}], v[{a}:{a+1}], v[{lp}:{lp+1}] {sel}")
                else:
                    for r in range(4): p(f"v_mul_f32 v{a0+r}, v{l}, v{a0+r}")
                    for r in range(4): p(f"v_mul_f32 v{a1+r}, v{l}, v{a1+r}")
                if defer: t0 = ((12 if m % 2 == 0 else 8) if raw else 54) if m < ndir + nag else vstage[m - ndir - nag]
                else: t0 = SB + ((ks + 4*qt) % 6)*4
                p(f"v_cvt_pk_bf16_f32 v{t0}, v{a0}, v{a0+1}")
                p(f"v_cvt_pk_bf16_f32 v{t0+1}, v{a0+2}, v{a0+3}")
                p(f"v_cvt_pk_bf16_f32 v{t0+2}, v{a1}, v{a1+1}")
                p(f"v_cvt_pk_bf16_f32 v{t0+3}, v{a1+2}, v{a1+3}")
                n = ks*6 + qt
                mod = self.o['last_store_mod']
                if last:
                    for _ in range(2):
                        if pre:
                            for x in pre.pop(0): p.add(x)
                    if not defer or m < ndir:
                        p(f"s_add_u32 s{sT0}, s{sOo}, {n*1024}")
                        p(f"buffer_store_dwordx4 v[{t0}:{t0+3}], v{VST}, s[{SO}:{SO+3}], s{sT0} offen {mod}", tag=("o",))
                    else:
                        if m < ndir + nag:
                            d = abase + (m - ndir)*4
                            for r in range(4): p(f"v_accvgpr_write_b32 a{d+r}, v{t0+r}")
                            src = f"a[{d}:{d+3}]"
                        else: src = f"v[{t0}:{t0+3}]"
                        self.deferred.append([ins(f"s_add_u32 s{sT2}, s{sOo}, {n*1024}"),
                                              ins(f"buffer_store_dwordx4 {src}, v{VST}, s[{SO}:{SO+3}], s{sT2} offen {mod}", tag=("o",))])
                else:
                    for r in range(4): p(f"v_accvgpr_write_b32 a{OS(n)+r}, v{t0+r}")

    def final(self):
        p = self.p
        p.wait_tag(("wo",))
        p("s_barrier")
        p("v_and_b32 v8, 15, v0"); p("v_lshrrev_b32 v2, 4, v0"); p("v_lshrrev_b32 v3, 2, v8"); p("v_and_b32 v7, 3, v8")
        p("v_lshl_add_u32 v6, v2, 2, v3"); p("v_lshlrev_b32 v6, 10, v6"); p("v_lshl_add_u32 v6, v7, 4, v6")
        p(f"s_lshl_b32 s88, s{sW}, 8"); p("v_add_u32 v6, s88, v6")
        for nt in range(8):
            u, par = nt >> 1, nt & 1
            d = 32 + nt*4
            p(f"ds_read_b64_tr_b16 v[{d}:{d+1}], v6 offset:{64*u + 8*par}")
            p(f"ds_read_b64_tr_b16 v[{d+2}:{d+3}], v6 offset:{16384 + 64*u + 8*par}")
        for nt in range(8):
            d = 32 + nt*4
            if nt % 4 == 0: p(f"s_add_u32 s{sT1}, s{sWTo}, {nt*1024}")
            p(f"buffer_store_dwordx4 v[{d}:{d+3}], v{VST}, s[{SWT}:{SWT+3}], s{sT1} offen offset:{(nt % 4)*1024} {self.o['last_store_mod']}")

    def build(self):
        p = self.p
        assert self.o["msum"]
        self.prologue()
        if self.o["timing"]: p("s_mov_b32 s99, 0")
        if self.o.get("delaywg"):
            p("s_and_b32 s88, s2, 7"); p("s_cmp_lg_u32 s88, 3"); p("s_cbranch_scc1 L_nodelay")
            p("s_memrealtime s[88:89]"); p("s_waitcnt lgkmcnt(0)"); p(f"s_add_u32 s90, s88, {self.o['delaywg']}")
            p.raw("L_spinw:"); p("s_memrealtime s[88:89]"); p("s_waitcnt lgkmcnt(0)"); p("s_cmp_lt_u32 s88, s90"); p("s_cbranch_scc1 L_spinw")
            p.raw("L_nodelay:")
        self.stamp()
        if self.o.get("entry"):
            p("s_mov_b32 m0, 62"); p("s_nop 1"); p("v_writelane_b32 v5, s100, m0")
        early = self.o.get("woearly")
        p(f"s_mov_b32 s{SO+2}, {0 if self.o.get('stA') else O_BYTES}")
        mid = self.o.get("womid")
        if mid:
            assert self.o.get("stA") and self.o.get("fuse") and self.o.get("stpat") == 3
            self.emit_groups(self.w_tile(0, 0) + self.x_tile(0) + self.w_tile(1, 0) + self.dma_wo_last())
        elif early:
            assert self.o.get("stA") and self.o.get("fuse")
            self.emit_groups(self.w_tile(0, 0) + self.x_tile(0) + self.dma_wo_last() + self.w_tile(1, 0))
        else:
            self.emit_groups(self.w_tile(0, 0) + self.x_tile(0) + ([] if self.o.get("w1late") else self.w_tile(1, 0)))
        self.prologue2()
        if mid:
            p(f"s_mov_b32 s{sOreal}, s{sOo}"); p(f"s_mov_b32 s{sOo}, {4*6144}")
            p(f"s_add_u32 s{SO}, s{SWT}, s{sWTo}"); p(f"s_addc_u32 s{SO+1}, s{SWT+1}, 0")
            p(f"s_sub_u32 s{SO}, s{SO}, {12*1024}"); p(f"s_subb_u32 s{SO+1}, s{SO+1}, 0")
            p(f"s_mov_b32 s{SO+2}, 0"); p(f"s_mov_b32 s{sSz1}, {20*1024}"); p(f"s_mov_b32 s{sSz2}, 0")
        if early:
            p(f"s_mov_b32 s{sOreal}, s{sOo}"); p(f"s_mov_b32 s{sOo}, {4*6144}")
            p(f"s_add_u32 s{SO}, s{SWT}, s{sWTo}"); p(f"s_addc_u32 s{SO+1}, s{SWT+1}, 0"); p(f"s_mov_b32 s{SO+2}, 8192")
            W = self.wo_prep_groups(stage=True)
            for g in W[:9]:
                for x in g: p.add(x)
            p.wait_tag(("wo",)); p("s_barrier")
            for g in W[9:]:
                for x in g: p.add(x)
        for item in range(2):
            last = item == 1
            p.raw("@@SB A"); self.qproj_a(); p.raw("@@SE A")
            p.raw(f"@@SB B{item}"); self.qproj_b(last); self.stamp(); p.raw(f"@@SE B{item}")
            p.raw("@@SB C"); self.attention_shared(); p.raw("@@SE C")
            p.raw(f"@@SB D{item}")
            self.attention_tail(last)
            self.stamp()
            if self.o.get("guard", True): self.softmax_check(item)
            self.o_epilogue(last)
            self.stamp()
            if not last:
                if self.o.get("woearly") or self.o.get("womid"):
                    p(f"s_mov_b32 s{sOo}, s{sOreal}"); p(f"s_mov_b32 s{SO}, s72"); p(f"s_mov_b32 s{SO+1}, s73")
                if self.o.get("womid"):
                    p(f"s_mov_b32 s{sSz1}, {O_BYTES}"); p(f"s_mov_b32 s{sSz2}, {O_BYTES}")
                p(f"s_add_u32 s{sWo}, s{sWo}, 256"); p(f"s_add_u32 s{sOo}, s{sOo}, {4*6144}")
                p(f"s_mov_b32 s{sItem}, 1"); p(f"s_mov_b32 s{SO+2}, {O_BYTES}")
            else:
                if self.o.get("fuse"): self.k3_main()
                self.stamp()
                p("s_waitcnt vmcnt(0)")
                self.stamp()
                self.stamp_flush()
                p("s_waitcnt vmcnt(0)")
            p.raw(f"@@SE D{item}")
        L, st = finalize(p.L)
        L = fold(L)
        segs, top = segments(L)
        out = [i for k, i in top if k == "ins"]
        lab = lambda t: I(t, "label")
        br = lambda tgt: [ins(f"s_cmp_eq_u32 s{sItem}, 1"), ins(f"s_cbranch_scc1 {tgt}")]
        out += [lab("L_A:")] + segs["A"] + br("L_B1") + segs["B0"] + [lab("L_C:")] + segs["C"] + br("L_D1") + segs["D0"] + [ins("s_branch L_A")]
        out += [lab("L_B1:")] + segs["B1"] + [ins("s_branch L_C")]
        out += [lab("L_D1:")] + segs["D1"] + [lab("K2_END:"), ins("s_endpgm")]
        if self.o.get("guard", True): out += self.fallback()
        return out, st

if __name__ == "__main__":
    k = K2(); L, st = k.build()
    print(st, len(L))
```

```python
from dsl import *
import struct

def f32(x): return "0x%08x" % struct.unpack("<I", struct.pack("<f", x))[0]

NB, SQ, DM, H, SK, DH = 16, 192, 512, 32, 512, 128
X_BYTES = NB*SQ*DM*2
KV_BYTES = NB*H*SK*DH*2
W_BYTES = DM*H*DH*2
O_BYTES = 2*NB*2*128*6*1024
WOT_OFF = O_BYTES
WOT_BYTES = 2*4*128*8*1024
OUT_BYTES = NB*SQ*1024*2

PHI = 65536
WSLOT = [65536, 81920, 98304]
XA, XB = 114688, 139264
DROP = 0x30000

ACC = 64
def acc(T, qt): return ACC + (T*6 + qt)*4
SB = 8
def S(buf, kt): return SB + buf*8 + kt*4
PB = 24
def P(buf): return PB + buf*4
LS = 32
KA = 38
VA = 42
DV = 50
WA = 54
XAD = 58
WD = [60, 61, 2, 3]
XD = [62, 63, 6, 7]
VST = 4
def Q(qt, ks): return (qt*4 + ks)*4
def OS(n): return n*4
def KF(buf, kt, ks): return 96 + buf*32 + (kt*4 + ks)*4
def VF(buf, dt): return 160 + buf*32 + dt*4
def WF(T): return 96 + T*4
def XF(buf, qt): return 128 + buf*24 + qt*4
ONES = 224
def LA(qt): return 228 + qt*4
SX, SW, SKV, SO, SWO, SWT = 4, 8, 12, 16, 20, 24
sW, sHP, sRH, sP, sB, sHG = 28, 29, 30, 31, 32, 33
sKVo, sKVl, sWo, sWl, sXo, sXl, sOo = 34, 35, 36, 37, 38, 39, 40
sT0, sT1, sC = 41, 42, 43
sWOo, sWTo = 44, 45
sItem, sCnt = 46, 47
sTile, sM, sTh1, sTh2, sWarmW, sWarmX, sWoM, sDrop, sTc, sRot = 74, 75, 76, 77, 78, 79, 80, 81, 84, 85
sT2 = 83
sC2 = 86
sWR, sXR = 78, 79

SFL = 92
kA, kBo, kT0, kT1, kOut, kCnt = 74, 78, 80, 81, 79, 47
sC1, sC2o = 97, 96
def oacc(nu, qt): return ACC + (nu*6 + qt)*4
def AF(buf, nu): return buf*56 + nu*4
def BF(buf, qt): return buf*56 + 32 + qt*4
VB4 = 6
VBQ = 58
kRho, kSig = 82, 85
VAD2 = [2, 3, 6, 7]
VAR2 = 54
VAR = 38
VAD = 50
def AF2(buf, nu): return buf*32 + nu*4
def BF2(buf, qt): return 64 + buf*24 + qt*4
sOreal = 98
sSz1, sSz2 = 76, 77
VPOLL = 34
MF = "v_mfma_f32_16x16x32_bf16"
def mfma(d, dk, a, ak, b, bk, c=None):
    cs = "0" if c is None else rng(dk, c, 4)
    return ins(f"{MF} {rng(dk,d,4)}, {rng(ak,a,4)}, {rng(bk,b,4)}, {cs}")

class K2:
    def __init__(self, opts=None):
        self.o = dict(nt="nt", w_mod="", x_mod="", store_mod="sc1", last_store_mod="sc1", timing=False, msum=True, warm=False, qrot=True, stA=True, stpat=3, credit=4, out_mod="sc1", rawwo=True, afirst=True, drop=[])
        if opts: self.o.update(opts)
        self.p = Prog()
        self.phase = ""

    def tile_addr(self):
        if self.o.get("perm4"):
            return [ins(f"s_and_b32 s{sTile}, s{sTc}, 0x6000"), ins(f"s_lshl_b32 s{sTile}, s{sTile}, 2"),
                    ins(f"s_and_b32 s{sT0}, s{sTc}, 0x18000"), ins(f"s_lshr_b32 s{sT0}, s{sT0}, 2"), ins(f"s_or_b32 s{sTile}, s{sTile}, s{sT0}"),
                    ins(f"s_and_b32 s{sT0}, s{sTc}, 0x20000"), ins(f"s_or_b32 s{sTile}, s{sTile}, s{sT0}"),
                    ins(f"s_add_u32 s{sTile}, s{sTile}, s{sKVo}"), ins(f"s_add_u32 s{sTc}, s{sTc}, 8192")]
        if not self.o.get("rot"):
            return [ins(f"s_add_u32 s{sTile}, s{sKVo}, s{sTc}"), ins(f"s_add_u32 s{sTc}, s{sTc}, 8192")]
        return [ins(f"s_add_u32 s{sTile}, s{sTc}, s{sRot}"), ins(f"s_and_b32 s{sTile}, s{sTile}, 0x1ffff"),
                ins(f"s_and_b32 s{sT0}, s{sTc}, 0x20000"), ins(f"s_add_u32 s{sTile}, s{sTile}, s{sT0}"),
                ins(f"s_add_u32 s{sTile}, s{sTile}, s{sKVo}"), ins(f"s_add_u32 s{sTc}, s{sTc}, 8192")]
    def dma_kv(self, tag, m0a, m0b, pre=()):
        nt = self.o['nt']
        G = []
        g = list(pre) + self.tile_addr() + [ins(m0a)]
        for k in range(4):
            g.append(ins(f"buffer_load_dwordx4 v{DV+k}, s[{SKV}:{SKV+3}], s{sTile} offen offset:{1024*k} {nt} lds", tag=tag))
            G.append(g); g = []
        g = [ins(f"s_add_u32 s{sT0}, s{sTile}, 4096"), ins(m0b)]
        for k in range(4):
            g.append(ins(f"buffer_load_dwordx4 v{DV+k}, s[{SKV}:{SKV+3}], s{sT0} offen offset:{1024*k} {nt} lds", tag=tag))
            G.append(g); g = []
        return G
    def dma_kv_abs(self, tag, slot):
        o = (slot >> 1)*PHI + (slot & 1)*8192
        return self.dma_kv(tag, f"s_add_u32 m0, s{sKVl}, {o}", f"s_add_u32 m0, s{sKVl}, {o + 4096}")
    def kv_pieces(self, tile, a, b):
        G = self.dma_kv_abs(("kv", tile), tile % 4)
        out = G[a:b]
        if a not in (0, 4):
            slot = tile % 4
            o = (slot >> 1)*PHI + (slot & 1)*8192 + (4096 if a >= 4 else 0)
            out[0] = [ins(f"s_add_u32 m0, s{sKVl}, {o}")] + out[0]
        return out
    def dma_w(self, tag, base_reg, goff, m0txt, rot=None):
        G = []
        if rot is None: g = [ins(f"s_add_u32 s{sT1}, s{base_reg}, {goff}")]
        else:
            g = [ins(f"s_add_u32 s{sT1}, s{sWR}, {rot*262144}"), ins(f"s_and_b32 s{sT1}, s{sT1}, 0x3fffff"), ins(f"s_add_u32 s{sT1}, s{sT1}, s{base_reg}")]
            if goff: g.append(ins(f"s_add_u32 s{sT1}, s{sT1}, {goff}"))
        g.append(ins(m0txt))
        for n in range(4):
            g.append(ins(f"buffer_load_dwordx4 v{WD[n]}, s[{SW}:{SW+3}], s{sT1} offen offset:{1024*n} {self.o['w_mod']} lds", tag=tag))
            G.append(g); g = []
        return G
    def x_soff(self, base_reg, tt):
        if not self.o.get("qrot"): return [ins(f"s_add_u32 s{sT1}, s{base_reg}, {tt*128}")]
        return [ins(f"s_add_u32 s{sT1}, s{sXR}, {tt*128}"), ins(f"s_and_b32 s{sT1}, s{sT1}, 1023"), ins(f"s_add_u32 s{sT1}, s{sT1}, s{base_reg}")]
    def dma_x(self, tag, base_reg, tt, m0a, m0b):
        G = []
        m = self.o['x_mod']
        g = self.x_soff(base_reg, tt) + [ins(m0a)]
        for n in range(4):
            g.append(ins(f"buffer_load_dwordx4 v{XD[n]}, s[{SX}:{SX+3}], s{sT1} offen offset:{1024*n} {m} lds", tag=tag))
            G.append(g); g = []
        g = [ins(f"s_add_u32 s{sT1}, s{sT1}, {4*8192}"), ins(m0b)]
        for n in range(2):
            g.append(ins(f"buffer_load_dwordx4 v{XD[n]}, s[{SX}:{SX+3}], s{sT1} offen offset:{1024*n} {m} lds", tag=tag))
            G.append(g); g = []
        return G
    def w_tile(self, t, nxt=0):
        m0 = f"s_add_u32 m0, s{sWl}, {WSLOT[t % 3]}"
        if self.o.get("qrot"): return self.dma_w(("w", t), sWo, nxt*256, m0, rot=t)
        return self.dma_w(("w", t), sWo, nxt*256 + t*262144, m0)
    def x_tile(self, tt):
        sl = XB if tt % 2 == 0 else XA
        return self.dma_x(("x", tt), sXo, tt, f"s_add_u32 m0, s{sXl}, {sl}", f"s_add_u32 m0, s{sXl}, {sl + 4096}")
    def warmup(self, nxt):
        if not self.o["warm"]: return []
        G = []
        def ld(v, srd, soff, off, mod):
            i = ins(f"buffer_load_dwordx4 a[252:255], v{v}, s[{srd}:{srd+3}], s{soff} offen offset:{off} {mod}", tag=("warm",))
            i.kind = "dma"; i.wr = set(); i.rd.discard("m0")
            return i
        for k in range(2):
            g = [ins(f"s_add_u32 s{sT1}, s{sWarmW}, {nxt*256 + k*262144}")]
            for n in range(4):
                g.append(ld(WD[n], SW, sT1, 1024*n, self.o['w_mod'])); G.append(g); g = []
        if nxt == 0 or self.o.get("warmx1", True):
            for k in range(2):
                g = [ins(f"s_add_u32 s{sT1}, s{sWarmX}, {k*128}")]
                for n in range(4):
                    g.append(ld(XD[n], SX, sT1, 1024*n, self.o['x_mod'])); G.append(g); g = []
                g = [ins(f"s_add_u32 s{sT1}, s{sT1}, {4*8192}")]
                for n in range(2):
                    g.append(ld(XD[n], SX, sT1, 1024*n, self.o['x_mod'])); G.append(g); g = []
        return G
    def next_item_prefetch(self, nxt=1):
        return self.w_tile(0, nxt) + self.x_tile(0) + self.w_tile(1, nxt) + self.w_tile(2, nxt) + self.x_tile(1)
    def dma_wo(self):
        G = []
        for half in range(2):
            g = [ins(f"s_add_u32 s{sT1}, s{sWOo}, {half*4096}"), ins(f"s_add_u32 m0, s{sWoM}, {half*4096}")]
            for n in range(4):
                g.append(ins(f"buffer_load_dwordx4 v{VST}, s[{SWO}:{SWO+3}], s{sT1} offen offset:{1024*n} nt lds", tag=("wo",)))
                G.append(g); g = []
        return G
    def o_store(self, n, mod, prev, force=False):
        g = []
        if n % 4 == 0 or force: g.append(ins(f"s_add_u32 s{sT2}, s{sOo}, {((n & ~3)*1024 - (4*6144 if prev else 0)) & 0xffffffff}"))
        g.append(ins(f"buffer_store_dwordx4 {rng('a', OS(n), 4)}, v{VST}, s[{SO}:{SO+3}], s{sT2} offen offset:{(n % 4)*1024} {mod}", tag=("o",)))
        return g
    def rd_k(self, par, kt, ks):
        return ins(f"ds_read_b128 {rng('a', KF(par, kt, ks), 4)}, v{KA+ks} offset:{par*8192 + kt*4096}")
    def rd_v(self, par, dt, kt):
        return ins(f"ds_read_b64_tr_b16 {rng('a', VF(par, dt) + 2*kt, 2)}, v{VA+dt} offset:{par*8192 + kt*4096}")
    def rd_w(self, t, T, h2):
        if self.o.get("natw_test"):
            return ins(f"ds_read_b64_tr_b16 {rng('a', WF(T) + 2*h2, 2)}, v{WA+(T & 3)} offset:{(t % 3)*16384 + h2*2048}")
        ks, u = T >> 1, T & 1
        return ins(f"ds_read_b64_tr_b16 {rng('a', WF(T) + 2*h2, 2)}, v{WA+ks} offset:{(t % 3)*16384 + h2*2048 + 8*u}")
    def rd_x(self, t, qt):
        tt = t >> 1
        return ins(f"ds_read_b128 {rng('a', XF(t % 2, qt), 4)}, v{XAD + (t & 1)} offset:{(24576 if tt % 2 == 0 else 0) + qt*2048}")

    def prologue(self):
        p = self.p
        if self.o.get("entry"): p("s_memrealtime s[100:101]")
        p("s_cmp_ge_u32 s2, 256")
        p("s_cbranch_scc1 K2_END")
        p("s_load_dwordx16 s[48:63], s[0:1], 0")
        p("s_load_dwordx8 s[64:71], s[0:1], 64")
        p("s_load_dwordx2 s[72:73], s[0:1], 96")
        p(f"v_lshrrev_b32 v1, 6, v0")
        p(f"v_and_b32 v0, 63, v0")
        p(f"v_readfirstlane_b32 s{sW}, v1")
        p("s_and_b32 s86, s2, 7")
        p("s_lshr_b32 s87, s2, 3")
        p(f"s_lshr_b32 s{sP}, s86, 2")
        p("s_and_b32 s88, s86, 1"); p("s_lshl_b32 s88, s88, 3"); p("s_and_b32 s82, s87, 7")
        p(f"s_add_u32 s{sB}, s88, s82")
        p("s_lshr_b32 s88, s86, 1"); p("s_and_b32 s88, s88, 1"); p("s_lshl_b32 s88, s88, 2"); p("s_lshr_b32 s83, s87, 3")
        p(f"s_add_u32 s{sHG}, s88, s83")
        p(f"s_and_b32 s{sHP}, s{sW}, 1")
        p(f"s_lshr_b32 s{sRH}, s{sW}, 1")
        p("s_waitcnt lgkmcnt(0)")
        p(f"s_cmp_eq_u32 s{sP}, 0")
        p(f"s_cselect_b32 s{SX}, s48, s58"); p(f"s_cselect_b32 s{SX+1}, s49, s59")
        p(f"s_cselect_b32 s{SW}, s54, s64"); p(f"s_cselect_b32 s{SW+1}, s55, s65")
        p(f"s_cselect_b32 s{SWO}, s56, s66"); p(f"s_cselect_b32 s{SWO+1}, s57, s67")
        p(f"s_cselect_b32 s90, s50, s60"); p(f"s_cselect_b32 s91, s51, s61")
        p(f"s_cselect_b32 s92, s52, s62"); p(f"s_cselect_b32 s93, s53, s63")
        p(f"s_cmp_eq_u32 s{sRH}, 0")
        p(f"s_cselect_b32 s{SKV}, s90, s92"); p(f"s_cselect_b32 s{SKV+1}, s91, s93")
        p(f"s_cselect_b32 s94, 64, 128"); p(f"s_cselect_b32 s95, 128, 0"); p("s_mov_b32 s96, 128"); p(f"s_cselect_b32 s96, 192, s96")
        p(f"s_cselect_b32 s97, 0, 1")
        p(f"s_cselect_b32 s{sKVl}, 0, 32768")
        for r, n in ((SX, X_BYTES), (SW, W_BYTES), (SWO, W_BYTES), (SKV, KV_BYTES)):
            p(f"s_mov_b32 s{r+2}, {n}"); p(f"s_mov_b32 s{r+3}, 0x00020000")
        p(f"s_mov_b32 s{SO}, s72"); p(f"s_mov_b32 s{SO+1}, s73"); p(f"s_mov_b32 s{SO+2}, 0"); p(f"s_mov_b32 s{SO+3}, 0x00020000")
        p(f"s_add_u32 s{SWT}, s72, {WOT_OFF}"); p(f"s_addc_u32 s{SWT+1}, s73, 0"); p(f"s_mov_b32 s{SWT+2}, {WOT_BYTES}"); p(f"s_mov_b32 s{SWT+3}, 0x00020000")
        p(f"s_lshl_b32 s88, s{sB}, 5"); p(f"s_lshl_b32 s89, s{sHG}, 2"); p("s_add_u32 s88, s88, s89"); p(f"s_lshl_b32 s89, s{sHP}, 1"); p("s_add_u32 s88, s88, s89")
        p(f"s_lshl_b32 s{sKVo}, s88, 17")
        p(f"s_lshl_b32 s89, s{sHP}, 14"); p(f"s_add_u32 s{sKVl}, s{sKVl}, s89")
        p(f"s_lshl_b32 s88, s{sW}, 16"); p(f"s_lshl_b32 s89, s{sHG}, 10"); p(f"s_add_u32 s{sWo}, s88, s89")
        p(f"s_lshl_b32 s{sWl}, s{sW}, 12")
        p(f"s_lshl_b32 s88, s82, 19"); p(f"s_add_u32 s{sWarmW}, s{sWo}, s88")
        p(f"s_mul_i32 s88, s{sB}, 196608"); p(f"s_mul_i32 s89, s{sW}, 49152"); p(f"s_add_u32 s{sXo}, s88, s89")
        p(f"s_mul_i32 s{sXl}, s{sW}, 6144")
        p(f"s_lshl_b32 s88, s83, 8"); p(f"s_add_u32 s{sWarmX}, s{sXo}, s88")
        if self.o.get("qrot"):
            assert not self.o["warm"]
            p("s_lshl_b32 s88, s83, 1"); p("s_add_u32 s88, s88, s82"); p("s_and_b32 s88, s88, 7")
            p(f"s_lshl_b32 s{sWR}, s88, 19"); p(f"s_lshl_b32 s{sXR}, s88, 7")
        p(f"s_mov_b32 s{sDrop}, {DROP}")
        p("s_mul_i32 s88, s2, 5"); p("s_lshr_b32 s89, s2, 4"); p("s_add_u32 s88, s88, s89"); p("s_and_b32 s88, s88, 15"); p(f"s_lshl_b32 s{sRot}, s88, 13")
        p(f"s_lshl_b32 s88, s{sP}, 4"); p(f"s_add_u32 s88, s88, s{sB}"); p("s_lshl_b32 s88, s88, 1"); p(f"s_add_u32 s88, s88, s{sRH}")
        p("s_lshl_b32 s88, s88, 7"); p(f"s_lshl_b32 s89, s{sHG}, 4"); p("s_add_u32 s88, s88, s89"); p(f"s_lshl_b32 s89, s{sHP}, 3"); p("s_add_u32 s88, s88, s89")
        p(f"s_mul_i32 s{sOo}, s88, 6144")
        p("s_and_b32 s88, s86, 3"); p("s_lshl_b32 s88, s88, 5"); p("s_add_u32 s88, s88, s87")
        p(f"s_lshl_b32 s89, s88, 15"); p(f"s_lshl_b32 s98, s{sW}, 13"); p(f"s_add_u32 s{sWOo}, s89, s98")
        p(f"s_lshl_b32 s89, s{sP}, 2"); p(f"s_add_u32 s89, s89, s{sW}"); p("s_lshl_b32 s89, s89, 7"); p("s_add_u32 s89, s89, s88"); p(f"s_lshl_b32 s{sWTo}, s89, 13")
        p(f"s_mov_b32 s{sC}, {f32(1.4426950408889634*128**-0.5)}")
        p(f"s_mov_b32 s{sItem}, 0")
        self.late_consts = True
        i_, g_, r_, c_ = "v14", "v8", "v9", "v10"
        p(f"v_and_b32 {i_}, 15, v0"); p(f"v_lshrrev_b32 {g_}, 4, v0"); p(f"v_lshrrev_b32 {r_}, 2, {i_}"); p(f"v_and_b32 {c_}, 3, {i_}")
        p(f"v_lshlrev_b32 v{VST}, 4, v0")
        p("v_lshrrev_b32 v11, 5, v0"); p("v_and_b32 v12, 15, v0"); p("v_lshlrev_b32 v13, 2, v11"); p("v_xor_b32 v12, v12, v13"); p("v_lshlrev_b32 v12, 4, v12")
        p("v_lshl_add_u32 v12, v11, 13, v12"); p("v_bfe_u32 v13, v0, 4, 1"); p(f"v_lshl_add_u32 v{WD[0]}, v13, 9, v12")
        p(f"v_xor_b32 v{WD[1]}, 128, v{WD[0]}"); p(f"v_add_u32 v{WD[2]}, {2*15360}, v{WD[0]}"); p(f"v_add_u32 v{WD[3]}, {3*15360}, v{WD[1]}"); p(f"v_add_u32 v{WD[1]}, 15360, v{WD[1]}")
        p("v_lshrrev_b32 v11, 3, v0"); p("v_and_b32 v12, 7, v0"); p(f"v_xor_b32 v12, v12, {g_}"); p("v_lshlrev_b32 v12, 4, v12")
        p(f"v_lshl_add_u32 v{XD[0]}, v11, 10, v12"); p(f"v_xor_b32 v{XD[1]}, 64, v{XD[0]}")
        p(f"v_add_u32 v{XD[2]}, {2*7168}, v{XD[0]}"); p(f"v_add_u32 v{XD[3]}, {3*7168}, v{XD[1]}"); p(f"v_add_u32 v{XD[1]}, 7168, v{XD[1]}")
        p(f"v_lshlrev_b32 v11, s97, {g_}"); p(f"v_xor_b32 v11, v11, {i_}"); p("v_lshlrev_b32 v11, 4, v11"); p(f"v_lshl_add_u32 v{DV}, {g_}, 8, v11")
        for k in range(1, 4): p(f"v_xor_b32 v{DV+k}, s{93+k}, v{DV}")
        self.lane = (i_, g_, r_, c_)
    def prologue2(self):
        p = self.p
        i_, g_, r_, c_ = self.lane
        p(f"s_lshl_b32 s88, s{sHP}, 14")
        p(f"v_xor_b32 v11, {g_}, {i_}"); p("v_lshlrev_b32 v11, 4, v11"); p(f"v_lshl_add_u32 v11, {i_}, 8, v11"); p(f"v_add_u32 v{KA}, s88, v11")
        for ks in range(1, 4): p(f"v_xor_b32 v{KA+ks}, {64*ks}, v{KA}")
        p(f"v_and_b32 v11, 1, {g_}"); p("v_lshlrev_b32 v11, 2, v11"); p(f"v_add_u32 v11, v11, {r_}"); p("v_lshlrev_b32 v11, 1, v11")
        p(f"v_lshrrev_b32 v12, 1, {c_}"); p("v_xor_b32 v11, v11, v12"); p("v_lshlrev_b32 v11, 4, v11")
        p(f"v_and_b32 v12, 1, {c_}"); p("v_lshl_add_u32 v11, v12, 3, v11")
        p(f"v_lshl_add_u32 v12, {g_}, 2, {r_}"); p("v_lshl_add_u32 v11, v12, 8, v11")
        p("s_add_u32 s89, s88, 32768"); p(f"v_add_u32 v{VA}, s89, v11")
        for dt in range(1, 8): p(f"v_xor_b32 v{VA+dt}, {32*dt}, v{VA}")
        p(f"s_lshl_b32 s88, s{sHP}, 4")
        p(f"v_add_u32 v11, s88, {c_}"); p(f"v_lshlrev_b32 v12, 2, {r_}"); p("v_xor_b32 v11, v11, v12"); p("v_lshlrev_b32 v11, 4, v11")
        p(f"v_lshl_add_u32 v12, {g_}, 3, {r_}"); p("v_lshl_add_u32 v11, v12, 9, v11"); p(f"v_add_u32 v{WA}, {WSLOT[0]}, v11")
        if self.o.get("natw_test"):
            p(f"v_and_b32 v11, 1, {g_}"); p("v_lshlrev_b32 v11, 2, v11"); p(f"v_add_u32 v11, v11, {r_}"); p("v_lshlrev_b32 v11, 1, v11")
            p(f"v_lshrrev_b32 v13, 1, {c_}"); p("v_xor_b32 v11, v11, v13"); p("v_lshlrev_b32 v11, 4, v11"); p(f"v_and_b32 v13, 1, {c_}"); p("v_lshl_add_u32 v11, v13, 3, v11")
            p("v_lshl_add_u32 v11, v12, 9, v11"); p(f"v_add_u32 v{WA}, {WSLOT[0]}, v11")
            for ks in range(1, 4): p(f"v_xor_b32 v{WA+ks}, {32*ks}, v{WA}")
        else:
            for ks in range(1, 4): p(f"v_xor_b32 v{WA+ks}, {64*ks}, v{WA}")
        p(f"s_mul_i32 s88, s{sRH}, {96*128}"); p(f"s_add_u32 s88, s88, {XA}")
        p(f"v_lshrrev_b32 v11, 1, {i_}"); p(f"v_xor_b32 v11, v11, {g_}"); p("v_lshlrev_b32 v11, 4, v11"); p(f"v_lshl_add_u32 v11, {i_}, 7, v11"); p(f"v_add_u32 v{XAD}, s88, v11")
        p(f"v_xor_b32 v{XAD+1}, 64, v{XAD}")
        p(f"s_mov_b32 s{sC2}, s{sC}"); p(f"s_mov_b32 s{sC2+1}, s{sC}")
        if self.o.get("fuse"):
            p(f"s_mov_b32 s{SFL}, s70"); p(f"s_mov_b32 s{SFL+1}, s71"); p(f"s_mov_b32 s{SFL+2}, 256"); p(f"s_mov_b32 s{SFL+3}, 0x00020000")
            sh = 16 if self.o.get("dbg") is not None else 0
            p(f"s_lshl_b32 s{sC1}, s{sP}, 2"); p(f"s_add_u32 s{sC1}, s{sC1}, {4*sh}")
            p(f"s_lshl_b32 s88, s{sP}, 4"); p(f"s_add_u32 s88, s88, s{sB}"); p(f"s_add_u32 s88, s88, {2+sh}"); p(f"s_lshl_b32 s{sC2o}, s88, 2")
            if self.o.get("rawwo"): p(f"s_mov_b32 s{sC1}, s{sC2o}")
        if self.o["msum"]:
            p("v_mov_b32 v11, 0x3f803f80")
            for r in range(4): p(f"v_accvgpr_write_b32 a{ONES+r}, v11")

    def stamp(self, fine=False):
        if not self.o["timing"]: return
        if fine and not self.o.get("fine"): return
        p = self.p
        p(f"s_memrealtime s[88:89]")
        p(f"s_memtime s[90:91]")
        p("s_waitcnt lgkmcnt(0)")
        p("s_mov_b32 m0, s99"); p("s_nop 1")
        p(f"v_writelane_b32 v5, s88, m0")
        p(f"v_writelane_b32 v1, s90, m0")
        p("s_add_u32 s99, s99, 1")
    def stamp_flush(self):
        if not self.o["timing"]: return
        p = self.p
        if self.o.get("dbg") is not None:
            p(f"s_cmp_eq_u32 s2, {self.o['dbg']}"); p("s_cselect_b32 s90, 64, 0"); p(f"s_cmp_eq_u32 s{sW}, 0"); p("s_cselect_b32 s90, s90, 0")
            p("s_mov_b32 s88, s70"); p("s_mov_b32 s89, s71"); p("s_mov_b32 s91, 0x00020000")
            src = "v1" if self.o.get("dbgcyc") else "v5"
            p("v_lshlrev_b32 v6, 2, v0")
            p(f"buffer_store_dword {src}, v6, s[88:91], 0 offen")
            if not self.o.get("fuse"):
                p("s_add_u32 s88, s88, 512"); p("s_addc_u32 s89, s89, 0"); p("s_cmp_lg_u32 s90, 0"); p("s_cselect_b32 s90, 52, 0")
                p(f"buffer_store_dword {src}, v6, s[88:91], 0 offen")
            return
        p(f"s_add_u32 s88, s72, {64<<20}"); p("s_addc_u32 s89, s73, 0"); p(f"s_mov_b32 s90, {1<<20}"); p("s_mov_b32 s91, 0x00020000")
        p(f"s_lshl_b32 s92, s2, 2"); p(f"s_add_u32 s92, s92, s{sW}"); p("s_lshl_b32 s92, s92, 9")
        p("v_lshlrev_b32 v6, 2, v0")
        p("buffer_store_dword v5, v6, s[88:91], s92 offen")
        p("buffer_store_dword v1, v6, s[88:91], s92 offen offset:256")

    def emit_groups(self, groups):
        for g in groups:
            for x in g: self.p.add(x)
    def keep(self, x):
        drop = self.o["drop"]; ph = self.phase
        if x.kind == "dma" and ph + "_dma" in drop: return False
        if x.kind == "ds_read" and ph + "_lds" in drop: return False
        if x.kind == "barrier" and ph + "_bar" in drop: return False
        if x.kind == "trans" and ph + "_exp" in drop: return False
        if x.kind == "valu" and x.txt.startswith("v_add_f32") and ph + "_add" in drop: return False
        if x.kind == "valu" and x.txt.startswith("v_cvt") and ph + "_cvt" in drop: return False
        if x.kind == "vstore" and ph + "_st" in drop: return False
        return True
    def run(self, mf, chains, pre=()):
        ch = [[([x for x in g if self.keep(x)], lo, hi) for g, lo, hi in c] for c in chains]
        ch = [[it for it in c if it[0]] for c in ch]
        if self.phase + "_mfma" in self.o["drop"]: mf = [ins("s_nop 0") for _ in mf]
        self.p.extend(gapfill(mf, ch, pre=[x for x in pre if self.keep(x)]))

    def spaced(self, G, lo, hi):
        n = len(G)
        out = []
        for k, g in enumerate(G):
            pos = lo + (k*(hi - lo + 1))//n
            out.append((g, pos, pos + 1))
        return out
    def qstep(self, t, stores=(), sig=False):
        p = self.p
        self.phase = "qp"
        mf = []
        for T in range(8):
            for qt in range(6):
                mf.append(mfma(acc(T, qt), "v", WF(T), "a", XF(t % 2, qt), "a", None if t == 0 else acc(T, qt)))
        need = []
        for qt in range(6): need += R("a", XF(t % 2, qt), 4)
        for T in range(6): need += R("a", WF(T), 4)
        pre = [wait_regs(need)]
        chains = []
        BG = self.o.get("bg", 11)
        slow = []
        if t < 15:
            bar = [wait_tag(("w", t+1))]
            if t % 2 == 1: bar.append(wait_tag(("x", (t+1) >> 1)))
            chains.append([(bar, BG-1, BG-1), ([ins("s_waitcnt lgkmcnt(0)"), ins("s_barrier")], BG, BG)])
            cw = []
            for T in range(8):
                lo = max(BG+1, 6*T + 5)
                cw += [([self.rd_w(t+1, T, 0)], lo, min(47, lo + 8)), ([self.rd_w(t+1, T, 1)], lo, min(47, lo + 9))]
            chains.append(cw)
            chains.append([([self.rd_x(t+1, qt)], BG+1, 40) for qt in range(6)])
            GW = self.w_tile(t+3) if t + 3 <= 15 else []
            early = []; GX = []
            if t % 2 == 1 and (t >> 1) + 2 <= 7: GX = self.x_tile((t >> 1) + 2)[:3]
            if t % 2 == 0 and t >= 2 and ((t-1) >> 1) + 2 <= 7:
                tt = ((t-1) >> 1) + 2; sl = XB if tt % 2 == 0 else XA
                early = self.x_tile(tt)[3:]
                early[0] = self.x_soff(sXo, tt) + [ins(f"s_add_u32 m0, s{sXl}, {sl}")] + early[0]
            if t == 0:
                early = self.w_tile(2) + self.x_tile(1)
                if self.o.get("w1late"): early = self.w_tile(1) + early
            late = GW + GX
            plan = self.o.get("kvplan", {10: (0, 0, 4), 11: (0, 4, 8), 12: (1, 0, 4), 13: (1, 4, 8)})
            if t in plan or str(t) in plan:
                slow = self.kv_pieces(*(plan.get(t) or plan.get(str(t))))
            c = []
            if t == 0:
                c = self.spaced(early + late, 0, 47); early = []; late = []
            if early:
                span = BG - 1
                for k, g in enumerate(early): c.append((g, int(k*span/len(early)), int(k*span/len(early)) + 1))
            hi = 47 if not (slow or stores) else (39 if len(slow) <= 2 else 32)
            if late: c += self.spaced(late, BG+2, hi)
            if slow: c += self.spaced(slow, (41 if len(slow) <= 2 else 34) if late else BG+2, 47)
            if c: chains.append(c)
        else:
            chains.append([([wait_tag(("kv", 0))], BG-1, BG-1), ([ins("s_waitcnt lgkmcnt(0)"), ins("s_barrier")], BG, BG)])
            G = self.kv_pieces(2, 0, 4 if self.o.get("look", 3) == 3 else 8)
            if self.o.get("kv15"): G = self.kv_pieces(*self.o["kv15"]) + G
            chains.append(self.spaced(G, BG+1, 47))
            ne = self.o.get("qearly", 0)
            if ne:
                c = []
                for qt in range(ne):
                    c += [([x], 14, 47) for x in self.q_convert(qt, 0, S(0, 0) + (qt % 4)*4)]
                chains.append(c)
        if self.o.get("womid"):
            if t == 2:
                W = self.wo_prep_groups(stage=12)
                blk = [ins(f"s_cmp_eq_u32 s{sItem}, 1"), ins("s_cbranch_scc1 L_nowo")] + [x for g in W for x in g]
                for x in blk: x.meta["alt"] = True
                blk.append(I("L_nowo:", "label"))
                chains.append([(blk, BG+1, BG+1)])
            if t == 4: chains.append([([ins(f"s_mov_b32 s{SO+2}, s{sSz1}")], 0, 2)])
            if t == 7: chains.append([([ins(f"s_mov_b32 s{SO+2}, s{sSz2}")], 0, 2)])
        if sig:
            chains.append([(self.signal(f"v_mov_b32 v{VPOLL+2}, s{sC1}"), BG+1, BG+3)])
        if stores:
            lo = 26 if t == 12 else 0
            if self.o.get("stA"): lo = {2: 41, 3: 36, 4: 30}[len(stores)]
            chains.append(self.spaced([self.o_store(n, self.o["store_mod"], True, force=bool(self.o.get("stA")) and n == stores[0]) for n in stores], lo, 47))
        self.run(mf, chains, pre)

    def q_convert(self, qt, ks, t0):
        a0, a1 = acc(2*ks, qt), acc(2*ks+1, qt)
        L = [ins(f"v_mul_f32 v{a+r}, s{sC}, v{a+r}") for a in (a0, a1) for r in range(4)]
        L += [ins(f"v_cvt_pk_bf16_f32 v{t0}, v{a0}, v{a0+1}"), ins(f"v_cvt_pk_bf16_f32 v{t0+1}, v{a0+2}, v{a0+3}"),
              ins(f"v_cvt_pk_bf16_f32 v{t0+2}, v{a1}, v{a1+1}"), ins(f"v_cvt_pk_bf16_f32 v{t0+3}, v{a1+2}, v{a1+3}")]
        L += [ins(f"v_accvgpr_write_b32 a{Q(qt,ks)+r}, v{t0+r}") for r in range(4)]
        return L
    def qproj_a(self):
        p = self.p
        p(f"s_lshl_b32 s{sTc}, s{sItem}, 17")
        p.wait_tag(("w", 0)); p.wait_tag(("x", 0))
        p("s_barrier")
        self.stamp()
        for T in range(8):
            p.add(self.rd_w(0, T, 0)); p.add(self.rd_w(0, T, 1))
        for qt in range(6): p.add(self.rd_x(0, qt))
        for t in range(12):
            pat = self.o.get("stpat", 2)
            if pat == 2: ss = [2*t, 2*t+1]
            elif pat == 3: ss = [3*t, 3*t+1, 3*t+2] if t < 8 else []
            elif pat == 4: ss = [4*(t//2) + k for k in range(4)] if t % 2 == 0 else []
            elif pat == 5: ss = [4*(t//2) + k for k in range(4)] if t % 2 == 1 else []
            self.qstep(t, ss if self.o.get("stA") else ())
            if t in (3, 7, 11): self.stamp(True)
    def qproj_b(self, last):
        p = self.p
        st = (lambda a, b: list(range(a, b))) if (last and not self.o.get("stA")) else (lambda a, b: [])
        self.qstep(12, st(0, 3)); self.qstep(13, st(3, 9)); self.qstep(14, st(9, 15))
        sig_late = self.o.get("siglate", False)
        self.qstep(15, st(15, 18), sig=bool(last and self.o.get("fuse") and not sig_late))
        self.stamp()
        for kt in range(2):
            for ks in range(4): p.add(self.rd_k(0, kt, ks))
        tmp = S(0, 0)
        rest = self.kv_pieces(2, 4, 8) if self.o.get("look", 3) == 3 else []
        late = st(18, 24)
        for qt in range(6):
            for ks in range(4):
                n = qt*4 + ks
                a0, a1 = acc(2*ks, qt), acc(2*ks+1, qt)
                if ks == 0 and qt < self.o.get("qearly", 0):
                    if qt < 4:
                        pass
                    continue
                if self.o.get("pk", True):
                    for a in (a0, a0+2, a1, a1+2): p(f"v_pk_mul_f32 v[{a}:{a+1}], v[{a}:{a+1}], s[{sC2}:{sC2+1}]")
                else:
                    for r in range(4): p(f"v_mul_f32 v{a0+r}, s{sC}, v{a0+r}")
                    for r in range(4): p(f"v_mul_f32 v{a1+r}, s{sC}, v{a1+r}")
                t0 = tmp + (n % 4)*4
                p(f"v_cvt_pk_bf16_f32 v{t0}, v{a0}, v{a0+1}")
                p(f"v_cvt_pk_bf16_f32 v{t0+1}, v{a0+2}, v{a0+3}")
                p(f"v_cvt_pk_bf16_f32 v{t0+2}, v{a1}, v{a1+1}")
                p(f"v_cvt_pk_bf16_f32 v{t0+3}, v{a1+2}, v{a1+3}")
                if late and n % 2 == 0 and n < 18:
                    m = late.pop(0)
                    for x in self.o_store(m, self.o["store_mod"], True, force=True): p.add(x)
                if self.o.get("dummy_mfma"):
                    for _ in range(self.o["dummy_mfma"]): p.add(mfma(252, "a", KF(0, 0, 0), "a", KF(0, 1, 0), "a", None))
                for r in range(4): p(f"v_accvgpr_write_b32 a{Q(qt,ks)+r}, v{t0+r}")
                if rest and n % 4 == 3 and n >= 7:
                    for x in rest.pop(0): p.add(x)
            if qt < 4:
                for dt in (2*qt, 2*qt+1):
                    p.add(self.rd_v(0, dt, 0)); p.add(self.rd_v(0, dt, 1))
        assert not rest and not late
        if last and self.o.get("fuse") and sig_late:
            for x in self.signal(f"v_mov_b32 v{VPOLL+2}, s{sC1}"): p.add(x)

    def period(self, n, dma=(), pre=(), early=(), extra=()):
        p = self.p
        self.phase = "at"
        msum = self.o["msum"]
        j, pp = divmod(n, 6)
        qk = []; pv = []
        if n < 96:
            sb = n % 2
            for kt in range(2):
                for ks in range(4):
                    qk.append(mfma(S(sb, kt), "v", KF(j % 2, kt, ks), "a", Q(pp, ks), "a", None if ks == 0 else S(sb, kt)))
        if n >= 2:
            jj, qt = divmod(n-2, 6)
            pb = (n-2) % 2
            for dt in range(8):
                pv.append(mfma(acc(dt, qt), "v", VF(jj % 2, dt), "a", P(pb), "v", None if jj == 0 else acc(dt, qt)))
        mf = []
        for k in range(8):
            if qk: mf.append(qk[k])
            if pv: mf.append(pv[k])
        if n >= 2 and msum:
            mf.append(mfma(LA(qt), "a", ONES, "a", P(pb), "v", None if jj == 0 else LA(qt)))
        nm = len(mf)
        sc = nm/17.0 if msum else nm/16.0
        def G(x): return min(nm-1, int(x*sc))
        chains = []
        if 1 <= n <= 96:
            jj2, qt2 = divmod(n-1, 6)
            sb = (n-1) % 2; pb2 = (n-1) % 2
            e = [S(sb, 0)+r for r in range(4)] + [S(sb, 1)+r for r in range(4)]
            chains.append([([ins(f"v_exp_f32 v{e[k]}, v{e[k]}")], G(2*k), G(2*k)) for k in range(8)])
            cv = []
            for k in range(8):
                if not msum: cv.append(([ins(f"v_add_f32 v{LS+qt2}, v{LS+qt2}, v{e[k]}")], G(2*k+1), G(2*k+1)))
                if k % 2 == 1:
                    cv.append(([ins(f"v_cvt_pk_bf16_f32 v{P(pb2)+k//2}, v{e[k-1]}, v{e[k]}")], G(2*k+1), G(2*k+1)))
            chains.append(cv)
        if n >= 2:
            jb, q = divmod(n-2, 6)
            if jb + 1 <= 15:
                par = (jb+1) % 2
                rds = []
                if q in (0, 1): rds = [self.rd_k(par, q, ks) for ks in range(4)]
                else:
                    for dt in range((q-2)*2, (q-2)*2+2): rds += [self.rd_v(par, dt, 0), self.rd_v(par, dt, 1)]
                gp = [1, 5, 9, 13] if q != 5 else [1, 5, 9, 10]
                chains.append([([x], G(gp[k]), G(gp[k])) for k, x in enumerate(rds)])
        if dma:
            nd = sum(1 for x in dma if x.kind == "dma")
            slots = {0: [], 1: [16], 2: [11, 16], 4: [3, 7, 11, 16], 8: [2, 4, 6, 8, 10, 12, 14, 16]}.get(nd) or [int(3 + (16-3)*k/(nd-1)) for k in range(nd)]
            ch = []; seen = 0
            for x in dma:
                if x.kind == "dma":
                    g = G(slots[seen]); seen += 1
                    grp = [x] if x.meta.get("credit") is None else [ins(f"s_waitcnt vmcnt({x.meta['credit']})"), x]
                    ch.append((grp, g, g))
                else:
                    ch.append(([x], 0, nm-1))
            for k in range(len(ch)-2, -1, -1):
                if ch[k][0][-1].kind != "dma": ch[k] = (ch[k][0], 0, max(0, ch[k+1][2] - (1 if ch[k+1][0][-1].kind == "dma" else 0)))
            chains.append(ch)
        if early: chains.append([([x], 0, nm-1) for x in early])
        if extra: chains.append([(g, (k*nm)//len(extra), nm-1) for k, g in enumerate(extra)])
        self.run(mf, chains, pre)

    def body(self, j, dmaG, tog=(), nper=6, extra=(), extra2=()):
        bar = []
        if j + 1 <= 15: bar.append(wait_tag(("kv", j+1)))
        if extra: bar.append(wait_tag(("wo",)))
        bar += [ins("s_waitcnt lgkmcnt(0)"), ins("s_barrier")]
        if self.o.get("baracct"):
            b0 = [ins("s_memtime s[92:93]"), ins("s_waitcnt lgkmcnt(0)")]
            b1 = [ins("s_memtime s[94:95]"), ins("s_waitcnt lgkmcnt(0)")]
            b2 = [ins("s_memtime s[96:97]"), ins("s_waitcnt lgkmcnt(0)"), ins("s_sub_u32 s98, s94, s92"), ins("s_add_u32 s100, s100, s98"),
                  ins("s_sub_u32 s98, s96, s94"), ins("s_add_u32 s101, s101, s98")]
            bar = b0 + bar[:1] + b1 + bar[1:] + b2
        tk = [x for x in tog if any(f"v{KA+z}," in x.txt for z in range(4))]
        tv = [x for x in tog if x not in tk]
        flat = [x for g in dmaG for x in g]
        cr = self.o.get("credit")
        if cr is not None and j <= 12:
            k = 0
            for x in flat:
                if x.kind == "dma":
                    x.meta["credit"] = cr[k % len(cr)] if isinstance(cr, list) else cr
                    k += 1
        nd = sum(1 for x in flat if x.kind == "dma")
        if nd == 8: cnt = self.o.get("dmacnt", [1, 1, 2, 1, 1, 2])
        else: cnt = [nd//6 + (1 if q < nd % 6 else 0) for q in range(6)]
        per = [[] for _ in range(6)]
        q = 0; seen = 0
        for x in flat:
            while q < 5 and seen >= cnt[q]: q += 1; seen = 0
            per[q].append(x)
            if x.kind == "dma": seen += 1
        for q in range(6):
            e = tv[:4] if q == 0 else (tv[4:] if q == 1 else [])
            ex = []
            if extra or extra2:
                xs = list(extra) + list(extra2)
                n = len(xs); ex = xs[q*n//6:(q+1)*n//6]
            self.period(6*j + 2 + q, dma=per[q], pre=(bar + tk) if q == 0 else (), early=e, extra=ex)

    def tog(self):
        return [ins(f"v_xor_b32 v{KA+x}, {PHI}, v{KA+x}") for x in range(4)] + [ins(f"v_xor_b32 v{VA+x}, {PHI}, v{VA+x}") for x in range(8)]
    def attention_shared(self):
        p = self.p
        look = self.o.get("look", 3)
        if look == 4:
            t3 = self.kv_pieces(3, 0, 8)
            self.period(0, dma=[x for g in t3[:4] for x in g]); self.period(1, dma=[x for g in t3[4:] for x in g])
            self.body(0, self.dma_kv_abs(("kv", 4), 0))
        else:
            self.period(0); self.period(1)
            self.body(0, self.dma_kv_abs(("kv", 3), 3))
        p(f"s_mov_b32 s{sM}, s{sKVl}")
        split = self.o.get("atsplit")
        ntrip = 6 if (look == 3 and self.o.get("trip6", False)) else 5
        runs = [("at", 0, ntrip, self.o.get("credit"))] if not split else [("at", 0, split[0], split[1]), ("au", split[0], ntrip, split[2])]
        saved = self.o.get("credit")
        for name, k0, k1, cr in runs:
            self.o["credit"] = cr
            p(f"s_mov_b32 s{sCnt}, {k1 - k0}")
            for k in range(k0, k1):
                j = 1 + 2*k
                p.raw(f"@@LB {name} {k - k0}")
                self.stamp(True)
                if look == 4:
                    g1 = self.dma_kv(("kv", j+4), f"s_add_u32 m0, s{sM}, 8192", f"s_add_u32 m0, s{sM}, 12288")
                    self.body(j, g1, tog=self.tog())
                    g2 = self.dma_kv(("kv", j+5), f"s_add_u32 m0, s{sM}, 0", f"s_add_u32 m0, s{sM}, 4096")
                    self.body(j+1, [[ins(f"s_xor_b32 s{sM}, s{sM}, {PHI}")]] + g2)
                else:
                    g1 = self.dma_kv(("kv", j+3), f"s_add_u32 m0, s{sM}, 0", f"s_add_u32 m0, s{sM}, 4096")
                    self.body(j, g1, tog=self.tog())
                    g2 = self.dma_kv(("kv", j+4), f"s_add_u32 m0, s{sM}, 8192", f"s_add_u32 m0, s{sM}, 12288")
                    g2[-1] = g2[-1] + [ins(f"s_xor_b32 s{sM}, s{sM}, {PHI}")]
                    self.body(j+1, g2)
                p(f"s_sub_u32 s{sCnt}, s{sCnt}, 1"); p(f"s_cmp_lg_u32 s{sCnt}, 0"); p(f"s_cbranch_scc1 L_{name}")
                p.raw(f"@@LE {name} {k - k0}")
        self.o["credit"] = saved if not split else split[2]
        if look == 4:
            self.body(11, self.dma_kv_abs(("kv", 15), 3), tog=self.tog())
            self.body(12, [])
        elif ntrip == 5:
            self.body(11, self.dma_kv_abs(("kv", 14), 2), tog=self.tog())
            self.body(12, self.dma_kv_abs(("kv", 15), 3))
        self.o["credit"] = saved
    def attention_tail(self, last):
        fuse = self.o.get("fuse")
        prep_here = ((not last) if fuse else last) and not self.o.get("woearly") and not self.o.get("womid") and not self.o.get("rawwo")
        self.stamp(True)
        if prep_here:
            W = self.wo_prep_groups(); h = 9 + 4*3
            self.body(13, self.dma_wo_last(), tog=self.tog())
            self.body(14, [], extra=W[:h])
            self.body(15, (self.w_tile(0, 1) + self.x_tile(0) + ([] if self.o.get("w1late") else self.w_tile(1, 1))) if not last else [], tog=self.tog(), extra2=W[h:])
        elif not last:
            self.body(13, self.warm_wo() if self.o.get("rawwo") else [], tog=self.tog())
            self.body(14, [])
            self.body(15, self.w_tile(0, 1) + self.x_tile(0) + ([] if self.o.get("w1late") else self.w_tile(1, 1)), tog=self.tog())
        else:
            self.body(13, [], tog=self.tog(), extra2=[[x] for x in self.k3_setup()])
            self.body(14, [], extra2=[self.poll_issue(f"v_mov_b32 VDST, s{sC1}")] + ([[x] for x in self.k3_setup2()] if self.o.get("rawwo") and self.o.get("apre", True) else []))
            if self.o.get("rawwo") and self.o.get("apre", True):
                A3 = self.k3_loads(0, 0, 0, "A") + self.k3_loads(1, 1, 1, "A") + self.k3_loads(2, 2, 2, "A")
                self.body(15, A3, tog=self.tog())
            else:
                self.body(15, [], tog=self.tog())
            self.poll_check(8 if self.o.get('rawwo') else 128)
    def wo_prep_groups(self, stage=False):
        setup = [ins("v_and_b32 v33, 15, v0"), ins("v_lshrrev_b32 v34, 4, v0"), ins("v_lshrrev_b32 v35, 2, v33"), ins("v_and_b32 v33, 3, v33"),
                 ins("v_lshl_add_u32 v32, v34, 2, v35"), ins("v_lshlrev_b32 v32, 10, v32"), ins("v_lshl_add_u32 v32, v33, 4, v32"),
                 ins(f"s_lshl_b32 s88, s{sW}, 8"), ins("v_add_u32 v32, s88, v32")]
        G = [[x] for x in setup]
        mod = self.o['last_store_mod']
        for nt in range(8):
            u, par = nt >> 1, nt & 1
            d = 252 if not stage else OS(nt + (0 if stage is True else stage))
            G.append([ins(f"ds_read_b64_tr_b16 a[{d}:{d+1}], v32 offset:{64*u + 8*par}")])
            G.append([ins(f"ds_read_b64_tr_b16 a[{d+2}:{d+3}], v32 offset:{16384 + 64*u + 8*par}")])
            if stage: continue
            g = []
            if nt % 4 == 0: g.append(ins(f"s_add_u32 s{sT2}, s{sWTo}, {nt*1024}"))
            g.append(ins(f"buffer_store_dwordx4 a[{d}:{d+3}], v{VST}, s[{SWT}:{SWT+3}], s{sT2} offen offset:{(nt % 4)*1024} {mod}"))
            G.append(g)
        return G
    def warm_wo(self):
        G = []
        for half in range(2):
            g = [ins(f"s_add_u32 s{sT1}, s{sWOo}, {half*4096}")]
            for n in range(4):
                i = ins(f"buffer_load_dwordx4 a[252:255], v{VST}, s[{SWO}:{SWO+3}], s{sT1} offen offset:{1024*n}", tag=("warm",))
                i.kind = "dma"; i.wr = set(); i.rd.discard("m0")
                g.append(i); G.append(g); g = []
        return G
    def dma_wo_last(self):
        G = []
        for half in range(2):
            g = [ins(f"s_add_u32 s{sT1}, s{sWOo}, {half*4096}"), ins(f"s_lshl_b32 s{sWoM}, s{sW}, 13"), ins(f"s_add_u32 m0, s{sWoM}, {half*4096}")]
            for n in range(4):
                g.append(ins(f"buffer_load_dwordx4 v{VST}, s[{SWO}:{SWO+3}], s{sT1} offen offset:{1024*n} nt lds", tag=("wo",)))
                G.append(g); g = []
        return G

    FLAG = 131072
    def softmax_check(self, item):
        p = self.p
        t = S(0, 0)
        for qt in range(6): p(f"v_accvgpr_read_b32 v{t+qt}, a{LA(qt)}")
        p(f"v_max3_f32 v{t+6}, v{t}, v{t+1}, v{t+2}"); p(f"v_min3_f32 v{t+7}, v{t}, v{t+1}, v{t+2}")
        p(f"v_max3_f32 v{t+6}, v{t+6}, v{t+3}, v{t+4}"); p(f"v_min3_f32 v{t+7}, v{t+7}, v{t+3}, v{t+4}")
        p(f"v_max_f32 v{t+6}, v{t+6}, v{t+5}"); p(f"v_min_f32 v{t+7}, v{t+7}, v{t+5}")
        p(f"v_cmp_nge_f32 vcc, {f32(2.0**20)}, v{t+6}")
        p("s_mov_b64 s[88:89], vcc")
        p(f"v_cmp_nle_f32 vcc, {f32(2.0**-12)}, v{t+7}")
        p("s_or_b64 s[88:89], s[88:89], vcc")
        p("s_cmp_lg_u64 s[88:89], 0"); p("s_cselect_b32 s88, 1, 0")
        p(f"v_mov_b32 v{t}, s88"); p(f"s_lshl_b32 s89, s{sW}, 2"); p(f"s_add_u32 s89, s89, {self.FLAG}"); p(f"v_mov_b32 v{t+1}, s89")
        p(f"ds_write_b32 v{t+1}, v{t}")
        p("s_waitcnt lgkmcnt(0)"); p("s_barrier")
        p(f"v_mov_b32 v{t+1}, {self.FLAG}")
        p(f"ds_read_b128 v[{t+4}:{t+7}], v{t+1}")
        p(f"v_or_b32 v{t+4}, v{t+4}, v{t+5}"); p(f"v_or_b32 v{t+6}, v{t+6}, v{t+7}"); p(f"v_or_b32 v{t+4}, v{t+4}, v{t+6}")
        p(f"v_readfirstlane_b32 s88, v{t+4}")
        p("s_cmp_lg_u32 s88, 0")
        p("s_cbranch_scc1 L_FB")
        p.raw(f"L_OE{item}:")

    def fallback(self):
        q = K2(self.o); q.phase = "fb"; p = q.p
        M = LS
        def load_tile():
            p(f"s_mov_b32 s{sT2}, s{sTc}")
            q.emit_groups(q.dma_kv_abs(("fb",), 0))
            p("s_waitcnt vmcnt(0)"); p("s_barrier")
        def qk(qt):
            for kt in range(2):
                for ks in range(4):
                    p.add(mfma(S(0, kt), "v", KF(0, kt, ks), "a", Q(qt, ks), "a", None if ks == 0 else S(0, kt)))
        p.raw("L_FB:")
        p("s_waitcnt vmcnt(0) lgkmcnt(0)"); p("s_barrier")
        p(f"s_mov_b32 s{SKV+2}, {KV_BYTES}")
        for qt in range(6): p(f"v_mov_b32 v{M+qt}, 0xff800000")
        p(f"s_lshl_b32 s{sTc}, s{sItem}, 17"); p(f"s_mov_b32 s{sCnt}, 16")
        p.raw("L_FB1:")
        load_tile()
        for kt in range(2):
            for ks in range(4): p.add(q.rd_k(0, kt, ks))
        for qt in range(6):
            qk(qt)
            e = [S(0, 0)+r for r in range(4)] + [S(0, 1)+r for r in range(4)]
            for k in range(0, 8, 2): p(f"v_max3_f32 v{M+qt}, v{e[k]}, v{e[k+1]}, v{M+qt}")
        p("s_waitcnt lgkmcnt(0)"); p("s_barrier")
        p(f"s_sub_u32 s{sCnt}, s{sCnt}, 1"); p(f"s_cmp_lg_u32 s{sCnt}, 0"); p("s_cbranch_scc1 L_FB1")
        t = S(1, 0)
        for qt in range(6):
            m = M + qt
            p(f"v_mov_b32 v{t}, v{m}"); p(f"v_permlane32_swap_b32 v{t}, v{m}"); p(f"v_max_f32 v{m}, v{m}, v{t}")
            p(f"v_mov_b32 v{t}, v{m}"); p(f"v_permlane16_swap_b32 v{t}, v{m}"); p(f"v_max_f32 v{m}, v{m}, v{t}")
        for r in range(192): p(f"v_mov_b32 v{ACC+r}, 0")
        p(f"v_mov_b32 v{t}, 0")
        for r in range(24): p(f"v_accvgpr_write_b32 a{LA(0)+r}, v{t}")
        p(f"s_lshl_b32 s{sTc}, s{sItem}, 17"); p(f"s_mov_b32 s{sCnt}, 16")
        p("s_nop 7")
        p.raw("L_FB2:")
        load_tile()
        for kt in range(2):
            for ks in range(4): p.add(q.rd_k(0, kt, ks))
        for dt in range(8):
            p.add(q.rd_v(0, dt, 0)); p.add(q.rd_v(0, dt, 1))
        for qt in range(6):
            qk(qt)
            e = [S(0, 0)+r for r in range(4)] + [S(0, 1)+r for r in range(4)]
            for k in range(8): p(f"v_sub_f32 v{e[k]}, v{e[k]}, v{M+qt}")
            for k in range(8): p(f"v_exp_f32 v{e[k]}, v{e[k]}")
            for k in range(0, 8, 2): p(f"v_cvt_pk_bf16_f32 v{P(0)+k//2}, v{e[k]}, v{e[k+1]}")
            for dt in range(8): p.add(mfma(acc(dt, qt), "v", VF(0, dt), "a", P(0), "v", acc(dt, qt)))
            p.add(mfma(LA(qt), "a", ONES, "a", P(0), "v", LA(qt)))
        p("s_waitcnt lgkmcnt(0)"); p("s_nop 7"); p("s_nop 7"); p("s_barrier")
        p(f"s_sub_u32 s{sCnt}, s{sCnt}, 1"); p(f"s_cmp_lg_u32 s{sCnt}, 0"); p("s_cbranch_scc1 L_FB2")
        p("s_nop 7"); p("s_nop 7")
        p(f"s_cmp_eq_u32 s{sItem}, 0"); p("s_cbranch_scc1 L_OE0")
        if self.o.get("fuse"):
            for x in self.k3_setup(): p.add(x)
            if self.o.get("rawwo") and self.o.get("apre", True):
                for x in self.k3_setup2(): p.add(x)
                for g in self.k3_loads(0, 0, 0, "A") + self.k3_loads(1, 1, 1, "A") + self.k3_loads(2, 2, 2, "A"):
                    for x in g: p.add(x)
        p("s_branch L_OE1")
        L, st = finalize(p.L)
        return L

    def signal(self, offreg_txt, uid=None):
        uid = uid or self.uid()
        L = [ins(f"s_cmp_lg_u32 s{sW}, 0"), ins(f"s_cbranch_scc1 L_sig{uid}"),
             ins(f"v_mov_b32 v{VPOLL+1}, 1"), ins(offreg_txt), ins("s_mov_b64 exec, 1"),
             ins(f"buffer_atomic_add v{VPOLL+1}, v{VPOLL+2}, s[{SFL}:{SFL+3}], 0 offen sc1"),
             ins("s_mov_b64 exec, -1")]
        for x in L: x.meta["alt"] = True
        L.append(I(f"L_sig{uid}:", "label"))
        return L
    def uid(self):
        self._uid = getattr(self, "_uid", 0) + 1
        return self._uid
    def poll_issue(self, off_txt):
        return [ins(off_txt.replace("VDST", f"v{VPOLL+3}")), ins(f"buffer_load_dword v{VPOLL}, v{VPOLL+3}, s[{SFL}:{SFL+3}], 0 offen sc1")]
    def poll_check(self, target):
        p = self.p
        uid = self.uid()
        p(f"v_readfirstlane_b32 s88, v{VPOLL}")
        p(f"s_cmp_ge_u32 s88, {target}"); p(f"s_cbranch_scc1 L_ok{uid}")
        L = [f"s_mov_b32 s89, 0x40000", f"L_spin{uid}:", "s_sleep 2",
             f"buffer_load_dword v{VPOLL}, v{VPOLL+3}, s[{SFL}:{SFL+3}], 0 offen sc1", "s_waitcnt vmcnt(0)",
             f"v_readfirstlane_b32 s88, v{VPOLL}", "s_nop 3", "s_sub_u32 s89, s89, 1", "s_cmp_eq_u32 s89, 0", f"s_cbranch_scc1 L_ok{uid}",
             f"s_cmp_lt_u32 s88, {target}", f"s_cbranch_scc1 L_spin{uid}"]
        for t in L: p.add(I(t, "label", verbatim=True))
        p.raw(f"L_ok{uid}:")

    def k3_setup(self):
        L = []
        A = lambda t: L.append(ins(t))
        A(f"s_and_b32 s88, s{sHG}, 3"); A(f"s_lshr_b32 s89, s{sHG}, 2")
        A(f"s_lshl_b32 s90, s{sP}, 2"); A("s_add_u32 s90, s90, s88"); A("s_lshl_b32 s90, s90, 7"); A(f"s_lshl_b32 s91, s{sW}, 5"); A("s_add_u32 s90, s90, s91"); A("s_lshl_b32 s90, s90, 13")
        rot = self.o.get("k3rot", True)
        if rot: A(f"s_and_b32 s{kRho}, s{sB}, 3"); A(f"s_add_u32 s{kRho}, s{kRho}, s{sW}")
        else: A(f"s_mov_b32 s{kRho}, s{sW}")
        for pr in range(4):
            A(f"s_add_u32 s91, s{kRho}, {pr}"); A("s_and_b32 s91, s91, 3"); A("s_lshl_b32 s91, s91, 11"); A(f"s_add_u32 s{kA+pr}, s90, s91")
        if rot: A("s_lshr_b32 s91, s88, 1"); A(f"s_add_u32 s{kSig}, s88, s91")
        else: A(f"s_mov_b32 s{kSig}, 0")
        for qt in range(6):
            A(f"s_add_u32 s91, s{kSig}, {qt}"); A("s_cmp_ge_u32 s91, 6"); A("s_cselect_b32 s98, 6, 0"); A("s_sub_u32 s91, s91, s98"); A("s_lshl_b32 s91, s91, 10")
            A(f"v_add_u32 v{VBQ+qt}, s91, v{VST}")
        A(f"s_lshl_b32 s90, s{sP}, 4"); A(f"s_add_u32 s90, s90, s{sB}"); A("s_lshl_b32 s90, s90, 1"); A("s_add_u32 s90, s90, s89"); A("s_lshl_b32 s90, s90, 7")
        A(f"s_lshl_b32 s91, s{sW}, 5"); A("s_add_u32 s90, s90, s91"); A(f"s_mul_i32 s{kBo}, s90, 6144")
        A(f"s_mul_i32 s90, s{sB}, 192"); A("s_mul_i32 s91, s89, 96"); A("s_add_u32 s90, s90, s91"); A("s_lshl_b32 s90, s90, 11")
        A(f"s_lshl_b32 s91, s{sP}, 10"); A("s_add_u32 s90, s90, s91"); A("s_lshl_b32 s91, s88, 8"); A("s_add_u32 s90, s90, s91")
        A(f"s_and_b32 s91, s{kRho}, 3"); A("s_lshl_b32 s91, s91, 6"); A(f"s_add_u32 s{kOut}, s90, s91")
        A(f"s_mov_b32 s{SX}, s68"); A(f"s_mov_b32 s{SX+1}, s69"); A(f"s_mov_b32 s{SX+2}, {OUT_BYTES}"); A(f"s_mov_b32 s{SX+3}, 0x00020000")
        A(f"v_add_u32 v{VB4}, 4096, v{VST}")
        if self.o.get("rawwo"):
            A(f"s_lshl_b32 s90, s{sW}, 20"); A("s_lshl_b32 s91, s88, 8"); A(f"s_add_u32 s{kA}, s90, s91")
            A(f"s_lshl_b32 s{kA+1}, s{sW}, 15")
        return L
    def k3_setup2(self):
        L = []
        A = lambda t: L.append(ins(t))
        A("v_and_b32 v32, 15, v0"); A("v_lshrrev_b32 v33, 4, v0"); A("v_lshlrev_b32 v35, 2, v33"); A("v_xor_b32 v35, v35, v32"); A("v_lshlrev_b32 v35, 4, v35")
        A(f"v_lshl_add_u32 v{VAD2[0]}, v33, 10, v35")
        for n in range(1, 4): A(f"v_add_u32 v{VAD2[n]}, {n*3072}, v{VAD2[0]}")
        A("v_lshrrev_b32 v35, 2, v32"); A("v_and_b32 v32, 3, v32")
        A("v_lshl_add_u32 v33, v33, 2, v35"); A("v_lshlrev_b32 v33, 8, v33"); A(f"v_add_u32 v33, s{kA+1}, v33")
        A("v_lshlrev_b32 v35, 2, v35")
        for pr in range(4):
            A(f"s_add_u32 s91, s{kRho}, {pr}"); A("s_and_b32 s91, s91, 3"); A("s_lshl_b32 s91, s91, 2")
            A(f"v_add_u32 v{VAR2+pr}, s91, v32"); A(f"v_xor_b32 v{VAR2+pr}, v{VAR2+pr}, v35"); A(f"v_lshl_add_u32 v{VAR2+pr}, v{VAR2+pr}, 4, v33")
        return L
    def k3_loads(self, b, o, j=None, part=None):
        m = self.o.get("k3_ld", "sc1")
        raw = self.o.get("rawwo")
        bf = BF2 if raw else BF
        G = []
        for qt in range(6):
            g = [ins(f"s_add_u32 s{kT0}, s{kBo}, {o*6144}")] if qt == 0 else []
            g.append(ins(f"buffer_load_dwordx4 {rng('a', bf(b, qt), 4)}, v{VBQ+qt}, s[{SO}:{SO+3}], s{kT0} offen {m}"))
            G.append(g)
        if raw:
            for half in range(2):
                g = [ins(f"s_add_u32 s{kT1}, s{kA}, {o*32768 + half*16384}"), ins(f"s_add_u32 m0, s{kA+1}, {b*8192 + half*4096}")]
                for n in range(4):
                    g.append(ins(f"buffer_load_dwordx4 v{VAD2[n]}, s[{SWO}:{SWO+3}], s{kT1} offen offset:{1024*n} lds", tag=("A", j)))
                    G.append(g); g = []
            if part == "A": return G[6:]
            if part == "B": return G[:6]
            if self.o.get("afirst"): G = G[6:] + G[:6]
            return G
        for pr in range(4):
            t = kT1 if pr % 2 == 0 else kT0
            G.append([ins(f"s_add_u32 s{t}, s{kA+pr}, {o*8192}"),
                      ins(f"buffer_load_dwordx4 {rng('a', AF(b, 2*pr), 4)}, v{VST}, s[{SWT}:{SWT+3}], s{t} offen {m}")])
            G.append([ins(f"buffer_load_dwordx4 {rng('a', AF(b, 2*pr+1), 4)}, v{VST}, s[{SWT}:{SWT+3}], s{t} offen offset:1024 {m}")])
        return G
    def k3_tr(self, t):
        L = []
        for nu in range(8):
            pr, par = nu >> 1, nu & 1
            d = AF2(t % 2, nu)
            L.append(ins(f"ds_read_b64_tr_b16 a[{d}:{d+1}], v{VAR2+pr} offset:{(t % 4)*8192 + 8*par}"))
            L.append(ins(f"ds_read_b64_tr_b16 a[{d+2}:{d+3}], v{VAR2+pr} offset:{(t % 4)*8192 + 4096 + 8*par}"))
        return L
    def k3_adv(self, steps):
        if self.o.get("rawwo"):
            return [ins(f"s_add_u32 s{kA}, s{kA}, {(steps*32768) & 0xffffffff}"), ins(f"s_add_u32 s{kBo}, s{kBo}, {(steps*6144) & 0xffffffff}")]
        return [ins(f"s_add_u32 s{kA+pr}, s{kA+pr}, {(steps*8192) & 0xffffffff}") for pr in range(4)] + [ins(f"s_add_u32 s{kBo}, s{kBo}, {(steps*6144) & 0xffffffff}")]
    def k3_step(self, t, G, extra=(), dst=None, order=None, post=None):
        p = self.p
        dst = dst if dst is not None else []
        raw = self.o.get("rawwo")
        b = t % 4
        af = (lambda nu: AF2(t % 2, nu)) if raw else (lambda nu: AF(b, nu))
        bf = (lambda qt: BF2(b, qt)) if raw else (lambda qt: BF(b, qt))
        tr = []
        if raw and t + 1 <= 31:
            p.wait_tag(("A", t+1)); tr = self.k3_tr(t+1)
        n = 0
        extra = list(extra)
        for nu in (order or range(8)):
            for qt in range(6):
                p.add(mfma(oacc(nu, qt), "v", af(nu), "a", bf(qt), "a", None if t == 0 else oacc(nu, qt)))
                if n % 3 == 1 and n//3 < len(G):
                    for x in G[n//3]: p.add(x)
                elif tr and n % 3 != 1 and n >= 2: p.add(tr.pop(0))
                if n == 44:
                    for x in extra: p.add(x)
                if n in (8, 17, 26, 35, 43) and dst:
                    for x in dst.pop(0): p.add(x)
                if post: post(nu, qt)
                n += 1
        assert not tr
    def k3_main(self):
        p = self.p
        D = self.deferred
        if self.o.get("rawwo"):
            p.wait_tag(("A", 0))
            for x in self.k3_tr(0): p.add(x)
        if D:
            assert len(D) <= 24
            self.k3_step(0, self.k3_loads(3, 3, 3), extra=self.k3_adv(8), dst=D)
            for t in range(1, 9):
                i = (t-1) % 4
                self.k3_step(t, self.k3_loads((t+3) % 4, i, t+3), extra=self.k3_adv(8) if i == 3 else [], dst=D)
                if t == self.o.get("sig2", 7 if self.o.get("rawwo") else 6):
                    p.wait_tag(("o",)); p("s_barrier")
                    for x in self.signal(f"v_mov_b32 v{VPOLL+2}, s{sC2o}", uid="g2"): p.add(x)
            assert not D
            for i in range(4):
                t = 9 + i
                self.k3_step(t, self.k3_loads((t+3) % 4, i, t+3), extra=self.k3_adv(8) if i == 3 else [])
                if i == 2:
                    for x in self.poll_issue(f"v_mov_b32 VDST, s{sC2o}"): p.add(x)
        else:
            self.k3_step(0, self.k3_loads(3, 3, 3), extra=self.k3_adv(8))
            p(f"s_mov_b32 s{kCnt}, 3")
            for k in range(3):
                p.raw(f"@@LB k3a {k}")
                for i in range(4):
                    t = 1 + 4*k + i
                    ex = self.k3_adv(8) if i == 3 else []
                    self.k3_step(t, self.k3_loads((t+3) % 4, i, t+3), extra=ex)
                    if i == 1:
                        uid = "k3s"
                        p(f"s_cmp_lg_u32 s{kCnt}, 3"); p(f"s_cbranch_scc1 L_{uid}")
                        p.wait_tag(("o",)); p("s_barrier")
                        for x in self.signal(f"v_mov_b32 v{VPOLL+2}, s{sC2o}", uid="g2"): p.add(x)
                        p.raw(f"L_{uid}:")
                    if i == 2:
                        for x in self.poll_issue(f"v_mov_b32 VDST, s{sC2o}"): p.add(x)
                p(f"s_sub_u32 s{kCnt}, s{kCnt}, 1"); p(f"s_cmp_lg_u32 s{kCnt}, 0"); p("s_cbranch_scc1 L_k3a")
                p.raw(f"@@LE k3a {k}")
        self.stamp()
        for x in self.k3_adv(4 - 32): p.add(x)
        self.poll_check(16 if self.o.get('rawwo') else 8)
        for i in range(4):
            t = 13 + i
            self.k3_step(t, self.k3_loads((t+3) % 4, i, t+3), extra=self.k3_adv(8) if i == 3 else [])
        p(f"s_mov_b32 s{kCnt}, 3")
        for k in range(3):
            p.raw(f"@@LB k3b {k}")
            for i in range(4):
                t = 17 + 4*k + i
                self.k3_step(t, self.k3_loads((t+3) % 4, i, t+3), extra=self.k3_adv(8) if i == 3 else [])
            p(f"s_sub_u32 s{kCnt}, s{kCnt}, 1"); p(f"s_cmp_lg_u32 s{kCnt}, 0"); p("s_cbranch_scc1 L_k3b")
            p.raw(f"@@LE k3b {k}")
        for t in (29, 30): self.k3_step(t, [])
        if self.o.get("redovl", True):
            for pr, v in ((1, 7), (2, 2), (3, 3)):
                p(f"s_add_u32 s88, s{sW}, {pr}"); p("s_and_b32 s88, s88, 3"); p("s_mul_i32 s88, s88, 36864"); p(f"s_add_u32 s88, s88, {(pr-1)*12288}")
                p(f"v_add_u32 v{v}, s88, v{VST}")
            if self.o.get("rawwo"):
                p("s_waitcnt lgkmcnt(0)"); p("s_barrier")
            pend = []
            def post(nu, qt):
                if pend and qt in (1, 3, 5): p.add(pend.pop(0))
                if qt == 5 and nu >= 2:
                    pr, par = nu >> 1, nu & 1
                    v = {1: 7, 2: 2, 3: 3}[pr]
                    pend.extend(ins(f"ds_write_b128 v{v}, v[{oacc(nu, q)}:{oacc(nu, q)+3}] offset:{(par*6 + q)*1024}") for q in range(6))
            self.k3_step(31, [], order=[2, 3, 4, 5, 6, 7, 0, 1], post=post)
            self.red_pending = pend
        else:
            assert not self.o.get("rawwo")
            self.k3_step(31, [])
        self.stamp()
        if self.o.get("redovl", True):
            for x in self.red_pending: p.add(x)
            p(f"s_mul_i32 s88, s{sW}, 36864"); p(f"v_add_u32 v8, s88, v{VST}")
        else:
            for pr, v in ((1, 7), (2, 2), (3, 3)):
                p(f"s_add_u32 s88, s{sW}, {pr}"); p("s_and_b32 s88, s88, 3"); p("s_mul_i32 s88, s88, 36864"); p(f"s_add_u32 s88, s88, {(pr-1)*12288}")
                p(f"v_add_u32 v{v}, s88, v{VST}")
            p(f"s_mul_i32 s88, s{sW}, 36864"); p(f"v_add_u32 v8, s88, v{VST}")
            for pr, v in ((1, 7), (2, 2), (3, 3)):
                for par in range(2):
                    for qt in range(6):
                        a = oacc(2*pr + par, qt)
                        p(f"ds_write_b128 v{v}, v[{a}:{a+3}] offset:{(par*6 + qt)*1024}")
        p("s_waitcnt lgkmcnt(0)")
        p("s_barrier")
        for sl in range(3):
            for par in range(2):
                for qt in range(6):
                    a = oacc(2*(sl+1) + par, qt)
                    p(f"ds_read_b128 v[{a}:{a+3}], v8 offset:{sl*12288 + (par*6 + qt)*1024}")
        p("v_and_b32 v12, 15, v0"); p("v_lshrrev_b32 v13, 4, v0"); p("v_lshlrev_b32 v12, 11, v12"); p("v_lshl_add_u32 v9, v13, 4, v12")
        for qt in range(6):
            for par in range(2):
                a = oacc(par, qt)
                for sl in range(3):
                    s_ = oacc(2*(sl+1) + par, qt)
                    for r in (0, 2): p(f"v_pk_add_f32 v[{a+r}:{a+r+1}], v[{a+r}:{a+r+1}], v[{s_+r}:{s_+r+1}]")
            a0, a1 = oacc(0, qt), oacc(1, qt)
            t0 = 16 + (qt % 4)*4
            p(f"v_cvt_pk_bf16_f32 v{t0}, v{a0}, v{a0+1}"); p(f"v_cvt_pk_bf16_f32 v{t0+1}, v{a0+2}, v{a0+3}")
            p(f"v_cvt_pk_bf16_f32 v{t0+2}, v{a1}, v{a1+1}"); p(f"v_cvt_pk_bf16_f32 v{t0+3}, v{a1+2}, v{a1+3}")
            p(f"s_add_u32 s88, s{kSig}, {qt}"); p("s_cmp_ge_u32 s88, 6"); p("s_cselect_b32 s89, 6, 0"); p("s_sub_u32 s88, s88, s89"); p("s_lshl_b32 s88, s88, 15")
            p(f"s_add_u32 s{kT0}, s{kOut}, s88")
            p(f"buffer_store_dwordx4 v[{t0}:{t0+3}], v9, s[{SX}:{SX+3}], s{kT0} offen {self.o.get('out_mod', '')}")

    def o_epilogue(self, last):
        p = self.p
        fuse_last = last and self.o.get("fuse")
        pre = []
        raw = self.o.get("rawwo")
        if fuse_last:
            apre = raw and self.o.get("apre", True)
            if raw and not apre:
                for x in self.k3_setup2(): p.add(x)
            part = "B" if apre else None
            pre = self.k3_loads(0, 0, 0, part) + self.k3_loads(1, 1, 1, part) + self.k3_loads(2, 2, 2, part)
        defer = fuse_last and self.o.get("defer", True)
        self.deferred = []
        for qt in range(6): p(f"v_accvgpr_read_b32 v{LS+qt}, a{LA(qt)}")
        for qt in range(6): p(f"v_rcp_f32 v{LS+qt}, v{LS+qt}")
        vstage = [8, 12, 16, 20, 24, 28, 38, 42, 46, 50]
        ndir = 6
        nag = 8; abase = 224
        if fuse_last and raw:
            vstage = vstage[:8]; ndir = self.o.get("ndir", 4); nag = 24 - ndir; abase = 160
        for qt in range(6):
            for ks in range(4):
                m = qt*4 + ks
                a0, a1 = acc(2*ks, qt), acc(2*ks+1, qt)
                l = LS + qt
                if self.o.get("pk", True):
                    lp = l & ~1; sel = "op_sel_hi:[1,0]" if l % 2 == 0 else "op_sel:[0,1] op_sel_hi:[1,1]"
                    for a in (a0, a0+2, a1, a1+2): p(f"v_pk_mul_f32 v[{a}:{a+1}], v[{a}:{a+1}], v[{lp}:{lp+1}] {sel}")
                else:
                    for r in range(4): p(f"v_mul_f32 v{a0+r}, v{l}, v{a0+r}")
                    for r in range(4): p(f"v_mul_f32 v{a1+r}, v{l}, v{a1+r}")
                if defer: t0 = ((12 if m % 2 == 0 else 8) if raw else 54) if m < ndir + nag else vstage[m - ndir - nag]
                else: t0 = SB + ((ks + 4*qt) % 6)*4
                p(f"v_cvt_pk_bf16_f32 v{t0}, v{a0}, v{a0+1}")
                p(f"v_cvt_pk_bf16_f32 v{t0+1}, v{a0+2}, v{a0+3}")
                p(f"v_cvt_pk_bf16_f32 v{t0+2}, v{a1}, v{a1+1}")
                p(f"v_cvt_pk_bf16_f32 v{t0+3}, v{a1+2}, v{a1+3}")
                n = ks*6 + qt
                mod = self.o['last_store_mod']
                if last:
                    for _ in range(2):
                        if pre:
                            for x in pre.pop(0): p.add(x)
                    if not defer or m < ndir:
                        p(f"s_add_u32 s{sT0}, s{sOo}, {n*1024}")
                        p(f"buffer_store_dwordx4 v[{t0}:{t0+3}], v{VST}, s[{SO}:{SO+3}], s{sT0} offen {mod}", tag=("o",))
                    else:
                        if m < ndir + nag:
                            d = abase + (m - ndir)*4
                            for r in range(4): p(f"v_accvgpr_write_b32 a{d+r}, v{t0+r}")
                            src = f"a[{d}:{d+3}]"
                        else: src = f"v[{t0}:{t0+3}]"
                        self.deferred.append([ins(f"s_add_u32 s{sT2}, s{sOo}, {n*1024}"),
                                              ins(f"buffer_store_dwordx4 {src}, v{VST}, s[{SO}:{SO+3}], s{sT2} offen {mod}", tag=("o",))])
                else:
                    for r in range(4): p(f"v_accvgpr_write_b32 a{OS(n)+r}, v{t0+r}")

    def final(self):
        p = self.p
        p.wait_tag(("wo",))
        p("s_barrier")
        p("v_and_b32 v8, 15, v0"); p("v_lshrrev_b32 v2, 4, v0"); p("v_lshrrev_b32 v3, 2, v8"); p("v_and_b32 v7, 3, v8")
        p("v_lshl_add_u32 v6, v2, 2, v3"); p("v_lshlrev_b32 v6, 10, v6"); p("v_lshl_add_u32 v6, v7, 4, v6")
        p(f"s_lshl_b32 s88, s{sW}, 8"); p("v_add_u32 v6, s88, v6")
        for nt in range(8):
            u, par = nt >> 1, nt & 1
            d = 32 + nt*4
            p(f"ds_read_b64_tr_b16 v[{d}:{d+1}], v6 offset:{64*u + 8*par}")
            p(f"ds_read_b64_tr_b16 v[{d+2}:{d+3}], v6 offset:{16384 + 64*u + 8*par}")
        for nt in range(8):
            d = 32 + nt*4
            if nt % 4 == 0: p(f"s_add_u32 s{sT1}, s{sWTo}, {nt*1024}")
            p(f"buffer_store_dwordx4 v[{d}:{d+3}], v{VST}, s[{SWT}:{SWT+3}], s{sT1} offen offset:{(nt % 4)*1024} {self.o['last_store_mod']}")

    def build(self):
        p = self.p
        assert self.o["msum"]
        self.prologue()
        if self.o["timing"]: p("s_mov_b32 s99, 0")
        if self.o.get("delaywg"):
            p("s_and_b32 s88, s2, 7"); p("s_cmp_lg_u32 s88, 3"); p("s_cbranch_scc1 L_nodelay")
            p("s_memrealtime s[88:89]"); p("s_waitcnt lgkmcnt(0)"); p(f"s_add_u32 s90, s88, {self.o['delaywg']}")
            p.raw("L_spinw:"); p("s_memrealtime s[88:89]"); p("s_waitcnt lgkmcnt(0)"); p("s_cmp_lt_u32 s88, s90"); p("s_cbranch_scc1 L_spinw")
            p.raw("L_nodelay:")
        self.stamp()
        if self.o.get("entry"):
            p("s_mov_b32 m0, 62"); p("s_nop 1"); p("v_writelane_b32 v5, s100, m0")
        early = self.o.get("woearly")
        p(f"s_mov_b32 s{SO+2}, {0 if self.o.get('stA') else O_BYTES}")
        mid = self.o.get("womid")
        if mid:
            assert self.o.get("stA") and self.o.get("fuse") and self.o.get("stpat") == 3
            self.emit_groups(self.w_tile(0, 0) + self.x_tile(0) + self.w_tile(1, 0) + self.dma_wo_last())
        elif early:
            assert self.o.get("stA") and self.o.get("fuse")
            self.emit_groups(self.w_tile(0, 0) + self.x_tile(0) + self.dma_wo_last() + self.w_tile(1, 0))
        else:
            self.emit_groups(self.w_tile(0, 0) + self.x_tile(0) + ([] if self.o.get("w1late") else self.w_tile(1, 0)))
        self.prologue2()
        if mid:
            p(f"s_mov_b32 s{sOreal}, s{sOo}"); p(f"s_mov_b32 s{sOo}, {4*6144}")
            p(f"s_add_u32 s{SO}, s{SWT}, s{sWTo}"); p(f"s_addc_u32 s{SO+1}, s{SWT+1}, 0")
            p(f"s_sub_u32 s{SO}, s{SO}, {12*1024}"); p(f"s_subb_u32 s{SO+1}, s{SO+1}, 0")
            p(f"s_mov_b32 s{SO+2}, 0"); p(f"s_mov_b32 s{sSz1}, {20*1024}"); p(f"s_mov_b32 s{sSz2}, 0")
        if early:
            p(f"s_mov_b32 s{sOreal}, s{sOo}"); p(f"s_mov_b32 s{sOo}, {4*6144}")
            p(f"s_add_u32 s{SO}, s{SWT}, s{sWTo}"); p(f"s_addc_u32 s{SO+1}, s{SWT+1}, 0"); p(f"s_mov_b32 s{SO+2}, 8192")
            W = self.wo_prep_groups(stage=True)
            for g in W[:9]:
                for x in g: p.add(x)
            p.wait_tag(("wo",)); p("s_barrier")
            for g in W[9:]:
                for x in g: p.add(x)
        for item in range(2):
            last = item == 1
            p.raw("@@SB A"); self.qproj_a(); p.raw("@@SE A")
            p.raw(f"@@SB B{item}"); self.qproj_b(last); self.stamp(); p.raw(f"@@SE B{item}")
            p.raw("@@SB C"); self.attention_shared(); p.raw("@@SE C")
            p.raw(f"@@SB D{item}")
            self.attention_tail(last)
            self.stamp()
            if self.o.get("guard", True): self.softmax_check(item)
            self.o_epilogue(last)
            self.stamp()
            if not last:
                if self.o.get("woearly") or self.o.get("womid"):
                    p(f"s_mov_b32 s{sOo}, s{sOreal}"); p(f"s_mov_b32 s{SO}, s72"); p(f"s_mov_b32 s{SO+1}, s73")
                if self.o.get("womid"):
                    p(f"s_mov_b32 s{sSz1}, {O_BYTES}"); p(f"s_mov_b32 s{sSz2}, {O_BYTES}")
                p(f"s_add_u32 s{sWo}, s{sWo}, 256"); p(f"s_add_u32 s{sOo}, s{sOo}, {4*6144}")
                p(f"s_mov_b32 s{sItem}, 1"); p(f"s_mov_b32 s{SO+2}, {O_BYTES}")
            else:
                if self.o.get("fuse"): self.k3_main()
                self.stamp()
                p("s_waitcnt vmcnt(0)")
                self.stamp()
                self.stamp_flush()
                p("s_waitcnt vmcnt(0)")
            p.raw(f"@@SE D{item}")
        L, st = finalize(p.L)
        L = fold(L)
        segs, top = segments(L)
        out = [i for k, i in top if k == "ins"]
        lab = lambda t: I(t, "label")
        br = lambda tgt: [ins(f"s_cmp_eq_u32 s{sItem}, 1"), ins(f"s_cbranch_scc1 {tgt}")]
        out += [lab("L_A:")] + segs["A"] + br("L_B1") + segs["B0"] + [lab("L_C:")] + segs["C"] + br("L_D1") + segs["D0"] + [ins("s_branch L_A")]
        out += [lab("L_B1:")] + segs["B1"] + [ins("s_branch L_C")]
        out += [lab("L_D1:")] + segs["D1"] + [lab("K2_END:"), ins("s_endpgm")]
        if self.o.get("guard", True): out += self.fallback()
        return out, st

if __name__ == "__main__":
    k = K2(); L, st = k.build()
    print(st, len(L))
```

```python
from dsl import *
import struct

def f32(x): return "0x%08x" % struct.unpack("<I", struct.pack("<f", x))[0]

NB, SQ, DM, H, SK, DH = 16, 192, 512, 32, 512, 128
X_BYTES = NB*SQ*DM*2
KV_BYTES = NB*H*SK*DH*2
W_BYTES = DM*H*DH*2
O_BYTES = 2*NB*2*128*6*1024
WOT_OFF = O_BYTES
WOT_BYTES = 2*4*128*8*1024
OUT_BYTES = NB*SQ*1024*2

PHI = 65536
WSLOT = [65536, 81920, 98304]
XA, XB = 114688, 139264
DROP = 0x30000

ACC = 64
def acc(T, qt): return ACC + (T*6 + qt)*4
SB = 8
def S(buf, kt): return SB + buf*8 + kt*4
PB = 24
def P(buf): return PB + buf*4
LS = 32
KA = 38
VA = 42
DV = 50
WA = 54
XAD = 58
WD = [60, 61, 2, 3]
XD = [62, 63, 6, 7]
VST = 4
def Q(qt, ks): return (qt*4 + ks)*4
def OS(n): return n*4
def KF(buf, kt, ks): return 96 + buf*32 + (kt*4 + ks)*4
def VF(buf, dt): return 160 + buf*32 + dt*4
def WF(T): return 96 + T*4
def XF(buf, qt): return 128 + buf*24 + qt*4
ONES = 224
def LA(qt): return 228 + qt*4
SX, SW, SKV, SO, SWO, SWT = 4, 8, 12, 16, 20, 24
sW, sHP, sRH, sP, sB, sHG = 28, 29, 30, 31, 32, 33
sKVo, sKVl, sWo, sWl, sXo, sXl, sOo = 34, 35, 36, 37, 38, 39, 40
sT0, sT1, sC = 41, 42, 43
sWOo, sWTo = 44, 45
sItem, sCnt = 46, 47
sTile, sM, sTh1, sTh2, sWarmW, sWarmX, sWoM, sDrop, sTc, sRot = 74, 75, 76, 77, 78, 79, 80, 81, 84, 85
sT2 = 83
sC2 = 86
sWR, sXR = 78, 79

SFL = 92
kA, kBo, kT0, kT1, kOut, kCnt = 74, 78, 80, 81, 79, 47
sC1, sC2o = 97, 96
def oacc(nu, qt): return ACC + (nu*6 + qt)*4
def AF(buf, nu): return buf*56 + nu*4
def BF(buf, qt): return buf*56 + 32 + qt*4
VB4 = 6
VBQ = 58
kRho, kSig = 82, 85
VAD2 = [2, 3, 6, 7]
VAR2 = 54
VAR = 38
VAD = 50
def AF2(buf, nu): return buf*32 + nu*4
def BF2(buf, qt): return 64 + buf*24 + qt*4
sOreal = 98
sSz1, sSz2 = 76, 77
VPOLL = 34
MF = "v_mfma_f32_16x16x32_bf16"
def mfma(d, dk, a, ak, b, bk, c=None):
    cs = "0" if c is None else rng(dk, c, 4)
    return ins(f"{MF} {rng(dk,d,4)}, {rng(ak,a,4)}, {rng(bk,b,4)}, {cs}")

class K2:
    def __init__(self, opts=None):
        self.o = dict(nt="nt", w_mod="", x_mod="", store_mod="sc1", last_store_mod="sc1", timing=False, msum=True, warm=False, qrot=True, stA=True, stpat=3, credit=4, out_mod="sc1", rawwo=True, afirst=True, drop=[])
        if opts: self.o.update(opts)
        self.p = Prog()
        self.phase = ""

    def tile_addr(self):
        if self.o.get("perm4"):
            return [ins(f"s_and_b32 s{sTile}, s{sTc}, 0x6000"), ins(f"s_lshl_b32 s{sTile}, s{sTile}, 2"),
                    ins(f"s_and_b32 s{sT0}, s{sTc}, 0x18000"), ins(f"s_lshr_b32 s{sT0}, s{sT0}, 2"), ins(f"s_or_b32 s{sTile}, s{sTile}, s{sT0}"),
                    ins(f"s_and_b32 s{sT0}, s{sTc}, 0x20000"), ins(f"s_or_b32 s{sTile}, s{sTile}, s{sT0}"),
                    ins(f"s_add_u32 s{sTile}, s{sTile}, s{sKVo}"), ins(f"s_add_u32 s{sTc}, s{sTc}, 8192")]
        if not self.o.get("rot"):
            return [ins(f"s_add_u32 s{sTile}, s{sKVo}, s{sTc}"), ins(f"s_add_u32 s{sTc}, s{sTc}, 8192")]
        return [ins(f"s_add_u32 s{sTile}, s{sTc}, s{sRot}"), ins(f"s_and_b32 s{sTile}, s{sTile}, 0x1ffff"),
                ins(f"s_and_b32 s{sT0}, s{sTc}, 0x20000"), ins(f"s_add_u32 s{sTile}, s{sTile}, s{sT0}"),
                ins(f"s_add_u32 s{sTile}, s{sTile}, s{sKVo}"), ins(f"s_add_u32 s{sTc}, s{sTc}, 8192")]
    def dma_kv(self, tag, m0a, m0b, pre=()):
        nt = self.o['nt']
        G = []
        g = list(pre) + self.tile_addr() + [ins(m0a)]
        for k in range(4):
            g.append(ins(f"buffer_load_dwordx4 v{DV+k}, s[{SKV}:{SKV+3}], s{sTile} offen offset:{1024*k} {nt} lds", tag=tag))
            G.append(g); g = []
        g = [ins(f"s_add_u32 s{sT0}, s{sTile}, 4096"), ins(m0b)]
        for k in range(4):
            g.append(ins(f"buffer_load_dwordx4 v{DV+k}, s[{SKV}:{SKV+3}], s{sT0} offen offset:{1024*k} {nt} lds", tag=tag))
            G.append(g); g = []
        return G
    def dma_kv_abs(self, tag, slot):
        o = (slot >> 1)*PHI + (slot & 1)*8192
        return self.dma_kv(tag, f"s_add_u32 m0, s{sKVl}, {o}", f"s_add_u32 m0, s{sKVl}, {o + 4096}")
    def kv_pieces(self, tile, a, b):
        G = self.dma_kv_abs(("kv", tile), tile % 4)
        out = G[a:b]
        if a not in (0, 4):
            slot = tile % 4
            o = (slot >> 1)*PHI + (slot & 1)*8192 + (4096 if a >= 4 else 0)
            out[0] = [ins(f"s_add_u32 m0, s{sKVl}, {o}")] + out[0]
        return out
    def dma_w(self, tag, base_reg, goff, m0txt, rot=None):
        G = []
        if rot is None: g = [ins(f"s_add_u32 s{sT1}, s{base_reg}, {goff}")]
        else:
            g = [ins(f"s_add_u32 s{sT1}, s{sWR}, {rot*262144}"), ins(f"s_and_b32 s{sT1}, s{sT1}, 0x3fffff"), ins(f"s_add_u32 s{sT1}, s{sT1}, s{base_reg}")]
            if goff: g.append(ins(f"s_add_u32 s{sT1}, s{sT1}, {goff}"))
        g.append(ins(m0txt))
        for n in range(4):
            g.append(ins(f"buffer_load_dwordx4 v{WD[n]}, s[{SW}:{SW+3}], s{sT1} offen offset:{1024*n} {self.o['w_mod']} lds", tag=tag))
            G.append(g); g = []
        return G
    def x_soff(self, base_reg, tt):
        if not self.o.get("qrot"): return [ins(f"s_add_u32 s{sT1}, s{base_reg}, {tt*128}")]
        return [ins(f"s_add_u32 s{sT1}, s{sXR}, {tt*128}"), ins(f"s_and_b32 s{sT1}, s{sT1}, 1023"), ins(f"s_add_u32 s{sT1}, s{sT1}, s{base_reg}")]
    def dma_x(self, tag, base_reg, tt, m0a, m0b):
        G = []
        m = self.o['x_mod']
        g = self.x_soff(base_reg, tt) + [ins(m0a)]
        for n in range(4):
            g.append(ins(f"buffer_load_dwordx4 v{XD[n]}, s[{SX}:{SX+3}], s{sT1} offen offset:{1024*n} {m} lds", tag=tag))
            G.append(g); g = []
        g = [ins(f"s_add_u32 s{sT1}, s{sT1}, {4*8192}"), ins(m0b)]
        for n in range(2):
            g.append(ins(f"buffer_load_dwordx4 v{XD[n]}, s[{SX}:{SX+3}], s{sT1} offen offset:{1024*n} {m} lds", tag=tag))
            G.append(g); g = []
        return G
    def w_tile(self, t, nxt=0):
        m0 = f"s_add_u32 m0, s{sWl}, {WSLOT[t % 3]}"
        if self.o.get("qrot"): return self.dma_w(("w", t), sWo, nxt*256, m0, rot=t)
        return self.dma_w(("w", t), sWo, nxt*256 + t*262144, m0)
    def x_tile(self, tt):
        sl = XB if tt % 2 == 0 else XA
        return self.dma_x(("x", tt), sXo, tt, f"s_add_u32 m0, s{sXl}, {sl}", f"s_add_u32 m0, s{sXl}, {sl + 4096}")
    def warmup(self, nxt):
        if not self.o["warm"]: return []
        G = []
        def ld(v, srd, soff, off, mod):
            i = ins(f"buffer_load_dwordx4 a[252:255], v{v}, s[{srd}:{srd+3}], s{soff} offen offset:{off} {mod}", tag=("warm",))
            i.kind = "dma"; i.wr = set(); i.rd.discard("m0")
            return i
        for k in range(2):
            g = [ins(f"s_add_u32 s{sT1}, s{sWarmW}, {nxt*256 + k*262144}")]
            for n in range(4):
                g.append(ld(WD[n], SW, sT1, 1024*n, self.o['w_mod'])); G.append(g); g = []
        if nxt == 0 or self.o.get("warmx1", True):
            for k in range(2):
                g = [ins(f"s_add_u32 s{sT1}, s{sWarmX}, {k*128}")]
                for n in range(4):
                    g.append(ld(XD[n], SX, sT1, 1024*n, self.o['x_mod'])); G.append(g); g = []
                g = [ins(f"s_add_u32 s{sT1}, s{sT1}, {4*8192}")]
                for n in range(2):
                    g.append(ld(XD[n], SX, sT1, 1024*n, self.o['x_mod'])); G.append(g); g = []
        return G
    def next_item_prefetch(self, nxt=1):
        return self.w_tile(0, nxt) + self.x_tile(0) + self.w_tile(1, nxt) + self.w_tile(2, nxt) + self.x_tile(1)
    def dma_wo(self):
        G = []
        for half in range(2):
            g = [ins(f"s_add_u32 s{sT1}, s{sWOo}, {half*4096}"), ins(f"s_add_u32 m0, s{sWoM}, {half*4096}")]
            for n in range(4):
                g.append(ins(f"buffer_load_dwordx4 v{VST}, s[{SWO}:{SWO+3}], s{sT1} offen offset:{1024*n} nt lds", tag=("wo",)))
                G.append(g); g = []
        return G
    def o_store(self, n, mod, prev, force=False):
        g = []
        if n % 4 == 0 or force: g.append(ins(f"s_add_u32 s{sT2}, s{sOo}, {((n & ~3)*1024 - (4*6144 if prev else 0)) & 0xffffffff}"))
        g.append(ins(f"buffer_store_dwordx4 {rng('a', OS(n), 4)}, v{VST}, s[{SO}:{SO+3}], s{sT2} offen offset:{(n % 4)*1024} {mod}", tag=("o",)))
        return g
    def rd_k(self, par, kt, ks):
        return ins(f"ds_read_b128 {rng('a', KF(par, kt, ks), 4)}, v{KA+ks} offset:{par*8192 + kt*4096}")
    def rd_v(self, par, dt, kt):
        return ins(f"ds_read_b64_tr_b16 {rng('a', VF(par, dt) + 2*kt, 2)}, v{VA+dt} offset:{par*8192 + kt*4096}")
    def rd_w(self, t, T, h2):
        if self.o.get("natw_test"):
            return ins(f"ds_read_b64_tr_b16 {rng('a', WF(T) + 2*h2, 2)}, v{WA+(T & 3)} offset:{(t % 3)*16384 + h2*2048}")
        ks, u = T >> 1, T & 1
        return ins(f"ds_read_b64_tr_b16 {rng('a', WF(T) + 2*h2, 2)}, v{WA+ks} offset:{(t % 3)*16384 + h2*2048 + 8*u}")
    def rd_x(self, t, qt):
        tt = t >> 1
        return ins(f"ds_read_b128 {rng('a', XF(t % 2, qt), 4)}, v{XAD + (t & 1)} offset:{(24576 if tt % 2 == 0 else 0) + qt*2048}")

    def prologue(self):
        p = self.p
        if self.o.get("entry"): p("s_memrealtime s[100:101]")
        p("s_cmp_ge_u32 s2, 256")
        p("s_cbranch_scc1 K2_END")
        p("s_load_dwordx16 s[48:63], s[0:1], 0")
        p("s_load_dwordx8 s[64:71], s[0:1], 64")
        p("s_load_dwordx2 s[72:73], s[0:1], 96")
        p(f"v_lshrrev_b32 v1, 6, v0")
        p(f"v_and_b32 v0, 63, v0")
        p(f"v_readfirstlane_b32 s{sW}, v1")
        p("s_and_b32 s86, s2, 7")
        p("s_lshr_b32 s87, s2, 3")
        p(f"s_lshr_b32 s{sP}, s86, 2")
        p("s_and_b32 s88, s86, 1"); p("s_lshl_b32 s88, s88, 3"); p("s_and_b32 s82, s87, 7")
        p(f"s_add_u32 s{sB}, s88, s82")
        p("s_lshr_b32 s88, s86, 1"); p("s_and_b32 s88, s88, 1"); p("s_lshl_b32 s88, s88, 2"); p("s_lshr_b32 s83, s87, 3")
        p(f"s_add_u32 s{sHG}, s88, s83")
        p(f"s_and_b32 s{sHP}, s{sW}, 1")
        p(f"s_lshr_b32 s{sRH}, s{sW}, 1")
        p("s_waitcnt lgkmcnt(0)")
        p(f"s_cmp_eq_u32 s{sP}, 0")
        p(f"s_cselect_b32 s{SX}, s48, s58"); p(f"s_cselect_b32 s{SX+1}, s49, s59")
        p(f"s_cselect_b32 s{SW}, s54, s64"); p(f"s_cselect_b32 s{SW+1}, s55, s65")
        p(f"s_cselect_b32 s{SWO}, s56, s66"); p(f"s_cselect_b32 s{SWO+1}, s57, s67")
        p(f"s_cselect_b32 s90, s50, s60"); p(f"s_cselect_b32 s91, s51, s61")
        p(f"s_cselect_b32 s92, s52, s62"); p(f"s_cselect_b32 s93, s53, s63")
        p(f"s_cmp_eq_u32 s{sRH}, 0")
        p(f"s_cselect_b32 s{SKV}, s90, s92"); p(f"s_cselect_b32 s{SKV+1}, s91, s93")
        p(f"s_cselect_b32 s94, 64, 128"); p(f"s_cselect_b32 s95, 128, 0"); p("s_mov_b32 s96, 128"); p(f"s_cselect_b32 s96, 192, s96")
        p(f"s_cselect_b32 s97, 0, 1")
        p(f"s_cselect_b32 s{sKVl}, 0, 32768")
        for r, n in ((SX, X_BYTES), (SW, W_BYTES), (SWO, W_BYTES), (SKV, KV_BYTES)):
            p(f"s_mov_b32 s{r+2}, {n}"); p(f"s_mov_b32 s{r+3}, 0x00020000")
        p(f"s_mov_b32 s{SO}, s72"); p(f"s_mov_b32 s{SO+1}, s73"); p(f"s_mov_b32 s{SO+2}, 0"); p(f"s_mov_b32 s{SO+3}, 0x00020000")
        p(f"s_add_u32 s{SWT}, s72, {WOT_OFF}"); p(f"s_addc_u32 s{SWT+1}, s73, 0"); p(f"s_mov_b32 s{SWT+2}, {WOT_BYTES}"); p(f"s_mov_b32 s{SWT+3}, 0x00020000")
        p(f"s_lshl_b32 s88, s{sB}, 5"); p(f"s_lshl_b32 s89, s{sHG}, 2"); p("s_add_u32 s88, s88, s89"); p(f"s_lshl_b32 s89, s{sHP}, 1"); p("s_add_u32 s88, s88, s89")
        p(f"s_lshl_b32 s{sKVo}, s88, 17")
        p(f"s_lshl_b32 s89, s{sHP}, 14"); p(f"s_add_u32 s{sKVl}, s{sKVl}, s89")
        p(f"s_lshl_b32 s88, s{sW}, 16"); p(f"s_lshl_b32 s89, s{sHG}, 10"); p(f"s_add_u32 s{sWo}, s88, s89")
        p(f"s_lshl_b32 s{sWl}, s{sW}, 12")
        p(f"s_lshl_b32 s88, s82, 19"); p(f"s_add_u32 s{sWarmW}, s{sWo}, s88")
        p(f"s_mul_i32 s88, s{sB}, 196608"); p(f"s_mul_i32 s89, s{sW}, 49152"); p(f"s_add_u32 s{sXo}, s88, s89")
        p(f"s_mul_i32 s{sXl}, s{sW}, 6144")
        p(f"s_lshl_b32 s88, s83, 8"); p(f"s_add_u32 s{sWarmX}, s{sXo}, s88")
        if self.o.get("qrot"):
            assert not self.o["warm"]
            p("s_lshl_b32 s88, s83, 1"); p("s_add_u32 s88, s88, s82"); p("s_and_b32 s88, s88, 7")
            p(f"s_lshl_b32 s{sWR}, s88, 19"); p(f"s_lshl_b32 s{sXR}, s88, 7")
        p(f"s_mov_b32 s{sDrop}, {DROP}")
        p("s_mul_i32 s88, s2, 5"); p("s_lshr_b32 s89, s2, 4"); p("s_add_u32 s88, s88, s89"); p("s_and_b32 s88, s88, 15"); p(f"s_lshl_b32 s{sRot}, s88, 13")
        p(f"s_lshl_b32 s88, s{sP}, 4"); p(f"s_add_u32 s88, s88, s{sB}"); p("s_lshl_b32 s88, s88, 1"); p(f"s_add_u32 s88, s88, s{sRH}")
        p("s_lshl_b32 s88, s88, 7"); p(f"s_lshl_b32 s89, s{sHG}, 4"); p("s_add_u32 s88, s88, s89"); p(f"s_lshl_b32 s89, s{sHP}, 3"); p("s_add_u32 s88, s88, s89")
        p(f"s_mul_i32 s{sOo}, s88, 6144")
        p("s_and_b32 s88, s86, 3"); p("s_lshl_b32 s88, s88, 5"); p("s_add_u32 s88, s88, s87")
        p(f"s_lshl_b32 s89, s88, 15"); p(f"s_lshl_b32 s98, s{sW}, 13"); p(f"s_add_u32 s{sWOo}, s89, s98")
        p(f"s_lshl_b32 s89, s{sP}, 2"); p(f"s_add_u32 s89, s89, s{sW}"); p("s_lshl_b32 s89, s89, 7"); p("s_add_u32 s89, s89, s88"); p(f"s_lshl_b32 s{sWTo}, s89, 13")
        p(f"s_mov_b32 s{sC}, {f32(1.4426950408889634*128**-0.5)}")
        p(f"s_mov_b32 s{sItem}, 0")
        self.late_consts = True
        i_, g_, r_, c_ = "v14", "v8", "v9", "v10"
        p(f"v_and_b32 {i_}, 15, v0"); p(f"v_lshrrev_b32 {g_}, 4, v0"); p(f"v_lshrrev_b32 {r_}, 2, {i_}"); p(f"v_and_b32 {c_}, 3, {i_}")
        p(f"v_lshlrev_b32 v{VST}, 4, v0")
        p("v_lshrrev_b32 v11, 5, v0"); p("v_and_b32 v12, 15, v0"); p("v_lshlrev_b32 v13, 2, v11"); p("v_xor_b32 v12, v12, v13"); p("v_lshlrev_b32 v12, 4, v12")
        p("v_lshl_add_u32 v12, v11, 13, v12"); p("v_bfe_u32 v13, v0, 4, 1"); p(f"v_lshl_add_u32 v{WD[0]}, v13, 9, v12")
        p(f"v_xor_b32 v{WD[1]}, 128, v{WD[0]}"); p(f"v_add_u32 v{WD[2]}, {2*15360}, v{WD[0]}"); p(f"v_add_u32 v{WD[3]}, {3*15360}, v{WD[1]}"); p(f"v_add_u32 v{WD[1]}, 15360, v{WD[1]}")
        p("v_lshrrev_b32 v11, 3, v0"); p("v_and_b32 v12, 7, v0"); p(f"v_xor_b32 v12, v12, {g_}"); p("v_lshlrev_b32 v12, 4, v12")
        p(f"v_lshl_add_u32 v{XD[0]}, v11, 10, v12"); p(f"v_xor_b32 v{XD[1]}, 64, v{XD[0]}")
        p(f"v_add_u32 v{XD[2]}, {2*7168}, v{XD[0]}"); p(f"v_add_u32 v{XD[3]}, {3*7168}, v{XD[1]}"); p(f"v_add_u32 v{XD[1]}, 7168, v{XD[1]}")
        p(f"v_lshlrev_b32 v11, s97, {g_}"); p(f"v_xor_b32 v11, v11, {i_}"); p("v_lshlrev_b32 v11, 4, v11"); p(f"v_lshl_add_u32 v{DV}, {g_}, 8, v11")
        for k in range(1, 4): p(f"v_xor_b32 v{DV+k}, s{93+k}, v{DV}")
        self.lane = (i_, g_, r_, c_)
    def prologue2(self):
        p = self.p
        i_, g_, r_, c_ = self.lane
        p(f"s_lshl_b32 s88, s{sHP}, 14")
        p(f"v_xor_b32 v11, {g_}, {i_}"); p("v_lshlrev_b32 v11, 4, v11"); p(f"v_lshl_add_u32 v11, {i_}, 8, v11"); p(f"v_add_u32 v{KA}, s88, v11")
        for ks in range(1, 4): p(f"v_xor_b32 v{KA+ks}, {64*ks}, v{KA}")
        p(f"v_and_b32 v11, 1, {g_}"); p("v_lshlrev_b32 v11, 2, v11"); p(f"v_add_u32 v11, v11, {r_}"); p("v_lshlrev_b32 v11, 1, v11")
        p(f"v_lshrrev_b32 v12, 1, {c_}"); p("v_xor_b32 v11, v11, v12"); p("v_lshlrev_b32 v11, 4, v11")
        p(f"v_and_b32 v12, 1, {c_}"); p("v_lshl_add_u32 v11, v12, 3, v11")
        p(f"v_lshl_add_u32 v12, {g_}, 2, {r_}"); p("v_lshl_add_u32 v11, v12, 8, v11")
        p("s_add_u32 s89, s88, 32768"); p(f"v_add_u32 v{VA}, s89, v11")
        for dt in range(1, 8): p(f"v_xor_b32 v{VA+dt}, {32*dt}, v{VA}")
        p(f"s_lshl_b32 s88, s{sHP}, 4")
        p(f"v_add_u32 v11, s88, {c_}"); p(f"v_lshlrev_b32 v12, 2, {r_}"); p("v_xor_b32 v11, v11, v12"); p("v_lshlrev_b32 v11, 4, v11")
        p(f"v_lshl_add_u32 v12, {g_}, 3, {r_}"); p("v_lshl_add_u32 v11, v12, 9, v11"); p(f"v_add_u32 v{WA}, {WSLOT[0]}, v11")
        if self.o.get("natw_test"):
            p(f"v_and_b32 v11, 1, {g_}"); p("v_lshlrev_b32 v11, 2, v11"); p(f"v_add_u32 v11, v11, {r_}"); p("v_lshlrev_b32 v11, 1, v11")
            p(f"v_lshrrev_b32 v13, 1, {c_}"); p("v_xor_b32 v11, v11, v13"); p("v_lshlrev_b32 v11, 4, v11"); p(f"v_and_b32 v13, 1, {c_}"); p("v_lshl_add_u32 v11, v13, 3, v11")
            p("v_lshl_add_u32 v11, v12, 9, v11"); p(f"v_add_u32 v{WA}, {WSLOT[0]}, v11")
            for ks in range(1, 4): p(f"v_xor_b32 v{WA+ks}, {32*ks}, v{WA}")
        else:
            for ks in range(1, 4): p(f"v_xor_b32 v{WA+ks}, {64*ks}, v{WA}")
        p(f"s_mul_i32 s88, s{sRH}, {96*128}"); p(f"s_add_u32 s88, s88, {XA}")
        p(f"v_lshrrev_b32 v11, 1, {i_}"); p(f"v_xor_b32 v11, v11, {g_}"); p("v_lshlrev_b32 v11, 4, v11"); p(f"v_lshl_add_u32 v11, {i_}, 7, v11"); p(f"v_add_u32 v{XAD}, s88, v11")
        p(f"v_xor_b32 v{XAD+1}, 64, v{XAD}")
        p(f"s_mov_b32 s{sC2}, s{sC}"); p(f"s_mov_b32 s{sC2+1}, s{sC}")
        if self.o.get("fuse"):
            p(f"s_mov_b32 s{SFL}, s70"); p(f"s_mov_b32 s{SFL+1}, s71"); p(f"s_mov_b32 s{SFL+2}, 256"); p(f"s_mov_b32 s{SFL+3}, 0x00020000")
            sh = 16 if self.o.get("dbg") is not None else 0
            p(f"s_lshl_b32 s{sC1}, s{sP}, 2"); p(f"s_add_u32 s{sC1}, s{sC1}, {4*sh}")
            p(f"s_lshl_b32 s88, s{sP}, 4"); p(f"s_add_u32 s88, s88, s{sB}"); p(f"s_add_u32 s88, s88, {2+sh}"); p(f"s_lshl_b32 s{sC2o}, s88, 2")
            if self.o.get("rawwo"): p(f"s_mov_b32 s{sC1}, s{sC2o}")
        if self.o["msum"]:
            p("v_mov_b32 v11, 0x3f803f80")
            for r in range(4): p(f"v_accvgpr_write_b32 a{ONES+r}, v11")

    def stamp(self, fine=False):
        if not self.o["timing"]: return
        if fine and not self.o.get("fine"): return
        p = self.p
        p(f"s_memrealtime s[88:89]")
        p(f"s_memtime s[90:91]")
        p("s_waitcnt lgkmcnt(0)")
        p("s_mov_b32 m0, s99"); p("s_nop 1")
        p(f"v_writelane_b32 v5, s88, m0")
        p(f"v_writelane_b32 v1, s90, m0")
        p("s_add_u32 s99, s99, 1")
    def stamp_flush(self):
        if not self.o["timing"]: return
        p = self.p
        if self.o.get("dbg") is not None:
            p(f"s_cmp_eq_u32 s2, {self.o['dbg']}"); p("s_cselect_b32 s90, 64, 0"); p(f"s_cmp_eq_u32 s{sW}, 0"); p("s_cselect_b32 s90, s90, 0")
            p("s_mov_b32 s88, s70"); p("s_mov_b32 s89, s71"); p("s_mov_b32 s91, 0x00020000")
            src = "v1" if self.o.get("dbgcyc") else "v5"
            p("v_lshlrev_b32 v6, 2, v0")
            p(f"buffer_store_dword {src}, v6, s[88:91], 0 offen")
            if not self.o.get("fuse"):
                p("s_add_u32 s88, s88, 512"); p("s_addc_u32 s89, s89, 0"); p("s_cmp_lg_u32 s90, 0"); p("s_cselect_b32 s90, 52, 0")
                p(f"buffer_store_dword {src}, v6, s[88:91], 0 offen")
            return
        p(f"s_add_u32 s88, s72, {64<<20}"); p("s_addc_u32 s89, s73, 0"); p(f"s_mov_b32 s90, {1<<20}"); p("s_mov_b32 s91, 0x00020000")
        p(f"s_lshl_b32 s92, s2, 2"); p(f"s_add_u32 s92, s92, s{sW}"); p("s_lshl_b32 s92, s92, 9")
        p("v_lshlrev_b32 v6, 2, v0")
        p("buffer_store_dword v5, v6, s[88:91], s92 offen")
        p("buffer_store_dword v1, v6, s[88:91], s92 offen offset:256")

    def emit_groups(self, groups):
        for g in groups:
            for x in g: self.p.add(x)
    def keep(self, x):
        drop = self.o["drop"]; ph = self.phase
        if x.kind == "dma" and ph + "_dma" in drop: return False
        if x.kind == "ds_read" and ph + "_lds" in drop: return False
        if x.kind == "barrier" and ph + "_bar" in drop: return False
        if x.kind == "trans" and ph + "_exp" in drop: return False
        if x.kind == "valu" and x.txt.startswith("v_add_f32") and ph + "_add" in drop: return False
        if x.kind == "valu" and x.txt.startswith("v_cvt") and ph + "_cvt" in drop: return False
        if x.kind == "vstore" and ph + "_st" in drop: return False
        return True
    def run(self, mf, chains, pre=()):
        ch = [[([x for x in g if self.keep(x)], lo, hi) for g, lo, hi in c] for c in chains]
        ch = [[it for it in c if it[0]] for c in ch]
        if self.phase + "_mfma" in self.o["drop"]: mf = [ins("s_nop 0") for _ in mf]
        self.p.extend(gapfill(mf, ch, pre=[x for x in pre if self.keep(x)]))

    def spaced(self, G, lo, hi):
        n = len(G)
        out = []
        for k, g in enumerate(G):
            pos = lo + (k*(hi - lo + 1))//n
            out.append((g, pos, pos + 1))
        return out
    def qstep(self, t, stores=(), sig=False):
        p = self.p
        self.phase = "qp"
        mf = []
        for T in range(8):
            for qt in range(6):
                mf.append(mfma(acc(T, qt), "v", WF(T), "a", XF(t % 2, qt), "a", None if t == 0 else acc(T, qt)))
        need = []
        for qt in range(6): need += R("a", XF(t % 2, qt), 4)
        for T in range(6): need += R("a", WF(T), 4)
        pre = [wait_regs(need)]
        chains = []
        BG = self.o.get("bg", 11)
        slow = []
        if t < 15:
            bar = [wait_tag(("w", t+1))]
            if t % 2 == 1: bar.append(wait_tag(("x", (t+1) >> 1)))
            chains.append([(bar, BG-1, BG-1), ([ins("s_waitcnt lgkmcnt(0)"), ins("s_barrier")], BG, BG)])
            cw = []
            for T in range(8):
                lo = max(BG+1, 6*T + 5)
                cw += [([self.rd_w(t+1, T, 0)], lo, min(47, lo + 8)), ([self.rd_w(t+1, T, 1)], lo, min(47, lo + 9))]
            chains.append(cw)
            chains.append([([self.rd_x(t+1, qt)], BG+1, 40) for qt in range(6)])
            GW = self.w_tile(t+3) if t + 3 <= 15 else []
            early = []; GX = []
            if t % 2 == 1 and (t >> 1) + 2 <= 7: GX = self.x_tile((t >> 1) + 2)[:3]
            if t % 2 == 0 and t >= 2 and ((t-1) >> 1) + 2 <= 7:
                tt = ((t-1) >> 1) + 2; sl = XB if tt % 2 == 0 else XA
                early = self.x_tile(tt)[3:]
                early[0] = self.x_soff(sXo, tt) + [ins(f"s_add_u32 m0, s{sXl}, {sl}")] + early[0]
            if t == 0:
                early = self.w_tile(2) + self.x_tile(1)
                if self.o.get("w1late"): early = self.w_tile(1) + early
            late = GW + GX
            plan = self.o.get("kvplan", {10: (0, 0, 4), 11: (0, 4, 8), 12: (1, 0, 4), 13: (1, 4, 8)})
            if t in plan or str(t) in plan:
                slow = self.kv_pieces(*(plan.get(t) or plan.get(str(t))))
            c = []
            if t == 0:
                c = self.spaced(early + late, 0, 47); early = []; late = []
            if early:
                span = BG - 1
                for k, g in enumerate(early): c.append((g, int(k*span/len(early)), int(k*span/len(early)) + 1))
            hi = 47 if not (slow or stores) else (39 if len(slow) <= 2 else 32)
            if late: c += self.spaced(late, BG+2, hi)
            if slow: c += self.spaced(slow, (41 if len(slow) <= 2 else 34) if late else BG+2, 47)
            if c: chains.append(c)
        else:
            chains.append([([wait_tag(("kv", 0))], BG-1, BG-1), ([ins("s_waitcnt lgkmcnt(0)"), ins("s_barrier")], BG, BG)])
            G = self.kv_pieces(2, 0, 4 if self.o.get("look", 3) == 3 else 8)
            if self.o.get("kv15"): G = self.kv_pieces(*self.o["kv15"]) + G
            chains.append(self.spaced(G, BG+1, 47))
            ne = self.o.get("qearly", 0)
            if ne:
                c = []
                for qt in range(ne):
                    c += [([x], 14, 47) for x in self.q_convert(qt, 0, S(0, 0) + (qt % 4)*4)]
                chains.append(c)
        if self.o.get("womid"):
            if t == 2:
                W = self.wo_prep_groups(stage=12)
                blk = [ins(f"s_cmp_eq_u32 s{sItem}, 1"), ins("s_cbranch_scc1 L_nowo")] + [x for g in W for x in g]
                for x in blk: x.meta["alt"] = True
                blk.append(I("L_nowo:", "label"))
                chains.append([(blk, BG+1, BG+1)])
            if t == 4: chains.append([([ins(f"s_mov_b32 s{SO+2}, s{sSz1}")], 0, 2)])
            if t == 7: chains.append([([ins(f"s_mov_b32 s{SO+2}, s{sSz2}")], 0, 2)])
        if sig:
            chains.append([(self.signal(f"v_mov_b32 v{VPOLL+2}, s{sC1}"), BG+1, BG+3)])
        if stores:
            lo = 26 if t == 12 else 0
            if self.o.get("stA"): lo = {2: 41, 3: 36, 4: 30}[len(stores)]
            chains.append(self.spaced([self.o_store(n, self.o["store_mod"], True, force=bool(self.o.get("stA")) and n == stores[0]) for n in stores], lo, 47))
        self.run(mf, chains, pre)

    def q_convert(self, qt, ks, t0):
        a0, a1 = acc(2*ks, qt), acc(2*ks+1, qt)
        L = [ins(f"v_mul_f32 v{a+r}, s{sC}, v{a+r}") for a in (a0, a1) for r in range(4)]
        L += [ins(f"v_cvt_pk_bf16_f32 v{t0}, v{a0}, v{a0+1}"), ins(f"v_cvt_pk_bf16_f32 v{t0+1}, v{a0+2}, v{a0+3}"),
              ins(f"v_cvt_pk_bf16_f32 v{t0+2}, v{a1}, v{a1+1}"), ins(f"v_cvt_pk_bf16_f32 v{t0+3}, v{a1+2}, v{a1+3}")]
        L += [ins(f"v_accvgpr_write_b32 a{Q(qt,ks)+r}, v{t0+r}") for r in range(4)]
        return L
    def qproj_a(self):
        p = self.p
        p(f"s_lshl_b32 s{sTc}, s{sItem}, 17")
        p.wait_tag(("w", 0)); p.wait_tag(("x", 0))
        p("s_barrier")
        self.stamp()
        for T in range(8):
            p.add(self.rd_w(0, T, 0)); p.add(self.rd_w(0, T, 1))
        for qt in range(6): p.add(self.rd_x(0, qt))
        for t in range(12):
            pat = self.o.get("stpat", 2)
            if pat == 2: ss = [2*t, 2*t+1]
            elif pat == 3: ss = [3*t, 3*t+1, 3*t+2] if t < 8 else []
            elif pat == 4: ss = [4*(t//2) + k for k in range(4)] if t % 2 == 0 else []
            elif pat == 5: ss = [4*(t//2) + k for k in range(4)] if t % 2 == 1 else []
            self.qstep(t, ss if self.o.get("stA") else ())
            if t in (3, 7, 11): self.stamp(True)
    def qproj_b(self, last):
        p = self.p
        st = (lambda a, b: list(range(a, b))) if (last and not self.o.get("stA")) else (lambda a, b: [])
        self.qstep(12, st(0, 3)); self.qstep(13, st(3, 9)); self.qstep(14, st(9, 15))
        sig_late = self.o.get("siglate", False)
        self.qstep(15, st(15, 18), sig=bool(last and self.o.get("fuse") and not sig_late))
        self.stamp()
        for kt in range(2):
            for ks in range(4): p.add(self.rd_k(0, kt, ks))
        tmp = S(0, 0)
        rest = self.kv_pieces(2, 4, 8) if self.o.get("look", 3) == 3 else []
        late = st(18, 24)
        for qt in range(6):
            for ks in range(4):
                n = qt*4 + ks
                a0, a1 = acc(2*ks, qt), acc(2*ks+1, qt)
                if ks == 0 and qt < self.o.get("qearly", 0):
                    if qt < 4:
                        pass
                    continue
                if self.o.get("pk", True):
                    for a in (a0, a0+2, a1, a1+2): p(f"v_pk_mul_f32 v[{a}:{a+1}], v[{a}:{a+1}], s[{sC2}:{sC2+1}]")
                else:
                    for r in range(4): p(f"v_mul_f32 v{a0+r}, s{sC}, v{a0+r}")
                    for r in range(4): p(f"v_mul_f32 v{a1+r}, s{sC}, v{a1+r}")
                t0 = tmp + (n % 4)*4
                p(f"v_cvt_pk_bf16_f32 v{t0}, v{a0}, v{a0+1}")
                p(f"v_cvt_pk_bf16_f32 v{t0+1}, v{a0+2}, v{a0+3}")
                p(f"v_cvt_pk_bf16_f32 v{t0+2}, v{a1}, v{a1+1}")
                p(f"v_cvt_pk_bf16_f32 v{t0+3}, v{a1+2}, v{a1+3}")
                if late and n % 2 == 0 and n < 18:
                    m = late.pop(0)
                    for x in self.o_store(m, self.o["store_mod"], True, force=True): p.add(x)
                if self.o.get("dummy_mfma"):
                    for _ in range(self.o["dummy_mfma"]): p.add(mfma(252, "a", KF(0, 0, 0), "a", KF(0, 1, 0), "a", None))
                for r in range(4): p(f"v_accvgpr_write_b32 a{Q(qt,ks)+r}, v{t0+r}")
                if rest and n % 4 == 3 and n >= 7:
                    for x in rest.pop(0): p.add(x)
            if qt < 4:
                for dt in (2*qt, 2*qt+1):
                    p.add(self.rd_v(0, dt, 0)); p.add(self.rd_v(0, dt, 1))
        assert not rest and not late
        if last and self.o.get("fuse") and sig_late:
            for x in self.signal(f"v_mov_b32 v{VPOLL+2}, s{sC1}"): p.add(x)

    def period(self, n, dma=(), pre=(), early=(), extra=()):
        p = self.p
        self.phase = "at"
        msum = self.o["msum"]
        j, pp = divmod(n, 6)
        qk = []; pv = []
        if n < 96:
            sb = n % 2
            for kt in range(2):
                for ks in range(4):
                    qk.append(mfma(S(sb, kt), "v", KF(j % 2, kt, ks), "a", Q(pp, ks), "a", None if ks == 0 else S(sb, kt)))
        if n >= 2:
            jj, qt = divmod(n-2, 6)
            pb = (n-2) % 2
            for dt in range(8):
                pv.append(mfma(acc(dt, qt), "v", VF(jj % 2, dt), "a", P(pb), "v", None if jj == 0 else acc(dt, qt)))
        mf = []
        for k in range(8):
            if qk: mf.append(qk[k])
            if pv: mf.append(pv[k])
        if n >= 2 and msum:
            mf.append(mfma(LA(qt), "a", ONES, "a", P(pb), "v", None if jj == 0 else LA(qt)))
        nm = len(mf)
        sc = nm/17.0 if msum else nm/16.0
        def G(x): return min(nm-1, int(x*sc))
        chains = []
        if 1 <= n <= 96:
            jj2, qt2 = divmod(n-1, 6)
            sb = (n-1) % 2; pb2 = (n-1) % 2
            e = [S(sb, 0)+r for r in range(4)] + [S(sb, 1)+r for r in range(4)]
            chains.append([([ins(f"v_exp_f32 v{e[k]}, v{e[k]}")], G(2*k), G(2*k)) for k in range(8)])
            cv = []
            for k in range(8):
                if not msum: cv.append(([ins(f"v_add_f32 v{LS+qt2}, v{LS+qt2}, v{e[k]}")], G(2*k+1), G(2*k+1)))
                if k % 2 == 1:
                    cv.append(([ins(f"v_cvt_pk_bf16_f32 v{P(pb2)+k//2}, v{e[k-1]}, v{e[k]}")], G(2*k+1), G(2*k+1)))
            chains.append(cv)
        if n >= 2:
            jb, q = divmod(n-2, 6)
            if jb + 1 <= 15:
                par = (jb+1) % 2
                rds = []
                if q in (0, 1): rds = [self.rd_k(par, q, ks) for ks in range(4)]
                else:
                    for dt in range((q-2)*2, (q-2)*2+2): rds += [self.rd_v(par, dt, 0), self.rd_v(par, dt, 1)]
                gp = [1, 5, 9, 13] if q != 5 else [1, 5, 9, 10]
                chains.append([([x], G(gp[k]), G(gp[k])) for k, x in enumerate(rds)])
        if dma:
            nd = sum(1 for x in dma if x.kind == "dma")
            slots = {0: [], 1: [16], 2: [11, 16], 4: [3, 7, 11, 16], 8: [2, 4, 6, 8, 10, 12, 14, 16]}.get(nd) or [int(3 + (16-3)*k/(nd-1)) for k in range(nd)]
            ch = []; seen = 0
            for x in dma:
                if x.kind == "dma":
                    g = G(slots[seen]); seen += 1
                    grp = [x] if x.meta.get("credit") is None else [ins(f"s_waitcnt vmcnt({x.meta['credit']})"), x]
                    ch.append((grp, g, g))
                else:
                    ch.append(([x], 0, nm-1))
            for k in range(len(ch)-2, -1, -1):
                if ch[k][0][-1].kind != "dma": ch[k] = (ch[k][0], 0, max(0, ch[k+1][2] - (1 if ch[k+1][0][-1].kind == "dma" else 0)))
            chains.append(ch)
        if early: chains.append([([x], 0, nm-1) for x in early])
        if extra: chains.append([(g, (k*nm)//len(extra), nm-1) for k, g in enumerate(extra)])
        self.run(mf, chains, pre)

    def body(self, j, dmaG, tog=(), nper=6, extra=(), extra2=()):
        bar = []
        if j + 1 <= 15: bar.append(wait_tag(("kv", j+1)))
        if extra: bar.append(wait_tag(("wo",)))
        bar += [ins("s_waitcnt lgkmcnt(0)"), ins("s_barrier")]
        if self.o.get("baracct"):
            b0 = [ins("s_memtime s[92:93]"), ins("s_waitcnt lgkmcnt(0)")]
            b1 = [ins("s_memtime s[94:95]"), ins("s_waitcnt lgkmcnt(0)")]
            b2 = [ins("s_memtime s[96:97]"), ins("s_waitcnt lgkmcnt(0)"), ins("s_sub_u32 s98, s94, s92"), ins("s_add_u32 s100, s100, s98"),
                  ins("s_sub_u32 s98, s96, s94"), ins("s_add_u32 s101, s101, s98")]
            bar = b0 + bar[:1] + b1 + bar[1:] + b2
        tk = [x for x in tog if any(f"v{KA+z}," in x.txt for z in range(4))]
        tv = [x for x in tog if x not in tk]
        flat = [x for g in dmaG for x in g]
        cr = self.o.get("credit")
        if cr is not None and j <= 12:
            k = 0
            for x in flat:
                if x.kind == "dma":
                    x.meta["credit"] = cr[k % len(cr)] if isinstance(cr, list) else cr
                    k += 1
        nd = sum(1 for x in flat if x.kind == "dma")
        if nd == 8: cnt = self.o.get("dmacnt", [1, 1, 2, 1, 1, 2])
        else: cnt = [nd//6 + (1 if q < nd % 6 else 0) for q in range(6)]
        per = [[] for _ in range(6)]
        q = 0; seen = 0
        for x in flat:
            while q < 5 and seen >= cnt[q]: q += 1; seen = 0
            per[q].append(x)
            if x.kind == "dma": seen += 1
        for q in range(6):
            e = tv[:4] if q == 0 else (tv[4:] if q == 1 else [])
            ex = []
            if extra or extra2:
                xs = list(extra) + list(extra2)
                n = len(xs); ex = xs[q*n//6:(q+1)*n//6]
            self.period(6*j + 2 + q, dma=per[q], pre=(bar + tk) if q == 0 else (), early=e, extra=ex)

    def tog(self):
        return [ins(f"v_xor_b32 v{KA+x}, {PHI}, v{KA+x}") for x in range(4)] + [ins(f"v_xor_b32 v{VA+x}, {PHI}, v{VA+x}") for x in range(8)]
    def attention_shared(self):
        p = self.p
        look = self.o.get("look", 3)
        if look == 4:
            t3 = self.kv_pieces(3, 0, 8)
            self.period(0, dma=[x for g in t3[:4] for x in g]); self.period(1, dma=[x for g in t3[4:] for x in g])
            self.body(0, self.dma_kv_abs(("kv", 4), 0))
        else:
            self.period(0); self.period(1)
            self.body(0, self.dma_kv_abs(("kv", 3), 3))
        p(f"s_mov_b32 s{sM}, s{sKVl}")
        split = self.o.get("atsplit")
        runs = [("at", 0, 5, self.o.get("credit"))] if not split else [("at", 0, split[0], split[1]), ("au", split[0], 5, split[2])]
        saved = self.o.get("credit")
        for name, k0, k1, cr in runs:
            self.o["credit"] = cr
            p(f"s_mov_b32 s{sCnt}, {k1 - k0}")
            for k in range(k0, k1):
                j = 1 + 2*k
                p.raw(f"@@LB {name} {k - k0}")
                self.stamp(True)
                if look == 4:
                    g1 = self.dma_kv(("kv", j+4), f"s_add_u32 m0, s{sM}, 8192", f"s_add_u32 m0, s{sM}, 12288")
                    self.body(j, g1, tog=self.tog())
                    g2 = self.dma_kv(("kv", j+5), f"s_add_u32 m0, s{sM}, 0", f"s_add_u32 m0, s{sM}, 4096")
                    self.body(j+1, [[ins(f"s_xor_b32 s{sM}, s{sM}, {PHI}")]] + g2)
                else:
                    g1 = self.dma_kv(("kv", j+3), f"s_add_u32 m0, s{sM}, 0", f"s_add_u32 m0, s{sM}, 4096")
                    self.body(j, g1, tog=self.tog())
                    g2 = self.dma_kv(("kv", j+4), f"s_add_u32 m0, s{sM}, 8192", f"s_add_u32 m0, s{sM}, 12288")
                    g2[-1] = g2[-1] + [ins(f"s_xor_b32 s{sM}, s{sM}, {PHI}")]
                    self.body(j+1, g2)
                p(f"s_sub_u32 s{sCnt}, s{sCnt}, 1"); p(f"s_cmp_lg_u32 s{sCnt}, 0"); p(f"s_cbranch_scc1 L_{name}")
                p.raw(f"@@LE {name} {k - k0}")
        self.o["credit"] = saved if not split else split[2]
        if look == 4:
            self.body(11, self.dma_kv_abs(("kv", 15), 3), tog=self.tog())
            self.body(12, [])
        else:
            self.body(11, self.dma_kv_abs(("kv", 14), 2), tog=self.tog())
            self.body(12, self.dma_kv_abs(("kv", 15), 3))
        self.o["credit"] = saved
    def attention_tail(self, last):
        fuse = self.o.get("fuse")
        prep_here = ((not last) if fuse else last) and not self.o.get("woearly") and not self.o.get("womid") and not self.o.get("rawwo")
        self.stamp(True)
        if prep_here:
            W = self.wo_prep_groups(); h = 9 + 4*3
            self.body(13, self.dma_wo_last(), tog=self.tog())
            self.body(14, [], extra=W[:h])
            self.body(15, (self.w_tile(0, 1) + self.x_tile(0) + ([] if self.o.get("w1late") else self.w_tile(1, 1))) if not last else [], tog=self.tog(), extra2=W[h:])
        elif not last:
            self.body(13, self.warm_wo() if self.o.get("rawwo") else [], tog=self.tog())
            self.body(14, [])
            self.body(15, self.w_tile(0, 1) + self.x_tile(0) + ([] if self.o.get("w1late") else self.w_tile(1, 1)), tog=self.tog())
        else:
            self.body(13, [], tog=self.tog(), extra2=[[x] for x in self.k3_setup()])
            self.body(14, [], extra2=[self.poll_issue(f"v_mov_b32 VDST, s{sC1}")] + ([[x] for x in self.k3_setup2()] if self.o.get("rawwo") and self.o.get("apre", True) else []))
            if self.o.get("rawwo") and self.o.get("apre", True):
                A3 = self.k3_loads(0, 0, 0, "A") + self.k3_loads(1, 1, 1, "A") + self.k3_loads(2, 2, 2, "A")
                self.body(15, A3, tog=self.tog())
            else:
                self.body(15, [], tog=self.tog())
            self.poll_check(8 if self.o.get('rawwo') else 128)
    def wo_prep_groups(self, stage=False):
        setup = [ins("v_and_b32 v33, 15, v0"), ins("v_lshrrev_b32 v34, 4, v0"), ins("v_lshrrev_b32 v35, 2, v33"), ins("v_and_b32 v33, 3, v33"),
                 ins("v_lshl_add_u32 v32, v34, 2, v35"), ins("v_lshlrev_b32 v32, 10, v32"), ins("v_lshl_add_u32 v32, v33, 4, v32"),
                 ins(f"s_lshl_b32 s88, s{sW}, 8"), ins("v_add_u32 v32, s88, v32")]
        G = [[x] for x in setup]
        mod = self.o['last_store_mod']
        for nt in range(8):
            u, par = nt >> 1, nt & 1
            d = 252 if not stage else OS(nt + (0 if stage is True else stage))
            G.append([ins(f"ds_read_b64_tr_b16 a[{d}:{d+1}], v32 offset:{64*u + 8*par}")])
            G.append([ins(f"ds_read_b64_tr_b16 a[{d+2}:{d+3}], v32 offset:{16384 + 64*u + 8*par}")])
            if stage: continue
            g = []
            if nt % 4 == 0: g.append(ins(f"s_add_u32 s{sT2}, s{sWTo}, {nt*1024}"))
            g.append(ins(f"buffer_store_dwordx4 a[{d}:{d+3}], v{VST}, s[{SWT}:{SWT+3}], s{sT2} offen offset:{(nt % 4)*1024} {mod}"))
            G.append(g)
        return G
    def warm_wo(self):
        G = []
        for half in range(2):
            g = [ins(f"s_add_u32 s{sT1}, s{sWOo}, {half*4096}")]
            for n in range(4):
                i = ins(f"buffer_load_dwordx4 a[252:255], v{VST}, s[{SWO}:{SWO+3}], s{sT1} offen offset:{1024*n}", tag=("warm",))
                i.kind = "dma"; i.wr = set(); i.rd.discard("m0")
                g.append(i); G.append(g); g = []
        return G
    def dma_wo_last(self):
        G = []
        for half in range(2):
            g = [ins(f"s_add_u32 s{sT1}, s{sWOo}, {half*4096}"), ins(f"s_lshl_b32 s{sWoM}, s{sW}, 13"), ins(f"s_add_u32 m0, s{sWoM}, {half*4096}")]
            for n in range(4):
                g.append(ins(f"buffer_load_dwordx4 v{VST}, s[{SWO}:{SWO+3}], s{sT1} offen offset:{1024*n} nt lds", tag=("wo",)))
                G.append(g); g = []
        return G

    FLAG = 131072
    def softmax_check(self, item):
        p = self.p
        t = S(0, 0)
        for qt in range(6): p(f"v_accvgpr_read_b32 v{t+qt}, a{LA(qt)}")
        p(f"v_max3_f32 v{t+6}, v{t}, v{t+1}, v{t+2}"); p(f"v_min3_f32 v{t+7}, v{t}, v{t+1}, v{t+2}")
        p(f"v_max3_f32 v{t+6}, v{t+6}, v{t+3}, v{t+4}"); p(f"v_min3_f32 v{t+7}, v{t+7}, v{t+3}, v{t+4}")
        p(f"v_max_f32 v{t+6}, v{t+6}, v{t+5}"); p(f"v_min_f32 v{t+7}, v{t+7}, v{t+5}")
        p(f"v_cmp_nge_f32 vcc, {f32(2.0**20)}, v{t+6}")
        p("s_mov_b64 s[88:89], vcc")
        p(f"v_cmp_nle_f32 vcc, {f32(2.0**-12)}, v{t+7}")
        p("s_or_b64 s[88:89], s[88:89], vcc")
        p("s_cmp_lg_u64 s[88:89], 0"); p("s_cselect_b32 s88, 1, 0")
        p(f"v_mov_b32 v{t}, s88"); p(f"s_lshl_b32 s89, s{sW}, 2"); p(f"s_add_u32 s89, s89, {self.FLAG}"); p(f"v_mov_b32 v{t+1}, s89")
        p(f"ds_write_b32 v{t+1}, v{t}")
        p("s_waitcnt lgkmcnt(0)"); p("s_barrier")
        p(f"v_mov_b32 v{t+1}, {self.FLAG}")
        p(f"ds_read_b128 v[{t+4}:{t+7}], v{t+1}")
        p(f"v_or_b32 v{t+4}, v{t+4}, v{t+5}"); p(f"v_or_b32 v{t+6}, v{t+6}, v{t+7}"); p(f"v_or_b32 v{t+4}, v{t+4}, v{t+6}")
        p(f"v_readfirstlane_b32 s88, v{t+4}")
        p("s_cmp_lg_u32 s88, 0")
        p("s_cbranch_scc1 L_FB")
        p.raw(f"L_OE{item}:")

    def fallback(self):
        q = K2(self.o); q.phase = "fb"; p = q.p
        M = LS
        def load_tile():
            p(f"s_mov_b32 s{sT2}, s{sTc}")
            q.emit_groups(q.dma_kv_abs(("fb",), 0))
            p("s_waitcnt vmcnt(0)"); p("s_barrier")
        def qk(qt):
            for kt in range(2):
                for ks in range(4):
                    p.add(mfma(S(0, kt), "v", KF(0, kt, ks), "a", Q(qt, ks), "a", None if ks == 0 else S(0, kt)))
        p.raw("L_FB:")
        p("s_waitcnt vmcnt(0) lgkmcnt(0)"); p("s_barrier")
        p(f"s_mov_b32 s{SKV+2}, {KV_BYTES}")
        for qt in range(6): p(f"v_mov_b32 v{M+qt}, 0xff800000")
        p(f"s_lshl_b32 s{sTc}, s{sItem}, 17"); p(f"s_mov_b32 s{sCnt}, 16")
        p.raw("L_FB1:")
        load_tile()
        for kt in range(2):
            for ks in range(4): p.add(q.rd_k(0, kt, ks))
        for qt in range(6):
            qk(qt)
            e = [S(0, 0)+r for r in range(4)] + [S(0, 1)+r for r in range(4)]
            for k in range(0, 8, 2): p(f"v_max3_f32 v{M+qt}, v{e[k]}, v{e[k+1]}, v{M+qt}")
        p("s_waitcnt lgkmcnt(0)"); p("s_barrier")
        p(f"s_sub_u32 s{sCnt}, s{sCnt}, 1"); p(f"s_cmp_lg_u32 s{sCnt}, 0"); p("s_cbranch_scc1 L_FB1")
        t = S(1, 0)
        for qt in range(6):
            m = M + qt
            p(f"v_mov_b32 v{t}, v{m}"); p(f"v_permlane32_swap_b32 v{t}, v{m}"); p(f"v_max_f32 v{m}, v{m}, v{t}")
            p(f"v_mov_b32 v{t}, v{m}"); p(f"v_permlane16_swap_b32 v{t}, v{m}"); p(f"v_max_f32 v{m}, v{m}, v{t}")
        for r in range(192): p(f"v_mov_b32 v{ACC+r}, 0")
        p(f"v_mov_b32 v{t}, 0")
        for r in range(24): p(f"v_accvgpr_write_b32 a{LA(0)+r}, v{t}")
        p(f"s_lshl_b32 s{sTc}, s{sItem}, 17"); p(f"s_mov_b32 s{sCnt}, 16")
        p("s_nop 7")
        p.raw("L_FB2:")
        load_tile()
        for kt in range(2):
            for ks in range(4): p.add(q.rd_k(0, kt, ks))
        for dt in range(8):
            p.add(q.rd_v(0, dt, 0)); p.add(q.rd_v(0, dt, 1))
        for qt in range(6):
            qk(qt)
            e = [S(0, 0)+r for r in range(4)] + [S(0, 1)+r for r in range(4)]
            for k in range(8): p(f"v_sub_f32 v{e[k]}, v{e[k]}, v{M+qt}")
            for k in range(8): p(f"v_exp_f32 v{e[k]}, v{e[k]}")
            for k in range(0, 8, 2): p(f"v_cvt_pk_bf16_f32 v{P(0)+k//2}, v{e[k]}, v{e[k+1]}")
            for dt in range(8): p.add(mfma(acc(dt, qt), "v", VF(0, dt), "a", P(0), "v", acc(dt, qt)))
            p.add(mfma(LA(qt), "a", ONES, "a", P(0), "v", LA(qt)))
        p("s_waitcnt lgkmcnt(0)"); p("s_nop 7"); p("s_nop 7"); p("s_barrier")
        p(f"s_sub_u32 s{sCnt}, s{sCnt}, 1"); p(f"s_cmp_lg_u32 s{sCnt}, 0"); p("s_cbranch_scc1 L_FB2")
        p("s_nop 7"); p("s_nop 7")
        p(f"s_cmp_eq_u32 s{sItem}, 0"); p("s_cbranch_scc1 L_OE0")
        if self.o.get("fuse"):
            for x in self.k3_setup(): p.add(x)
            if self.o.get("rawwo") and self.o.get("apre", True):
                for x in self.k3_setup2(): p.add(x)
                for g in self.k3_loads(0, 0, 0, "A") + self.k3_loads(1, 1, 1, "A") + self.k3_loads(2, 2, 2, "A"):
                    for x in g: p.add(x)
        p("s_branch L_OE1")
        L, st = finalize(p.L)
        return L

    def signal(self, offreg_txt, uid=None):
        uid = uid or self.uid()
        L = [ins(f"s_cmp_lg_u32 s{sW}, 0"), ins(f"s_cbranch_scc1 L_sig{uid}"),
             ins(f"v_mov_b32 v{VPOLL+1}, 1"), ins(offreg_txt), ins("s_mov_b64 exec, 1"),
             ins(f"buffer_atomic_add v{VPOLL+1}, v{VPOLL+2}, s[{SFL}:{SFL+3}], 0 offen sc1"),
             ins("s_mov_b64 exec, -1")]
        for x in L: x.meta["alt"] = True
        L.append(I(f"L_sig{uid}:", "label"))
        return L
    def uid(self):
        self._uid = getattr(self, "_uid", 0) + 1
        return self._uid
    def poll_issue(self, off_txt):
        return [ins(off_txt.replace("VDST", f"v{VPOLL+3}")), ins(f"buffer_load_dword v{VPOLL}, v{VPOLL+3}, s[{SFL}:{SFL+3}], 0 offen sc1")]
    def poll_check(self, target):
        p = self.p
        uid = self.uid()
        p(f"v_readfirstlane_b32 s88, v{VPOLL}")
        p(f"s_cmp_ge_u32 s88, {target}"); p(f"s_cbranch_scc1 L_ok{uid}")
        L = [f"s_mov_b32 s89, 0x40000", f"L_spin{uid}:", "s_sleep 2",
             f"buffer_load_dword v{VPOLL}, v{VPOLL+3}, s[{SFL}:{SFL+3}], 0 offen sc1", "s_waitcnt vmcnt(0)",
             f"v_readfirstlane_b32 s88, v{VPOLL}", "s_nop 3", "s_sub_u32 s89, s89, 1", "s_cmp_eq_u32 s89, 0", f"s_cbranch_scc1 L_ok{uid}",
             f"s_cmp_lt_u32 s88, {target}", f"s_cbranch_scc1 L_spin{uid}"]
        for t in L: p.add(I(t, "label", verbatim=True))
        p.raw(f"L_ok{uid}:")

    def k3_setup(self):
        L = []
        A = lambda t: L.append(ins(t))
        A(f"s_and_b32 s88, s{sHG}, 3"); A(f"s_lshr_b32 s89, s{sHG}, 2")
        A(f"s_lshl_b32 s90, s{sP}, 2"); A("s_add_u32 s90, s90, s88"); A("s_lshl_b32 s90, s90, 7"); A(f"s_lshl_b32 s91, s{sW}, 5"); A("s_add_u32 s90, s90, s91"); A("s_lshl_b32 s90, s90, 13")
        rot = self.o.get("k3rot", True)
        if rot: A(f"s_and_b32 s{kRho}, s{sB}, 3"); A(f"s_add_u32 s{kRho}, s{kRho}, s{sW}")
        else: A(f"s_mov_b32 s{kRho}, s{sW}")
        for pr in range(4):
            A(f"s_add_u32 s91, s{kRho}, {pr}"); A("s_and_b32 s91, s91, 3"); A("s_lshl_b32 s91, s91, 11"); A(f"s_add_u32 s{kA+pr}, s90, s91")
        if rot: A("s_lshr_b32 s91, s88, 1"); A(f"s_add_u32 s{kSig}, s88, s91")
        else: A(f"s_mov_b32 s{kSig}, 0")
        for qt in range(6):
            A(f"s_add_u32 s91, s{kSig}, {qt}"); A("s_cmp_ge_u32 s91, 6"); A("s_cselect_b32 s98, 6, 0"); A("s_sub_u32 s91, s91, s98"); A("s_lshl_b32 s91, s91, 10")
            A(f"v_add_u32 v{VBQ+qt}, s91, v{VST}")
        A(f"s_lshl_b32 s90, s{sP}, 4"); A(f"s_add_u32 s90, s90, s{sB}"); A("s_lshl_b32 s90, s90, 1"); A("s_add_u32 s90, s90, s89"); A("s_lshl_b32 s90, s90, 7")
        A(f"s_lshl_b32 s91, s{sW}, 5"); A("s_add_u32 s90, s90, s91"); A(f"s_mul_i32 s{kBo}, s90, 6144")
        A(f"s_mul_i32 s90, s{sB}, 192"); A("s_mul_i32 s91, s89, 96"); A("s_add_u32 s90, s90, s91"); A("s_lshl_b32 s90, s90, 11")
        A(f"s_lshl_b32 s91, s{sP}, 10"); A("s_add_u32 s90, s90, s91"); A("s_lshl_b32 s91, s88, 8"); A("s_add_u32 s90, s90, s91")
        A(f"s_and_b32 s91, s{kRho}, 3"); A("s_lshl_b32 s91, s91, 6"); A(f"s_add_u32 s{kOut}, s90, s91")
        A(f"s_mov_b32 s{SX}, s68"); A(f"s_mov_b32 s{SX+1}, s69"); A(f"s_mov_b32 s{SX+2}, {OUT_BYTES}"); A(f"s_mov_b32 s{SX+3}, 0x00020000")
        A(f"v_add_u32 v{VB4}, 4096, v{VST}")
        if self.o.get("rawwo"):
            A(f"s_lshl_b32 s90, s{sW}, 20"); A("s_lshl_b32 s91, s88, 8"); A(f"s_add_u32 s{kA}, s90, s91")
            A(f"s_lshl_b32 s{kA+1}, s{sW}, 15")
        return L
    def k3_setup2(self):
        L = []
        A = lambda t: L.append(ins(t))
        A("v_and_b32 v32, 15, v0"); A("v_lshrrev_b32 v33, 4, v0"); A("v_lshlrev_b32 v35, 2, v33"); A("v_xor_b32 v35, v35, v32"); A("v_lshlrev_b32 v35, 4, v35")
        A(f"v_lshl_add_u32 v{VAD2[0]}, v33, 10, v35")
        for n in range(1, 4): A(f"v_add_u32 v{VAD2[n]}, {n*3072}, v{VAD2[0]}")
        A("v_lshrrev_b32 v35, 2, v32"); A("v_and_b32 v32, 3, v32")
        A("v_lshl_add_u32 v33, v33, 2, v35"); A("v_lshlrev_b32 v33, 8, v33"); A(f"v_add_u32 v33, s{kA+1}, v33")
        A("v_lshlrev_b32 v35, 2, v35")
        for pr in range(4):
            A(f"s_add_u32 s91, s{kRho}, {pr}"); A("s_and_b32 s91, s91, 3"); A("s_lshl_b32 s91, s91, 2")
            A(f"v_add_u32 v{VAR2+pr}, s91, v32"); A(f"v_xor_b32 v{VAR2+pr}, v{VAR2+pr}, v35"); A(f"v_lshl_add_u32 v{VAR2+pr}, v{VAR2+pr}, 4, v33")
        return L
    def k3_loads(self, b, o, j=None, part=None):
        m = self.o.get("k3_ld", "sc1")
        raw = self.o.get("rawwo")
        bf = BF2 if raw else BF
        G = []
        for qt in range(6):
            g = [ins(f"s_add_u32 s{kT0}, s{kBo}, {o*6144}")] if qt == 0 else []
            g.append(ins(f"buffer_load_dwordx4 {rng('a', bf(b, qt), 4)}, v{VBQ+qt}, s[{SO}:{SO+3}], s{kT0} offen {m}"))
            G.append(g)
        if raw:
            for half in range(2):
                g = [ins(f"s_add_u32 s{kT1}, s{kA}, {o*32768 + half*16384}"), ins(f"s_add_u32 m0, s{kA+1}, {b*8192 + half*4096}")]
                for n in range(4):
                    g.append(ins(f"buffer_load_dwordx4 v{VAD2[n]}, s[{SWO}:{SWO+3}], s{kT1} offen offset:{1024*n} lds", tag=("A", j)))
                    G.append(g); g = []
            if part == "A": return G[6:]
            if part == "B": return G[:6]
            if self.o.get("afirst"): G = G[6:] + G[:6]
            return G
        for pr in range(4):
            t = kT1 if pr % 2 == 0 else kT0
            G.append([ins(f"s_add_u32 s{t}, s{kA+pr}, {o*8192}"),
                      ins(f"buffer_load_dwordx4 {rng('a', AF(b, 2*pr), 4)}, v{VST}, s[{SWT}:{SWT+3}], s{t} offen {m}")])
            G.append([ins(f"buffer_load_dwordx4 {rng('a', AF(b, 2*pr+1), 4)}, v{VST}, s[{SWT}:{SWT+3}], s{t} offen offset:1024 {m}")])
        return G
    def k3_tr(self, t):
        L = []
        for nu in range(8):
            pr, par = nu >> 1, nu & 1
            d = AF2(t % 2, nu)
            L.append(ins(f"ds_read_b64_tr_b16 a[{d}:{d+1}], v{VAR2+pr} offset:{(t % 4)*8192 + 8*par}"))
            L.append(ins(f"ds_read_b64_tr_b16 a[{d+2}:{d+3}], v{VAR2+pr} offset:{(t % 4)*8192 + 4096 + 8*par}"))
        return L
    def k3_adv(self, steps):
        if self.o.get("rawwo"):
            return [ins(f"s_add_u32 s{kA}, s{kA}, {(steps*32768) & 0xffffffff}"), ins(f"s_add_u32 s{kBo}, s{kBo}, {(steps*6144) & 0xffffffff}")]
        return [ins(f"s_add_u32 s{kA+pr}, s{kA+pr}, {(steps*8192) & 0xffffffff}") for pr in range(4)] + [ins(f"s_add_u32 s{kBo}, s{kBo}, {(steps*6144) & 0xffffffff}")]
    def k3_step(self, t, G, extra=(), dst=None, order=None, post=None):
        p = self.p
        dst = dst if dst is not None else []
        raw = self.o.get("rawwo")
        b = t % 4
        af = (lambda nu: AF2(t % 2, nu)) if raw else (lambda nu: AF(b, nu))
        bf = (lambda qt: BF2(b, qt)) if raw else (lambda qt: BF(b, qt))
        tr = []
        if raw and t + 1 <= 31:
            p.wait_tag(("A", t+1)); tr = self.k3_tr(t+1)
        n = 0
        extra = list(extra)
        for nu in (order or range(8)):
            for qt in range(6):
                p.add(mfma(oacc(nu, qt), "v", af(nu), "a", bf(qt), "a", None if t == 0 else oacc(nu, qt)))
                if n % 3 == 1 and n//3 < len(G):
                    for x in G[n//3]: p.add(x)
                elif tr and n % 3 != 1 and n >= 2: p.add(tr.pop(0))
                if n == 44:
                    for x in extra: p.add(x)
                if n in (8, 17, 26, 35, 43) and dst:
                    for x in dst.pop(0): p.add(x)
                if post: post(nu, qt)
                n += 1
        assert not tr
    def k3_main(self):
        p = self.p
        D = self.deferred
        if self.o.get("rawwo"):
            p.wait_tag(("A", 0))
            for x in self.k3_tr(0): p.add(x)
        if D:
            assert len(D) <= 24
            self.k3_step(0, self.k3_loads(3, 3, 3), extra=self.k3_adv(8), dst=D)
            for t in range(1, 9):
                i = (t-1) % 4
                self.k3_step(t, self.k3_loads((t+3) % 4, i, t+3), extra=self.k3_adv(8) if i == 3 else [], dst=D)
                if t == self.o.get("sig2", 7 if self.o.get("rawwo") else 6):
                    p.wait_tag(("o",)); p("s_barrier")
                    for x in self.signal(f"v_mov_b32 v{VPOLL+2}, s{sC2o}", uid="g2"): p.add(x)
            assert not D
            for i in range(4):
                t = 9 + i
                self.k3_step(t, self.k3_loads((t+3) % 4, i, t+3), extra=self.k3_adv(8) if i == 3 else [])
                if i == 2:
                    for x in self.poll_issue(f"v_mov_b32 VDST, s{sC2o}"): p.add(x)
        else:
            self.k3_step(0, self.k3_loads(3, 3, 3), extra=self.k3_adv(8))
            p(f"s_mov_b32 s{kCnt}, 3")
            for k in range(3):
                p.raw(f"@@LB k3a {k}")
                for i in range(4):
                    t = 1 + 4*k + i
                    ex = self.k3_adv(8) if i == 3 else []
                    self.k3_step(t, self.k3_loads((t+3) % 4, i, t+3), extra=ex)
                    if i == 1:
                        uid = "k3s"
                        p(f"s_cmp_lg_u32 s{kCnt}, 3"); p(f"s_cbranch_scc1 L_{uid}")
                        p.wait_tag(("o",)); p("s_barrier")
                        for x in self.signal(f"v_mov_b32 v{VPOLL+2}, s{sC2o}", uid="g2"): p.add(x)
                        p.raw(f"L_{uid}:")
                    if i == 2:
                        for x in self.poll_issue(f"v_mov_b32 VDST, s{sC2o}"): p.add(x)
                p(f"s_sub_u32 s{kCnt}, s{kCnt}, 1"); p(f"s_cmp_lg_u32 s{kCnt}, 0"); p("s_cbranch_scc1 L_k3a")
                p.raw(f"@@LE k3a {k}")
        self.stamp()
        for x in self.k3_adv(4 - 32): p.add(x)
        self.poll_check(16 if self.o.get('rawwo') else 8)
        for i in range(4):
            t = 13 + i
            self.k3_step(t, self.k3_loads((t+3) % 4, i, t+3), extra=self.k3_adv(8) if i == 3 else [])
        p(f"s_mov_b32 s{kCnt}, 3")
        for k in range(3):
            p.raw(f"@@LB k3b {k}")
            for i in range(4):
                t = 17 + 4*k + i
                self.k3_step(t, self.k3_loads((t+3) % 4, i, t+3), extra=self.k3_adv(8) if i == 3 else [])
            p(f"s_sub_u32 s{kCnt}, s{kCnt}, 1"); p(f"s_cmp_lg_u32 s{kCnt}, 0"); p("s_cbranch_scc1 L_k3b")
            p.raw(f"@@LE k3b {k}")
        for t in (29, 30): self.k3_step(t, [])
        if self.o.get("redovl", True):
            for pr, v in ((1, 7), (2, 2), (3, 3)):
                p(f"s_add_u32 s88, s{sW}, {pr}"); p("s_and_b32 s88, s88, 3"); p("s_mul_i32 s88, s88, 36864"); p(f"s_add_u32 s88, s88, {(pr-1)*12288}")
                p(f"v_add_u32 v{v}, s88, v{VST}")
            if self.o.get("rawwo"):
                p("s_waitcnt lgkmcnt(0)"); p("s_barrier")
            pend = []
            def post(nu, qt):
                if pend and qt in (1, 3, 5): p.add(pend.pop(0))
                if qt == 5 and nu >= 2:
                    pr, par = nu >> 1, nu & 1
                    v = {1: 7, 2: 2, 3: 3}[pr]
                    pend.extend(ins(f"ds_write_b128 v{v}, v[{oacc(nu, q)}:{oacc(nu, q)+3}] offset:{(par*6 + q)*1024}") for q in range(6))
            self.k3_step(31, [], order=[2, 3, 4, 5, 6, 7, 0, 1], post=post)
            self.red_pending = pend
        else:
            assert not self.o.get("rawwo")
            self.k3_step(31, [])
        self.stamp()
        if self.o.get("redovl", True):
            for x in self.red_pending: p.add(x)
            p(f"s_mul_i32 s88, s{sW}, 36864"); p(f"v_add_u32 v8, s88, v{VST}")
        else:
            for pr, v in ((1, 7), (2, 2), (3, 3)):
                p(f"s_add_u32 s88, s{sW}, {pr}"); p("s_and_b32 s88, s88, 3"); p("s_mul_i32 s88, s88, 36864"); p(f"s_add_u32 s88, s88, {(pr-1)*12288}")
                p(f"v_add_u32 v{v}, s88, v{VST}")
            p(f"s_mul_i32 s88, s{sW}, 36864"); p(f"v_add_u32 v8, s88, v{VST}")
            for pr, v in ((1, 7), (2, 2), (3, 3)):
                for par in range(2):
                    for qt in range(6):
                        a = oacc(2*pr + par, qt)
                        p(f"ds_write_b128 v{v}, v[{a}:{a+3}] offset:{(par*6 + qt)*1024}")
        p("s_waitcnt lgkmcnt(0)")
        p("s_barrier")
        for sl in range(3):
            for par in range(2):
                for qt in range(6):
                    a = oacc(2*(sl+1) + par, qt)
                    p(f"ds_read_b128 v[{a}:{a+3}], v8 offset:{sl*12288 + (par*6 + qt)*1024}")
        p("v_and_b32 v12, 15, v0"); p("v_lshrrev_b32 v13, 4, v0"); p("v_lshlrev_b32 v12, 11, v12"); p("v_lshl_add_u32 v9, v13, 4, v12")
        for qt in range(6):
            for par in range(2):
                a = oacc(par, qt)
                for sl in range(3):
                    s_ = oacc(2*(sl+1) + par, qt)
                    for r in (0, 2): p(f"v_pk_add_f32 v[{a+r}:{a+r+1}], v[{a+r}:{a+r+1}], v[{s_+r}:{s_+r+1}]")
            a0, a1 = oacc(0, qt), oacc(1, qt)
            t0 = 16 + (qt % 4)*4
            p(f"v_cvt_pk_bf16_f32 v{t0}, v{a0}, v{a0+1}"); p(f"v_cvt_pk_bf16_f32 v{t0+1}, v{a0+2}, v{a0+3}")
            p(f"v_cvt_pk_bf16_f32 v{t0+2}, v{a1}, v{a1+1}"); p(f"v_cvt_pk_bf16_f32 v{t0+3}, v{a1+2}, v{a1+3}")
            p(f"s_add_u32 s88, s{kSig}, {qt}"); p("s_cmp_ge_u32 s88, 6"); p("s_cselect_b32 s89, 6, 0"); p("s_sub_u32 s88, s88, s89"); p("s_lshl_b32 s88, s88, 15")
            p(f"s_add_u32 s{kT0}, s{kOut}, s88")
            p(f"buffer_store_dwordx4 v[{t0}:{t0+3}], v9, s[{SX}:{SX+3}], s{kT0} offen {self.o.get('out_mod', '')}")

    def o_epilogue(self, last):
        p = self.p
        fuse_last = last and self.o.get("fuse")
        pre = []
        raw = self.o.get("rawwo")
        if fuse_last:
            apre = raw and self.o.get("apre", True)
            if raw and not apre:
                for x in self.k3_setup2(): p.add(x)
            part = "B" if apre else None
            pre = self.k3_loads(0, 0, 0, part) + self.k3_loads(1, 1, 1, part) + self.k3_loads(2, 2, 2, part)
        defer = fuse_last and self.o.get("defer", True)
        self.deferred = []
        for qt in range(6): p(f"v_accvgpr_read_b32 v{LS+qt}, a{LA(qt)}")
        for qt in range(6): p(f"v_rcp_f32 v{LS+qt}, v{LS+qt}")
        vstage = [8, 12, 16, 20, 24, 28, 38, 42, 46, 50]
        ndir = 6
        nag = 8; abase = 224
        if fuse_last and raw:
            vstage = vstage[:8]; ndir = self.o.get("ndir", 4); nag = 24 - ndir; abase = 160
        for qt in range(6):
            for ks in range(4):
                m = qt*4 + ks
                a0, a1 = acc(2*ks, qt), acc(2*ks+1, qt)
                l = LS + qt
                if self.o.get("pk", True):
                    lp = l & ~1; sel = "op_sel_hi:[1,0]" if l % 2 == 0 else "op_sel:[0,1] op_sel_hi:[1,1]"
                    for a in (a0, a0+2, a1, a1+2): p(f"v_pk_mul_f32 v[{a}:{a+1}], v[{a}:{a+1}], v[{lp}:{lp+1}] {sel}")
                else:
                    for r in range(4): p(f"v_mul_f32 v{a0+r}, v{l}, v{a0+r}")
                    for r in range(4): p(f"v_mul_f32 v{a1+r}, v{l}, v{a1+r}")
                if defer: t0 = ((12 if m % 2 == 0 else 8) if raw else 54) if m < ndir + nag else vstage[m - ndir - nag]
                else: t0 = SB + ((ks + 4*qt) % 6)*4
                p(f"v_cvt_pk_bf16_f32 v{t0}, v{a0}, v{a0+1}")
                p(f"v_cvt_pk_bf16_f32 v{t0+1}, v{a0+2}, v{a0+3}")
                p(f"v_cvt_pk_bf16_f32 v{t0+2}, v{a1}, v{a1+1}")
                p(f"v_cvt_pk_bf16_f32 v{t0+3}, v{a1+2}, v{a1+3}")
                n = ks*6 + qt
                mod = self.o['last_store_mod']
                if last:
                    for _ in range(2):
                        if pre:
                            for x in pre.pop(0): p.add(x)
                    if not defer or m < ndir:
                        p(f"s_add_u32 s{sT0}, s{sOo}, {n*1024}")
                        p(f"buffer_store_dwordx4 v[{t0}:{t0+3}], v{VST}, s[{SO}:{SO+3}], s{sT0} offen {mod}", tag=("o",))
                    else:
                        if m < ndir + nag:
                            d = abase + (m - ndir)*4
                            for r in range(4): p(f"v_accvgpr_write_b32 a{d+r}, v{t0+r}")
                            src = f"a[{d}:{d+3}]"
                        else: src = f"v[{t0}:{t0+3}]"
                        self.deferred.append([ins(f"s_add_u32 s{sT2}, s{sOo}, {n*1024}"),
                                              ins(f"buffer_store_dwordx4 {src}, v{VST}, s[{SO}:{SO+3}], s{sT2} offen {mod}", tag=("o",))])
                else:
                    for r in range(4): p(f"v_accvgpr_write_b32 a{OS(n)+r}, v{t0+r}")

    def final(self):
        p = self.p
        p.wait_tag(("wo",))
        p("s_barrier")
        p("v_and_b32 v8, 15, v0"); p("v_lshrrev_b32 v2, 4, v0"); p("v_lshrrev_b32 v3, 2, v8"); p("v_and_b32 v7, 3, v8")
        p("v_lshl_add_u32 v6, v2, 2, v3"); p("v_lshlrev_b32 v6, 10, v6"); p("v_lshl_add_u32 v6, v7, 4, v6")
        p(f"s_lshl_b32 s88, s{sW}, 8"); p("v_add_u32 v6, s88, v6")
        for nt in range(8):
            u, par = nt >> 1, nt & 1
            d = 32 + nt*4
            p(f"ds_read_b64_tr_b16 v[{d}:{d+1}], v6 offset:{64*u + 8*par}")
            p(f"ds_read_b64_tr_b16 v[{d+2}:{d+3}], v6 offset:{16384 + 64*u + 8*par}")
        for nt in range(8):
            d = 32 + nt*4
            if nt % 4 == 0: p(f"s_add_u32 s{sT1}, s{sWTo}, {nt*1024}")
            p(f"buffer_store_dwordx4 v[{d}:{d+3}], v{VST}, s[{SWT}:{SWT+3}], s{sT1} offen offset:{(nt % 4)*1024} {self.o['last_store_mod']}")

    def build(self):
        p = self.p
        assert self.o["msum"]
        self.prologue()
        if self.o["timing"]: p("s_mov_b32 s99, 0")
        if self.o.get("delaywg"):
            p("s_and_b32 s88, s2, 7"); p("s_cmp_lg_u32 s88, 3"); p("s_cbranch_scc1 L_nodelay")
            p("s_memrealtime s[88:89]"); p("s_waitcnt lgkmcnt(0)"); p(f"s_add_u32 s90, s88, {self.o['delaywg']}")
            p.raw("L_spinw:"); p("s_memrealtime s[88:89]"); p("s_waitcnt lgkmcnt(0)"); p("s_cmp_lt_u32 s88, s90"); p("s_cbranch_scc1 L_spinw")
            p.raw("L_nodelay:")
        self.stamp()
        if self.o.get("entry"):
            p("s_mov_b32 m0, 62"); p("s_nop 1"); p("v_writelane_b32 v5, s100, m0")
        early = self.o.get("woearly")
        p(f"s_mov_b32 s{SO+2}, {0 if self.o.get('stA') else O_BYTES}")
        mid = self.o.get("womid")
        if mid:
            assert self.o.get("stA") and self.o.get("fuse") and self.o.get("stpat") == 3
            self.emit_groups(self.w_tile(0, 0) + self.x_tile(0) + self.w_tile(1, 0) + self.dma_wo_last())
        elif early:
            assert self.o.get("stA") and self.o.get("fuse")
            self.emit_groups(self.w_tile(0, 0) + self.x_tile(0) + self.dma_wo_last() + self.w_tile(1, 0))
        else:
            self.emit_groups(self.w_tile(0, 0) + self.x_tile(0) + ([] if self.o.get("w1late") else self.w_tile(1, 0)))
        self.prologue2()
        if mid:
            p(f"s_mov_b32 s{sOreal}, s{sOo}"); p(f"s_mov_b32 s{sOo}, {4*6144}")
            p(f"s_add_u32 s{SO}, s{SWT}, s{sWTo}"); p(f"s_addc_u32 s{SO+1}, s{SWT+1}, 0")
            p(f"s_sub_u32 s{SO}, s{SO}, {12*1024}"); p(f"s_subb_u32 s{SO+1}, s{SO+1}, 0")
            p(f"s_mov_b32 s{SO+2}, 0"); p(f"s_mov_b32 s{sSz1}, {20*1024}"); p(f"s_mov_b32 s{sSz2}, 0")
        if early:
            p(f"s_mov_b32 s{sOreal}, s{sOo}"); p(f"s_mov_b32 s{sOo}, {4*6144}")
            p(f"s_add_u32 s{SO}, s{SWT}, s{sWTo}"); p(f"s_addc_u32 s{SO+1}, s{SWT+1}, 0"); p(f"s_mov_b32 s{SO+2}, 8192")
            W = self.wo_prep_groups(stage=True)
            for g in W[:9]:
                for x in g: p.add(x)
            p.wait_tag(("wo",)); p("s_barrier")
            for g in W[9:]:
                for x in g: p.add(x)
        for item in range(2):
            last = item == 1
            p.raw("@@SB A"); self.qproj_a(); p.raw("@@SE A")
            p.raw(f"@@SB B{item}"); self.qproj_b(last); self.stamp(); p.raw(f"@@SE B{item}")
            p.raw("@@SB C"); self.attention_shared(); p.raw("@@SE C")
            p.raw(f"@@SB D{item}")
            self.attention_tail(last)
            self.stamp()
            if self.o.get("guard", True): self.softmax_check(item)
            self.o_epilogue(last)
            self.stamp()
            if not last:
                if self.o.get("woearly") or self.o.get("womid"):
                    p(f"s_mov_b32 s{sOo}, s{sOreal}"); p(f"s_mov_b32 s{SO}, s72"); p(f"s_mov_b32 s{SO+1}, s73")
                if self.o.get("womid"):
                    p(f"s_mov_b32 s{sSz1}, {O_BYTES}"); p(f"s_mov_b32 s{sSz2}, {O_BYTES}")
                p(f"s_add_u32 s{sWo}, s{sWo}, 256"); p(f"s_add_u32 s{sOo}, s{sOo}, {4*6144}")
                p(f"s_mov_b32 s{sItem}, 1"); p(f"s_mov_b32 s{SO+2}, {O_BYTES}")
            else:
                if self.o.get("fuse"): self.k3_main()
                self.stamp()
                p("s_waitcnt vmcnt(0)")
                self.stamp()
                self.stamp_flush()
                p("s_waitcnt vmcnt(0)")
            p.raw(f"@@SE D{item}")
        L, st = finalize(p.L)
        L = fold(L)
        segs, top = segments(L)
        out = [i for k, i in top if k == "ins"]
        lab = lambda t: I(t, "label")
        br = lambda tgt: [ins(f"s_cmp_eq_u32 s{sItem}, 1"), ins(f"s_cbranch_scc1 {tgt}")]
        out += [lab("L_A:")] + segs["A"] + br("L_B1") + segs["B0"] + [lab("L_C:")] + segs["C"] + br("L_D1") + segs["D0"] + [ins("s_branch L_A")]
        out += [lab("L_B1:")] + segs["B1"] + [ins("s_branch L_C")]
        out += [lab("L_D1:")] + segs["D1"] + [lab("K2_END:"), ins("s_endpgm")]
        if self.o.get("guard", True): out += self.fallback()
        return out, st

if __name__ == "__main__":
    k = K2(); L, st = k.build()
    print(st, len(L))
```
